```python
import torch

def _softmax(x, axis=-1):
    return torch.softmax(x, dim=axis)
def _gelu(x):
    return torch.nn.functional.gelu(x, approximate="tanh")
def _silu(x):
    return torch.nn.functional.silu(x)
def _sigmoid(x):
    return torch.sigmoid(x)
def _layernorm(x, axis=-1, eps=1e-5):
    m = x.mean(dim=axis, keepdim=True)
    v = x.var(dim=axis, keepdim=True, unbiased=False)
    return (x - m) / torch.sqrt(v + eps)
def _scatter_add(tgt, idx, src, axis=0):
    return tgt.clone().index_add_(axis, idx, src)
def _segment_sum(src, seg, n):
    out = torch.zeros((n,) + src.shape[1:], dtype=src.dtype)
    return out.index_add_(0, seg, src)
def _pad(x, pw):
    flat = tuple(v for pair in reversed(pw) for v in pair)
    return torch.nn.functional.pad(x, flat)

kernel_name = 'parallel_sum__sliding_block__glu_gated_geglu__prompt'

def setup_inputs():

    _w = (lambda a: (lambda t: t.to(torch.bfloat16) if t.is_floating_point() else t)(torch.as_tensor(a)))
    def _A_setup():
        B, S, D = 1, 2048, 512
        return {
            "x": _w((lambda *s: torch.randn(*s, dtype=torch.bfloat16) * 0.05)(B, S, D)),
            "wqkv": _w((lambda *s: torch.randn(*s, dtype=torch.bfloat16) * 0.05)(D, 3 * D)),
            "wo": _w((lambda *s: torch.randn(*s, dtype=torch.bfloat16) * 0.05)(D, D)),
        }
    _A_in = _A_setup()

    def _B_setup():
        B, S, Dm, Df = 1, 2048, 512, 1376
        return {
            "x": _w((lambda *s: torch.randn(*s, dtype=torch.bfloat16) * 0.05)(B, S, Dm)),
            "w_gate": _w((lambda *s: torch.randn(*s, dtype=torch.bfloat16) * 0.8)(Dm, Df) * (Dm ** -0.5)),
            "w_up": _w((lambda *s: torch.randn(*s, dtype=torch.bfloat16) * 0.8)(Dm, Df) * (Dm ** -0.5)),
            "w_down": _w((lambda *s: torch.randn(*s, dtype=torch.bfloat16) * 0.8)(Df, Dm) * (Df ** -0.5)),
        }
    _B_in = _B_setup()

    return {
        "A_x": _A_in["x"],
        "A_wqkv": _A_in["wqkv"],
        "A_wo": _A_in["wo"],
        "B_x": _B_in["x"],
        "B_w_gate": _B_in["w_gate"],
        "B_w_up": _B_in["w_up"],
        "B_w_down": _B_in["w_down"],
    }

def reference(A_x, A_wqkv, A_wo, B_x, B_w_gate, B_w_up, B_w_down):
    def _A_ref(x, wqkv, wo):
        B, S, D = x.shape
        H = 32; Dh = D // H; W = 256
        qkv = (lambda x, *d: x.permute(*d))((x @ wqkv).reshape(B, S, 3, H, Dh), 2, 0, 3, 1, 4)
        q, k, v = qkv[0], qkv[1], qkv[2]
        scores = torch.einsum("bhqd,bhkd->bhqk", q, k) * (Dh ** -0.5)
        idx = torch.arange(S)
        mask = (idx[:, None] - idx[None, :] >= 0) & (idx[:, None] - idx[None, :] < W)
        scores = torch.where(mask[None, None], scores, -1e9)
        p = _softmax(scores, axis=-1)
        o = torch.einsum("bhqk,bhkd->bhqd", p, v)
        return (lambda x, *d: x.permute(*d))(o, 0, 2, 1, 3).reshape(B, S, D) @ wo

    def _B_ref(x, w_gate, w_up, w_down):
        g = torch.einsum("bsd,df->bsf", x, w_gate)
        u = torch.einsum("bsd,df->bsf", x, w_up)
        h = _gelu(g) * u
        return torch.einsum("bsf,fd->bsd", h, w_down)

    x = A_x
    xn = _layernorm(x, axis=-1)
    return x + _A_ref(xn, A_wqkv, A_wo) + _B_ref(xn, B_w_gate, B_w_up, B_w_down)
```

```python
import re

TRANS = ("v_exp_f32", "v_log_f32", "v_rcp_f32", "v_rsq_f32", "v_sqrt_f32", "v_sin_f32", "v_cos_f32")

def regs_of(tok):
    tok = tok.strip()
    tok = tok.lstrip("-")
    if tok.startswith("abs(") or tok.startswith("|"):
        tok = tok.replace("abs(", "").replace(")", "").replace("|", "")
    m = re.fullmatch(r"([vas])\[(\d+):(\d+)\]", tok)
    if m:
        return [(m.group(1), i) for i in range(int(m.group(2)), int(m.group(3)) + 1)]
    m = re.fullmatch(r"([vas])(\d+)", tok)
    if m:
        return [(m.group(1), int(m.group(2)))]
    if tok == "vcc":
        return [("s", "vcc")]
    if tok == "exec":
        return [("s", "exec")]
    if tok == "m0":
        return [("s", "m0")]
    return []

class Ins:
    __slots__ = ("text", "op", "r", "w", "kind", "tag", "need", "srcC", "passes", "post")
    def __init__(self, text, tag=None, need=None):
        self.text = text.strip()
        self.tag = tag
        self.need = need
        self.srcC = []
        self.passes = 0
        self.post = ""
        t = self.text.split(";")[0].strip()
        if t.endswith(":"):
            self.op = "label"; self.kind = "label"; self.r = []; self.w = []; return
        parts = t.split(None, 1)
        op = parts[0]; self.op = op
        ops = []
        if len(parts) > 1:
            ops = [x.strip() for x in re.split(r",(?![^\[]*\])", parts[1])]
            last = ops[-1].split()
            mods = last[1:]
            ops[-1] = last[0] if last else ""
        else:
            mods = []
        R = lambda lst: [x for o in lst for x in regs_of(o)]
        r, w = [], []
        if op.startswith("v_mfma"):
            self.kind = "mfma"; self.passes = 8 if "32x32" in op else 4
            w = R(ops[:1]); r = R(ops[1:]); self.srcC = R(ops[3:4])
        elif op.startswith("v_cmp"):
            self.kind = "valu"; w = R(ops[:1]); r = R(ops[1:])
        elif op.startswith("v_permlane") and "swap" in op:
            self.kind = "valu"; w = R(ops[:2]); r = R(ops[:2])
        elif op.startswith("v_"):
            self.kind = "trans" if op.replace("_e32", "").replace("_e64", "") in TRANS else "valu"
            w = R(ops[:1]); r = R(ops[1:])
            if op.startswith("v_fmac") or op.startswith("v_dot2c") or op.startswith("v_writelane"):
                r += w
        elif op.startswith("ds_read"):
            self.kind = "ds"; w = R(ops[:1]); r = R(ops[1:])
        elif op.startswith("ds_"):
            self.kind = "ds"; r = R(ops)
        elif op.startswith("buffer_load"):
            if "lds" in mods:
                self.kind = "vm"; r = R(ops) + [("s", "m0")]
            else:
                self.kind = "vm"; w = R(ops[:1]); r = R(ops[1:])
        elif op.startswith("buffer_store") or op.startswith("buffer_atomic"):
            self.kind = "vm"; r = R(ops)
        elif op.startswith("s_load") or op in ("s_memtime", "s_memrealtime"):
            self.kind = "smem"; w = R(ops[:1]); r = R(ops[1:])
        elif op == "s_waitcnt":
            self.kind = "wait"
        elif op == "s_nop":
            self.kind = "nop"
        elif op in ("s_barrier", "s_sleep", "s_setprio", "s_endpgm"):
            self.kind = "misc"
        elif op.startswith("s_cbranch") or op == "s_branch":
            self.kind = "branch"
            if "vcc" in op: r = [("s", "vcc")]
        elif op.startswith("s_cmp"):
            self.kind = "salu"; r = R(ops)
        elif op.startswith("s_"):
            self.kind = "salu"; w = R(ops[:1]); r = R(ops[1:])
            if "saveexec" in op: w += [("s", "exec")]; r += [("s", "exec")]
        else:
            raise ValueError("unknown op: " + text)
        self.r = r; self.w = w

def I(text, tag=None, need=None):
    return Ins(text, tag, need)

def states(ins):
    if ins.kind == "nop":
        return int(ins.text.split()[1]) + 1
    if ins.kind == "label":
        return 0
    return 1

def finalize(prog, verbose=False):
    out = []
    vmq = []
    lgq = []
    nwait = 0; nnop = 0
    def emit(x):
        out.append(x)
    for ins in prog:
        if ins.kind == "label":
            emit(ins); continue
        touched = set(ins.r) | set(ins.w)
        if ins.kind == "wait":
            m = re.search(r"vmcnt\((\d+)\)", ins.text)
            if m:
                n = int(m.group(1)); vmq[:] = vmq[len(vmq) - n:] if n < len(vmq) else vmq
                if n == 0: vmq[:] = []
            m = re.search(r"lgkmcnt\((\d+)\)", ins.text)
            if m:
                n = int(m.group(1))
                if n == 0: lgq[:] = []
                else:
                    assert not any(e[2] for e in lgq), "counted lgkmcnt with smem outstanding"
                    lgq[:] = lgq[len(lgq) - n:] if n < len(lgq) else lgq
            emit(ins); continue
        need = set(ins.need or [])
        vi = -1
        for k, (d, tg) in enumerate(vmq):
            if (d & touched) or (tg is not None and tg in need): vi = k
        li = -1
        for k, (d, tg, sm) in enumerate(lgq):
            if (d & touched) or (tg is not None and tg in need): li = k
        parts = []
        if vi >= 0:
            n = min(len(vmq) - 1 - vi, 63)
            parts.append("vmcnt(%d)" % n); vmq[:] = vmq[len(vmq) - n:] if n else []
        if li >= 0:
            if any(e[2] for e in lgq): n = 0
            else: n = min(len(lgq) - 1 - li, 15)
            parts.append("lgkmcnt(%d)" % n); lgq[:] = lgq[len(lgq) - n:] if n else []
        if parts:
            emit(Ins("s_waitcnt " + " ".join(parts))); nwait += 1
        req = 0
        dist = 0
        rs, ws = set(ins.r), set(ins.w)
        isvalu = ins.kind in ("valu", "trans")
        for p in reversed(out):
            if dist >= 20: break
            if p.kind == "label":
                continue
            pw = set(p.w); need_d = 0
            pvalu = p.kind in ("valu", "trans")
            if p.kind == "mfma":
                ov_r = pw & rs; ov_w = pw & ws
                big = {8: 12, 4: 8}[p.passes]
                if ins.kind == "mfma":
                    c = set(ins.srcC)
                    ab = rs - c if not (set(ins.r[:len(ins.r) - len(ins.srcC)]) & c) else set(ins.r[:len(ins.r) - len(ins.srcC)])
                    if pw & ab: need_d = max(need_d, big)
                    if pw & c:
                        if not (c == pw and ins.passes == p.passes): need_d = max(need_d, {8: 10, 4: 6}[p.passes])
                    if ov_w and not (pw & c): need_d = max(need_d, big)
                elif ins.kind in ("valu", "trans", "ds", "vm"):
                    if ov_r or ov_w: need_d = max(need_d, big)
                if isvalu and (set(p.srcC) & ws): need_d = max(need_d, {8: 7, 4: 3}[p.passes])
                if ins.kind in ("ds", "vm") and (set(p.srcC) & ws): need_d = max(need_d, {8: 7, 4: 3}[p.passes])
            if pvalu:
                vw = {x for x in pw if x[0] in "va"}
                sw = {x for x in pw if x[0] == "s"}
                if ins.kind == "mfma" and (vw & rs): need_d = max(need_d, 2)
                if p.kind == "trans" and isvalu and (vw & rs): need_d = max(need_d, 1)
                if ins.op.startswith("v_permlane") and (vw & rs): need_d = max(need_d, 2)
                if (ins.op.startswith("v_readfirstlane") or ins.op.startswith("v_readlane")) and (vw & rs): need_d = max(need_d, 1)
                if "dpp" in ins.text and (vw & rs): need_d = max(need_d, 2)
                if ins.kind == "vm" and (sw & rs): need_d = max(need_d, 5)
                if isvalu and (sw & rs): need_d = max(need_d, 2)
                if ins.kind in ("salu", "branch") and (sw & rs): need_d = max(need_d, 1)
            if p.kind == "salu" and ("s", "m0") in pw and ("s", "m0") in rs and ins.kind in ("vm", "ds"):
                need_d = max(need_d, 1)
            if p.kind == "vm" and p.op.startswith("buffer_store") and ("x4" in p.op or "x3" in p.op):
                data = set(regs_of(re.split(r",(?![^\[]*\])", p.text.split(None, 1)[1])[0]))
                if data & ws: need_d = max(need_d, 2)
            if need_d > dist: req = max(req, need_d - dist)
            dist += states(p)
        while req > 0:
            k = min(req, 16)
            emit(Ins("s_nop %d" % (k - 1))); nnop += 1; req -= k
        emit(ins)
        if ins.kind == "vm":
            vmq.append((set(ins.w), ins.tag))
        elif ins.kind == "ds":
            lgq.append((set(ins.w), ins.tag, False))
        elif ins.kind == "smem":
            lgq.append((set(ins.w), ins.tag, True))
    if verbose:
        print("finalize: %d instr, %d auto waits, %d auto nops" % (len(out), nwait, nnop))
    return [("" if x.kind == "label" else "    ") + x.text + x.post for x in out]

def weave(main, fill, per=None, lead=0):
    out = []
    n = len(main)
    fi = 0
    out += fill[:lead]; fi = lead
    rem = len(fill) - fi
    for k, m in enumerate(main):
        out.append(m)
        if per is not None:
            c = per[k]
        else:
            c = (rem * (k + 1)) // n - (rem * k) // n
        out += fill[fi:fi + c]; fi += c
    out += fill[fi:]
    return out
```

```python
import sys, math
from asmlib import I, Ins, finalize, weave

KNAME = "parallel_sum__sliding_block__glu_gated_geglu__prompt_kernel"
OPT = dict(stamps=False, spin=200000, touch=True)
for a in sys.argv[2:]:
    k, v = a.split("="); OPT[k] = int(v)

HUGE = 0x40000000
KV0 = 0
H0 = 4 << 20
HSTR = 86 * 1024
O0 = 10 << 20
FL0 = 12 << 20
ST0 = FL0 + (64 << 10)
WSSZ = 13 << 20
WB = 65536
CS1 = 0
STRIP = 49152
CS2 = 53248
LDSSZ = 163840

SX, SQ, SG, SU, SD, SO, SOUT, SWS, SDBG = 24, 28, 32, 36, 40, 44, 48, 52, 56
sW, sRB, sCB, sTB2, sNB, sT0, sT2, sH2, sTB = 3, 60, 61, 62, 63, 64, 65, 66, 67
sX, sQ, sG, sM0X, sM0W = 68, 69, 70, 71, 72
sT, sTb, sTc, sTd = 73, 74, 75, 76
sH0, sKVT, sHX, sM0D, sD = 77, 78, 79, 80, 81
sSPIN = 82
sKV = [83, 84, 85]
sHUGE = 86
sA = 87
sST = 90
def srd(n): return "s[%d:%d]" % (n, n + 3)
def vr(a, n): return "v[%d:%d]" % (a, a + n - 1)
def ar(a, n): return "a[%d:%d]" % (a, a + n - 1)

vL = 0
vT0, vT1, vT2 = 1, 2, 3
vXo = 4; vQo = 8; vGo = 10; vXr = 12; vWr = 16; vQo2 = 24; vGo2 = 26; vW2r = 28
vSum = 36; vCS1 = 40; vCS2 = 44
vRstd, vGA, vGB, vGR, vQS, vL16, vKVst, vHst = 48, 49, 50, 51, 52, 53, 54, 55
vBext = 56
vFl, vCSw, vPoll, vInit = 60, 61, 62, 63
ACC1 = 64; ACC2 = 160
vXT = 208
vU = 224
vG = 232
vCSA = 240
vDo = 248; vEo = 250; vAo = 252; vOo = 254
vBF = 64; vBD = 80; vS = [96, 112]; vP = [128, 136]; vQ = 144; vO = [208, 224]
vKa, vVa, vVinc, vOst, vW3r, vXres = 8, 9, 10, 11, 22, 12
vKVo, vPa = 20, 21
vOF = 64
aX = 0; aSEL = 128; aWF = 152
aH = 0; aW2 = 176; aACC = 192; aK = 192; aV = 200

prog = []
rare = []
def E(x, **kw):
    if isinstance(x, str):
        for ln in x.strip().split("\n"):
            ln = ln.strip()
            if ln and not ln.startswith(";"): prog.append(I(ln, **kw))
    elif isinstance(x, Ins): prog.append(x)
    else: prog.extend(x)
def L(txt, **kw):
    return [I(ln.strip(), **kw) for ln in txt.strip().split("\n") if ln.strip()]
nstamp = [0]
def stamp():
    if OPT["stamps"]:
        k = nstamp[0]; nstamp[0] += 1
        assert k < 12
        E("s_waitcnt lgkmcnt(0)\ns_memtime s[4:5]\ns_waitcnt lgkmcnt(0)\ns_mov_b32 s%d, s4" % (sST + k))

MF = "v_mfma_f32_32x32x16_bf16"
MS = "v_mfma_f32_16x16x32_bf16"

E("""
s_cmp_ge_u32 s2, 256
s_cbranch_scc1 L_end
s_load_dwordx4 s[4:7], s[0:1], 0
s_load_dwordx2 s[8:9], s[0:1], 16
s_load_dwordx4 s[12:15], s[0:1], 32
s_load_dwordx4 s[16:19], s[0:1], 48
s_load_dwordx4 s[20:23], s[0:1], 64
""")
if OPT["stamps"]:
    E("s_memtime s[88:89]")
E(f"""
v_lshrrev_b32 v{vT0}, 6, v0
v_mov_b32 v{vInit}, v0
v_readfirstlane_b32 s{sW}, v{vT0}
v_and_b32 v{vL}, 63, v0
s_and_b32 s{sT}, s2, 7
s_lshr_b32 s{sTb}, s2, 3
s_lshr_b32 s{sTc}, s{sT}, 1
s_and_b32 s{sT}, s{sT}, 1
s_lshl_b32 s{sRB}, s{sTc}, 2
s_and_b32 s{sTd}, s{sTb}, 3
s_add_u32 s{sRB}, s{sRB}, s{sTd}
s_lshl_b32 s{sCB}, s{sT}, 3
s_lshr_b32 s{sTd}, s{sTb}, 2
s_add_u32 s{sCB}, s{sCB}, s{sTd}
s_lshl_b32 s{sTB2}, s{sTc}, 3
s_and_b32 s{sTd}, s{sTb}, 7
s_add_u32 s{sTB2}, s{sTB2}, s{sTd}
s_lshl_b32 s{sNB}, s{sT}, 2
s_lshr_b32 s{sTd}, s{sTb}, 3
s_add_u32 s{sNB}, s{sNB}, s{sTd}
s_lshl_b32 s{sTB}, s{sRB}, 2
s_add_u32 s{sTB}, s{sTB}, s{sW}
s_mov_b32 s{sHUGE}, {HUGE}
s_mul_i32 s{sT0}, s{sCB}, 3
s_lshl_b32 s{sT}, s{sCB}, 1
s_add_u32 s{sT}, s{sT}, 11
s_cmp_lt_u32 s{sCB}, 11
s_cselect_b32 s{sT0}, s{sT0}, s{sT}
s_cselect_b32 s{sT}, 2, 1
s_add_u32 s{sT2}, s{sT0}, s{sT}
s_lshl_b32 s{sH2}, s{sT2}, 11
s_cmp_lt_u32 s{sCB}, 11
s_cselect_b32 s{sH2}, s{sH2}, s{sHUGE}
s_lshl_b32 s{sH0}, s{sT0}, 11
s_lshl_b32 s{sM0X}, s{sW}, 12
s_lshl_b32 s{sM0W}, s{sW}, 11
s_add_u32 s{sM0W}, s{sM0W}, {WB}
v_lshlrev_b32 v{vL16}, 4, v{vL}
""")
E(f"""
s_lshl_b32 s{sT}, s{sTB}, 15
v_lshrrev_b32 v{vT0}, 3, v{vL}
v_lshlrev_b32 v{vT0}, 10, v{vT0}
v_add_u32 v{vT0}, s{sT}, v{vT0}
v_and_b32 v{vT1}, 7, v{vL}
v_lshrrev_b32 v{vT2}, 4, v{vL}
v_xor_b32 v{vT1}, v{vT1}, v{vT2}
v_lshl_add_u32 v{vXo}, v{vT1}, 4, v{vT0}
v_xor_b32 v{vT1}, 4, v{vT1}
v_lshl_add_u32 v{vXo+1}, v{vT1}, 4, v{vT0}
v_add_u32 v{vXo+1}, {7*1024}, v{vXo+1}
v_add_u32 v{vXo+2}, {14*1024}, v{vXo}
v_add_u32 v{vXo+3}, {14*1024}, v{vXo+1}
""")
E(f"""
v_lshrrev_b32 v{vT0}, 5, v{vL}
v_bfe_u32 v{vT1}, v{vL}, 2, 2
v_lshl_add_u32 v{vT0}, v{vT0}, 2, v{vT1}
v_bfe_u32 v{vT1}, v{vL}, 4, 1
v_and_b32 v{vT2}, 3, v{vL}
v_lshlrev_b32 v{vT2}, 4, v{vT2}
v_lshl_add_u32 v{vT1}, v{vT1}, 6, v{vT2}
s_lshl_b32 s{sT}, s{sNB}, 7
v_lshl_add_u32 v{vDo}, v{vT0}, 10, v{vT1}
v_add_u32 v{vDo}, s{sT}, v{vDo}
s_lshl_b32 s{sT}, s{sW}, 17
v_add_u32 v{vEo}, s{sT}, v{vDo}
v_add_u32 v{vEo+1}, {7*1024}, v{vEo}
s_mul_i32 s{sT}, s{sW}, {352*1024}
v_add_u32 v{vDo}, s{sT}, v{vDo}
v_add_u32 v{vDo+1}, {7*1024}, v{vDo}
s_lshl_b32 s{sT}, s{sW}, 4
v_add_u32 v{vT0}, s{sT}, v{vT0}
s_and_b32 s{sT}, s{sCB}, 1
s_add_u32 s{sT}, s{sT}, 1
s_lshl_b32 s{sT}, s{sT}, 10
s_lshr_b32 s{sTb}, s{sCB}, 1
s_lshl_b32 s{sTb}, s{sTb}, 7
s_add_u32 s{sT}, s{sT}, s{sTb}
v_mul_u32_u24 v{vQo}, 3072, v{vT0}
v_add3_u32 v{vQo}, v{vQo}, v{vT1}, s{sT}
v_add_u32 v{vQo+1}, {8*3072-1024}, v{vQo}
s_lshl_b32 s{sT}, s{sT0}, 6
v_mul_u32_u24 v{vGo}, 2752, v{vT0}
v_add3_u32 v{vGo}, v{vGo}, v{vT1}, s{sT}
v_add_u32 v{vGo+1}, {8*2752-1024}, v{vGo}
""")
def mksrd(n, p, size):
    return f"s_mov_b32 s{n}, s{p}\ns_mov_b32 s{n+1}, s{p+1}\ns_mov_b32 s{n+2}, {size}\ns_mov_b32 s{n+3}, 0x20000\n"
E(mksrd(SX, 4, 2097152) + mksrd(SQ, 6, 1572864) + mksrd(SG, 12, 1409024) + mksrd(SU, 14, 1409024))
if OPT["stamps"]:
    E("s_mov_b32 s%d, s88" % sST); nstamp[0] = 1

def dma(voff, S, soff, imm, tag, flags="", need=None):
    o = (" offset:%d" % imm) if imm else ""
    return I(f"buffer_load_dwordx4 v{voff}, {srd(S)}, {soff} offen{o} {flags} lds", tag=tag, need=need)

def p1_dma(c):
    sl = c & 3; t = "c%d" % c
    o = []
    o += L(f"s_movk_i32 s{sX}, {128*c}\ns_add_u32 m0, s{sM0X}, {sl*16384}\ns_mov_b32 s{sQ}, {c*196608}")
    o += [dma(vXo + i, SX, f"s{sX}", 1024 * i, t) for i in range(4)]
    o += L(f"s_add_u32 m0, s{sM0W}, {sl*24576}\ns_mov_b32 s{sG}, {c*176128}")
    o += [dma(vQo + i, SQ, f"s{sQ}", 1024 * i, t) for i in range(2)]
    o += L(f"s_add_u32 m0, s{sM0W}, {sl*24576+8192}")
    o += [dma(vGo + i, SG, f"s{sG}", 1024 * i, t) for i in range(2)]
    o += L(f"s_add_u32 m0, s{sM0W}, {sl*24576+16384}")
    o += [dma(vGo + i, SU, f"s{sG}", 1024 * i, t) for i in range(2)]
    return o
def p2_dma(p):
    t = "p%d" % p
    o = L(f"s_add_u32 m0, s{sM0W}, {p*24576}\ns_mov_b32 s{sQ}, {p*128*3072}\ns_mov_b32 s{sG}, {p*128*2752}")
    o += [dma(vQo2 + i, SQ, f"s{sQ}", 1024 * i, t) for i in range(2)]
    o += L(f"s_add_u32 m0, s{sM0W}, {p*24576+8192}")
    o += [dma(vGo2 + i, SG, f"s{sG}", 1024 * i, t) for i in range(2)]
    o += L(f"s_add_u32 m0, s{sM0W}, {p*24576+16384}")
    o += [dma(vGo2 + i, SU, f"s{sG}", 1024 * i, t) for i in range(2)]
    return o

for c in range(4):
    E(p1_dma(c))
E(mksrd(SD, 16, 1409024) + mksrd(SO, 8, 524288) + mksrd(SOUT, 18, 2097152) + mksrd(SWS, 22, WSSZ) + mksrd(SDBG, 20, 256))

E(f"""
s_cmp_lg_u32 s2, 0
s_cselect_b32 s{sT}, s{sHUGE}, 0
v_lshrrev_b32 v{vT0}, 2, v{vL}
v_and_b32 v{vT1}, 3, v{vL}
v_lshlrev_b32 v{vT1}, 4, v{vT1}
v_lshl_add_u32 v{vT0}, v{vT0}, 7, v{vT1}
s_mul_i32 s{sTb}, s{sW}, {48*128}
s_add_u32 s{sTb}, s{sTb}, {FL0}
v_add_u32 v{vT0}, s{sTb}, v{vT0}
v_add_u32 v{vT1}, 4096, v{vT0}
v_mov_b32 v{vXT}, 0
v_mov_b32 v{vXT+1}, 0
v_mov_b32 v{vXT+2}, 0
v_mov_b32 v{vXT+3}, 0
""")
E(f"buffer_store_dwordx4 {vr(vXT,4)}, v{vT0}, {srd(SWS)}, s{sT} offen sc1", tag="zero")
E(f"buffer_store_dwordx4 {vr(vXT,4)}, v{vT0}, {srd(SWS)}, s{sT} offen offset:2048 sc1", tag="zero")
E(f"buffer_store_dwordx4 {vr(vXT,4)}, v{vT1}, {srd(SWS)}, s{sT} offen sc1", tag="zero")

E(f"""
v_and_b32 v{vT0}, 31, v{vL}
v_lshrrev_b32 v{vT1}, 5, v{vL}
v_bfe_u32 v{vT2}, v{vL}, 1, 3
v_xor_b32 v{vT2}, v{vT2}, v{vT1}
v_lshlrev_b32 v{vT0}, 7, v{vT0}
v_lshl_add_u32 v{vT0}, v{vT2}, 4, v{vT0}
v_add_u32 v{vT0}, s{sM0X}, v{vT0}
""")
for s in range(4):
    E(f"s_xor_b32 s{sT}, s{sW}, {s}\ns_lshl_b32 s{sT}, s{sT}, 5\nv_xor_b32 v{vXr+s}, s{sT}, v{vT0}")
E(f"""
v_bfe_u32 v{vT2}, v{vL}, 2, 2
v_lshlrev_b32 v{vT2}, 6, v{vT2}
v_bfe_u32 v{vT0}, v{vL}, 4, 1
v_lshl_add_u32 v{vT2}, v{vT0}, 5, v{vT2}
v_and_b32 v{vT0}, 3, v{vL}
v_lshl_add_u32 v{vT2}, v{vT0}, 3, v{vT2}
v_lshl_add_u32 v{vT0}, v{vT1}, 10, v{vT2}
v_lshl_add_u32 v{vT2}, v{vT1}, 9, v{vT2}
s_mul_i32 s{sT}, s{sW}, 6144
s_add_u32 s{sM0D}, s{sT}, {WB}
""")
for s in range(4):
    E(f"""
s_xor_b32 s{sT}, s{sW}, {s}
s_lshl_b32 s{sTb}, s{sT}, 11
s_add_u32 s{sTb}, s{sTb}, {WB}
v_add_u32 v{vWr+2*s}, s{sTb}, v{vT0}
v_add_u32 v{vWr+2*s+1}, 49152, v{vWr+2*s}
s_lshl_b32 s{sTb}, s{sT}, 10
s_add_u32 s{sTb}, s{sTb}, {WB}
v_add_u32 v{vW2r+2*s}, s{sTb}, v{vT2}
v_add_u32 v{vW2r+2*s+1}, 49152, v{vW2r+2*s}
""")
E(f"""
v_lshrrev_b32 v{vT0}, 2, v{vL}
s_lshl_b32 s{sT}, s{sW}, 5
v_add_u32 v{vT0}, s{sT}, v{vT0}
v_and_b32 v{vT1}, 3, v{vL}
v_lshlrev_b32 v{vT1}, 4, v{vT1}
s_lshl_b32 s{sT}, s{sCB}, 6
v_mul_u32_u24 v{vQo2}, 3072, v{vT0}
v_add3_u32 v{vQo2}, v{vQo2}, v{vT1}, s{sT}
v_add_u32 v{vQo2+1}, {16*3072-1024}, v{vQo2}
s_lshl_b32 s{sT}, s{sT2}, 6
v_mul_u32_u24 v{vGo2}, 2752, v{vT0}
v_add3_u32 v{vGo2}, v{vGo2}, v{vT1}, s{sT}
v_add_u32 v{vGo2+1}, {16*2752-1024}, v{vGo2}
""")
E(f"""
v_and_b32 v{vT0}, 15, v{vL}
v_bfe_u32 v{vT1}, v{vL}, 4, 1
v_sub_u32 v{vT0}, v{vT0}, v{vT1}
v_mov_b32 v{vT1}, 0x3f803f80
""")
for t in range(6):
    E(f"v_cmp_eq_u32 vcc, {2*t}, v{vT0}\nv_cndmask_b32 v{vT2}, 0, v{vT1}, vcc")
    E("\n".join(f"v_accvgpr_write_b32 a{aSEL+4*t+j}, v{vT2}" for j in range(4)))
E(f"""
v_bfe_u32 v{vT0}, v{vL}, 1, 3
v_lshlrev_b32 v{vT0}, 10, v{vT0}
v_and_b32 v{vT1}, 1, v{vL}
v_lshl_add_u32 v{vT0}, v{vT1}, 8, v{vT0}
v_lshrrev_b32 v{vT1}, 4, v{vL}
v_lshl_add_u32 v{vT0}, v{vT1}, 6, v{vT0}
s_lshr_b32 s{sT}, s{sW}, 1
s_lshl_b32 s{sT}, s{sT}, 9
s_and_b32 s{sTb}, s{sW}, 1
s_lshl_b32 s{sTb}, s{sTb}, 3
s_add_u32 s{sT}, s{sT}, s{sTb}
v_add_u32 v{vCSw}, s{sT}, v{vT0}
v_and_b32 v{vT0}, 31, v{vL}
v_lshrrev_b32 v{vT1}, 5, v{vL}
v_lshl_add_u32 v{vT0}, v{vT0}, 1, v{vT1}
v_lshlrev_b32 v{vT0}, 4, v{vT0}
v_add_u32 v{vT0}, 2048, v{vT0}
s_and_b32 s{sT}, s{sCB}, 1
s_cmp_eq_u32 s{sT}, 1
s_cselect_b64 vcc, -1, 0
v_cndmask_b32 v{vKVst}, v{vL16}, v{vT0}, vcc
s_and_b32 s{sT}, s{sCB}, 14
s_lshl_b32 s{sT}, s{sT}, 18
s_lshl_b32 s{sTb}, s{sTB}, 12
s_add_u32 s{sT}, s{sT}, s{sTb}
v_add_u32 v{vKVst}, s{sT}, v{vKVst}
s_mov_b32 s{sKVT}, {1<<18}
s_mul_i32 s{sT}, s{sTB}, {HSTR}
s_add_u32 s{sT}, s{sT}, {H0}
v_add_u32 v{vHst}, s{sT}, v{vL16}
s_lshl_b32 s{sT}, s{sTB}, 7
s_lshl_b32 s{sTb}, s{sCB}, 2
s_add_u32 s{sT}, s{sT}, s{sTb}
s_add_u32 s{sT}, s{sT}, {FL0}
v_mov_b32 v{vT0}, s{sT}
v_mov_b32 v{vT1}, s{sHUGE}
v_cmp_eq_u32 vcc, 0, v{vL}
v_cndmask_b32 v{vFl}, v{vT1}, v{vT0}, vcc
v_mov_b32 v{vSum}, 0
v_mov_b32 v{vSum+1}, 0
v_mov_b32 v{vSum+2}, 0
v_mov_b32 v{vSum+3}, 0
""")
E(f"""
s_mul_i32 s{sT}, s{sTB2}, {2*HSTR}
s_mul_i32 s{sTb}, s{sW}, {22*1024}
s_add_u32 s{sT}, s{sT}, s{sTb}
s_add_u32 s{sT}, s{sT}, {H0}
v_add_u32 v{vAo}, s{sT}, v{vL16}
v_add_u32 v{vAo+1}, {HSTR}, v{vAo}
s_lshl_b32 s{sT}, s{sTB2}, 16
s_lshl_b32 s{sTb}, s{sW}, 13
s_add_u32 s{sT}, s{sT}, s{sTb}
s_add_u32 s{sT}, s{sT}, {O0}
v_add_u32 v{vOo}, s{sT}, v{vL16}
v_add_u32 v{vOo+1}, 32768, v{vOo}
s_cmp_eq_u32 s{sW}, 3
s_cselect_b32 s{sHX}, s{sHUGE}, 20480
""")
stamp()

def wfrag(setp, t): return aWF + (setp * 6 + t) * 4
def p1_reads(c, s):
    sl = c & 3; st = s & 1
    o = [I(f"ds_read_b128 {ar(aX+(4*c+s)*4,4)}, v{vXr+s} offset:{sl*16384}")]
    for t in range(6):
        mat, ct = t >> 1, t & 1
        for n in range(2):
            imm = (sl & 1) * 24576 + mat * 8192 + n * 512 + ct * 256
            o.append(I(f"ds_read_b64_tr_b16 {ar(wfrag(st,t)+2*n,2)}, v{vWr+2*s+(sl>>1)} offset:{imm}"))
    return o
def p1_statread(c, s):
    sl = c & 3
    return [I(f"ds_read_b128 {vr(vXT+4*s,4)}, v{vXr+s} offset:{sl*16384}")]
def stats(s):
    o = []
    for j in range(4):
        x = vXT + 4 * s + j; a = vU + 2 * (j & 1)
        o += L(f"""v_lshlrev_b32 v{a}, 16, v{x}
v_and_b32 v{a+1}, 0xffff0000, v{x}
v_add_f32 v{vSum}, v{vSum}, v{a}
v_add_f32 v{vSum+1}, v{vSum+1}, v{a+1}
v_fmac_f32 v{vSum+2}, v{a}, v{a}
v_fmac_f32 v{vSum+3}, v{a+1}, v{a+1}""")
    return o
def cs_convert(vcs, base):
    o = []
    for j in range(4):
        a = vU + 4
        o += L(f"""v_cvt_pk_bf16_f32 v{a}, v{vcs+j}, v{vcs+j}
v_and_b32 v{a+2}, 0xffff0000, v{a}
v_sub_f32 v{a+2}, v{vcs+j}, v{a+2}
v_cvt_pk_bf16_f32 v{a+1}, v{a+2}, v{a+2}""")
        o.append(I(f"ds_write_b64 v{vCSw}, {vr(a,2)} offset:{base+16*j}", tag="csw"))
    return o
C1 = -2.0 * 0.7978845608028654 * 1.4426950408889634
QC = 0.25 * 1.4426950408889634
import struct
def fx(f): return "0x%08x" % struct.unpack("<I", struct.pack("<f", f))[0]
def stats_final():
    a = vU
    return L(f"""
v_add_f32 v{vSum}, v{vSum}, v{vSum+1}
v_add_f32 v{vSum+2}, v{vSum+2}, v{vSum+3}
v_mov_b32 v{vSum+1}, v{vSum}
v_mov_b32 v{vSum+3}, v{vSum+2}
v_permlane32_swap_b32 v{vSum}, v{vSum+1}
v_permlane32_swap_b32 v{vSum+2}, v{vSum+3}
v_add_f32 v{vSum}, v{vSum}, v{vSum+1}
v_add_f32 v{vSum+2}, v{vSum+2}, v{vSum+3}
v_mul_f32 v{vSum}, {fx(-1.0/512)}, v{vSum}
v_mul_f32 v{vSum+2}, {fx(1.0/512)}, v{vSum+2}
v_fma_f32 v{vSum+2}, -v{vSum}, v{vSum}, v{vSum+2}
v_max_f32 v{vSum+2}, 0, v{vSum+2}
v_add_f32 v{vGR}, {fx(1e-5)}, v{vSum+2}
v_rsq_f32 v{vRstd}, v{vGR}
v_cvt_pk_bf16_f32 v{a}, v{vSum}, v{vSum}
v_and_b32 v{a}, 0xffff0000, v{a}
v_sub_f32 v{a+1}, v{vSum}, v{a}
v_cvt_pk_bf16_f32 v{vBext}, v{a}, v{a+1}
v_mul_f32 v{vGA}, {fx(C1)}, v{vRstd}
v_mul_f32 v{vQS}, {fx(QC)}, v{vRstd}
v_mul_f32 v{a}, v{vRstd}, v{vRstd}
v_mov_b32 v{vBext+1}, v{vBext}
v_mov_b32 v{vBext+2}, v{vBext}
v_mov_b32 v{vBext+3}, v{vBext}
v_mul_f32 v{a}, {fx(0.044715)}, v{a}
v_mul_f32 v{vGB}, v{vGA}, v{a}
""")

E(I("s_barrier", need=["c0"]))
E(p1_reads(0, 0) + p1_statread(0, 0))
for c in range(8):
    for s in range(4):
        st = s & 1
        first = (c == 0 and s == 0)
        main = []
        for t in range(6):
            acc = vr(ACC1 + 16 * t, 16)
            main.append(I(f"{MF} {acc}, {ar(wfrag(st,t),4)}, {ar(aX+(4*c+s)*4,4)}, {'0' if first else acc}"))
            if s == 0:
                cs = vr(vCS1, 4)
                main.append(I(f"{MS} {cs}, {ar(wfrag(st,t),4)}, {ar(aSEL+4*t,4)}, {'0' if (first and t == 0) else cs}"))
        fill = []
        pre = []
        if s < 3:
            fill += p1_reads(c, s + 1)
            if c < 7: fill += p1_statread(c, s + 1)
            elif s == 0: fill += p1_statread(c, 1) + p1_statread(c, 2) + p1_statread(c, 3)
            if c < 7: fill += stats(s)
            elif s == 0: fill += stats(0) + stats(1)
            elif s == 1: fill += stats(2) + cs_convert(vCS1, CS1)
            elif s == 2: fill += stats(3)
        else:
            pre = [I("s_waitcnt lgkmcnt(0)"), I("s_barrier", need=["c%d" % (c + 1) if c < 7 else "p0", "zero"])]
            if c == 0:
                pre += L(f"s_or_b32 s{sT}, s2, s{sW}\ns_cmp_eq_u32 s{sT}, 0\ns_cselect_b32 s{sT}, 0, s{sHUGE}\nv_mov_b32 v{vT0}, 1\nv_lshlrev_b32 v{vT1}, 8, v{vL}")
                pre += [I(f"buffer_store_dword v{vT0}, v{vT1}, {srd(SDBG)}, s{sT} offen sc1")]
            if c < 7:
                fill += p1_reads(c + 1, 0) + p1_statread(c + 1, 0)
            else:
                fill += [I(f"ds_read_b128 {vr(vCSA+4*k,4)}, v{vL16} offset:{CS1+1024*k}") for k in range(2)]
            fill += p1_dma(c + 4) if c < 4 else p2_dma(c - 4)
            if c == 5:
                fill += L(f"v_mov_b32 v{vT0}, 0") + [I(f"buffer_load_dword v{vInit}, v{vT0}, {srd(SDBG)}, 0 offen sc1")]
            if c < 7: fill += stats(3)
            else: fill += stats_final()
        E(pre)
        E(weave(main, fill))
stamp()

def p2_reads(k):
    p, g, s = k >> 3, (k >> 2) & 1, k & 3
    st = k & 1
    o = []
    for t in range(3):
        for n in range(2):
            imm = (p & 1) * 24576 + t * 8192 + g * 4096 + n * 256
            o.append(I(f"ds_read_b64_tr_b16 {ar(wfrag(st,t)+2*n,2)}, v{vW2r+2*s+(p>>1)} offset:{imm}"))
    return o
def scale_pack(acc, sc, dst):
    o = []
    for j in range(16): o.append(I(f"v_mul_f32 v{acc+j}, v{acc+j}, v{sc}"))
    for j in range(8): o.append(I(f"v_cvt_pk_bf16_f32 v{dst+j}, v{acc+2*j}, v{acc+2*j+1}"))
    return o
def gelu(g, u):
    o = []
    for b in range(4):
        js = range(4 * b, 4 * b + 4)
        T = lambda j: vG + (j & 3) + 4 * (b & 1)
        o += [I(f"v_mul_f32 v{T(j)}, v{g+j}, v{g+j}") for j in js]
        o += [I(f"v_fma_f32 v{T(j)}, v{T(j)}, v{vGB}, v{vGA}") for j in js]
        o += [I(f"v_mul_f32 v{T(j)}, v{g+j}, v{T(j)}") for j in js]
        for j in js:
            o += [I(f"v_exp_f32 v{T(j)}, v{T(j)}"), I(f"v_mul_f32 v{g+j}, v{g+j}, v{u+j}")]
        o += [I(f"v_fma_f32 v{T(j)}, v{T(j)}, v{vGR}, v{vGR}") for j in js]
        o += [I(f"v_rcp_f32 v{T(j)}, v{T(j)}") for j in js]
        o += [I(f"v_mul_f32 v{g+j}, v{g+j}, v{T(j)}") for j in js]
        o += [I(f"v_cvt_pk_bf16_f32 v{u+2*b+k}, v{g+4*b+2*k}, v{g+4*b+2*k+1}") for k in range(2)]
    return o
def store4(data, voff, soff, imm, tag):
    o = (" offset:%d" % imm) if imm else ""
    return I(f"buffer_store_dwordx4 {vr(data,4)}, v{voff}, {srd(SWS)}, {soff} offen{o} sc1", tag=tag)
def flag(stage, tag):
    return L(f"v_mov_b32 v{vT0}, 1\ns_movk_i32 s{sT}, {stage*8192}") + [I(f"buffer_store_dword v{vT0}, v{vFl}, {srd(SWS)}, s{sT} offen sc1", need=[tag])]
def poll_issue(S, soff="0"):
    return [I(f"buffer_load_dword v{vPoll}, v{vPa}, {srd(S)}, {soff} offen sc1")]
def poll_check(name, S, reg=None, addr=None, soff="0"):
    reg = vPoll if reg is None else reg
    addr = vPa if addr is None else addr
    rare.append(f"""
L_spin_{name}:
    s_mov_b32 s{sSPIN}, {OPT['spin']}
L_spin2_{name}:
    s_sleep 1
    buffer_load_dword v{reg}, v{addr}, {srd(S)}, {soff} offen sc1
    s_waitcnt vmcnt(0) lgkmcnt(0)
    v_cmp_eq_u32 vcc, 0, v{reg}
    s_nop 4
    s_cbranch_vccz L_ok_{name}
    s_sub_u32 s{sSPIN}, s{sSPIN}, 1
    s_cmp_lg_u32 s{sSPIN}, 0
    s_cbranch_scc1 L_spin2_{name}
    s_endpgm
""")
    o = L(f"v_cmp_eq_u32 vcc, 0, v{reg}\ns_cbranch_vccnz L_spin_{name}")
    o[-1].post = f"\nL_ok_{name}:"
    return o

corr = []
for t in range(6):
    acc = vr(ACC1 + 16 * t, 16)
    corr.append(I(f"{MF} {acc}, {vr(vCSA+4*(t&1),4)}, {vr(vBext,4)}, {acc}"))
    if t + 2 < 6:
        corr.append(I(f"ds_read_b128 {vr(vCSA+4*(t&1),4)}, v{vL16} offset:{CS1+1024*(t+2)}"))
E(p2_reads(0))
E(corr)

fillq = []
for t in range(2):
    a = ACC1 + 16 * t
    fillq += scale_pack(a, vRstd, a)
    fillq += [store4(a, vKVst, "0" if t == 0 else f"s{sKVT}", 0, "kv"), store4(a + 4, vKVst, "0" if t == 0 else f"s{sKVT}", 1024, "kv")]
fillq += L(f"v_mov_b32 v{vT2}, 0") + poll_check("init", SDBG, reg=vInit, addr=vT2)
g0 = gelu(ACC1 + 32, ACC1 + 64) + [store4(ACC1 + 64, vHst, f"s{sH0}", 0, "h"), store4(ACC1 + 68, vHst, f"s{sH0}", 1024, "h")]
g1 = gelu(ACC1 + 48, ACC1 + 80) + [store4(ACC1 + 80, vHst, f"s{sH0}", 2048, "h"), store4(ACC1 + 84, vHst, f"s{sH0}", 3072, "h")]
KVFLAG_AT = OPT.get("kvflag", 90)
fillq += g0[:KVFLAG_AT] + flag(0, "kv") + g0[KVFLAG_AT:]
att = L(f"""
v_and_b32 v{vT1}, 31, v{vL}
v_lshrrev_b32 v{vT2}, 5, v{vL}
v_lshlrev_b32 v{vT2}, 2, v{vT2}
v_sub_u32 v{vT1}, v{vT1}, v{vT2}
v_mov_b32 v{vT2}, 0xff000000
""")
for j in range(16):
    kl = 8 * (j >> 2) + (j & 3)
    att += L(f"v_cmp_le_i32 vcc, {kl}, v{vT1}\nv_cndmask_b32 v{vBD+j}, v{vT2}, 0, vcc\nv_cndmask_b32 v{vBF+j}, 0, v{vT2}, vcc")
att += L(f"""
s_lshl_b32 s{sT}, s{sRB}, 2
s_sub_i32 s{sT}, 8, s{sT}
v_and_b32 v{vT1}, 15, v{vL}
v_cmp_le_i32 vcc, s{sT}, v{vT1}
v_mov_b32 v{vT1}, 0x3f803f80
v_cndmask_b32 v{vU}, 0, v{vT1}, vcc
v_cndmask_b32 v{vU+1}, 0, v{vT1}, vcc
v_lshlrev_b32 v{vT1}, 3, v{vL}
s_lshl_b32 s{sT}, s{sW}, 9
v_add_u32 v{vT1}, s{sT}, v{vT1}
""") + [I(f"ds_write_b64 v{vT1}, {vr(vU,2)} offset:{STRIP}", tag="strip")]
att += L(f"""
v_add_u32 v{vKa}, s{sM0X}, v{vL16}
v_lshrrev_b32 v{vT1}, 5, v{vL}
v_bfe_u32 v{vT2}, v{vL}, 2, 2
v_lshl_add_u32 v{vT2}, v{vT1}, 2, v{vT2}
v_lshlrev_b32 v{vT2}, 5, v{vT2}
v_and_b32 v{vVa}, 1, v{vL}
v_lshl_add_u32 v{vT2}, v{vVa}, 4, v{vT2}
v_bfe_u32 v{vVa}, v{vL}, 1, 1
v_lshl_add_u32 v{vT2}, v{vVa}, 3, v{vT2}
s_add_u32 s{sT}, s{sM0X}, 2048
v_add_u32 v{vT2}, s{sT}, v{vT2}
v_xor_b32 v{vT1}, 1, v{vT1}
v_lshlrev_b32 v{vT1}, 7, v{vT1}
s_lshl_b32 s{sT}, s{sW}, 3
s_add_u32 s{sT}, s{sT}, {STRIP}
v_add_u32 v{vT1}, s{sT}, v{vT1}
v_and_b32 v{vVa}, 16, v{vL}
v_cmp_eq_u32 vcc, 0, v{vVa}
v_cndmask_b32 v{vVa}, v{vT1}, v{vT2}, vcc
v_mov_b32 v{vT1}, 8
v_mov_b32 v{vT2}, 4096
v_cndmask_b32 v{vVinc}, v{vT1}, v{vT2}, vcc
s_lshl_b32 s{sT}, s{sTB}, 15
s_lshl_b32 s{sTb}, s{sCB}, 11
s_add_u32 s{sT}, s{sT}, s{sTb}
s_add_u32 s{sT}, s{sT}, {O0}
v_add_u32 v{vOst}, s{sT}, v{vL16}
s_lshl_b32 s{sT}, s{sCB}, 18
v_add_u32 v{vKVo}, s{sT}, v{vL16}
s_mul_i32 s{sT}, s{sW}, 5120
v_add_u32 v{vW3r}, s{sT}, v{vW2r}
v_add_u32 v{vW3r+1}, 49152, v{vW3r}
""")
kvprep = []
for k in range(3):
    kvprep += L(f"""
s_mul_i32 s{sT}, s{sW}, 3
s_lshl_b32 s{sTb}, s{sRB}, 2
s_add_u32 s{sT}, s{sT}, s{sTb}
s_add_i32 s{sT}, s{sT}, {k-8}
s_lshl_b32 s{sKV[k]}, s{sT}, 12
s_cmp_lt_i32 s{sT}, 0
s_cselect_b32 s{sKV[k]}, s{sHUGE}, s{sKV[k]}
""")
kvprep += L(f"""
v_min_u32 v{vT1}, 5, v{vL}
v_lshrrev_b32 v{vT2}, 1, v{vT1}
s_add_i32 s{sT}, s{sT}, -2
v_add_u32 v{vT2}, s{sT}, v{vT2}
v_cmp_gt_i32 vcc, 0, v{vT2}
v_mov_b32 v{vPa}, s{sTB}
v_cndmask_b32 v{vT2}, v{vT2}, v{vPa}, vcc
v_lshlrev_b32 v{vT2}, 7, v{vT2}
v_and_b32 v{vT1}, 1, v{vT1}
v_lshl_add_u32 v{vT2}, v{vT1}, 2, v{vT2}
s_and_b32 s{sT}, s{sCB}, 14
s_lshl_b32 s{sT}, s{sT}, 2
s_add_u32 s{sT}, s{sT}, {FL0}
v_add_u32 v{vPa}, s{sT}, v{vT2}
""")
kvdma = []
for k in range(3):
    kvdma += L(f"s_mul_i32 s{sT}, s{sW}, 12288\ns_add_u32 m0, s{sT}, {4096*k}")
    kvdma += [dma(vKVo, SWS, f"s{sKV[k]}", 1024 * i, "kvl", "sc1") for i in range(4)]
POLL_AT = OPT.get("kvpoll", 100)
fillq += att + kvprep + g1[:POLL_AT] + poll_issue(SWS) + g1[POLL_AT:]

def w2_dma(j):
    sl = j % 12
    m0 = (sl // 3) * 24576 + (sl % 3) * 2048
    if j < 22:
        return L(f"s_add_u32 m0, s{sM0D}, {m0}\ns_mov_b32 s{sD}, {j*16384}") + [dma(vDo + i, SD, f"s{sD}", 1024 * i, "w%d" % j, need=["r%d" % (j - 12)]) for i in range(2)]
    return L(f"s_add_u32 m0, s{sM0D}, {m0}\ns_mov_b32 s{sD}, {(j-22)*16384}") + [dma(vEo + i, SO, f"s{sD}", 1024 * i, "w%d" % j, need=["r%d" % (j - 12)]) for i in range(2)]

nsteps = 32
fi = 0
for k in range(nsteps):
    p, s = k >> 3, k & 3
    st = k & 1
    main = []
    for t in range(3):
        acc = vr(ACC2 + 16 * t, 16)
        main.append(I(f"{MF} {acc}, {ar(wfrag(st,t),4)}, {ar(aX+k*4,4)}, {'0' if k == 0 else acc}"))
        if s == 0:
            cs = vr(vCS2, 4)
            main.append(I(f"{MS} {cs}, {ar(wfrag(st,t),4)}, {ar(aSEL+4*t,4)}, {'0' if (k == 0 and t == 0) else cs}"))
    pre = []; fill = []
    if (k & 7) == 7:
        pre = [I("s_waitcnt lgkmcnt(0)"), I("s_barrier", need=["p%d" % (p + 1)] if p < 3 else [])]
    if k + 1 < nsteps: fill += p2_reads(k + 1)
    else: fill += [I(f"ds_read_b128 {vr(vCSA+4*q,4)}, v{vL16} offset:{CS2+1024*q}") for q in range(2)]
    if (k & 7) == 7:
        for j in range(3 * p, 3 * p + 3): fill += w2_dma(j)
    if k == 29: fill += cs_convert(vCS2, CS2)
    lim = 29
    if k < lim:
        n = (len(fillq) * (k + 1)) // lim - (len(fillq) * k) // lim
        fill += fillq[fi:fi + n]; fi += n
    if k == 30:
        fill += poll_check("kv", SWS) + kvdma
    E(pre)
    E(weave(main, fill))
stamp()
for t in range(3):
    acc = vr(ACC2 + 16 * t, 16)
    E(f"{MF} {acc}, {vr(vCSA+4*(t&1),4)}, {vr(vBext,4)}, {acc}")
    if t == 0: E(f"ds_read_b128 {vr(vCSA,4)}, v{vL16} offset:{CS2+2048}")
E(f"""
v_lshrrev_b32 v{vT0}, 3, v{vL}
s_lshl_b32 s{sT}, s{sTB2}, 6
s_lshl_b32 s{sTb}, s{sW}, 4
s_add_u32 s{sT}, s{sT}, s{sTb}
v_add_u32 v{vT0}, s{sT}, v{vT0}
v_lshlrev_b32 v{vT0}, 10, v{vT0}
v_and_b32 v{vT1}, 7, v{vL}
v_lshl_add_u32 v{vT0}, v{vT1}, 4, v{vT0}
s_lshl_b32 s{sT}, s{sNB}, 7
v_add_u32 v{vXo}, s{sT}, v{vT0}
v_add_u32 v{vXo+1}, 8192, v{vXo}
v_bfe_u32 v{vT0}, v{vL}, 4, 1
v_and_b32 v{vT1}, 15, v{vL}
v_lshlrev_b32 v{vT1}, 2, v{vT1}
v_lshl_add_u32 v{vT0}, v{vT0}, 7, v{vT1}
s_lshl_b32 s{sT}, s{sTB2}, 8
s_add_u32 s{sT}, s{sT}, {FL0+8192}
v_add_u32 v{vPa}, s{sT}, v{vT0}
""")
E(f"buffer_load_dwordx4 {vr(vXres,4)}, v{vXo}, {srd(SX)}, 0 offen")
E(f"buffer_load_dwordx4 {vr(vXres+4,4)}, v{vXo+1}, {srd(SX)}, 0 offen")
E(gelu(ACC2 + 16, ACC2 + 32))
E([store4(ACC2 + 32, vHst, f"s{sH2}", 0, "h"), store4(ACC2 + 36, vHst, f"s{sH2}", 1024, "h")])
E(scale_pack(ACC2, vQS, vQ))
E(I("s_waitcnt lgkmcnt(0)"))
E(I("s_barrier", need=["kvl"]))
stamp()

units = [(i, e) for i in range(9) for e in range(2)]
def kread(u):
    i, e = units[u]
    return [I(f"ds_read_b128 {ar(aK+4*(u&1),4)}, v{vKa} offset:{i*4096+e*1024}")]
def vread(u):
    i, e = units[u]
    o = []
    for s in range(2):
        for n in range(2):
            o.append(I(f"ds_read_b64_tr_b16 {ar(aV+8*(u&1)+4*s+2*n,2)}, v{vVa} offset:{e*1024+s*512+n*256}"))
    if e == 1: o.append(I(f"v_add_u32 v{vVa}, v{vVa}, v{vVinc}"))
    return o
def qk(u):
    i, e = units[u]
    c = vr(vBF, 16) if i == 0 else (vr(vBD, 16) if i == 8 else "0")
    return I(f"{MF} {vr(vS[u&1],16)}, {ar(aK+4*(u&1),4)}, {vr(vQ+4*e,4)}, {c}")
def pv(u, s):
    i, e = units[u]
    o = vr(vO[e], 16)
    return I(f"{MF} {o}, {ar(aV+8*(u&1)+4*s,4)}, {vr(vP[u&1]+4*s,4)}, {'0' if (i == 0 and s == 0) else o}")
def hload(j, tt):
    soff = "0" if j < 4 else (f"s{sHX}" if j >= 20 else f"s{sA}")
    imm = (j & 3) * 1024
    o = (" offset:%d" % imm) if imm else ""
    pre = L(f"s_movk_i32 s{sA}, {(j>>2)*4096}") if (tt == 0 and (j & 3) == 0 and 4 <= j < 20) else []
    return pre + [I(f"buffer_load_dwordx4 {ar(aH+8*j+4*tt,4)}, v{vAo+tt}, {srd(SWS)}, {soff} offen{o} sc1")]
extra = {u: [] for u in range(18)}
HFLAG_U = OPT.get("hflag", 2); HPOLL_U = OPT.get("hpoll", 8); HCHK_U = HPOLL_U + 3
extra[HFLAG_U] += flag(1, "h")
extra[HPOLL_U] += poll_issue(SWS)
extra[HCHK_U] += poll_check("h", SWS)
hl = [x for j in range(22) for tt in range(2) for x in hload(j, tt)]
nu = 18 - HCHK_U
for q in range(nu):
    extra[HCHK_U + q] += hl[(len(hl) * q) // nu:(len(hl) * (q + 1)) // nu]

E(kread(0) + kread(1) + vread(0))
E(qk(0))
for u in range(18):
    S, P = vS[u & 1], vP[u & 1]
    ex = [I(f"v_exp_f32 v{S+j}, v{S+j}") for j in range(16)]
    cv = [I(f"v_cvt_pk_bf16_f32 v{P+j}, v{S+2*j}, v{S+2*j+1}") for j in range(8)]
    seq = []
    if u + 1 < 18: seq.append(qk(u + 1))
    if u + 2 < 18: seq += kread(u + 2)
    xs = list(extra[u])
    a, b = xs[:len(xs) // 2], xs[len(xs) // 2:]
    seq += a
    seq += ex[0:4]
    if u > 0: seq.append(pv(u - 1, 0))
    seq += ex[4:8] + cv[0:2]
    if u > 0: seq.append(pv(u - 1, 1))
    seq += ex[8:10] + cv[2:4]
    if u + 1 < 18: seq += vread(u + 1)
    seq += b
    seq += ex[10:16] + cv[4:8]
    E(seq)
E([pv(17, 0), pv(17, 1)])
BLO, BHI = fx(2.0 ** -40), fx(2.0 ** 40)
E(f"""
s_mov_b32 s{sT}, {BLO}
s_mov_b32 s{sTb}, {BHI}
v_min_f32 v{vT0}, v{vO[0]+8}, v{vO[1]+8}
v_max_f32 v{vT1}, v{vO[0]+8}, v{vO[1]+8}
v_cmp_nle_f32 vcc, s{sT}, v{vT0}
v_cmp_nge_f32 s[4:5], s{sTb}, v{vT1}
v_cmp_u_f32 s[6:7], v{vO[0]+8}, v{vO[1]+8}
s_or_b64 vcc, vcc, s[4:5]
s_or_b64 vcc, vcc, s[6:7]
s_cbranch_vccnz L_truemax
L_att_done:
v_rcp_f32 v{vT0}, v{vO[0]+8}
v_rcp_f32 v{vT1}, v{vO[1]+8}
""")
for e in range(2):
    E([I(f"v_mul_f32 v{vO[e]+j}, v{vO[e]+j}, v{vT0+e}") for j in range(8)])
    E([I(f"v_cvt_pk_bf16_f32 v{vO[e]+8+j}, v{vO[e]+2*j}, v{vO[e]+2*j+1}") for j in range(4)])
    E(store4(vO[e] + 8, vOst, "0", 1024 * e, "o"))
E(f"v_add_u32 v{vPa}, 8192, v{vPa}")
E("s_barrier")
stamp()

tm = []
tm.append(f"""
L_truemax:
    s_waitcnt vmcnt(0) lgkmcnt(0)
    s_nop 15
    s_sub_i32 s8, 8, s{sTB}
    s_max_i32 s8, s8, 0
    s_mov_b32 s9, 0
L_tm_head:
    s_cmp_eq_u32 s9, 0
    s_cselect_b64 vcc, -1, 0
    s_nop 4
""")
for j in range(4):
    tm.append(f"    v_cndmask_b32 v{vP[1]+j}, v{vQ+4+j}, v{vQ+j}, vcc\n")
tm.append(f"""
    v_mov_b32 v{vT0}, 0xff000000
    s_mov_b32 s11, 0
L_tm_pass:
    s_mov_b32 s10, s8
""")
for j in range(16):
    tm.append(f"    v_mov_b32 v{vS[1]+j}, 0\n")
tm.append(f"""
L_tm_blk:
    s_lshl_b32 s12, s10, 12
    s_lshl_b32 s13, s9, 10
    s_add_u32 s12, s12, s13
    v_add_u32 v{vT1}, s12, v{vKa}
    ds_read_b128 {ar(aK,4)}, v{vT1}
    s_sub_u32 s12, 9, s10
    v_mul_lo_u32 v{vT2}, s12, v{vVinc}
    v_sub_u32 v{vT2}, v{vVa}, v{vT2}
    v_add_u32 v{vT2}, s13, v{vT2}
    ds_read_b64_tr_b16 {ar(aV,2)}, v{vT2}
    ds_read_b64_tr_b16 {ar(aV+2,2)}, v{vT2} offset:256
    ds_read_b64_tr_b16 {ar(aV+4,2)}, v{vT2} offset:512
    ds_read_b64_tr_b16 {ar(aV+6,2)}, v{vT2} offset:768
    s_waitcnt lgkmcnt(0)
    s_cmp_eq_u32 s10, 0
    s_cbranch_scc1 L_tm_far
    s_cmp_eq_u32 s10, 8
    s_cbranch_scc1 L_tm_diag
    {MF} {vr(vS[0],16)}, {ar(aK,4)}, {vr(vP[1],4)}, 0
    s_branch L_tm_s
L_tm_far:
    {MF} {vr(vS[0],16)}, {ar(aK,4)}, {vr(vP[1],4)}, {vr(vBF,16)}
    s_branch L_tm_s
L_tm_diag:
    {MF} {vr(vS[0],16)}, {ar(aK,4)}, {vr(vP[1],4)}, {vr(vBD,16)}
L_tm_s:
    s_nop 15
    s_cmp_eq_u32 s11, 0
    s_cbranch_scc0 L_tm_exp
""")
for j in range(16):
    tm.append(f"    v_max_f32 v{vT0}, v{vT0}, v{vS[0]+j}\n")
tm.append("    s_branch L_tm_next\nL_tm_exp:\n")
for j in range(16):
    tm.append(f"    v_sub_f32 v{vS[0]+j}, v{vS[0]+j}, v{vT0}\n")
for j in range(16):
    tm.append(f"    v_exp_f32 v{vS[0]+j}, v{vS[0]+j}\n")
tm.append("    s_nop 1\n")
for j in range(8):
    tm.append(f"    v_cvt_pk_bf16_f32 v{vP[0]+j}, v{vS[0]+2*j}, v{vS[0]+2*j+1}\n")
tm.append(f"""
    s_nop 1
    {MF} {vr(vS[1],16)}, {ar(aV,4)}, {vr(vP[0],4)}, {vr(vS[1],16)}
    {MF} {vr(vS[1],16)}, {ar(aV+4,4)}, {vr(vP[0]+4,4)}, {vr(vS[1],16)}
    s_nop 15
L_tm_next:
    s_add_u32 s10, s10, 1
    s_cmp_lt_u32 s10, 9
    s_cbranch_scc1 L_tm_blk
    s_cmp_eq_u32 s11, 0
    s_cbranch_scc0 L_tm_fin
    v_mov_b32 v{vT1}, v{vT0}
    s_nop 1
    v_permlane32_swap_b32 v{vT0}, v{vT1}
    s_nop 1
    v_max_f32 v{vT0}, v{vT0}, v{vT1}
    s_mov_b32 s11, 1
    s_branch L_tm_pass
L_tm_fin:
    s_cmp_eq_u32 s9, 0
    s_cbranch_scc0 L_tm_h1
""")
for j in range(16):
    tm.append(f"    v_mov_b32 v{vO[0]+j}, v{vS[1]+j}\n")
tm.append("    s_mov_b32 s9, 1\n    s_branch L_tm_head\nL_tm_h1:\n")
for j in range(16):
    tm.append(f"    v_mov_b32 v{vO[1]+j}, v{vS[1]+j}\n")
tm.append("    s_nop 1\n    s_branch L_att_done\n")
rare.append("".join(tm))

def w2_reads(j):
    sl = j % 12
    base = (sl // 3) * 24576 + (sl % 3) * 2048
    o = []
    for ct in range(2):
        for n in range(2):
            off = base + n * 1024 + ct * 256
            reg = vW3r if off < 49152 else vW3r + 1
            off = off if off < 49152 else off - 49152
            o.append(I(f"ds_read_b64_tr_b16 {ar(aW2+8*(j&1)+4*ct+2*n,2)}, v{reg} offset:{off}", need=["w%d" % j], tag="r%d" % j))
    return o
def oload(j2, tt):
    imm = (j2 & 3) * 1024
    o = (" offset:%d" % imm) if imm else ""
    soff = "0" if j2 < 4 else f"s{sA}"
    return [I(f"buffer_load_dwordx4 {vr(vOF+8*j2+4*tt,4)}, v{vOo+tt}, {srd(SWS)}, {soff} offen{o} sc1")]
OFLAG_J = OPT.get("oflag", 6); OPOLL_J = OPT.get("opoll", 14); OCHK_J = OPT.get("ochk", 18)
E(w2_reads(0))
for j in range(30):
    main = []
    for ct in range(2):
        for tt in range(2):
            acc = ar(aACC + 32 * ct + 16 * tt, 16)
            b = ar(aH + 8 * j + 4 * tt, 4) if j < 22 else vr(vOF + 8 * (j - 22) + 4 * tt, 4)
            main.append(I(f"{MF} {acc}, {ar(aW2+8*(j&1)+4*ct,4)}, {b}, {'0' if j == 0 else acc}"))
    fill = []
    if j + 1 < 30: fill += w2_reads(j + 1)
    if j + 12 < 30: fill += w2_dma(j + 12)
    if j == OFLAG_J: fill += flag(2, "o")
    if j == OPOLL_J: fill += poll_issue(SWS)
    if j == OCHK_J:
        fill += poll_check("o", SWS) + L(f"s_movk_i32 s{sA}, 4096")
        fill += [x for j2 in range(8) for tt in range(2) for x in oload(j2, tt)]
    E(weave(main, fill))
stamp()
E(f"""
v_and_b32 v{vT0}, 31, v{vL}
v_lshrrev_b32 v{vT1}, 5, v{vL}
v_and_b32 v{vT2}, 7, v{vL}
v_xor_b32 v{vT1}, v{vT1}, v{vT2}
v_lshlrev_b32 v{vT0}, 8, v{vT0}
v_lshl_add_u32 v{vT0}, v{vT1}, 4, v{vT0}
s_lshl_b32 s{sT}, s{sW}, 14
v_add_u32 v{vT0}, s{sT}, v{vT0}
""")
for i in range(4):
    E(f"v_xor_b32 v{vU+i}, {32*i}, v{vT0}")
E(f"""
v_lshrrev_b32 v{vT0}, 3, v{vL}
v_and_b32 v{vT1}, 7, v{vL}
v_lshlrev_b32 v{vT1}, 1, v{vT1}
v_xor_b32 v{vT1}, v{vT1}, v{vT0}
v_lshlrev_b32 v{vT0}, 8, v{vT0}
v_lshl_add_u32 v{vT0}, v{vT1}, 4, v{vT0}
s_lshl_b32 s{sT}, s{sW}, 12
v_add_u32 v{vU+4}, s{sT}, v{vT0}
v_xor_b32 v{vU+5}, 16, v{vU+4}
""")
for ct in range(2):
    for tt in range(2):
        for i in range(4):
            E(I(f"ds_write_b128 v{vU+i}, {ar(aACC+32*ct+16*tt+4*i,4)} offset:{tt*8192+ct*128}"))
E("s_waitcnt lgkmcnt(0)\ns_barrier")
R0 = 128
for rho in range(2):
    for p in range(4):
        for n in range(2):
            E(f"ds_read_b128 {vr(R0+32*rho+8*p+4*n,4)}, v{vU+4+n} offset:{p*16384+rho*2048}")
for rho in range(2):
    b = R0 + 32 * rho
    x = vXres + 4 * rho
    for j in range(8): E(f"v_add_f32 v{b+j}, v{b+j}, v{b+8+j}")
    for j in range(8): E(f"v_add_f32 v{b+16+j}, v{b+16+j}, v{b+24+j}")
    for j in range(4):
        E(f"v_lshlrev_b32 v{b+8+2*j}, 16, v{x+j}\nv_and_b32 v{b+9+2*j}, 0xffff0000, v{x+j}")
    for j in range(8): E(f"v_add_f32 v{b+j}, v{b+j}, v{b+16+j}")
    for j in range(8): E(f"v_add_f32 v{b+j}, v{b+j}, v{b+8+j}")
    for j in range(4): E(f"v_cvt_pk_bf16_f32 v{b+8+j}, v{b+2*j}, v{b+2*j+1}")
    E(f"buffer_store_dwordx4 {vr(b+8,4)}, v{vXo+rho}, {srd(SOUT)}, 0 offen")
if OPT["stamps"]:
    stamp()
    E(f"s_waitcnt vmcnt(0)")
    stamp()
    E(f"s_lshl_b32 s{sT}, s2, 2\ns_add_u32 s{sT}, s{sT}, s{sW}\ns_lshl_b32 s{sT}, s{sT}, 6\ns_add_u32 s{sT}, s{sT}, {ST0}\nv_mov_b32 v{vT0}, s{sT}")
    for k in range(nstamp[0]):
        E(f"v_mov_b32 v{vT1}, s{sST+k}\nbuffer_store_dword v{vT1}, v{vT0}, {srd(SWS)}, 0 offen offset:{4*k}")
E("L_end:\ns_endpgm")

lines = finalize(prog, verbose=True)
hdr = f"""; Fused LayerNorm + QKV/gate/up GEMM + sliding-window attention + GEGLU + down/out projection.
; @launch grid=(256,1,1) block=(256,1,1) lds={LDSSZ}
.amdgcn_target "amdgcn-amd-amdhsa--gfx950"
.text
.globl {KNAME}
.p2align 8
.type {KNAME},@function
{KNAME}:
"""
tail = f"""
.section .rodata,"a"
.p2align 6
.amdhsa_kernel {KNAME}
  .amdhsa_next_free_vgpr 512
  .amdhsa_next_free_sgpr 102
  .amdhsa_accum_offset 256
  .amdhsa_group_segment_fixed_size 0
  .amdhsa_kernarg_size 80
  .amdhsa_user_sgpr_count 2
  .amdhsa_user_sgpr_kernarg_segment_ptr 1
  .amdhsa_system_sgpr_workgroup_id_x 1
.end_amdhsa_kernel
"""
open(sys.argv[1], "w").write(hdr + "\n".join(lines) + "\n" + "".join(rare) + tail)
```

```python
import re

TRANS = ("v_exp_f32", "v_log_f32", "v_rcp_f32", "v_rsq_f32", "v_sqrt_f32", "v_sin_f32", "v_cos_f32")

def regs_of(tok):
    tok = tok.strip()
    tok = tok.lstrip("-")
    if tok.startswith("abs(") or tok.startswith("|"):
        tok = tok.replace("abs(", "").replace(")", "").replace("|", "")
    m = re.fullmatch(r"([vas])\[(\d+):(\d+)\]", tok)
    if m:
        return [(m.group(1), i) for i in range(int(m.group(2)), int(m.group(3)) + 1)]
    m = re.fullmatch(r"([vas])(\d+)", tok)
    if m:
        return [(m.group(1), int(m.group(2)))]
    if tok == "vcc":
        return [("s", "vcc")]
    if tok == "exec":
        return [("s", "exec")]
    if tok == "m0":
        return [("s", "m0")]
    return []

class Ins:
    __slots__ = ("text", "op", "r", "w", "kind", "tag", "need", "srcC", "passes", "post", "xr")
    def __init__(self, text, tag=None, need=None):
        self.text = text.strip()
        self.tag = tag
        self.need = need
        self.srcC = []
        self.passes = 0
        self.post = ""
        self.xr = set()
        t = self.text.split(";")[0].strip()
        if t.endswith(":"):
            self.op = "label"; self.kind = "label"; self.r = []; self.w = []; return
        parts = t.split(None, 1)
        op = parts[0]; self.op = op
        ops = []
        if len(parts) > 1:
            ops = [x.strip() for x in re.split(r",(?![^\[]*\])", parts[1])]
            last = ops[-1].split()
            mods = last[1:]
            ops[-1] = last[0] if last else ""
        else:
            mods = []
        R = lambda lst: [x for o in lst for x in regs_of(o)]
        r, w = [], []
        if op.startswith("v_mfma"):
            self.kind = "mfma"; self.passes = 8 if "32x32" in op else 4
            w = R(ops[:1]); r = R(ops[1:]); self.srcC = R(ops[3:4])
        elif op.startswith("v_cmp"):
            self.kind = "valu"; w = R(ops[:1]); r = R(ops[1:])
        elif op.startswith("v_permlane") and "swap" in op:
            self.kind = "valu"; w = R(ops[:2]); r = R(ops[:2])
        elif op.startswith("v_"):
            self.kind = "trans" if op.replace("_e32", "").replace("_e64", "") in TRANS else "valu"
            w = R(ops[:1]); r = R(ops[1:])
            if op.startswith("v_fmac") or op.startswith("v_dot2c") or op.startswith("v_writelane"):
                r += w
        elif op.startswith("ds_read"):
            self.kind = "ds"; w = R(ops[:1]); r = R(ops[1:])
        elif op.startswith("ds_"):
            self.kind = "ds"; r = R(ops)
        elif op.startswith("buffer_load"):
            if "lds" in mods:
                self.kind = "vm"; r = R(ops) + [("s", "m0")]
            else:
                self.kind = "vm"; w = R(ops[:1]); r = R(ops[1:])
        elif op.startswith("buffer_store") or op.startswith("buffer_atomic"):
            self.kind = "vm"; r = R(ops)
        elif op.startswith("s_load") or op in ("s_memtime", "s_memrealtime"):
            self.kind = "smem"; w = R(ops[:1]); r = R(ops[1:])
        elif op == "s_waitcnt":
            self.kind = "wait"
        elif op == "s_nop":
            self.kind = "nop"
        elif op in ("s_barrier", "s_sleep", "s_setprio", "s_endpgm"):
            self.kind = "misc"
        elif op.startswith("s_cbranch") or op == "s_branch":
            self.kind = "branch"
            if "vcc" in op: r = [("s", "vcc")]
        elif op.startswith("s_cmp"):
            self.kind = "salu"; r = R(ops)
        elif op.startswith("s_"):
            self.kind = "salu"; w = R(ops[:1]); r = R(ops[1:])
            if "saveexec" in op: w += [("s", "exec")]; r += [("s", "exec")]
        else:
            raise ValueError("unknown op: " + text)
        self.r = r; self.w = w

def I(text, tag=None, need=None, xr=None):
    x = Ins(text, tag, need)
    if xr: x.xr = set(regs_of(xr))
    return x

def states(ins):
    if ins.kind == "nop":
        return int(ins.text.split()[1]) + 1
    if ins.kind == "label":
        return 0
    return 1

def finalize(prog, verbose=False):
    out = []
    vmq = []
    lgq = []
    nwait = 0; nnop = 0
    def emit(x):
        out.append(x)
    for ins in prog:
        if ins.kind == "label":
            emit(ins); continue
        touched = set(ins.r) | set(ins.w) | ins.xr
        if ins.kind == "wait":
            m = re.search(r"vmcnt\((\d+)\)", ins.text)
            if m:
                n = int(m.group(1)); vmq[:] = vmq[len(vmq) - n:] if n < len(vmq) else vmq
                if n == 0: vmq[:] = []
            m = re.search(r"lgkmcnt\((\d+)\)", ins.text)
            if m:
                n = int(m.group(1))
                if n == 0: lgq[:] = []
                else:
                    assert not any(e[2] for e in lgq), "counted lgkmcnt with smem outstanding"
                    lgq[:] = lgq[len(lgq) - n:] if n < len(lgq) else lgq
            emit(ins); continue
        need = set(ins.need or [])
        vi = -1
        for k, (d, tg) in enumerate(vmq):
            if (d & touched) or (tg is not None and tg in need): vi = k
        li = -1
        for k, (d, tg, sm) in enumerate(lgq):
            if (d & touched) or (tg is not None and tg in need): li = k
        parts = []
        if vi >= 0:
            n = min(len(vmq) - 1 - vi, 63)
            parts.append("vmcnt(%d)" % n); vmq[:] = vmq[len(vmq) - n:] if n else []
        if li >= 0:
            if any(e[2] for e in lgq): n = 0
            else: n = min(len(lgq) - 1 - li, 15)
            parts.append("lgkmcnt(%d)" % n); lgq[:] = lgq[len(lgq) - n:] if n else []
        if parts:
            emit(Ins("s_waitcnt " + " ".join(parts))); nwait += 1
        req = 0
        dist = 0
        rs, ws = set(ins.r), set(ins.w)
        isvalu = ins.kind in ("valu", "trans")
        for p in reversed(out):
            if dist >= 20: break
            if p.kind == "label":
                continue
            pw = set(p.w); need_d = 0
            pvalu = p.kind in ("valu", "trans")
            if p.kind == "mfma":
                ov_r = pw & rs; ov_w = pw & ws
                big = {8: 12, 4: 8}[p.passes]
                if ins.kind == "mfma":
                    c = set(ins.srcC)
                    ab = rs - c if not (set(ins.r[:len(ins.r) - len(ins.srcC)]) & c) else set(ins.r[:len(ins.r) - len(ins.srcC)])
                    if pw & ab: need_d = max(need_d, big)
                    if pw & c:
                        if not (c == pw and ins.passes == p.passes): need_d = max(need_d, {8: 10, 4: 6}[p.passes])
                    if ov_w and not (pw & c): need_d = max(need_d, big)
                elif ins.kind in ("valu", "trans", "ds", "vm"):
                    if ov_r or ov_w: need_d = max(need_d, big)
                if isvalu and (set(p.srcC) & ws): need_d = max(need_d, {8: 7, 4: 3}[p.passes])
                if ins.kind in ("ds", "vm") and (set(p.srcC) & ws): need_d = max(need_d, {8: 7, 4: 3}[p.passes])
            if pvalu:
                vw = {x for x in pw if x[0] in "va"}
                sw = {x for x in pw if x[0] == "s"}
                if ins.kind == "mfma" and (vw & rs): need_d = max(need_d, 2)
                if p.kind == "trans" and isvalu and (vw & rs): need_d = max(need_d, 1)
                if ins.op.startswith("v_permlane") and (vw & rs): need_d = max(need_d, 2)
                if (ins.op.startswith("v_readfirstlane") or ins.op.startswith("v_readlane")) and (vw & rs): need_d = max(need_d, 1)
                if "dpp" in ins.text and (vw & rs): need_d = max(need_d, 2)
                if ins.kind == "vm" and (sw & rs): need_d = max(need_d, 5)
                if isvalu and (sw & rs): need_d = max(need_d, 2)
                if ins.kind in ("salu", "branch") and (sw & rs): need_d = max(need_d, 1)
            if p.kind == "salu" and ("s", "m0") in pw and ("s", "m0") in rs and ins.kind in ("vm", "ds"):
                need_d = max(need_d, 1)
            if p.kind == "vm" and p.op.startswith("buffer_store") and ("x4" in p.op or "x3" in p.op):
                data = set(regs_of(re.split(r",(?![^\[]*\])", p.text.split(None, 1)[1])[0]))
                if data & ws: need_d = max(need_d, 2)
            if need_d > dist: req = max(req, need_d - dist)
            dist += states(p)
        while req > 0:
            k = min(req, 16)
            emit(Ins("s_nop %d" % (k - 1))); nnop += 1; req -= k
        emit(ins)
        if ins.kind == "vm":
            vmq.append((set(ins.w), ins.tag))
        elif ins.kind == "ds":
            lgq.append((set(ins.w), ins.tag, False))
        elif ins.kind == "smem":
            lgq.append((set(ins.w), ins.tag, True))
    if verbose:
        print("finalize: %d instr, %d auto waits, %d auto nops" % (len(out), nwait, nnop))
    return [("" if x.kind == "label" else "    ") + x.text + x.post for x in out]

def weave(main, fill, per=None, lead=0):
    out = []
    n = len(main)
    fi = 0
    out += fill[:lead]; fi = lead
    rem = len(fill) - fi
    for k, m in enumerate(main):
        out.append(m)
        if per is not None:
            c = per[k]
        else:
            c = (rem * (k + 1)) // n - (rem * k) // n
        out += fill[fi:fi + c]; fi += c
    out += fill[fi:]
    return out


class Sched:
    def __init__(self):
        self.main = []; self.pre = []; self.wt = []; self.b = []
    def pos(self, ops, wt=6, pre=None):
        self.main.append(ops if isinstance(ops, list) else [ops]); self.wt.append(wt)
        self.pre.append(list(pre or [])); self.b.append([[], [], []])
        return len(self.main) - 1
    def put(self, p, items, cls):
        for it in items: self.b[p][cls].append(it if isinstance(it, list) else [it])
    def spread(self, items, a, z, cls, cost=None):
        z = min(z, len(self.main))
        items = [it if isinstance(it, list) else [it] for it in items]
        cf = cost or (lambda g: sum(2 if x.kind == "trans" else 1 for x in g))
        tot = sum(cf(g) for g in items)
        W = sum(self.wt[a:z]); acc = 0; cum = 0; k = 0
        for p in range(a, z):
            acc += self.wt[p]
            while k < len(items) and (cum + cf(items[k]) / 2.0 <= tot * acc / W or p == z - 1):
                self.b[p][cls].append(items[k]); cum += cf(items[k]); k += 1
    def emit(self):
        out = []
        for p in range(len(self.main)):
            out += self.pre[p]
            fl = [x for c in self.b[p] for g in c for x in g]
            m = self.main[p]
            if len(m) == 1:
                out += m + fl
            else:
                groups = [g for c in self.b[p] for g in c]
                n = len(groups); cut = n
                cnt = 0
                while cut > 0 and cnt + len(groups[cut - 1]) <= 2:
                    cnt += len(groups[cut - 1]); cut -= 1
                out += [m[0]] + [x for g in groups[:cut] for x in g] + m[1:] + [x for g in groups[cut:] for x in g]
        return out
```

```python
import sys, math
from asmlib import I, Ins, finalize, weave, Sched

KNAME = "parallel_sum__sliding_block__glu_gated_geglu__prompt_kernel"
OPT = dict(stamps=False, spin=200000, touch=True)
for a in sys.argv[2:]:
    k, v = a.split("="); OPT[k] = int(v)

HUGE = 0x40000000
KV0 = 0
H0 = 4 << 20
HSTR = 86 * 1024
O0 = 10 << 20
FL0 = 12 << 20
ST0 = FL0 + (64 << 10)
WSSZ = 13 << 20
WB = 65536
CS1 = 0
STRIP = 49152
CS2 = 53248
LDSSZ = 163840
CSTR = 1040

SX, SQ, SG, SU, SD, SO, SOUT, SWS, SDBG = 24, 28, 32, 36, 40, 44, 48, 52, 56
sW, sRB, sCB, sTB2, sNB, sT0, sT2, sH2, sTB = 3, 60, 61, 62, 63, 64, 65, 66, 67
sX, sQ, sG, sM0X, sM0W = 68, 69, 70, 71, 72
sT, sTb, sTc, sTd = 73, 74, 75, 76
sH0, sKVT, sHX, sM0D, sD = 77, 78, 79, 80, 81
sSPIN = 82
sKV = [83, 84, 85]
sHUGE = 86
sA = 87
sST = 90
def srd(n): return "s[%d:%d]" % (n, n + 3)
def vr(a, n): return "v[%d:%d]" % (a, a + n - 1)
def ar(a, n): return "a[%d:%d]" % (a, a + n - 1)

vL = 0
vT0, vT1, vT2 = 1, 2, 3
vXo = 4; vQo = 8; vGo = 10; vXr = 12; vWr = 16; vQo2 = 24; vGo2 = 26; vW2r = 28
vSum = 36; vCS1 = 40; vCS2 = 44
vRstd, vGA, vGB, vGR, vQS, vL16, vKVst, vHst = 48, 49, 50, 51, 52, 53, 54, 55
vBext = 56
vFl, vCSw, vPoll, vInit = 60, 61, 62, 63
ACC1 = 64; ACC2 = 160
vXT = 208
vU = 224
vG = 232
vCSA = 240
vDo = 248; vEo = 250; vAo = 252; vOo = 254
vBF = 64; vBD = 80; vS = [96, 112]; vP = [128, 136]; vQ = 144; vO = [208, 224]
vKa, vVa, vVinc, vOst, vW3r, vXres = 8, 9, 10, 11, 22, 12
vKVo, vPa = 20, 21
vOF = 64
aX = 0; aSEL = 128; aWF = 152
aH = 0; aW2 = 176; aACC = 192; aK = 192; aV = 200

prog = []
rare = []
def E(x, **kw):
    if isinstance(x, str):
        for ln in x.strip().split("\n"):
            ln = ln.strip()
            if ln and not ln.startswith(";"): prog.append(I(ln, **kw))
    elif isinstance(x, Ins): prog.append(x)
    else: prog.extend(x)
def L(txt, **kw):
    return [I(ln.strip(), **kw) for ln in txt.strip().split("\n") if ln.strip()]
nstamp = [0]
STREG = list(range(90, 102)) + list(range(8, 24))
def stamp_ins(k):
    return L("s_waitcnt lgkmcnt(0)\ns_memtime s[88:89]\ns_waitcnt lgkmcnt(0)\ns_mov_b32 s%d, s88" % STREG[k])
def stampq(sets=(1,)):
    if OPT["stamps"] in sets:
        k = nstamp[0]; nstamp[0] += 1
        return stamp_ins(k)
    return []
def stamp(sets=(1,)):
    if OPT["stamps"] in sets:
        k = nstamp[0]; nstamp[0] += 1
        E(stamp_ins(k))

MF = "v_mfma_f32_32x32x16_bf16"
MS = "v_mfma_f32_16x16x32_bf16"

E("""
s_cmp_ge_u32 s2, 256
s_cbranch_scc1 L_end
s_load_dwordx4 s[4:7], s[0:1], 0
s_load_dwordx2 s[8:9], s[0:1], 16
s_load_dwordx4 s[12:15], s[0:1], 32
s_load_dwordx4 s[16:19], s[0:1], 48
s_load_dwordx4 s[20:23], s[0:1], 64
""")
if OPT.get("ctouch", 1):
    E(f"""s_getpc_b64 s[24:25]
s_mov_b32 s26, 32768
s_mov_b32 s27, 0x20000
s_lshr_b32 s3, s2, 3
s_lshl_b32 s3, s3, 10
v_and_b32 v1, 7, v0
v_lshlrev_b32 v1, 7, v1
buffer_load_dword v{vXT+6}, v1, s[24:27], s3 offen""")
if OPT["stamps"]:
    E("s_memtime s[88:89]")
if OPT.get("endspin"):
    E("s_memrealtime s[88:89]" if OPT["endspin"] == 1 else "s_memtime s[88:89]")
E(f"""
v_lshrrev_b32 v{vT0}, 6, v0
v_mov_b32 v{vInit}, v0
v_readfirstlane_b32 s{sW}, v{vT0}
v_and_b32 v{vL}, 63, v0
s_and_b32 s{sT}, s2, 7
s_lshr_b32 s{sTb}, s2, 3
s_lshr_b32 s{sTc}, s{sT}, 1
s_and_b32 s{sT}, s{sT}, 1
s_lshl_b32 s{sRB}, s{sTc}, 2
s_and_b32 s{sTd}, s{sTb}, 3
s_add_u32 s{sRB}, s{sRB}, s{sTd}
s_lshl_b32 s{sCB}, s{sT}, 3
s_lshr_b32 s{sTd}, s{sTb}, 2
s_add_u32 s{sCB}, s{sCB}, s{sTd}
s_lshl_b32 s{sTB2}, s{sTc}, 3
s_and_b32 s{sTd}, s{sTb}, 7
s_add_u32 s{sTB2}, s{sTB2}, s{sTd}
s_lshl_b32 s{sNB}, s{sT}, 2
s_lshr_b32 s{sTd}, s{sTb}, 3
s_add_u32 s{sNB}, s{sNB}, s{sTd}
s_lshl_b32 s{sTB}, s{sRB}, 2
s_add_u32 s{sTB}, s{sTB}, s{sW}
s_mov_b32 s{sHUGE}, {HUGE}
s_mul_i32 s{sT0}, s{sCB}, 3
s_lshl_b32 s{sT}, s{sCB}, 1
s_add_u32 s{sT}, s{sT}, 11
s_cmp_lt_u32 s{sCB}, 11
s_cselect_b32 s{sT0}, s{sT0}, s{sT}
s_cselect_b32 s{sT}, 2, 1
s_add_u32 s{sT2}, s{sT0}, s{sT}
s_lshl_b32 s{sH2}, s{sT2}, 11
s_cmp_lt_u32 s{sCB}, 11
s_cselect_b32 s{sH2}, s{sH2}, s{sHUGE}
s_lshl_b32 s{sH0}, s{sT0}, 11
s_lshl_b32 s{sM0X}, s{sW}, 12
s_lshl_b32 s{sM0W}, s{sW}, 11
s_add_u32 s{sM0W}, s{sM0W}, {WB}
v_lshlrev_b32 v{vL16}, 4, v{vL}
""")
E(f"""
s_lshl_b32 s{sT}, s{sTB}, 15
v_lshrrev_b32 v{vT0}, 3, v{vL}
v_lshlrev_b32 v{vT0}, 10, v{vT0}
v_add_u32 v{vT0}, s{sT}, v{vT0}
v_and_b32 v{vT1}, 7, v{vL}
v_lshrrev_b32 v{vT2}, 4, v{vL}
v_xor_b32 v{vT1}, v{vT1}, v{vT2}
v_lshl_add_u32 v{vXo}, v{vT1}, 4, v{vT0}
v_xor_b32 v{vT1}, 4, v{vT1}
v_lshl_add_u32 v{vXo+1}, v{vT1}, 4, v{vT0}
v_add_u32 v{vXo+1}, {7*1024}, v{vXo+1}
v_add_u32 v{vXo+2}, {14*1024}, v{vXo}
v_add_u32 v{vXo+3}, {14*1024}, v{vXo+1}
""")
E(f"""
v_lshrrev_b32 v{vT0}, 5, v{vL}
v_bfe_u32 v{vT1}, v{vL}, 2, 2
v_lshl_add_u32 v{vT0}, v{vT0}, 2, v{vT1}
v_bfe_u32 v{vT1}, v{vL}, 4, 1
v_and_b32 v{vT2}, 3, v{vL}
v_lshlrev_b32 v{vT2}, 4, v{vT2}
v_lshl_add_u32 v{vT1}, v{vT1}, 6, v{vT2}
s_lshl_b32 s{sT}, s{sNB}, 7
v_lshl_add_u32 v{vDo}, v{vT0}, 10, v{vT1}
v_add_u32 v{vDo}, s{sT}, v{vDo}
s_lshl_b32 s{sT}, s{sW}, 17
v_add_u32 v{vEo}, s{sT}, v{vDo}
v_add_u32 v{vEo+1}, {7*1024}, v{vEo}
s_mul_i32 s{sT}, s{sW}, {352*1024}
v_add_u32 v{vDo}, s{sT}, v{vDo}
v_add_u32 v{vDo+1}, {7*1024}, v{vDo}
s_lshl_b32 s{sT}, s{sW}, 4
v_add_u32 v{vT0}, s{sT}, v{vT0}
s_and_b32 s{sT}, s{sCB}, 1
s_add_u32 s{sT}, s{sT}, 1
s_lshl_b32 s{sT}, s{sT}, 10
s_lshr_b32 s{sTb}, s{sCB}, 1
s_lshl_b32 s{sTb}, s{sTb}, 7
s_add_u32 s{sT}, s{sT}, s{sTb}
v_mul_u32_u24 v{vQo}, 3072, v{vT0}
v_add3_u32 v{vQo}, v{vQo}, v{vT1}, s{sT}
v_add_u32 v{vQo+1}, {8*3072-1024}, v{vQo}
s_lshl_b32 s{sT}, s{sT0}, 6
v_mul_u32_u24 v{vGo}, 2752, v{vT0}
v_add3_u32 v{vGo}, v{vGo}, v{vT1}, s{sT}
v_add_u32 v{vGo+1}, {8*2752-1024}, v{vGo}
""")
def mksrd(n, p, size):
    return f"s_mov_b32 s{n}, s{p}\ns_mov_b32 s{n+1}, s{p+1}\ns_mov_b32 s{n+2}, {size}\ns_mov_b32 s{n+3}, 0x20000\n"
E(mksrd(SX, 4, 2097152) + mksrd(SQ, 6, 1572864) + mksrd(SG, 12, 1409024) + mksrd(SU, 14, 1409024))
if OPT["stamps"]:
    E("s_mov_b32 s%d, s88" % sST); nstamp[0] = 1

def dma(voff, S, soff, imm, tag, flags="", need=None):
    o = (" offset:%d" % imm) if imm else ""
    return I(f"buffer_load_dwordx4 v{voff}, {srd(S)}, {soff} offen{o} {flags} lds", tag=tag, need=need)

def p1_dma(c):
    sl = c & 3; t = "c%d" % c
    g = []
    g.append(L(f"s_add_u32 m0, s{sM0X}, {sl*16384}\ns_movk_i32 s{sX}, {128*c}") + [dma(vXo, SX, f"s{sX}", 0, t)])
    g += [[dma(vXo + i, SX, f"s{sX}", 1024 * i, t)] for i in range(1, 4)]
    g.append(L(f"s_add_u32 m0, s{sM0W}, {sl*24576}\ns_mov_b32 s{sQ}, {c*196608}") + [dma(vQo, SQ, f"s{sQ}", 0, t)])
    g.append([dma(vQo + 1, SQ, f"s{sQ}", 1024, t)])
    g.append(L(f"s_add_u32 m0, s{sM0W}, {sl*24576+8192}\ns_mov_b32 s{sG}, {c*176128}") + [dma(vGo, SG, f"s{sG}", 0, t)])
    g.append([dma(vGo + 1, SG, f"s{sG}", 1024, t)])
    g.append(L(f"s_add_u32 m0, s{sM0W}, {sl*24576+16384}\ns_nop 0") + [dma(vGo, SU, f"s{sG}", 0, t)])
    g.append([dma(vGo + 1, SU, f"s{sG}", 1024, t)])
    return g
def p2_dma(p):
    t = "p%d" % p
    g = []
    g.append(L(f"s_add_u32 m0, s{sM0W}, {p*24576}\ns_mov_b32 s{sQ}, {p*128*3072}") + [dma(vQo2, SQ, f"s{sQ}", 0, t)])
    g.append([dma(vQo2 + 1, SQ, f"s{sQ}", 1024, t)])
    g.append(L(f"s_add_u32 m0, s{sM0W}, {p*24576+8192}\ns_mov_b32 s{sG}, {p*128*2752}") + [dma(vGo2, SG, f"s{sG}", 0, t)])
    g.append([dma(vGo2 + 1, SG, f"s{sG}", 1024, t)])
    g.append(L(f"s_add_u32 m0, s{sM0W}, {p*24576+16384}\ns_nop 0") + [dma(vGo2, SU, f"s{sG}", 0, t)])
    g.append([dma(vGo2 + 1, SU, f"s{sG}", 1024, t)])
    return g
def flat(g): return [x for y in g for x in y]

stamp((2,))
E(flat(p1_dma(0)))
stamp((2,))
STC = 4
sTS = 8
vTch, vTd = vXT + 4, vXT + 5
E(mksrd(SD, 16, 1409024) + mksrd(SO, 8, 524288) + mksrd(SOUT, 18, 2097152) + mksrd(SWS, 22, WSSZ) + mksrd(SDBG, 20, 256))
touch = []
if OPT["touch"]:
    def sel4(dst, a):
        return f"""s_cmp_eq_u32 s{sW}, 0
s_cselect_b32 s{dst}, {a[0]}, {a[1]}
s_cmp_eq_u32 s{sW}, 2
s_cselect_b32 s{dst}, {a[2]}, s{dst}
s_cmp_eq_u32 s{sW}, 3
s_cselect_b32 s{dst}, {a[3]}, s{dst}
"""
    E(f"""
s_lshr_b32 s9, s2, 3
s_and_b32 s10, s2, 1
s_bfe_u32 s11, s2, 0x20001
s_mul_i32 s12, s9, {2*2752}
s_mul_i32 s13, s10, 1536
s_add_u32 s12, s12, s13
s_mul_i32 s13, s9, {2*3072}
s_lshl_b32 s14, s10, 9
s_add_u32 s13, s13, s14
s_lshl_b32 s14, s11, 19
s_lshl_b32 s15, s9, 14
s_add_u32 s14, s14, s15
""")
    E(sel4(STC, [f"s{SG}", f"s{SU}", f"s{SQ}", f"s{SX}"]) + sel4(STC + 1, [f"s{SG+1}", f"s{SU+1}", f"s{SQ+1}", f"s{SX+1}"]))
    E(f"s_mov_b32 s{STC+3}, 0x20000")
    E(f"""s_movk_i32 s16, 2752
s_movk_i32 s17, 512
s_cmp_eq_u32 s{sW}, 2
s_cselect_b32 s{STC+2}, s{SQ+2}, s{SG+2}
s_cselect_b32 s12, s13, s12
s_cselect_b32 s16, 3072, s16
s_cselect_b32 s17, 1024, s17
s_cselect_b32 s18, 11, 12
s_movk_i32 s19, 128
s_lshl_b32 s15, s16, 6
s_cmp_eq_u32 s{sW}, 3
s_cselect_b32 s{STC+2}, 2097152, s{STC+2}
s_cselect_b32 s12, s14, s12
s_cselect_b32 s16, 0, s16
s_cselect_b32 s17, 4096, s17
s_cselect_b32 s18, 15, s18
s_cselect_b32 s19, 1024, s19
s_cselect_b32 s15, 128, s15
v_and_b32 v{vT0}, 15, v{vL}
v_min_u32 v{vT0}, s18, v{vT0}
v_lshrrev_b32 v{vT1}, 2, v{vT0}
v_and_b32 v{vT0}, 3, v{vT0}
v_mul_u32_u24 v{vT1}, s17, v{vT1}
v_mad_u32_u24 v{vT0}, v{vT0}, s19, v{vT1}
v_bfe_u32 v{vT1}, v{vL}, 4, 1
v_mad_u32_u24 v{vT0}, v{vT1}, s16, v{vT0}
v_lshrrev_b32 v{vT1}, 5, v{vL}
v_mad_u32_u24 v{vT0}, v{vT1}, s15, v{vT0}
v_add_u32 v{vTch}, s12, v{vT0}
s_lshl_b32 s{sTS}, s15, 1
s_lshl_b32 s9, s15, 2
s_add_u32 s10, s9, s{sTS}
""")
    TF = {0: "", 1: " sc1", 2: " nt", 3: " sc0 sc1"}[OPT.get("tflag", 0)]
    touch = [[I(f"buffer_load_dword v{vTd}, v{vTch}, {srd(STC)}, s{r} offen{TF}")] for r in (sTS, 9, 10)]
    E(touch[0])
init_mark = len(prog)
E(f"""
s_cmp_lg_u32 s2, 0
s_cselect_b32 s{sT}, s{sHUGE}, 0
v_lshrrev_b32 v{vT0}, 2, v{vL}
v_and_b32 v{vT1}, 3, v{vL}
v_lshlrev_b32 v{vT1}, 4, v{vT1}
v_lshl_add_u32 v{vT0}, v{vT0}, 7, v{vT1}
s_mul_i32 s{sTb}, s{sW}, {48*128}
s_add_u32 s{sTb}, s{sTb}, {FL0}
v_add_u32 v{vT0}, s{sTb}, v{vT0}
v_add_u32 v{vT1}, 4096, v{vT0}
v_mov_b32 v{vXT}, 0
v_mov_b32 v{vXT+1}, 0
v_mov_b32 v{vXT+2}, 0
v_mov_b32 v{vXT+3}, 0
""")
E(f"buffer_store_dwordx4 {vr(vXT,4)}, v{vT0}, {srd(SWS)}, s{sT} offen sc1", tag="zero")
E(f"buffer_store_dwordx4 {vr(vXT,4)}, v{vT0}, {srd(SWS)}, s{sT} offen offset:2048 sc1", tag="zero")
E(f"buffer_store_dwordx4 {vr(vXT,4)}, v{vT1}, {srd(SWS)}, s{sT} offen sc1", tag="zero")

E(f"""
v_and_b32 v{vT0}, 31, v{vL}
v_lshrrev_b32 v{vT1}, 5, v{vL}
v_bfe_u32 v{vT2}, v{vL}, 1, 3
v_xor_b32 v{vT2}, v{vT2}, v{vT1}
v_lshlrev_b32 v{vT0}, 7, v{vT0}
v_lshl_add_u32 v{vT0}, v{vT2}, 4, v{vT0}
v_add_u32 v{vT0}, s{sM0X}, v{vT0}
""")
for s in range(4):
    E(f"s_xor_b32 s{sT}, s{sW}, {s}\ns_lshl_b32 s{sT}, s{sT}, 5\nv_xor_b32 v{vXr+s}, s{sT}, v{vT0}")
E(f"""
v_bfe_u32 v{vT2}, v{vL}, 2, 2
v_lshlrev_b32 v{vT2}, 6, v{vT2}
v_bfe_u32 v{vT0}, v{vL}, 4, 1
v_lshl_add_u32 v{vT2}, v{vT0}, 5, v{vT2}
v_and_b32 v{vT0}, 3, v{vL}
v_lshl_add_u32 v{vT2}, v{vT0}, 3, v{vT2}
v_lshl_add_u32 v{vT0}, v{vT1}, 10, v{vT2}
v_lshl_add_u32 v{vT2}, v{vT1}, 9, v{vT2}
s_mul_i32 s{sT}, s{sW}, 6144
s_add_u32 s{sM0D}, s{sT}, {WB}
""")
for s in range(4):
    E(f"""
s_xor_b32 s{sT}, s{sW}, {s}
s_lshl_b32 s{sTb}, s{sT}, 11
s_add_u32 s{sTb}, s{sTb}, {WB}
v_add_u32 v{vWr+2*s}, s{sTb}, v{vT0}
v_add_u32 v{vWr+2*s+1}, 49152, v{vWr+2*s}
s_lshl_b32 s{sTb}, s{sT}, 10
s_add_u32 s{sTb}, s{sTb}, {WB}
v_add_u32 v{vW2r+2*s}, s{sTb}, v{vT2}
v_add_u32 v{vW2r+2*s+1}, 49152, v{vW2r+2*s}
""")
E(f"""
v_lshrrev_b32 v{vT0}, 2, v{vL}
s_lshl_b32 s{sT}, s{sW}, 5
v_add_u32 v{vT0}, s{sT}, v{vT0}
v_and_b32 v{vT1}, 3, v{vL}
v_lshlrev_b32 v{vT1}, 4, v{vT1}
s_lshl_b32 s{sT}, s{sCB}, 6
v_mul_u32_u24 v{vQo2}, 3072, v{vT0}
v_add3_u32 v{vQo2}, v{vQo2}, v{vT1}, s{sT}
v_add_u32 v{vQo2+1}, {16*3072-1024}, v{vQo2}
s_lshl_b32 s{sT}, s{sT2}, 6
v_mul_u32_u24 v{vGo2}, 2752, v{vT0}
v_add3_u32 v{vGo2}, v{vGo2}, v{vT1}, s{sT}
v_add_u32 v{vGo2+1}, {16*2752-1024}, v{vGo2}
""")
E(f"""
v_and_b32 v{vT0}, 15, v{vL}
v_bfe_u32 v{vT1}, v{vL}, 4, 1
v_sub_u32 v{vT0}, v{vT0}, v{vT1}
v_mov_b32 v{vT1}, 0x3f803f80
""")
for t in range(6):
    E(f"v_cmp_eq_u32 vcc, {2*t}, v{vT0}\nv_cndmask_b32 v{vT2}, 0, v{vT1}, vcc")
    E("\n".join(f"v_accvgpr_write_b32 a{aSEL+4*t+j}, v{vT2}" for j in range(4)))
E(f"""
v_bfe_u32 v{vT0}, v{vL}, 1, 3
v_mul_u32_u24 v{vT0}, {CSTR}, v{vT0}
v_and_b32 v{vT1}, 1, v{vL}
v_lshl_add_u32 v{vT0}, v{vT1}, 8, v{vT0}
v_lshrrev_b32 v{vT1}, 4, v{vL}
v_lshl_add_u32 v{vT0}, v{vT1}, 6, v{vT0}
s_lshr_b32 s{sT}, s{sW}, 1
s_lshl_b32 s{sT}, s{sT}, 9
s_and_b32 s{sTb}, s{sW}, 1
s_lshl_b32 s{sTb}, s{sTb}, 3
s_add_u32 s{sT}, s{sT}, s{sTb}
v_add_u32 v{vCSw}, s{sT}, v{vT0}
v_and_b32 v{vT0}, 31, v{vL}
v_lshrrev_b32 v{vT1}, 5, v{vL}
v_lshl_add_u32 v{vT0}, v{vT0}, 1, v{vT1}
v_lshlrev_b32 v{vT0}, 4, v{vT0}
v_add_u32 v{vT0}, 2048, v{vT0}
s_and_b32 s{sT}, s{sCB}, 1
s_cmp_eq_u32 s{sT}, 1
s_cselect_b64 vcc, -1, 0
v_cndmask_b32 v{vKVst}, v{vL16}, v{vT0}, vcc
s_and_b32 s{sT}, s{sCB}, 14
s_lshl_b32 s{sT}, s{sT}, 18
s_lshl_b32 s{sTb}, s{sTB}, 12
s_add_u32 s{sT}, s{sT}, s{sTb}
v_add_u32 v{vKVst}, s{sT}, v{vKVst}
s_mov_b32 s{sKVT}, {1<<18}
s_mul_i32 s{sT}, s{sTB}, {HSTR}
s_add_u32 s{sT}, s{sT}, {H0}
v_add_u32 v{vHst}, s{sT}, v{vL16}
s_lshl_b32 s{sT}, s{sTB}, 7
s_lshl_b32 s{sTb}, s{sCB}, 2
s_add_u32 s{sT}, s{sT}, s{sTb}
s_add_u32 s{sT}, s{sT}, {FL0}
v_mov_b32 v{vT0}, s{sT}
v_mov_b32 v{vT1}, s{sHUGE}
v_cmp_eq_u32 vcc, 0, v{vL}
v_cndmask_b32 v{vFl}, v{vT1}, v{vT0}, vcc
v_mov_b32 v{vSum}, 0
v_mov_b32 v{vSum+1}, 0
v_mov_b32 v{vSum+2}, 0
v_mov_b32 v{vSum+3}, 0
""")
E(f"""
s_mul_i32 s{sT}, s{sTB2}, {2*HSTR}
s_mul_i32 s{sTb}, s{sW}, {22*1024}
s_add_u32 s{sT}, s{sT}, s{sTb}
s_add_u32 s{sT}, s{sT}, {H0}
v_add_u32 v{vAo}, s{sT}, v{vL16}
v_add_u32 v{vAo+1}, {HSTR}, v{vAo}
s_lshl_b32 s{sT}, s{sTB2}, 16
s_lshl_b32 s{sTb}, s{sW}, 13
s_add_u32 s{sT}, s{sT}, s{sTb}
s_add_u32 s{sT}, s{sT}, {O0}
v_add_u32 v{vOo}, s{sT}, v{vL16}
v_add_u32 v{vOo+1}, 32768, v{vOo}
s_cmp_eq_u32 s{sW}, 3
s_cselect_b32 s{sHX}, s{sHUGE}, 20480
""")
rest = prog[init_mark:]; del prog[init_mark:]
gs = p1_dma(1) + touch[1:] + p1_dma(2)
acc = []; k = 0
for n, x in enumerate(rest):
    acc.append(x)
    safe = not (x.op.startswith("s_cmp") or (n + 1 < len(rest) and rest[n + 1].op.startswith("s_cselect")))
    if k < len(gs) and safe and n + 1 >= (k + 1) * len(rest) / (len(gs) + 1):
        acc += gs[k]; k += 1
acc += flat(gs[k:])
E(acc)
stamp((1, 2, 3))

def wfrag(setp, t): return aWF + (setp * 6 + t) * 4
def p1_reads(c, s):
    sl = c & 3; st = s & 1
    o = [I(f"ds_read_b128 {ar(aX+(4*c+s)*4,4)}, v{vXr+s} offset:{sl*16384}")]
    for t in range(6):
        mat, ct = t >> 1, t & 1
        for n in range(2):
            imm = (sl & 1) * 24576 + mat * 8192 + n * 512 + ct * 256
            o.append(I(f"ds_read_b64_tr_b16 {ar(wfrag(st,t)+2*n,2)}, v{vWr+2*s+(sl>>1)} offset:{imm}"))
    return o
def p1_statread(c, s):
    sl = c & 3
    return [I(f"ds_read_b128 {vr(vXT+4*s,4)}, v{vXr+s} offset:{sl*16384}")]
def stats(s):
    if OPT.get("x_nostats"): return [I("s_nop 0")] * 24 if OPT["x_nostats"] == 2 else []
    o = []
    for j in range(4):
        x = vXT + 4 * s + j; a = vU + 2 * (j & 1)
        o += L(f"""v_lshlrev_b32 v{a}, 16, v{x}
v_and_b32 v{a+1}, 0xffff0000, v{x}
v_add_f32 v{vSum}, v{vSum}, v{a}
v_add_f32 v{vSum+1}, v{vSum+1}, v{a+1}
v_fmac_f32 v{vSum+2}, v{a}, v{a}
v_fmac_f32 v{vSum+3}, v{a+1}, v{a+1}""")
    return o
def cs_convert(vcs, base):
    o = []
    for j in range(4):
        a = vU + 4
        o += L(f"""v_cvt_pk_bf16_f32 v{a}, v{vcs+j}, v{vcs+j}
v_and_b32 v{a+2}, 0xffff0000, v{a}
v_sub_f32 v{a+2}, v{vcs+j}, v{a+2}
v_cvt_pk_bf16_f32 v{a+1}, v{a+2}, v{a+2}""")
        o.append(I(f"ds_write_b64 v{vCSw}, {vr(a,2)} offset:{base+16*j}", tag="csw"))
    return o
C1 = -2.0 * 0.7978845608028654 * 1.4426950408889634
QC = 0.25 * 1.4426950408889634
import struct
def fx(f): return "0x%08x" % struct.unpack("<I", struct.pack("<f", f))[0]
def stats_final():
    a = vU
    return L(f"""
v_add_f32 v{vSum}, v{vSum}, v{vSum+1}
v_add_f32 v{vSum+2}, v{vSum+2}, v{vSum+3}
v_mov_b32 v{vSum+1}, v{vSum}
v_mov_b32 v{vSum+3}, v{vSum+2}
v_permlane32_swap_b32 v{vSum}, v{vSum+1}
v_permlane32_swap_b32 v{vSum+2}, v{vSum+3}
v_add_f32 v{vSum}, v{vSum}, v{vSum+1}
v_add_f32 v{vSum+2}, v{vSum+2}, v{vSum+3}
v_mul_f32 v{vSum}, {fx(-1.0/512)}, v{vSum}
v_mul_f32 v{vSum+2}, {fx(1.0/512)}, v{vSum+2}
v_fma_f32 v{vSum+2}, -v{vSum}, v{vSum}, v{vSum+2}
v_max_f32 v{vSum+2}, 0, v{vSum+2}
v_add_f32 v{vGR}, {fx(1e-5)}, v{vSum+2}
v_rsq_f32 v{vRstd}, v{vGR}
v_cvt_pk_bf16_f32 v{a}, v{vSum}, v{vSum}
v_and_b32 v{a}, 0xffff0000, v{a}
v_sub_f32 v{a+1}, v{vSum}, v{a}
v_cvt_pk_bf16_f32 v{vBext}, v{a}, v{a+1}
v_mul_f32 v{vGA}, {fx(C1)}, v{vRstd}
v_mul_f32 v{vQS}, {fx(QC)}, v{vRstd}
v_mul_f32 v{a}, v{vRstd}, v{vRstd}
v_mov_b32 v{vBext+1}, v{vBext}
v_mov_b32 v{vBext+2}, v{vBext}
v_mov_b32 v{vBext+3}, v{vBext}
v_mul_f32 v{a}, {fx(0.044715)}, v{a}
v_mul_f32 v{vGB}, v{vGA}, v{a}
""")

E(I("s_barrier", need=["c0"]))
stamp((2,))
E(p1_reads(0, 0) + p1_statread(0, 0))
S1 = Sched()
P1 = lambda c, s, t: 24 * c + 6 * s + t
for c in range(8):
    for s in range(4):
        st = s & 1
        first = (c == 0 and s == 0)
        for t in range(6):
            acc = vr(ACC1 + 16 * t, 16)
            xr = ar(wfrag(st, t + 1), 4) if (t & 1) == 0 else None
            ops = [I(f"{MF} {acc}, {ar(wfrag(st,t),4)}, {ar(aX+(4*c+s)*4,4)}, {'0' if first else acc}", xr=xr)]
            if s == 0:
                cs = vr(vCS1, 4)
                ops.append(I(f"{MS} {cs}, {ar(wfrag(st,t),4)}, {ar(aSEL+4*t,4)}, {'0' if (first and t == 0) else cs}"))
            pre = []
            if s == 3 and t == 1:
                pre = [I("s_waitcnt lgkmcnt(0)"), I("s_barrier", need=["c%d" % (c + 1) if c < 7 else "p0", "zero"])]
                if c == 0:
                    pre += L(f"s_or_b32 s{sT}, s2, s{sW}\ns_cmp_eq_u32 s{sT}, 0\ns_cselect_b32 s{sT}, 0, s{sHUGE}\nv_mov_b32 v{vT0}, 1\nv_lshlrev_b32 v{vT1}, 8, v{vL}")
                    pre += [I(f"buffer_store_dword v{vT0}, v{vT1}, {srd(SDBG)}, s{sT} offen sc1")]
            if s == 0 and t == 0: pre += stampq((3,))
            S1.pos(ops, 8 if s == 0 else 6, pre)
NP1 = 192
P2 = lambda k, t: NP1 + 6 + 3 * k + t
for t in range(6):
    acc = vr(ACC1 + 16 * t, 16)
    S1.pos(I(f"{MF} {acc}, {vr(vCSA+4*(t&1),4)}, {vr(vBext,4)}, {acc}"), 6, stampq((1, 3)) if t == 0 else [])
    if t + 2 < 6:
        S1.put(NP1 + t, [I(f"ds_read_b128 {vr(vCSA+4*(t&1),4)}, v{vL16} offset:{CS1+CSTR*(t+2)}")], 0)
for k in range(32):
    p, s, st = k >> 3, k & 3, k & 1
    for t in range(3):
        acc = vr(ACC2 + 16 * t, 16)
        ops = [I(f"{MF} {acc}, {ar(wfrag(st,t),4)}, {ar(aX+k*4,4)}, {'0' if k == 0 else acc}", xr=ar(wfrag(st, 1), 4) if t == 0 else None)]
        if s == 0:
            cs = vr(vCS2, 4)
            ops.append(I(f"{MS} {cs}, {ar(wfrag(st,t),4)}, {ar(aSEL+4*t,4)}, {'0' if (k == 0 and t == 0) else cs}"))
        pre = []
        if (k & 7) == 7 and t == 1:
            pre = [I("s_waitcnt lgkmcnt(0)"), I("s_barrier", need=["p%d" % (p + 1)] if p < 3 else [])]
        if (k & 3) == 0 and t == 0: pre += stampq((4,))
        S1.pos(ops, 8 if s == 0 else 6, pre)
NP2 = P2(32, 0)
for c in range(8):
    for s in range(4):
        nc, ns = (c, s + 1) if s < 3 else (c + 1, 0)
        o = 1 if s == 3 else 0
        if nc < 8:
            rd = p1_reads(nc, ns)
            sr = p1_statread(nc, ns) if not (nc == 7 and ns > 0) else []
            if c == 7 and s == 0: sr = p1_statread(7, 1) + p1_statread(7, 2) + p1_statread(7, 3)
            rd = rd[:3] + sr + rd[3:]
            if OPT.get("x_halftr"): rd = rd[:8]
            S1.spread(rd, P1(c, s, o), P1(c, s, o + 5), 0)
        else:
            S1.put(P1(c, s, 1), [I(f"ds_read_b128 {vr(vCSA+4*k,4)}, v{vL16} offset:{CS1+CSTR*k}") for k in range(2)], 0)
        if c < 7: S1.spread(stats(s), P1(c, s, 0), P1(c, s, 6), 2)
        elif s == 0: S1.spread(stats(0), P1(c, 0, 0), P1(c, 0, 4), 2); S1.spread(stats(1)[:12], P1(c, 0, 4), P1(c, 0, 6), 2)
        elif s == 1: S1.spread(stats(1)[12:] + cs_convert(vCS1, CS1) + stats(2)[:6], P1(c, 1, 0), P1(c, 1, 6), 2)
        elif s == 2: S1.spread(stats(2)[6:] + stats(3)[:18], P1(c, 2, 0), P1(c, 2, 6), 2)
        else: S1.spread(stats(3)[18:] + stats_final(), P1(c, 3, 0), P1(c, 3, 6), 2)
    one = lambda g: 1
    if c == 0: S1.spread(p1_dma(3), P1(0, 0, 0), P1(0, 3, 1), 1, one)
    if not (OPT.get("x_nodma") and c < 4): S1.spread(p1_dma(c + 4) if c < 4 else p2_dma(c - 4), P1(c, 3, 1), P1(c + 1, 3, 1), 1, one)
if OPT["touch"]:
    t2 = L(f"""s_lshr_b32 s{sT}, s2, 3
s_mul_i32 s{sTb}, s{sT}, 43
s_lshl_b32 s{sTc}, s{sT}, 4
s_lshl_b32 s{sTd}, s{sW}, 4
s_cmp_eq_u32 s{sW}, 3
s_cselect_b32 s{sTb}, s{sTc}, s{sTb}
s_cselect_b32 s{sTd}, 0, s{sTd}
s_cselect_b32 s{STC}, s{SO}, s{SD}
s_cselect_b32 s{STC+1}, s{SO+1}, s{SD+1}
s_cselect_b32 s{STC+2}, s{SO+2}, s{SD+2}
s_and_b32 s{sTc}, s2, 1
s_lshl_b32 s{sTc}, s{sTc}, 9
v_lshrrev_b32 v{vT0}, 2, v{vL}
v_add_u32 v{vT0}, s{sTd}, v{vT0}
v_min_u32 v{vT0}, 42, v{vT0}
v_add_u32 v{vT0}, s{sTb}, v{vT0}
v_and_b32 v{vT1}, 3, v{vL}
v_lshlrev_b32 v{vT1}, 7, v{vT1}
v_lshl_add_u32 v{vT0}, v{vT0}, 10, v{vT1}""") + [I(f"buffer_load_dword v{vPoll}, v{vT0}, {srd(STC)}, s{sTc} offen{TF}")]
    S1.put(P1(OPT.get("w2t", 2), 0, 0), [t2], 1)
    if OPT.get("wst", 1):
        t3 = [[I(f"buffer_load_dword v{vPoll}, v{r}, {srd(SWS)}, 0 offen sc1")] for r in (vKVst, vHst)]
        S1.spread(t3, P1(1, 0, 0), P1(1, 2, 0), 1, one)
S1.put(P1(5, 0, 0), [L(f"v_mov_b32 v{vT0}, 0") + [I(f"buffer_load_dword v{vInit}, v{vT0}, {srd(SDBG)}, 0 offen" + (" sc1" if OPT.get("initsc1", 0) else ""))]], 1)

def p2_reads(k):
    p, g, s = k >> 3, (k >> 2) & 1, k & 3
    st = k & 1
    o = []
    for t in range(3):
        for n in range(2):
            imm = (p & 1) * 24576 + t * 8192 + g * 4096 + n * 256
            o.append(I(f"ds_read_b64_tr_b16 {ar(wfrag(st,t)+2*n,2)}, v{vW2r+2*s+(p>>1)} offset:{imm}"))
    return o
def scale_pack(acc, sc, dst):
    o = []
    for j in range(16): o.append(I(f"v_mul_f32 v{acc+j}, v{acc+j}, v{sc}"))
    for j in range(8): o.append(I(f"v_cvt_pk_bf16_f32 v{dst+j}, v{acc+2*j}, v{acc+2*j+1}"))
    return o
def gelu(g, u):
    o = []
    for b in range(4):
        js = range(4 * b, 4 * b + 4)
        T = lambda j: vG + (j & 3) + 4 * (b & 1)
        o += [I(f"v_mul_f32 v{T(j)}, v{g+j}, v{g+j}") for j in js]
        o += [I(f"v_fma_f32 v{T(j)}, v{T(j)}, v{vGB}, v{vGA}") for j in js]
        o += [I(f"v_mul_f32 v{T(j)}, v{g+j}, v{T(j)}") for j in js]
        for j in js:
            o += [I(f"v_exp_f32 v{T(j)}, v{T(j)}"), I(f"v_mul_f32 v{g+j}, v{g+j}, v{u+j}")]
        o += [I(f"v_fma_f32 v{T(j)}, v{T(j)}, v{vGR}, v{vGR}") for j in js]
        o += [I(f"v_rcp_f32 v{T(j)}, v{T(j)}") for j in js]
        o += [I(f"v_mul_f32 v{g+j}, v{g+j}, v{T(j)}") for j in js]
        o += [I(f"v_cvt_pk_bf16_f32 v{u+2*b+k}, v{g+4*b+2*k}, v{g+4*b+2*k+1}") for k in range(2)]
    return o
def store4(data, voff, soff, imm, tag):
    o = (" offset:%d" % imm) if imm else ""
    return I(f"buffer_store_dwordx4 {vr(data,4)}, v{voff}, {srd(SWS)}, {soff} offen{o} sc1", tag=tag)
def flag(stage, tag):
    return L(f"v_mov_b32 v{vT0}, 1\ns_movk_i32 s{sT}, {stage*8192}") + [I(f"buffer_store_dword v{vT0}, v{vFl}, {srd(SWS)}, s{sT} offen sc1", need=[tag])]
def poll_issue(S, soff="0"):
    return [I(f"buffer_load_dword v{vPoll}, v{vPa}, {srd(S)}, {soff} offen sc1")]
def poll_check(name, S, reg=None, addr=None, soff="0"):
    reg = vPoll if reg is None else reg
    addr = vPa if addr is None else addr
    rare.append(f"""
L_spin_{name}:
    s_mov_b32 s{sSPIN}, {OPT['spin']}
L_spin2_{name}:
    s_sleep 1
    buffer_load_dword v{reg}, v{addr}, {srd(S)}, {soff} offen sc1
    s_waitcnt vmcnt(0) lgkmcnt(0)
    v_cmp_eq_u32 vcc, 0, v{reg}
    s_nop 4
    s_cbranch_vccz L_ok_{name}
    s_sub_u32 s{sSPIN}, s{sSPIN}, 1
    s_cmp_lg_u32 s{sSPIN}, 0
    s_cbranch_scc1 L_spin2_{name}
    s_endpgm
""")
    o = L(f"v_cmp_eq_u32 vcc, 0, v{reg}\ns_cbranch_vccnz L_spin_{name}")
    o[-1].post = f"\nL_ok_{name}:"
    return o

fillq = []
for t in range(2):
    a = ACC1 + 16 * t
    fillq += scale_pack(a, vRstd, a)
    fillq += [store4(a, vKVst, "0" if t == 0 else f"s{sKVT}", 0, "kv"), store4(a + 4, vKVst, "0" if t == 0 else f"s{sKVT}", 1024, "kv")]
fillq += L(f"v_mov_b32 v{vT2}, 0") + poll_check("init", SDBG, reg=vInit, addr=vT2)
g0 = gelu(ACC1 + 32, ACC1 + 64) + [store4(ACC1 + 64, vHst, f"s{sH0}", 0, "h"), store4(ACC1 + 68, vHst, f"s{sH0}", 1024, "h")]
g1 = gelu(ACC1 + 48, ACC1 + 80) + [store4(ACC1 + 80, vHst, f"s{sH0}", 2048, "h"), store4(ACC1 + 84, vHst, f"s{sH0}", 3072, "h")]
KVFLAG_AT = OPT.get("kvflag", 90)
fillq += g0[:KVFLAG_AT] + flag(0, "kv") + g0[KVFLAG_AT:]
att = L(f"""
v_and_b32 v{vT1}, 31, v{vL}
v_lshrrev_b32 v{vT2}, 5, v{vL}
v_lshlrev_b32 v{vT2}, 2, v{vT2}
v_sub_u32 v{vT1}, v{vT1}, v{vT2}
v_mov_b32 v{vT2}, 0xff000000
""")
for j in range(16):
    kl = 8 * (j >> 2) + (j & 3)
    att += L(f"v_cmp_le_i32 vcc, {kl}, v{vT1}\nv_cndmask_b32 v{vBD+j}, v{vT2}, 0, vcc\nv_cndmask_b32 v{vBF+j}, 0, v{vT2}, vcc")
att += L(f"""
s_lshl_b32 s{sT}, s{sRB}, 2
s_sub_i32 s{sT}, 8, s{sT}
v_and_b32 v{vT1}, 15, v{vL}
v_cmp_le_i32 vcc, s{sT}, v{vT1}
v_mov_b32 v{vT1}, 0x3f803f80
v_cndmask_b32 v{vU}, 0, v{vT1}, vcc
v_cndmask_b32 v{vU+1}, 0, v{vT1}, vcc
v_lshlrev_b32 v{vT1}, 3, v{vL}
s_lshl_b32 s{sT}, s{sW}, 9
v_add_u32 v{vT1}, s{sT}, v{vT1}
""") + [I(f"ds_write_b64 v{vT1}, {vr(vU,2)} offset:{STRIP}", tag="strip")]
att += L(f"""
v_add_u32 v{vKa}, s{sM0X}, v{vL16}
v_lshrrev_b32 v{vT1}, 5, v{vL}
v_bfe_u32 v{vT2}, v{vL}, 2, 2
v_lshl_add_u32 v{vT2}, v{vT1}, 2, v{vT2}
v_lshlrev_b32 v{vT2}, 5, v{vT2}
v_and_b32 v{vVa}, 1, v{vL}
v_lshl_add_u32 v{vT2}, v{vVa}, 4, v{vT2}
v_bfe_u32 v{vVa}, v{vL}, 1, 1
v_lshl_add_u32 v{vT2}, v{vVa}, 3, v{vT2}
s_add_u32 s{sT}, s{sM0X}, 2048
v_add_u32 v{vT2}, s{sT}, v{vT2}
v_xor_b32 v{vT1}, 1, v{vT1}
v_lshlrev_b32 v{vT1}, 7, v{vT1}
s_lshl_b32 s{sT}, s{sW}, 3
s_add_u32 s{sT}, s{sT}, {STRIP}
v_add_u32 v{vT1}, s{sT}, v{vT1}
v_and_b32 v{vVa}, 16, v{vL}
v_cmp_eq_u32 vcc, 0, v{vVa}
v_cndmask_b32 v{vVa}, v{vT1}, v{vT2}, vcc
v_mov_b32 v{vT1}, 8
v_mov_b32 v{vT2}, 4096
v_cndmask_b32 v{vVinc}, v{vT1}, v{vT2}, vcc
s_lshl_b32 s{sT}, s{sTB}, 15
s_lshl_b32 s{sTb}, s{sCB}, 11
s_add_u32 s{sT}, s{sT}, s{sTb}
s_add_u32 s{sT}, s{sT}, {O0}
v_add_u32 v{vOst}, s{sT}, v{vL16}
s_lshl_b32 s{sT}, s{sCB}, 18
v_add_u32 v{vKVo}, s{sT}, v{vL16}
s_mul_i32 s{sT}, s{sW}, 5120
v_add_u32 v{vW3r}, s{sT}, v{vW2r}
v_add_u32 v{vW3r+1}, 49152, v{vW3r}
""")
kvprep = []
for k in range(3):
    kvprep += L(f"""
s_mul_i32 s{sT}, s{sW}, 3
s_lshl_b32 s{sTb}, s{sRB}, 2
s_add_u32 s{sT}, s{sT}, s{sTb}
s_add_i32 s{sT}, s{sT}, {k-8}
s_lshl_b32 s{sKV[k]}, s{sT}, 12
s_cmp_lt_i32 s{sT}, 0
s_cselect_b32 s{sKV[k]}, s{sHUGE}, s{sKV[k]}
""")
kvprep += L(f"""
v_min_u32 v{vT1}, 5, v{vL}
v_lshrrev_b32 v{vT2}, 1, v{vT1}
s_add_i32 s{sT}, s{sT}, -2
v_add_u32 v{vT2}, s{sT}, v{vT2}
v_cmp_gt_i32 vcc, 0, v{vT2}
v_mov_b32 v{vPa}, s{sTB}
v_cndmask_b32 v{vT2}, v{vT2}, v{vPa}, vcc
v_lshlrev_b32 v{vT2}, 7, v{vT2}
v_and_b32 v{vT1}, 1, v{vT1}
v_lshl_add_u32 v{vT2}, v{vT1}, 2, v{vT2}
s_and_b32 s{sT}, s{sCB}, 14
s_lshl_b32 s{sT}, s{sT}, 2
s_add_u32 s{sT}, s{sT}, {FL0}
v_add_u32 v{vPa}, s{sT}, v{vT2}
""")
kvdma = []
for k in range(3):
    kvdma.append(L(f"s_mul_i32 s{sX}, s{sW}, 12288\ns_add_u32 m0, s{sX}, {4096*k}\ns_nop 0") + [dma(vKVo, SWS, f"s{sKV[k]}", 0, "kvl", "sc1")])
    kvdma += [[dma(vKVo, SWS, f"s{sKV[k]}", 1024 * i, "kvl", "sc1")] for i in range(1, 4)]
POLL_AT = OPT.get("kvpoll", 100)
fillq += att + kvprep + g1[:POLL_AT] + poll_issue(SWS) + g1[POLL_AT:]

def w2_dma(j):
    sl = j % 12
    m0 = (sl // 3) * 24576 + (sl % 3) * 2048
    vo, S, so = (vDo, SD, j * 16384) if j < 22 else (vEo, SO, (j - 22) * 16384)
    nd = ["r%d" % (j - 12)]
    return [L(f"s_add_u32 m0, s{sM0D}, {m0}\ns_mov_b32 s{sD}, {so}") + [dma(vo, S, f"s{sD}", 0, "w%d" % j, need=nd)],
            [dma(vo + 1, S, f"s{sD}", 1024, "w%d" % j, need=nd)]]
def glue(q):
    out = []; cur = []
    for n, x in enumerate(q):
        cur.append(x)
        nxt = q[n + 1] if n + 1 < len(q) else None
        if x.op.startswith("s_cmp") or (nxt is not None and nxt.op.startswith("s_cselect")): continue
        out.append(cur); cur = []
    if cur: out.append(cur)
    return out
S1.spread(p2_reads(0), NP1, NP1 + 5, 0)
for k in range(32):
    o = 1 if (k & 7) == 7 else 0
    if k + 1 < 32: S1.spread(p2_reads(k + 1), P2(k, o), P2(k, 3), 0)
    else: S1.put(P2(k, 1), [I(f"ds_read_b128 {vr(vCSA+4*q,4)}, v{vL16} offset:{CS2+CSTR*q}") for q in range(2)], 0)
for p in range(3):
    S1.spread(w2_dma(3 * p) + w2_dma(3 * p + 1) + w2_dma(3 * p + 2), P2(8 * p + 7, 1), P2(8 * p + 15, 1) if p < 2 else P2(OPT.get("kvchk", 29), 0), 1, one)
S1.spread(glue(fillq), NP1 + 2, P2(29, 0), 2)
S1.spread(cs_convert(vCS2, CS2), P2(29, 0), P2(31, 0), 2)
S1.put(P2(OPT.get("kvchk", 29), 0), [poll_check("kv", SWS)], 1)
S1.spread(kvdma, P2(OPT.get("kvchk", 29), 1), NP2, 1, one)
if OPT["stamps"] == 9:
    for q in range(26):
        p = OPT["za"] + q * OPT["zs"]
        if p < len(S1.main): S1.pre[p] = stampq((9,)) + S1.pre[p]
E(S1.emit())
stamp((1, 4))
post_dma = w2_dma(9) + w2_dma(10) + w2_dma(11)
for t in range(3):
    acc = vr(ACC2 + 16 * t, 16)
    E(f"{MF} {acc}, {vr(vCSA+4*(t&1),4)}, {vr(vBext,4)}, {acc}")
    if t == 0: E(f"ds_read_b128 {vr(vCSA,4)}, v{vL16} offset:{CS2+2*CSTR}")
E(f"""
v_lshrrev_b32 v{vT0}, 3, v{vL}
s_lshl_b32 s{sT}, s{sTB2}, 6
s_lshl_b32 s{sTb}, s{sW}, 4
s_add_u32 s{sT}, s{sT}, s{sTb}
v_add_u32 v{vT0}, s{sT}, v{vT0}
v_lshlrev_b32 v{vT0}, 10, v{vT0}
v_and_b32 v{vT1}, 7, v{vL}
v_lshl_add_u32 v{vT0}, v{vT1}, 4, v{vT0}
s_lshl_b32 s{sT}, s{sNB}, 7
v_add_u32 v{vXo}, s{sT}, v{vT0}
v_add_u32 v{vXo+1}, 8192, v{vXo}
v_bfe_u32 v{vT0}, v{vL}, 4, 1
v_and_b32 v{vT1}, 15, v{vL}
v_lshlrev_b32 v{vT1}, 2, v{vT1}
v_lshl_add_u32 v{vT0}, v{vT0}, 7, v{vT1}
s_lshl_b32 s{sT}, s{sTB2}, 8
s_add_u32 s{sT}, s{sT}, {FL0+8192}
v_add_u32 v{vPa}, s{sT}, v{vT0}
""")
E(f"buffer_load_dwordx4 {vr(vXres,4)}, v{vXo}, {srd(SX)}, 0 offen")
E(f"buffer_load_dwordx4 {vr(vXres+4,4)}, v{vXo+1}, {srd(SX)}, 0 offen")
gl = gelu(ACC2 + 16, ACC2 + 32)
for q in range(6):
    E(gl[len(gl) * q // 6:len(gl) * (q + 1) // 6] + post_dma[q])
E([store4(ACC2 + 32, vHst, f"s{sH2}", 0, "h"), store4(ACC2 + 36, vHst, f"s{sH2}", 1024, "h")])
E(scale_pack(ACC2, vQS, vQ))
E(I("s_waitcnt lgkmcnt(0)"))
stamp((4, 6))
E(I("s_barrier", need=["kvl"]))
stamp((1, 4, 6))

units = [(i, e) for i in range(9) for e in range(2)]
def kread(u):
    i, e = units[u]
    return [I(f"ds_read_b128 {ar(aK+4*(u&1),4)}, v{vKa} offset:{i*4096+e*1024}")]
def vread(u):
    i, e = units[u]
    o = []
    for s in range(2):
        for n in range(2):
            o.append(I(f"ds_read_b64_tr_b16 {ar(aV+8*(u&1)+4*s+2*n,2)}, v{vVa} offset:{e*1024+s*512+n*256}"))
    if e == 1: o.append(I(f"v_add_u32 v{vVa}, v{vVa}, v{vVinc}"))
    return o
def qk(u):
    i, e = units[u]
    c = vr(vBF, 16) if i == 0 else (vr(vBD, 16) if i == 8 else "0")
    return I(f"{MF} {vr(vS[u&1],16)}, {ar(aK+4*(u&1),4)}, {vr(vQ+4*e,4)}, {c}")
def pv(u, s):
    i, e = units[u]
    o = vr(vO[e], 16)
    return I(f"{MF} {o}, {ar(aV+8*(u&1)+4*s,4)}, {vr(vP[u&1]+4*s,4)}, {'0' if (i == 0 and s == 0) else o}")
def hload(j, tt):
    soff = "0" if j < 4 else (f"s{sHX}" if j >= 20 else f"s{sA}")
    imm = (j & 3) * 1024
    o = (" offset:%d" % imm) if imm else ""
    pre = L(f"s_movk_i32 s{sA}, {(j>>2)*4096}") if (tt == 0 and (j & 3) == 0 and 4 <= j < 20) else []
    return pre + [I(f"buffer_load_dwordx4 {ar(aH+8*j+4*tt,4)}, v{vAo+tt}, {srd(SWS)}, {soff} offen{o} sc1")]
extra = {u: [] for u in range(18)}
HFLAG_U = OPT.get("hflag", 2); HPOLL_U = OPT.get("hpoll", 8); HCHK_U = HPOLL_U + 3
extra[HFLAG_U].append(flag(1, "h"))
extra[HPOLL_U].append(poll_issue(SWS))
extra[HCHK_U].append(poll_check("h", SWS))
hl = [hload(j, tt) for j in range(22) for tt in range(2)]
NH = OPT.get("nh", 28)
hl_late = hl[NH:]; hl = hl[:NH]
nu = 18 - HCHK_U
for q in range(nu):
    extra[HCHK_U + q] += hl[(len(hl) * q) // nu:(len(hl) * (q + 1)) // nu]

E(kread(0) + kread(1) + vread(0))
E(qk(0))
for u in range(18):
    S, P = vS[u & 1], vP[u & 1]
    ex = [I(f"v_exp_f32 v{S+j}, v{S+j}") for j in range(16)]
    cv = [I(f"v_cvt_pk_bf16_f32 v{P+j}, v{S+2*j}, v{S+2*j+1}") for j in range(8)]
    seq = []
    if u + 1 < 18: seq.append(qk(u + 1))
    if u + 2 < 18: seq += kread(u + 2)
    xs = list(extra[u])
    X = lambda q: flat(xs[len(xs) * q // 4:len(xs) * (q + 1) // 4])
    seq += X(0)
    seq += ex[0:4]
    if u > 0: seq.append(pv(u - 1, 0))
    seq += ex[4:6] + X(1) + ex[6:8] + cv[0:2]
    if u > 0: seq.append(pv(u - 1, 1))
    seq += ex[8:10] + cv[2:4]
    if u + 1 < 18: seq += vread(u + 1)
    seq += ex[10:12] + X(2) + ex[12:16] + cv[4:6] + X(3) + cv[6:8]
    if u % 2 == 0: seq = stampq((6,)) + seq
    E(seq)
E([pv(17, 0), pv(17, 1)])
BLO, BHI = fx(2.0 ** -40), fx(2.0 ** 40)
E(f"""
s_mov_b32 s{sT}, {BLO}
s_mov_b32 s{sTb}, {BHI}
v_min_f32 v{vT0}, v{vO[0]+8}, v{vO[1]+8}
v_max_f32 v{vT1}, v{vO[0]+8}, v{vO[1]+8}
v_cmp_nle_f32 vcc, s{sT}, v{vT0}
v_cmp_nge_f32 s[4:5], s{sTb}, v{vT1}
v_cmp_u_f32 s[6:7], v{vO[0]+8}, v{vO[1]+8}
s_or_b64 vcc, vcc, s[4:5]
s_or_b64 vcc, vcc, s[6:7]
s_cbranch_vccnz L_truemax
L_att_done:
v_rcp_f32 v{vT0}, v{vO[0]+8}
v_rcp_f32 v{vT1}, v{vO[1]+8}
""")
for e in range(2):
    E([I(f"v_mul_f32 v{vO[e]+j}, v{vO[e]+j}, v{vT0+e}") for j in range(8)])
    E([I(f"v_cvt_pk_bf16_f32 v{vO[e]+8+j}, v{vO[e]+2*j}, v{vO[e]+2*j+1}") for j in range(4)])
    E(store4(vO[e] + 8, vOst, "0", 1024 * e, "o"))
E(f"v_add_u32 v{vPa}, 8192, v{vPa}")
stamp((6,))
E("s_barrier")
stamp((1, 5, 6))

tm = []
tm.append(f"""
L_truemax:
    s_waitcnt vmcnt(0) lgkmcnt(0)
    s_nop 15
    s_sub_i32 s8, 8, s{sTB}
    s_max_i32 s8, s8, 0
    s_mov_b32 s9, 0
L_tm_head:
    s_cmp_eq_u32 s9, 0
    s_cselect_b64 vcc, -1, 0
    s_nop 4
""")
for j in range(4):
    tm.append(f"    v_cndmask_b32 v{vP[1]+j}, v{vQ+4+j}, v{vQ+j}, vcc\n")
tm.append(f"""
    v_mov_b32 v{vT0}, 0xff000000
    s_mov_b32 s11, 0
L_tm_pass:
    s_mov_b32 s10, s8
""")
for j in range(16):
    tm.append(f"    v_mov_b32 v{vS[1]+j}, 0\n")
tm.append(f"""
L_tm_blk:
    s_lshl_b32 s12, s10, 12
    s_lshl_b32 s13, s9, 10
    s_add_u32 s12, s12, s13
    v_add_u32 v{vT1}, s12, v{vKa}
    ds_read_b128 {ar(aK,4)}, v{vT1}
    s_sub_u32 s12, 9, s10
    v_mul_lo_u32 v{vT2}, s12, v{vVinc}
    v_sub_u32 v{vT2}, v{vVa}, v{vT2}
    v_add_u32 v{vT2}, s13, v{vT2}
    ds_read_b64_tr_b16 {ar(aV,2)}, v{vT2}
    ds_read_b64_tr_b16 {ar(aV+2,2)}, v{vT2} offset:256
    ds_read_b64_tr_b16 {ar(aV+4,2)}, v{vT2} offset:512
    ds_read_b64_tr_b16 {ar(aV+6,2)}, v{vT2} offset:768
    s_waitcnt lgkmcnt(0)
    s_cmp_eq_u32 s10, 0
    s_cbranch_scc1 L_tm_far
    s_cmp_eq_u32 s10, 8
    s_cbranch_scc1 L_tm_diag
    {MF} {vr(vS[0],16)}, {ar(aK,4)}, {vr(vP[1],4)}, 0
    s_branch L_tm_s
L_tm_far:
    {MF} {vr(vS[0],16)}, {ar(aK,4)}, {vr(vP[1],4)}, {vr(vBF,16)}
    s_branch L_tm_s
L_tm_diag:
    {MF} {vr(vS[0],16)}, {ar(aK,4)}, {vr(vP[1],4)}, {vr(vBD,16)}
L_tm_s:
    s_nop 15
    s_cmp_eq_u32 s11, 0
    s_cbranch_scc0 L_tm_exp
""")
for j in range(16):
    tm.append(f"    v_max_f32 v{vT0}, v{vT0}, v{vS[0]+j}\n")
tm.append("    s_branch L_tm_next\nL_tm_exp:\n")
for j in range(16):
    tm.append(f"    v_sub_f32 v{vS[0]+j}, v{vS[0]+j}, v{vT0}\n")
for j in range(16):
    tm.append(f"    v_exp_f32 v{vS[0]+j}, v{vS[0]+j}\n")
tm.append("    s_nop 1\n")
for j in range(8):
    tm.append(f"    v_cvt_pk_bf16_f32 v{vP[0]+j}, v{vS[0]+2*j}, v{vS[0]+2*j+1}\n")
tm.append(f"""
    s_nop 1
    {MF} {vr(vS[1],16)}, {ar(aV,4)}, {vr(vP[0],4)}, {vr(vS[1],16)}
    {MF} {vr(vS[1],16)}, {ar(aV+4,4)}, {vr(vP[0]+4,4)}, {vr(vS[1],16)}
    s_nop 15
L_tm_next:
    s_add_u32 s10, s10, 1
    s_cmp_lt_u32 s10, 9
    s_cbranch_scc1 L_tm_blk
    s_cmp_eq_u32 s11, 0
    s_cbranch_scc0 L_tm_fin
    v_mov_b32 v{vT1}, v{vT0}
    s_nop 1
    v_permlane32_swap_b32 v{vT0}, v{vT1}
    s_nop 1
    v_max_f32 v{vT0}, v{vT0}, v{vT1}
    s_mov_b32 s11, 1
    s_branch L_tm_pass
L_tm_fin:
    s_cmp_eq_u32 s9, 0
    s_cbranch_scc0 L_tm_h1
""")
for j in range(16):
    tm.append(f"    v_mov_b32 v{vO[0]+j}, v{vS[1]+j}\n")
tm.append("    s_mov_b32 s9, 1\n    s_branch L_tm_head\nL_tm_h1:\n")
for j in range(16):
    tm.append(f"    v_mov_b32 v{vO[1]+j}, v{vS[1]+j}\n")
tm.append("    s_nop 1\n    s_branch L_att_done\n")
rare.append("".join(tm))

def w2_reads(j):
    sl = j % 12
    base = (sl // 3) * 24576 + (sl % 3) * 2048
    o = []
    for ct in range(2):
        for n in range(2):
            off = base + n * 1024 + ct * 256
            reg = vW3r if off < 49152 else vW3r + 1
            off = off if off < 49152 else off - 49152
            o.append(I(f"ds_read_b64_tr_b16 {ar(aW2+8*(j&1)+4*ct+2*n,2)}, v{reg} offset:{off}", need=["w%d" % j], tag="r%d" % j))
    return o
def oload(j2, tt):
    imm = (j2 & 3) * 1024
    o = (" offset:%d" % imm) if imm else ""
    soff = "0" if j2 < 4 else f"s{sA}"
    return [I(f"buffer_load_dwordx4 {vr(vOF+8*j2+4*tt,4)}, v{vOo+tt}, {srd(SWS)}, {soff} offen{o} sc1")]
OFLAG_J = OPT.get("oflag", 6); OPOLL_J = OPT.get("opoll", 14); OCHK_J = OPT.get("ochk", 18)
E(w2_reads(0))
S3 = Sched()
for j in range(30):
    for ct in range(2):
        for tt in range(2):
            acc = ar(aACC + 32 * ct + 16 * tt, 16)
            bb = ar(aH + 8 * j + 4 * tt, 4) if j < 22 else vr(vOF + 8 * (j - 22) + 4 * tt, 4)
            xr = None
            if ct == 0 and tt == 0: xr = ar(aH + 8 * j + 4, 4) if j < 22 else vr(vOF + 8 * (j - 22) + 4, 4)
            S3.pos(I(f"{MF} {acc}, {ar(aW2+8*(j&1)+4*ct,4)}, {bb}, {'0' if j == 0 else acc}", xr=xr), 6, stampq((5,)) if (ct == 0 and tt == 0 and j % 2 == 0) else [])
for j in range(30):
    if j + 1 < 30: S3.spread(w2_reads(j + 1), 4 * j, 4 * j + 2, 0)
    if j + 12 < 30:
        g = w2_dma(j + 12); S3.put(4 * j + 2, [g[0]], 1); S3.put(4 * j + 3, [g[1]], 1)
S3.spread(hl_late, 0, 4 * OPT.get("hlate_end", 8), 1, one)
S3.put(4 * OFLAG_J, [flag(2, "o")], 1)
S3.put(4 * OPOLL_J, [poll_issue(SWS)], 1)
S3.put(4 * OCHK_J, [poll_check("o", SWS) + L(f"s_movk_i32 s{sA}, 4096")], 1)
S3.spread([oload(j2, tt) for j2 in range(8) for tt in range(2)], 4 * OCHK_J + 1, 4 * OPT.get("oend", 24), 1, one)
E(S3.emit())
stamp((1, 5))
E(f"""
v_and_b32 v{vT0}, 31, v{vL}
v_lshrrev_b32 v{vT1}, 5, v{vL}
v_and_b32 v{vT2}, 7, v{vL}
v_xor_b32 v{vT1}, v{vT1}, v{vT2}
v_lshlrev_b32 v{vT0}, 8, v{vT0}
v_lshl_add_u32 v{vT0}, v{vT1}, 4, v{vT0}
s_lshl_b32 s{sT}, s{sW}, 14
v_add_u32 v{vT0}, s{sT}, v{vT0}
""")
for i in range(4):
    E(f"v_xor_b32 v{vU+i}, {32*i}, v{vT0}")
E(f"""
v_lshrrev_b32 v{vT0}, 3, v{vL}
v_and_b32 v{vT1}, 7, v{vL}
v_lshlrev_b32 v{vT1}, 1, v{vT1}
v_xor_b32 v{vT1}, v{vT1}, v{vT0}
v_lshlrev_b32 v{vT0}, 8, v{vT0}
v_lshl_add_u32 v{vT0}, v{vT1}, 4, v{vT0}
s_lshl_b32 s{sT}, s{sW}, 12
v_add_u32 v{vU+4}, s{sT}, v{vT0}
v_xor_b32 v{vU+5}, 16, v{vU+4}
""")
for ct in range(2):
    for tt in range(2):
        for i in range(4):
            E(I(f"ds_write_b128 v{vU+i}, {ar(aACC+32*ct+16*tt+4*i,4)} offset:{tt*8192+ct*128}"))
E("s_waitcnt lgkmcnt(0)\ns_barrier")
R0 = 128
for rho in range(2):
    for p in range(4):
        for n in range(2):
            E(f"ds_read_b128 {vr(R0+32*rho+8*p+4*n,4)}, v{vU+4+n} offset:{p*16384+rho*2048}")
for rho in range(2):
    b = R0 + 32 * rho
    x = vXres + 4 * rho
    for j in range(8): E(f"v_add_f32 v{b+j}, v{b+j}, v{b+8+j}")
    for j in range(8): E(f"v_add_f32 v{b+16+j}, v{b+16+j}, v{b+24+j}")
    for j in range(4):
        E(f"v_lshlrev_b32 v{b+8+2*j}, 16, v{x+j}\nv_and_b32 v{b+9+2*j}, 0xffff0000, v{x+j}")
    for j in range(8): E(f"v_add_f32 v{b+j}, v{b+j}, v{b+16+j}")
    for j in range(8): E(f"v_add_f32 v{b+j}, v{b+j}, v{b+8+j}")
    for j in range(4): E(f"v_cvt_pk_bf16_f32 v{b+8+j}, v{b+2*j}, v{b+2*j+1}")
    E(f"buffer_store_dwordx4 {vr(b+8,4)}, v{vXo+rho}, {srd(SOUT)}, 0 offen sc1")
if OPT["stamps"]:
    stamp()
    E(f"s_waitcnt vmcnt(0)")
    stamp((1, 2, 3, 4, 5, 6, 9))
    E(f"s_lshl_b32 s{sT}, s2, 2\ns_add_u32 s{sT}, s{sT}, s{sW}\ns_lshl_b32 s{sT}, s{sT}, 7\ns_add_u32 s{sT}, s{sT}, {ST0}\nv_mov_b32 v{vT0}, s{sT}")
    for k in range(nstamp[0]):
        E(f"v_mov_b32 v{vT1}, s{STREG[k]}\nbuffer_store_dword v{vT1}, v{vT0}, {srd(SWS)}, 0 offen offset:{4*k}")
if OPT.get("endspin"):
    E("s_waitcnt vmcnt(0) lgkmcnt(0)\nL_es:")
    E("s_memrealtime s[4:5]" if OPT["endspin"] == 1 else "s_memtime s[4:5]")
    E("s_waitcnt lgkmcnt(0)\ns_sub_u32 s4, s4, s88\ns_cmp_lt_u32 s4, %d\ns_cbranch_scc1 L_es" % (6000 if OPT["endspin"] == 1 else 144000))
E("L_end:\ns_endpgm")

lines = finalize(prog, verbose=True)
hdr = f"""; Fused LayerNorm + QKV/gate/up GEMM + sliding-window attention + GEGLU + down/out projection.
; @launch grid=(256,1,1) block=(256,1,1) lds={LDSSZ}
.amdgcn_target "amdgcn-amd-amdhsa--gfx950"
.text
.globl {KNAME}
.p2align 8
.type {KNAME},@function
{KNAME}:
"""
tail = f"""
.section .rodata,"a"
.p2align 6
.amdhsa_kernel {KNAME}
  .amdhsa_next_free_vgpr 512
  .amdhsa_next_free_sgpr 102
  .amdhsa_accum_offset 256
  .amdhsa_group_segment_fixed_size 0
  .amdhsa_kernarg_size 80
  .amdhsa_user_sgpr_count 2
  .amdhsa_user_sgpr_kernarg_segment_ptr 1
  .amdhsa_system_sgpr_workgroup_id_x 1
.end_amdhsa_kernel
"""
open(sys.argv[1], "w").write(hdr + "\n".join(lines) + "\n" + "".join(rare) + tail)
```

```python
import sys, math
from asmlib import I, Ins, finalize, weave, Sched

KNAME = "parallel_sum__sliding_block__glu_gated_geglu__prompt_kernel"
OPT = dict(stamps=False, spin=200000, touch=True)
for a in sys.argv[2:]:
    k, v = a.split("="); OPT[k] = int(v)

HUGE = 0x40000000
KV0 = 0
H0 = 4 << 20
HSTR = 86 * 1024
O0 = 10 << 20
FL0 = 12 << 20
ST0 = FL0 + (64 << 10)
WSSZ = 13 << 20
WB = 65536
CS1 = 0
STRIP = 49152
CS2 = 53248
LDSSZ = 163840
CSTR = 1040

SX, SQ, SG, SU, SD, SO, SOUT, SWS, SDBG = 24, 28, 32, 36, 40, 44, 48, 52, 56
sW, sRB, sCB, sTB2, sNB, sT0, sT2, sH2, sTB = 3, 60, 61, 62, 63, 64, 65, 66, 67
sX, sQ, sG, sM0X, sM0W = 68, 69, 70, 71, 72
sT, sTb, sTc, sTd = 73, 74, 75, 76
sH0, sKVT, sHX, sM0D, sD = 77, 78, 79, 80, 81
sSPIN = 82
sKV = [83, 84, 85]
sHUGE = 86
sA = 87
sST = 90
def srd(n): return "s[%d:%d]" % (n, n + 3)
def vr(a, n): return "v[%d:%d]" % (a, a + n - 1)
def ar(a, n): return "a[%d:%d]" % (a, a + n - 1)

vL = 0
vT0, vT1, vT2 = 1, 2, 3
vXo = 4; vQo = 8; vGo = 10; vXr = 12; vWr = 16; vQo2 = 24; vGo2 = 26; vW2r = 28
vSum = 36; vCS1 = 40; vCS2 = 44
vRstd, vGA, vGB, vGR, vQS, vL16, vKVst, vHst = 48, 49, 50, 51, 52, 53, 54, 55
vBext = 56
vFl, vCSw, vPoll, vInit = 60, 61, 62, 63
ACC1 = 64; ACC2 = 160
vXT = 208
vU = 224
vG = 232
vCSA = 240
vDo = 248; vEo = 250; vAo = 252; vOo = 254
vBF = 64; vBD = 80; vS = [96, 112]; vP = [128, 136]; vQ = 144; vO = [208, 224]
vKa, vVa, vVinc, vOst, vW3r, vXres = 8, 9, 10, 11, 22, 12
vKVo, vPa = 20, 21
vOF = 64
aX = 0; aSEL = 128; aWF = 152
aH = 0; aW2 = 176; aACC = 192; aK = 192; aV = 200

prog = []
rare = []
def E(x, **kw):
    if isinstance(x, str):
        for ln in x.strip().split("\n"):
            ln = ln.strip()
            if ln and not ln.startswith(";"): prog.append(I(ln, **kw))
    elif isinstance(x, Ins): prog.append(x)
    else: prog.extend(x)
def L(txt, **kw):
    return [I(ln.strip(), **kw) for ln in txt.strip().split("\n") if ln.strip()]
nstamp = [0]
STREG = list(range(90, 102)) + list(range(8, 24))
def stamp_ins(k):
    return L("s_waitcnt lgkmcnt(0)\ns_memtime s[88:89]\ns_waitcnt lgkmcnt(0)\ns_mov_b32 s%d, s88" % STREG[k])
xfc = [0]
def xf_ins(sets):
    if OPT.get("xf") and 1 in sets:
        xfc[0] += 1
        if xfc[0] == OPT["xf"]:
            return L("s_waitcnt lgkmcnt(0)\ns_memrealtime s[90:91]\ns_waitcnt lgkmcnt(0)")
    return []
def stampq(sets=(1,)):
    if OPT.get("xf"): return xf_ins(sets)
    if OPT["stamps"] in sets:
        k = nstamp[0]; nstamp[0] += 1
        return stamp_ins(k)
    return []
def stamp(sets=(1,)):
    if OPT.get("xf"): E(xf_ins(sets))
    if OPT["stamps"] in sets:
        k = nstamp[0]; nstamp[0] += 1
        E(stamp_ins(k))

MF = "v_mfma_f32_32x32x16_bf16"
MS = "v_mfma_f32_16x16x32_bf16"

E("""
s_cmp_ge_u32 s2, 256
s_cbranch_scc1 L_end
s_load_dwordx4 s[4:7], s[0:1], 0
s_load_dwordx2 s[8:9], s[0:1], 16
s_load_dwordx4 s[12:15], s[0:1], 32
s_load_dwordx4 s[16:19], s[0:1], 48
s_load_dwordx4 s[20:23], s[0:1], 64
""")
if OPT.get("ctouch", 1):
    E(f"""s_getpc_b64 s[24:25]
s_mov_b32 s26, 32768
s_mov_b32 s27, 0x20000
s_lshr_b32 s3, s2, 3
s_lshl_b32 s3, s3, 10
v_and_b32 v1, 7, v0
v_lshlrev_b32 v1, 7, v1
buffer_load_dword v{vXT+6}, v1, s[24:27], s3 offen""")
if OPT["stamps"]:
    E("s_memtime s[88:89]")
if OPT.get("endspin"):
    E("s_memrealtime s[88:89]" if OPT["endspin"] == 1 else "s_memtime s[88:89]")
if OPT.get("xf"):
    E("s_memrealtime s[88:89]")
E(f"""
v_lshrrev_b32 v{vT0}, 6, v0
v_mov_b32 v{vInit}, v0
v_readfirstlane_b32 s{sW}, v{vT0}
v_and_b32 v{vL}, 63, v0
s_and_b32 s{sT}, s2, 7
s_lshr_b32 s{sTb}, s2, 3
s_lshr_b32 s{sTc}, s{sT}, 1
s_and_b32 s{sT}, s{sT}, 1
s_lshl_b32 s{sRB}, s{sTc}, 2
s_and_b32 s{sTd}, s{sTb}, 3
s_add_u32 s{sRB}, s{sRB}, s{sTd}
s_lshl_b32 s{sCB}, s{sT}, 3
s_lshr_b32 s{sTd}, s{sTb}, 2
s_add_u32 s{sCB}, s{sCB}, s{sTd}
s_lshl_b32 s{sTB2}, s{sTc}, 3
s_and_b32 s{sTd}, s{sTb}, 7
s_add_u32 s{sTB2}, s{sTB2}, s{sTd}
s_lshl_b32 s{sNB}, s{sT}, 2
s_lshr_b32 s{sTd}, s{sTb}, 3
s_add_u32 s{sNB}, s{sNB}, s{sTd}
s_lshl_b32 s{sTB}, s{sRB}, 2
s_add_u32 s{sTB}, s{sTB}, s{sW}
s_mov_b32 s{sHUGE}, {HUGE}
s_mul_i32 s{sT0}, s{sCB}, 3
s_lshl_b32 s{sT}, s{sCB}, 1
s_add_u32 s{sT}, s{sT}, 11
s_cmp_lt_u32 s{sCB}, 11
s_cselect_b32 s{sT0}, s{sT0}, s{sT}
s_cselect_b32 s{sT}, 2, 1
s_add_u32 s{sT2}, s{sT0}, s{sT}
s_lshl_b32 s{sH2}, s{sT2}, 11
s_cmp_lt_u32 s{sCB}, 11
s_cselect_b32 s{sH2}, s{sH2}, s{sHUGE}
s_lshl_b32 s{sH0}, s{sT0}, 11
s_lshl_b32 s{sM0X}, s{sW}, 12
s_lshl_b32 s{sM0W}, s{sW}, 11
s_add_u32 s{sM0W}, s{sM0W}, {WB}
v_lshlrev_b32 v{vL16}, 4, v{vL}
""")
E(f"""
s_lshl_b32 s{sT}, s{sTB}, 15
v_lshrrev_b32 v{vT0}, 3, v{vL}
v_lshlrev_b32 v{vT0}, 10, v{vT0}
v_add_u32 v{vT0}, s{sT}, v{vT0}
v_and_b32 v{vT1}, 7, v{vL}
v_lshrrev_b32 v{vT2}, 4, v{vL}
v_xor_b32 v{vT1}, v{vT1}, v{vT2}
v_lshl_add_u32 v{vXo}, v{vT1}, 4, v{vT0}
v_xor_b32 v{vT1}, 4, v{vT1}
v_lshl_add_u32 v{vXo+1}, v{vT1}, 4, v{vT0}
v_add_u32 v{vXo+1}, {7*1024}, v{vXo+1}
v_add_u32 v{vXo+2}, {14*1024}, v{vXo}
v_add_u32 v{vXo+3}, {14*1024}, v{vXo+1}
""")
E(f"""
v_lshrrev_b32 v{vT0}, 5, v{vL}
v_bfe_u32 v{vT1}, v{vL}, 2, 2
v_lshl_add_u32 v{vT0}, v{vT0}, 2, v{vT1}
v_bfe_u32 v{vT1}, v{vL}, 4, 1
v_and_b32 v{vT2}, 3, v{vL}
v_lshlrev_b32 v{vT2}, 4, v{vT2}
v_lshl_add_u32 v{vT1}, v{vT1}, 6, v{vT2}
s_lshl_b32 s{sT}, s{sNB}, 7
v_lshl_add_u32 v{vDo}, v{vT0}, 10, v{vT1}
v_add_u32 v{vDo}, s{sT}, v{vDo}
s_lshl_b32 s{sT}, s{sW}, 17
v_add_u32 v{vEo}, s{sT}, v{vDo}
v_add_u32 v{vEo+1}, {7*1024}, v{vEo}
s_mul_i32 s{sT}, s{sW}, {352*1024}
v_add_u32 v{vDo}, s{sT}, v{vDo}
v_add_u32 v{vDo+1}, {7*1024}, v{vDo}
s_lshl_b32 s{sT}, s{sW}, 4
v_add_u32 v{vT0}, s{sT}, v{vT0}
s_and_b32 s{sT}, s{sCB}, 1
s_add_u32 s{sT}, s{sT}, 1
s_lshl_b32 s{sT}, s{sT}, 10
s_lshr_b32 s{sTb}, s{sCB}, 1
s_lshl_b32 s{sTb}, s{sTb}, 7
s_add_u32 s{sT}, s{sT}, s{sTb}
v_mul_u32_u24 v{vQo}, 3072, v{vT0}
v_add3_u32 v{vQo}, v{vQo}, v{vT1}, s{sT}
v_add_u32 v{vQo+1}, {8*3072-1024}, v{vQo}
s_lshl_b32 s{sT}, s{sT0}, 6
v_mul_u32_u24 v{vGo}, 2752, v{vT0}
v_add3_u32 v{vGo}, v{vGo}, v{vT1}, s{sT}
v_add_u32 v{vGo+1}, {8*2752-1024}, v{vGo}
""")
def mksrd(n, p, size):
    return f"s_mov_b32 s{n}, s{p}\ns_mov_b32 s{n+1}, s{p+1}\ns_mov_b32 s{n+2}, {size}\ns_mov_b32 s{n+3}, 0x20000\n"
E(mksrd(SX, 4, 2097152) + mksrd(SQ, 6, 1572864) + mksrd(SG, 12, 1409024) + mksrd(SU, 14, 1409024))
if OPT["stamps"]:
    E("s_mov_b32 s%d, s88" % sST); nstamp[0] = 1

def dma(voff, S, soff, imm, tag, flags="", need=None):
    o = (" offset:%d" % imm) if imm else ""
    return I(f"buffer_load_dwordx4 v{voff}, {srd(S)}, {soff} offen{o} {flags} lds", tag=tag, need=need)

def p1_dma(c):
    sl = c & 3; t = "c%d" % c
    g = []
    g.append(L(f"s_add_u32 m0, s{sM0X}, {sl*16384}\ns_movk_i32 s{sX}, {128*c}") + [dma(vXo, SX, f"s{sX}", 0, t)])
    g += [[dma(vXo + i, SX, f"s{sX}", 1024 * i, t)] for i in range(1, 4)]
    g.append(L(f"s_add_u32 m0, s{sM0W}, {sl*24576}\ns_mov_b32 s{sQ}, {c*196608}") + [dma(vQo, SQ, f"s{sQ}", 0, t)])
    g.append([dma(vQo + 1, SQ, f"s{sQ}", 1024, t)])
    g.append(L(f"s_add_u32 m0, s{sM0W}, {sl*24576+8192}\ns_mov_b32 s{sG}, {c*176128}") + [dma(vGo, SG, f"s{sG}", 0, t)])
    g.append([dma(vGo + 1, SG, f"s{sG}", 1024, t)])
    g.append(L(f"s_add_u32 m0, s{sM0W}, {sl*24576+16384}\ns_nop 0") + [dma(vGo, SU, f"s{sG}", 0, t)])
    g.append([dma(vGo + 1, SU, f"s{sG}", 1024, t)])
    return g
def p2_dma(p):
    t = "p%d" % p
    g = []
    g.append(L(f"s_add_u32 m0, s{sM0W}, {p*24576}\ns_mov_b32 s{sQ}, {p*128*3072}") + [dma(vQo2, SQ, f"s{sQ}", 0, t)])
    g.append([dma(vQo2 + 1, SQ, f"s{sQ}", 1024, t)])
    g.append(L(f"s_add_u32 m0, s{sM0W}, {p*24576+8192}\ns_mov_b32 s{sG}, {p*128*2752}") + [dma(vGo2, SG, f"s{sG}", 0, t)])
    g.append([dma(vGo2 + 1, SG, f"s{sG}", 1024, t)])
    g.append(L(f"s_add_u32 m0, s{sM0W}, {p*24576+16384}\ns_nop 0") + [dma(vGo2, SU, f"s{sG}", 0, t)])
    g.append([dma(vGo2 + 1, SU, f"s{sG}", 1024, t)])
    return g
def flat(g): return [x for y in g for x in y]

stamp((2,))
E(flat(p1_dma(0)))
stamp((2,))
STC = 4
sTS = 8
vTch, vTd = vXT + 4, vXT + 5
E(mksrd(SD, 16, 1409024) + mksrd(SO, 8, 524288) + mksrd(SOUT, 18, 2097152) + mksrd(SWS, 22, WSSZ) + mksrd(SDBG, 20, 256))
touch = []
if OPT["touch"]:
    def sel4(dst, a):
        return f"""s_cmp_eq_u32 s{sW}, 0
s_cselect_b32 s{dst}, {a[0]}, {a[1]}
s_cmp_eq_u32 s{sW}, 2
s_cselect_b32 s{dst}, {a[2]}, s{dst}
s_cmp_eq_u32 s{sW}, 3
s_cselect_b32 s{dst}, {a[3]}, s{dst}
"""
    E(f"""
s_lshr_b32 s9, s2, 3
s_and_b32 s10, s2, 1
s_bfe_u32 s11, s2, 0x20001
s_mul_i32 s12, s9, {2*2752}
s_mul_i32 s13, s10, 1536
s_add_u32 s12, s12, s13
s_mul_i32 s13, s9, {2*3072}
s_lshl_b32 s14, s10, 9
s_add_u32 s13, s13, s14
s_lshl_b32 s14, s11, 19
s_lshl_b32 s15, s9, 14
s_add_u32 s14, s14, s15
""")
    E(sel4(STC, [f"s{SG}", f"s{SU}", f"s{SQ}", f"s{SX}"]) + sel4(STC + 1, [f"s{SG+1}", f"s{SU+1}", f"s{SQ+1}", f"s{SX+1}"]))
    E(f"s_mov_b32 s{STC+3}, 0x20000")
    E(f"""s_movk_i32 s16, 2752
s_movk_i32 s17, 512
s_cmp_eq_u32 s{sW}, 2
s_cselect_b32 s{STC+2}, s{SQ+2}, s{SG+2}
s_cselect_b32 s12, s13, s12
s_cselect_b32 s16, 3072, s16
s_cselect_b32 s17, 1024, s17
s_cselect_b32 s18, 11, 12
s_movk_i32 s19, 128
s_lshl_b32 s15, s16, 6
s_cmp_eq_u32 s{sW}, 3
s_cselect_b32 s{STC+2}, 2097152, s{STC+2}
s_cselect_b32 s12, s14, s12
s_cselect_b32 s16, 0, s16
s_cselect_b32 s17, 4096, s17
s_cselect_b32 s18, 15, s18
s_cselect_b32 s19, 1024, s19
s_cselect_b32 s15, 128, s15
v_and_b32 v{vT0}, 15, v{vL}
v_min_u32 v{vT0}, s18, v{vT0}
v_lshrrev_b32 v{vT1}, 2, v{vT0}
v_and_b32 v{vT0}, 3, v{vT0}
v_mul_u32_u24 v{vT1}, s17, v{vT1}
v_mad_u32_u24 v{vT0}, v{vT0}, s19, v{vT1}
v_bfe_u32 v{vT1}, v{vL}, 4, 1
v_mad_u32_u24 v{vT0}, v{vT1}, s16, v{vT0}
v_lshrrev_b32 v{vT1}, 5, v{vL}
v_mad_u32_u24 v{vT0}, v{vT1}, s15, v{vT0}
v_add_u32 v{vTch}, s12, v{vT0}
s_lshl_b32 s{sTS}, s15, 1
s_lshl_b32 s9, s15, 2
s_add_u32 s10, s9, s{sTS}
""")
    TF = {0: "", 1: " sc1", 2: " nt", 3: " sc0 sc1"}[OPT.get("tflag", 0)]
    touch = [[I(f"buffer_load_dword v{vTd}, v{vTch}, {srd(STC)}, s{r} offen{TF}")] for r in (sTS, 9, 10)]
    E(touch[0])
init_mark = len(prog)
E(f"""
s_cmp_lg_u32 s2, 0
s_cselect_b32 s{sT}, s{sHUGE}, 0
v_lshrrev_b32 v{vT0}, 2, v{vL}
v_and_b32 v{vT1}, 3, v{vL}
v_lshlrev_b32 v{vT1}, 4, v{vT1}
v_lshl_add_u32 v{vT0}, v{vT0}, 7, v{vT1}
s_mul_i32 s{sTb}, s{sW}, {48*128}
s_add_u32 s{sTb}, s{sTb}, {FL0}
v_add_u32 v{vT0}, s{sTb}, v{vT0}
v_add_u32 v{vT1}, 4096, v{vT0}
v_mov_b32 v{vXT}, 0
v_mov_b32 v{vXT+1}, 0
v_mov_b32 v{vXT+2}, 0
v_mov_b32 v{vXT+3}, 0
""")
E(f"buffer_store_dwordx4 {vr(vXT,4)}, v{vT0}, {srd(SWS)}, s{sT} offen sc1", tag="zero")
E(f"buffer_store_dwordx4 {vr(vXT,4)}, v{vT0}, {srd(SWS)}, s{sT} offen offset:2048 sc1", tag="zero")
E(f"buffer_store_dwordx4 {vr(vXT,4)}, v{vT1}, {srd(SWS)}, s{sT} offen sc1", tag="zero")

E(f"""
v_and_b32 v{vT0}, 31, v{vL}
v_lshrrev_b32 v{vT1}, 5, v{vL}
v_bfe_u32 v{vT2}, v{vL}, 1, 3
v_xor_b32 v{vT2}, v{vT2}, v{vT1}
v_lshlrev_b32 v{vT0}, 7, v{vT0}
v_lshl_add_u32 v{vT0}, v{vT2}, 4, v{vT0}
v_add_u32 v{vT0}, s{sM0X}, v{vT0}
""")
for s in range(4):
    E(f"s_xor_b32 s{sT}, s{sW}, {s}\ns_lshl_b32 s{sT}, s{sT}, 5\nv_xor_b32 v{vXr+s}, s{sT}, v{vT0}")
E(f"""
v_bfe_u32 v{vT2}, v{vL}, 2, 2
v_lshlrev_b32 v{vT2}, 6, v{vT2}
v_bfe_u32 v{vT0}, v{vL}, 4, 1
v_lshl_add_u32 v{vT2}, v{vT0}, 5, v{vT2}
v_and_b32 v{vT0}, 3, v{vL}
v_lshl_add_u32 v{vT2}, v{vT0}, 3, v{vT2}
v_lshl_add_u32 v{vT0}, v{vT1}, 10, v{vT2}
v_lshl_add_u32 v{vT2}, v{vT1}, 9, v{vT2}
s_mul_i32 s{sT}, s{sW}, 6144
s_add_u32 s{sM0D}, s{sT}, {WB}
""")
for s in range(4):
    E(f"""
s_xor_b32 s{sT}, s{sW}, {s}
s_lshl_b32 s{sTb}, s{sT}, 11
s_add_u32 s{sTb}, s{sTb}, {WB}
v_add_u32 v{vWr+2*s}, s{sTb}, v{vT0}
v_add_u32 v{vWr+2*s+1}, 49152, v{vWr+2*s}
s_lshl_b32 s{sTb}, s{sT}, 10
s_add_u32 s{sTb}, s{sTb}, {WB}
v_add_u32 v{vW2r+2*s}, s{sTb}, v{vT2}
v_add_u32 v{vW2r+2*s+1}, 49152, v{vW2r+2*s}
""")
E(f"""
v_lshrrev_b32 v{vT0}, 2, v{vL}
s_lshl_b32 s{sT}, s{sW}, 5
v_add_u32 v{vT0}, s{sT}, v{vT0}
v_and_b32 v{vT1}, 3, v{vL}
v_lshlrev_b32 v{vT1}, 4, v{vT1}
s_lshl_b32 s{sT}, s{sCB}, 6
v_mul_u32_u24 v{vQo2}, 3072, v{vT0}
v_add3_u32 v{vQo2}, v{vQo2}, v{vT1}, s{sT}
v_add_u32 v{vQo2+1}, {16*3072-1024}, v{vQo2}
s_lshl_b32 s{sT}, s{sT2}, 6
v_mul_u32_u24 v{vGo2}, 2752, v{vT0}
v_add3_u32 v{vGo2}, v{vGo2}, v{vT1}, s{sT}
v_add_u32 v{vGo2+1}, {16*2752-1024}, v{vGo2}
""")
E(f"""
v_and_b32 v{vT0}, 15, v{vL}
v_bfe_u32 v{vT1}, v{vL}, 4, 1
v_sub_u32 v{vT0}, v{vT0}, v{vT1}
v_mov_b32 v{vT1}, 0x3f803f80
""")
for t in range(6):
    E(f"v_cmp_eq_u32 vcc, {2*t}, v{vT0}\nv_cndmask_b32 v{vT2}, 0, v{vT1}, vcc")
    E("\n".join(f"v_accvgpr_write_b32 a{aSEL+4*t+j}, v{vT2}" for j in range(4)))
E(f"""
v_bfe_u32 v{vT0}, v{vL}, 1, 3
v_mul_u32_u24 v{vT0}, {CSTR}, v{vT0}
v_and_b32 v{vT1}, 1, v{vL}
v_lshl_add_u32 v{vT0}, v{vT1}, 8, v{vT0}
v_lshrrev_b32 v{vT1}, 4, v{vL}
v_lshl_add_u32 v{vT0}, v{vT1}, 6, v{vT0}
s_lshr_b32 s{sT}, s{sW}, 1
s_lshl_b32 s{sT}, s{sT}, 9
s_and_b32 s{sTb}, s{sW}, 1
s_lshl_b32 s{sTb}, s{sTb}, 3
s_add_u32 s{sT}, s{sT}, s{sTb}
v_add_u32 v{vCSw}, s{sT}, v{vT0}
v_and_b32 v{vT0}, 31, v{vL}
v_lshrrev_b32 v{vT1}, 5, v{vL}
v_lshl_add_u32 v{vT0}, v{vT0}, 1, v{vT1}
v_lshlrev_b32 v{vT0}, 4, v{vT0}
v_add_u32 v{vT0}, 2048, v{vT0}
s_and_b32 s{sT}, s{sCB}, 1
s_cmp_eq_u32 s{sT}, 1
s_cselect_b64 vcc, -1, 0
v_cndmask_b32 v{vKVst}, v{vL16}, v{vT0}, vcc
s_and_b32 s{sT}, s{sCB}, 14
s_lshl_b32 s{sT}, s{sT}, 18
s_lshl_b32 s{sTb}, s{sTB}, 12
s_add_u32 s{sT}, s{sT}, s{sTb}
v_add_u32 v{vKVst}, s{sT}, v{vKVst}
s_mov_b32 s{sKVT}, {1<<18}
s_mul_i32 s{sT}, s{sTB}, {HSTR}
s_add_u32 s{sT}, s{sT}, {H0}
v_add_u32 v{vHst}, s{sT}, v{vL16}
s_lshl_b32 s{sT}, s{sTB}, 7
s_lshl_b32 s{sTb}, s{sCB}, 2
s_add_u32 s{sT}, s{sT}, s{sTb}
s_add_u32 s{sT}, s{sT}, {FL0}
v_mov_b32 v{vT0}, s{sT}
v_mov_b32 v{vT1}, s{sHUGE}
v_cmp_eq_u32 vcc, 0, v{vL}
v_cndmask_b32 v{vFl}, v{vT1}, v{vT0}, vcc
v_mov_b32 v{vSum}, 0
v_mov_b32 v{vSum+1}, 0
v_mov_b32 v{vSum+2}, 0
v_mov_b32 v{vSum+3}, 0
""")
E(f"""
s_mul_i32 s{sT}, s{sTB2}, {2*HSTR}
s_mul_i32 s{sTb}, s{sW}, {22*1024}
s_add_u32 s{sT}, s{sT}, s{sTb}
s_add_u32 s{sT}, s{sT}, {H0}
v_add_u32 v{vAo}, s{sT}, v{vL16}
v_add_u32 v{vAo+1}, {HSTR}, v{vAo}
s_lshl_b32 s{sT}, s{sTB2}, 16
s_lshl_b32 s{sTb}, s{sW}, 13
s_add_u32 s{sT}, s{sT}, s{sTb}
s_add_u32 s{sT}, s{sT}, {O0}
v_add_u32 v{vOo}, s{sT}, v{vL16}
v_add_u32 v{vOo+1}, 32768, v{vOo}
s_cmp_eq_u32 s{sW}, 3
s_cselect_b32 s{sHX}, s{sHUGE}, 20480
""")
rest = prog[init_mark:]; del prog[init_mark:]
gs = p1_dma(1) + touch[1:] + p1_dma(2)
acc = []; k = 0
for n, x in enumerate(rest):
    acc.append(x)
    safe = not (x.op.startswith("s_cmp") or (n + 1 < len(rest) and rest[n + 1].op.startswith("s_cselect")))
    if k < len(gs) and safe and n + 1 >= (k + 1) * len(rest) / (len(gs) + 1):
        acc += gs[k]; k += 1
acc += flat(gs[k:])
E(acc)
stamp((1, 2, 3))

def wfrag(setp, t): return aWF + (setp * 6 + t) * 4
def p1_reads(c, s):
    sl = c & 3; st = s & 1
    o = [I(f"ds_read_b128 {ar(aX+(4*c+s)*4,4)}, v{vXr+s} offset:{sl*16384}")]
    for t in range(6):
        mat, ct = t >> 1, t & 1
        for n in range(2):
            imm = (sl & 1) * 24576 + mat * 8192 + n * 512 + ct * 256
            o.append(I(f"ds_read_b64_tr_b16 {ar(wfrag(st,t)+2*n,2)}, v{vWr+2*s+(sl>>1)} offset:{imm}"))
    return o
def p1_statread(c, s):
    sl = c & 3
    return [I(f"ds_read_b128 {vr(vXT+4*s,4)}, v{vXr+s} offset:{sl*16384}")]
def stats(s):
    if OPT.get("x_nostats"): return [I("s_nop 0")] * 24 if OPT["x_nostats"] == 2 else []
    o = []
    for j in range(4):
        x = vXT + 4 * s + j; a = vU + 2 * (j & 1)
        o += L(f"""v_lshlrev_b32 v{a}, 16, v{x}
v_and_b32 v{a+1}, 0xffff0000, v{x}
v_add_f32 v{vSum}, v{vSum}, v{a}
v_add_f32 v{vSum+1}, v{vSum+1}, v{a+1}
v_fmac_f32 v{vSum+2}, v{a}, v{a}
v_fmac_f32 v{vSum+3}, v{a+1}, v{a+1}""")
    return o
def cs_convert(vcs, base):
    o = []
    for j in range(4):
        a = vU + 4
        o += L(f"""v_cvt_pk_bf16_f32 v{a}, v{vcs+j}, v{vcs+j}
v_and_b32 v{a+2}, 0xffff0000, v{a}
v_sub_f32 v{a+2}, v{vcs+j}, v{a+2}
v_cvt_pk_bf16_f32 v{a+1}, v{a+2}, v{a+2}""")
        o.append(I(f"ds_write_b64 v{vCSw}, {vr(a,2)} offset:{base+16*j}", tag="csw"))
    return o
C1 = -2.0 * 0.7978845608028654 * 1.4426950408889634
QC = 0.25 * 1.4426950408889634
import struct
def fx(f): return "0x%08x" % struct.unpack("<I", struct.pack("<f", f))[0]
def stats_final():
    a = vU
    return L(f"""
v_add_f32 v{vSum}, v{vSum}, v{vSum+1}
v_add_f32 v{vSum+2}, v{vSum+2}, v{vSum+3}
v_mov_b32 v{vSum+1}, v{vSum}
v_mov_b32 v{vSum+3}, v{vSum+2}
v_permlane32_swap_b32 v{vSum}, v{vSum+1}
v_permlane32_swap_b32 v{vSum+2}, v{vSum+3}
v_add_f32 v{vSum}, v{vSum}, v{vSum+1}
v_add_f32 v{vSum+2}, v{vSum+2}, v{vSum+3}
v_mul_f32 v{vSum}, {fx(-1.0/512)}, v{vSum}
v_mul_f32 v{vSum+2}, {fx(1.0/512)}, v{vSum+2}
v_fma_f32 v{vSum+2}, -v{vSum}, v{vSum}, v{vSum+2}
v_max_f32 v{vSum+2}, 0, v{vSum+2}
v_add_f32 v{vGR}, {fx(1e-5)}, v{vSum+2}
v_rsq_f32 v{vRstd}, v{vGR}
v_cvt_pk_bf16_f32 v{a}, v{vSum}, v{vSum}
v_and_b32 v{a}, 0xffff0000, v{a}
v_sub_f32 v{a+1}, v{vSum}, v{a}
v_cvt_pk_bf16_f32 v{vBext}, v{a}, v{a+1}
v_mul_f32 v{vGA}, {fx(C1)}, v{vRstd}
v_mul_f32 v{vQS}, {fx(QC)}, v{vRstd}
v_mul_f32 v{a}, v{vRstd}, v{vRstd}
v_mov_b32 v{vBext+1}, v{vBext}
v_mov_b32 v{vBext+2}, v{vBext}
v_mov_b32 v{vBext+3}, v{vBext}
v_mul_f32 v{a}, {fx(0.044715)}, v{a}
v_mul_f32 v{vGB}, v{vGA}, v{a}
""")

E(I("s_barrier", need=["c0"]))
stamp((2,))
E(p1_reads(0, 0) + p1_statread(0, 0))
S1 = Sched()
P1 = lambda c, s, t: 24 * c + 6 * s + t
for c in range(8):
    for s in range(4):
        st = s & 1
        first = (c == 0 and s == 0)
        for t in range(6):
            acc = vr(ACC1 + 16 * t, 16)
            xr = ar(wfrag(st, t + 1), 4) if (t & 1) == 0 else None
            ops = [I(f"{MF} {acc}, {ar(wfrag(st,t),4)}, {ar(aX+(4*c+s)*4,4)}, {'0' if first else acc}", xr=xr)]
            if s == 0:
                cs = vr(vCS1, 4)
                ops.append(I(f"{MS} {cs}, {ar(wfrag(st,t),4)}, {ar(aSEL+4*t,4)}, {'0' if (first and t == 0) else cs}"))
            pre = []
            if s == 3 and t == 1:
                pre = [I("s_waitcnt lgkmcnt(0)"), I("s_barrier", need=["c%d" % (c + 1) if c < 7 else "p0", "zero"])]
                if c == 0:
                    pre += L(f"s_or_b32 s{sT}, s2, s{sW}\ns_cmp_eq_u32 s{sT}, 0\ns_cselect_b32 s{sT}, 0, s{sHUGE}\nv_mov_b32 v{vT0}, 1\nv_lshlrev_b32 v{vT1}, 8, v{vL}")
                    pre += [I(f"buffer_store_dword v{vT0}, v{vT1}, {srd(SDBG)}, s{sT} offen sc1")]
            if s == 0 and t == 0: pre += stampq((3,))
            S1.pos(ops, 8 if s == 0 else 6, pre)
NP1 = 192
P2 = lambda k, t: NP1 + 6 + 3 * k + t
for t in range(6):
    acc = vr(ACC1 + 16 * t, 16)
    S1.pos(I(f"{MF} {acc}, {vr(vCSA+4*(t&1),4)}, {vr(vBext,4)}, {acc}"), 6, stampq((1, 3)) if t == 0 else [])
    if t + 2 < 6:
        S1.put(NP1 + t, [I(f"ds_read_b128 {vr(vCSA+4*(t&1),4)}, v{vL16} offset:{CS1+CSTR*(t+2)}")], 0)
for k in range(32):
    p, s, st = k >> 3, k & 3, k & 1
    for t in range(3):
        acc = vr(ACC2 + 16 * t, 16)
        ops = [I(f"{MF} {acc}, {ar(wfrag(st,t),4)}, {ar(aX+k*4,4)}, {'0' if k == 0 else acc}", xr=ar(wfrag(st, 1), 4) if t == 0 else None)]
        if s == 0:
            cs = vr(vCS2, 4)
            ops.append(I(f"{MS} {cs}, {ar(wfrag(st,t),4)}, {ar(aSEL+4*t,4)}, {'0' if (k == 0 and t == 0) else cs}"))
        pre = []
        if (k & 7) == 7 and t == 1:
            pre = [I("s_waitcnt lgkmcnt(0)"), I("s_barrier", need=["p%d" % (p + 1)] if p < 3 else [])]
        if (k & 3) == 0 and t == 0: pre += stampq((4,))
        S1.pos(ops, 8 if s == 0 else 6, pre)
NP2 = P2(32, 0)
for c in range(8):
    for s in range(4):
        nc, ns = (c, s + 1) if s < 3 else (c + 1, 0)
        o = 1 if s == 3 else 0
        if nc < 8:
            rd = p1_reads(nc, ns)
            sr = p1_statread(nc, ns) if not (nc == 7 and ns > 0) else []
            if c == 7 and s == 0: sr = p1_statread(7, 1) + p1_statread(7, 2) + p1_statread(7, 3)
            rd = rd[:3] + sr + rd[3:]
            if OPT.get("x_halftr"): rd = rd[:8]
            S1.spread(rd, P1(c, s, o), P1(c, s, o + 5), 0)
        else:
            S1.put(P1(c, s, 1), [I(f"ds_read_b128 {vr(vCSA+4*k,4)}, v{vL16} offset:{CS1+CSTR*k}") for k in range(2)], 0)
        if c < 7: S1.spread(stats(s), P1(c, s, 0), P1(c, s, 6), 2)
        elif s == 0: S1.spread(stats(0), P1(c, 0, 0), P1(c, 0, 4), 2); S1.spread(stats(1)[:12], P1(c, 0, 4), P1(c, 0, 6), 2)
        elif s == 1: S1.spread(stats(1)[12:] + cs_convert(vCS1, CS1) + stats(2)[:6], P1(c, 1, 0), P1(c, 1, 6), 2)
        elif s == 2: S1.spread(stats(2)[6:] + stats(3)[:18], P1(c, 2, 0), P1(c, 2, 6), 2)
        else: S1.spread(stats(3)[18:] + stats_final(), P1(c, 3, 0), P1(c, 3, 6), 2)
    one = lambda g: 1
    if c == 0: S1.spread(p1_dma(3), P1(0, 0, 0), P1(0, 3, 1), 1, one)
    if not (OPT.get("x_nodma") and c < 4): S1.spread(p1_dma(c + 4) if c < 4 else p2_dma(c - 4), P1(c, 3, 1), P1(c + 1, 3, 1), 1, one)
if OPT["touch"]:
    t2 = L(f"""s_lshr_b32 s{sT}, s2, 3
s_mul_i32 s{sTb}, s{sT}, 43
s_lshl_b32 s{sTc}, s{sT}, 4
s_lshl_b32 s{sTd}, s{sW}, 4
s_cmp_eq_u32 s{sW}, 3
s_cselect_b32 s{sTb}, s{sTc}, s{sTb}
s_cselect_b32 s{sTd}, 0, s{sTd}
s_cselect_b32 s{STC}, s{SO}, s{SD}
s_cselect_b32 s{STC+1}, s{SO+1}, s{SD+1}
s_cselect_b32 s{STC+2}, s{SO+2}, s{SD+2}
s_and_b32 s{sTc}, s2, 1
s_lshl_b32 s{sTc}, s{sTc}, 9
v_lshrrev_b32 v{vT0}, 2, v{vL}
v_add_u32 v{vT0}, s{sTd}, v{vT0}
v_min_u32 v{vT0}, 42, v{vT0}
v_add_u32 v{vT0}, s{sTb}, v{vT0}
v_and_b32 v{vT1}, 3, v{vL}
v_lshlrev_b32 v{vT1}, 7, v{vT1}
v_lshl_add_u32 v{vT0}, v{vT0}, 10, v{vT1}""") + [I(f"buffer_load_dword v{vPoll}, v{vT0}, {srd(STC)}, s{sTc} offen{TF}")]
    S1.put(P1(OPT.get("w2t", 2), 0, 0), [t2], 1)
    if OPT.get("wst", 0):
        t3 = [[I(f"buffer_load_dword v{vPoll}, v{r}, {srd(SWS)}, 0 offen sc1")] for r in (vKVst, vHst)]
        S1.spread(t3, P1(1, 0, 0), P1(1, 2, 0), 1, one)
S1.put(P1(5, 0, 0), [L(f"v_mov_b32 v{vT0}, 0") + [I(f"buffer_load_dword v{vInit}, v{vT0}, {srd(SDBG)}, 0 offen" + (" sc1" if OPT.get("initsc1", 0) else ""))]], 1)

def p2_reads(k):
    p, g, s = k >> 3, (k >> 2) & 1, k & 3
    st = k & 1
    o = []
    for t in range(3):
        for n in range(2):
            imm = (p & 1) * 24576 + t * 8192 + g * 4096 + n * 256
            o.append(I(f"ds_read_b64_tr_b16 {ar(wfrag(st,t)+2*n,2)}, v{vW2r+2*s+(p>>1)} offset:{imm}"))
    return o
def scale_pack(acc, sc, dst):
    o = []
    for j in range(16): o.append(I(f"v_mul_f32 v{acc+j}, v{acc+j}, v{sc}"))
    for j in range(8): o.append(I(f"v_cvt_pk_bf16_f32 v{dst+j}, v{acc+2*j}, v{acc+2*j+1}"))
    return o
def gelu(g, u):
    o = []
    for b in range(4):
        js = range(4 * b, 4 * b + 4)
        T = lambda j: vG + (j & 3) + 4 * (b & 1)
        o += [I(f"v_mul_f32 v{T(j)}, v{g+j}, v{g+j}") for j in js]
        o += [I(f"v_fma_f32 v{T(j)}, v{T(j)}, v{vGB}, v{vGA}") for j in js]
        o += [I(f"v_mul_f32 v{T(j)}, v{g+j}, v{T(j)}") for j in js]
        for j in js:
            o += [I(f"v_exp_f32 v{T(j)}, v{T(j)}"), I(f"v_mul_f32 v{g+j}, v{g+j}, v{u+j}")]
        o += [I(f"v_fma_f32 v{T(j)}, v{T(j)}, v{vGR}, v{vGR}") for j in js]
        o += [I(f"v_rcp_f32 v{T(j)}, v{T(j)}") for j in js]
        o += [I(f"v_mul_f32 v{g+j}, v{g+j}, v{T(j)}") for j in js]
        o += [I(f"v_cvt_pk_bf16_f32 v{u+2*b+k}, v{g+4*b+2*k}, v{g+4*b+2*k+1}") for k in range(2)]
    return o
def store4(data, voff, soff, imm, tag):
    o = (" offset:%d" % imm) if imm else ""
    return I(f"buffer_store_dwordx4 {vr(data,4)}, v{voff}, {srd(SWS)}, {soff} offen{o} sc1", tag=tag)
def flag(stage, tag):
    return L(f"v_mov_b32 v{vT0}, 1\ns_movk_i32 s{sT}, {stage*8192}") + [I(f"buffer_store_dword v{vT0}, v{vFl}, {srd(SWS)}, s{sT} offen sc1", need=[tag])]
def poll_issue(S, soff="0"):
    return [I(f"buffer_load_dword v{vPoll}, v{vPa}, {srd(S)}, {soff} offen sc1")]
def poll_check(name, S, reg=None, addr=None, soff="0"):
    reg = vPoll if reg is None else reg
    addr = vPa if addr is None else addr
    rare.append(f"""
L_spin_{name}:
    s_mov_b32 s{sSPIN}, {OPT['spin']}
L_spin2_{name}:
    s_sleep 1
    buffer_load_dword v{reg}, v{addr}, {srd(S)}, {soff} offen sc1
    s_waitcnt vmcnt(0) lgkmcnt(0)
    v_cmp_eq_u32 vcc, 0, v{reg}
    s_nop 4
    s_cbranch_vccz L_ok_{name}
    s_sub_u32 s{sSPIN}, s{sSPIN}, 1
    s_cmp_lg_u32 s{sSPIN}, 0
    s_cbranch_scc1 L_spin2_{name}
    s_endpgm
""")
    o = L(f"v_cmp_eq_u32 vcc, 0, v{reg}\ns_cbranch_vccnz L_spin_{name}")
    o[-1].post = f"\nL_ok_{name}:"
    return o

fillq = []
for t in range(2):
    a = ACC1 + 16 * t
    fillq += scale_pack(a, vRstd, a)
    fillq += [store4(a, vKVst, "0" if t == 0 else f"s{sKVT}", 0, "kv"), store4(a + 4, vKVst, "0" if t == 0 else f"s{sKVT}", 1024, "kv")]
fillq += L(f"v_mov_b32 v{vT2}, 0") + poll_check("init", SDBG, reg=vInit, addr=vT2)
g0 = gelu(ACC1 + 32, ACC1 + 64) + [store4(ACC1 + 64, vHst, f"s{sH0}", 0, "h"), store4(ACC1 + 68, vHst, f"s{sH0}", 1024, "h")]
g1 = gelu(ACC1 + 48, ACC1 + 80) + [store4(ACC1 + 80, vHst, f"s{sH0}", 2048, "h"), store4(ACC1 + 84, vHst, f"s{sH0}", 3072, "h")]
KVFLAG_AT = OPT.get("kvflag", 90)
fillq += g0[:KVFLAG_AT] + flag(0, "kv") + g0[KVFLAG_AT:]
att = L(f"""
v_and_b32 v{vT1}, 31, v{vL}
v_lshrrev_b32 v{vT2}, 5, v{vL}
v_lshlrev_b32 v{vT2}, 2, v{vT2}
v_sub_u32 v{vT1}, v{vT1}, v{vT2}
v_mov_b32 v{vT2}, 0xff000000
""")
for j in range(16):
    kl = 8 * (j >> 2) + (j & 3)
    att += L(f"v_cmp_le_i32 vcc, {kl}, v{vT1}\nv_cndmask_b32 v{vBD+j}, v{vT2}, 0, vcc\nv_cndmask_b32 v{vBF+j}, 0, v{vT2}, vcc")
att += L(f"""
s_lshl_b32 s{sT}, s{sRB}, 2
s_sub_i32 s{sT}, 8, s{sT}
v_and_b32 v{vT1}, 15, v{vL}
v_cmp_le_i32 vcc, s{sT}, v{vT1}
v_mov_b32 v{vT1}, 0x3f803f80
v_cndmask_b32 v{vU}, 0, v{vT1}, vcc
v_cndmask_b32 v{vU+1}, 0, v{vT1}, vcc
v_lshlrev_b32 v{vT1}, 3, v{vL}
s_lshl_b32 s{sT}, s{sW}, 9
v_add_u32 v{vT1}, s{sT}, v{vT1}
""") + [I(f"ds_write_b64 v{vT1}, {vr(vU,2)} offset:{STRIP}", tag="strip")]
att += L(f"""
v_add_u32 v{vKa}, s{sM0X}, v{vL16}
v_lshrrev_b32 v{vT1}, 5, v{vL}
v_bfe_u32 v{vT2}, v{vL}, 2, 2
v_lshl_add_u32 v{vT2}, v{vT1}, 2, v{vT2}
v_lshlrev_b32 v{vT2}, 5, v{vT2}
v_and_b32 v{vVa}, 1, v{vL}
v_lshl_add_u32 v{vT2}, v{vVa}, 4, v{vT2}
v_bfe_u32 v{vVa}, v{vL}, 1, 1
v_lshl_add_u32 v{vT2}, v{vVa}, 3, v{vT2}
s_add_u32 s{sT}, s{sM0X}, 2048
v_add_u32 v{vT2}, s{sT}, v{vT2}
v_xor_b32 v{vT1}, 1, v{vT1}
v_lshlrev_b32 v{vT1}, 7, v{vT1}
s_lshl_b32 s{sT}, s{sW}, 3
s_add_u32 s{sT}, s{sT}, {STRIP}
v_add_u32 v{vT1}, s{sT}, v{vT1}
v_and_b32 v{vVa}, 16, v{vL}
v_cmp_eq_u32 vcc, 0, v{vVa}
v_cndmask_b32 v{vVa}, v{vT1}, v{vT2}, vcc
v_mov_b32 v{vT1}, 8
v_mov_b32 v{vT2}, 4096
v_cndmask_b32 v{vVinc}, v{vT1}, v{vT2}, vcc
s_lshl_b32 s{sT}, s{sTB}, 15
s_lshl_b32 s{sTb}, s{sCB}, 11
s_add_u32 s{sT}, s{sT}, s{sTb}
s_add_u32 s{sT}, s{sT}, {O0}
v_add_u32 v{vOst}, s{sT}, v{vL16}
s_lshl_b32 s{sT}, s{sCB}, 18
v_add_u32 v{vKVo}, s{sT}, v{vL16}
s_mul_i32 s{sT}, s{sW}, 5120
v_add_u32 v{vW3r}, s{sT}, v{vW2r}
v_add_u32 v{vW3r+1}, 49152, v{vW3r}
""")
kvprep = []
for k in range(3):
    kvprep += L(f"""
s_mul_i32 s{sT}, s{sW}, 3
s_lshl_b32 s{sTb}, s{sRB}, 2
s_add_u32 s{sT}, s{sT}, s{sTb}
s_add_i32 s{sT}, s{sT}, {k-8}
s_lshl_b32 s{sKV[k]}, s{sT}, 12
s_cmp_lt_i32 s{sT}, 0
s_cselect_b32 s{sKV[k]}, s{sHUGE}, s{sKV[k]}
""")
kvprep += L(f"""
v_min_u32 v{vT1}, 5, v{vL}
v_lshrrev_b32 v{vT2}, 1, v{vT1}
s_add_i32 s{sT}, s{sT}, -2
v_add_u32 v{vT2}, s{sT}, v{vT2}
v_cmp_gt_i32 vcc, 0, v{vT2}
v_mov_b32 v{vPa}, s{sTB}
v_cndmask_b32 v{vT2}, v{vT2}, v{vPa}, vcc
v_lshlrev_b32 v{vT2}, 7, v{vT2}
v_and_b32 v{vT1}, 1, v{vT1}
v_lshl_add_u32 v{vT2}, v{vT1}, 2, v{vT2}
s_and_b32 s{sT}, s{sCB}, 14
s_lshl_b32 s{sT}, s{sT}, 2
s_add_u32 s{sT}, s{sT}, {FL0}
v_add_u32 v{vPa}, s{sT}, v{vT2}
""")
kvdma = []
for k in range(3):
    kvdma.append(L(f"s_mul_i32 s{sX}, s{sW}, 12288\ns_add_u32 m0, s{sX}, {4096*k}\ns_nop 0") + [dma(vKVo, SWS, f"s{sKV[k]}", 0, "kvl", "sc1")])
    kvdma += [[dma(vKVo, SWS, f"s{sKV[k]}", 1024 * i, "kvl", "sc1")] for i in range(1, 4)]
POLL_AT = OPT.get("kvpoll", 100)
fillq += att + kvprep + g1[:POLL_AT] + poll_issue(SWS) + g1[POLL_AT:]

def w2_dma(j):
    sl = j % 12
    m0 = (sl // 3) * 24576 + (sl % 3) * 2048
    vo, S, so = (vDo, SD, j * 16384) if j < 22 else (vEo, SO, (j - 22) * 16384)
    nd = ["r%d" % (j - 12)]
    return [L(f"s_add_u32 m0, s{sM0D}, {m0}\ns_mov_b32 s{sD}, {so}") + [dma(vo, S, f"s{sD}", 0, "w%d" % j, need=nd)],
            [dma(vo + 1, S, f"s{sD}", 1024, "w%d" % j, need=nd)]]
def glue(q):
    out = []; cur = []
    for n, x in enumerate(q):
        cur.append(x)
        nxt = q[n + 1] if n + 1 < len(q) else None
        if x.op.startswith("s_cmp") or (nxt is not None and nxt.op.startswith("s_cselect")): continue
        out.append(cur); cur = []
    if cur: out.append(cur)
    return out
S1.spread(p2_reads(0), NP1, NP1 + 5, 0)
for k in range(32):
    o = 1 if (k & 7) == 7 else 0
    if k + 1 < 32: S1.spread(p2_reads(k + 1), P2(k, o), P2(k, 3), 0)
    else: S1.put(P2(k, 1), [I(f"ds_read_b128 {vr(vCSA+4*q,4)}, v{vL16} offset:{CS2+CSTR*q}") for q in range(2)], 0)
for p in range(3):
    S1.spread(w2_dma(3 * p) + w2_dma(3 * p + 1) + w2_dma(3 * p + 2), P2(8 * p + 7, 1), P2(8 * p + 15, 1) if p < 2 else P2(OPT.get("kvchk", 29), 0), 1, one)
S1.spread(glue(fillq), NP1 + 2, P2(29, 0), 2)
S1.spread(cs_convert(vCS2, CS2), P2(29, 0), P2(31, 0), 2)
S1.put(P2(OPT.get("kvchk", 29), 0), [poll_check("kv", SWS)], 1)
S1.spread(kvdma, P2(OPT.get("kvchk", 29), 1), NP2, 1, one)
if OPT["stamps"] == 9:
    for q in range(26):
        p = OPT["za"] + q * OPT["zs"]
        if p < len(S1.main): S1.pre[p] = stampq((9,)) + S1.pre[p]
E(S1.emit())
stamp((1, 4))
post_dma = w2_dma(9) + w2_dma(10) + w2_dma(11)
for t in range(3):
    acc = vr(ACC2 + 16 * t, 16)
    E(f"{MF} {acc}, {vr(vCSA+4*(t&1),4)}, {vr(vBext,4)}, {acc}")
    if t == 0: E(f"ds_read_b128 {vr(vCSA,4)}, v{vL16} offset:{CS2+2*CSTR}")
E(f"""
v_lshrrev_b32 v{vT0}, 3, v{vL}
s_lshl_b32 s{sT}, s{sTB2}, 6
s_lshl_b32 s{sTb}, s{sW}, 4
s_add_u32 s{sT}, s{sT}, s{sTb}
v_add_u32 v{vT0}, s{sT}, v{vT0}
v_lshlrev_b32 v{vT0}, 10, v{vT0}
v_and_b32 v{vT1}, 7, v{vL}
v_lshl_add_u32 v{vT0}, v{vT1}, 4, v{vT0}
s_lshl_b32 s{sT}, s{sNB}, 7
v_add_u32 v{vXo}, s{sT}, v{vT0}
v_add_u32 v{vXo+1}, 8192, v{vXo}
v_bfe_u32 v{vT0}, v{vL}, 4, 1
v_and_b32 v{vT1}, 15, v{vL}
v_lshlrev_b32 v{vT1}, 2, v{vT1}
v_lshl_add_u32 v{vT0}, v{vT0}, 7, v{vT1}
s_lshl_b32 s{sT}, s{sTB2}, 8
s_add_u32 s{sT}, s{sT}, {FL0+8192}
v_add_u32 v{vPa}, s{sT}, v{vT0}
""")
E(f"buffer_load_dwordx4 {vr(vXres,4)}, v{vXo}, {srd(SX)}, 0 offen")
E(f"buffer_load_dwordx4 {vr(vXres+4,4)}, v{vXo+1}, {srd(SX)}, 0 offen")
gl = gelu(ACC2 + 16, ACC2 + 32)
for q in range(6):
    E(gl[len(gl) * q // 6:len(gl) * (q + 1) // 6] + post_dma[q])
E([store4(ACC2 + 32, vHst, f"s{sH2}", 0, "h"), store4(ACC2 + 36, vHst, f"s{sH2}", 1024, "h")])
E(scale_pack(ACC2, vQS, vQ))
E(I("s_waitcnt lgkmcnt(0)"))
stamp((4, 6))
E(I("s_barrier", need=["kvl"]))
stamp((1, 4, 6))

units = [(i, e) for i in range(9) for e in range(2)]
def kread(u):
    i, e = units[u]
    return [I(f"ds_read_b128 {ar(aK+4*(u&1),4)}, v{vKa} offset:{i*4096+e*1024}")]
def vread(u):
    i, e = units[u]
    o = []
    for s in range(2):
        for n in range(2):
            o.append(I(f"ds_read_b64_tr_b16 {ar(aV+8*(u&1)+4*s+2*n,2)}, v{vVa} offset:{e*1024+s*512+n*256}"))
    if e == 1: o.append(I(f"v_add_u32 v{vVa}, v{vVa}, v{vVinc}"))
    return o
def qk(u):
    i, e = units[u]
    c = vr(vBF, 16) if i == 0 else (vr(vBD, 16) if i == 8 else "0")
    return I(f"{MF} {vr(vS[u&1],16)}, {ar(aK+4*(u&1),4)}, {vr(vQ+4*e,4)}, {c}")
def pv(u, s):
    i, e = units[u]
    o = vr(vO[e], 16)
    return I(f"{MF} {o}, {ar(aV+8*(u&1)+4*s,4)}, {vr(vP[u&1]+4*s,4)}, {'0' if (i == 0 and s == 0) else o}")
def hload(j, tt):
    soff = "0" if j < 4 else (f"s{sHX}" if j >= 20 else f"s{sA}")
    imm = (j & 3) * 1024
    o = (" offset:%d" % imm) if imm else ""
    pre = L(f"s_movk_i32 s{sA}, {(j>>2)*4096}") if (tt == 0 and (j & 3) == 0 and 4 <= j < 20) else []
    return pre + [I(f"buffer_load_dwordx4 {ar(aH+8*j+4*tt,4)}, v{vAo+tt}, {srd(SWS)}, {soff} offen{o} sc1")]
extra = {u: [] for u in range(18)}
HFLAG_U = OPT.get("hflag", 2); HPOLL_U = OPT.get("hpoll", 8); HCHK_U = HPOLL_U + 3
extra[HFLAG_U].append(flag(1, "h"))
extra[HPOLL_U].append(poll_issue(SWS))
extra[HCHK_U].append(poll_check("h", SWS))
hl = [hload(j, tt) for j in range(22) for tt in range(2)]
NH = OPT.get("nh", 28)
hl_late = hl[NH:]; hl = hl[:NH]
nu = 18 - HCHK_U
for q in range(nu):
    extra[HCHK_U + q] += hl[(len(hl) * q) // nu:(len(hl) * (q + 1)) // nu]

E(kread(0) + kread(1) + vread(0))
E(qk(0))
for u in range(18):
    S, P = vS[u & 1], vP[u & 1]
    ex = [I(f"v_exp_f32 v{S+j}, v{S+j}") for j in range(16)]
    cv = [I(f"v_cvt_pk_bf16_f32 v{P+j}, v{S+2*j}, v{S+2*j+1}") for j in range(8)]
    seq = []
    if u + 1 < 18: seq.append(qk(u + 1))
    if u + 2 < 18: seq += kread(u + 2)
    xs = list(extra[u])
    X = lambda q: flat(xs[len(xs) * q // 4:len(xs) * (q + 1) // 4])
    seq += X(0)
    seq += ex[0:4]
    if u > 0: seq.append(pv(u - 1, 0))
    seq += ex[4:6] + X(1) + ex[6:8] + cv[0:2]
    if u > 0: seq.append(pv(u - 1, 1))
    seq += ex[8:10] + cv[2:4]
    if u + 1 < 18: seq += vread(u + 1)
    seq += ex[10:12] + X(2) + ex[12:16] + cv[4:6] + X(3) + cv[6:8]
    if u % 2 == 0: seq = stampq((6,)) + seq
    E(seq)
E([pv(17, 0), pv(17, 1)])
BLO, BHI = fx(2.0 ** -40), fx(2.0 ** 40)
E(f"""
s_mov_b32 s{sT}, {BLO}
s_mov_b32 s{sTb}, {BHI}
v_min_f32 v{vT0}, v{vO[0]+8}, v{vO[1]+8}
v_max_f32 v{vT1}, v{vO[0]+8}, v{vO[1]+8}
v_cmp_nle_f32 vcc, s{sT}, v{vT0}
v_cmp_nge_f32 s[4:5], s{sTb}, v{vT1}
v_cmp_u_f32 s[6:7], v{vO[0]+8}, v{vO[1]+8}
s_or_b64 vcc, vcc, s[4:5]
s_or_b64 vcc, vcc, s[6:7]
s_cbranch_vccnz L_truemax
L_att_done:
v_rcp_f32 v{vT0}, v{vO[0]+8}
v_rcp_f32 v{vT1}, v{vO[1]+8}
""")
for e in range(2):
    E([I(f"v_mul_f32 v{vO[e]+j}, v{vO[e]+j}, v{vT0+e}") for j in range(8)])
    E([I(f"v_cvt_pk_bf16_f32 v{vO[e]+8+j}, v{vO[e]+2*j}, v{vO[e]+2*j+1}") for j in range(4)])
    E(store4(vO[e] + 8, vOst, "0", 1024 * e, "o"))
E(f"v_add_u32 v{vPa}, 8192, v{vPa}")
stamp((6,))
E("s_barrier")
stamp((1, 5, 6))

tm = []
tm.append(f"""
L_truemax:
    s_waitcnt vmcnt(0) lgkmcnt(0)
    s_nop 15
    s_sub_i32 s8, 8, s{sTB}
    s_max_i32 s8, s8, 0
    s_mov_b32 s9, 0
L_tm_head:
    s_cmp_eq_u32 s9, 0
    s_cselect_b64 vcc, -1, 0
    s_nop 4
""")
for j in range(4):
    tm.append(f"    v_cndmask_b32 v{vP[1]+j}, v{vQ+4+j}, v{vQ+j}, vcc\n")
tm.append(f"""
    v_mov_b32 v{vT0}, 0xff000000
    s_mov_b32 s11, 0
L_tm_pass:
    s_mov_b32 s10, s8
""")
for j in range(16):
    tm.append(f"    v_mov_b32 v{vS[1]+j}, 0\n")
tm.append(f"""
L_tm_blk:
    s_lshl_b32 s12, s10, 12
    s_lshl_b32 s13, s9, 10
    s_add_u32 s12, s12, s13
    v_add_u32 v{vT1}, s12, v{vKa}
    ds_read_b128 {ar(aK,4)}, v{vT1}
    s_sub_u32 s12, 9, s10
    v_mul_lo_u32 v{vT2}, s12, v{vVinc}
    v_sub_u32 v{vT2}, v{vVa}, v{vT2}
    v_add_u32 v{vT2}, s13, v{vT2}
    ds_read_b64_tr_b16 {ar(aV,2)}, v{vT2}
    ds_read_b64_tr_b16 {ar(aV+2,2)}, v{vT2} offset:256
    ds_read_b64_tr_b16 {ar(aV+4,2)}, v{vT2} offset:512
    ds_read_b64_tr_b16 {ar(aV+6,2)}, v{vT2} offset:768
    s_waitcnt lgkmcnt(0)
    s_cmp_eq_u32 s10, 0
    s_cbranch_scc1 L_tm_far
    s_cmp_eq_u32 s10, 8
    s_cbranch_scc1 L_tm_diag
    {MF} {vr(vS[0],16)}, {ar(aK,4)}, {vr(vP[1],4)}, 0
    s_branch L_tm_s
L_tm_far:
    {MF} {vr(vS[0],16)}, {ar(aK,4)}, {vr(vP[1],4)}, {vr(vBF,16)}
    s_branch L_tm_s
L_tm_diag:
    {MF} {vr(vS[0],16)}, {ar(aK,4)}, {vr(vP[1],4)}, {vr(vBD,16)}
L_tm_s:
    s_nop 15
    s_cmp_eq_u32 s11, 0
    s_cbranch_scc0 L_tm_exp
""")
for j in range(16):
    tm.append(f"    v_max_f32 v{vT0}, v{vT0}, v{vS[0]+j}\n")
tm.append("    s_branch L_tm_next\nL_tm_exp:\n")
for j in range(16):
    tm.append(f"    v_sub_f32 v{vS[0]+j}, v{vS[0]+j}, v{vT0}\n")
for j in range(16):
    tm.append(f"    v_exp_f32 v{vS[0]+j}, v{vS[0]+j}\n")
tm.append("    s_nop 1\n")
for j in range(8):
    tm.append(f"    v_cvt_pk_bf16_f32 v{vP[0]+j}, v{vS[0]+2*j}, v{vS[0]+2*j+1}\n")
tm.append(f"""
    s_nop 1
    {MF} {vr(vS[1],16)}, {ar(aV,4)}, {vr(vP[0],4)}, {vr(vS[1],16)}
    {MF} {vr(vS[1],16)}, {ar(aV+4,4)}, {vr(vP[0]+4,4)}, {vr(vS[1],16)}
    s_nop 15
L_tm_next:
    s_add_u32 s10, s10, 1
    s_cmp_lt_u32 s10, 9
    s_cbranch_scc1 L_tm_blk
    s_cmp_eq_u32 s11, 0
    s_cbranch_scc0 L_tm_fin
    v_mov_b32 v{vT1}, v{vT0}
    s_nop 1
    v_permlane32_swap_b32 v{vT0}, v{vT1}
    s_nop 1
    v_max_f32 v{vT0}, v{vT0}, v{vT1}
    s_mov_b32 s11, 1
    s_branch L_tm_pass
L_tm_fin:
    s_cmp_eq_u32 s9, 0
    s_cbranch_scc0 L_tm_h1
""")
for j in range(16):
    tm.append(f"    v_mov_b32 v{vO[0]+j}, v{vS[1]+j}\n")
tm.append("    s_mov_b32 s9, 1\n    s_branch L_tm_head\nL_tm_h1:\n")
for j in range(16):
    tm.append(f"    v_mov_b32 v{vO[1]+j}, v{vS[1]+j}\n")
tm.append("    s_nop 1\n    s_branch L_att_done\n")
rare.append("".join(tm))

def w2_reads(j):
    sl = j % 12
    base = (sl // 3) * 24576 + (sl % 3) * 2048
    o = []
    for ct in range(2):
        for n in range(2):
            off = base + n * 1024 + ct * 256
            reg = vW3r if off < 49152 else vW3r + 1
            off = off if off < 49152 else off - 49152
            o.append(I(f"ds_read_b64_tr_b16 {ar(aW2+8*(j&1)+4*ct+2*n,2)}, v{reg} offset:{off}", need=["w%d" % j], tag="r%d" % j))
    return o
def oload(j2, tt):
    imm = (j2 & 3) * 1024
    o = (" offset:%d" % imm) if imm else ""
    soff = "0" if j2 < 4 else f"s{sA}"
    return [I(f"buffer_load_dwordx4 {vr(vOF+8*j2+4*tt,4)}, v{vOo+tt}, {srd(SWS)}, {soff} offen{o} sc1")]
OFLAG_J = OPT.get("oflag", 6); OPOLL_J = OPT.get("opoll", 14); OCHK_J = OPT.get("ochk", 18)
E(w2_reads(0))
S3 = Sched()
for j in range(30):
    for ct in range(2):
        for tt in range(2):
            acc = ar(aACC + 32 * ct + 16 * tt, 16)
            bb = ar(aH + 8 * j + 4 * tt, 4) if j < 22 else vr(vOF + 8 * (j - 22) + 4 * tt, 4)
            xr = None
            if ct == 0 and tt == 0: xr = ar(aH + 8 * j + 4, 4) if j < 22 else vr(vOF + 8 * (j - 22) + 4, 4)
            S3.pos(I(f"{MF} {acc}, {ar(aW2+8*(j&1)+4*ct,4)}, {bb}, {'0' if j == 0 else acc}", xr=xr), 6, stampq((5,)) if (ct == 0 and tt == 0 and j % 2 == 0) else [])
for j in range(30):
    if j + 1 < 30: S3.spread(w2_reads(j + 1), 4 * j, 4 * j + 2, 0)
    if j + 12 < 30:
        g = w2_dma(j + 12); S3.put(4 * j + 2, [g[0]], 1); S3.put(4 * j + 3, [g[1]], 1)
S3.spread(hl_late, 0, 4 * OPT.get("hlate_end", 8), 1, one)
S3.put(4 * OFLAG_J, [flag(2, "o")], 1)
S3.put(4 * OPOLL_J, [poll_issue(SWS)], 1)
S3.put(4 * OCHK_J, [poll_check("o", SWS) + L(f"s_movk_i32 s{sA}, 4096")], 1)
S3.spread([oload(j2, tt) for j2 in range(8) for tt in range(2)], 4 * OCHK_J + 1, 4 * OPT.get("oend", 24), 1, one)
E(S3.emit())
stamp((1, 5))
E(f"""
v_and_b32 v{vT0}, 31, v{vL}
v_lshrrev_b32 v{vT1}, 5, v{vL}
v_and_b32 v{vT2}, 7, v{vL}
v_xor_b32 v{vT1}, v{vT1}, v{vT2}
v_lshlrev_b32 v{vT0}, 8, v{vT0}
v_lshl_add_u32 v{vT0}, v{vT1}, 4, v{vT0}
s_lshl_b32 s{sT}, s{sW}, 14
v_add_u32 v{vT0}, s{sT}, v{vT0}
""")
for i in range(4):
    E(f"v_xor_b32 v{vU+i}, {32*i}, v{vT0}")
E(f"""
v_lshrrev_b32 v{vT0}, 3, v{vL}
v_and_b32 v{vT1}, 7, v{vL}
v_lshlrev_b32 v{vT1}, 1, v{vT1}
v_xor_b32 v{vT1}, v{vT1}, v{vT0}
v_lshlrev_b32 v{vT0}, 8, v{vT0}
v_lshl_add_u32 v{vT0}, v{vT1}, 4, v{vT0}
s_lshl_b32 s{sT}, s{sW}, 12
v_add_u32 v{vU+4}, s{sT}, v{vT0}
v_xor_b32 v{vU+5}, 16, v{vU+4}
""")
for ct in range(2):
    for tt in range(2):
        for i in range(4):
            E(I(f"ds_write_b128 v{vU+i}, {ar(aACC+32*ct+16*tt+4*i,4)} offset:{tt*8192+ct*128}"))
E("s_waitcnt lgkmcnt(0)\ns_barrier")
R0 = 128
for rho in range(2):
    for p in range(4):
        for n in range(2):
            E(f"ds_read_b128 {vr(R0+32*rho+8*p+4*n,4)}, v{vU+4+n} offset:{p*16384+rho*2048}")
for rho in range(2):
    b = R0 + 32 * rho
    x = vXres + 4 * rho
    for j in range(8): E(f"v_add_f32 v{b+j}, v{b+j}, v{b+8+j}")
    for j in range(8): E(f"v_add_f32 v{b+16+j}, v{b+16+j}, v{b+24+j}")
    for j in range(4):
        E(f"v_lshlrev_b32 v{b+8+2*j}, 16, v{x+j}\nv_and_b32 v{b+9+2*j}, 0xffff0000, v{x+j}")
    for j in range(8): E(f"v_add_f32 v{b+j}, v{b+j}, v{b+16+j}")
    for j in range(8): E(f"v_add_f32 v{b+j}, v{b+j}, v{b+8+j}")
    for j in range(4): E(f"v_cvt_pk_bf16_f32 v{b+8+j}, v{b+2*j}, v{b+2*j+1}")
    E(f"buffer_store_dwordx4 {vr(b+8,4)}, v{vXo+rho}, {srd(SOUT)}, 0 offen sc1")
if OPT["stamps"]:
    stamp()
    E(f"s_waitcnt vmcnt(0)")
    stamp((1, 2, 3, 4, 5, 6, 9))
    E(f"s_lshl_b32 s{sT}, s2, 2\ns_add_u32 s{sT}, s{sT}, s{sW}\ns_lshl_b32 s{sT}, s{sT}, 7\ns_add_u32 s{sT}, s{sT}, {ST0}\nv_mov_b32 v{vT0}, s{sT}")
    for k in range(nstamp[0]):
        E(f"v_mov_b32 v{vT1}, s{STREG[k]}\nbuffer_store_dword v{vT1}, v{vT0}, {srd(SWS)}, 0 offen offset:{4*k}")
if OPT.get("xf"):
    E("s_waitcnt vmcnt(0)")
    E(xf_ins((1,)))
    E("s_sub_u32 s90, s90, s88\ns_lshl_b32 s90, s90, 2\ns_add_u32 s90, s90, 4000\nL_es:\ns_memrealtime s[4:5]\ns_waitcnt lgkmcnt(0)\ns_sub_u32 s4, s4, s88\ns_cmp_lt_u32 s4, s90\ns_cbranch_scc1 L_es")
if OPT.get("endspin"):
    E("s_waitcnt vmcnt(0) lgkmcnt(0)\nL_es:")
    E("s_memrealtime s[4:5]" if OPT["endspin"] == 1 else "s_memtime s[4:5]")
    E("s_waitcnt lgkmcnt(0)\ns_sub_u32 s4, s4, s88\ns_cmp_lt_u32 s4, %d\ns_cbranch_scc1 L_es" % (6000 if OPT["endspin"] == 1 else 144000))
E("L_end:\ns_endpgm")

lines = finalize(prog, verbose=True)
hdr = f"""; Fused LayerNorm + QKV/gate/up GEMM + sliding-window attention + GEGLU + down/out projection.
; @launch grid=(256,1,1) block=(256,1,1) lds={LDSSZ}
.amdgcn_target "amdgcn-amd-amdhsa--gfx950"
.text
.globl {KNAME}
.p2align 8
.type {KNAME},@function
{KNAME}:
"""
tail = f"""
.section .rodata,"a"
.p2align 6
.amdhsa_kernel {KNAME}
  .amdhsa_next_free_vgpr 512
  .amdhsa_next_free_sgpr 102
  .amdhsa_accum_offset 256
  .amdhsa_group_segment_fixed_size 0
  .amdhsa_kernarg_size 80
  .amdhsa_user_sgpr_count 2
  .amdhsa_user_sgpr_kernarg_segment_ptr 1
  .amdhsa_system_sgpr_workgroup_id_x 1
.end_amdhsa_kernel
"""
open(sys.argv[1], "w").write(hdr + "\n".join(lines) + "\n" + "".join(rare) + tail)
```

```python
import sys, math, struct
from asmlib import I, Ins, finalize, weave, Sched

KNAME = "parallel_sum__sliding_block__glu_gated_geglu__prompt_kernel"
OPT = dict(stamps=0, spin=200000)
for a in sys.argv[2:]:
    k, v = a.split("="); OPT[k] = int(v)
def O(k, d): return OPT.get(k, d)

HUGE = 0x40000000
H0 = 4 << 20
HSTR = 88 * 1024
O0 = 10 << 20
FL0 = 12 << 20
ST0 = FL0 + (64 << 10)
WSSZ = 13 << 20
WB = 65536
CS1 = 0; C1STR = 520
STX = 8704
STRIP = 49152
CS2 = 53248; CSTR = 1040
LDSSZ = 163840

STC = 4
sKV = [8, 9, 10]; sRHO, sWB, sWS, sAL, sWL, sMSK, sGp = 11, 12, 13, 14, 15, 16, 17
SX, SQ, SG, SU, SD, SO, SOUT, SWS, SDBG = 24, 28, 32, 36, 40, 44, 48, 52, 56
sW, sRB, sCB, sTB2, sNB, sT0, sT2, sH2, sTB = 3, 60, 61, 62, 63, 64, 65, 66, 67
sX, sQ, sG, sM0X, sM0W = 68, 69, 70, 71, 72
sT, sTb, sTc, sTd = 73, 74, 75, 76
sPK, sPH, sM0D, sD, sSPIN = 77, 78, 80, 81, 82
sPHI, sPH2, sC, sHUGE, sA = 83, 84, 85, 86, 87
sM0K = 79
STREG = list(range(90, 102)) + list(range(18, 24))
def srd(n): return "s[%d:%d]" % (n, n + 3)
def vr(a, n): return "v[%d:%d]" % (a, a + n - 1)
def ar(a, n): return "a[%d:%d]" % (a, a + n - 1)

vL = 0; vT0, vT1, vT2 = 1, 2, 3
vXo = 4; vQo = 8; vGo = 10; vXr = 12; vXp = 16; vWr = 20; vQo2 = 28; vGo2 = 30; vW2r = 32
vSum = 40; vCS1 = 44; vCS2 = 48
vL16, vKVst, vHst, vFl2, vCSw1, vCSw2, vPoll, vInit, vCSr, vStx, vDo = 52, 53, 54, 55, 56, 57, 58, 59, 60, 61, 62
ACC1 = 64; ACC2 = 160
vXT = 208; vU = 224; vG = 232; vCSA = [240, 244, 220]
vK = [248, 252]
vBx = [208, 212]; vQS = 216
PARK = dict(Ka=4, Va=5, Vinc=6, Ost=7, KVo=8, Pa=9, Pb=10, W3r=11, W3s=12, Out=13, Out1=14, Eo=15, Eo1=16, Ao=17, Ao1=18, Oo=19, Oo1=20, Fl1=21, Rw=22, Rr=23)
aPARK = 200; aSTV, aSTA = 220, 221
vKa, vVa, vVinc, vOst, vKVo, vPa, vPb, vW3r = [PARK[k] for k in ("Ka", "Va", "Vinc", "Ost", "KVo", "Pa", "Pb", "W3r")]
vOut, vEo, vAo, vOo, vFl1, vRw, vRr = [PARK[k] for k in ("Out", "Eo", "Ao", "Oo", "Fl1", "Rw", "Rr")]
vXres = 24
vBF = 64; vBD = 80; vS = [96, 112]; vP = [128, 136]; vQ = 144; vO = [208, 224]
vOF = 64
aX = 0; aSEL = 128; aXP = 140; aWF = 152
aH = 0; aW2 = 176; aACC = 192; aK = 192; aV = 200

prog = []; rare = []
def L(txt, **kw): return [I(ln.strip(), **kw) for ln in txt.strip().split("\n") if ln.strip() and not ln.strip().startswith(";")]
def E(x, **kw):
    if isinstance(x, str): prog.extend(L(x, **kw))
    elif isinstance(x, Ins): prog.append(x)
    else: prog.extend(x)
def flat(g): return [x for y in g for x in y]
one = lambda g: 1
nstamp = [0]; xfc = [0]
def stampq(sets=(1,)):
    if O("xf", 0):
        if 1 in sets:
            xfc[0] += 1
            if xfc[0] == OPT["xf"]: return L("s_waitcnt lgkmcnt(0)\n%s s[90:91]\ns_waitcnt lgkmcnt(0)" % ("s_memtime" if O("xfc", 0) else "s_memrealtime"))
        return []
    if OPT["stamps"] in sets:
        k = nstamp[0]; nstamp[0] += 1
        return L("s_waitcnt lgkmcnt(0)\ns_memtime s[88:89]\ns_waitcnt lgkmcnt(0)\ns_mov_b32 s%d, s88" % STREG[k])
    return []
def stamp(sets=(1,)): E(stampq(sets))
def fx(f): return "0x%08x" % struct.unpack("<I", struct.pack("<f", f))[0]
MF = "v_mfma_f32_32x32x16_bf16"; MS = "v_mfma_f32_16x16x32_bf16"
def park(name, src): return f"v_accvgpr_write_b32 a{aPARK + PARK[name] - 4}, {src}\n"
def dma(voff, S, soff, imm, tag, flags="", need=None):
    o = (" offset:%d" % imm) if imm else ""
    return I(f"buffer_load_dwordx4 v{voff}, {srd(S)}, {soff} offen{o} {flags} lds", tag=tag, need=need)
def glue(q):
    out = []; cur = []
    for n, x in enumerate(q):
        cur.append(x)
        nxt = q[n + 1] if n + 1 < len(q) else None
        if x.op.startswith("s_cmp") or (nxt is not None and nxt.op.startswith("s_cselect")): continue
        out.append(cur); cur = []
    if cur: out.append(cur)
    return out

E("""
s_cmp_ge_u32 s2, 256
s_cbranch_scc1 L_end
s_load_dwordx4 s[4:7], s[0:1], 0
s_load_dwordx2 s[8:9], s[0:1], 16
s_load_dwordx4 s[12:15], s[0:1], 32
s_load_dwordx4 s[16:19], s[0:1], 48
s_load_dwordx4 s[20:23], s[0:1], 64
""")
if OPT["stamps"]: E("s_memtime s[88:89]")
if O("xf", 0): E("s_memrealtime s[88:89]\ns_memtime s[92:93]")
def ctouch(vtid):
    return L(f"""s_getpc_b64 s[40:41]
s_mov_b32 s42, L_table_end-.
s_mov_b32 s43, 0x20000
s_lshr_b32 s44, s2, 3
s_lshl_b32 s44, s44, 11
v_and_b32 v{vU}, 15, v{vtid}
v_lshrrev_b32 v{vU+1}, 4, v{vtid}
v_lshlrev_b32 v{vU}, 7, v{vU}
v_lshl_add_u32 v{vU}, v{vU+1}, 24, v{vU}
buffer_load_dword v{vXT+6}, v{vU}, s[40:43], s44 offen""")
if O("ctouch", 1) == 1: E(ctouch(0))
else: E(f"v_mov_b32 v{vU+2}, v0")
E(f"""
v_lshrrev_b32 v{vT0}, 6, v0
v_and_b32 v{vL}, 63, v0
v_readfirstlane_b32 s{sW}, v{vT0}
s_and_b32 s{sT}, s2, 7
s_lshr_b32 s{sTb}, s2, 3
s_lshr_b32 s{sTc}, s{sT}, 2
s_lshl_b32 s{sRB}, s{sTc}, 3
s_and_b32 s{sTd}, s{sTb}, 7
s_add_u32 s{sRB}, s{sRB}, s{sTd}
s_and_b32 s{sCB}, s{sT}, 3
s_lshl_b32 s{sCB}, s{sCB}, 2
s_lshr_b32 s{sTd}, s{sTb}, 3
s_add_u32 s{sCB}, s{sCB}, s{sTd}
s_lshl_b32 s{sTB2}, s{sT}, 2
s_and_b32 s{sTd}, s{sTb}, 3
s_add_u32 s{sTB2}, s{sTB2}, s{sTd}
s_lshr_b32 s{sNB}, s{sTb}, 2
""")
if O("phi", 1) == 1: E(f"s_lshl_b32 s{sPHI}, s{sCB}, 1\ns_add_u32 s{sPHI}, s{sPHI}, s{sRB}\ns_and_b32 s{sPHI}, s{sPHI}, 7")
else: E(f"s_add_u32 s{sPHI}, s{sCB}, s{sRB}\ns_and_b32 s{sPHI}, s{sPHI}, 3\ns_lshl_b32 s{sPHI}, s{sPHI}, 1")
E(f"""
s_lshl_b32 s{sTB}, s{sRB}, 2
s_add_u32 s{sTB}, s{sTB}, s{sW}
s_mul_i32 s{sT0}, s{sCB}, 3
s_lshl_b32 s{sT}, s{sCB}, 1
s_add_u32 s{sT}, s{sT}, 11
s_cmp_lt_u32 s{sCB}, 11
s_cselect_b32 s{sT0}, s{sT0}, s{sT}
s_lshl_b32 s{sM0X}, s{sW}, 12
s_lshl_b32 s{sM0W}, s{sW}, 11
s_add_u32 s{sM0W}, s{sM0W}, {WB}
s_lshl_b32 s{sT}, s{sTB}, 15
v_lshrrev_b32 v{vT0}, 3, v{vL}
v_lshlrev_b32 v{vT0}, 10, v{vT0}
v_add_u32 v{vT0}, s{sT}, v{vT0}
v_and_b32 v{vT1}, 7, v{vL}
v_lshrrev_b32 v{vT2}, 4, v{vL}
v_xor_b32 v{vT1}, v{vT1}, v{vT2}
v_lshl_add_u32 v{vXo}, v{vT1}, 4, v{vT0}
v_xor_b32 v{vT1}, 4, v{vT1}
v_lshl_add_u32 v{vXo+1}, v{vT1}, 4, v{vT0}
v_add_u32 v{vXo+1}, {7*1024}, v{vXo+1}
v_add_u32 v{vXo+2}, {14*1024}, v{vXo}
v_add_u32 v{vXo+3}, {14*1024}, v{vXo+1}
v_lshrrev_b32 v{vT0}, 5, v{vL}
v_bfe_u32 v{vT1}, v{vL}, 2, 2
v_lshl_add_u32 v{vT0}, v{vT0}, 2, v{vT1}
v_bfe_u32 v{vT1}, v{vL}, 4, 1
v_and_b32 v{vT2}, 3, v{vL}
v_lshlrev_b32 v{vT2}, 4, v{vT2}
v_lshl_add_u32 v{vT1}, v{vT1}, 6, v{vT2}
v_lshl_add_u32 v{vDo}, v{vT0}, 10, v{vT1}
s_lshl_b32 s{sT}, s{sW}, 4
v_add_u32 v{vT0}, s{sT}, v{vT0}
s_and_b32 s{sT}, s{sCB}, 1
s_add_u32 s{sT}, s{sT}, 1
s_lshl_b32 s{sT}, s{sT}, 10
s_lshr_b32 s{sTb}, s{sCB}, 1
s_lshl_b32 s{sTb}, s{sTb}, 7
s_add_u32 s{sT}, s{sT}, s{sTb}
v_mul_u32_u24 v{vQo}, 3072, v{vT0}
v_add3_u32 v{vQo}, v{vQo}, v{vT1}, s{sT}
v_add_u32 v{vQo+1}, {8*3072-1024}, v{vQo}
s_lshl_b32 s{sT}, s{sT0}, 6
v_mul_u32_u24 v{vGo}, 2752, v{vT0}
v_add3_u32 v{vGo}, v{vGo}, v{vT1}, s{sT}
v_add_u32 v{vGo+1}, {8*2752-1024}, v{vGo}
""")
def mksrd(n, p, size): return f"s_mov_b32 s{n}, s{p}\ns_mov_b32 s{n+1}, s{p+1}\ns_mov_b32 s{n+2}, {size}\ns_mov_b32 s{n+3}, 0x20000\n"
E(mksrd(SX, 4, 2097152) + mksrd(SQ, 6, 1572864) + mksrd(SG, 12, 1409024) + mksrd(SU, 14, 1409024))
if OPT["stamps"]:
    E("s_mov_b32 s%d, s88" % STREG[0]); nstamp[0] = 1

def p1_dma(c):
    sl = c & 3; t = "c%d" % c
    g = []
    g.append(L(f"s_add_u32 s{sC}, s{sPHI}, {c}\ns_and_b32 s{sC}, s{sC}, 7\ns_add_u32 m0, s{sM0X}, {sl*16384}\ns_lshl_b32 s{sX}, s{sC}, 7") + [dma(vXo, SX, f"s{sX}", 0, t)])
    g += [[dma(vXo + i, SX, f"s{sX}", 1024 * i, t)] for i in range(1, 4)]
    g.append(L(f"s_add_u32 m0, s{sM0W}, {sl*24576}\ns_mul_i32 s{sQ}, s{sC}, 196608") + [dma(vQo, SQ, f"s{sQ}", 0, t)])
    g.append([dma(vQo + 1, SQ, f"s{sQ}", 1024, t), I(f"s_add_u32 m0, s{sM0W}, {sl*24576+8192}")])
    g.append(L(f"s_mul_i32 s{sG}, s{sC}, 176128") + [dma(vGo, SG, f"s{sG}", 0, t)])
    g.append([dma(vGo + 1, SG, f"s{sG}", 1024, t), I(f"s_add_u32 m0, s{sM0W}, {sl*24576+16384}")])
    g.append([dma(vGo, SU, f"s{sG}", 0, t)])
    g.append([dma(vGo + 1, SU, f"s{sG}", 1024, t)])
    return g
def p2_dma(p):
    t = "p%d" % p
    g = []
    g.append(L(f"s_add_u32 s{sC}, s{sPH2}, {2*p}\ns_and_b32 s{sC}, s{sC}, 7\ns_add_u32 m0, s{sM0W}, {p*24576}\ns_mul_i32 s{sQ}, s{sC}, 196608") + [dma(vQo2, SQ, f"s{sQ}", 0, t)])
    g.append([dma(vQo2 + 1, SQ, f"s{sQ}", 1024, t), I(f"s_add_u32 m0, s{sM0W}, {p*24576+8192}")])
    g.append(L(f"s_mul_i32 s{sG}, s{sC}, 176128") + [dma(vGo2, SG, f"s{sG}", 0, t)])
    g.append([dma(vGo2 + 1, SG, f"s{sG}", 1024, t), I(f"s_add_u32 m0, s{sM0W}, {p*24576+16384}")])
    g.append([dma(vGo2, SU, f"s{sG}", 0, t)])
    g.append([dma(vGo2 + 1, SU, f"s{sG}", 1024, t)])
    return g

stamp((2,))
if O("tlb", 0):
    E(f"""s_cmp_eq_u32 s{sW}, 1
s_cselect_b32 s44, s{SQ}, s{SX}
s_cselect_b32 s45, s{SQ+1}, s{SX+1}
s_cmp_eq_u32 s{sW}, 2
s_cselect_b32 s44, s{SG}, s44
s_cselect_b32 s45, s{SG+1}, s45
s_cmp_eq_u32 s{sW}, 3
s_cselect_b32 s44, s{SU}, s44
s_cselect_b32 s45, s{SU+1}, s45
s_mov_b32 s46, 1409024
s_mov_b32 s47, 0x20000
v_lshlrev_b32 v{vT0}, {O("tlbs", 24)}, v{vL}
buffer_load_dword v{vXT+7}, v{vT0}, s[44:47], 0 offen""")
g0 = p1_dma(0)
CT = O("ctouch", 1)
if CT >= 2: E(flat(g0[:CT - 1]) + ctouch(vU + 2) + flat(g0[CT - 1:]))
else: E(flat(g0))
stamp((2,))
init_mark = len(prog)
E(mksrd(SD, 16, 1409024) + mksrd(SO, 8, 524288) + mksrd(SOUT, 18, 2097152) + mksrd(SWS, 22, WSSZ) + mksrd(SDBG, 20, 256))
E(f"""
s_mov_b32 s{sHUGE}, {HUGE}
v_lshlrev_b32 v{vL16}, 4, v{vL}
s_lshr_b32 s{sPH2}, s{sW}, 1
s_add_u32 s{sPH2}, s{sPH2}, s{sPHI}
s_cmp_lt_u32 s{sCB}, 11
s_cselect_b32 s{sT}, 2, 1
s_cselect_b32 s{sMSK}, -1, 0
s_add_u32 s{sT2}, s{sT0}, s{sT}
""")
w2touch = L(f"""s_mul_i32 s{sT}, s2, 3
s_add_u32 s{sT}, s{sT}, s{sW}
s_mov_b32 s{STC+3}, 0x20000
s_cmp_eq_u32 s{sW}, 3
s_cselect_b32 s{sT}, s2, s{sT}
s_cselect_b32 s{STC}, s{SO}, s{SD}
s_cselect_b32 s{STC+1}, s{SO+1}, s{SD+1}
s_cselect_b32 s{STC+2}, s{SO+2}, s{SD+2}
s_lshl_b32 s{sT}, s{sT}, 11
v_and_b32 v{vT0}, 15, v{vL}
v_lshlrev_b32 v{vT0}, 7, v{vT0}
v_lshrrev_b32 v{vT1}, 4, v{vL}
v_lshl_add_u32 v{vT0}, v{vT1}, 28, v{vT0}
buffer_load_dword v{vPoll}, v{vT0}, {srd(STC)}, s{sT} offen sc1""")
if O("w2t", 4) == 0: E(w2touch)
E(f"""
s_cmp_lg_u32 s2, 0
s_cselect_b32 s{sT}, s{sHUGE}, 0
s_lshl_b32 s{sTb}, s{sW}, 13
s_add_u32 s{sTb}, s{sTb}, {FL0}
s_add_u32 s{sT}, s{sT}, s{sTb}
s_add_u32 s{sTb}, s{sT}, 4096
v_mov_b32 v{vXT}, 0
v_mov_b32 v{vXT+1}, 0
v_mov_b32 v{vXT+2}, 0
v_mov_b32 v{vXT+3}, 0
s_cbranch_scc0 L_zero
""")
prog[-1].post = "\nL_zero_done:"
prog.pop()
E(f"s_cmp_eq_u32 s2, 0\ns_cbranch_scc1 L_zero"); prog[-1].post = "\nL_zero_done:"
rare.append("\nL_zero:\n" + "".join(f"    buffer_store_dwordx4 {vr(vXT,4)}, v{vL16}, {srd(SWS)}, s{sT if i < 4 else sTb} offen offset:{1024*(i&3)} sc1\n" for i in range(8)) + "    s_waitcnt vmcnt(0)\n    s_branch L_zero_done\n")

E(f"""
v_and_b32 v{vT0}, 31, v{vL}
v_lshrrev_b32 v{vT1}, 5, v{vL}
v_bfe_u32 v{vT2}, v{vL}, 1, 3
v_xor_b32 v{vT2}, v{vT2}, v{vT1}
v_lshlrev_b32 v{vT0}, 7, v{vT0}
v_lshl_add_u32 v{vT0}, v{vT2}, 4, v{vT0}
v_add_u32 v{vT0}, s{sM0X}, v{vT0}
""")
for s in range(4):
    E(f"s_xor_b32 s{sT}, s{sW}, {s}\ns_lshl_b32 s{sT}, s{sT}, 5\nv_xor_b32 v{vXr+s}, s{sT}, v{vT0}\nv_xor_b32 v{vXp+s}, 4096, v{vXr+s}")
E(f"""
v_bfe_u32 v{vT2}, v{vL}, 2, 2
v_lshlrev_b32 v{vT2}, 6, v{vT2}
v_bfe_u32 v{vT0}, v{vL}, 4, 1
v_lshl_add_u32 v{vT2}, v{vT0}, 5, v{vT2}
v_and_b32 v{vT0}, 3, v{vL}
v_lshl_add_u32 v{vT2}, v{vT0}, 3, v{vT2}
v_lshl_add_u32 v{vT0}, v{vT1}, 10, v{vT2}
v_lshl_add_u32 v{vT2}, v{vT1}, 9, v{vT2}
s_and_b32 s{sTc}, s{sW}, 1
s_lshl_b32 s{sTc}, s{sTc}, 8
s_add_u32 s{sTc}, s{sTc}, {WB}
s_mul_i32 s{sT}, s{sW}, 6144
s_add_u32 s{sM0D}, s{sT}, {WB}
v_add_u32 v{vT1}, s{sM0D}, v{vT2}
{park("W3r", f"v{vT1}")}v_add_u32 v{vT1}, 49152, v{vT1}
{park("W3s", f"v{vT1}")}
""")
for s in range(4):
    E(f"""
s_xor_b32 s{sT}, s{sW}, {s}
s_lshl_b32 s{sTb}, s{sT}, 11
s_add_u32 s{sTb}, s{sTb}, s{sTc}
v_add_u32 v{vWr+2*s}, s{sTb}, v{vT0}
v_add_u32 v{vWr+2*s+1}, 49152, v{vWr+2*s}
s_lshl_b32 s{sTb}, s{sT}, 10
s_add_u32 s{sTb}, s{sTb}, {WB}
v_add_u32 v{vW2r+2*s}, s{sTb}, v{vT2}
v_add_u32 v{vW2r+2*s+1}, 49152, v{vW2r+2*s}
""")
E(f"""
v_lshrrev_b32 v{vT0}, 2, v{vL}
s_and_b32 s{sT}, s{sW}, 1
s_lshl_b32 s{sT}, s{sT}, 5
v_add_u32 v{vT0}, s{sT}, v{vT0}
v_and_b32 v{vT1}, 3, v{vL}
v_lshlrev_b32 v{vT1}, 4, v{vT1}
s_lshl_b32 s{sT}, s{sCB}, 6
v_mul_u32_u24 v{vQo2}, 3072, v{vT0}
v_add3_u32 v{vQo2}, v{vQo2}, v{vT1}, s{sT}
v_add_u32 v{vQo2+1}, {16*3072-1024}, v{vQo2}
s_lshl_b32 s{sT}, s{sT2}, 6
v_mul_u32_u24 v{vGo2}, 2752, v{vT0}
v_add3_u32 v{vGo2}, v{vGo2}, v{vT1}, s{sT}
v_add_u32 v{vGo2+1}, {16*2752-1024}, v{vGo2}
v_and_b32 v{vT0}, 15, v{vL}
v_bfe_u32 v{vT1}, v{vL}, 4, 1
v_sub_u32 v{vT0}, v{vT0}, v{vT1}
v_mov_b32 v{vT1}, 0x3f803f80
""")
for t in range(3):
    E(f"v_cmp_eq_u32 vcc, {2*t}, v{vT0}\nv_cndmask_b32 v{vT2}, 0, v{vT1}, vcc")
    E("\n".join(f"v_accvgpr_write_b32 a{aSEL+4*t+j}, v{vT2}" for j in range(4)))
E(f"""
s_lshl_b32 s{sT}, s{sRB}, 2
s_sub_i32 s{sT}, 8, s{sT}
v_and_b32 v{vT0}, 15, v{vL}
v_cmp_le_i32 vcc, s{sT}, v{vT0}
v_cndmask_b32 v{vT2}, 0, v{vT1}, vcc
v_accvgpr_write_b32 a{aSTV}, v{vT2}
v_lshlrev_b32 v{vT0}, 3, v{vL}
s_lshl_b32 s{sT}, s{sW}, 9
v_add_u32 v{vT1}, s{sT}, v{vT0}
v_accvgpr_write_b32 a{aSTA}, v{vT1}
s_and_b32 s{sTc}, s{sW}, 1
s_mul_i32 s{sT}, s{sTc}, {8*C1STR}
v_add_u32 v{vCSr}, s{sT}, v{vT0}
s_lshr_b32 s{sTb}, s{sW}, 1
s_lshl_b32 s{sTd}, s{sTb}, 8
s_add_u32 s{sT}, s{sT}, s{sTd}
v_bfe_u32 v{vT0}, v{vL}, 1, 3
v_and_b32 v{vT1}, 1, v{vL}
v_lshrrev_b32 v{vT2}, 4, v{vL}
v_lshl_add_u32 v{vT1}, v{vT1}, 2, v{vT2}
v_mul_u32_u24 v{vT2}, {C1STR}, v{vT0}
v_lshl_add_u32 v{vT2}, v{vT1}, 5, v{vT2}
v_add_u32 v{vCSw1}, s{sT}, v{vT2}
s_lshl_b32 s{sT}, s{sTb}, 9
s_lshl_b32 s{sTd}, s{sTc}, 3
s_add_u32 s{sT}, s{sT}, s{sTd}
v_mul_u32_u24 v{vT2}, {CSTR}, v{vT0}
v_lshl_add_u32 v{vT2}, v{vT1}, 6, v{vT2}
v_add_u32 v{vCSw2}, s{sT}, v{vT2}
v_and_b32 v{vT0}, 31, v{vL}
v_lshlrev_b32 v{vT1}, 3, v{vT0}
s_lshl_b32 s{sT}, s{sW}, 8
v_add_u32 v{vStx}, s{sT}, v{vT1}
v_lshrrev_b32 v{vT1}, 5, v{vL}
v_lshl_add_u32 v{vT0}, v{vT0}, 1, v{vT1}
v_lshlrev_b32 v{vT0}, 4, v{vT0}
v_add_u32 v{vT0}, 2048, v{vT0}
s_and_b32 s{sT}, s{sCB}, 1
s_cmp_eq_u32 s{sT}, 1
s_cselect_b64 vcc, -1, 0
v_cndmask_b32 v{vKVst}, v{vL16}, v{vT0}, vcc
s_and_b32 s{sT}, s{sCB}, 14
s_add_u32 s{sT}, s{sT}, s{sTc}
s_lshl_b32 s{sT}, s{sT}, 18
s_and_b32 s{sTb}, s{sTB}, -2
s_lshl_b32 s{sTd}, s{sTb}, 12
s_add_u32 s{sT}, s{sT}, s{sTd}
v_add_u32 v{vKVst}, s{sT}, v{vKVst}
s_lshl_b32 s{sPK}, s{sTc}, 12
s_mul_i32 s{sT}, s{sTb}, {HSTR}
s_add_u32 s{sT}, s{sT}, {H0}
s_lshl_b32 s{sTd}, s{sCB}, 12
s_add_u32 s{sT}, s{sT}, s{sTd}
s_lshl_b32 s{sTd}, s{sTc}, 11
s_add_u32 s{sT}, s{sT}, s{sTd}
v_add_u32 v{vHst}, s{sT}, v{vL16}
s_mul_i32 s{sPH}, s{sTc}, {HSTR}
s_lshl_b32 s{sT}, s{sCB}, 11
s_lshl_b32 s{sTd}, s{sTc}, 11
s_add_u32 s{sT}, s{sT}, s{sTd}
s_sub_u32 s{sT}, 65536, s{sT}
s_add_u32 s{sT}, s{sT}, s{sPH}
s_cmp_lt_u32 s{sCB}, 12
s_cselect_b32 s{sH2}, s{sT}, s{sHUGE}
s_lshl_b32 s{sT}, s{sTb}, 7
s_lshl_b32 s{sTd}, s{sCB}, 3
s_add_u32 s{sTd}, s{sTd}, {FL0}
s_add_u32 s{sT}, s{sT}, s{sTd}
s_lshl_b32 s{sTb}, s{sTc}, 2
s_add_u32 s{sT}, s{sT}, s{sTb}
v_lshlrev_b32 v{vT0}, 7, v{vL}
v_add_u32 v{vT0}, s{sT}, v{vT0}
v_mov_b32 v{vT1}, s{sHUGE}
v_cmp_gt_u32 vcc, 2, v{vL}
v_cndmask_b32 v{vFl2}, v{vT1}, v{vT0}, vcc
s_lshl_b32 s{sT}, s{sTB}, 7
s_add_u32 s{sT}, s{sT}, s{sTd}
v_mov_b32 v{vT0}, s{sT}
v_cmp_eq_u32 vcc, 0, v{vL}
v_cndmask_b32 v{vT0}, v{vT1}, v{vT0}, vcc
{park("Fl1", f"v{vT0}")}
v_mov_b32 v{vSum}, 0
v_mov_b32 v{vSum+1}, 0
v_mov_b32 v{vSum+2}, 0
v_mov_b32 v{vSum+3}, 0
v_mov_b32 v{vCSA[0]+2}, 0
v_mov_b32 v{vCSA[0]+3}, 0
v_mov_b32 v{vCSA[1]+2}, 0
v_mov_b32 v{vCSA[1]+3}, 0
s_lshl_b32 s{sT}, s{sNB}, 7
v_add_u32 v{vDo}, s{sT}, v{vDo}
v_add_u32 v{vDo+1}, {7*1024}, v{vDo}
s_lshl_b32 s{sT}, s{sW}, 17
v_add_u32 v{vT0}, s{sT}, v{vDo}
{park("Eo", f"v{vT0}")}v_add_u32 v{vT0}, {7*1024}, v{vT0}
{park("Eo1", f"v{vT0}")}
s_mul_i32 s{sT}, s{sTB2}, {2*HSTR}
s_lshl_b32 s{sTb}, s{sW}, 14
s_add_u32 s{sT}, s{sT}, s{sTb}
s_add_u32 s{sT}, s{sT}, {H0}
v_add_u32 v{vT0}, s{sT}, v{vL16}
{park("Ao", f"v{vT0}")}v_add_u32 v{vT0}, {HSTR}, v{vT0}
{park("Ao1", f"v{vT0}")}
s_lshl_b32 s{sT}, s{sTB2}, 16
s_lshl_b32 s{sTb}, s{sW}, 13
s_add_u32 s{sT}, s{sT}, s{sTb}
s_add_u32 s{sT}, s{sT}, {O0}
v_add_u32 v{vT0}, s{sT}, v{vL16}
{park("Oo", f"v{vT0}")}v_add_u32 v{vT0}, 32768, v{vT0}
{park("Oo1", f"v{vT0}")}
s_add_u32 s{sRHO}, s{sTB2}, s{sNB}
s_and_b32 s{sRHO}, s{sRHO}, {3 if O("rot", 1) else 0}
s_mul_i32 s{sWB}, s{sW}, {12*32768}
s_mov_b32 s{sWS}, 98304
s_cmp_eq_u32 s{sW}, 3
s_cselect_b32 s{sWB}, {35*32768}, s{sWB}
s_cselect_b32 s{sWS}, 65536, s{sWS}
s_mul_i32 s{sAL}, s{sW}, 10240
s_sub_u32 s{sAL}, 65536, s{sAL}
s_mul_i32 s{sWL}, s{sW}, {9*32768}
s_add_u32 s{sWL}, s{sWL}, 65536
v_lshrrev_b32 v{vT0}, 3, v{vL}
v_and_b32 v{vT1}, 7, v{vL}
s_lshl_b32 s{sT}, s{sTB2}, 6
s_lshl_b32 s{sTb}, s{sW}, 4
s_add_u32 s{sT}, s{sT}, s{sTb}
s_lshl_b32 s{sT}, s{sT}, 10
s_lshl_b32 s{sTb}, s{sNB}, 7
s_add_u32 s{sT}, s{sT}, s{sTb}
v_lshlrev_b32 v{vT2}, 10, v{vT0}
v_lshl_add_u32 v{vT2}, v{vT1}, 4, v{vT2}
v_add_u32 v{vT2}, s{sT}, v{vT2}
{park("Out", f"v{vT2}")}v_add_u32 v{vT2}, 8192, v{vT2}
{park("Out1", f"v{vT2}")}v_lshlrev_b32 v{vT1}, 1, v{vT1}
v_xor_b32 v{vT1}, v{vT1}, v{vT0}
v_lshlrev_b32 v{vT0}, 8, v{vT0}
v_lshl_add_u32 v{vT0}, v{vT1}, 4, v{vT0}
v_add_u32 v{vT0}, s{sM0X}, v{vT0}
{park("Rr", f"v{vT0}")}v_and_b32 v{vT0}, 31, v{vL}
v_lshrrev_b32 v{vT1}, 5, v{vL}
v_and_b32 v{vT2}, 7, v{vL}
v_xor_b32 v{vT1}, v{vT1}, v{vT2}
v_lshlrev_b32 v{vT0}, 8, v{vT0}
v_lshl_add_u32 v{vT0}, v{vT1}, 4, v{vT0}
s_lshl_b32 s{sT}, s{sW}, 14
v_add_u32 v{vT0}, s{sT}, v{vT0}
{park("Rw", f"v{vT0}")}
v_add_u32 v{vT0}, s{sM0X}, v{vL16}
{park("Ka", f"v{vT0}")}v_lshrrev_b32 v{vT1}, 5, v{vL}
v_bfe_u32 v{vT2}, v{vL}, 2, 2
v_lshl_add_u32 v{vT2}, v{vT1}, 2, v{vT2}
v_lshlrev_b32 v{vT2}, 5, v{vT2}
v_and_b32 v{vT0}, 1, v{vL}
v_lshl_add_u32 v{vT2}, v{vT0}, 4, v{vT2}
v_bfe_u32 v{vT0}, v{vL}, 1, 1
v_lshl_add_u32 v{vT2}, v{vT0}, 3, v{vT2}
s_add_u32 s{sT}, s{sM0X}, 2048
v_add_u32 v{vT2}, s{sT}, v{vT2}
v_xor_b32 v{vT1}, 1, v{vT1}
v_lshlrev_b32 v{vT1}, 7, v{vT1}
s_lshl_b32 s{sT}, s{sW}, 3
s_add_u32 s{sT}, s{sT}, {STRIP}
v_add_u32 v{vT1}, s{sT}, v{vT1}
v_and_b32 v{vT0}, 16, v{vL}
v_cmp_eq_u32 vcc, 0, v{vT0}
v_cndmask_b32 v{vT0}, v{vT1}, v{vT2}, vcc
{park("Va", f"v{vT0}")}v_mov_b32 v{vT1}, 8
v_mov_b32 v{vT2}, 4096
v_cndmask_b32 v{vT0}, v{vT1}, v{vT2}, vcc
{park("Vinc", f"v{vT0}")}
s_lshl_b32 s{sT}, s{sTB}, 15
s_lshl_b32 s{sTb}, s{sCB}, 11
s_add_u32 s{sT}, s{sT}, s{sTb}
s_add_u32 s{sT}, s{sT}, {O0}
v_add_u32 v{vT0}, s{sT}, v{vL16}
{park("Ost", f"v{vT0}")}
s_lshl_b32 s{sT}, s{sCB}, 18
v_add_u32 v{vT0}, s{sT}, v{vL16}
{park("KVo", f"v{vT0}")}
s_mul_i32 s{sM0K}, s{sW}, 12288
""")
for k in range(3):
    E(f"""
s_mul_i32 s{sT}, s{sW}, 3
s_lshl_b32 s{sTb}, s{sRB}, 2
s_add_u32 s{sT}, s{sT}, s{sTb}
s_add_i32 s{sT}, s{sT}, {k-8}
s_lshl_b32 s{sKV[k]}, s{sT}, 12
s_cmp_lt_i32 s{sT}, 0
s_cselect_b32 s{sKV[k]}, s{sHUGE}, s{sKV[k]}
""")
E(f"""
v_min_u32 v{vT1}, 5, v{vL}
v_lshrrev_b32 v{vT2}, 1, v{vT1}
s_add_i32 s{sT}, s{sT}, -2
v_add_u32 v{vT2}, s{sT}, v{vT2}
v_cmp_gt_i32 vcc, 0, v{vT2}
v_mov_b32 v{vT0}, s{sTB}
v_cndmask_b32 v{vT2}, v{vT2}, v{vT0}, vcc
v_lshlrev_b32 v{vT2}, 7, v{vT2}
v_and_b32 v{vT1}, 1, v{vT1}
v_lshl_add_u32 v{vT2}, v{vT1}, 3, v{vT2}
s_and_b32 s{sT}, s{sCB}, 14
s_lshl_b32 s{sT}, s{sT}, 3
s_and_b32 s{sTb}, s{sCB}, 1
s_lshl_b32 s{sTb}, s{sTb}, 2
s_add_u32 s{sT}, s{sT}, s{sTb}
s_add_u32 s{sT}, s{sT}, {FL0}
v_add_u32 v{vT0}, s{sT}, v{vT2}
{park("Pa", f"v{vT0}")}
s_lshl_b32 s{sT}, s{sTB2}, 8
s_add_u32 s{sT}, s{sT}, {FL0+8192}
v_lshlrev_b32 v{vT0}, 2, v{vL}
v_add_u32 v{vT0}, s{sT}, v{vT0}
{park("Pb", f"v{vT0}")}
""")
rest = prog[init_mark:]; del prog[init_mark:]
gall = p1_dma(1) + p1_dma(2) + p1_dma(3)
N0 = O("n0", 10)
gs = gall[:N0]
acc = []; k = 0
zero_at = max(n for n, x in enumerate(rest) if x.post)
for n, x in enumerate(rest):
    acc.append(x)
    safe = not (x.op.startswith("s_cmp") or (n + 1 < len(rest) and (rest[n + 1].op.startswith("s_cselect") or rest[n + 1].op.startswith("s_cbranch"))))
    if k < len(gs) and safe and n + 1 >= (k + 1) * len(rest) / (len(gs) + 1):
        acc += gs[k]; k += 1
acc += flat(gs[k:])
E(acc)
if O("w2t", 4) == 1: E(w2touch)
stamp((1, 2, 3))

def wf1(st, t): return aWF + (st * 3 + t) * 4
def wf2(k, t): return aWF + ((k % 3) * 3 + t) * 4
def p1_reads(c, s):
    sl = c & 3; st = s & 1
    o = [I(f"ds_read_b128 {ar(aX+(4*c+s)*4,4)}, v{vXr+s} offset:{sl*16384}")]
    for t in range(3):
        for n in range(2):
            o.append(I(f"ds_read_b64_tr_b16 {ar(wf1(st,t)+2*n,2)}, v{vWr+2*s+(sl>>1)} offset:{(sl&1)*24576+t*8192+n*512}"))
    o.insert(3, I(f"ds_read_b128 {ar(aXP+4*st,4)}, v{vXp+s} offset:{sl*16384}"))
    return o
def statread(g):
    c, s = g >> 2, g & 3
    return [I(f"ds_read_b128 {vr(vXT+4*s,4)}, v{vXr+s} offset:{(c&3)*16384}")]
def stats(s):
    o = []
    for j in range(4):
        x = vXT + 4 * s + j; a = vU + 2 * (j & 1)
        o += L(f"""v_lshlrev_b32 v{a}, 16, v{x}
v_and_b32 v{a+1}, 0xffff0000, v{x}
v_add_f32 v{vSum}, v{vSum}, v{a}
v_add_f32 v{vSum+1}, v{vSum+1}, v{a+1}
v_fmac_f32 v{vSum+2}, v{a}, v{a}
v_fmac_f32 v{vSum+3}, v{a+1}, v{a+1}""")
    return o
def cs_convert(vcs, vw, base, step):
    o = []
    for j in range(4):
        a = vU + 4
        o += L(f"""v_cvt_pk_bf16_f32 v{a}, v{vcs+j}, v{vcs+j}
v_and_b32 v{a+2}, 0xffff0000, v{a}
v_sub_f32 v{a+2}, v{vcs+j}, v{a+2}
v_cvt_pk_bf16_f32 v{a+1}, v{a+2}, v{a+2}""")
        o.append(I(f"ds_write_b64 v{vw}, {vr(a,2)} offset:{base+step*j}"))
    return o
C1 = -2.0 * 0.7978845608028654 * 1.4426950408889634
QC = 0.25 * 1.4426950408889634
stats_fin1 = L(f"""
v_add_f32 v{vSum}, v{vSum}, v{vSum+1}
v_add_f32 v{vSum+2}, v{vSum+2}, v{vSum+3}
v_mov_b32 v{vSum+1}, v{vSum}
v_mov_b32 v{vSum+3}, v{vSum+2}
s_nop 0
v_permlane32_swap_b32 v{vSum}, v{vSum+1}
v_permlane32_swap_b32 v{vSum+2}, v{vSum+3}
v_add_f32 v{vSum}, v{vSum}, v{vSum+1}
v_add_f32 v{vSum+2}, v{vSum+2}, v{vSum+3}
v_mul_f32 v{vSum}, {fx(-1.0/512)}, v{vSum}
v_mul_f32 v{vSum+2}, {fx(1.0/512)}, v{vSum+2}
v_fma_f32 v{vSum+2}, -v{vSum}, v{vSum}, v{vSum+2}
v_max_f32 v{vSum+2}, 0, v{vSum+2}
v_add_f32 v{vSum+1}, {fx(1e-5)}, v{vSum+2}
ds_write_b64 v{vStx}, {vr(vSum,2)} offset:{STX}
v_xor_b32 v{vStx}, 256, v{vStx}
""")
def stats_fin2(o):
    nm, R = vSum + 2 * o, vSum + 2 * o + 1; K = vK[o]; B = vBx[o]; a = vU
    t = f"""
v_rsq_f32 v{K}, v{R}
v_cvt_pk_bf16_f32 v{a}, v{nm}, v{nm}
v_and_b32 v{a}, 0xffff0000, v{a}
v_sub_f32 v{a+1}, v{nm}, v{a}
v_cvt_pk_bf16_f32 v{B}, v{a}, v{a+1}
v_mul_f32 v{K+1}, {fx(C1)}, v{K}
v_mul_f32 v{a}, v{K}, v{K}
v_mov_b32 v{B+1}, v{B}
v_mov_b32 v{B+2}, v{B}
v_mov_b32 v{B+3}, v{B}
v_mul_f32 v{a}, {fx(0.044715)}, v{a}
v_mov_b32 v{K+3}, v{R}
v_mul_f32 v{K+2}, v{K+1}, v{a}
"""
    if o == 0: t += f"v_mul_f32 v{vQS}, {fx(QC)}, v{K}\n"
    return L(t)

E(I("s_barrier", need=["c0"]))
stamp((2,))
E(p1_reads(0, 0) + statread(0) + statread(1))
E(stats(0))
S1 = Sched()
P1 = lambda c, s, t: 24 * c + 6 * s + t
A1 = lambda t, o: ACC1 + 32 * t + 16 * o
for c in range(8):
    for s in range(4):
        st = s & 1; first = (c == 0 and s == 0)
        for q in range(6):
            t, o = q >> 1, q & 1
            acc = vr(A1(t, o), 16)
            xb = ar(aX + (4 * c + s) * 4, 4) if o == 0 else ar(aXP + 4 * st, 4)
            ops = [I(f"{MF} {acc}, {ar(wf1(st,t),4)}, {xb}, {'0' if first else acc}")]
            small = s < 2 and o == 1
            if small:
                cs = vr(vCS1, 4)
                ops.append(I(f"{MS} {cs}, {ar(wf1(st,t),4)}, {ar(aSEL+4*t,4)}, {'0' if (first and t == 0) else cs}"))
            pre = []
            if q == 0: pre.append(I("s_waitcnt lgkmcnt(0)"))
            if s == 3 and q == 0 and c < 7:
                pre.append(I("s_barrier", need=["c%d" % (c + 1)] + (["p0"] if c == 6 else [])))
                if c == 0:
                    pre += L(f"s_or_b32 s{sT}, s2, s{sW}\ns_cmp_eq_u32 s{sT}, 0\ns_cselect_b32 s{sT}, 0, s{sHUGE}\nv_mov_b32 v{vT0}, 1\nv_lshlrev_b32 v{vT1}, 8, v{vL}")
                    pre += [I(f"buffer_store_dword v{vT0}, v{vT1}, {srd(SDBG)}, s{sT} offen sc1")]
            if s == 0 and q == 0: pre += stampq((3,))
            S1.pos(ops, 8 if small else 6, pre)
NP1 = 192
CORR_K = 2
P2 = lambda k, t: NP1 + 3 * k + t + (6 if k >= CORR_K else 0)
PC = NP1 + 3 * CORR_K
for k in range(32):
    p, s = k >> 3, k & 3
    if k == CORR_K:
        for q in range(6):
            t, o = q >> 1, q & 1
            acc = vr(A1(t, o), 16)
            S1.pos(I(f"{MF} {acc}, {vr(vCSA[t&1],4)}, {vr(vBx[o],4)}, {acc}"), 6)
    for t in range(3):
        acc = vr(ACC2 + 16 * t, 16)
        ops = [I(f"{MF} {acc}, {ar(wf2(k,t),4)}, {ar(aX+k*4,4)}, {'0' if k == 0 else acc}", xr=ar(wf2(k, 0), 12) if t == 0 else None)]
        if s == 0:
            cs = vr(vCS2, 4)
            ops.append(I(f"{MS} {cs}, {ar(wf2(k,t),4)}, {ar(aSEL+4*t,4)}, {'0' if (k == 0 and t == 0) else cs}"))
        pre = []
        if k == 0 and t == 0:
            pre = stampq((1, 3)) + [I("s_waitcnt lgkmcnt(0)"), I("s_barrier")]
        if (k & 7) == 6 and t == 1:
            pre = [I("s_waitcnt lgkmcnt(0)"), I("s_barrier", need=["p%d" % (p + 1)] if p < 3 else [])]
        if (k & 3) == 0 and t == 0: pre += stampq((4,))
        S1.pos(ops, 8 if s == 0 else 6, pre)
NP2 = len(S1.main)
def p2_reads(k):
    p, g, s = k >> 3, (k >> 2) & 1, k & 3
    return [I(f"ds_read_b64_tr_b16 {ar(wf2(k,t)+2*n,2)}, v{vW2r+2*s+(p>>1)} offset:{(p&1)*24576+t*8192+g*4096+n*256}") for t in range(3) for n in range(2)]
for c in range(8):
    for s in range(4):
        g = 4 * c + s
        rd = []
        if g + 1 < 32: rd += p1_reads((g + 1) >> 2, (g + 1) & 3)
        if s < 2 and g + 2 < 32: rd += statread(g + 2)
        if s == 3 and g + 1 < 32: rd = statread(g + 1) + rd + statread(g + 2)
        S1.spread(rd, P1(c, s, 0), P1(c, s, O("rdw", 3) + (1 if s == 3 else 0)), 0)
        if s == 2: pass
        if g + 1 < 32:
            if s != 3: S1.spread(stats((g + 1) & 3), P1(c, s, 0), P1(c, s, 6), 2)
            else: S1.spread(stats(0), P1(c, s, 2), P1(c, s, 6), 2)
    if c == 0: S1.spread(gall[N0:], P1(0, 0, 0), P1(0, 3, 0), 1, one)
    if c < 7: S1.spread(p1_dma(c + 4) if c < 4 else p2_dma(c - 4), P1(c, 3, 0), P1(c + 1, 3, 0), 1, one)
S1.spread(cs_convert(vCS1, vCSw1, CS1, 8) + stats_fin1, P1(7, 3, 0), P1(7, 3, 6), 2)
S1.spread(p2_reads(0), P1(7, 3, 0), P1(7, 3, 3), 0)
S1.put(P1(7, 3, 5), p2_reads(1), 0)
S1.put(P1(5, 0, 0), [L(f"v_mov_b32 v{vT0}, 0") + [I(f"buffer_load_dword v{vInit}, v{vT0}, {srd(SDBG)}, 0 offen")]], 1)
if O("w2t", 4) >= 2: S1.put(P1(O("w2t", 4) - 2, 1, 0), [w2touch], 1)
S1.spread(p2_dma(3), P2(0, 0), P2(5, 0), 1, one)

def scale_pack(acc, sc, dst, pk=False):
    o = []
    if pk:
        sel = "op_sel:[0,1] op_sel_hi:[1,1]" if sc & 1 else "op_sel_hi:[1,0]"
        for j in range(0, 16, 2): o.append(I(f"v_pk_mul_f32 {vr(acc+j,2)}, {vr(acc+j,2)}, {vr(sc&~1,2)} {sel}"))
    else:
        for j in range(16): o.append(I(f"v_mul_f32 v{acc+j}, v{acc+j}, v{sc}"))
    for j in range(8): o.append(I(f"v_cvt_pk_bf16_f32 v{dst+j}, v{acc+2*j}, v{acc+2*j+1}"))
    return o
def gelu(g, u, K):
    if O("x_nogelu", 0): return [I("s_nop 0")] * 4
    A, B, R = K + 1, K + 2, K + 3
    o = []
    for b in range(4):
        js = range(4 * b, 4 * b + 4)
        T = lambda j: vG + (j & 3) + 4 * (b & 1)
        o += [I(f"v_mul_f32 v{T(j)}, v{g+j}, v{g+j}") for j in js]
        o += [I(f"v_fma_f32 v{T(j)}, v{T(j)}, v{B}, v{A}") for j in js]
        o += [I(f"v_mul_f32 v{T(j)}, v{g+j}, v{T(j)}") for j in js]
        for j in js: o += [I(f"v_exp_f32 v{T(j)}, v{T(j)}"), I(f"v_mul_f32 v{g+j}, v{g+j}, v{u+j}")]
        o += [I(f"v_fma_f32 v{T(j)}, v{T(j)}, v{R}, v{R}") for j in js]
        o += [I(f"v_rcp_f32 v{T(j)}, v{T(j)}") for j in js]
        o += [I(f"v_mul_f32 v{g+j}, v{g+j}, v{T(j)}") for j in js]
        o += [I(f"v_cvt_pk_bf16_f32 v{u+2*b+k}, v{g+4*b+2*k}, v{g+4*b+2*k+1}") for k in range(2)]
    return o
def gelu_pk(g, u, K):
    o = []
    for b in range(2):
        js = range(8 * b, 8 * b + 8, 2)
        T = lambda j: vG + (j & 7)
        o += [I(f"v_pk_mul_f32 {vr(T(j),2)}, {vr(g+j,2)}, {vr(g+j,2)}") for j in js]
        o += [I(f"v_pk_fma_f32 {vr(T(j),2)}, {vr(T(j),2)}, {vr(K+2,2)}, {vr(K,2)} op_sel:[0,0,1] op_sel_hi:[1,0,1]") for j in js]
        o += [I(f"v_pk_mul_f32 {vr(T(j),2)}, {vr(g+j,2)}, {vr(T(j),2)}") for j in js]
        for j in js: o += [I(f"v_exp_f32 v{T(j)}, v{T(j)}"), I(f"v_exp_f32 v{T(j)+1}, v{T(j)+1}"), I(f"v_pk_mul_f32 {vr(g+j,2)}, {vr(g+j,2)}, {vr(u+j,2)}")]
        o += [I(f"v_pk_fma_f32 {vr(T(j),2)}, {vr(T(j),2)}, {vr(K+2,2)}, {vr(K+2,2)} op_sel:[0,1,1] op_sel_hi:[1,1,1]") for j in js]
        for j in js: o += [I(f"v_rcp_f32 v{T(j)}, v{T(j)}"), I(f"v_rcp_f32 v{T(j)+1}, v{T(j)+1}")]
        o += [I(f"v_pk_mul_f32 {vr(g+j,2)}, {vr(g+j,2)}, {vr(T(j),2)}") for j in js]
        o += [I(f"v_cvt_pk_bf16_f32 v{u+(j>>1)}, v{g+j}, v{g+j+1}") for j in js]
    return o
def store4(data, voff, soff, imm, tag):
    if O("x_nost", 0) and tag in ("kv", "h"): return I("s_nop 0")
    o = (" offset:%d" % imm) if imm else ""
    return I(f"buffer_store_dwordx4 {vr(data,4)}, v{voff}, {srd(SWS)}, {soff} offen{o} sc1", tag=tag)
def flag(stage, tag, va):
    if O("x_nofw", -1) == stage: tag = "none"
    return L(f"v_mov_b32 v{vT0}, 1\ns_movk_i32 s{sT}, {stage*8192}") + [I(f"buffer_store_dword v{vT0}, v{va}, {srd(SWS)}, s{sT} offen sc1", need=[tag])]
def poll_issue(va): return [I(f"buffer_load_dword v{vPoll}, v{va}, {srd(SWS)}, 0 offen sc1")]
def poll_check(name, S, reg, addr):
    rare.append(f"""
L_spin_{name}:
    s_mov_b32 s{sSPIN}, {OPT['spin']}
L_spin2_{name}:
    buffer_load_dword v{reg}, v{addr}, {srd(S)}, 0 offen sc1
    s_waitcnt vmcnt(0) lgkmcnt(0)
    v_cmp_eq_u32 vcc, 0, v{reg}
    s_nop 4
    s_cbranch_vccz L_ok_{name}
    s_sleep 1
    s_sub_u32 s{sSPIN}, s{sSPIN}, 1
    s_cmp_lg_u32 s{sSPIN}, 0
    s_cbranch_scc1 L_spin2_{name}
    s_endpgm
""")
    o = L(f"v_cmp_eq_u32 vcc, 0, v{reg}\ns_cbranch_vccnz L_spin_{name}")
    o[-1].post = f"\nL_ok_{name}:"
    return o
def unpark(*names): return [I(f"v_accvgpr_read_b32 v{PARK[n]}, a{aPARK+PARK[n]-4}") for n in names]

S1.put(P2(0, 0), [I(f"ds_read_b64 {vr(vSum+2,2)}, v{vStx} offset:{STX}")] + [I(f"ds_read_b64 {vr(vCSA[t],2)}, v{vCSr} offset:{CS1+C1STR*t}") for t in range(2)], 0)
S1.spread(stats_fin2(0) + stats_fin2(1), P2(0, 0), PC, 2)
S1.put(PC + 1, [I(f"ds_read_b64 {vr(vCSA[0],2)}, v{vCSr} offset:{CS1+C1STR*2}")], 0)
for k in range(30):
    o = 1 if (k & 7) == 6 else 0
    S1.spread(p2_reads(k + 2), P2(k, o), P2(k, o + (2 if (k & 7) in (5, 6) else 3)), 0)

fq = []
sOwn = [f"s{sPK}", f"s{sTd}"]; sOwnH = [f"s{sPH}", f"s{sTc}"]
fq += L(f"s_xor_b32 s{sTd}, s{sPK}, 4096\ns_sub_u32 s{sTc}, {HSTR}, s{sPH}")
for o in range(2):
    a = A1(0, o)
    fq += scale_pack(a, vK[o], a)
    fq += [store4(a, vKVst, sOwn[o], 0, "kv"), store4(a + 4, vKVst, sOwn[o], 1024, "kv")]
fq += L(f"v_mov_b32 v{vT2}, 0") + poll_check("init", SDBG, vInit, vT2)
g = [gelu(A1(1, o), A1(2, o), vK[o]) + [store4(A1(2, o), vHst, sOwnH[o], 0, "h"), store4(A1(2, o) + 4, vHst, sOwnH[o], 1024, "h")] for o in range(2)]
KVF = O("kvflag", 100); KVP = O("kvpoll", 90)
tbl = L(f"""s_getpc_b64 s[{STC}:{STC+1}]
s_add_u32 s{STC}, s{STC}, L_table-.
s_addc_u32 s{STC+1}, s{STC+1}, 0
s_movk_i32 s{STC+2}, 8192
s_mov_b32 s{STC+3}, 0x20000
s_movk_i32 s{sX}, 4096""")
tbl = [tbl] + [[I(f"buffer_load_dwordx4 {vr(vBF+4*i,4)}, v{vL16}, {srd(STC)}, {'0' if i < 4 else 's%d' % sX} offen offset:{1024*(i&3)}")] for i in range(8)]
strip = [I(f"v_accvgpr_read_b32 v{vU}, a{aSTV}"), I(f"v_accvgpr_read_b32 v{vU+1}, a{aSTV}"), I(f"v_accvgpr_read_b32 v{vT1}, a{aSTA}"), I(f"ds_write_b64 v{vT1}, {vr(vU,2)} offset:{STRIP}")]
fq += g[0][:KVF] + flag(0, "kv", vFl2) + g[0][KVF:] + unpark(*PARK.keys()) + strip
fq += g[1][:KVP] + poll_issue(vPa) + g[1][KVP:]
FQ_END = O("fqend", 28)
S1.spread(glue(fq), PC + 3, P2(FQ_END, 0), 2)
if not O("x_notbl", 0): S1.spread(tbl, P2(O("tbl", 9), 0), P2(O("tbl", 9) + 5, 0), 1, one)

def w2_dma(j):
    sl = j % 12
    m0 = (sl // 3) * 24576 + (sl % 3) * 2048
    nd = ["r%d" % (j - 12)]
    if j < 16:
        if j & 3 == 0: so = f"s_add_u32 s{sGp}, s{sRHO}, {j>>2}\ns_and_b32 s{sGp}, s{sGp}, 3\ns_mul_i32 s{sD}, s{sGp}, s{sWS}\ns_add_u32 s{sD}, s{sD}, s{sWB}"
        else: so = f"s_add_u32 s{sD}, s{sD}, 16384"
        vo, S = vDo, SD
    elif j < 22:
        so = f"s_add_u32 s{sD}, s{sWL}, {((j-16)>>1)*98304 + (j&1)*16384}"; vo, S = vDo, SD
    else:
        so = f"s_mov_b32 s{sD}, {(j-22)*16384}"; vo, S = vEo, SO
    return [L(f"s_add_u32 m0, s{sM0D}, {m0}\n{so}") + [dma(vo, S, f"s{sD}", 0, "w%d" % j, need=nd)],
            [dma(vo + 1, S, f"s{sD}", 1024, "w%d" % j, need=nd)]]
KCHK = O("kvchk", 28)
for p in range(3):
    if not O("x_now2", 0): S1.spread(w2_dma(3 * p) + w2_dma(3 * p + 1) + w2_dma(3 * p + 2), P2(8 * p + 6, 1), P2(8 * p + 14, 1) if p < 2 else P2(KCHK, 0), 1, one)
kvdma = []
for k in range(3):
    kvdma.append(L(f"s_add_u32 m0, s{sM0K}, {4096*k}\ns_nop 0") + [dma(vKVo, SWS, f"s{sKV[k]}", 0, "kvl", "sc1")])
    kvdma += [[dma(vKVo, SWS, f"s{sKV[k]}", 1024 * i, "kvl", "sc1")] for i in range(1, 4)]
if not O("x_nokv", 0):
    if not O("x_nochk", 0): S1.put(P2(KCHK, 0), [poll_check("kv", SWS, vPoll, vPa)], 1)
    S1.spread(kvdma, P2(KCHK, 1), NP2, 1, one)
S1.spread(cs_convert(vCS2, vCSw2, CS2, 16), P2(29, 0), P2(30, 0), 2)
S1.put(P2(30, 1), [I(f"ds_read_b128 {vr(vCSA[q],4)}, v{vL16} offset:{CS2+CSTR*q}") for q in range(3)], 0)
if OPT["stamps"] == 9:
    for q in range(16):
        p = OPT["za"] + q * OPT["zs"]
        if p < len(S1.main): S1.pre[p] = stampq((9,)) + S1.pre[p]
E(S1.emit())
stamp((1, 4))
for t in (1, 2, 0):
    acc = vr(ACC2 + 16 * t, 16)
    E(f"{MF} {acc}, {vr(vCSA[t],4)}, {vr(vBx[0],4)}, {acc}")
E(flag(1, "h", vFl2))
E(f"buffer_load_dwordx4 {vr(vXres,4)}, v{vOut}, {srd(SX)}, 0 offen")
E(f"buffer_load_dwordx4 {vr(vXres+4,4)}, v{vOut+1}, {srd(SX)}, 0 offen")
post = w2_dma(9) + w2_dma(10) + w2_dma(11)
gl = gelu_pk(ACC2 + 16, ACC2 + 32, vK[0])
for q in range(6):
    E(gl[len(gl) * q // 6:len(gl) * (q + 1) // 6] + post[q])
E([I(f"v_and_b32 v{ACC2+32+j}, s{sMSK}, v{ACC2+32+j}") for j in range(8)])
E([store4(ACC2 + 32, vHst, f"s{sH2}", 0, "h2"), store4(ACC2 + 36, vHst, f"s{sH2}", 1024, "h2")])
E(scale_pack(ACC2, vQS, vQ, pk=True))
stamp((4, 6))
E(I("s_waitcnt lgkmcnt(0)"))
E(I("s_barrier", need=["kvl"]))
stamp((1, 4, 6))

units = [(i, e) for i in range(9) for e in range(2)]
def kread(u):
    i, e = units[u]
    return [I(f"ds_read_b128 {ar(aK+4*(u&1),4)}, v{vKa} offset:{i*4096+e*1024}")]
def vread(u):
    i, e = units[u]
    o = [I(f"ds_read_b64_tr_b16 {ar(aV+8*(u&1)+4*s+2*n,2)}, v{vVa} offset:{e*1024+s*512+n*256}") for s in range(2) for n in range(2)]
    if e == 1: o.append(I(f"v_add_u32 v{vVa}, v{vVa}, v{vVinc}"))
    return o
def qk(u):
    i, e = units[u]
    c = vr(vBF, 16) if i == 0 else (vr(vBD, 16) if i == 8 else "0")
    return I(f"{MF} {vr(vS[u&1],16)}, {ar(aK+4*(u&1),4)}, {vr(vQ+4*e,4)}, {c}", xr=ar(aV + 8 * (u & 1), 8) if u >= 2 else None)
def pv(u, s):
    i, e = units[u]
    o = vr(vO[e], 16)
    return I(f"{MF} {o}, {ar(aV+8*(u&1)+4*s,4)}, {vr(vP[u&1]+4*s,4)}, {'0' if (i == 0 and s == 0) else o}")
def hload(j, tt):
    pre = []
    if j < 16:
        if tt == 0 and j & 3 == 0: pre = L(f"s_add_u32 s{sA}, s{sRHO}, {j>>2}\ns_and_b32 s{sA}, s{sA}, 3\ns_lshl_b32 s{sA}, s{sA}, 12")
        soff, imm = sA, (j & 3) * 1024
    else:
        if tt == 0 and j == 20: pre = L(f"s_add_u32 s{sAL}, s{sAL}, 4096")
        soff, imm = sAL, ((j - 16) & 3) * 1024
    o = (" offset:%d" % imm) if imm else ""
    return pre + [I(f"buffer_load_dwordx4 {ar(aH+8*j+4*tt,4)}, v{vAo+tt}, {srd(SWS)}, s{soff} offen{o} sc1")]
extra = {u: [] for u in range(18)}
EP, EC = O("ep", 1), O("ec", 4)
LF, LP, LC = O("lf", 3), O("lp", 9), O("lc", 12)
extra[EP].append(poll_issue(vPb))
extra[LF].append(flag(2, "h2", vFl1))
extra[EC].append(poll_check("h", SWS, vPoll, vPb) + L(f"v_and_b32 v{vPb}, -5, v{vPb}\nv_add_u32 v{vPb}, 8192, v{vPb}"))
he = [hload(j, tt) for j in range(16) for tt in range(2)]
hlate = [hload(j, tt) for j in range(16, 22) for tt in range(2)]
EE = O("ee", 15)
for q in range(EE - EC):
    extra[EC + q] += he[len(he) * q // (EE - EC):len(he) * (q + 1) // (EE - EC)]
extra[LP].append(poll_issue(vPb))
extra[LC].append(poll_check("h2", SWS, vPoll, vPb) + L(f"v_add_u32 v{vPb}, 8192, v{vPb}"))
LS = max(LC, EE)
NL = O("nl", 12)
for q in range(18 - LS):
    extra[LS + q] += hlate[NL * q // (18 - LS):NL * (q + 1) // (18 - LS)]
hl_late = hlate[NL:]

E(kread(0) + kread(1) + vread(0))
E(qk(0))
for u in range(18):
    S, P = vS[u & 1], vP[u & 1]
    ex = [I(f"v_exp_f32 v{S+j}, v{S+j}") for j in range(16)]
    cv = [I(f"v_cvt_pk_bf16_f32 v{P+j}, v{S+2*j}, v{S+2*j+1}") for j in range(8)]
    seq = []
    if u + 1 < 18: seq.append(qk(u + 1))
    if u + 2 < 18: seq += kread(u + 2)
    xs = list(extra[u])
    X = lambda q: flat(xs[len(xs) * q // 4:len(xs) * (q + 1) // 4])
    seq += X(0) + ex[0:4]
    if u > 0: seq.append(pv(u - 1, 0))
    seq += ex[4:6] + X(1) + ex[6:8] + cv[0:2]
    if u > 0: seq.append(pv(u - 1, 1))
    seq += ex[8:10] + cv[2:4]
    if u + 1 < 18: seq += vread(u + 1)
    seq += ex[10:12] + X(2) + ex[12:16] + cv[4:6] + X(3) + cv[6:8]
    if u % 2 == 0: seq = stampq((6,)) + seq
    E(seq)
def norm(e):
    o = vO[e]
    t = [f"v_rcp_f32 v{vT0+1}, v{o+8}", "s_nop 0"]
    if e == 0: t += [f"v_mul_f32 v{o+j}, v{o+j}, v{vT0+1}" for j in range(8)]
    else: t += [f"v_pk_mul_f32 {vr(o+j,2)}, {vr(o+j,2)}, {vr(vT0+1,2)} op_sel_hi:[1,0]" for j in range(0, 8, 2)]
    t += [f"v_cvt_pk_bf16_f32 v{o+12+j}, v{o+2*j}, v{o+2*j+1}" for j in range(4)]
    return t
E([pv(17, 0), pv(17, 1)])
E("\n".join(norm(0)))
E(store4(vO[0] + 12, vOst, "0", 0, "o"))
BLO, BHI = fx(2.0 ** -40), fx(2.0 ** 40)
E(f"""
s_mov_b32 s{sT}, {BLO}
s_mov_b32 s{sTb}, {BHI}
v_min_f32 v{vT0}, v{vO[0]+8}, v{vO[1]+8}
v_max_f32 v{vT1}, v{vO[0]+8}, v{vO[1]+8}
v_cmp_nle_f32 vcc, s{sT}, v{vT0}
v_cmp_nge_f32 s[4:5], s{sTb}, v{vT1}
v_cmp_u_f32 s[6:7], v{vO[0]+8}, v{vO[1]+8}
s_or_b64 vcc, vcc, s[4:5]
s_or_b64 vcc, vcc, s[6:7]
s_cbranch_vccnz L_truemax
""")
prog[-1].post = "\nL_att_done:"
E("\n".join(norm(1)))
E(store4(vO[1] + 12, vOst, "0", 1024, "o"))
stamp((6,))
E("s_barrier")
stamp((1, 5, 6))

sa, sb_, sc_, sd_, se_, sf_ = sT, sTb, sTc, sTd, sX, sQ
tm = [f"""
L_truemax:
    s_waitcnt vmcnt(0) lgkmcnt(0)
    s_nop 15
    s_sub_i32 s{sa}, 8, s{sTB}
    s_max_i32 s{sa}, s{sa}, 0
    s_mov_b32 s{sb_}, 0
L_tm_head:
    s_cmp_eq_u32 s{sb_}, 0
    s_cselect_b64 vcc, -1, 0
    s_nop 4
"""]
tm += [f"    v_cndmask_b32 v{vP[1]+j}, v{vQ+4+j}, v{vQ+j}, vcc\n" for j in range(4)]
tm.append(f"""
    v_mov_b32 v{vT0}, 0xff000000
    s_mov_b32 s{sd_}, 0
L_tm_pass:
    s_mov_b32 s{sc_}, s{sa}
""")
tm += [f"    v_mov_b32 v{vS[1]+j}, 0\n" for j in range(16)]
tm.append(f"""
L_tm_blk:
    s_lshl_b32 s{se_}, s{sc_}, 12
    s_lshl_b32 s{sf_}, s{sb_}, 10
    s_add_u32 s{se_}, s{se_}, s{sf_}
    v_add_u32 v{vT1}, s{se_}, v{vKa}
    ds_read_b128 {ar(aK,4)}, v{vT1}
    s_sub_u32 s{se_}, 9, s{sc_}
    v_mul_lo_u32 v{vT2}, s{se_}, v{vVinc}
    v_sub_u32 v{vT2}, v{vVa}, v{vT2}
    v_add_u32 v{vT2}, s{sf_}, v{vT2}
    ds_read_b64_tr_b16 {ar(aV,2)}, v{vT2}
    ds_read_b64_tr_b16 {ar(aV+2,2)}, v{vT2} offset:256
    ds_read_b64_tr_b16 {ar(aV+4,2)}, v{vT2} offset:512
    ds_read_b64_tr_b16 {ar(aV+6,2)}, v{vT2} offset:768
    s_waitcnt lgkmcnt(0)
    s_cmp_eq_u32 s{sc_}, 0
    s_cbranch_scc1 L_tm_far
    s_cmp_eq_u32 s{sc_}, 8
    s_cbranch_scc1 L_tm_diag
    {MF} {vr(vS[0],16)}, {ar(aK,4)}, {vr(vP[1],4)}, 0
    s_branch L_tm_s
L_tm_far:
    {MF} {vr(vS[0],16)}, {ar(aK,4)}, {vr(vP[1],4)}, {vr(vBF,16)}
    s_branch L_tm_s
L_tm_diag:
    {MF} {vr(vS[0],16)}, {ar(aK,4)}, {vr(vP[1],4)}, {vr(vBD,16)}
L_tm_s:
    s_nop 15
    s_cmp_eq_u32 s{sd_}, 0
    s_cbranch_scc0 L_tm_exp
""")
tm += [f"    v_max_f32 v{vT0}, v{vT0}, v{vS[0]+j}\n" for j in range(16)]
tm.append("    s_branch L_tm_next\nL_tm_exp:\n")
tm += [f"    v_sub_f32 v{vS[0]+j}, v{vS[0]+j}, v{vT0}\n" for j in range(16)]
tm += [f"    v_exp_f32 v{vS[0]+j}, v{vS[0]+j}\n" for j in range(16)]
tm.append("    s_nop 1\n")
tm += [f"    v_cvt_pk_bf16_f32 v{vP[0]+j}, v{vS[0]+2*j}, v{vS[0]+2*j+1}\n" for j in range(8)]
tm.append(f"""
    s_nop 1
    {MF} {vr(vS[1],16)}, {ar(aV,4)}, {vr(vP[0],4)}, {vr(vS[1],16)}
    {MF} {vr(vS[1],16)}, {ar(aV+4,4)}, {vr(vP[0]+4,4)}, {vr(vS[1],16)}
    s_nop 15
L_tm_next:
    s_add_u32 s{sc_}, s{sc_}, 1
    s_cmp_lt_u32 s{sc_}, 9
    s_cbranch_scc1 L_tm_blk
    s_cmp_eq_u32 s{sd_}, 0
    s_cbranch_scc0 L_tm_fin
    v_mov_b32 v{vT1}, v{vT0}
    s_nop 1
    v_permlane32_swap_b32 v{vT0}, v{vT1}
    s_nop 1
    v_max_f32 v{vT0}, v{vT0}, v{vT1}
    s_mov_b32 s{sd_}, 1
    s_branch L_tm_pass
L_tm_fin:
    s_cmp_eq_u32 s{sb_}, 0
    s_cbranch_scc0 L_tm_h1
""")
tm += [f"    v_mov_b32 v{vO[0]+j}, v{vS[1]+j}\n" for j in range(16)]
tm.append(f"    s_mov_b32 s{sb_}, 1\n    s_branch L_tm_head\nL_tm_h1:\n")
tm += [f"    v_mov_b32 v{vO[1]+j}, v{vS[1]+j}\n" for j in range(16)]
tm += ["    " + x + "\n" for x in norm(0)]
tm.append(f"    s_nop 1\n    buffer_store_dwordx4 {vr(vO[0]+12,4)}, v{vOst}, {srd(SWS)}, 0 offen sc1\n    s_waitcnt vmcnt(0)\n    s_branch L_att_done\n")
rare.append("".join(tm))

def w2_reads(j):
    sl = j % 12
    base = (sl // 3) * 24576 + (sl % 3) * 2048
    o = []
    for ct in range(2):
        for n in range(2):
            off = base + n * 1024 + ct * 256
            reg = vW3r if off < 49152 else vW3r + 1
            off = off if off < 49152 else off - 49152
            o.append(I(f"ds_read_b64_tr_b16 {ar(aW2+8*(j&1)+4*ct+2*n,2)}, v{reg} offset:{off}", need=["w%d" % j], tag="r%d" % j))
    return o
def oload(j2, tt):
    imm = (j2 & 3) * 1024
    o = (" offset:%d" % imm) if imm else ""
    return [I(f"buffer_load_dwordx4 {vr(vOF+8*j2+4*tt,4)}, v{vOo+tt}, {srd(SWS)}, {'0' if j2 < 4 else 's%d' % sA} offen{o} sc1")]
OF, OP, OC = O("oflag", 6), O("opoll", 12), O("ochk", 17)
E(w2_reads(0))
S3 = Sched()
order = [(j, ct, tt) for j in range(28) for ct in range(2) for tt in range(2)]
order += [(j, ct, tt) for tt in range(2) for j in (28, 29) for ct in range(2)]
for n, (j, ct, tt) in enumerate(order):
    acc = ar(aACC + 32 * ct + 16 * tt, 16)
    bb = ar(aH + 8 * j + 4 * tt, 4) if j < 22 else vr(vOF + 8 * (j - 22) + 4 * tt, 4)
    xr = ar(aW2 + 8 * (j & 1), 8) if (ct == 0 and tt == 0) else None
    S3.pos(I(f"{MF} {acc}, {ar(aW2+8*(j&1)+4*ct,4)}, {bb}, {'0' if j == 0 else acc}", xr=xr), 6, stampq((5,)) if (n % 12 == 0) else [])
for j in range(30):
    if j + 1 < 29: S3.spread(w2_reads(j + 1), 4 * j, 4 * j + 2, 0)
    if j + 12 < 30:
        g = w2_dma(j + 12); S3.put(4 * j + 1, [g[0]], 1); S3.put(4 * j + 3, [g[1]], 1)
S3.put(4 * 28, w2_reads(29), 0)
if hl_late: S3.spread(hl_late, 0, 16, 1, one)
S3.put(4 * OF, [flag(3, "o", vFl1)], 1)
S3.put(4 * OP, [poll_issue(vPb)], 1)
S3.put(4 * OC, [poll_check("o", SWS, vPoll, vPb) + L(f"s_movk_i32 s{sA}, 4096")], 1)
S3.spread([oload(j2, tt) for j2 in range(8) for tt in range(2)], 4 * OC + 1, 4 * O("oend", 23), 1, one)
S3.spread(L("\n".join(f"v_xor_b32 v{vU+i}, {32*i}, v{vRw}" for i in range(4)) + f"\nv_xor_b32 v{vU+4}, 16, v{vRr}"), 4, 8, 2)
def pwrite(ct, tt): return [I(f"ds_write_b128 v{vU+i}, {ar(aACC+32*ct+16*tt+4*i,4)} offset:{tt*8192+ct*128}") for i in range(4)]
S3.put(118, pwrite(0, 0), 0)
S3.put(119, pwrite(1, 0), 0)
E(S3.emit())
stamp((1, 5))
E(pwrite(0, 1) + pwrite(1, 1))
R0 = 128
for rho in range(2):
    for j in range(4):
        E(f"v_lshlrev_b32 v{R0+64+8*rho+2*j}, 16, v{vXres+4*rho+j}\nv_and_b32 v{R0+65+8*rho+2*j}, 0xffff0000, v{vXres+4*rho+j}")
E("s_waitcnt lgkmcnt(0)\ns_barrier")
for rho in range(2):
    for p in range(4):
        for n in range(2):
            E(f"ds_read_b128 {vr(R0+32*rho+8*p+4*n,4)}, v{vRr if n == 0 else vU+4} offset:{p*16384+rho*2048}")
for rho in range(2):
    b = R0 + 32 * rho; x = R0 + 64 + 8 * rho
    for p in range(4):
        for j in range(0, 8, 2): E(f"v_pk_add_f32 {vr(x+j,2)}, {vr(x+j,2)}, {vr(b+8*p+j,2)}")
    for j in range(4): E(f"v_cvt_pk_bf16_f32 v{b+j}, v{x+2*j}, v{x+2*j+1}")
    E(f"buffer_store_dwordx4 {vr(b,4)}, v{vOut+rho}, {srd(SOUT)}, 0 offen sc1")
if OPT["stamps"]:
    stamp()
    E(f"s_waitcnt vmcnt(0)")
    stamp((1, 2, 3, 4, 5, 6, 9))
    E(f"s_lshl_b32 s{sT}, s2, 2\ns_add_u32 s{sT}, s{sT}, s{sW}\ns_lshl_b32 s{sT}, s{sT}, 7\ns_add_u32 s{sT}, s{sT}, {ST0}\nv_mov_b32 v{vT0}, s{sT}")
    for k in range(nstamp[0]):
        E(f"v_mov_b32 v{vT1}, s{STREG[k]}\nbuffer_store_dword v{vT1}, v{vT0}, {srd(SWS)}, 0 offen offset:{4*k}")
if O("xf", 0):
    E("s_waitcnt vmcnt(0)"); stamp()
    E(("s_sub_u32 s90, s90, s92\ns_lshr_b32 s90, s90, 3" if O("xfc", 0) else "s_sub_u32 s90, s90, s88\ns_lshl_b32 s90, s90, 2") + "\ns_add_u32 s90, s90, 4000\nL_es:\ns_memrealtime s[4:5]\ns_waitcnt lgkmcnt(0)\ns_sub_u32 s4, s4, s88\ns_cmp_lt_u32 s4, s90\ns_cbranch_scc1 L_es")
E("L_end:\ns_endpgm")

lines = finalize(prog, verbose=True)
tab = []
for i in range(8):
    for l in range(64):
        w = []
        for q in range(4):
            r = 4 * i + q; j = r & 15
            key = 8 * (j >> 2) + 4 * (l >> 5) + (j & 3)
            allowed = (key > (l & 31)) if r < 16 else (key <= (l & 31))
            w.append("0" if allowed else "0xff000000")
        tab.append("    .long " + ", ".join(w))
hdr = f"""; Fused LayerNorm + QKV/gate/up GEMM + sliding-window attention + GEGLU + down/out projection.
; @launch grid=(256,1,1) block=(256,1,1) lds={LDSSZ}
.amdgcn_target "amdgcn-amd-amdhsa--gfx950"
.text
.globl {KNAME}
.p2align 8
.type {KNAME},@function
{KNAME}:
"""
tail = f"""
.p2align 7
.type L_table,@object
L_table:
""" + "\n".join(tab) + f"""
L_table_end:
.size L_table, L_table_end-L_table
.section .rodata,"a"
.p2align 6
.amdhsa_kernel {KNAME}
  .amdhsa_next_free_vgpr 512
  .amdhsa_next_free_sgpr 102
  .amdhsa_accum_offset 256
  .amdhsa_group_segment_fixed_size 0
  .amdhsa_kernarg_size 80
  .amdhsa_user_sgpr_count 2
  .amdhsa_user_sgpr_kernarg_segment_ptr 1
  .amdhsa_system_sgpr_workgroup_id_x 1
.end_amdhsa_kernel
"""
open(sys.argv[1], "w").write(hdr + "\n".join(lines) + "\n" + "".join(rare) + tail)
```

```python
import sys, math, struct
from asmlib import I, Ins, finalize, weave, Sched

KNAME = "parallel_sum__sliding_block__glu_gated_geglu__prompt_kernel"
OPT = dict(stamps=0, spin=200000)
for a in sys.argv[2:]:
    k, v = a.split("="); OPT[k] = int(v)
def O(k, d): return OPT.get(k, d)

HUGE = 0x40000000
H0 = 4 << 20
HSTR = 88 * 1024
O0 = 10 << 20
FL0 = 12 << 20
ST0 = FL0 + (64 << 10)
WSSZ = 13 << 20
WB = 65536
CS1 = 0; C1STR = 520
STX = 8704
STRIP = 49152
CS2 = 53248; CSTR = 1040
LDSSZ = 163840

STC = 4
sKV = [8, 9, 10]; sRHO, sWB, sWS, sAL, sWL, sMSK, sGp = 11, 12, 13, 14, 15, 16, 17
SX, SQ, SG, SU, SD, SO, SOUT, SWS, SDBG = 24, 28, 32, 36, 40, 44, 48, 52, 56
sW, sRB, sCB, sTB2, sNB, sT0, sT2, sH2, sTB = 3, 60, 61, 62, 63, 64, 65, 66, 67
sX, sQ, sG, sM0X, sM0W = 68, 69, 70, 71, 72
sT, sTb, sTc, sTd = 73, 74, 75, 76
sPK, sPH, sM0D, sD, sSPIN = 77, 78, 80, 81, 82
sPHI, sPH2, sC, sHUGE, sA = 83, 84, 85, 86, 87
sM0K = 79
STREG = list(range(90, 102)) + list(range(18, 24))
def srd(n): return "s[%d:%d]" % (n, n + 3)
def vr(a, n): return "v[%d:%d]" % (a, a + n - 1)
def ar(a, n): return "a[%d:%d]" % (a, a + n - 1)

vL = 0; vT0, vT1, vT2 = 1, 2, 3
vXo = 4; vQo = 8; vGo = 10; vXr = 12; vXp = 16; vWr = 20; vQo2 = 28; vGo2 = 30; vW2r = 32
vSum = 40; vCS1 = 44; vCS2 = 48
vL16, vKVst, vHst, vFl2, vCSw1, vCSw2, vPoll, vInit, vCSr, vStx, vDo = 52, 53, 54, 55, 56, 57, 58, 59, 60, 61, 62
ACC1 = 64; ACC2 = 160
vXT = 208; vU = 224; vG = 232; vCSA = [240, 244, 220]
vK = [248, 252]
vBx = [208, 212]; vQS = 216
PARK = dict(Ka=4, Va=5, Vinc=6, Ost=7, KVo=8, Pa=9, Pb=10, W3r=11, W3s=12, Out=13, Out1=14, Eo=15, Eo1=16, Ao=17, Ao1=18, Oo=19, Oo1=20, Fl1=21, Rw=22, Rr=23)
aPARK = 200; aSTV, aSTA = 220, 221
vKa, vVa, vVinc, vOst, vKVo, vPa, vPb, vW3r = [PARK[k] for k in ("Ka", "Va", "Vinc", "Ost", "KVo", "Pa", "Pb", "W3r")]
vOut, vEo, vAo, vOo, vFl1, vRw, vRr = [PARK[k] for k in ("Out", "Eo", "Ao", "Oo", "Fl1", "Rw", "Rr")]
vXres = 24
vBF = 64; vBD = 80; vS = [96, 112]; vP = [128, 136]; vQ = 144; vO = [208, 224]
vOF = 64
aX = 0; aSEL = 128; aXP = 140; aWF = 152
aH = 0; aW2 = 176; aACC = 192; aK = 192; aV = 200

prog = []; rare = []
def L(txt, **kw): return [I(ln.strip(), **kw) for ln in txt.strip().split("\n") if ln.strip() and not ln.strip().startswith(";")]
def E(x, **kw):
    if isinstance(x, str): prog.extend(L(x, **kw))
    elif isinstance(x, Ins): prog.append(x)
    else: prog.extend(x)
def flat(g): return [x for y in g for x in y]
one = lambda g: 1
nstamp = [0]; xfc = [0]
TIMER = "s_memrealtime" if O("rt", 0) else "s_memtime"
def stampq(sets=(1,)):
    if O("xf", 0):
        if 1 in sets:
            xfc[0] += 1
            if xfc[0] == OPT["xf"]: return L("s_waitcnt lgkmcnt(0)\n%s s[90:91]\ns_waitcnt lgkmcnt(0)" % ("s_memtime" if O("xfc", 0) else "s_memrealtime"))
        return []
    if OPT["stamps"] in sets:
        k = nstamp[0]; nstamp[0] += 1
        return L("s_waitcnt lgkmcnt(0)\n%s s[88:89]\ns_waitcnt lgkmcnt(0)\ns_mov_b32 s%d, s88" % (TIMER, STREG[k]))
    return []
def stamp(sets=(1,)): E(stampq(sets))
def fx(f): return "0x%08x" % struct.unpack("<I", struct.pack("<f", f))[0]
MF = "v_mfma_f32_32x32x16_bf16"; MS = "v_mfma_f32_16x16x32_bf16"
def park(name, src): return f"v_accvgpr_write_b32 a{aPARK + PARK[name] - 4}, {src}\n"
def dma(voff, S, soff, imm, tag, flags="", need=None):
    o = (" offset:%d" % imm) if imm else ""
    return I(f"buffer_load_dwordx4 v{voff}, {srd(S)}, {soff} offen{o} {flags} lds", tag=tag, need=need)
def glue(q):
    out = []; cur = []
    for n, x in enumerate(q):
        cur.append(x)
        nxt = q[n + 1] if n + 1 < len(q) else None
        if x.op.startswith("s_cmp") or (nxt is not None and nxt.op.startswith("s_cselect")): continue
        out.append(cur); cur = []
    if cur: out.append(cur)
    return out

E("""
s_cmp_ge_u32 s2, 256
s_cbranch_scc1 L_end
s_load_dwordx4 s[4:7], s[0:1], 0
s_load_dwordx2 s[8:9], s[0:1], 16
s_load_dwordx4 s[12:15], s[0:1], 32
s_load_dwordx4 s[16:19], s[0:1], 48
s_load_dwordx4 s[20:23], s[0:1], 64
""")
if OPT["stamps"]: E(TIMER + " s[88:89]")
if O("xf", 0): E("s_memrealtime s[88:89]\ns_memtime s[92:93]")
def ctouch(vtid):
    return L(f"""s_getpc_b64 s[40:41]
s_mov_b32 s42, L_table_end-.
s_mov_b32 s43, 0x20000
s_lshr_b32 s44, s2, 3
s_lshl_b32 s44, s44, 11
v_and_b32 v{vU}, 15, v{vtid}
v_lshrrev_b32 v{vU+1}, 4, v{vtid}
v_lshlrev_b32 v{vU}, 7, v{vU}
v_lshl_add_u32 v{vU}, v{vU+1}, 24, v{vU}
buffer_load_dword v{vXT+6}, v{vU}, s[40:43], s44 offen""")
if O("ctouch", 1) == 1: E(ctouch(0))
else: E(f"v_mov_b32 v{vU+2}, v0")
E(f"""
v_lshrrev_b32 v{vT0}, 6, v0
v_and_b32 v{vL}, 63, v0
v_readfirstlane_b32 s{sW}, v{vT0}
s_and_b32 s{sT}, s2, 7
s_lshr_b32 s{sTb}, s2, 3
s_lshr_b32 s{sTc}, s{sT}, 2
s_lshl_b32 s{sRB}, s{sTc}, 3
s_and_b32 s{sTd}, s{sTb}, 7
s_add_u32 s{sRB}, s{sRB}, s{sTd}
s_and_b32 s{sCB}, s{sT}, 3
s_lshl_b32 s{sCB}, s{sCB}, 2
s_lshr_b32 s{sTd}, s{sTb}, 3
s_add_u32 s{sCB}, s{sCB}, s{sTd}
s_lshl_b32 s{sTB2}, s{sT}, 2
s_and_b32 s{sTd}, s{sTb}, 3
s_add_u32 s{sTB2}, s{sTB2}, s{sTd}
s_lshr_b32 s{sNB}, s{sTb}, 2
""")
if O("phi", 1) == 1: E(f"s_lshl_b32 s{sPHI}, s{sCB}, 1\ns_add_u32 s{sPHI}, s{sPHI}, s{sRB}\ns_and_b32 s{sPHI}, s{sPHI}, 7")
else: E(f"s_add_u32 s{sPHI}, s{sCB}, s{sRB}\ns_and_b32 s{sPHI}, s{sPHI}, 3\ns_lshl_b32 s{sPHI}, s{sPHI}, 1")
E(f"""
s_lshl_b32 s{sTB}, s{sRB}, 2
s_add_u32 s{sTB}, s{sTB}, s{sW}
s_mul_i32 s{sT0}, s{sCB}, 3
s_lshl_b32 s{sT}, s{sCB}, 1
s_add_u32 s{sT}, s{sT}, 11
s_cmp_lt_u32 s{sCB}, 11
s_cselect_b32 s{sT0}, s{sT0}, s{sT}
s_lshl_b32 s{sM0X}, s{sW}, 12
s_lshl_b32 s{sM0W}, s{sW}, 11
s_add_u32 s{sM0W}, s{sM0W}, {WB}
s_lshl_b32 s{sT}, s{sTB}, 15
v_lshrrev_b32 v{vT0}, 3, v{vL}
v_lshlrev_b32 v{vT0}, 10, v{vT0}
v_add_u32 v{vT0}, s{sT}, v{vT0}
v_and_b32 v{vT1}, 7, v{vL}
v_lshrrev_b32 v{vT2}, 4, v{vL}
v_xor_b32 v{vT1}, v{vT1}, v{vT2}
v_lshl_add_u32 v{vXo}, v{vT1}, 4, v{vT0}
v_xor_b32 v{vT1}, 4, v{vT1}
v_lshl_add_u32 v{vXo+1}, v{vT1}, 4, v{vT0}
v_add_u32 v{vXo+1}, {7*1024}, v{vXo+1}
v_add_u32 v{vXo+2}, {14*1024}, v{vXo}
v_add_u32 v{vXo+3}, {14*1024}, v{vXo+1}
v_lshrrev_b32 v{vT0}, 5, v{vL}
v_bfe_u32 v{vT1}, v{vL}, 2, 2
v_lshl_add_u32 v{vT0}, v{vT0}, 2, v{vT1}
v_bfe_u32 v{vT1}, v{vL}, 4, 1
v_and_b32 v{vT2}, 3, v{vL}
v_lshlrev_b32 v{vT2}, 4, v{vT2}
v_lshl_add_u32 v{vT1}, v{vT1}, 6, v{vT2}
v_lshl_add_u32 v{vDo}, v{vT0}, 10, v{vT1}
s_lshl_b32 s{sT}, s{sW}, 4
v_add_u32 v{vT0}, s{sT}, v{vT0}
s_and_b32 s{sT}, s{sCB}, 1
s_add_u32 s{sT}, s{sT}, 1
s_lshl_b32 s{sT}, s{sT}, 10
s_lshr_b32 s{sTb}, s{sCB}, 1
s_lshl_b32 s{sTb}, s{sTb}, 7
s_add_u32 s{sT}, s{sT}, s{sTb}
v_mul_u32_u24 v{vQo}, 3072, v{vT0}
v_add3_u32 v{vQo}, v{vQo}, v{vT1}, s{sT}
v_add_u32 v{vQo+1}, {8*3072-1024}, v{vQo}
s_lshl_b32 s{sT}, s{sT0}, 6
v_mul_u32_u24 v{vGo}, 2752, v{vT0}
v_add3_u32 v{vGo}, v{vGo}, v{vT1}, s{sT}
v_add_u32 v{vGo+1}, {8*2752-1024}, v{vGo}
""")
def mksrd(n, p, size): return f"s_mov_b32 s{n}, s{p}\ns_mov_b32 s{n+1}, s{p+1}\ns_mov_b32 s{n+2}, {size}\ns_mov_b32 s{n+3}, 0x20000\n"
E(mksrd(SX, 4, 2097152) + mksrd(SQ, 6, 1572864) + mksrd(SG, 12, 1409024) + mksrd(SU, 14, 1409024))
if OPT["stamps"]:
    E("s_mov_b32 s%d, s88" % STREG[0]); nstamp[0] = 1

def p1_dma(c):
    sl = c & 3; t = "c%d" % c
    g = []
    g.append(L(f"s_add_u32 s{sC}, s{sPHI}, {c}\ns_and_b32 s{sC}, s{sC}, 7\ns_add_u32 m0, s{sM0X}, {sl*16384}\ns_lshl_b32 s{sX}, s{sC}, 7") + [dma(vXo, SX, f"s{sX}", 0, t)])
    g += [[dma(vXo + i, SX, f"s{sX}", 1024 * i, t)] for i in range(1, 4)]
    g.append(L(f"s_add_u32 m0, s{sM0W}, {sl*24576}\ns_mul_i32 s{sQ}, s{sC}, 196608") + [dma(vQo, SQ, f"s{sQ}", 0, t)])
    g.append([dma(vQo + 1, SQ, f"s{sQ}", 1024, t), I(f"s_add_u32 m0, s{sM0W}, {sl*24576+8192}")])
    g.append(L(f"s_mul_i32 s{sG}, s{sC}, 176128") + [dma(vGo, SG, f"s{sG}", 0, t)])
    g.append([dma(vGo + 1, SG, f"s{sG}", 1024, t), I(f"s_add_u32 m0, s{sM0W}, {sl*24576+16384}")])
    g.append([dma(vGo, SU, f"s{sG}", 0, t)])
    g.append([dma(vGo + 1, SU, f"s{sG}", 1024, t)])
    return g
def p2_dma(p):
    t = "p%d" % p
    g = []
    g.append(L(f"s_add_u32 s{sC}, s{sPH2}, {2*p}\ns_and_b32 s{sC}, s{sC}, 7\ns_add_u32 m0, s{sM0W}, {p*24576}\ns_mul_i32 s{sQ}, s{sC}, 196608") + [dma(vQo2, SQ, f"s{sQ}", 0, t)])
    g.append([dma(vQo2 + 1, SQ, f"s{sQ}", 1024, t), I(f"s_add_u32 m0, s{sM0W}, {p*24576+8192}")])
    g.append(L(f"s_mul_i32 s{sG}, s{sC}, 176128") + [dma(vGo2, SG, f"s{sG}", 0, t)])
    g.append([dma(vGo2 + 1, SG, f"s{sG}", 1024, t), I(f"s_add_u32 m0, s{sM0W}, {p*24576+16384}")])
    g.append([dma(vGo2, SU, f"s{sG}", 0, t)])
    g.append([dma(vGo2 + 1, SU, f"s{sG}", 1024, t)])
    return g

stamp((2,))
if O("tlb", 0):
    E(f"""s_cmp_eq_u32 s{sW}, 1
s_cselect_b32 s44, s{SQ}, s{SX}
s_cselect_b32 s45, s{SQ+1}, s{SX+1}
s_cmp_eq_u32 s{sW}, 2
s_cselect_b32 s44, s{SG}, s44
s_cselect_b32 s45, s{SG+1}, s45
s_cmp_eq_u32 s{sW}, 3
s_cselect_b32 s44, s{SU}, s44
s_cselect_b32 s45, s{SU+1}, s45
s_mov_b32 s46, 1409024
s_mov_b32 s47, 0x20000
v_lshlrev_b32 v{vT0}, {O("tlbs", 24)}, v{vL}
buffer_load_dword v{vXT+7}, v{vT0}, s[44:47], 0 offen""")
g0 = p1_dma(0)
CT = O("ctouch", 1)
if CT >= 2: E(flat(g0[:CT - 1]) + ctouch(vU + 2) + flat(g0[CT - 1:]))
else: E(flat(g0))
stamp((2,))
init_mark = len(prog)
E(mksrd(SD, 16, 1409024) + mksrd(SO, 8, 524288) + mksrd(SOUT, 18, 2097152) + mksrd(SWS, 22, WSSZ) + mksrd(SDBG, 20, 256))
E(f"""
s_mov_b32 s{sHUGE}, {HUGE}
v_lshlrev_b32 v{vL16}, 4, v{vL}
s_lshr_b32 s{sPH2}, s{sW}, 1
s_add_u32 s{sPH2}, s{sPH2}, s{sPHI}
s_cmp_lt_u32 s{sCB}, 11
s_cselect_b32 s{sT}, 2, 1
s_cselect_b32 s{sMSK}, 0, s{sHUGE}
s_add_u32 s{sT2}, s{sT0}, s{sT}
""")
w2touch = L(f"""s_mul_i32 s{sT}, s2, 3
s_add_u32 s{sT}, s{sT}, s{sW}
s_mov_b32 s{STC+3}, 0x20000
s_cmp_eq_u32 s{sW}, 3
s_cselect_b32 s{sT}, s2, s{sT}
s_cselect_b32 s{STC}, s{SO}, s{SD}
s_cselect_b32 s{STC+1}, s{SO+1}, s{SD+1}
s_cselect_b32 s{STC+2}, s{SO+2}, s{SD+2}
s_lshl_b32 s{sT}, s{sT}, 11
v_and_b32 v{vT0}, 15, v{vL}
v_lshlrev_b32 v{vT0}, 7, v{vT0}
v_lshrrev_b32 v{vT1}, 4, v{vL}
v_lshl_add_u32 v{vT0}, v{vT1}, 28, v{vT0}
buffer_load_dword v{vPoll}, v{vT0}, {srd(STC)}, s{sT} offen sc1""")
if O("w2t", 4) == 0: E(w2touch)
E(f"""
s_cmp_lg_u32 s2, 0
s_cselect_b32 s{sT}, s{sHUGE}, 0
s_lshl_b32 s{sTb}, s{sW}, 13
s_add_u32 s{sTb}, s{sTb}, {FL0}
s_add_u32 s{sT}, s{sT}, s{sTb}
s_add_u32 s{sTb}, s{sT}, 4096
v_mov_b32 v{vXT}, 0
v_mov_b32 v{vXT+1}, 0
v_mov_b32 v{vXT+2}, 0
v_mov_b32 v{vXT+3}, 0
s_cbranch_scc0 L_zero
""")
prog[-1].post = "\nL_zero_done:"
prog.pop()
E(f"s_cmp_eq_u32 s2, 0\ns_cbranch_scc1 L_zero"); prog[-1].post = "\nL_zero_done:"
rare.append("\nL_zero:\n" + "".join(f"    buffer_store_dwordx4 {vr(vXT,4)}, v{vL16}, {srd(SWS)}, s{sT if i < 4 else sTb} offen offset:{1024*(i&3)} sc1\n" for i in range(8)) + "    s_waitcnt vmcnt(0)\n    s_branch L_zero_done\n")

E(f"""
v_and_b32 v{vT0}, 31, v{vL}
v_lshrrev_b32 v{vT1}, 5, v{vL}
v_bfe_u32 v{vT2}, v{vL}, 1, 3
v_xor_b32 v{vT2}, v{vT2}, v{vT1}
v_lshlrev_b32 v{vT0}, 7, v{vT0}
v_lshl_add_u32 v{vT0}, v{vT2}, 4, v{vT0}
v_add_u32 v{vT0}, s{sM0X}, v{vT0}
""")
for s in range(4):
    E(f"s_xor_b32 s{sT}, s{sW}, {s}\ns_lshl_b32 s{sT}, s{sT}, 5\nv_xor_b32 v{vXr+s}, s{sT}, v{vT0}\nv_xor_b32 v{vXp+s}, 4096, v{vXr+s}")
E(f"""
v_bfe_u32 v{vT2}, v{vL}, 2, 2
v_lshlrev_b32 v{vT2}, 6, v{vT2}
v_bfe_u32 v{vT0}, v{vL}, 4, 1
v_lshl_add_u32 v{vT2}, v{vT0}, 5, v{vT2}
v_and_b32 v{vT0}, 3, v{vL}
v_lshl_add_u32 v{vT2}, v{vT0}, 3, v{vT2}
v_lshl_add_u32 v{vT0}, v{vT1}, 10, v{vT2}
v_lshl_add_u32 v{vT2}, v{vT1}, 9, v{vT2}
s_and_b32 s{sTc}, s{sW}, 1
s_lshl_b32 s{sTc}, s{sTc}, 8
s_add_u32 s{sTc}, s{sTc}, {WB}
s_mul_i32 s{sT}, s{sW}, 6144
s_add_u32 s{sM0D}, s{sT}, {WB}
v_add_u32 v{vT1}, s{sM0D}, v{vT2}
{park("W3r", f"v{vT1}")}v_add_u32 v{vT1}, 49152, v{vT1}
{park("W3s", f"v{vT1}")}
""")
for s in range(4):
    E(f"""
s_xor_b32 s{sT}, s{sW}, {s}
s_lshl_b32 s{sTb}, s{sT}, 11
s_add_u32 s{sTb}, s{sTb}, s{sTc}
v_add_u32 v{vWr+2*s}, s{sTb}, v{vT0}
v_add_u32 v{vWr+2*s+1}, 49152, v{vWr+2*s}
s_lshl_b32 s{sTb}, s{sT}, 10
s_add_u32 s{sTb}, s{sTb}, {WB}
v_add_u32 v{vW2r+2*s}, s{sTb}, v{vT2}
v_add_u32 v{vW2r+2*s+1}, 49152, v{vW2r+2*s}
""")
E(f"""
v_lshrrev_b32 v{vT0}, 2, v{vL}
s_and_b32 s{sT}, s{sW}, 1
s_lshl_b32 s{sT}, s{sT}, 5
v_add_u32 v{vT0}, s{sT}, v{vT0}
v_and_b32 v{vT1}, 3, v{vL}
v_lshlrev_b32 v{vT1}, 4, v{vT1}
s_lshl_b32 s{sT}, s{sCB}, 6
v_mul_u32_u24 v{vQo2}, 3072, v{vT0}
v_add3_u32 v{vQo2}, v{vQo2}, v{vT1}, s{sT}
v_add_u32 v{vQo2+1}, {16*3072-1024}, v{vQo2}
s_lshl_b32 s{sT}, s{sT2}, 6
v_mul_u32_u24 v{vGo2}, 2752, v{vT0}
v_add3_u32 v{vGo2}, v{vGo2}, v{vT1}, s{sT}
v_add_u32 v{vGo2}, s{sMSK}, v{vGo2}
v_add_u32 v{vGo2+1}, {16*2752-1024}, v{vGo2}
v_and_b32 v{vT0}, 15, v{vL}
v_bfe_u32 v{vT1}, v{vL}, 4, 1
v_sub_u32 v{vT0}, v{vT0}, v{vT1}
v_mov_b32 v{vT1}, 0x3f803f80
""")
for t in range(3):
    E(f"v_cmp_eq_u32 vcc, {2*t}, v{vT0}\nv_cndmask_b32 v{vT2}, 0, v{vT1}, vcc")
    E("\n".join(f"v_accvgpr_write_b32 a{aSEL+4*t+j}, v{vT2}" for j in range(4)))
E(f"""
s_lshl_b32 s{sT}, s{sRB}, 2
s_sub_i32 s{sT}, 8, s{sT}
v_and_b32 v{vT0}, 15, v{vL}
v_cmp_le_i32 vcc, s{sT}, v{vT0}
v_cndmask_b32 v{vT2}, 0, v{vT1}, vcc
v_accvgpr_write_b32 a{aSTV}, v{vT2}
v_lshlrev_b32 v{vT0}, 3, v{vL}
s_lshl_b32 s{sT}, s{sW}, 9
v_add_u32 v{vT1}, s{sT}, v{vT0}
v_accvgpr_write_b32 a{aSTA}, v{vT1}
s_and_b32 s{sTc}, s{sW}, 1
s_mul_i32 s{sT}, s{sTc}, {8*C1STR}
v_add_u32 v{vCSr}, s{sT}, v{vT0}
s_lshr_b32 s{sTb}, s{sW}, 1
s_lshl_b32 s{sTd}, s{sTb}, 8
s_add_u32 s{sT}, s{sT}, s{sTd}
v_bfe_u32 v{vT0}, v{vL}, 1, 3
v_and_b32 v{vT1}, 1, v{vL}
v_lshrrev_b32 v{vT2}, 4, v{vL}
v_lshl_add_u32 v{vT1}, v{vT1}, 2, v{vT2}
v_mul_u32_u24 v{vT2}, {C1STR}, v{vT0}
v_lshl_add_u32 v{vT2}, v{vT1}, 5, v{vT2}
v_add_u32 v{vCSw1}, s{sT}, v{vT2}
s_lshl_b32 s{sT}, s{sTb}, 9
s_lshl_b32 s{sTd}, s{sTc}, 3
s_add_u32 s{sT}, s{sT}, s{sTd}
v_mul_u32_u24 v{vT2}, {CSTR}, v{vT0}
v_lshl_add_u32 v{vT2}, v{vT1}, 6, v{vT2}
v_add_u32 v{vCSw2}, s{sT}, v{vT2}
v_and_b32 v{vT0}, 31, v{vL}
v_lshlrev_b32 v{vT1}, 3, v{vT0}
s_lshl_b32 s{sT}, s{sW}, 8
v_add_u32 v{vStx}, s{sT}, v{vT1}
v_lshrrev_b32 v{vT1}, 5, v{vL}
v_lshl_add_u32 v{vT0}, v{vT0}, 1, v{vT1}
v_lshlrev_b32 v{vT0}, 4, v{vT0}
v_add_u32 v{vT0}, 2048, v{vT0}
s_and_b32 s{sT}, s{sCB}, 1
s_cmp_eq_u32 s{sT}, 1
s_cselect_b64 vcc, -1, 0
v_cndmask_b32 v{vKVst}, v{vL16}, v{vT0}, vcc
s_and_b32 s{sT}, s{sCB}, 14
s_add_u32 s{sT}, s{sT}, s{sTc}
s_lshl_b32 s{sT}, s{sT}, 18
s_and_b32 s{sTb}, s{sTB}, -2
s_lshl_b32 s{sTd}, s{sTb}, 12
s_add_u32 s{sT}, s{sT}, s{sTd}
v_add_u32 v{vKVst}, s{sT}, v{vKVst}
s_lshl_b32 s{sPK}, s{sTc}, 12
s_mul_i32 s{sT}, s{sTb}, {HSTR}
s_add_u32 s{sT}, s{sT}, {H0}
s_lshl_b32 s{sTd}, s{sCB}, 12
s_add_u32 s{sT}, s{sT}, s{sTd}
s_lshl_b32 s{sTd}, s{sTc}, 11
s_add_u32 s{sT}, s{sT}, s{sTd}
v_add_u32 v{vHst}, s{sT}, v{vL16}
s_mul_i32 s{sPH}, s{sTc}, {HSTR}
s_lshl_b32 s{sT}, s{sCB}, 11
s_lshl_b32 s{sTd}, s{sTc}, 11
s_add_u32 s{sT}, s{sT}, s{sTd}
s_sub_u32 s{sT}, 65536, s{sT}
s_add_u32 s{sT}, s{sT}, s{sPH}
s_cmp_lt_u32 s{sCB}, 12
s_cselect_b32 s{sH2}, s{sT}, s{sHUGE}
s_lshl_b32 s{sT}, s{sTb}, 7
s_lshl_b32 s{sTd}, s{sCB}, 3
s_add_u32 s{sTd}, s{sTd}, {FL0}
s_add_u32 s{sT}, s{sT}, s{sTd}
s_lshl_b32 s{sTb}, s{sTc}, 2
s_add_u32 s{sT}, s{sT}, s{sTb}
v_lshlrev_b32 v{vT0}, 7, v{vL}
v_add_u32 v{vT0}, s{sT}, v{vT0}
v_mov_b32 v{vT1}, s{sHUGE}
v_cmp_gt_u32 vcc, 2, v{vL}
v_cndmask_b32 v{vFl2}, v{vT1}, v{vT0}, vcc
s_lshl_b32 s{sT}, s{sTB}, 7
s_add_u32 s{sT}, s{sT}, s{sTd}
v_mov_b32 v{vT0}, s{sT}
v_cmp_eq_u32 vcc, 0, v{vL}
v_cndmask_b32 v{vT0}, v{vT1}, v{vT0}, vcc
{park("Fl1", f"v{vT0}")}
v_mov_b32 v{vSum}, 0
v_mov_b32 v{vSum+1}, 0
v_mov_b32 v{vSum+2}, 0
v_mov_b32 v{vSum+3}, 0
v_mov_b32 v{vCSA[0]+2}, 0
v_mov_b32 v{vCSA[0]+3}, 0
v_mov_b32 v{vCSA[1]+2}, 0
v_mov_b32 v{vCSA[1]+3}, 0
s_lshl_b32 s{sT}, s{sNB}, 7
v_add_u32 v{vDo}, s{sT}, v{vDo}
v_add_u32 v{vDo+1}, {7*1024}, v{vDo}
s_lshl_b32 s{sT}, s{sW}, 17
v_add_u32 v{vT0}, s{sT}, v{vDo}
{park("Eo", f"v{vT0}")}v_add_u32 v{vT0}, {7*1024}, v{vT0}
{park("Eo1", f"v{vT0}")}
s_mul_i32 s{sT}, s{sTB2}, {2*HSTR}
s_lshl_b32 s{sTb}, s{sW}, 14
s_add_u32 s{sT}, s{sT}, s{sTb}
s_add_u32 s{sT}, s{sT}, {H0}
v_add_u32 v{vT0}, s{sT}, v{vL16}
{park("Ao", f"v{vT0}")}v_add_u32 v{vT0}, {HSTR}, v{vT0}
{park("Ao1", f"v{vT0}")}
s_lshl_b32 s{sT}, s{sTB2}, 16
s_lshl_b32 s{sTb}, s{sW}, 13
s_add_u32 s{sT}, s{sT}, s{sTb}
s_add_u32 s{sT}, s{sT}, {O0}
v_add_u32 v{vT0}, s{sT}, v{vL16}
{park("Oo", f"v{vT0}")}v_add_u32 v{vT0}, 32768, v{vT0}
{park("Oo1", f"v{vT0}")}
s_add_u32 s{sRHO}, s{sTB2}, s{sNB}
s_and_b32 s{sRHO}, s{sRHO}, {3 if O("rot", 1) else 0}
s_mul_i32 s{sWB}, s{sW}, {12*32768}
s_mov_b32 s{sWS}, 98304
s_cmp_eq_u32 s{sW}, 3
s_cselect_b32 s{sWB}, {35*32768}, s{sWB}
s_cselect_b32 s{sWS}, 65536, s{sWS}
s_mul_i32 s{sAL}, s{sW}, 10240
s_sub_u32 s{sAL}, 65536, s{sAL}
s_mul_i32 s{sWL}, s{sW}, {9*32768}
s_add_u32 s{sWL}, s{sWL}, 65536
v_lshrrev_b32 v{vT0}, 3, v{vL}
v_and_b32 v{vT1}, 7, v{vL}
s_lshl_b32 s{sT}, s{sTB2}, 6
s_lshl_b32 s{sTb}, s{sW}, 4
s_add_u32 s{sT}, s{sT}, s{sTb}
s_lshl_b32 s{sT}, s{sT}, 10
s_lshl_b32 s{sTb}, s{sNB}, 7
s_add_u32 s{sT}, s{sT}, s{sTb}
v_lshlrev_b32 v{vT2}, 10, v{vT0}
v_lshl_add_u32 v{vT2}, v{vT1}, 4, v{vT2}
v_add_u32 v{vT2}, s{sT}, v{vT2}
{park("Out", f"v{vT2}")}v_add_u32 v{vT2}, 8192, v{vT2}
{park("Out1", f"v{vT2}")}v_lshlrev_b32 v{vT1}, 1, v{vT1}
v_xor_b32 v{vT1}, v{vT1}, v{vT0}
v_lshlrev_b32 v{vT0}, 8, v{vT0}
v_lshl_add_u32 v{vT0}, v{vT1}, 4, v{vT0}
v_add_u32 v{vT0}, s{sM0X}, v{vT0}
{park("Rr", f"v{vT0}")}v_and_b32 v{vT0}, 31, v{vL}
v_lshrrev_b32 v{vT1}, 5, v{vL}
v_and_b32 v{vT2}, 7, v{vL}
v_xor_b32 v{vT1}, v{vT1}, v{vT2}
v_lshlrev_b32 v{vT0}, 8, v{vT0}
v_lshl_add_u32 v{vT0}, v{vT1}, 4, v{vT0}
s_lshl_b32 s{sT}, s{sW}, 14
v_add_u32 v{vT0}, s{sT}, v{vT0}
{park("Rw", f"v{vT0}")}
v_add_u32 v{vT0}, s{sM0X}, v{vL16}
{park("Ka", f"v{vT0}")}v_lshrrev_b32 v{vT1}, 5, v{vL}
v_bfe_u32 v{vT2}, v{vL}, 2, 2
v_lshl_add_u32 v{vT2}, v{vT1}, 2, v{vT2}
v_lshlrev_b32 v{vT2}, 5, v{vT2}
v_and_b32 v{vT0}, 1, v{vL}
v_lshl_add_u32 v{vT2}, v{vT0}, 4, v{vT2}
v_bfe_u32 v{vT0}, v{vL}, 1, 1
v_lshl_add_u32 v{vT2}, v{vT0}, 3, v{vT2}
s_add_u32 s{sT}, s{sM0X}, 2048
v_add_u32 v{vT2}, s{sT}, v{vT2}
v_xor_b32 v{vT1}, 1, v{vT1}
v_lshlrev_b32 v{vT1}, 7, v{vT1}
s_lshl_b32 s{sT}, s{sW}, 3
s_add_u32 s{sT}, s{sT}, {STRIP}
v_add_u32 v{vT1}, s{sT}, v{vT1}
v_and_b32 v{vT0}, 16, v{vL}
v_cmp_eq_u32 vcc, 0, v{vT0}
v_cndmask_b32 v{vT0}, v{vT1}, v{vT2}, vcc
{park("Va", f"v{vT0}")}v_mov_b32 v{vT1}, 8
v_mov_b32 v{vT2}, 4096
v_cndmask_b32 v{vT0}, v{vT1}, v{vT2}, vcc
{park("Vinc", f"v{vT0}")}
s_lshl_b32 s{sT}, s{sTB}, 15
s_lshl_b32 s{sTb}, s{sCB}, 11
s_add_u32 s{sT}, s{sT}, s{sTb}
s_add_u32 s{sT}, s{sT}, {O0}
v_add_u32 v{vT0}, s{sT}, v{vL16}
{park("Ost", f"v{vT0}")}
s_lshl_b32 s{sT}, s{sCB}, 18
v_add_u32 v{vT0}, s{sT}, v{vL16}
{park("KVo", f"v{vT0}")}
s_mul_i32 s{sM0K}, s{sW}, 12288
""")
for k in range(3):
    E(f"""
s_mul_i32 s{sT}, s{sW}, 3
s_lshl_b32 s{sTb}, s{sRB}, 2
s_add_u32 s{sT}, s{sT}, s{sTb}
s_add_i32 s{sT}, s{sT}, {k-8}
s_lshl_b32 s{sKV[k]}, s{sT}, 12
s_cmp_lt_i32 s{sT}, 0
s_cselect_b32 s{sKV[k]}, s{sHUGE}, s{sKV[k]}
""")
E(f"""
v_min_u32 v{vT1}, 5, v{vL}
v_lshrrev_b32 v{vT2}, 1, v{vT1}
s_add_i32 s{sT}, s{sT}, -2
v_add_u32 v{vT2}, s{sT}, v{vT2}
v_cmp_gt_i32 vcc, 0, v{vT2}
v_mov_b32 v{vT0}, s{sTB}
v_cndmask_b32 v{vT2}, v{vT2}, v{vT0}, vcc
v_lshlrev_b32 v{vT2}, 7, v{vT2}
v_and_b32 v{vT1}, 1, v{vT1}
v_lshl_add_u32 v{vT2}, v{vT1}, 3, v{vT2}
s_and_b32 s{sT}, s{sCB}, 14
s_lshl_b32 s{sT}, s{sT}, 3
s_and_b32 s{sTb}, s{sCB}, 1
s_lshl_b32 s{sTb}, s{sTb}, 2
s_add_u32 s{sT}, s{sT}, s{sTb}
s_add_u32 s{sT}, s{sT}, {FL0}
v_add_u32 v{vT0}, s{sT}, v{vT2}
{park("Pa", f"v{vT0}")}
s_lshl_b32 s{sT}, s{sTB2}, 8
s_add_u32 s{sT}, s{sT}, {FL0+8192}
v_lshlrev_b32 v{vT0}, 2, v{vL}
v_add_u32 v{vT0}, s{sT}, v{vT0}
{park("Pb", f"v{vT0}")}
""")
rest = prog[init_mark:]; del prog[init_mark:]
gall = p1_dma(1) + p1_dma(2) + p1_dma(3)
N0 = O("n0", 10)
gs = gall[:N0]
acc = []; k = 0
zero_at = max(n for n, x in enumerate(rest) if x.post)
for n, x in enumerate(rest):
    acc.append(x)
    safe = not (x.op.startswith("s_cmp") or (n + 1 < len(rest) and (rest[n + 1].op.startswith("s_cselect") or rest[n + 1].op.startswith("s_cbranch"))))
    if k < len(gs) and safe and n + 1 >= (k + 1) * len(rest) / (len(gs) + 1):
        acc += gs[k]; k += 1
acc += flat(gs[k:])
E(acc)
if O("w2t", 4) == 1: E(w2touch)
stamp((1, 2, 3))

def wf1(st, t): return aWF + (st * 3 + t) * 4
def wf2(k, t): return aWF + ((k % 3) * 3 + t) * 4
def p1_reads(c, s):
    sl = c & 3; st = s & 1
    o = [I(f"ds_read_b128 {ar(aX+(4*c+s)*4,4)}, v{vXr+s} offset:{sl*16384}")]
    for t in range(3):
        for n in range(2):
            o.append(I(f"ds_read_b64_tr_b16 {ar(wf1(st,t)+2*n,2)}, v{vWr+2*s+(sl>>1)} offset:{(sl&1)*24576+t*8192+n*512}"))
    o.insert(3, I(f"ds_read_b128 {ar(aXP+4*st,4)}, v{vXp+s} offset:{sl*16384}"))
    return o
def statread(g):
    c, s = g >> 2, g & 3
    return [I(f"ds_read_b128 {vr(vXT+4*s,4)}, v{vXr+s} offset:{(c&3)*16384}")]
def stats(s):
    o = []
    for j in range(4):
        x = vXT + 4 * s + j; a = vU + 2 * (j & 1)
        o += L(f"""v_lshlrev_b32 v{a}, 16, v{x}
v_and_b32 v{a+1}, 0xffff0000, v{x}
v_add_f32 v{vSum}, v{vSum}, v{a}
v_add_f32 v{vSum+1}, v{vSum+1}, v{a+1}
v_fmac_f32 v{vSum+2}, v{a}, v{a}
v_fmac_f32 v{vSum+3}, v{a+1}, v{a+1}""")
    return o
def cs_convert(vcs, vw, base, step):
    o = []
    for j in range(4):
        a = vU + 4
        o += L(f"""v_cvt_pk_bf16_f32 v{a}, v{vcs+j}, v{vcs+j}
v_and_b32 v{a+2}, 0xffff0000, v{a}
v_sub_f32 v{a+2}, v{vcs+j}, v{a+2}
v_cvt_pk_bf16_f32 v{a+1}, v{a+2}, v{a+2}""")
        o.append(I(f"ds_write_b64 v{vw}, {vr(a,2)} offset:{base+step*j}"))
    return o
C1 = -2.0 * 0.7978845608028654 * 1.4426950408889634
QC = 0.25 * 1.4426950408889634
stats_fin1 = L(f"""
v_add_f32 v{vSum}, v{vSum}, v{vSum+1}
v_add_f32 v{vSum+2}, v{vSum+2}, v{vSum+3}
v_mov_b32 v{vSum+1}, v{vSum}
v_mov_b32 v{vSum+3}, v{vSum+2}
s_nop 0
v_permlane32_swap_b32 v{vSum}, v{vSum+1}
v_permlane32_swap_b32 v{vSum+2}, v{vSum+3}
v_add_f32 v{vSum}, v{vSum}, v{vSum+1}
v_add_f32 v{vSum+2}, v{vSum+2}, v{vSum+3}
v_mul_f32 v{vSum}, {fx(-1.0/512)}, v{vSum}
v_mul_f32 v{vSum+2}, {fx(1.0/512)}, v{vSum+2}
v_fma_f32 v{vSum+2}, -v{vSum}, v{vSum}, v{vSum+2}
v_max_f32 v{vSum+2}, 0, v{vSum+2}
v_add_f32 v{vSum+1}, {fx(1e-5)}, v{vSum+2}
ds_write_b64 v{vStx}, {vr(vSum,2)} offset:{STX}
v_xor_b32 v{vStx}, 256, v{vStx}
""")
def stats_fin2(o):
    nm, R = vSum + 2 * o, vSum + 2 * o + 1; K = vK[o]; B = vBx[o]; a = vU
    t = f"""
v_rsq_f32 v{K}, v{R}
v_cvt_pk_bf16_f32 v{a}, v{nm}, v{nm}
v_and_b32 v{a}, 0xffff0000, v{a}
v_sub_f32 v{a+1}, v{nm}, v{a}
v_cvt_pk_bf16_f32 v{B}, v{a}, v{a+1}
v_mul_f32 v{K+1}, {fx(C1)}, v{K}
v_mul_f32 v{a}, v{K}, v{K}
v_mov_b32 v{B+1}, v{B}
v_mov_b32 v{B+2}, v{B}
v_mov_b32 v{B+3}, v{B}
v_mul_f32 v{a}, {fx(0.044715)}, v{a}
v_mov_b32 v{K+3}, v{R}
v_mul_f32 v{K+2}, v{K+1}, v{a}
"""
    if o == 0: t += f"v_mul_f32 v{vQS}, {fx(QC)}, v{K}\n"
    return L(t)

E(I("s_barrier", need=["c0"]))
stamp((2,))
E(p1_reads(0, 0) + statread(0) + statread(1))
E(stats(0))
S1 = Sched()
P1 = lambda c, s, t: 24 * c + 6 * s + t
A1 = lambda t, o: ACC1 + 32 * t + 16 * o
for c in range(8):
    for s in range(4):
        st = s & 1; first = (c == 0 and s == 0)
        for q in range(6):
            t, o = q >> 1, q & 1
            acc = vr(A1(t, o), 16)
            xb = ar(aX + (4 * c + s) * 4, 4) if o == 0 else ar(aXP + 4 * st, 4)
            ops = [I(f"{MF} {acc}, {ar(wf1(st,t),4)}, {xb}, {'0' if first else acc}")]
            small = s < 2 and o == 1
            if small:
                cs = vr(vCS1, 4)
                ops.append(I(f"{MS} {cs}, {ar(wf1(st,t),4)}, {ar(aSEL+4*t,4)}, {'0' if (first and t == 0) else cs}"))
            pre = []
            if q == 0: pre.append(I("s_waitcnt lgkmcnt(0)"))
            if s == 3 and q == 0 and c < 7:
                pre.append(I("s_barrier", need=["c%d" % (c + 1)] + (["p0"] if c == 6 else [])))
                if c == 0:
                    pre += L(f"s_or_b32 s{sT}, s2, s{sW}\ns_cmp_eq_u32 s{sT}, 0\ns_cselect_b32 s{sT}, 0, s{sHUGE}\nv_mov_b32 v{vT0}, 1\nv_lshlrev_b32 v{vT1}, 8, v{vL}")
                    pre += [I(f"buffer_store_dword v{vT0}, v{vT1}, {srd(SDBG)}, s{sT} offen sc1")]
            if s == 0 and q == 0: pre += stampq((3,))
            S1.pos(ops, 8 if small else 6, pre)
NP1 = 192
CORR_K = 2
P2 = lambda k, t: NP1 + 3 * k + t + (6 if k >= CORR_K else 0)
PC = NP1 + 3 * CORR_K
for k in range(32):
    p, s = k >> 3, k & 3
    if k == CORR_K:
        for q in range(6):
            t, o = q >> 1, q & 1
            acc = vr(A1(t, o), 16)
            S1.pos(I(f"{MF} {acc}, {vr(vCSA[t&1],4)}, {vr(vBx[o],4)}, {acc}"), 6)
    for t in range(3):
        acc = vr(ACC2 + 16 * t, 16)
        ops = [I(f"{MF} {acc}, {ar(wf2(k,t),4)}, {ar(aX+k*4,4)}, {'0' if k == 0 else acc}", xr=ar(wf2(k, 0), 12) if t == 0 else None)]
        if s == 0:
            cs = vr(vCS2, 4)
            ops.append(I(f"{MS} {cs}, {ar(wf2(k,t),4)}, {ar(aSEL+4*t,4)}, {'0' if (k == 0 and t == 0) else cs}"))
        pre = []
        if k == 0 and t == 0:
            pre = stampq((1, 3)) + [I("s_waitcnt lgkmcnt(0)"), I("s_barrier")]
        if (k & 7) == 6 and t == 1:
            pre = [I("s_waitcnt lgkmcnt(0)"), I("s_barrier", need=["p%d" % (p + 1)] if p < 3 else [])]
        if (k & 3) == 0 and t == 0: pre += stampq((4,))
        S1.pos(ops, 8 if s == 0 else 6, pre)
NP2 = len(S1.main)
def p2_reads(k):
    p, g, s = k >> 3, (k >> 2) & 1, k & 3
    return [I(f"ds_read_b64_tr_b16 {ar(wf2(k,t)+2*n,2)}, v{vW2r+2*s+(p>>1)} offset:{(p&1)*24576+t*8192+g*4096+n*256}") for t in range(3) for n in range(2)]
for c in range(8):
    for s in range(4):
        g = 4 * c + s
        rd = []
        if g + 1 < 32: rd += p1_reads((g + 1) >> 2, (g + 1) & 3)
        if s < 2 and g + 2 < 32: rd += statread(g + 2)
        if s == 3 and g + 1 < 32: rd = statread(g + 1) + rd + statread(g + 2)
        S1.spread(rd, P1(c, s, 0), P1(c, s, O("rdw", 3) + (1 if s == 3 else 0)), 0)
        if s == 2: pass
        if g + 1 < 32:
            if s != 3: S1.spread(stats((g + 1) & 3), P1(c, s, 0), P1(c, s, 6), 2)
            else: S1.spread(stats(0), P1(c, s, 2), P1(c, s, 6), 2)
    if c == 0: S1.spread(gall[N0:], P1(0, 0, 0), P1(0, 3, 0), 1, one)
    if c < 7: S1.spread(p1_dma(c + 4) if c < 4 else p2_dma(c - 4), P1(c, 3, 0), P1(c + 1, 3, 0), 1, one)
S1.spread(cs_convert(vCS1, vCSw1, CS1, 8) + stats_fin1, P1(7, 3, 0), P1(7, 3, 6), 2)
S1.spread(p2_reads(0), P1(7, 3, 0), P1(7, 3, 3), 0)
S1.put(P1(7, 3, 5), p2_reads(1), 0)
S1.put(P1(5, 0, 0), [L(f"v_mov_b32 v{vT0}, 0") + [I(f"buffer_load_dword v{vInit}, v{vT0}, {srd(SDBG)}, 0 offen")]], 1)
if O("w2t", 4) >= 2: S1.put(P1(O("w2t", 4) - 2, 1, 0), [w2touch], 1)
S1.spread(p2_dma(3), P2(0, 0), P2(5, 0), 1, one)

def scale_pack(acc, sc, dst, pk=False):
    o = []
    if pk:
        sel = "op_sel:[0,1] op_sel_hi:[1,1]" if sc & 1 else "op_sel_hi:[1,0]"
        for j in range(0, 16, 2): o.append(I(f"v_pk_mul_f32 {vr(acc+j,2)}, {vr(acc+j,2)}, {vr(sc&~1,2)} {sel}"))
    else:
        for j in range(16): o.append(I(f"v_mul_f32 v{acc+j}, v{acc+j}, v{sc}"))
    for j in range(8): o.append(I(f"v_cvt_pk_bf16_f32 v{dst+j}, v{acc+2*j}, v{acc+2*j+1}"))
    return o
def gelu(g, u, K):
    if O("x_nogelu", 0): return [I("s_nop 0")] * 4
    A, B, R = K + 1, K + 2, K + 3
    o = []
    for b in range(4):
        js = range(4 * b, 4 * b + 4)
        T = lambda j: vG + (j & 3) + 4 * (b & 1)
        o += [I(f"v_mul_f32 v{T(j)}, v{g+j}, v{g+j}") for j in js]
        o += [I(f"v_fma_f32 v{T(j)}, v{T(j)}, v{B}, v{A}") for j in js]
        o += [I(f"v_mul_f32 v{T(j)}, v{g+j}, v{T(j)}") for j in js]
        for j in js: o += [I(f"v_exp_f32 v{T(j)}, v{T(j)}"), I(f"v_mul_f32 v{g+j}, v{g+j}, v{u+j}")]
        o += [I(f"v_fma_f32 v{T(j)}, v{T(j)}, v{R}, v{R}") for j in js]
        o += [I(f"v_rcp_f32 v{T(j)}, v{T(j)}") for j in js]
        o += [I(f"v_mul_f32 v{g+j}, v{g+j}, v{T(j)}") for j in js]
        o += [I(f"v_cvt_pk_bf16_f32 v{u+2*b+k}, v{g+4*b+2*k}, v{g+4*b+2*k+1}") for k in range(2)]
    return o
def gelu_pk(g, u, K):
    o = []
    for b in range(2):
        js = range(8 * b, 8 * b + 8, 2)
        T = lambda j: vG + (j & 7)
        o += [I(f"v_pk_mul_f32 {vr(T(j),2)}, {vr(g+j,2)}, {vr(g+j,2)}") for j in js]
        o += [I(f"v_pk_fma_f32 {vr(T(j),2)}, {vr(T(j),2)}, {vr(K+2,2)}, {vr(K,2)} op_sel:[0,0,1] op_sel_hi:[1,0,1]") for j in js]
        o += [I(f"v_pk_mul_f32 {vr(T(j),2)}, {vr(g+j,2)}, {vr(T(j),2)}") for j in js]
        for j in js: o += [I(f"v_exp_f32 v{T(j)}, v{T(j)}"), I(f"v_exp_f32 v{T(j)+1}, v{T(j)+1}"), I(f"v_pk_mul_f32 {vr(g+j,2)}, {vr(g+j,2)}, {vr(u+j,2)}")]
        o += [I(f"v_pk_fma_f32 {vr(T(j),2)}, {vr(T(j),2)}, {vr(K+2,2)}, {vr(K+2,2)} op_sel:[0,1,1] op_sel_hi:[1,1,1]") for j in js]
        for j in js: o += [I(f"v_rcp_f32 v{T(j)}, v{T(j)}"), I(f"v_rcp_f32 v{T(j)+1}, v{T(j)+1}")]
        o += [I(f"v_pk_mul_f32 {vr(g+j,2)}, {vr(g+j,2)}, {vr(T(j),2)}") for j in js]
        o += [I(f"v_cvt_pk_bf16_f32 v{u+(j>>1)}, v{g+j}, v{g+j+1}") for j in js]
    return o
def store4(data, voff, soff, imm, tag):
    if O("x_nost", 0) and tag in ("kv", "h"): return I("s_nop 0")
    o = (" offset:%d" % imm) if imm else ""
    return I(f"buffer_store_dwordx4 {vr(data,4)}, v{voff}, {srd(SWS)}, {soff} offen{o} sc1", tag=tag)
def flag(stage, tag, va):
    if O("x_nofw", -1) == stage: tag = "none"
    return L(f"v_mov_b32 v{vT0}, 1\ns_movk_i32 s{sT}, {stage*8192}") + [I(f"buffer_store_dword v{vT0}, v{va}, {srd(SWS)}, s{sT} offen sc1", need=[tag])]
def poll_issue(va): return [I(f"buffer_load_dword v{vPoll}, v{va}, {srd(SWS)}, 0 offen sc1")]
def poll_check(name, S, reg, addr):
    rare.append(f"""
L_spin_{name}:
    s_mov_b32 s{sSPIN}, {OPT['spin']}
L_spin2_{name}:
    buffer_load_dword v{reg}, v{addr}, {srd(S)}, 0 offen sc1
    s_waitcnt vmcnt(0) lgkmcnt(0)
    v_cmp_eq_u32 vcc, 0, v{reg}
    s_nop 4
    s_cbranch_vccz L_ok_{name}
    s_sleep 1
    s_sub_u32 s{sSPIN}, s{sSPIN}, 1
    s_cmp_lg_u32 s{sSPIN}, 0
    s_cbranch_scc1 L_spin2_{name}
    s_endpgm
""")
    o = L(f"v_cmp_eq_u32 vcc, 0, v{reg}\ns_cbranch_vccnz L_spin_{name}")
    o[-1].post = f"\nL_ok_{name}:"
    return o
def unpark(*names): return [I(f"v_accvgpr_read_b32 v{PARK[n]}, a{aPARK+PARK[n]-4}") for n in names]

S1.put(P2(0, 0), [I(f"ds_read_b64 {vr(vSum+2,2)}, v{vStx} offset:{STX}")] + [I(f"ds_read_b64 {vr(vCSA[t],2)}, v{vCSr} offset:{CS1+C1STR*t}") for t in range(2)], 0)
S1.spread(stats_fin2(0) + stats_fin2(1), P2(0, 0), PC, 2)
S1.put(PC + 1, [I(f"ds_read_b64 {vr(vCSA[0],2)}, v{vCSr} offset:{CS1+C1STR*2}")], 0)
for k in range(30):
    o = 1 if (k & 7) == 6 else 0
    S1.spread(p2_reads(k + 2), P2(k, o), P2(k, o + (2 if (k & 7) in (5, 6) else 3)), 0)

fq = []
sOwn = [f"s{sPK}", f"s{sTd}"]; sOwnH = [f"s{sPH}", f"s{sTc}"]
fq += L(f"s_xor_b32 s{sTd}, s{sPK}, 4096\ns_sub_u32 s{sTc}, {HSTR}, s{sPH}")
for o in range(2):
    a = A1(0, o)
    fq += scale_pack(a, vK[o], a)
    fq += [store4(a, vKVst, sOwn[o], 0, "kv"), store4(a + 4, vKVst, sOwn[o], 1024, "kv")]
fq += L(f"v_mov_b32 v{vT2}, 0") + poll_check("init", SDBG, vInit, vT2)
g = [gelu(A1(1, o), A1(2, o), vK[o]) + [store4(A1(2, o), vHst, sOwnH[o], 0, "h"), store4(A1(2, o) + 4, vHst, sOwnH[o], 1024, "h")] for o in range(2)]
KVF = O("kvflag", 100); KVP = O("kvpoll", 90)
tbl = L(f"""s_getpc_b64 s[{STC}:{STC+1}]
s_add_u32 s{STC}, s{STC}, L_table-.
s_addc_u32 s{STC+1}, s{STC+1}, 0
s_movk_i32 s{STC+2}, 8192
s_mov_b32 s{STC+3}, 0x20000
s_movk_i32 s{sX}, 4096""")
tbl = [tbl] + [[I(f"buffer_load_dwordx4 {vr(vBF+4*i,4)}, v{vL16}, {srd(STC)}, {'0' if i < 4 else 's%d' % sX} offen offset:{1024*(i&3)}")] for i in range(8)]
strip = [I(f"v_accvgpr_read_b32 v{vU}, a{aSTV}"), I(f"v_accvgpr_read_b32 v{vU+1}, a{aSTV}"), I(f"v_accvgpr_read_b32 v{vT1}, a{aSTA}"), I(f"ds_write_b64 v{vT1}, {vr(vU,2)} offset:{STRIP}")]
fq += g[0][:KVF] + flag(0, "kv", vFl2) + g[0][KVF:] + unpark(*PARK.keys()) + strip
fq += g[1][:KVP] + poll_issue(vPa) + g[1][KVP:]
FQ_END = O("fqend", 28)
S1.spread(glue(fq), PC + 3, P2(FQ_END, 0), 2)
if not O("x_notbl", 0): S1.spread(tbl, P2(O("tbl", 9), 0), P2(O("tbl", 9) + 5, 0), 1, one)

def w2_dma(j):
    sl = j % 12
    m0 = (sl // 3) * 24576 + (sl % 3) * 2048
    nd = ["r%d" % (j - 12)]
    if j < 16:
        if j & 3 == 0: so = f"s_add_u32 s{sGp}, s{sRHO}, {j>>2}\ns_and_b32 s{sGp}, s{sGp}, 3\ns_mul_i32 s{sD}, s{sGp}, s{sWS}\ns_add_u32 s{sD}, s{sD}, s{sWB}"
        else: so = f"s_add_u32 s{sD}, s{sD}, 16384"
        vo, S = vDo, SD
    elif j < 22:
        so = f"s_add_u32 s{sD}, s{sWL}, {((j-16)>>1)*98304 + (j&1)*16384}"; vo, S = vDo, SD
    else:
        so = f"s_mov_b32 s{sD}, {(j-22)*16384}"; vo, S = vEo, SO
    return [L(f"s_add_u32 m0, s{sM0D}, {m0}\n{so}") + [dma(vo, S, f"s{sD}", 0, "w%d" % j, need=nd)],
            [dma(vo + 1, S, f"s{sD}", 1024, "w%d" % j, need=nd)]]
KCHK = O("kvchk", 28)
for p in range(3):
    if not O("x_now2", 0): S1.spread(w2_dma(3 * p) + w2_dma(3 * p + 1) + w2_dma(3 * p + 2), P2(8 * p + 6, 1), P2(8 * p + 14, 1) if p < 2 else P2(KCHK, 0), 1, one)
kvdma = []
for k in range(3):
    kvdma.append(L(f"s_add_u32 m0, s{sM0K}, {4096*k}\ns_nop 0") + [dma(vKVo, SWS, f"s{sKV[k]}", 0, "kvl", "sc1")])
    kvdma += [[dma(vKVo, SWS, f"s{sKV[k]}", 1024 * i, "kvl", "sc1")] for i in range(1, 4)]
if not O("x_nokv", 0):
    if not O("x_nochk", 0): S1.put(P2(KCHK, 0), [poll_check("kv", SWS, vPoll, vPa)], 1)
    S1.spread(kvdma, P2(KCHK, 1), NP2, 1, one)
S1.spread(cs_convert(vCS2, vCSw2, CS2, 16), P2(29, 0), P2(30, 0), 2)
S1.put(P2(30, 1), [I(f"ds_read_b128 {vr(vCSA[q],4)}, v{vL16} offset:{CS2+CSTR*q}") for q in range(3)], 0)
if OPT["stamps"] == 9:
    for q in range(16):
        p = OPT["za"] + q * OPT["zs"]
        if p < len(S1.main): S1.pre[p] = stampq((9,)) + S1.pre[p]
E(S1.emit())
stamp((1, 4))
for t in (1, 2, 0):
    acc = vr(ACC2 + 16 * t, 16)
    E(f"{MF} {acc}, {vr(vCSA[t],4)}, {vr(vBx[0],4)}, {acc}")
E(flag(1, "h", vFl2))
E(f"buffer_load_dwordx4 {vr(vXres,4)}, v{vOut}, {srd(SX)}, 0 offen")
E(f"buffer_load_dwordx4 {vr(vXres+4,4)}, v{vOut+1}, {srd(SX)}, 0 offen")
post = w2_dma(9) + w2_dma(10) + w2_dma(11)
gl = gelu_pk(ACC2 + 16, ACC2 + 32, vK[0])
for q in range(6):
    E(gl[len(gl) * q // 6:len(gl) * (q + 1) // 6] + post[q])
E([store4(ACC2 + 32, vHst, f"s{sH2}", 0, "h2"), store4(ACC2 + 36, vHst, f"s{sH2}", 1024, "h2")])
E(scale_pack(ACC2, vQS, vQ, pk=True))
stamp((4, 6))
E(I("s_waitcnt lgkmcnt(0)"))
E(I("s_barrier", need=["kvl"]))
stamp((1, 4, 6))

units = [(i, e) for i in range(9) for e in range(2)]
def kread(u):
    i, e = units[u]
    return [I(f"ds_read_b128 {ar(aK+4*(u&1),4)}, v{vKa} offset:{i*4096+e*1024}")]
def vread(u):
    i, e = units[u]
    o = [I(f"ds_read_b64_tr_b16 {ar(aV+8*(u&1)+4*s+2*n,2)}, v{vVa} offset:{e*1024+s*512+n*256}") for s in range(2) for n in range(2)]
    if e == 1: o.append(I(f"v_add_u32 v{vVa}, v{vVa}, v{vVinc}"))
    return o
def qk(u):
    i, e = units[u]
    c = vr(vBF, 16) if i == 0 else (vr(vBD, 16) if i == 8 else "0")
    return I(f"{MF} {vr(vS[u&1],16)}, {ar(aK+4*(u&1),4)}, {vr(vQ+4*e,4)}, {c}", xr=ar(aV + 8 * (u & 1), 8) if u >= 2 else None)
def pv(u, s):
    i, e = units[u]
    o = vr(vO[e], 16)
    return I(f"{MF} {o}, {ar(aV+8*(u&1)+4*s,4)}, {vr(vP[u&1]+4*s,4)}, {'0' if (i == 0 and s == 0) else o}")
def hload(j, tt):
    pre = []
    if j < 16:
        if tt == 0 and j & 3 == 0: pre = L(f"s_add_u32 s{sA}, s{sRHO}, {j>>2}\ns_and_b32 s{sA}, s{sA}, 3\ns_lshl_b32 s{sA}, s{sA}, 12")
        soff, imm = sA, (j & 3) * 1024
    else:
        if tt == 0 and j == 20: pre = L(f"s_add_u32 s{sAL}, s{sAL}, 4096")
        soff, imm = sAL, ((j - 16) & 3) * 1024
    o = (" offset:%d" % imm) if imm else ""
    return pre + [I(f"buffer_load_dwordx4 {ar(aH+8*j+4*tt,4)}, v{vAo+tt}, {srd(SWS)}, s{soff} offen{o} sc1")]
extra = {u: [] for u in range(18)}
EP, EC = O("ep", 1), O("ec", 4)
LF, LP, LC = O("lf", 3), O("lp", 9), O("lc", 12)
extra[EP].append(poll_issue(vPb))
extra[LF].append(flag(2, "h2", vFl1))
extra[EC].append(poll_check("h", SWS, vPoll, vPb) + L(f"v_and_b32 v{vPb}, -5, v{vPb}\nv_add_u32 v{vPb}, 8192, v{vPb}"))
he = [hload(j, tt) for j in range(16) for tt in range(2)]
hlate = [hload(j, tt) for j in range(16, 22) for tt in range(2)]
EE = O("ee", 15)
for q in range(EE - EC):
    extra[EC + q] += he[len(he) * q // (EE - EC):len(he) * (q + 1) // (EE - EC)]
extra[LP].append(poll_issue(vPb))
extra[LC].append(poll_check("h2", SWS, vPoll, vPb) + L(f"v_add_u32 v{vPb}, 8192, v{vPb}"))
LS = max(LC, EE)
NL = O("nl", 12)
for q in range(18 - LS):
    extra[LS + q] += hlate[NL * q // (18 - LS):NL * (q + 1) // (18 - LS)]
hl_late = hlate[NL:]

E(kread(0) + kread(1) + vread(0))
E(qk(0))
for u in range(18):
    S, P = vS[u & 1], vP[u & 1]
    ex = [I(f"v_exp_f32 v{S+j}, v{S+j}") for j in range(16)]
    cv = [I(f"v_cvt_pk_bf16_f32 v{P+j}, v{S+2*j}, v{S+2*j+1}") for j in range(8)]
    seq = []
    if u + 1 < 18: seq.append(qk(u + 1))
    if u + 2 < 18: seq += kread(u + 2)
    xs = list(extra[u])
    X = lambda q: flat(xs[len(xs) * q // 4:len(xs) * (q + 1) // 4])
    seq += X(0) + ex[0:4]
    if u > 0: seq.append(pv(u - 1, 0))
    seq += ex[4:6] + X(1) + ex[6:8] + cv[0:2]
    if u > 0: seq.append(pv(u - 1, 1))
    seq += ex[8:10] + cv[2:4]
    if u + 1 < 18: seq += vread(u + 1)
    seq += ex[10:12] + X(2) + ex[12:16] + cv[4:6] + X(3) + cv[6:8]
    if u % 2 == 0: seq = stampq((6,)) + seq
    E(seq)
def norm(e):
    o = vO[e]
    t = [f"v_rcp_f32 v{vT0+1}, v{o+8}", "s_nop 0"]
    if e == 0: t += [f"v_mul_f32 v{o+j}, v{o+j}, v{vT0+1}" for j in range(8)]
    else: t += [f"v_pk_mul_f32 {vr(o+j,2)}, {vr(o+j,2)}, {vr(vT0+1,2)} op_sel_hi:[1,0]" for j in range(0, 8, 2)]
    t += [f"v_cvt_pk_bf16_f32 v{o+12+j}, v{o+2*j}, v{o+2*j+1}" for j in range(4)]
    return t
E([pv(17, 0), pv(17, 1)])
E("\n".join(norm(0)))
E(store4(vO[0] + 12, vOst, "0", 0, "o"))
BLO, BHI = fx(2.0 ** -40), fx(2.0 ** 40)
E(f"""
s_mov_b32 s{sT}, {BLO}
s_mov_b32 s{sTb}, {BHI}
v_min_f32 v{vT0}, v{vO[0]+8}, v{vO[1]+8}
v_max_f32 v{vT1}, v{vO[0]+8}, v{vO[1]+8}
v_cmp_nle_f32 vcc, s{sT}, v{vT0}
v_cmp_nge_f32 s[4:5], s{sTb}, v{vT1}
v_cmp_u_f32 s[6:7], v{vO[0]+8}, v{vO[1]+8}
s_or_b64 vcc, vcc, s[4:5]
s_or_b64 vcc, vcc, s[6:7]
s_cbranch_vccnz L_truemax
""")
prog[-1].post = "\nL_att_done:"
E("\n".join(norm(1)))
E(store4(vO[1] + 12, vOst, "0", 1024, "o"))
stamp((6,))
E("s_barrier")
stamp((1, 5, 6))

sa, sb_, sc_, sd_, se_, sf_ = sT, sTb, sTc, sTd, sX, sQ
tm = [f"""
L_truemax:
    s_waitcnt vmcnt(0) lgkmcnt(0)
    s_nop 15
    s_sub_i32 s{sa}, 8, s{sTB}
    s_max_i32 s{sa}, s{sa}, 0
    s_mov_b32 s{sb_}, 0
L_tm_head:
    s_cmp_eq_u32 s{sb_}, 0
    s_cselect_b64 vcc, -1, 0
    s_nop 4
"""]
tm += [f"    v_cndmask_b32 v{vP[1]+j}, v{vQ+4+j}, v{vQ+j}, vcc\n" for j in range(4)]
tm.append(f"""
    v_mov_b32 v{vT0}, 0xff000000
    s_mov_b32 s{sd_}, 0
L_tm_pass:
    s_mov_b32 s{sc_}, s{sa}
""")
tm += [f"    v_mov_b32 v{vS[1]+j}, 0\n" for j in range(16)]
tm.append(f"""
L_tm_blk:
    s_lshl_b32 s{se_}, s{sc_}, 12
    s_lshl_b32 s{sf_}, s{sb_}, 10
    s_add_u32 s{se_}, s{se_}, s{sf_}
    v_add_u32 v{vT1}, s{se_}, v{vKa}
    ds_read_b128 {ar(aK,4)}, v{vT1}
    s_sub_u32 s{se_}, 9, s{sc_}
    v_mul_lo_u32 v{vT2}, s{se_}, v{vVinc}
    v_sub_u32 v{vT2}, v{vVa}, v{vT2}
    v_add_u32 v{vT2}, s{sf_}, v{vT2}
    ds_read_b64_tr_b16 {ar(aV,2)}, v{vT2}
    ds_read_b64_tr_b16 {ar(aV+2,2)}, v{vT2} offset:256
    ds_read_b64_tr_b16 {ar(aV+4,2)}, v{vT2} offset:512
    ds_read_b64_tr_b16 {ar(aV+6,2)}, v{vT2} offset:768
    s_waitcnt lgkmcnt(0)
    s_cmp_eq_u32 s{sc_}, 0
    s_cbranch_scc1 L_tm_far
    s_cmp_eq_u32 s{sc_}, 8
    s_cbranch_scc1 L_tm_diag
    {MF} {vr(vS[0],16)}, {ar(aK,4)}, {vr(vP[1],4)}, 0
    s_branch L_tm_s
L_tm_far:
    {MF} {vr(vS[0],16)}, {ar(aK,4)}, {vr(vP[1],4)}, {vr(vBF,16)}
    s_branch L_tm_s
L_tm_diag:
    {MF} {vr(vS[0],16)}, {ar(aK,4)}, {vr(vP[1],4)}, {vr(vBD,16)}
L_tm_s:
    s_nop 15
    s_cmp_eq_u32 s{sd_}, 0
    s_cbranch_scc0 L_tm_exp
""")
tm += [f"    v_max_f32 v{vT0}, v{vT0}, v{vS[0]+j}\n" for j in range(16)]
tm.append("    s_branch L_tm_next\nL_tm_exp:\n")
tm += [f"    v_sub_f32 v{vS[0]+j}, v{vS[0]+j}, v{vT0}\n" for j in range(16)]
tm += [f"    v_exp_f32 v{vS[0]+j}, v{vS[0]+j}\n" for j in range(16)]
tm.append("    s_nop 1\n")
tm += [f"    v_cvt_pk_bf16_f32 v{vP[0]+j}, v{vS[0]+2*j}, v{vS[0]+2*j+1}\n" for j in range(8)]
tm.append(f"""
    s_nop 1
    {MF} {vr(vS[1],16)}, {ar(aV,4)}, {vr(vP[0],4)}, {vr(vS[1],16)}
    {MF} {vr(vS[1],16)}, {ar(aV+4,4)}, {vr(vP[0]+4,4)}, {vr(vS[1],16)}
    s_nop 15
L_tm_next:
    s_add_u32 s{sc_}, s{sc_}, 1
    s_cmp_lt_u32 s{sc_}, 9
    s_cbranch_scc1 L_tm_blk
    s_cmp_eq_u32 s{sd_}, 0
    s_cbranch_scc0 L_tm_fin
    v_mov_b32 v{vT1}, v{vT0}
    s_nop 1
    v_permlane32_swap_b32 v{vT0}, v{vT1}
    s_nop 1
    v_max_f32 v{vT0}, v{vT0}, v{vT1}
    s_mov_b32 s{sd_}, 1
    s_branch L_tm_pass
L_tm_fin:
    s_cmp_eq_u32 s{sb_}, 0
    s_cbranch_scc0 L_tm_h1
""")
tm += [f"    v_mov_b32 v{vO[0]+j}, v{vS[1]+j}\n" for j in range(16)]
tm.append(f"    s_mov_b32 s{sb_}, 1\n    s_branch L_tm_head\nL_tm_h1:\n")
tm += [f"    v_mov_b32 v{vO[1]+j}, v{vS[1]+j}\n" for j in range(16)]
tm += ["    " + x + "\n" for x in norm(0)]
tm.append(f"    s_nop 1\n    buffer_store_dwordx4 {vr(vO[0]+12,4)}, v{vOst}, {srd(SWS)}, 0 offen sc1\n    s_waitcnt vmcnt(0)\n    s_branch L_att_done\n")
rare.append("".join(tm))

def w2_reads(j):
    sl = j % 12
    base = (sl // 3) * 24576 + (sl % 3) * 2048
    o = []
    for ct in range(2):
        for n in range(2):
            off = base + n * 1024 + ct * 256
            reg = vW3r if off < 49152 else vW3r + 1
            off = off if off < 49152 else off - 49152
            o.append(I(f"ds_read_b64_tr_b16 {ar(aW2+8*(j&1)+4*ct+2*n,2)}, v{reg} offset:{off}", need=["w%d" % j], tag="r%d" % j))
    return o
def oload(j2, tt):
    imm = (j2 & 3) * 1024
    o = (" offset:%d" % imm) if imm else ""
    return [I(f"buffer_load_dwordx4 {vr(vOF+8*j2+4*tt,4)}, v{vOo+tt}, {srd(SWS)}, {'0' if j2 < 4 else 's%d' % sA} offen{o} sc1")]
OF, OP, OC = O("oflag", 6), O("opoll", 12), O("ochk", 17)
E(w2_reads(0))
S3 = Sched()
order = [(j, ct, tt) for j in range(28) for ct in range(2) for tt in range(2)]
order += [(j, ct, tt) for tt in range(2) for j in (28, 29) for ct in range(2)]
for n, (j, ct, tt) in enumerate(order):
    acc = ar(aACC + 32 * ct + 16 * tt, 16)
    bb = ar(aH + 8 * j + 4 * tt, 4) if j < 22 else vr(vOF + 8 * (j - 22) + 4 * tt, 4)
    xr = ar(aW2 + 8 * (j & 1), 8) if (ct == 0 and tt == 0) else None
    S3.pos(I(f"{MF} {acc}, {ar(aW2+8*(j&1)+4*ct,4)}, {bb}, {'0' if j == 0 else acc}", xr=xr), 6, stampq((5,)) if (n % 12 == 0) else [])
for j in range(30):
    if j + 1 < 29: S3.spread(w2_reads(j + 1), 4 * j, 4 * j + 2, 0)
    if j + 12 < 30:
        g = w2_dma(j + 12); S3.put(4 * j + 1, [g[0]], 1); S3.put(4 * j + 3, [g[1]], 1)
S3.put(4 * 28, w2_reads(29), 0)
if hl_late: S3.spread(hl_late, 0, 16, 1, one)
S3.put(4 * OF, [flag(3, "o", vFl1)], 1)
S3.put(4 * OP, [poll_issue(vPb)], 1)
S3.put(4 * OC, [poll_check("o", SWS, vPoll, vPb) + L(f"s_movk_i32 s{sA}, 4096")], 1)
S3.spread([oload(j2, tt) for j2 in range(8) for tt in range(2)], 4 * OC + 1, 4 * O("oend", 23), 1, one)
S3.spread(L("\n".join(f"v_xor_b32 v{vU+i}, {32*i}, v{vRw}" for i in range(4)) + f"\nv_xor_b32 v{vU+4}, 16, v{vRr}"), 4, 8, 2)
def pwrite(ct, tt): return [I(f"ds_write_b128 v{vU+i}, {ar(aACC+32*ct+16*tt+4*i,4)} offset:{tt*8192+ct*128}") for i in range(4)]
S3.put(118, pwrite(0, 0), 0)
S3.put(119, pwrite(1, 0), 0)
E(S3.emit())
stamp((1, 5))
E(pwrite(0, 1) + pwrite(1, 1))
R0 = 128
for rho in range(2):
    for j in range(4):
        E(f"v_lshlrev_b32 v{R0+64+8*rho+2*j}, 16, v{vXres+4*rho+j}\nv_and_b32 v{R0+65+8*rho+2*j}, 0xffff0000, v{vXres+4*rho+j}")
E("s_waitcnt lgkmcnt(0)\ns_barrier")
for rho in range(2):
    for p in range(4):
        for n in range(2):
            E(f"ds_read_b128 {vr(R0+32*rho+8*p+4*n,4)}, v{vRr if n == 0 else vU+4} offset:{p*16384+rho*2048}")
for rho in range(2):
    b = R0 + 32 * rho; x = R0 + 64 + 8 * rho
    for p in range(4):
        for j in range(0, 8, 2): E(f"v_pk_add_f32 {vr(x+j,2)}, {vr(x+j,2)}, {vr(b+8*p+j,2)}")
    for j in range(4): E(f"v_cvt_pk_bf16_f32 v{b+j}, v{x+2*j}, v{x+2*j+1}")
    E(f"buffer_store_dwordx4 {vr(b,4)}, v{vOut+rho}, {srd(SOUT)}, 0 offen " + ["", "sc1", "nt", "sc0 sc1", "sc1 nt"][O("ofl", 1)])
if OPT["stamps"]:
    stamp()
    E(f"s_waitcnt vmcnt(0)")
    stamp((1, 2, 3, 4, 5, 6, 9))
    E(f"s_lshl_b32 s{sT}, s2, 2\ns_add_u32 s{sT}, s{sT}, s{sW}\ns_lshl_b32 s{sT}, s{sT}, 7\ns_add_u32 s{sT}, s{sT}, {ST0}\nv_mov_b32 v{vT0}, s{sT}")
    for k in range(nstamp[0]):
        E(f"v_mov_b32 v{vT1}, s{STREG[k]}\nbuffer_store_dword v{vT1}, v{vT0}, {srd(SWS)}, 0 offen offset:{4*k}")
if O("xf", 0):
    E("s_waitcnt vmcnt(0)"); stamp()
    if OPT["xf"] == 99: E("s_mov_b32 s90, s88")
    E(("s_sub_u32 s90, s90, s92\ns_lshr_b32 s90, s90, 3" if O("xfc", 0) else "s_sub_u32 s90, s90, s88\ns_lshl_b32 s90, s90, 2") + "\ns_add_u32 s90, s90, 4000\nL_es:\ns_memrealtime s[4:5]\ns_waitcnt lgkmcnt(0)\ns_sub_u32 s4, s4, s88\ns_cmp_lt_u32 s4, s90\ns_cbranch_scc1 L_es")
E("L_end:\ns_endpgm")

lines = finalize(prog, verbose=True)
tab = []
for i in range(8):
    for l in range(64):
        w = []
        for q in range(4):
            r = 4 * i + q; j = r & 15
            key = 8 * (j >> 2) + 4 * (l >> 5) + (j & 3)
            allowed = (key > (l & 31)) if r < 16 else (key <= (l & 31))
            w.append("0" if allowed else "0xff000000")
        tab.append("    .long " + ", ".join(w))
hdr = f"""; Fused LayerNorm + QKV/gate/up GEMM + sliding-window attention + GEGLU + down/out projection.
; @launch grid=(256,1,1) block=(256,1,1) lds={LDSSZ}
.amdgcn_target "amdgcn-amd-amdhsa--gfx950"
.text
.globl {KNAME}
.p2align 8
.type {KNAME},@function
{KNAME}:
"""
tail = f"""
.p2align 7
.type L_table,@object
L_table:
""" + "\n".join(tab) + f"""
L_table_end:
.size L_table, L_table_end-L_table
.section .rodata,"a"
.p2align 6
.amdhsa_kernel {KNAME}
  .amdhsa_next_free_vgpr 512
  .amdhsa_next_free_sgpr 102
  .amdhsa_accum_offset 256
  .amdhsa_group_segment_fixed_size 0
  .amdhsa_kernarg_size 80
  .amdhsa_user_sgpr_count 2
  .amdhsa_user_sgpr_kernarg_segment_ptr 1
  .amdhsa_system_sgpr_workgroup_id_x 1
.end_amdhsa_kernel
"""
open(sys.argv[1], "w").write(hdr + "\n".join(lines) + "\n" + "".join(rare) + tail)
```

```python
import re

TRANS = ("v_exp_f32", "v_log_f32", "v_rcp_f32", "v_rsq_f32", "v_sqrt_f32", "v_sin_f32", "v_cos_f32")

def regs_of(tok):
    tok = tok.strip()
    tok = tok.lstrip("-")
    if tok.startswith("abs(") or tok.startswith("|"):
        tok = tok.replace("abs(", "").replace(")", "").replace("|", "")
    m = re.fullmatch(r"([vas])\[(\d+):(\d+)\]", tok)
    if m:
        return [(m.group(1), i) for i in range(int(m.group(2)), int(m.group(3)) + 1)]
    m = re.fullmatch(r"([vas])(\d+)", tok)
    if m:
        return [(m.group(1), int(m.group(2)))]
    if tok == "vcc":
        return [("s", "vcc")]
    if tok == "exec":
        return [("s", "exec")]
    if tok == "m0":
        return [("s", "m0")]
    return []

class Ins:
    __slots__ = ("text", "op", "r", "w", "kind", "tag", "need", "srcC", "passes", "post", "xr")
    def __init__(self, text, tag=None, need=None):
        self.text = text.strip()
        self.tag = tag
        self.need = need
        self.srcC = []
        self.passes = 0
        self.post = ""
        self.xr = set()
        t = self.text.split(";")[0].strip()
        if t.endswith(":"):
            self.op = "label"; self.kind = "label"; self.r = []; self.w = []; return
        parts = t.split(None, 1)
        op = parts[0]; self.op = op
        ops = []
        if len(parts) > 1:
            ops = [x.strip() for x in re.split(r",(?![^\[]*\])", parts[1])]
            last = ops[-1].split()
            mods = last[1:]
            ops[-1] = last[0] if last else ""
        else:
            mods = []
        R = lambda lst: [x for o in lst for x in regs_of(o)]
        r, w = [], []
        if op.startswith("v_mfma"):
            self.kind = "mfma"; self.passes = 8 if "32x32" in op else 4
            w = R(ops[:1]); r = R(ops[1:]); self.srcC = R(ops[3:4])
        elif op.startswith("v_cmp"):
            self.kind = "valu"; w = R(ops[:1]); r = R(ops[1:])
        elif op.startswith("v_permlane") and "swap" in op:
            self.kind = "valu"; w = R(ops[:2]); r = R(ops[:2])
        elif op.startswith("v_"):
            self.kind = "trans" if op.replace("_e32", "").replace("_e64", "") in TRANS else "valu"
            w = R(ops[:1]); r = R(ops[1:])
            if op.startswith("v_fmac") or op.startswith("v_dot2c") or op.startswith("v_writelane"):
                r += w
        elif op.startswith("ds_read"):
            self.kind = "ds"; w = R(ops[:1]); r = R(ops[1:])
        elif op.startswith("ds_"):
            self.kind = "ds"; r = R(ops)
        elif op.startswith("buffer_load"):
            if "lds" in mods:
                self.kind = "vm"; r = R(ops) + [("s", "m0")]
            else:
                self.kind = "vm"; w = R(ops[:1]); r = R(ops[1:])
        elif op.startswith("buffer_store") or op.startswith("buffer_atomic"):
            self.kind = "vm"; r = R(ops)
        elif op.startswith("s_load") or op in ("s_memtime", "s_memrealtime"):
            self.kind = "smem"; w = R(ops[:1]); r = R(ops[1:])
        elif op == "s_waitcnt":
            self.kind = "wait"
        elif op == "s_nop":
            self.kind = "nop"
        elif op in ("s_barrier", "s_sleep", "s_setprio", "s_endpgm"):
            self.kind = "misc"
        elif op.startswith("s_cbranch") or op == "s_branch":
            self.kind = "branch"
            if "vcc" in op: r = [("s", "vcc")]
        elif op.startswith("s_cmp"):
            self.kind = "salu"; r = R(ops)
        elif op.startswith("s_"):
            self.kind = "salu"; w = R(ops[:1]); r = R(ops[1:])
            if "saveexec" in op: w += [("s", "exec")]; r += [("s", "exec")]
        else:
            raise ValueError("unknown op: " + text)
        self.r = r; self.w = w

def I(text, tag=None, need=None, xr=None):
    x = Ins(text, tag, need)
    if xr: x.xr = set(regs_of(xr))
    return x

def states(ins):
    if ins.kind == "nop":
        return int(ins.text.split()[1]) + 1
    if ins.kind == "label":
        return 0
    return 1

def finalize(prog, verbose=False):
    out = []
    vmq = []
    lgq = []
    nwait = 0; nnop = 0
    def emit(x):
        out.append(x)
    for ins in prog:
        if ins.kind == "label":
            emit(ins); continue
        touched = set(ins.r) | set(ins.w) | ins.xr
        if ins.kind == "wait":
            m = re.search(r"vmcnt\((\d+)\)", ins.text)
            if m:
                n = int(m.group(1)); vmq[:] = vmq[len(vmq) - n:] if n < len(vmq) else vmq
                if n == 0: vmq[:] = []
            m = re.search(r"lgkmcnt\((\d+)\)", ins.text)
            if m:
                n = int(m.group(1))
                if n == 0: lgq[:] = []
                else:
                    assert not any(e[2] for e in lgq), "counted lgkmcnt with smem outstanding"
                    lgq[:] = lgq[len(lgq) - n:] if n < len(lgq) else lgq
            emit(ins); continue
        need = set(ins.need or [])
        vi = -1
        for k, (d, tg) in enumerate(vmq):
            if (d & touched) or (tg is not None and tg in need): vi = k
        li = -1
        for k, (d, tg, sm) in enumerate(lgq):
            if (d & touched) or (tg is not None and tg in need): li = k
        parts = []
        if vi >= 0:
            n = min(len(vmq) - 1 - vi, 63)
            parts.append("vmcnt(%d)" % n); vmq[:] = vmq[len(vmq) - n:] if n else []
        if li >= 0:
            if any(e[2] for e in lgq): n = 0
            else: n = min(len(lgq) - 1 - li, 15)
            parts.append("lgkmcnt(%d)" % n); lgq[:] = lgq[len(lgq) - n:] if n else []
        if parts:
            emit(Ins("s_waitcnt " + " ".join(parts))); nwait += 1
        req = 0
        dist = 0
        rs, ws = set(ins.r), set(ins.w)
        isvalu = ins.kind in ("valu", "trans")
        for p in reversed(out):
            if dist >= 20: break
            if p.kind == "label":
                continue
            pw = set(p.w); need_d = 0
            pvalu = p.kind in ("valu", "trans")
            if p.kind == "mfma":
                ov_r = pw & rs; ov_w = pw & ws
                big = {8: 12, 4: 8}[p.passes]
                if ins.kind == "mfma":
                    c = set(ins.srcC)
                    ab = rs - c if not (set(ins.r[:len(ins.r) - len(ins.srcC)]) & c) else set(ins.r[:len(ins.r) - len(ins.srcC)])
                    if pw & ab: need_d = max(need_d, big)
                    if pw & c:
                        if not (c == pw and ins.passes == p.passes): need_d = max(need_d, {8: 10, 4: 6}[p.passes])
                    if ov_w and not (pw & c): need_d = max(need_d, big)
                elif ins.kind in ("valu", "trans", "ds", "vm"):
                    if ov_r or ov_w: need_d = max(need_d, big)
                if isvalu and (set(p.srcC) & ws): need_d = max(need_d, {8: 7, 4: 3}[p.passes])
                if ins.kind in ("ds", "vm") and (set(p.srcC) & ws): need_d = max(need_d, {8: 7, 4: 3}[p.passes])
            if pvalu:
                vw = {x for x in pw if x[0] in "va"}
                sw = {x for x in pw if x[0] == "s"}
                if ins.kind == "mfma" and (vw & rs): need_d = max(need_d, 2)
                if p.kind == "trans" and isvalu and (vw & rs): need_d = max(need_d, 1)
                if ins.op.startswith("v_permlane") and (vw & rs): need_d = max(need_d, 2)
                if (ins.op.startswith("v_readfirstlane") or ins.op.startswith("v_readlane")) and (vw & rs): need_d = max(need_d, 1)
                if "dpp" in ins.text and (vw & rs): need_d = max(need_d, 2)
                if ins.kind == "vm" and (sw & rs): need_d = max(need_d, 5)
                if isvalu and (sw & rs): need_d = max(need_d, 2)
                if ins.kind in ("salu", "branch") and (sw & rs): need_d = max(need_d, 1)
            if p.kind == "salu" and ("s", "m0") in pw and ("s", "m0") in rs and ins.kind in ("vm", "ds"):
                need_d = max(need_d, 1)
            if p.kind == "vm" and p.op.startswith("buffer_store") and ("x4" in p.op or "x3" in p.op):
                data = set(regs_of(re.split(r",(?![^\[]*\])", p.text.split(None, 1)[1])[0]))
                if data & ws: need_d = max(need_d, 2)
            if need_d > dist: req = max(req, need_d - dist)
            dist += states(p)
        while req > 0:
            k = min(req, 16)
            emit(Ins("s_nop %d" % (k - 1))); nnop += 1; req -= k
        emit(ins)
        if ins.kind == "vm":
            vmq.append((set(ins.w), ins.tag))
        elif ins.kind == "ds":
            lgq.append((set(ins.w), ins.tag, False))
        elif ins.kind == "smem":
            lgq.append((set(ins.w), ins.tag, True))
    if verbose:
        print("finalize: %d instr, %d auto waits, %d auto nops" % (len(out), nwait, nnop))
    return [("" if x.kind == "label" else "    ") + x.text + x.post for x in out]

def weave(main, fill, per=None, lead=0):
    out = []
    n = len(main)
    fi = 0
    out += fill[:lead]; fi = lead
    rem = len(fill) - fi
    for k, m in enumerate(main):
        out.append(m)
        if per is not None:
            c = per[k]
        else:
            c = (rem * (k + 1)) // n - (rem * k) // n
        out += fill[fi:fi + c]; fi += c
    out += fill[fi:]
    return out


class Sched:
    def __init__(self):
        self.main = []; self.pre = []; self.wt = []; self.b = []
    def pos(self, ops, wt=6, pre=None):
        self.main.append(ops if isinstance(ops, list) else [ops]); self.wt.append(wt)
        self.pre.append(list(pre or [])); self.b.append([[], [], []])
        return len(self.main) - 1
    def put(self, p, items, cls):
        for it in items: self.b[p][cls].append(it if isinstance(it, list) else [it])
    def spread(self, items, a, z, cls, cost=None):
        z = min(z, len(self.main))
        items = [it if isinstance(it, list) else [it] for it in items]
        cf = cost or (lambda g: sum(2 if x.kind == "trans" else 1 for x in g))
        tot = sum(cf(g) for g in items)
        W = sum(self.wt[a:z]); acc = 0; cum = 0; k = 0
        for p in range(a, z):
            acc += self.wt[p]
            while k < len(items) and (cum + cf(items[k]) / 2.0 <= tot * acc / W or p == z - 1):
                self.b[p][cls].append(items[k]); cum += cf(items[k]); k += 1
    def emit(self):
        out = []
        for p in range(len(self.main) - 1):
            keep = []; moved = []
            bar = any(x.op == "s_barrier" for x in self.pre[p + 1])
            for n, g in enumerate(self.b[p][2]):
                ok = n > 0 and not bar and any(x.kind in ("vm", "ds") for x in g) and not any(x.kind == "branch" for x in g)
                if ok:
                    gr = set(r for x in g for r in x.r); gw = set(r for x in g for r in x.w)
                    later = [x for h in self.b[p][2][n + 1:] for x in h] + self.pre[p + 1] + self.main[p + 1][:1] + self.main[p][1:] + [x for h in self.b[p + 1][0] for x in h]
                    for x in later:
                        if (set(x.w) & (gr | gw)) or (set(x.r) & gw) or x.kind == "branch": ok = False
                if ok: moved.append(g)
                else: keep.append(g)
            self.b[p][2] = keep
            self.b[p + 1][1] = moved + self.b[p + 1][1]
        for p in range(len(self.main)):
            out += self.pre[p]
            fl = [x for c in self.b[p] for g in c for x in g]
            m = self.main[p]
            if len(m) == 1:
                out += m + fl
            else:
                groups = [g for c in self.b[p] for g in c]
                n = len(groups); cut = n
                cnt = 0
                while cut > 0 and cnt + len(groups[cut - 1]) <= 2:
                    cnt += len(groups[cut - 1]); cut -= 1
                out += [m[0]] + [x for g in groups[:cut] for x in g] + m[1:] + [x for g in groups[cut:] for x in g]
        return out
```

```python
import sys, math, struct
from asmlib import I, Ins, finalize, weave, Sched

KNAME = "parallel_sum__sliding_block__glu_gated_geglu__prompt_kernel"
OPT = dict(stamps=0, spin=200000)
for a in sys.argv[2:]:
    k, v = a.split("="); OPT[k] = int(v)
def O(k, d): return OPT.get(k, d)

HUGE = 0x40000000
H0 = 4 << 20
HSTR = 88 * 1024
O0 = 10 << 20
FL0 = 12 << 20
ST0 = FL0 + (64 << 10)
SP0 = FL0 + (256 << 10)
WSSZ = 13 << 20
WB = 65536
CS1 = 0; C1STR = 520
STRIP = 49152
CS2 = 53248; CSTR = 1040
LDSSZ = 163840

STC = 4
STB = 18 + 2
sKV = [8, 9, 10]; sRHO, sWB, sWS, sAL, sWL, sMSK, sGp = 11, 12, 13, 14, 15, 16, 17
SX, SQ, SG, SU, SD, SO, SOUT, SWS, SDBG = 24, 28, 32, 36, 40, 44, 48, 52, 56
sW, sRB, sCB, sTB2, sNB, sT0, sT2, sH2, sTB = 3, 60, 61, 62, 63, 64, 65, 66, 67
sX, sQ, sG, sM0X, sM0W = 68, 69, 70, 71, 72
sT, sTb, sTc, sTd = 73, 74, 75, 76
sPK, sPH, sM0D, sD, sSPIN = 77, 78, 80, 81, 82
sPHI, sPH2, sC, sHUGE, sA = 83, 84, 85, 86, 87
sM0K = 79; sSP, sSG = 0, 1
STREG = list(range(90, 94)) + list(range(18, 24))
sWE = 94
sLH = [64, 65, 16]; sLW = [17, 14, 15]
def srd(n): return "s[%d:%d]" % (n, n + 3)
def vr(a, n): return "v[%d:%d]" % (a, a + n - 1)
def ar(a, n): return "a[%d:%d]" % (a, a + n - 1)

vL = 0; vT0, vT1, vT2 = 1, 2, 3
vXo = 4; vQo = 8; vGo = 10; vXr = 12; vXp = 16; vWr = 20
vK = [4, 8]
vBx = [12, 16]; vG = 20
vQo2 = 28; vGo2 = 30; vW2r = 32
vSum = 40; vCS1 = 44; vCS2 = 48
vL16, vKVst, vHst, vFl2, vCSw1, vCSw2, vPoll, vInit, vCSr, vSPo, vDo = 52, 53, 54, 55, 56, 57, 58, 59, 60, 61, 62
ACC1 = 64; ACC2 = 160
vXT = 160; vSL = 176
vKa, vVa, vVinc, vOst, vKVo, vPa, vPb, vW3r = 208, 209, 210, 211, 212, 213, 214, 215
vOut, vEo, vAo, vOo, vFl1, vRw, vRr, vPs, vQS = 217, 219, 221, 223, 225, 226, 227, 228, 229
vU = 232; vCSA = [240, 244, 248]
vXres = 28
vBF = 64; vBD = 80; vS = [96, 112]; vP = [128, 136]; vQ = 144; vO = [160, 176]
vOF = 64
aSTV = 200; aMSK = 216
aX = 0; aSEL = 128; aXP = 140; aWF = 152
aH = 0; aW2 = 176; aACC = 192; aK = 192; aV = 200

prog = []; rare = []
def L(txt, **kw): return [I(ln.strip(), **kw) for ln in txt.strip().split("\n") if ln.strip() and not ln.strip().startswith(";")]
def E(x, **kw):
    if isinstance(x, str): prog.extend(L(x, **kw))
    elif isinstance(x, Ins): prog.append(x)
    else: prog.extend(x)
def flat(g): return [x for y in g for x in y]
one = lambda g: 1
nstamp = [0]; xfc = [0]
TIMER = "s_memrealtime" if O("rt", 0) else "s_memtime"
def stampq(sets=(1,)):
    if O("xf", 0):
        if 1 in sets:
            xfc[0] += 1
            if xfc[0] == OPT["xf"]: return L("s_waitcnt lgkmcnt(0)\n%s s[90:91]\ns_waitcnt lgkmcnt(0)" % ("s_memtime" if O("xfc", 0) else "s_memrealtime"))
        return []
    if OPT["stamps"] in sets:
        k = nstamp[0]; nstamp[0] += 1
        return L("s_waitcnt lgkmcnt(0)\n%s s[88:89]\ns_waitcnt lgkmcnt(0)\nv_writelane_b32 v231, s88, %d" % (TIMER, k))
    return []
def stamp(sets=(1,)): E(stampq(sets))
def fx(f): return "0x%08x" % struct.unpack("<I", struct.pack("<f", f))[0]
MF = "v_mfma_f32_32x32x16_bf16"; MS = "v_mfma_f32_16x16x32_bf16"
HOME = dict(Ka=vKa, Va=vVa, Vinc=vVinc, Ost=vOst, KVo=vKVo, Pa=vPa, Pb=vPb, W3r=vW3r, W3s=vW3r+1, Out=vOut, Out1=vOut+1, Eo=vEo, Eo1=vEo+1, Ao=vAo, Ao1=vAo+1, Oo=vOo, Oo1=vOo+1, Fl1=vFl1, Rw=vRw, Rr=vRr)
def park(name, src): return f"v_mov_b32 v{HOME[name]}, {src}\n"
def dma(voff, S, soff, imm, tag, flags="", need=None):
    o = (" offset:%d" % imm) if imm else ""
    return I(f"buffer_load_dwordx4 v{voff}, {srd(S)}, {soff} offen{o} {flags} lds", tag=tag, need=need)
def glue(q):
    out = []; cur = []
    for n, x in enumerate(q):
        if isinstance(x, list):
            assert not cur
            out.append(x); continue
        cur.append(x)
        nxt = q[n + 1] if n + 1 < len(q) else None
        if x.op.startswith("s_cmp") or (nxt is not None and not isinstance(nxt, list) and nxt.op.startswith("s_cselect")): continue
        out.append(cur); cur = []
    if cur: out.append(cur)
    return out

E("""
s_cmp_ge_u32 s2, 256
s_cbranch_scc1 L_end
s_load_dwordx4 s[4:7], s[0:1], 0
s_load_dwordx2 s[8:9], s[0:1], 16
s_load_dwordx4 s[12:15], s[0:1], 32
s_load_dwordx4 s[16:19], s[0:1], 48
s_load_dwordx4 s[20:23], s[0:1], 64
""")
if OPT["stamps"]: E(TIMER + " s[88:89]")
if O("xf", 0): E("s_memrealtime s[88:89]\ns_memtime s[92:93]")
def ctouch(vtid):
    return L(f"""s_getpc_b64 s[40:41]
s_mov_b32 s42, L_table_end-.
s_mov_b32 s43, 0x20000
s_lshr_b32 s44, s2, 3
s_lshl_b32 s44, s44, 11
v_and_b32 v{vU}, 15, v{vtid}
v_lshrrev_b32 v{vU+1}, 4, v{vtid}
v_lshlrev_b32 v{vU}, 7, v{vU}
v_lshl_add_u32 v{vU}, v{vU+1}, 24, v{vU}
buffer_load_dword v255, v{vU}, s[40:43], s44 offen""")
if O("ctouch", 1) == 1: E(ctouch(0))
else: E(f"v_mov_b32 v{vU+2}, v0")
E(f"""
v_lshrrev_b32 v{vT0}, 6, v0
v_and_b32 v{vL}, 63, v0
v_readfirstlane_b32 s{sW}, v{vT0}
s_and_b32 s{sT}, s2, 7
s_lshr_b32 s{sTb}, s2, 3
s_lshr_b32 s{sTc}, s{sT}, 2
s_lshl_b32 s{sRB}, s{sTc}, 3
s_and_b32 s{sTd}, s{sTb}, 7
s_add_u32 s{sRB}, s{sRB}, s{sTd}
s_and_b32 s{sCB}, s{sT}, 3
s_lshl_b32 s{sCB}, s{sCB}, 2
s_lshr_b32 s{sTd}, s{sTb}, 3
s_add_u32 s{sCB}, s{sCB}, s{sTd}
s_lshl_b32 s{sTB2}, s{sT}, 2
s_and_b32 s{sTd}, s{sTb}, 3
s_add_u32 s{sTB2}, s{sTB2}, s{sTd}
s_lshr_b32 s{sNB}, s{sTb}, 2
""")
if O("phi", 1) == 1: E(f"s_lshl_b32 s{sPHI}, s{sCB}, 1\ns_add_u32 s{sPHI}, s{sPHI}, s{sRB}\ns_and_b32 s{sPHI}, s{sPHI}, 7")
else: E(f"s_add_u32 s{sPHI}, s{sCB}, s{sRB}\ns_and_b32 s{sPHI}, s{sPHI}, 3\ns_lshl_b32 s{sPHI}, s{sPHI}, 1")
E(f"""
s_lshl_b32 s{sTB}, s{sRB}, 2
s_add_u32 s{sTB}, s{sTB}, s{sW}
s_mul_i32 s{sT0}, s{sCB}, 3
s_lshl_b32 s{sT}, s{sCB}, 1
s_add_u32 s{sT}, s{sT}, 11
s_cmp_lt_u32 s{sCB}, 11
s_cselect_b32 s{sT0}, s{sT0}, s{sT}
s_lshl_b32 s{sM0X}, s{sW}, 12
s_lshl_b32 s{sM0W}, s{sW}, 11
s_add_u32 s{sM0W}, s{sM0W}, {WB}
s_lshl_b32 s{sT}, s{sTB}, 15
v_lshrrev_b32 v{vT0}, 3, v{vL}
v_lshlrev_b32 v{vT0}, 10, v{vT0}
v_add_u32 v{vT0}, s{sT}, v{vT0}
v_and_b32 v{vT1}, 7, v{vL}
v_lshrrev_b32 v{vT2}, 4, v{vL}
v_xor_b32 v{vT1}, v{vT1}, v{vT2}
v_lshl_add_u32 v{vXo}, v{vT1}, 4, v{vT0}
v_xor_b32 v{vT1}, 4, v{vT1}
v_lshl_add_u32 v{vXo+1}, v{vT1}, 4, v{vT0}
v_add_u32 v{vXo+1}, {7*1024}, v{vXo+1}
v_add_u32 v{vXo+2}, {14*1024}, v{vXo}
v_add_u32 v{vXo+3}, {14*1024}, v{vXo+1}
v_lshrrev_b32 v{vT0}, 5, v{vL}
v_bfe_u32 v{vT1}, v{vL}, 2, 2
v_lshl_add_u32 v{vT0}, v{vT0}, 2, v{vT1}
v_bfe_u32 v{vT1}, v{vL}, 4, 1
v_and_b32 v{vT2}, 3, v{vL}
v_lshlrev_b32 v{vT2}, 4, v{vT2}
v_lshl_add_u32 v{vT1}, v{vT1}, 6, v{vT2}
v_lshl_add_u32 v{vDo}, v{vT0}, 10, v{vT1}
s_lshl_b32 s{sT}, s{sW}, 4
v_add_u32 v{vT0}, s{sT}, v{vT0}
s_and_b32 s{sT}, s{sCB}, 1
s_add_u32 s{sT}, s{sT}, 1
s_lshl_b32 s{sT}, s{sT}, 10
s_lshr_b32 s{sTb}, s{sCB}, 1
s_lshl_b32 s{sTb}, s{sTb}, 7
s_add_u32 s{sT}, s{sT}, s{sTb}
v_mul_u32_u24 v{vQo}, 3072, v{vT0}
v_add3_u32 v{vQo}, v{vQo}, v{vT1}, s{sT}
v_add_u32 v{vQo+1}, {8*3072-1024}, v{vQo}
s_lshl_b32 s{sT}, s{sT0}, 6
v_mul_u32_u24 v{vGo}, 2752, v{vT0}
v_add3_u32 v{vGo}, v{vGo}, v{vT1}, s{sT}
v_add_u32 v{vGo+1}, {8*2752-1024}, v{vGo}
""")
def mksrd(n, p, size): return f"s_mov_b32 s{n}, s{p}\ns_mov_b32 s{n+1}, s{p+1}\ns_mov_b32 s{n+2}, {size}\ns_mov_b32 s{n+3}, 0x20000\n"
E(mksrd(SX, 4, 2097152) + mksrd(SQ, 6, 1572864) + mksrd(SG, 12, 1409024) + mksrd(SU, 14, 1409024))
if OPT["stamps"]:
    E("v_mov_b32 v231, -1\nv_writelane_b32 v231, s88, 0"); nstamp[0] = 1

def p1_dma(c):
    sl = c & 3; t = "c%d" % c
    g = []
    g.append(L(f"s_add_u32 s{sC}, s{sPHI}, {c}\ns_and_b32 s{sC}, s{sC}, 7\ns_add_u32 m0, s{sM0X}, {sl*16384}\ns_lshl_b32 s{sX}, s{sC}, 7") + [dma(vXo, SX, f"s{sX}", 0, t)])
    g += [[dma(vXo + i, SX, f"s{sX}", 1024 * i, t)] for i in range(1, 4)]
    g.append(L(f"s_add_u32 m0, s{sM0W}, {sl*24576}\ns_mul_i32 s{sQ}, s{sC}, 196608") + [dma(vQo, SQ, f"s{sQ}", 0, t)])
    g.append([dma(vQo + 1, SQ, f"s{sQ}", 1024, t), I(f"s_add_u32 m0, s{sM0W}, {sl*24576+8192}")])
    g.append(L(f"s_mul_i32 s{sG}, s{sC}, 176128") + [dma(vGo, SG, f"s{sG}", 0, t)])
    g.append([dma(vGo + 1, SG, f"s{sG}", 1024, t), I(f"s_add_u32 m0, s{sM0W}, {sl*24576+16384}")])
    g.append([dma(vGo, SU, f"s{sG}", 0, t)])
    g.append([dma(vGo + 1, SU, f"s{sG}", 1024, t)])
    return g
def p2_dma(p):
    t = "p%d" % p
    g = []
    g.append(L(f"s_add_u32 s{sC}, s{sPH2}, {2*p}\ns_and_b32 s{sC}, s{sC}, 7\ns_add_u32 m0, s{sM0W}, {p*24576}\ns_mul_i32 s{sQ}, s{sC}, 196608") + [dma(vQo2, SQ, f"s{sQ}", 0, t)])
    g.append([dma(vQo2 + 1, SQ, f"s{sQ}", 1024, t), I(f"s_add_u32 m0, s{sM0W}, {p*24576+8192}")])
    g.append(L(f"s_mul_i32 s{sG}, s{sC}, 176128") + [dma(vGo2, SG, f"s{sG}", 0, t)])
    g.append([dma(vGo2 + 1, SG, f"s{sG}", 1024, t), I(f"s_add_u32 m0, s{sM0W}, {p*24576+16384}")])
    g.append([dma(vGo2, SU, f"s{sG}", 0, t)])
    g.append([dma(vGo2 + 1, SU, f"s{sG}", 1024, t)])
    return g

E(mksrd(SWS, 22, WSSZ) + mksrd(SDBG, 20, 256) + f"""
s_mov_b32 s{sHUGE}, {HUGE}
v_lshlrev_b32 v{vL16}, 4, v{vL}
s_mul_i32 s{sT}, s{sW}, 10240
s_add_u32 s{sT}, s{sT}, {FL0}
s_cmp_lg_u32 s2, 0
s_cselect_b32 s{sT}, s{sHUGE}, s{sT}
s_cbranch_scc1 L_nozero
s_add_u32 s{sTb}, s{sT}, 4096
s_add_u32 s{sTc}, s{sT}, 8192
v_mov_b32 v{vXT}, 0
v_mov_b32 v{vXT+1}, 0
v_mov_b32 v{vXT+2}, 0
v_mov_b32 v{vXT+3}, 0
""")
for i in range(10):
    E(I(f"buffer_store_dwordx4 {vr(vXT,4)}, v{vL16}, {srd(SWS)}, s{[sT, sTb, sTc][i>>2]} offen offset:{1024*(i&3)} sc1", tag="zero"))
prog[-1].post = "\nL_nozero:"
stamp((2,))
if O("tlb", 0):
    E(f"""s_cmp_eq_u32 s{sW}, 1
s_cselect_b32 s44, s{SQ}, s{SX}
s_cselect_b32 s45, s{SQ+1}, s{SX+1}
s_cmp_eq_u32 s{sW}, 2
s_cselect_b32 s44, s{SG}, s44
s_cselect_b32 s45, s{SG+1}, s45
s_cmp_eq_u32 s{sW}, 3
s_cselect_b32 s44, s{SU}, s44
s_cselect_b32 s45, s{SU+1}, s45
s_mov_b32 s46, 1409024
s_mov_b32 s47, 0x20000
v_lshlrev_b32 v{vT0}, {O("tlbs", 24)}, v{vL}
buffer_load_dword v{vXT+7}, v{vT0}, s[44:47], 0 offen""")
g0 = p1_dma(0)
CT = O("ctouch", 1)
if CT >= 2: E(flat(g0[:CT - 1]) + ctouch(vU + 2) + flat(g0[CT - 1:]))
else: E(flat(g0))
stamp((2,))
init_mark = len(prog)
E(mksrd(SD, 16, 1409024) + mksrd(SO, 8, 524288) + mksrd(SOUT, 18, 2097152))
E(f"""
s_cmp_lg_u32 s2, 0
s_cselect_b32 s{sT}, s{sHUGE}, 0
s_lshl_b32 s{sTb}, s{sW}, 2
s_add_u32 s{sT}, s{sT}, s{sTb}
v_mov_b32 v{vT0}, 1
v_lshlrev_b32 v{vT1}, 8, v{vL}
""")
E(I(f"buffer_store_dword v{vT0}, v{vT1}, {srd(SDBG)}, s{sT} offen sc1", need=["zero"]))
E(f"""
s_lshr_b32 s{sPH2}, s{sW}, 1
s_add_u32 s{sPH2}, s{sPH2}, s{sPHI}
s_cmp_lt_u32 s{sCB}, 11
s_cselect_b32 s{sT}, 2, 1
s_cselect_b32 s{sMSK}, 0, s{sHUGE}
s_add_u32 s{sT2}, s{sT0}, s{sT}
""")
if O("w2m", 0) == 0:
    w2touch = L(f"""s_mul_i32 s{sT}, s2, 3
s_add_u32 s{sT}, s{sT}, s{sW}
s_mov_b32 s{STC+3}, 0x20000
s_cmp_eq_u32 s{sW}, 3
s_cselect_b32 s{sT}, s2, s{sT}
s_cselect_b32 s{STC}, s{SO}, s{SD}
s_cselect_b32 s{STC+1}, s{SO+1}, s{SD+1}
s_cselect_b32 s{STC+2}, s{SO+2}, s{SD+2}
s_lshl_b32 s{sT}, s{sT}, 11
v_and_b32 v{vT0}, 15, v{vL}
v_lshlrev_b32 v{vT0}, 7, v{vT0}
v_lshrrev_b32 v{vT1}, 4, v{vL}
v_lshl_add_u32 v{vT0}, v{vT1}, 28, v{vT0}
buffer_load_dword v{vPoll}, v{vT0}, {srd(STC)}, s{sT} offen sc1""")
else:
    w2touch = L(f"""s_lshl_b32 s{sT}, s2, 1
s_and_b32 s{sTb}, s{sW}, 1
s_add_u32 s{sT}, s{sT}, s{sTb}
s_lshr_b32 s{sTb}, s{sT}, 5
s_mul_i32 s{sTb}, s{sTb}, 98304
s_add_u32 s{sTb}, s{sTb}, 65536
s_and_b32 s{STC}, s{sT}, 31
s_lshl_b32 s{STC}, s{STC}, 10
s_add_u32 s{sTb}, s{sTb}, s{STC}
s_lshl_b32 s{sT}, s{sT}, 10
s_mov_b32 s{STC+3}, 0x20000
s_cmp_lt_u32 s{sW}, 2
s_cselect_b32 s{sT}, s{sT}, s{sTb}
s_cselect_b32 s{STC}, s{SO}, s{SD}
s_cselect_b32 s{STC+1}, s{SO+1}, s{SD+1}
s_cselect_b32 s{STC+2}, s{SO+2}, s{SD+2}
v_and_b32 v{vT0}, 7, v{vL}
v_lshlrev_b32 v{vT0}, 7, v{vT0}
v_lshrrev_b32 v{vT1}, 3, v{vL}
v_lshl_add_u32 v{vT0}, v{vT1}, 27, v{vT0}
buffer_load_dword v{vPoll}, v{vT0}, {srd(STC)}, s{sT} offen sc1""")
if O("w2t", 0) == 0: E(w2touch)
E(f"""
v_and_b32 v{vT0}, 31, v{vL}
v_lshrrev_b32 v{vT1}, 5, v{vL}
v_bfe_u32 v{vT2}, v{vL}, 1, 3
v_xor_b32 v{vT2}, v{vT2}, v{vT1}
v_lshlrev_b32 v{vT0}, 7, v{vT0}
v_lshl_add_u32 v{vT0}, v{vT2}, 4, v{vT0}
v_add_u32 v{vT0}, s{sM0X}, v{vT0}
""")
for s in range(4):
    E(f"s_xor_b32 s{sT}, s{sW}, {s}\ns_lshl_b32 s{sT}, s{sT}, 5\nv_xor_b32 v{vXr+s}, s{sT}, v{vT0}\nv_xor_b32 v{vXp+s}, 4096, v{vXr+s}")
E(f"""
v_bfe_u32 v{vT2}, v{vL}, 2, 2
v_lshlrev_b32 v{vT2}, 6, v{vT2}
v_bfe_u32 v{vT0}, v{vL}, 4, 1
v_lshl_add_u32 v{vT2}, v{vT0}, 5, v{vT2}
v_and_b32 v{vT0}, 3, v{vL}
v_lshl_add_u32 v{vT2}, v{vT0}, 3, v{vT2}
v_lshl_add_u32 v{vT0}, v{vT1}, 10, v{vT2}
v_lshl_add_u32 v{vT2}, v{vT1}, 9, v{vT2}
s_and_b32 s{sTc}, s{sW}, 1
s_lshl_b32 s{sTc}, s{sTc}, 8
s_add_u32 s{sTc}, s{sTc}, {WB}
s_mul_i32 s{sT}, s{sW}, 6144
s_add_u32 s{sM0D}, s{sT}, {WB}
v_add_u32 v{vT1}, s{sM0D}, v{vT2}
{park("W3r", f"v{vT1}")}v_add_u32 v{vT1}, 49152, v{vT1}
{park("W3s", f"v{vT1}")}
""")
for s in range(4):
    E(f"""
s_xor_b32 s{sT}, s{sW}, {s}
s_lshl_b32 s{sTb}, s{sT}, 11
s_add_u32 s{sTb}, s{sTb}, s{sTc}
v_add_u32 v{vWr+2*s}, s{sTb}, v{vT0}
v_add_u32 v{vWr+2*s+1}, 49152, v{vWr+2*s}
s_lshl_b32 s{sTb}, s{sT}, 10
s_add_u32 s{sTb}, s{sTb}, {WB}
v_add_u32 v{vW2r+2*s}, s{sTb}, v{vT2}
v_add_u32 v{vW2r+2*s+1}, 49152, v{vW2r+2*s}
""")
E(f"""
v_lshrrev_b32 v{vT0}, 2, v{vL}
s_and_b32 s{sT}, s{sW}, 1
s_lshl_b32 s{sT}, s{sT}, 5
v_add_u32 v{vT0}, s{sT}, v{vT0}
v_and_b32 v{vT1}, 3, v{vL}
v_lshlrev_b32 v{vT1}, 4, v{vT1}
s_lshl_b32 s{sT}, s{sCB}, 6
v_mul_u32_u24 v{vQo2}, 3072, v{vT0}
v_add3_u32 v{vQo2}, v{vQo2}, v{vT1}, s{sT}
v_add_u32 v{vQo2+1}, {16*3072-1024}, v{vQo2}
s_lshl_b32 s{sT}, s{sT2}, 6
v_mul_u32_u24 v{vGo2}, 2752, v{vT0}
v_add3_u32 v{vGo2}, v{vGo2}, v{vT1}, s{sT}
v_add_u32 v{vGo2}, s{sMSK}, v{vGo2}
v_add_u32 v{vGo2+1}, {16*2752-1024}, v{vGo2}
v_and_b32 v{vT0}, 15, v{vL}
v_bfe_u32 v{vT1}, v{vL}, 4, 1
v_sub_u32 v{vT0}, v{vT0}, v{vT1}
v_mov_b32 v{vT1}, 0x3f803f80
""")
for t in range(3):
    E(f"v_cmp_eq_u32 vcc, {2*t}, v{vT0}\nv_cndmask_b32 v{vT2}, 0, v{vT1}, vcc")
    E("\n".join(f"v_accvgpr_write_b32 a{aSEL+4*t+j}, v{vT2}" for j in range(4)))
E(f"""
s_lshl_b32 s{sT}, s{sRB}, 2
s_sub_i32 s{sT}, 8, s{sT}
v_and_b32 v{vT0}, 7, v{vL}
v_lshlrev_b32 v{vT0}, 1, v{vT0}
v_cmp_le_i32 vcc, s{sT}, v{vT0}
v_cndmask_b32 v{vT2}, 0, v{vT1}, vcc
v_accvgpr_write_b32 a{aSTV}, v{vT2}
v_accvgpr_write_b32 a{aSTV+1}, v{vT2}
v_add_u32 v{vT0}, 1, v{vT0}
v_cmp_le_i32 vcc, s{sT}, v{vT0}
v_cndmask_b32 v{vT2}, 0, v{vT1}, vcc
v_accvgpr_write_b32 a{aSTV+2}, v{vT2}
v_accvgpr_write_b32 a{aSTV+3}, v{vT2}
v_lshlrev_b32 v{vT0}, 3, v{vL}
s_and_b32 s{sT}, s{sTB}, -2
s_lshl_b32 s{sTb}, s{sT}, 13
s_add_u32 s{sTb}, s{sTb}, {SP0}
v_add_u32 v{vSPo}, s{sTb}, v{vT0}
s_and_b32 s{sTc}, s{sW}, 1
s_lshl_b32 s{sTc}, s{sTc}, 13
s_lshl_b32 s{sSP}, s{sCB}, 9
s_add_u32 s{sSP}, s{sSP}, s{sTc}
s_and_b32 s{sSG}, s{sCB}, 12
s_lshl_b32 s{sSG}, s{sSG}, 9
s_add_u32 s{sSG}, s{sSG}, s{sTc}
s_lshl_b32 s{sT}, s{sT}, 7
s_and_b32 s{sTb}, s{sCB}, 12
s_lshl_b32 s{sTb}, s{sTb}, 3
s_add_u32 s{sT}, s{sT}, s{sTb}
s_add_u32 s{sT}, s{sT}, {FL0+4*8192}
v_bfe_u32 v{vT1}, v{vL}, 2, 1
v_and_b32 v{vT2}, 3, v{vL}
v_lshlrev_b32 v{vT2}, 3, v{vT2}
v_lshl_add_u32 v{vT1}, v{vT1}, 7, v{vT2}
v_add_u32 v{vPs}, s{sT}, v{vT1}
s_and_b32 s{sTc}, s{sW}, 1
s_mul_i32 s{sT}, s{sTc}, {8*C1STR}
v_add_u32 v{vCSr}, s{sT}, v{vT0}
s_lshr_b32 s{sTb}, s{sW}, 1
s_lshl_b32 s{sTd}, s{sTb}, 8
s_add_u32 s{sT}, s{sT}, s{sTd}
v_bfe_u32 v{vT0}, v{vL}, 1, 3
v_and_b32 v{vT1}, 1, v{vL}
v_lshrrev_b32 v{vT2}, 4, v{vL}
v_lshl_add_u32 v{vT1}, v{vT1}, 2, v{vT2}
v_mul_u32_u24 v{vT2}, {C1STR}, v{vT0}
v_lshl_add_u32 v{vT2}, v{vT1}, 5, v{vT2}
v_add_u32 v{vCSw1}, s{sT}, v{vT2}
s_lshl_b32 s{sT}, s{sTb}, 9
s_lshl_b32 s{sTd}, s{sTc}, 3
s_add_u32 s{sT}, s{sT}, s{sTd}
v_mul_u32_u24 v{vT2}, {CSTR}, v{vT0}
v_lshl_add_u32 v{vT2}, v{vT1}, 6, v{vT2}
v_add_u32 v{vCSw2}, s{sT}, v{vT2}
v_and_b32 v{vT0}, 31, v{vL}
v_lshrrev_b32 v{vT1}, 5, v{vL}
v_lshl_add_u32 v{vT0}, v{vT0}, 1, v{vT1}
v_lshlrev_b32 v{vT0}, 4, v{vT0}
v_add_u32 v{vT0}, 2048, v{vT0}
s_and_b32 s{sT}, s{sCB}, 1
s_cmp_eq_u32 s{sT}, 1
s_cselect_b64 vcc, -1, 0
v_cndmask_b32 v{vKVst}, v{vL16}, v{vT0}, vcc
s_and_b32 s{sT}, s{sCB}, 14
s_add_u32 s{sT}, s{sT}, s{sTc}
s_lshl_b32 s{sT}, s{sT}, 18
s_and_b32 s{sTb}, s{sTB}, -2
s_lshl_b32 s{sTd}, s{sTb}, 12
s_add_u32 s{sT}, s{sT}, s{sTd}
v_add_u32 v{vKVst}, s{sT}, v{vKVst}
s_lshl_b32 s{sPK}, s{sTc}, 12
s_mul_i32 s{sT}, s{sTb}, {HSTR}
s_add_u32 s{sT}, s{sT}, {H0}
s_lshl_b32 s{sTd}, s{sCB}, 12
s_add_u32 s{sT}, s{sT}, s{sTd}
s_lshl_b32 s{sTd}, s{sTc}, 11
s_add_u32 s{sT}, s{sT}, s{sTd}
v_add_u32 v{vHst}, s{sT}, v{vL16}
s_mul_i32 s{sPH}, s{sTc}, {HSTR}
s_lshl_b32 s{sT}, s{sCB}, 11
s_lshl_b32 s{sTd}, s{sTc}, 11
s_add_u32 s{sT}, s{sT}, s{sTd}
s_sub_u32 s{sT}, 65536, s{sT}
s_add_u32 s{sT}, s{sT}, s{sPH}
s_cmp_lt_u32 s{sCB}, 12
s_cselect_b32 s{sH2}, s{sT}, s{sHUGE}
s_lshl_b32 s{sT}, s{sTb}, 7
s_lshl_b32 s{sTd}, s{sCB}, 3
s_add_u32 s{sTd}, s{sTd}, {FL0}
s_add_u32 s{sT}, s{sT}, s{sTd}
s_lshl_b32 s{sTb}, s{sTc}, 2
s_add_u32 s{sT}, s{sT}, s{sTb}
v_lshlrev_b32 v{vT0}, 7, v{vL}
v_add_u32 v{vT0}, s{sT}, v{vT0}
v_mov_b32 v{vT1}, s{sHUGE}
v_cmp_gt_u32 vcc, 2, v{vL}
v_cndmask_b32 v{vFl2}, v{vT1}, v{vT0}, vcc
s_lshl_b32 s{sT}, s{sTB}, 7
s_add_u32 s{sT}, s{sT}, s{sTd}
v_mov_b32 v{vT0}, s{sT}
v_cmp_eq_u32 vcc, 0, v{vL}
v_cndmask_b32 v{vT0}, v{vT1}, v{vT0}, vcc
{park("Fl1", f"v{vT0}")}
v_mov_b32 v{vSum}, 0
v_mov_b32 v{vSum+1}, 0
v_mov_b32 v{vSum+2}, 0
v_mov_b32 v{vSum+3}, 0
v_mov_b32 v{vCSA[0]+2}, 0
v_mov_b32 v{vCSA[0]+3}, 0
v_mov_b32 v{vCSA[1]+2}, 0
v_mov_b32 v{vCSA[1]+3}, 0
v_mov_b32 v{vCSA[2]+2}, 0
v_mov_b32 v{vCSA[2]+3}, 0
s_lshl_b32 s{sT}, s{sNB}, 7
v_add_u32 v{vDo}, s{sT}, v{vDo}
v_add_u32 v{vDo+1}, {7*1024}, v{vDo}
s_lshl_b32 s{sT}, s{sW}, 17
v_add_u32 v{vT0}, s{sT}, v{vDo}
{park("Eo", f"v{vT0}")}v_add_u32 v{vT0}, {7*1024}, v{vT0}
{park("Eo1", f"v{vT0}")}
s_mul_i32 s{sT}, s{sTB2}, {2*HSTR}
s_lshl_b32 s{sTb}, s{sW}, 14
s_add_u32 s{sT}, s{sT}, s{sTb}
s_add_u32 s{sT}, s{sT}, {H0}
v_add_u32 v{vT0}, s{sT}, v{vL16}
{park("Ao", f"v{vT0}")}v_add_u32 v{vT0}, {HSTR}, v{vT0}
{park("Ao1", f"v{vT0}")}
s_lshl_b32 s{sT}, s{sTB2}, 16
s_lshl_b32 s{sTb}, s{sW}, 13
s_add_u32 s{sT}, s{sT}, s{sTb}
s_add_u32 s{sT}, s{sT}, {O0}
v_add_u32 v{vT0}, s{sT}, v{vL16}
{park("Oo", f"v{vT0}")}v_add_u32 v{vT0}, 32768, v{vT0}
{park("Oo1", f"v{vT0}")}
s_lshl_b32 s{sRHO}, s{sTB2}, 1
s_add_u32 s{sRHO}, s{sRHO}, s{sNB}
s_and_b32 s{sRHO}, s{sRHO}, {7 if O("rot", 1) else 0}
s_mul_i32 s{sWB}, s{sW}, {12*32768}
s_mov_b32 s{sWS}, 98304
s_cmp_eq_u32 s{sW}, 3
s_cselect_b32 s{sWB}, {35*32768}, s{sWB}
s_cselect_b32 s{sWS}, 65536, s{sWS}
""")
for q in range(8):
    E(f"""s_add_u32 s{sT}, s{sRHO}, {q}
s_bfe_u32 s{sTb}, s{sT}, 0x20001
s_mul_i32 s{sTb}, s{sTb}, s{sWS}
s_and_b32 s{sT}, s{sT}, 1
s_lshl_b32 s{sT}, s{sT}, 15
s_add_u32 s{sT}, s{sT}, s{sTb}
s_add_u32 s{sWE+q}, s{sT}, s{sWB}""")
E(f"""s_add_u32 s{sT}, s{sTB2}, s{sNB}
s_mul_i32 s{sTb}, s{sT}, 43
s_lshr_b32 s{sTb}, s{sTb}, 7
s_mul_i32 s{sTb}, s{sTb}, 3
s_sub_u32 s{sT}, s{sT}, s{sTb}
s_and_b32 s{sT}, s{sT}, {3 if O("rot", 1) else 0}
s_mul_i32 s{sTc}, s{sW}, 10240
s_sub_u32 s{sTc}, 65536, s{sTc}
s_mul_i32 s{sTd}, s{sW}, {9*32768}
s_add_u32 s{sTd}, s{sTd}, 65536""")
for q in range(3):
    E(f"""s_lshl_b32 s{sTb}, s{sT}, 11
s_add_u32 s{sLH[q]}, s{sTb}, s{sTc}
s_mul_i32 s{sTb}, s{sT}, 98304
s_add_u32 s{sLW[q]}, s{sTb}, s{sTd}
s_add_u32 s{sT}, s{sT}, 1
s_cmp_eq_u32 s{sT}, 3
s_cselect_b32 s{sT}, 0, s{sT}""")
E(f"""
s_lshl_b32 s{sA}, s{sRHO}, 11
s_lshl_b32 s{sWB}, s{sRHO}, 14
s_lshl_b32 s{sWS}, s{sRHO}, 10
v_lshrrev_b32 v{vT0}, 3, v{vL}
v_and_b32 v{vT1}, 7, v{vL}
s_lshl_b32 s{sT}, s{sTB2}, 6
s_lshl_b32 s{sTb}, s{sW}, 4
s_add_u32 s{sT}, s{sT}, s{sTb}
s_lshl_b32 s{sT}, s{sT}, 10
s_lshl_b32 s{sTb}, s{sNB}, 7
s_add_u32 s{sT}, s{sT}, s{sTb}
v_lshlrev_b32 v{vT2}, 10, v{vT0}
v_lshl_add_u32 v{vT2}, v{vT1}, 4, v{vT2}
v_add_u32 v{vT2}, s{sT}, v{vT2}
{park("Out", f"v{vT2}")}v_add_u32 v{vT2}, 8192, v{vT2}
{park("Out1", f"v{vT2}")}v_lshlrev_b32 v{vT1}, 1, v{vT1}
v_xor_b32 v{vT1}, v{vT1}, v{vT0}
v_lshlrev_b32 v{vT0}, 8, v{vT0}
v_lshl_add_u32 v{vT0}, v{vT1}, 4, v{vT0}
v_add_u32 v{vT0}, s{sM0X}, v{vT0}
{park("Rr", f"v{vT0}")}v_and_b32 v{vT0}, 31, v{vL}
v_lshrrev_b32 v{vT1}, 5, v{vL}
v_and_b32 v{vT2}, 7, v{vL}
v_xor_b32 v{vT1}, v{vT1}, v{vT2}
v_lshlrev_b32 v{vT0}, 8, v{vT0}
v_lshl_add_u32 v{vT0}, v{vT1}, 4, v{vT0}
s_lshl_b32 s{sT}, s{sW}, 14
v_add_u32 v{vT0}, s{sT}, v{vT0}
{park("Rw", f"v{vT0}")}
v_add_u32 v{vT0}, s{sM0X}, v{vL16}
{park("Ka", f"v{vT0}")}v_lshrrev_b32 v{vT1}, 5, v{vL}
v_bfe_u32 v{vT2}, v{vL}, 2, 2
v_lshl_add_u32 v{vT2}, v{vT1}, 2, v{vT2}
v_lshlrev_b32 v{vT2}, 5, v{vT2}
v_and_b32 v{vT0}, 1, v{vL}
v_lshl_add_u32 v{vT2}, v{vT0}, 4, v{vT2}
v_bfe_u32 v{vT0}, v{vL}, 1, 1
v_lshl_add_u32 v{vT2}, v{vT0}, 3, v{vT2}
s_add_u32 s{sT}, s{sM0X}, 2048
v_add_u32 v{vT2}, s{sT}, v{vT2}
v_xor_b32 v{vT1}, 1, v{vT1}
v_lshlrev_b32 v{vT1}, 7, v{vT1}
s_lshl_b32 s{sT}, s{sW}, 3
s_add_u32 s{sT}, s{sT}, {STRIP}
v_add_u32 v{vT1}, s{sT}, v{vT1}
v_and_b32 v{vT0}, 16, v{vL}
v_cmp_eq_u32 vcc, 0, v{vT0}
v_cndmask_b32 v{vT0}, v{vT1}, v{vT2}, vcc
{park("Va", f"v{vT0}")}v_mov_b32 v{vT1}, 8
v_mov_b32 v{vT2}, 4096
v_cndmask_b32 v{vT0}, v{vT1}, v{vT2}, vcc
{park("Vinc", f"v{vT0}")}
s_lshl_b32 s{sT}, s{sTB}, 15
s_lshl_b32 s{sTb}, s{sCB}, 11
s_add_u32 s{sT}, s{sT}, s{sTb}
s_add_u32 s{sT}, s{sT}, {O0}
v_add_u32 v{vT0}, s{sT}, v{vL16}
{park("Ost", f"v{vT0}")}
s_lshl_b32 s{sT}, s{sCB}, 18
v_add_u32 v{vT0}, s{sT}, v{vL16}
{park("KVo", f"v{vT0}")}
s_mul_i32 s{sM0K}, s{sW}, 12288
v_mov_b32 v{vXT}, -1
v_mov_b32 v{vXT+1}, -1
v_mov_b32 v{vXT+2}, -1
v_mov_b32 v{vXT+3}, -1
""")
SENT = O("sent", 1)
sent_st = [I(f"buffer_store_dwordx4 {vr(vXT,4)}, v{vOst}, {srd(SWS)}, 0 offen offset:{1024*e} sc1", tag="sent") for e in range(2)] if SENT else []
for k in range(3):
    E(f"""
s_mul_i32 s{sT}, s{sW}, 3
s_lshl_b32 s{sTb}, s{sRB}, 2
s_add_u32 s{sT}, s{sT}, s{sTb}
s_add_i32 s{sT}, s{sT}, {k-8}
s_lshl_b32 s{sKV[k]}, s{sT}, 12
s_cmp_lt_i32 s{sT}, 0
s_cselect_b32 s{sKV[k]}, s{sHUGE}, s{sKV[k]}
""")
E(f"""
v_min_u32 v{vT1}, 5, v{vL}
v_lshrrev_b32 v{vT2}, 1, v{vT1}
s_add_i32 s{sT}, s{sT}, -2
v_add_u32 v{vT2}, s{sT}, v{vT2}
v_cmp_gt_i32 vcc, 0, v{vT2}
v_mov_b32 v{vT0}, s{sTB}
v_cndmask_b32 v{vT2}, v{vT2}, v{vT0}, vcc
v_lshlrev_b32 v{vT2}, 7, v{vT2}
v_and_b32 v{vT1}, 1, v{vT1}
v_lshl_add_u32 v{vT2}, v{vT1}, 3, v{vT2}
s_and_b32 s{sT}, s{sCB}, 14
s_lshl_b32 s{sT}, s{sT}, 3
s_and_b32 s{sTb}, s{sCB}, 1
s_lshl_b32 s{sTb}, s{sTb}, 2
s_add_u32 s{sT}, s{sT}, s{sTb}
s_add_u32 s{sT}, s{sT}, {FL0}
v_add_u32 v{vT0}, s{sT}, v{vT2}
{park("Pa", f"v{vT0}")}
s_lshl_b32 s{sT}, s{sTB2}, 8
s_add_u32 s{sT}, s{sT}, {FL0+8192}
v_lshlrev_b32 v{vT0}, 2, v{vL}
v_add_u32 v{vT0}, s{sT}, v{vT0}
{park("Pb", f"v{vT0}")}
""")
if O("tblm", 1):
    E(f"""v_and_b32 v{vT1}, 31, v{vL}
v_lshrrev_b32 v{vT2}, 5, v{vL}
v_lshlrev_b32 v{vT2}, 2, v{vT2}
v_sub_u32 v{vT1}, v{vT1}, v{vT2}""")
    for j in range(16):
        kl = 8 * (j >> 2) + (j & 3)
        E(f"""v_subrev_u32 v{vT0}, {kl}, v{vT1}
v_ashrrev_i32 v{vT0}, 31, v{vT0}
v_and_b32 v{vT0}, 0xff000000, v{vT0}
v_accvgpr_write_b32 a{aMSK+16+j}, v{vT0}
v_xor_b32 v{vT0}, 0xff000000, v{vT0}
v_accvgpr_write_b32 a{aMSK+j}, v{vT0}""")
rest = prog[init_mark:]; del prog[init_mark:]
gall = p1_dma(1) + p1_dma(2) + p1_dma(3)
N0 = O("n0", 10)
gs = gall[:N0]
acc = []; k = 0
for n, x in enumerate(rest):
    acc.append(x)
    safe = not (x.op.startswith("s_cmp") or x.op.startswith("s_getpc") or "L_table" in x.text or (n + 1 < len(rest) and (rest[n + 1].op.startswith("s_cselect") or rest[n + 1].op.startswith("s_cbranch"))))
    if k < len(gs) and safe and n + 1 >= (k + 1) * len(rest) / (len(gs) + 1):
        acc += gs[k]; k += 1
acc += flat(gs[k:])
E(acc)
if O("w2t", 0) == 1: E(w2touch)
E(sent_st)
stamp((1, 2, 3))

def wf1(st, t): return aWF + (st * 3 + t) * 4
def wf2(k, t): return aWF + ((k % 3) * 3 + t) * 4
def p1_reads(c, s):
    sl = c & 3; st = s & 1
    o = [I(f"ds_read_b128 {ar(aX+(4*c+s)*4,4)}, v{vXr+s} offset:{sl*16384}")]
    for t in range(3):
        for n in range(2):
            o.append(I(f"ds_read_b64_tr_b16 {ar(wf1(st,t)+2*n,2)}, v{vWr+2*s+(sl>>1)} offset:{(sl&1)*24576+t*8192+n*512}"))
    o.insert(3, I(f"ds_read_b128 {ar(aXP+4*st,4)}, v{vXp+s} offset:{sl*16384}"))
    return o
def statread(g):
    c, s = g >> 2, g & 3
    return [I(f"ds_read_b128 {vr(vXT+4*s,4)}, v{vXr+s} offset:{(c&3)*16384}")]
def stats(s):
    o = []
    for j in range(4):
        x = vXT + 4 * s + j; a = vU + 2 * (j & 1)
        o += L(f"""v_lshlrev_b32 v{a}, 16, v{x}
v_and_b32 v{a+1}, 0xffff0000, v{x}
v_add_f32 v{vSum}, v{vSum}, v{a}
v_add_f32 v{vSum+1}, v{vSum+1}, v{a+1}
v_fmac_f32 v{vSum+2}, v{a}, v{a}
v_fmac_f32 v{vSum+3}, v{a+1}, v{a+1}""")
    return o
def cs_convert(vcs, vw, base, step):
    o = []
    for j in range(4):
        a = 252 if j & 1 else vU + 4
        o += L(f"""v_cvt_pk_bf16_f32 v{a}, v{vcs+j}, v{vcs+j}
v_and_b32 v{a+1}, 0xffff0000, v{a}
v_sub_f32 v{a+1}, v{vcs+j}, v{a+1}
v_cvt_pk_bf16_f32 v{a+1}, v{a+1}, v{a+1}""")
        o.append(I(f"ds_write_b64 v{vw}, {vr(a,2)} offset:{base+step*j}"))
    return o
C1 = -2.0 * 0.7978845608028654 * 1.4426950408889634
QC = 0.25 * 1.4426950408889634
stats_pub = L(f"""v_add_f32 v{vSum}, v{vSum}, v{vSum+1}
v_add_f32 v{vSum+1}, v{vSum+2}, v{vSum+3}""") + [I(f"buffer_store_dwordx2 {vr(vSum,2)}, v{vSPo}, {srd(SWS)}, s{sSP} offen sc1", tag="sp")]
stats_ld = [[I(f"buffer_load_dwordx2 {vr(vSL+8*o+2*i,2)}, v{vSPo}, {srd(SWS)}, s{sSG if o == 0 else sSP} offen offset:{512*i} sc1")] for o in range(2) for i in range(4)]
stats_ld[4] = L(f"s_xor_b32 s{sSP}, s{sSG}, 8192") + stats_ld[4]
def stats_fin1(o):
    b = vSL + 8 * o; nm, R = vSum + 2 * o, vSum + 2 * o + 1
    return L(f"""
v_add_f32 v{b}, v{b}, v{b+2}
v_add_f32 v{b+1}, v{b+1}, v{b+3}
v_add_f32 v{b+4}, v{b+4}, v{b+6}
v_add_f32 v{b+5}, v{b+5}, v{b+7}
v_add_f32 v{b}, v{b}, v{b+4}
v_add_f32 v{b+1}, v{b+1}, v{b+5}
v_mov_b32 v{b+2}, v{b}
v_mov_b32 v{b+3}, v{b+1}
s_nop 0
v_permlane32_swap_b32 v{b}, v{b+2}
v_permlane32_swap_b32 v{b+1}, v{b+3}
v_add_f32 v{b}, v{b}, v{b+2}
v_add_f32 v{b+1}, v{b+1}, v{b+3}
v_mul_f32 v{nm}, {fx(-1.0/512)}, v{b}
v_mul_f32 v{b+1}, {fx(1.0/512)}, v{b+1}
v_fma_f32 v{b+1}, -v{nm}, v{nm}, v{b+1}
v_max_f32 v{b+1}, 0, v{b+1}
v_add_f32 v{R}, {fx(1e-5)}, v{b+1}
""")
def stats_k(o):
    R = vSum + 2 * o + 1; K = vK[o]; a = vU
    t = f"""
v_rsq_f32 v{K}, v{R}
v_mov_b32 v{K+3}, v{R}
v_mul_f32 v{K+1}, {fx(C1)}, v{K}
v_mul_f32 v{a}, v{K}, v{K}
v_mul_f32 v{a}, {fx(0.044715)}, v{a}
v_mul_f32 v{K+2}, v{K+1}, v{a}
"""
    if o == 0: t += f"v_mul_f32 v{vQS}, {fx(QC)}, v{K}\n"
    return L(t)
def stats_b(o):
    nm = vSum + 2 * o; B = vBx[o]; a = vU
    return L(f"""
v_cvt_pk_bf16_f32 v{a}, v{nm}, v{nm}
v_and_b32 v{a}, 0xffff0000, v{a}
v_sub_f32 v{a+1}, v{nm}, v{a}
v_cvt_pk_bf16_f32 v{B}, v{a}, v{a+1}
v_mov_b32 v{B+1}, v{B}
v_mov_b32 v{B+2}, v{B}
v_mov_b32 v{B+3}, v{B}
""")
E(I("s_barrier", need=["c0"]))
stamp((2,))
E(p1_reads(0, 0) + statread(0) + statread(1))
E(stats(0))
S1 = Sched()
P1 = lambda c, s, t: 24 * c + 6 * s + t
A1 = lambda t, o: ACC1 + 32 * t + 16 * o
for c in range(8):
    for s in range(4):
        st = s & 1; first = (c == 0 and s == 0)
        for q in range(6):
            t, o = q >> 1, q & 1
            acc = vr(A1(t, o), 16)
            xb = ar(aX + (4 * c + s) * 4, 4) if o == 0 else ar(aXP + 4 * st, 4)
            ops = [I(f"{MF} {acc}, {ar(wf1(st,t),4)}, {xb}, {'0' if first else acc}")]
            small = s < 2 and o == 1
            if small:
                cs = vr(vCS1, 4)
                ops.append(I(f"{MS} {cs}, {ar(wf1(st,t),4)}, {ar(aSEL+4*t,4)}, {'0' if (first and t == 0) else cs}"))
            pre = []
            if q == 0: pre.append(I("s_waitcnt lgkmcnt(0)"))
            if s == 3 and q == 0 and c < 7:
                pre.append(I("s_barrier", need=["c%d" % (c + 1)] + (["p0"] if c == 6 else [])))
            if s == 0 and q == 0: pre += stampq((3,))
            S1.pos(ops, 8 if small else 6, pre)
NP1 = 192
CORR_K = 1
P2 = lambda k, t: NP1 + 3 * k + t + (6 if k >= CORR_K else 0)
PC = NP1 + 3 * CORR_K
for k in range(32):
    p, s = k >> 3, k & 3
    if k == CORR_K:
        for q in range(6):
            t, o = q >> 1, q & 1
            acc = vr(A1(t, o), 16)
            S1.pos(I(f"{MF} {acc}, {vr(vCSA[t],4)}, {vr(vBx[o],4)}, {acc}"), 6)
    for t in range(3):
        acc = vr(ACC2 + 16 * t, 16)
        ops = [I(f"{MF} {acc}, {ar(wf2(k,t),4)}, {ar(aX+k*4,4)}, {'0' if k == 0 else acc}", xr=ar(wf2(k, 0), 12) if t == 0 else None)]
        if s == 0:
            cs = vr(vCS2, 4)
            ops.append(I(f"{MS} {cs}, {ar(wf2(k,t),4)}, {ar(aSEL+4*t,4)}, {'0' if (k == 0 and t == 0) else cs}"))
        pre = []
        if k == 0 and t == 0:
            pre = stampq((1, 3)) + [I("s_waitcnt lgkmcnt(0)"), I("s_barrier")]
        if (k & 7) == 6 and t == 1:
            pre = [I("s_waitcnt lgkmcnt(0)"), I("s_barrier", need=["p%d" % (p + 1)] if p < 3 else [])]
        if (k & 3) == 0 and t == 0: pre += stampq((4,))
        S1.pos(ops, 8 if s == 0 else 6, pre)
NP2 = len(S1.main)
def p2_reads(k):
    p, g, s = k >> 3, (k >> 2) & 1, k & 3
    return [I(f"ds_read_b64_tr_b16 {ar(wf2(k,t)+2*n,2)}, v{vW2r+2*s+(p>>1)} offset:{(p&1)*24576+t*8192+g*4096+n*256}") for t in range(3) for n in range(2)]
def store4(data, voff, soff, imm, tag):
    if O("x_nost", 0) and tag in ("kv", "h"): return I("s_nop 0")
    o = (" offset:%d" % imm) if imm else ""
    return I(f"buffer_store_dwordx4 {vr(data,4)}, v{voff}, {srd(SWS)}, {soff} offen{o} sc1", tag=tag)
def flag(stage, tag, va):
    if O("x_nofw", -1) == stage: tag = "none"
    return L(f"v_mov_b32 v{vT0}, 1\ns_mov_b32 s{sT}, {stage*8192}") + [I(f"buffer_store_dword v{vT0}, v{va}, {srd(SWS)}, s{sT} offen sc1", need=[tag])]
def poll_issue(va): return [I(f"buffer_load_dword v{vPoll}, v{va}, {srd(SWS)}, 0 offen sc1")]
def poll_check(name, S, reg, addr):
    rare.append(f"""
L_spin_{name}:
    s_mov_b32 s{sSPIN}, {OPT['spin']}
L_spin2_{name}:
    buffer_load_dword v{reg}, v{addr}, {srd(S)}, 0 offen sc1
    s_waitcnt vmcnt(0) lgkmcnt(0)
    v_cmp_eq_u32 vcc, 0, v{reg}
    s_nop 4
    s_cbranch_vccz L_ok_{name}
    s_sleep 1
    s_sub_u32 s{sSPIN}, s{sSPIN}, 1
    s_cmp_lg_u32 s{sSPIN}, 0
    s_cbranch_scc1 L_spin2_{name}
    s_endpgm
""")
    o = L(f"v_cmp_eq_u32 vcc, 0, v{reg}\ns_cbranch_vccnz L_spin_{name}")
    o[-1].post = f"\nL_ok_{name}:"
    return o
NST = 8
for c in range(8):
    for s in range(4):
        g = 4 * c + s
        rd = []
        if g + 1 < 32: rd += p1_reads((g + 1) >> 2, (g + 1) & 3)
        if s < 2 and g + 2 < NST: rd += statread(g + 2)
        if s == 3 and g + 1 < NST: rd = statread(g + 1) + rd + statread(g + 2)
        S1.spread(rd, P1(c, s, 0), P1(c, s, O("rdw", 4)), 0)
        if g + 1 < NST:
            if s != 3: S1.spread(stats((g + 1) & 3), P1(c, s, 0), P1(c, s, 6), 2)
            else: S1.spread(stats(0), P1(c, s, 2), P1(c, s, 6), 2)
    if c == 0: S1.spread(gall[N0:], P1(0, 0, 0), P1(0, 3, 0), 1, one)
    if c < 7: S1.spread(p1_dma(c + 4) if c < 4 else p2_dma(c - 4), P1(c, 3, 0), P1(c + 1, 3, 0), 1, one)
S1.put(P1(1, 0, 0), [L(f"v_and_b32 v{vT2}, 3, v{vL}\nv_lshlrev_b32 v{vT2}, 2, v{vT2}") + [I(f"buffer_load_dword v{vInit}, v{vT2}, {srd(SDBG)}, 0 offen")]], 1)
S1.put(P1(1, 3, 1), [stats_pub], 2)
S1.put(P1(O("spf", 2), 3, 1), [poll_check("init", SDBG, vInit, vT2) + flag(4, "sp", vFl1)], 2)
if not O("x_nosc", 0): S1.put(P1(O("spp", 4), 1, 0), [poll_issue(vPs)], 2)
if not O("x_nosc", 0): S1.put(P1(O("spc", 5), 1, 0), [poll_check("st", SWS, vPoll, vPs)], 2)
if O("x_nosc", 0) < 2: S1.spread(stats_ld, P1(O("spc", 5), 1, 1), P1(O("spc", 5), 3, 0), 2, one)
S1.spread(stats_fin1(0) + stats_fin1(1) + stats_k(0) + stats_k(1), P1(7, 1, 0), P1(7, 3, 0), 2)
S1.spread(cs_convert(vCS1, vCSw1, CS1, 8), P1(7, 2, 2), P1(7, 3, 3), 2)
S1.spread(stats_b(0) + stats_b(1), P1(7, 3, 3), P1(7, 3, 6), 2)
S1.spread(p2_reads(0), P1(7, 3, 0), P1(7, 3, 3), 0)
S1.put(P1(7, 3, 5), p2_reads(1), 0)
if O("w2t", 0) >= 2: S1.put(P1(O("w2t", 0) - 2, 1, 0), [w2touch], 1)
S1.spread(p2_dma(3), P2(0, 0), P2(5, 0), 1, one)

def scale_pack(acc, sc, dst, pk=False):
    o = []
    if pk:
        sel = "op_sel:[0,1] op_sel_hi:[1,1]" if sc & 1 else "op_sel_hi:[1,0]"
        for j in range(0, 16, 2): o.append(I(f"v_pk_mul_f32 {vr(acc+j,2)}, {vr(acc+j,2)}, {vr(sc&~1,2)} {sel}"))
    else:
        for j in range(16): o.append(I(f"v_mul_f32 v{acc+j}, v{acc+j}, v{sc}"))
    for j in range(8): o.append(I(f"v_cvt_pk_bf16_f32 v{dst+j}, v{acc+2*j}, v{acc+2*j+1}"))
    return o
def gelu(g, u, K):
    if O("x_nogelu", 0): return [I("s_nop 0")] * 4
    A, B, R = K + 1, K + 2, K + 3
    o = []
    for b in range(4):
        js = range(4 * b, 4 * b + 4)
        T = lambda j: vG + (j & 3) + 4 * (b & 1)
        o += [I(f"v_mul_f32 v{T(j)}, v{g+j}, v{g+j}") for j in js]
        o += [I(f"v_fma_f32 v{T(j)}, v{T(j)}, v{B}, v{A}") for j in js]
        o += [I(f"v_mul_f32 v{T(j)}, v{g+j}, v{T(j)}") for j in js]
        for j in js: o += [I(f"v_exp_f32 v{T(j)}, v{T(j)}"), I(f"v_mul_f32 v{g+j}, v{g+j}, v{u+j}")]
        o += [I(f"v_fma_f32 v{T(j)}, v{T(j)}, v{R}, v{R}") for j in js]
        o += [I(f"v_rcp_f32 v{T(j)}, v{T(j)}") for j in js]
        o += [I(f"v_mul_f32 v{g+j}, v{g+j}, v{T(j)}") for j in js]
        o += [I(f"v_cvt_pk_bf16_f32 v{u+2*b+k}, v{g+4*b+2*k}, v{g+4*b+2*k+1}") for k in range(2)]
    return o
def gelu_pk(g, u, K):
    o = []
    for b in range(2):
        js = range(8 * b, 8 * b + 8, 2)
        T = lambda j: vG + (j & 7)
        o += [I(f"v_pk_mul_f32 {vr(T(j),2)}, {vr(g+j,2)}, {vr(g+j,2)}") for j in js]
        o += [I(f"v_pk_fma_f32 {vr(T(j),2)}, {vr(T(j),2)}, {vr(K+2,2)}, {vr(K,2)} op_sel:[0,0,1] op_sel_hi:[1,0,1]") for j in js]
        o += [I(f"v_pk_mul_f32 {vr(T(j),2)}, {vr(g+j,2)}, {vr(T(j),2)}") for j in js]
        for j in js: o += [I(f"v_exp_f32 v{T(j)}, v{T(j)}"), I(f"v_exp_f32 v{T(j)+1}, v{T(j)+1}"), I(f"v_pk_mul_f32 {vr(g+j,2)}, {vr(g+j,2)}, {vr(u+j,2)}")]
        o += [I(f"v_pk_fma_f32 {vr(T(j),2)}, {vr(T(j),2)}, {vr(K+2,2)}, {vr(K+2,2)} op_sel:[0,1,1] op_sel_hi:[1,1,1]") for j in js]
        for j in js: o += [I(f"v_rcp_f32 v{T(j)}, v{T(j)}"), I(f"v_rcp_f32 v{T(j)+1}, v{T(j)+1}")]
        o += [I(f"v_pk_mul_f32 {vr(g+j,2)}, {vr(g+j,2)}, {vr(T(j),2)}") for j in js]
        o += [I(f"v_cvt_pk_bf16_f32 v{u+(j>>1)}, v{g+j}, v{g+j+1}") for j in js]
    return o
S1.put(P2(0, 0), [I(f"ds_read_b64 {vr(vCSA[t],2)}, v{vCSr} offset:{CS1+C1STR*t}") for t in range(3)], 0)
for k in range(30):
    o = 1 if (k & 7) == 6 else 0
    S1.spread(p2_reads(k + 2), P2(k, o), P2(k, o + (2 if (k & 7) in (5, 6) else 3)), 0)

fq = []
sOwn = [f"s{sPK}", f"s{sTd}"]; sOwnH = [f"s{sPH}", f"s{sTc}"]
fq += L(f"s_xor_b32 s{sTd}, s{sPK}, 4096\ns_sub_u32 s{sTc}, {HSTR}, s{sPH}")
for o in range(2):
    a = A1(0, o)
    fq += scale_pack(a, vK[o], a)
    fq += [store4(a, vKVst, sOwn[o], 0, "kv"), store4(a + 4, vKVst, sOwn[o], 1024, "kv")]
g = [gelu(A1(1, o), A1(2, o), vK[o]) + [store4(A1(2, o), vHst, sOwnH[o], 0, "h"), store4(A1(2, o) + 4, vHst, sOwnH[o], 1024, "h")] for o in range(2)]
KVF = O("kvflag", 100); KVP = O("kvpoll", 90)
tbl = [[I(f"buffer_load_dwordx4 {vr(vBF+4*i,4)}, v{vL16}, {srd(STB)}, {'0' if i < 4 else 's%d' % sX} offen offset:{1024*(i&3)}")] for i in range(8)]
tbl[0] = L(f"s_movk_i32 s{sX}, 4096") + tbl[0]
strip = [I(f"ds_write_b128 v{vL16}, {ar(aSTV,4)} offset:{STRIP+1024*i}") for i in range(2)]
unp = [I(f"v_accvgpr_read_b32 v{vBF+j}, a{aMSK+j}") for j in range(32)] if O("tblm", 1) else []
fq += g[0][:KVF] + [flag(0, "kv", vFl2)] + g[0][KVF:] + strip + unp
fq += g[1][:KVP] + poll_issue(vPa) + g[1][KVP:]
FQ_END = O("fqend", 28)
S1.spread(glue(fq), PC + 3, P2(FQ_END, 0), 2)
if not O("tblm", 1): S1.spread(tbl, P2(O("tbl", 9), 0), P2(O("tbl", 9) + 5, 0), 1, one)

def w2_dma(j):
    sl = j % 12
    m0 = (sl // 3) * 24576 + (sl % 3) * 2048
    nd = ["r%d" % (j - 12)]
    post = []
    if j < 22:
        base = sWE + (j >> 1) if j < 16 else sLW[(j - 16) >> 1]
        so, sr = ("s_nop 0", base) if j & 1 == 0 else (f"s_add_u32 s{sD}, s{base}, 16384", sD)
        vo, S = vDo, SD
    else:
        so, sr, vo, S = "s_nop 0", sWB, vEo, SO
        post = L(f"s_add_u32 s{sWB}, s{sWB}, 16384\ns_and_b32 s{sWB}, s{sWB}, 0x1ffff")
    return [L(f"s_add_u32 m0, s{sM0D}, {m0}\n{so}") + [dma(vo, S, f"s{sr}", 0, "w%d" % j, need=nd)],
            [dma(vo + 1, S, f"s{sr}", 1024, "w%d" % j, need=nd)] + post]
KCHK = O("kvchk", 28)
for p in range(3):
    if not O("x_now2", 0): S1.spread(w2_dma(3 * p) + w2_dma(3 * p + 1) + w2_dma(3 * p + 2), P2(8 * p + 6, 1), P2(8 * p + 14, 1) if p < 2 else P2(KCHK, 0), 1, one)
kvdma = []
for k in range(3):
    kvdma.append(L(f"s_add_u32 m0, s{sM0K}, {4096*k}\ns_nop 0") + [dma(vKVo, SWS, f"s{sKV[k]}", 0, "kvl", "sc1")])
    kvdma += [[dma(vKVo, SWS, f"s{sKV[k]}", 1024 * i, "kvl", "sc1")] for i in range(1, 4)]
if not O("x_nokv", 0):
    if not O("x_nochk", 0): S1.put(P2(KCHK, 0), [poll_check("kv", SWS, vPoll, vPa)], 1)
    S1.spread(kvdma, P2(KCHK, 1), NP2, 1, one)
S1.spread(cs_convert(vCS2, vCSw2, CS2, 16), P2(29, 0), P2(30, 0), 2)
S1.put(P2(30, 1), [I(f"ds_read_b128 {vr(vCSA[q],4)}, v{vL16} offset:{CS2+CSTR*q}") for q in range(3)], 0)
if OPT["stamps"] == 9:
    for q in range(28):
        p = OPT["za"] + q * OPT["zs"]
        if p < len(S1.main): S1.pre[p] = stampq((9,)) + S1.pre[p]
E(S1.emit())
stamp((1, 4))
for t in (1, 2, 0):
    acc = vr(ACC2 + 16 * t, 16)
    E(f"{MF} {acc}, {vr(vCSA[t],4)}, {vr(vBx[0],4)}, {acc}")
E(flag(1, "h", vFl2))
E(f"buffer_load_dwordx4 {vr(vXres,4)}, v{vOut}, {srd(SX)}, 0 offen")
E(f"buffer_load_dwordx4 {vr(vXres+4,4)}, v{vOut+1}, {srd(SX)}, 0 offen")
post = w2_dma(9) + w2_dma(10) + w2_dma(11)
gl = gelu_pk(ACC2 + 16, ACC2 + 32, vK[0])
for q in range(6):
    E(gl[len(gl) * q // 6:len(gl) * (q + 1) // 6] + post[q])
E([store4(ACC2 + 32, vHst, f"s{sH2}", 0, "h2"), store4(ACC2 + 36, vHst, f"s{sH2}", 1024, "h2")])
E(scale_pack(ACC2, vQS, vQ, pk=True))
stamp((4, 6))
E(I("s_waitcnt lgkmcnt(0)"))
E(I("s_barrier", need=["kvl"]))
stamp((1, 4, 6))

units = [(i, e) for i in range(9) for e in range(2)]
def kread(u):
    i, e = units[u]
    return [I(f"ds_read_b128 {ar(aK+4*(u&1),4)}, v{vKa} offset:{i*4096+e*1024}")]
def vread(u):
    i, e = units[u]
    o = [I(f"ds_read_b64_tr_b16 {ar(aV+8*(u&1)+4*s+2*n,2)}, v{vVa} offset:{e*1024+s*512+n*256}") for s in range(2) for n in range(2)]
    if e == 1: o.append(I(f"v_add_u32 v{vVa}, v{vVa}, v{vVinc}"))
    return o
def qk(u):
    i, e = units[u]
    c = vr(vBF, 16) if i == 0 else (vr(vBD, 16) if i == 8 else "0")
    return I(f"{MF} {vr(vS[u&1],16)}, {ar(aK+4*(u&1),4)}, {vr(vQ+4*e,4)}, {c}", xr=ar(aV + 8 * (u & 1), 8) if u >= 2 else None)
def pv(u, s):
    i, e = units[u]
    o = vr(vO[e], 16)
    return I(f"{MF} {o}, {ar(aV+8*(u&1)+4*s,4)}, {vr(vP[u&1]+4*s,4)}, {'0' if (i == 0 and s == 0) else o}")
def hload(j, tt):
    post = []
    if j < 16:
        soff = sA
        if tt == 1 and j & 1 == 1: post = L(f"s_add_u32 s{sA}, s{sA}, 2048\ns_and_b32 s{sA}, s{sA}, 0x3fff")
    else: soff = sLH[(j - 16) >> 1]
    o = " offset:1024" if j & 1 else ""
    return [I(f"buffer_load_dwordx4 {ar(aH+8*j+4*tt,4)}, v{vAo+tt}, {srd(SWS)}, s{soff} offen{o} sc1")] + post
NW2V = O("w2v", 10)
W2V = [152, 156, 192, 196, 200, 204, 4, 8, 12, 16, 20, 24, 36, 40, 44, 48, 240, 244, 248, 252]
def w2_reads(j):
    sl = j % 12
    base = (sl // 3) * 24576 + (sl % 3) * 2048
    o = []
    for ct in range(2):
        for n in range(2):
            off = base + n * 1024 + ct * 256
            reg = vW3r if off < 49152 else vW3r + 1
            off = off if off < 49152 else off - 49152
            dst = vr(W2V[2*j+ct]+2*n, 2) if j < NW2V else ar(aW2+8*(j&1)+4*ct+2*n, 2)
            o.append(I(f"ds_read_b64_tr_b16 {dst}, v{reg} offset:{off}", need=["w%d" % j], tag="r%d" % j))
    return o
extra = {u: [] for u in range(18)}
xds = {u: [] for u in range(18)}
WS0, WS1 = O("ws0", 0), O("ws1", 8)
for j in range(NW2V):
    u = WS0 + j * (WS1 - WS0) // max(NW2V, 1)
    xds[u] += w2_reads(j)
    extra[u + 1] += w2_dma(j + 12)
EP, EC = O("ep", 1), O("ec", 4)
LF, LP, LC = O("lf", 3), O("lp", 9), O("lc", 12)
extra[EP].append(poll_issue(vPb))
extra[LF].append(flag(2, "h2", vFl1))
extra[EC].append(poll_check("h", SWS, vPoll, vPb) + L(f"v_and_b32 v{vPb}, -5, v{vPb}\nv_add_u32 v{vPb}, 8192, v{vPb}"))
he = [hload(j, tt) for j in range(16) for tt in range(2)]
hlate = [hload(j, tt) for j in range(16, 22) for tt in range(2)]
EE = O("ee", 15)
for q in range(EE - EC):
    extra[EC + q] += he[len(he) * q // (EE - EC):len(he) * (q + 1) // (EE - EC)]
extra[LP].append(poll_issue(vPb))
extra[LC].append(poll_check("h2", SWS, vPoll, vPb) + L(f"v_add_u32 v{vPb}, 8192, v{vPb}"))
LS = max(LC, EE)
NL = O("nl", 12)
for q in range(18 - LS):
    extra[LS + q] += hlate[NL * q // (18 - LS):NL * (q + 1) // (18 - LS)]
hl_late = hlate[NL:]

E(kread(0) + kread(1) + vread(0))
E(qk(0))
for u in range(18):
    S, P = vS[u & 1], vP[u & 1]
    ex = [I(f"v_exp_f32 v{S+j}, v{S+j}") for j in range(16)]
    cv = [I(f"v_cvt_pk_bf16_f32 v{P+j}, v{S+2*j}, v{S+2*j+1}") for j in range(8)]
    seq = []
    xs = list(extra[u])
    X = lambda q: flat(xs[len(xs) * q // 3:len(xs) * (q + 1) // 3])
    vr_ = vread(u + 1) if u + 1 < 18 else []
    if u + 1 < 18: seq.append(qk(u + 1))
    if u + 2 < 18: seq += kread(u + 2)
    seq += xds[u] + X(0) + ex[0:6]
    if u > 0: seq.append(pv(u - 1, 0))
    seq += vr_[0:2] + X(1) + ex[6:11] + cv[0:3]
    if u > 0: seq.append(pv(u - 1, 1))
    seq += vr_[2:4] + X(2) + vr_[4:] + ex[11:16] + cv[3:8]
    if u % 2 == 0: seq = stampq((6,)) + seq
    E(seq)
def norm(e):
    o = vO[e]
    t = [f"v_rcp_f32 v{vT0+1}, v{o+8}", "s_nop 0"]
    if e == 0: t += [f"v_mul_f32 v{o+j}, v{o+j}, v{vT0+1}" for j in range(8)]
    else: t += [f"v_pk_mul_f32 {vr(o+j,2)}, {vr(o+j,2)}, {vr(vT0+1,2)} op_sel_hi:[1,0]" for j in range(0, 8, 2)]
    t += [f"v_cvt_pk_bf16_f32 v{o+12+j}, v{o+2*j}, v{o+2*j+1}" for j in range(4)]
    if SENT: t += [f"v_min_u32 v{o+12}, -2, v{o+12}"]
    return t
E([pv(17, 0), pv(17, 1)])
E("\n".join(norm(0)))
E(store4(vO[0] + 12, vOst, "0", 0, "o"))
BLO, BHI = fx(2.0 ** -40), fx(2.0 ** 40)
E(f"""
s_mov_b32 s{sT}, {BLO}
s_mov_b32 s{sTb}, {BHI}
v_min_f32 v{vT0}, v{vO[0]+8}, v{vO[1]+8}
v_max_f32 v{vT1}, v{vO[0]+8}, v{vO[1]+8}
v_cmp_nle_f32 vcc, s{sT}, v{vT0}
v_cmp_nge_f32 s[4:5], s{sTb}, v{vT1}
v_cmp_u_f32 s[6:7], v{vO[0]+8}, v{vO[1]+8}
s_or_b64 vcc, vcc, s[4:5]
s_or_b64 vcc, vcc, s[6:7]
s_cbranch_vccnz L_truemax
""")
prog[-1].post = "\nL_att_done:"
E("\n".join(norm(1)))
E(store4(vO[1] + 12, vOst, "0", 1024, "o"))
stamp((6,))
E("s_barrier")
stamp((1, 5, 6))

sa, sb_, sc_, sd_, se_, sf_ = sT, sTb, sTc, sTd, sX, sQ
tm = [f"""
L_truemax:
    s_waitcnt vmcnt(0) lgkmcnt(0)
    s_nop 15
    s_sub_i32 s{sa}, 8, s{sTB}
    s_max_i32 s{sa}, s{sa}, 0
    s_mov_b32 s{sb_}, 0
L_tm_head:
    s_cmp_eq_u32 s{sb_}, 0
    s_cselect_b64 vcc, -1, 0
    s_nop 4
"""]
tm += [f"    v_cndmask_b32 v{vP[1]+j}, v{vQ+4+j}, v{vQ+j}, vcc\n" for j in range(4)]
tm.append(f"""
    v_mov_b32 v{vT0}, 0xff000000
    s_mov_b32 s{sd_}, 0
L_tm_pass:
    s_mov_b32 s{sc_}, s{sa}
""")
tm += [f"    v_mov_b32 v{vS[1]+j}, 0\n" for j in range(16)]
tm.append(f"""
L_tm_blk:
    s_lshl_b32 s{se_}, s{sc_}, 12
    s_lshl_b32 s{sf_}, s{sb_}, 10
    s_add_u32 s{se_}, s{se_}, s{sf_}
    v_add_u32 v{vT1}, s{se_}, v{vKa}
    ds_read_b128 {ar(aK,4)}, v{vT1}
    s_sub_u32 s{se_}, 9, s{sc_}
    v_mul_lo_u32 v{vT2}, s{se_}, v{vVinc}
    v_sub_u32 v{vT2}, v{vVa}, v{vT2}
    v_add_u32 v{vT2}, s{sf_}, v{vT2}
    ds_read_b64_tr_b16 {ar(aV,2)}, v{vT2}
    ds_read_b64_tr_b16 {ar(aV+2,2)}, v{vT2} offset:256
    ds_read_b64_tr_b16 {ar(aV+4,2)}, v{vT2} offset:512
    ds_read_b64_tr_b16 {ar(aV+6,2)}, v{vT2} offset:768
    s_waitcnt lgkmcnt(0)
    s_cmp_eq_u32 s{sc_}, 0
    s_cbranch_scc1 L_tm_far
    s_cmp_eq_u32 s{sc_}, 8
    s_cbranch_scc1 L_tm_diag
    {MF} {vr(vS[0],16)}, {ar(aK,4)}, {vr(vP[1],4)}, 0
    s_branch L_tm_s
L_tm_far:
    {MF} {vr(vS[0],16)}, {ar(aK,4)}, {vr(vP[1],4)}, {vr(vBF,16)}
    s_branch L_tm_s
L_tm_diag:
    {MF} {vr(vS[0],16)}, {ar(aK,4)}, {vr(vP[1],4)}, {vr(vBD,16)}
L_tm_s:
    s_nop 15
    s_cmp_eq_u32 s{sd_}, 0
    s_cbranch_scc0 L_tm_exp
""")
tm += [f"    v_max_f32 v{vT0}, v{vT0}, v{vS[0]+j}\n" for j in range(16)]
tm.append("    s_branch L_tm_next\nL_tm_exp:\n")
tm += [f"    v_sub_f32 v{vS[0]+j}, v{vS[0]+j}, v{vT0}\n" for j in range(16)]
tm += [f"    v_exp_f32 v{vS[0]+j}, v{vS[0]+j}\n" for j in range(16)]
tm.append("    s_nop 1\n")
tm += [f"    v_cvt_pk_bf16_f32 v{vP[0]+j}, v{vS[0]+2*j}, v{vS[0]+2*j+1}\n" for j in range(8)]
tm.append(f"""
    s_nop 1
    {MF} {vr(vS[1],16)}, {ar(aV,4)}, {vr(vP[0],4)}, {vr(vS[1],16)}
    {MF} {vr(vS[1],16)}, {ar(aV+4,4)}, {vr(vP[0]+4,4)}, {vr(vS[1],16)}
    s_nop 15
L_tm_next:
    s_add_u32 s{sc_}, s{sc_}, 1
    s_cmp_lt_u32 s{sc_}, 9
    s_cbranch_scc1 L_tm_blk
    s_cmp_eq_u32 s{sd_}, 0
    s_cbranch_scc0 L_tm_fin
    v_mov_b32 v{vT1}, v{vT0}
    s_nop 1
    v_permlane32_swap_b32 v{vT0}, v{vT1}
    s_nop 1
    v_max_f32 v{vT0}, v{vT0}, v{vT1}
    s_mov_b32 s{sd_}, 1
    s_branch L_tm_pass
L_tm_fin:
    s_cmp_eq_u32 s{sb_}, 0
    s_cbranch_scc0 L_tm_h1
""")
tm += [f"    v_mov_b32 v{vO[0]+j}, v{vS[1]+j}\n" for j in range(16)]
tm.append(f"    s_mov_b32 s{sb_}, 1\n    s_branch L_tm_head\nL_tm_h1:\n")
tm += [f"    v_mov_b32 v{vO[1]+j}, v{vS[1]+j}\n" for j in range(16)]
tm += ["    " + x + "\n" for x in norm(0)]
tm.append(f"    s_nop 1\n    buffer_store_dwordx4 {vr(vO[0]+12,4)}, v{vOst}, {srd(SWS)}, 0 offen sc1\n    s_waitcnt vmcnt(0)\n    s_branch L_att_done\n")
rare.append("".join(tm))

def oload(j2, tt):
    post = L(f"s_add_u32 s{sWS}, s{sWS}, 1024\ns_and_b32 s{sWS}, s{sWS}, 0x1fff") if tt == 1 else []
    return [I(f"buffer_load_dwordx4 {vr(vOF+8*j2+4*tt,4)}, v{vOo+tt}, {srd(SWS)}, s{sWS} offen sc1")] + post
OF, OP, OC = O("oflag", 6), O("opoll", 12), O("ochk", 17)
if NW2V == 0: E(w2_reads(0))
S3 = Sched()
order = [(j, ct, tt) for j in range(28) for ct in range(2) for tt in range(2)]
order += [(j, ct, tt) for tt in range(2) for j in (28, 29) for ct in range(2)]
for n, (j, ct, tt) in enumerate(order):
    acc = ar(aACC + 32 * ct + 16 * tt, 16)
    bb = ar(aH + 8 * j + 4 * tt, 4) if j < 22 else vr(vOF + 8 * (j - 22) + 4 * tt, 4)
    xr = ar(aW2 + 8 * (j & 1), 8) if (ct == 0 and tt == 0 and j >= NW2V) else None
    aa = vr(W2V[2 * j + ct], 4) if j < NW2V else ar(aW2 + 8 * (j & 1) + 4 * ct, 4)
    S3.pos(I(f"{MF} {acc}, {aa}, {bb}, {'0' if j == 0 else acc}", xr=xr), 6, stampq((5,)) if (n % 8 == 0) else [])
for j in range(30):
    if NW2V <= j + 1 < 29: S3.spread(w2_reads(j + 1), 4 * j, 4 * j + 2, 0)
    if j >= NW2V and j + 12 < 30:
        g = w2_dma(j + 12); S3.put(4 * j + 1, [g[0]], 1); S3.put(4 * j + 3, [g[1]], 1)
S3.put(4 * 28, w2_reads(29), 0)
if hl_late: S3.spread(hl_late, 0, 16, 1, one)
ol = [oload(j2, tt) for j2 in range(8) for tt in range(2)]
if not SENT:
    S3.put(4 * OF, [flag(3, "o", vFl1)], 1)
    S3.put(4 * OP, [poll_issue(vPb)], 1)
    S3.put(4 * OC, [poll_check("o", SWS, vPoll, vPb)], 1)
    S3.spread(ol, 4 * OC + 1, 4 * O("oend", 23), 1, one)
else:
    OS, OE, OK_ = O("os", 8), O("oe", 14), O("ok", 21)
    S3.spread(ol, 4 * OS, 4 * OE, 1, one)
    chk = [f"v_max3_u32 v{vT0}, v{vOF}, v{vOF+4}, v{vOF+8}"] + [f"v_max3_u32 v{vT0}, v{vT0}, v{vOF+4*i}, v{vOF+4*i+4}" for i in range(3, 15, 2)] + [f"v_max_u32 v{vT0}, v{vT0}, v{vOF+60}", f"v_cmp_eq_u32 vcc, -1, v{vT0}"]
    br = L("s_cbranch_vccnz L_spin_o"); br[-1].post = "\nL_ok_o:"
    S3.spread(L("\n".join(chk[:-1])), 4 * OK_, 4 * OK_ + 3, 2)
    S3.put(4 * OK_ + 3, [L(chk[-1]) + br], 2)
    rare.append(f"""
L_spin_o:
    s_mov_b32 s{sSPIN}, {OPT['spin']}
L_spin2_o:
""" + "".join("    " + x.text + "\n" for g in ol for x in g) + "    s_waitcnt vmcnt(0) lgkmcnt(0)\n" + "".join("    " + x + "\n" for x in chk) + f"""    s_nop 4
    s_cbranch_vccz L_ok_o
    s_sleep 1
    s_sub_u32 s{sSPIN}, s{sSPIN}, 1
    s_cmp_lg_u32 s{sSPIN}, 0
    s_cbranch_scc1 L_spin2_o
    s_endpgm
""")
S3.spread(L("\n".join(f"v_xor_b32 v{vU+i}, {32*i}, v{vRw}" for i in range(4)) + f"\nv_xor_b32 v{vU+4}, 16, v{vRr}"), 4, 8, 2)
def pwrite(ct, tt): return [I(f"ds_write_b128 v{vU+i}, {ar(aACC+32*ct+16*tt+4*i,4)} offset:{tt*8192+ct*128}") for i in range(4)]
S3.put(118, pwrite(0, 0), 0)
S3.put(119, pwrite(1, 0), 0)
E(S3.emit())
stamp((1, 5))
E(pwrite(0, 1) + pwrite(1, 1))
R0 = 128
assert vXres + 8 <= 40
for rho in range(2):
    for j in range(4):
        E(f"v_lshlrev_b32 v{R0+64+8*rho+2*j}, 16, v{vXres+4*rho+j}\nv_and_b32 v{R0+65+8*rho+2*j}, 0xffff0000, v{vXres+4*rho+j}")
E("s_waitcnt lgkmcnt(0)\ns_barrier")
for rho in range(2):
    for p in range(4):
        for n in range(2):
            E(f"ds_read_b128 {vr(R0+32*rho+8*p+4*n,4)}, v{vRr if n == 0 else vU+4} offset:{p*16384+rho*2048}")
for rho in range(2):
    b = R0 + 32 * rho; x = R0 + 64 + 8 * rho
    for p in range(4):
        for j in range(0, 8, 2): E(f"v_pk_add_f32 {vr(x+j,2)}, {vr(x+j,2)}, {vr(b+8*p+j,2)}")
    for j in range(4): E(f"v_cvt_pk_bf16_f32 v{b+j}, v{x+2*j}, v{x+2*j+1}")
    E(f"buffer_store_dwordx4 {vr(b,4)}, v{vOut+rho}, {srd(SOUT)}, 0 offen " + ["", "sc1", "nt", "sc0 sc1", "sc1 nt"][O("ofl", 1)])
if OPT["stamps"]:
    stamp()
    E(f"s_waitcnt vmcnt(0)")
    stamp((1, 2, 3, 4, 5, 6, 7, 9))
    E(f"s_lshl_b32 s{sT}, s2, 2\ns_add_u32 s{sT}, s{sT}, s{sW}\ns_lshl_b32 s{sT}, s{sT}, 7\ns_add_u32 s{sT}, s{sT}, {ST0}\nv_lshlrev_b32 v{vT0}, 2, v{vL}\nv_lshrrev_b32 v{vT1}, 5, v{vL}\nv_lshl_add_u32 v{vT0}, v{vT1}, 28, v{vT0}")
    E(f"buffer_store_dword v231, v{vT0}, {srd(SWS)}, s{sT} offen")
if O("xf", 0):
    E("s_waitcnt vmcnt(0)"); stamp()
    if OPT["xf"] == 99: E("s_mov_b32 s90, s88")
    E(("s_sub_u32 s90, s90, s92\ns_lshr_b32 s90, s90, 3" if O("xfc", 0) else "s_sub_u32 s90, s90, s88\ns_lshl_b32 s90, s90, 2") + "\ns_add_u32 s90, s90, 4000\nL_es:\ns_memrealtime s[4:5]\ns_waitcnt lgkmcnt(0)\ns_sub_u32 s4, s4, s88\ns_cmp_lt_u32 s4, s90\ns_cbranch_scc1 L_es")
E("L_end:\ns_endpgm")

lines = finalize(prog, verbose=True)
hdr = f"""; Fused LayerNorm + QKV/gate/up GEMM + sliding-window attention + GEGLU + down/out projection.
; @launch grid=(256,1,1) block=(256,1,1) lds={LDSSZ}
.amdgcn_target "amdgcn-amd-amdhsa--gfx950"
.text
.globl {KNAME}
.p2align 8
.type {KNAME},@function
{KNAME}:
"""
tail = f"""
L_table_end:
    s_endpgm
.section .rodata,"a"
.p2align 6
.amdhsa_kernel {KNAME}
  .amdhsa_next_free_vgpr 512
  .amdhsa_next_free_sgpr 102
  .amdhsa_accum_offset 256
  .amdhsa_group_segment_fixed_size 0
  .amdhsa_kernarg_size 80
  .amdhsa_user_sgpr_count 2
  .amdhsa_user_sgpr_kernarg_segment_ptr 1
  .amdhsa_system_sgpr_workgroup_id_x 1
.end_amdhsa_kernel
"""
open(sys.argv[1], "w").write(hdr + "\n".join(lines) + "\n" + "".join(rare) + tail)
```

```python
import sys, math, struct
from asmlib import I, Ins, finalize, weave, Sched

KNAME = "parallel_sum__sliding_block__glu_gated_geglu__prompt_kernel"
OPT = dict(stamps=0, spin=200000)
for a in sys.argv[2:]:
    k, v = a.split("="); OPT[k] = int(v)
def O(k, d): return OPT.get(k, d)

HUGE = 0x40000000
H0 = 4 << 20
HSTR = 88 * 1024
O0 = 10 << 20
FL0 = 12 << 20
ST0 = FL0 + (64 << 10)
SP0 = FL0 + (256 << 10)
WSSZ = 13 << 20
WB = 65536
CS1 = 0; C1STR = 520
STRIP = 49152
CS2 = 53248; CSTR = 1040
LDSSZ = 163840

STC = 4
STB = 18 + 2
sKV = [8, 9, 10]; sRHO, sWB, sWS, sAL, sWL, sMSK, sGp = 11, 12, 13, 14, 15, 16, 17
SX, SQ, SG, SU, SD, SO, SOUT, SWS, SDBG = 24, 28, 32, 36, 40, 44, 48, 52, 56
sW, sRB, sCB, sTB2, sNB, sT0, sT2, sH2, sTB = 3, 60, 61, 62, 63, 64, 65, 66, 67
sX, sQ, sG, sM0X, sM0W = 68, 69, 70, 71, 72
sT, sTb, sTc, sTd = 73, 74, 75, 76
sPK, sPH, sM0D, sD, sSPIN = 77, 78, 80, 81, 82
sPHI, sPH2, sC, sHUGE, sA = 83, 84, 85, 86, 87
sM0K = 79; sSP, sSG = 0, 1
STREG = list(range(90, 94)) + list(range(18, 24))
sWE = 94
sLH = [64, 65, 16]; sLW = [17, 14, 15]
def srd(n): return "s[%d:%d]" % (n, n + 3)
def vr(a, n): return "v[%d:%d]" % (a, a + n - 1)
def ar(a, n): return "a[%d:%d]" % (a, a + n - 1)

vL = 0; vT0, vT1, vT2 = 1, 2, 3
vXo = 4; vQo = 8; vGo = 10; vXr = 12; vXp = 16; vWr = 20
vK = [4, 8]
vBx = [12, 16]; vG = 20
vQo2 = 28; vGo2 = 30; vW2r = 32
vSum = 40; vCS1 = 44; vCS2 = 48
vL16, vKVst, vHst, vFl2, vCSw1, vCSw2, vPoll, vInit, vCSr, vSPo, vDo = 52, 53, 54, 55, 56, 57, 58, 59, 60, 61, 62
ACC1 = 64; ACC2 = 160
vXT = 160; vSL = 176
vKa, vVa, vVinc, vOst, vKVo, vPa, vPb, vW3r = 208, 209, 210, 211, 212, 213, 214, 215
vOut, vEo, vAo, vOo, vFl1, vRw, vRr, vPs, vQS = 217, 219, 221, 223, 225, 226, 227, 228, 229
vU = 232; vCSA = [240, 244, 248]
vXres = 28
vBF = 64; vBD = 80; vS = [96, 112]; vP = [128, 136]; vQ = 144; vO = [160, 176]
vOF = 64
aSTV = 200; aMSK = 216
aX = 0; aSEL = 128; aXP = 140; aWF = 152
aH = 0; aW2 = 176; aACC = 192; aK = 192; aV = 200

prog = []; rare = []
def L(txt, **kw): return [I(ln.strip(), **kw) for ln in txt.strip().split("\n") if ln.strip() and not ln.strip().startswith(";")]
def E(x, **kw):
    if isinstance(x, str): prog.extend(L(x, **kw))
    elif isinstance(x, Ins): prog.append(x)
    else: prog.extend(x)
def flat(g): return [x for y in g for x in y]
one = lambda g: 1
nstamp = [0]; xfc = [0]
TIMER = "s_memrealtime" if O("rt", 0) else "s_memtime"
def stampq(sets=(1,)):
    if O("xf", 0):
        if 1 in sets:
            xfc[0] += 1
            if xfc[0] == OPT["xf"]: return L("s_waitcnt lgkmcnt(0)\n%s s[90:91]\ns_waitcnt lgkmcnt(0)" % ("s_memtime" if O("xfc", 0) else "s_memrealtime"))
        return []
    if OPT["stamps"] in sets:
        k = nstamp[0]; nstamp[0] += 1
        return L("s_waitcnt lgkmcnt(0)\n%s s[88:89]\ns_waitcnt lgkmcnt(0)\nv_writelane_b32 v231, s88, %d" % (TIMER, k))
    return []
def stamp(sets=(1,)): E(stampq(sets))
def fx(f): return "0x%08x" % struct.unpack("<I", struct.pack("<f", f))[0]
MF = "v_mfma_f32_32x32x16_bf16"; MS = "v_mfma_f32_16x16x32_bf16"
HOME = dict(Ka=vKa, Va=vVa, Vinc=vVinc, Ost=vOst, KVo=vKVo, Pa=vPa, Pb=vPb, W3r=vW3r, W3s=vW3r+1, Out=vOut, Out1=vOut+1, Eo=vEo, Eo1=vEo+1, Ao=vAo, Ao1=vAo+1, Oo=vOo, Oo1=vOo+1, Fl1=vFl1, Rw=vRw, Rr=vRr)
def park(name, src): return f"v_mov_b32 v{HOME[name]}, {src}\n"
def dma(voff, S, soff, imm, tag, flags="", need=None):
    o = (" offset:%d" % imm) if imm else ""
    return I(f"buffer_load_dwordx4 v{voff}, {srd(S)}, {soff} offen{o} {flags} lds", tag=tag, need=need)
def glue(q):
    out = []; cur = []
    for n, x in enumerate(q):
        if isinstance(x, list):
            assert not cur
            out.append(x); continue
        cur.append(x)
        nxt = q[n + 1] if n + 1 < len(q) else None
        if x.op.startswith("s_cmp") or (nxt is not None and not isinstance(nxt, list) and nxt.op.startswith("s_cselect")): continue
        out.append(cur); cur = []
    if cur: out.append(cur)
    return out

E("""
s_cmp_ge_u32 s2, 256
s_cbranch_scc1 L_end
s_load_dwordx4 s[4:7], s[0:1], 0
s_load_dwordx2 s[8:9], s[0:1], 16
s_load_dwordx4 s[12:15], s[0:1], 32
s_load_dwordx4 s[16:19], s[0:1], 48
s_load_dwordx4 s[20:23], s[0:1], 64
""")
if OPT["stamps"]: E(TIMER + " s[88:89]")
if O("xf", 0): E("s_memrealtime s[88:89]\ns_memtime s[92:93]")
def ctouch(vtid):
    return L(f"""s_getpc_b64 s[40:41]
s_mov_b32 s42, L_table_end-.
s_mov_b32 s43, 0x20000
s_lshr_b32 s44, s2, 3
s_lshl_b32 s44, s44, 11
v_and_b32 v{vU}, 15, v{vtid}
v_lshrrev_b32 v{vU+1}, 4, v{vtid}
v_lshlrev_b32 v{vU}, 7, v{vU}
v_lshl_add_u32 v{vU}, v{vU+1}, 24, v{vU}
buffer_load_dword v255, v{vU}, s[40:43], s44 offen""")
if O("ctouch", 1) == 1: E(ctouch(0))
else: E(f"v_mov_b32 v{vU+2}, v0")
E(f"""
v_lshrrev_b32 v{vT0}, 6, v0
v_and_b32 v{vL}, 63, v0
v_readfirstlane_b32 s{sW}, v{vT0}
s_and_b32 s{sT}, s2, 7
s_lshr_b32 s{sTb}, s2, 3
s_lshr_b32 s{sTc}, s{sT}, 2
s_lshl_b32 s{sRB}, s{sTc}, 3
s_and_b32 s{sTd}, s{sTb}, 7
s_add_u32 s{sRB}, s{sRB}, s{sTd}
s_and_b32 s{sCB}, s{sT}, 3
s_lshl_b32 s{sCB}, s{sCB}, 2
s_lshr_b32 s{sTd}, s{sTb}, 3
s_add_u32 s{sCB}, s{sCB}, s{sTd}
s_lshl_b32 s{sTB2}, s{sT}, 2
s_and_b32 s{sTd}, s{sTb}, 3
s_add_u32 s{sTB2}, s{sTB2}, s{sTd}
s_lshr_b32 s{sNB}, s{sTb}, 2
""")
if O("phi", 1) == 1: E(f"s_lshl_b32 s{sPHI}, s{sCB}, 1\ns_add_u32 s{sPHI}, s{sPHI}, s{sRB}\ns_and_b32 s{sPHI}, s{sPHI}, 7")
elif O("phi", 1) == 2: E(f"s_add_u32 s{sPHI}, s{sCB}, s{sRB}\ns_and_b32 s{sPHI}, s{sPHI}, 3\ns_lshl_b32 s{sPHI}, s{sPHI}, 1")
elif O("phi", 1) == 3: E(f"s_add_u32 s{sPHI}, s{sCB}, s{sRB}\ns_and_b32 s{sPHI}, s{sPHI}, 1\ns_lshl_b32 s{sPHI}, s{sPHI}, 2")
else: E(f"s_mov_b32 s{sPHI}, 0")
E(f"""
s_lshl_b32 s{sTB}, s{sRB}, 2
s_add_u32 s{sTB}, s{sTB}, s{sW}
s_mul_i32 s{sT0}, s{sCB}, 3
s_lshl_b32 s{sT}, s{sCB}, 1
s_add_u32 s{sT}, s{sT}, 11
s_cmp_lt_u32 s{sCB}, 11
s_cselect_b32 s{sT0}, s{sT0}, s{sT}
s_lshl_b32 s{sM0X}, s{sW}, 12
s_lshl_b32 s{sM0W}, s{sW}, 11
s_add_u32 s{sM0W}, s{sM0W}, {WB}
s_lshl_b32 s{sT}, s{sTB}, 15
v_lshrrev_b32 v{vT0}, 3, v{vL}
v_lshlrev_b32 v{vT0}, 10, v{vT0}
v_add_u32 v{vT0}, s{sT}, v{vT0}
v_and_b32 v{vT1}, 7, v{vL}
v_lshrrev_b32 v{vT2}, 4, v{vL}
v_xor_b32 v{vT1}, v{vT1}, v{vT2}
v_lshl_add_u32 v{vXo}, v{vT1}, 4, v{vT0}
v_xor_b32 v{vT1}, 4, v{vT1}
v_lshl_add_u32 v{vXo+1}, v{vT1}, 4, v{vT0}
v_add_u32 v{vXo+1}, {7*1024}, v{vXo+1}
v_add_u32 v{vXo+2}, {14*1024}, v{vXo}
v_add_u32 v{vXo+3}, {14*1024}, v{vXo+1}
v_lshrrev_b32 v{vT0}, 5, v{vL}
v_bfe_u32 v{vT1}, v{vL}, 2, 2
v_lshl_add_u32 v{vT0}, v{vT0}, 2, v{vT1}
v_bfe_u32 v{vT1}, v{vL}, 4, 1
v_and_b32 v{vT2}, 3, v{vL}
v_lshlrev_b32 v{vT2}, 4, v{vT2}
v_lshl_add_u32 v{vT1}, v{vT1}, 6, v{vT2}
v_lshl_add_u32 v{vDo}, v{vT0}, 10, v{vT1}
s_lshl_b32 s{sT}, s{sW}, 4
v_add_u32 v{vT0}, s{sT}, v{vT0}
s_and_b32 s{sT}, s{sCB}, 1
s_add_u32 s{sT}, s{sT}, 1
s_lshl_b32 s{sT}, s{sT}, 10
s_lshr_b32 s{sTb}, s{sCB}, 1
s_lshl_b32 s{sTb}, s{sTb}, 7
s_add_u32 s{sT}, s{sT}, s{sTb}
v_mul_u32_u24 v{vQo}, 3072, v{vT0}
v_add3_u32 v{vQo}, v{vQo}, v{vT1}, s{sT}
v_add_u32 v{vQo+1}, {8*3072-1024}, v{vQo}
s_lshl_b32 s{sT}, s{sT0}, 6
v_mul_u32_u24 v{vGo}, 2752, v{vT0}
v_add3_u32 v{vGo}, v{vGo}, v{vT1}, s{sT}
v_add_u32 v{vGo+1}, {8*2752-1024}, v{vGo}
""")
def mksrd(n, p, size): return f"s_mov_b32 s{n}, s{p}\ns_mov_b32 s{n+1}, s{p+1}\ns_mov_b32 s{n+2}, {size}\ns_mov_b32 s{n+3}, 0x20000\n"
E(mksrd(SX, 4, 2097152) + mksrd(SQ, 6, 1572864) + mksrd(SG, 12, 1409024) + mksrd(SU, 14, 1409024))
if OPT["stamps"]:
    E("v_mov_b32 v231, -1\nv_writelane_b32 v231, s88, 0"); nstamp[0] = 1

def p1_dma(c):
    sl = c & 3; t = "c%d" % c
    g = []
    g.append(L(f"s_add_u32 s{sC}, s{sPHI}, {c}\ns_and_b32 s{sC}, s{sC}, 7\ns_add_u32 m0, s{sM0X}, {sl*16384}\ns_lshl_b32 s{sX}, s{sC}, 7") + [dma(vXo, SX, f"s{sX}", 0, t)])
    g += [[dma(vXo + i, SX, f"s{sX}", 1024 * i, t)] for i in range(1, 4)]
    g.append(L(f"s_add_u32 m0, s{sM0W}, {sl*24576}\ns_mul_i32 s{sQ}, s{sC}, 196608") + [dma(vQo, SQ, f"s{sQ}", 0, t)])
    g.append([dma(vQo + 1, SQ, f"s{sQ}", 1024, t), I(f"s_add_u32 m0, s{sM0W}, {sl*24576+8192}")])
    g.append(L(f"s_mul_i32 s{sG}, s{sC}, 176128") + [dma(vGo, SG, f"s{sG}", 0, t)])
    g.append([dma(vGo + 1, SG, f"s{sG}", 1024, t), I(f"s_add_u32 m0, s{sM0W}, {sl*24576+16384}")])
    g.append([dma(vGo, SU, f"s{sG}", 0, t)])
    g.append([dma(vGo + 1, SU, f"s{sG}", 1024, t)])
    return g
def p2_dma(p):
    t = "p%d" % p
    g = []
    g.append(L(f"s_add_u32 s{sC}, s{sPH2}, {2*p}\ns_and_b32 s{sC}, s{sC}, 7\ns_add_u32 m0, s{sM0W}, {p*24576}\ns_mul_i32 s{sQ}, s{sC}, 196608") + [dma(vQo2, SQ, f"s{sQ}", 0, t)])
    g.append([dma(vQo2 + 1, SQ, f"s{sQ}", 1024, t), I(f"s_add_u32 m0, s{sM0W}, {p*24576+8192}")])
    g.append(L(f"s_mul_i32 s{sG}, s{sC}, 176128") + [dma(vGo2, SG, f"s{sG}", 0, t)])
    g.append([dma(vGo2 + 1, SG, f"s{sG}", 1024, t), I(f"s_add_u32 m0, s{sM0W}, {p*24576+16384}")])
    g.append([dma(vGo2, SU, f"s{sG}", 0, t)])
    g.append([dma(vGo2 + 1, SU, f"s{sG}", 1024, t)])
    return g

E(mksrd(SWS, 22, WSSZ) + mksrd(SDBG, 20, 256) + f"""
s_mov_b32 s{sHUGE}, {HUGE}
v_lshlrev_b32 v{vL16}, 4, v{vL}
s_mul_i32 s{sT}, s{sW}, 10240
s_add_u32 s{sT}, s{sT}, {FL0}
s_cmp_lg_u32 s2, 0
s_cselect_b32 s{sT}, s{sHUGE}, s{sT}
s_cbranch_scc1 L_nozero
s_add_u32 s{sTb}, s{sT}, 4096
s_add_u32 s{sTc}, s{sT}, 8192
v_mov_b32 v{vXT}, 0
v_mov_b32 v{vXT+1}, 0
v_mov_b32 v{vXT+2}, 0
v_mov_b32 v{vXT+3}, 0
""")
for i in range(10):
    E(I(f"buffer_store_dwordx4 {vr(vXT,4)}, v{vL16}, {srd(SWS)}, s{[sT, sTb, sTc][i>>2]} offen offset:{1024*(i&3)} sc1", tag="zero"))
prog[-1].post = "\nL_nozero:"
stamp((2,))
if O("tlb", 0):
    E(f"""s_cmp_eq_u32 s{sW}, 1
s_cselect_b32 s44, s{SQ}, s{SX}
s_cselect_b32 s45, s{SQ+1}, s{SX+1}
s_cmp_eq_u32 s{sW}, 2
s_cselect_b32 s44, s{SG}, s44
s_cselect_b32 s45, s{SG+1}, s45
s_cmp_eq_u32 s{sW}, 3
s_cselect_b32 s44, s{SU}, s44
s_cselect_b32 s45, s{SU+1}, s45
s_mov_b32 s46, 1409024
s_mov_b32 s47, 0x20000
v_lshlrev_b32 v{vT0}, {O("tlbs", 24)}, v{vL}
buffer_load_dword v{vXT+7}, v{vT0}, s[44:47], 0 offen""")
g0 = p1_dma(0)
CT = O("ctouch", 1)
NI = O("ni", 7)
E(flat(g0[:NI])); g0 = g0[NI:]
if CT == 2: E(ctouch(vU + 2))
stamp((2,))
init_mark = len(prog)
E(mksrd(SD, 16, 1409024) + mksrd(SO, 8, 524288) + mksrd(SOUT, 18, 2097152))
ann = L(f"""
s_cmp_lg_u32 s2, 0
s_cselect_b32 s{sT}, s{sHUGE}, 0
s_lshl_b32 s{sTb}, s{sW}, 2
s_add_u32 s{sT}, s{sT}, s{sTb}
v_mov_b32 v{vT0}, 1
v_lshlrev_b32 v{vT1}, 8, v{vL}
""") + [I(f"buffer_store_dword v{vT0}, v{vT1}, {srd(SDBG)}, s{sT} offen sc1", need=["zero"])]
E(f"""
s_lshr_b32 s{sPH2}, s{sW}, 1
s_add_u32 s{sPH2}, s{sPH2}, s{sPHI}
s_cmp_lt_u32 s{sCB}, 11
s_cselect_b32 s{sT}, 2, 1
s_cselect_b32 s{sMSK}, 0, s{sHUGE}
s_add_u32 s{sT2}, s{sT0}, s{sT}
""")
if O("w2m", 0) == 0:
    w2touch = L(f"""s_mul_i32 s{sT}, s2, 3
s_add_u32 s{sT}, s{sT}, s{sW}
s_mov_b32 s{STC+3}, 0x20000
s_cmp_eq_u32 s{sW}, 3
s_cselect_b32 s{sT}, s2, s{sT}
s_cselect_b32 s{STC}, s{SO}, s{SD}
s_cselect_b32 s{STC+1}, s{SO+1}, s{SD+1}
s_cselect_b32 s{STC+2}, s{SO+2}, s{SD+2}
s_lshl_b32 s{sT}, s{sT}, 11
v_and_b32 v{vT0}, 15, v{vL}
v_lshlrev_b32 v{vT0}, 7, v{vT0}
v_lshrrev_b32 v{vT1}, 4, v{vL}
v_lshl_add_u32 v{vT0}, v{vT1}, 28, v{vT0}
buffer_load_dword v{vPoll}, v{vT0}, {srd(STC)}, s{sT} offen sc1""")
else:
    w2touch = L(f"""s_lshl_b32 s{sT}, s2, 1
s_and_b32 s{sTb}, s{sW}, 1
s_add_u32 s{sT}, s{sT}, s{sTb}
s_lshr_b32 s{sTb}, s{sT}, 5
s_mul_i32 s{sTb}, s{sTb}, 98304
s_add_u32 s{sTb}, s{sTb}, 65536
s_and_b32 s{STC}, s{sT}, 31
s_lshl_b32 s{STC}, s{STC}, 10
s_add_u32 s{sTb}, s{sTb}, s{STC}
s_lshl_b32 s{sT}, s{sT}, 10
s_mov_b32 s{STC+3}, 0x20000
s_cmp_lt_u32 s{sW}, 2
s_cselect_b32 s{sT}, s{sT}, s{sTb}
s_cselect_b32 s{STC}, s{SO}, s{SD}
s_cselect_b32 s{STC+1}, s{SO+1}, s{SD+1}
s_cselect_b32 s{STC+2}, s{SO+2}, s{SD+2}
v_and_b32 v{vT0}, 7, v{vL}
v_lshlrev_b32 v{vT0}, 7, v{vT0}
v_lshrrev_b32 v{vT1}, 3, v{vL}
v_lshl_add_u32 v{vT0}, v{vT1}, 27, v{vT0}
buffer_load_dword v{vPoll}, v{vT0}, {srd(STC)}, s{sT} offen sc1""")
E(f"""
v_and_b32 v{vT0}, 31, v{vL}
v_lshrrev_b32 v{vT1}, 5, v{vL}
v_bfe_u32 v{vT2}, v{vL}, 1, 3
v_xor_b32 v{vT2}, v{vT2}, v{vT1}
v_lshlrev_b32 v{vT0}, 7, v{vT0}
v_lshl_add_u32 v{vT0}, v{vT2}, 4, v{vT0}
v_add_u32 v{vT0}, s{sM0X}, v{vT0}
""")
for s in range(4):
    E(f"s_xor_b32 s{sT}, s{sW}, {s}\ns_lshl_b32 s{sT}, s{sT}, 5\nv_xor_b32 v{vXr+s}, s{sT}, v{vT0}\nv_xor_b32 v{vXp+s}, 4096, v{vXr+s}")
E(f"""
v_bfe_u32 v{vT2}, v{vL}, 2, 2
v_lshlrev_b32 v{vT2}, 6, v{vT2}
v_bfe_u32 v{vT0}, v{vL}, 4, 1
v_lshl_add_u32 v{vT2}, v{vT0}, 5, v{vT2}
v_and_b32 v{vT0}, 3, v{vL}
v_lshl_add_u32 v{vT2}, v{vT0}, 3, v{vT2}
v_lshl_add_u32 v{vT0}, v{vT1}, 10, v{vT2}
v_lshl_add_u32 v{vT2}, v{vT1}, 9, v{vT2}
s_and_b32 s{sTc}, s{sW}, 1
s_lshl_b32 s{sTc}, s{sTc}, 8
s_add_u32 s{sTc}, s{sTc}, {WB}
s_mul_i32 s{sT}, s{sW}, 6144
s_add_u32 s{sM0D}, s{sT}, {WB}
v_add_u32 v{vT1}, s{sM0D}, v{vT2}
{park("W3r", f"v{vT1}")}v_add_u32 v{vT1}, 49152, v{vT1}
{park("W3s", f"v{vT1}")}
""")
for s in range(4):
    E(f"""
s_xor_b32 s{sT}, s{sW}, {s}
s_lshl_b32 s{sTb}, s{sT}, 11
s_add_u32 s{sTb}, s{sTb}, s{sTc}
v_add_u32 v{vWr+2*s}, s{sTb}, v{vT0}
v_add_u32 v{vWr+2*s+1}, 49152, v{vWr+2*s}
s_lshl_b32 s{sTb}, s{sT}, 10
s_add_u32 s{sTb}, s{sTb}, {WB}
v_add_u32 v{vW2r+2*s}, s{sTb}, v{vT2}
v_add_u32 v{vW2r+2*s+1}, 49152, v{vW2r+2*s}
""")
E(f"""
v_lshrrev_b32 v{vT0}, 2, v{vL}
s_and_b32 s{sT}, s{sW}, 1
s_lshl_b32 s{sT}, s{sT}, 5
v_add_u32 v{vT0}, s{sT}, v{vT0}
v_and_b32 v{vT1}, 3, v{vL}
v_lshlrev_b32 v{vT1}, 4, v{vT1}
s_lshl_b32 s{sT}, s{sCB}, 6
v_mul_u32_u24 v{vQo2}, 3072, v{vT0}
v_add3_u32 v{vQo2}, v{vQo2}, v{vT1}, s{sT}
v_add_u32 v{vQo2+1}, {16*3072-1024}, v{vQo2}
s_lshl_b32 s{sT}, s{sT2}, 6
v_mul_u32_u24 v{vGo2}, 2752, v{vT0}
v_add3_u32 v{vGo2}, v{vGo2}, v{vT1}, s{sT}
v_add_u32 v{vGo2}, s{sMSK}, v{vGo2}
v_add_u32 v{vGo2+1}, {16*2752-1024}, v{vGo2}
v_and_b32 v{vT0}, 15, v{vL}
v_bfe_u32 v{vT1}, v{vL}, 4, 1
v_sub_u32 v{vT0}, v{vT0}, v{vT1}
v_mov_b32 v{vT1}, 0x3f803f80
""")
for t in range(3):
    E(f"v_cmp_eq_u32 vcc, {2*t}, v{vT0}\nv_cndmask_b32 v{vT2}, 0, v{vT1}, vcc")
    E("\n".join(f"v_accvgpr_write_b32 a{aSEL+4*t+j}, v{vT2}" for j in range(4)))
E(f"""
s_lshl_b32 s{sT}, s{sRB}, 2
s_sub_i32 s{sT}, 8, s{sT}
v_and_b32 v{vT0}, 7, v{vL}
v_lshlrev_b32 v{vT0}, 1, v{vT0}
v_cmp_le_i32 vcc, s{sT}, v{vT0}
v_cndmask_b32 v{vT2}, 0, v{vT1}, vcc
v_accvgpr_write_b32 a{aSTV}, v{vT2}
v_accvgpr_write_b32 a{aSTV+1}, v{vT2}
v_add_u32 v{vT0}, 1, v{vT0}
v_cmp_le_i32 vcc, s{sT}, v{vT0}
v_cndmask_b32 v{vT2}, 0, v{vT1}, vcc
v_accvgpr_write_b32 a{aSTV+2}, v{vT2}
v_accvgpr_write_b32 a{aSTV+3}, v{vT2}
v_lshlrev_b32 v{vT0}, 3, v{vL}
s_and_b32 s{sTc}, s{sW}, 1
s_lshr_b32 s{sT}, s{sTB}, 1
s_lshl_b32 s{sTb}, s{sT}, 13
s_add_u32 s{sTb}, s{sTb}, {SP0}
s_lshl_b32 s{sTd}, s{sTc}, 8
v_xor_b32 v{vT1}, s{sTd}, v{vT0}
v_add_u32 v{vSPo}, s{sTb}, v{vT1}
s_lshl_b32 s{sSP}, s{sCB}, 9
s_and_b32 s{sSG}, s{sCB}, 12
s_lshl_b32 s{sSG}, s{sSG}, 9
s_lshl_b32 s{sT}, s{sT}, 8
s_and_b32 s{sTb}, s{sCB}, 12
s_lshl_b32 s{sTb}, s{sTb}, 3
s_add_u32 s{sT}, s{sT}, s{sTb}
s_add_u32 s{sT}, s{sT}, {FL0+4*8192}
v_bfe_u32 v{vT1}, v{vL}, 2, 1
v_and_b32 v{vT2}, 3, v{vL}
v_lshlrev_b32 v{vT2}, 3, v{vT2}
v_lshl_add_u32 v{vT1}, v{vT1}, 7, v{vT2}
v_add_u32 v{vPs}, s{sT}, v{vT1}
s_and_b32 s{sTc}, s{sW}, 1
s_mul_i32 s{sT}, s{sTc}, {8*C1STR}
v_add_u32 v{vCSr}, s{sT}, v{vT0}
s_lshr_b32 s{sTb}, s{sW}, 1
s_lshl_b32 s{sTd}, s{sTb}, 8
s_add_u32 s{sT}, s{sT}, s{sTd}
v_bfe_u32 v{vT0}, v{vL}, 1, 3
v_and_b32 v{vT1}, 1, v{vL}
v_lshrrev_b32 v{vT2}, 4, v{vL}
v_lshl_add_u32 v{vT1}, v{vT1}, 2, v{vT2}
v_mul_u32_u24 v{vT2}, {C1STR}, v{vT0}
v_lshl_add_u32 v{vT2}, v{vT1}, 5, v{vT2}
v_add_u32 v{vCSw1}, s{sT}, v{vT2}
s_lshl_b32 s{sT}, s{sTb}, 9
s_lshl_b32 s{sTd}, s{sTc}, 3
s_add_u32 s{sT}, s{sT}, s{sTd}
v_mul_u32_u24 v{vT2}, {CSTR}, v{vT0}
v_lshl_add_u32 v{vT2}, v{vT1}, 6, v{vT2}
v_add_u32 v{vCSw2}, s{sT}, v{vT2}
v_and_b32 v{vT0}, 31, v{vL}
v_lshrrev_b32 v{vT1}, 5, v{vL}
v_lshl_add_u32 v{vT0}, v{vT0}, 1, v{vT1}
v_lshlrev_b32 v{vT0}, 4, v{vT0}
v_add_u32 v{vT0}, 2048, v{vT0}
s_and_b32 s{sT}, s{sCB}, 1
s_cmp_eq_u32 s{sT}, 1
s_cselect_b64 vcc, -1, 0
v_cndmask_b32 v{vKVst}, v{vL16}, v{vT0}, vcc
s_and_b32 s{sT}, s{sCB}, 14
s_add_u32 s{sT}, s{sT}, s{sTc}
s_lshl_b32 s{sT}, s{sT}, 18
s_and_b32 s{sTb}, s{sTB}, -2
s_lshl_b32 s{sTd}, s{sTb}, 12
s_add_u32 s{sT}, s{sT}, s{sTd}
v_add_u32 v{vKVst}, s{sT}, v{vKVst}
s_lshl_b32 s{sPK}, s{sTc}, 12
s_mul_i32 s{sT}, s{sTb}, {HSTR}
s_add_u32 s{sT}, s{sT}, {H0}
s_lshl_b32 s{sTd}, s{sCB}, 12
s_add_u32 s{sT}, s{sT}, s{sTd}
s_lshl_b32 s{sTd}, s{sTc}, 11
s_add_u32 s{sT}, s{sT}, s{sTd}
v_add_u32 v{vHst}, s{sT}, v{vL16}
s_mul_i32 s{sPH}, s{sTc}, {HSTR}
s_lshl_b32 s{sT}, s{sCB}, 11
s_lshl_b32 s{sTd}, s{sTc}, 11
s_add_u32 s{sT}, s{sT}, s{sTd}
s_sub_u32 s{sT}, 65536, s{sT}
s_add_u32 s{sT}, s{sT}, s{sPH}
s_cmp_lt_u32 s{sCB}, 12
s_cselect_b32 s{sH2}, s{sT}, s{sHUGE}
s_lshl_b32 s{sT}, s{sTb}, 7
s_lshl_b32 s{sTd}, s{sCB}, 3
s_add_u32 s{sTd}, s{sTd}, {FL0}
s_add_u32 s{sT}, s{sT}, s{sTd}
s_lshl_b32 s{sTb}, s{sTc}, 2
s_add_u32 s{sT}, s{sT}, s{sTb}
v_lshlrev_b32 v{vT0}, 7, v{vL}
v_add_u32 v{vT0}, s{sT}, v{vT0}
v_mov_b32 v{vT1}, s{sHUGE}
v_cmp_gt_u32 vcc, 2, v{vL}
v_cndmask_b32 v{vFl2}, v{vT1}, v{vT0}, vcc
s_lshl_b32 s{sT}, s{sTB}, 7
s_add_u32 s{sT}, s{sT}, s{sTd}
v_mov_b32 v{vT0}, s{sT}
v_cmp_eq_u32 vcc, 0, v{vL}
v_cndmask_b32 v{vT0}, v{vT1}, v{vT0}, vcc
{park("Fl1", f"v{vT0}")}
v_mov_b32 v{vSum}, 0
v_mov_b32 v{vSum+1}, 0
v_mov_b32 v{vSum+2}, 0
v_mov_b32 v{vSum+3}, 0
v_mov_b32 v{vCSA[0]+2}, 0
v_mov_b32 v{vCSA[0]+3}, 0
v_mov_b32 v{vCSA[1]+2}, 0
v_mov_b32 v{vCSA[1]+3}, 0
v_mov_b32 v{vCSA[2]+2}, 0
v_mov_b32 v{vCSA[2]+3}, 0
s_lshl_b32 s{sT}, s{sNB}, 7
v_add_u32 v{vDo}, s{sT}, v{vDo}
v_add_u32 v{vDo+1}, {7*1024}, v{vDo}
s_lshl_b32 s{sT}, s{sW}, 17
v_add_u32 v{vT0}, s{sT}, v{vDo}
{park("Eo", f"v{vT0}")}v_add_u32 v{vT0}, {7*1024}, v{vT0}
{park("Eo1", f"v{vT0}")}
s_mul_i32 s{sT}, s{sTB2}, {2*HSTR}
s_lshl_b32 s{sTb}, s{sW}, 14
s_add_u32 s{sT}, s{sT}, s{sTb}
s_add_u32 s{sT}, s{sT}, {H0}
v_add_u32 v{vT0}, s{sT}, v{vL16}
{park("Ao", f"v{vT0}")}v_add_u32 v{vT0}, {HSTR}, v{vT0}
{park("Ao1", f"v{vT0}")}
s_lshl_b32 s{sT}, s{sTB2}, 16
s_lshl_b32 s{sTb}, s{sW}, 13
s_add_u32 s{sT}, s{sT}, s{sTb}
s_add_u32 s{sT}, s{sT}, {O0}
v_add_u32 v{vT0}, s{sT}, v{vL16}
{park("Oo", f"v{vT0}")}v_add_u32 v{vT0}, 32768, v{vT0}
{park("Oo1", f"v{vT0}")}
s_lshl_b32 s{sRHO}, s{sTB2}, 1
s_add_u32 s{sRHO}, s{sRHO}, s{sNB}
s_and_b32 s{sRHO}, s{sRHO}, {7 if O("rot", 1) else 0}
s_mul_i32 s{sWB}, s{sW}, {12*32768}
s_mov_b32 s{sWS}, 98304
s_cmp_eq_u32 s{sW}, 3
s_cselect_b32 s{sWB}, {35*32768}, s{sWB}
s_cselect_b32 s{sWS}, 65536, s{sWS}
""")
for q in range(8):
    E(f"""s_add_u32 s{sT}, s{sRHO}, {q}
s_bfe_u32 s{sTb}, s{sT}, 0x20001
s_mul_i32 s{sTb}, s{sTb}, s{sWS}
s_and_b32 s{sT}, s{sT}, 1
s_lshl_b32 s{sT}, s{sT}, 15
s_add_u32 s{sT}, s{sT}, s{sTb}
s_add_u32 s{sWE+q}, s{sT}, s{sWB}""")
E(f"""s_add_u32 s{sT}, s{sTB2}, s{sNB}
s_mul_i32 s{sTb}, s{sT}, 43
s_lshr_b32 s{sTb}, s{sTb}, 7
s_mul_i32 s{sTb}, s{sTb}, 3
s_sub_u32 s{sT}, s{sT}, s{sTb}
s_and_b32 s{sT}, s{sT}, {3 if O("rot", 1) else 0}
s_mul_i32 s{sTc}, s{sW}, 10240
s_sub_u32 s{sTc}, 65536, s{sTc}
s_mul_i32 s{sTd}, s{sW}, {9*32768}
s_add_u32 s{sTd}, s{sTd}, 65536""")
for q in range(3):
    E(f"""s_lshl_b32 s{sTb}, s{sT}, 11
s_add_u32 s{sLH[q]}, s{sTb}, s{sTc}
s_mul_i32 s{sTb}, s{sT}, 98304
s_add_u32 s{sLW[q]}, s{sTb}, s{sTd}
s_add_u32 s{sT}, s{sT}, 1
s_cmp_eq_u32 s{sT}, 3
s_cselect_b32 s{sT}, 0, s{sT}""")
E(f"""
s_lshl_b32 s{sA}, s{sRHO}, 11
s_lshl_b32 s{sWB}, s{sRHO}, 14
s_lshl_b32 s{sWS}, s{sRHO}, 10
v_lshrrev_b32 v{vT0}, 3, v{vL}
v_and_b32 v{vT1}, 7, v{vL}
s_lshl_b32 s{sT}, s{sTB2}, 6
s_lshl_b32 s{sTb}, s{sW}, 4
s_add_u32 s{sT}, s{sT}, s{sTb}
s_lshl_b32 s{sT}, s{sT}, 10
s_lshl_b32 s{sTb}, s{sNB}, 7
s_add_u32 s{sT}, s{sT}, s{sTb}
v_lshlrev_b32 v{vT2}, 10, v{vT0}
v_lshl_add_u32 v{vT2}, v{vT1}, 4, v{vT2}
v_add_u32 v{vT2}, s{sT}, v{vT2}
{park("Out", f"v{vT2}")}v_add_u32 v{vT2}, 8192, v{vT2}
{park("Out1", f"v{vT2}")}v_lshlrev_b32 v{vT1}, 1, v{vT1}
v_xor_b32 v{vT1}, v{vT1}, v{vT0}
v_lshlrev_b32 v{vT0}, 8, v{vT0}
v_lshl_add_u32 v{vT0}, v{vT1}, 4, v{vT0}
v_add_u32 v{vT0}, s{sM0X}, v{vT0}
{park("Rr", f"v{vT0}")}v_and_b32 v{vT0}, 31, v{vL}
v_lshrrev_b32 v{vT1}, 5, v{vL}
v_and_b32 v{vT2}, 7, v{vL}
v_xor_b32 v{vT1}, v{vT1}, v{vT2}
v_lshlrev_b32 v{vT0}, 8, v{vT0}
v_lshl_add_u32 v{vT0}, v{vT1}, 4, v{vT0}
s_lshl_b32 s{sT}, s{sW}, 14
v_add_u32 v{vT0}, s{sT}, v{vT0}
{park("Rw", f"v{vT0}")}
v_add_u32 v{vT0}, s{sM0X}, v{vL16}
{park("Ka", f"v{vT0}")}v_lshrrev_b32 v{vT1}, 5, v{vL}
v_bfe_u32 v{vT2}, v{vL}, 2, 2
v_lshl_add_u32 v{vT2}, v{vT1}, 2, v{vT2}
v_lshlrev_b32 v{vT2}, 5, v{vT2}
v_and_b32 v{vT0}, 1, v{vL}
v_lshl_add_u32 v{vT2}, v{vT0}, 4, v{vT2}
v_bfe_u32 v{vT0}, v{vL}, 1, 1
v_lshl_add_u32 v{vT2}, v{vT0}, 3, v{vT2}
s_add_u32 s{sT}, s{sM0X}, 2048
v_add_u32 v{vT2}, s{sT}, v{vT2}
v_xor_b32 v{vT1}, 1, v{vT1}
v_lshlrev_b32 v{vT1}, 7, v{vT1}
s_lshl_b32 s{sT}, s{sW}, 3
s_add_u32 s{sT}, s{sT}, {STRIP}
v_add_u32 v{vT1}, s{sT}, v{vT1}
v_and_b32 v{vT0}, 16, v{vL}
v_cmp_eq_u32 vcc, 0, v{vT0}
v_cndmask_b32 v{vT0}, v{vT1}, v{vT2}, vcc
{park("Va", f"v{vT0}")}v_mov_b32 v{vT1}, 8
v_mov_b32 v{vT2}, 4096
v_cndmask_b32 v{vT0}, v{vT1}, v{vT2}, vcc
{park("Vinc", f"v{vT0}")}
s_lshl_b32 s{sT}, s{sTB}, 15
s_lshl_b32 s{sTb}, s{sCB}, 11
s_add_u32 s{sT}, s{sT}, s{sTb}
s_add_u32 s{sT}, s{sT}, {O0}
v_add_u32 v{vT0}, s{sT}, v{vL16}
{park("Ost", f"v{vT0}")}
s_lshl_b32 s{sT}, s{sCB}, 18
v_add_u32 v{vT0}, s{sT}, v{vL16}
{park("KVo", f"v{vT0}")}
s_mul_i32 s{sM0K}, s{sW}, 12288
v_mov_b32 v{vXT}, -1
v_mov_b32 v{vXT+1}, -1
v_mov_b32 v{vXT+2}, -1
v_mov_b32 v{vXT+3}, -1
""")
SENT = O("sent", 0)
sent_st = [I(f"buffer_store_dwordx4 {vr(vXT,4)}, v{vOst}, {srd(SWS)}, 0 offen offset:{1024*e} sc1", tag="sent") for e in range(2)] if SENT else []
for k in range(3):
    E(f"""
s_mul_i32 s{sT}, s{sW}, 3
s_lshl_b32 s{sTb}, s{sRB}, 2
s_add_u32 s{sT}, s{sT}, s{sTb}
s_add_i32 s{sT}, s{sT}, {k-8}
s_lshl_b32 s{sKV[k]}, s{sT}, 12
s_cmp_lt_i32 s{sT}, 0
s_cselect_b32 s{sKV[k]}, s{sHUGE}, s{sKV[k]}
""")
E(f"""
v_min_u32 v{vT1}, 5, v{vL}
v_lshrrev_b32 v{vT2}, 1, v{vT1}
s_add_i32 s{sT}, s{sT}, -2
v_add_u32 v{vT2}, s{sT}, v{vT2}
v_cmp_gt_i32 vcc, 0, v{vT2}
v_mov_b32 v{vT0}, s{sTB}
v_cndmask_b32 v{vT2}, v{vT2}, v{vT0}, vcc
v_lshlrev_b32 v{vT2}, 7, v{vT2}
v_and_b32 v{vT1}, 1, v{vT1}
v_lshl_add_u32 v{vT2}, v{vT1}, 3, v{vT2}
s_and_b32 s{sT}, s{sCB}, 14
s_lshl_b32 s{sT}, s{sT}, 3
s_and_b32 s{sTb}, s{sCB}, 1
s_lshl_b32 s{sTb}, s{sTb}, 2
s_add_u32 s{sT}, s{sT}, s{sTb}
s_add_u32 s{sT}, s{sT}, {FL0}
v_add_u32 v{vT0}, s{sT}, v{vT2}
{park("Pa", f"v{vT0}")}
s_lshl_b32 s{sT}, s{sTB2}, 8
s_add_u32 s{sT}, s{sT}, {FL0+8192}
v_lshlrev_b32 v{vT0}, 2, v{vL}
v_add_u32 v{vT0}, s{sT}, v{vT0}
{park("Pb", f"v{vT0}")}
""")
if O("tblm", 1):
    E(f"""v_and_b32 v{vT1}, 31, v{vL}
v_lshrrev_b32 v{vT2}, 5, v{vL}
v_lshlrev_b32 v{vT2}, 2, v{vT2}
v_sub_u32 v{vT1}, v{vT1}, v{vT2}""")
    for j in range(16):
        kl = 8 * (j >> 2) + (j & 3)
        E(f"""v_subrev_u32 v{vT0}, {kl}, v{vT1}
v_ashrrev_i32 v{vT0}, 31, v{vT0}
v_and_b32 v{vT0}, 0xff000000, v{vT0}
v_accvgpr_write_b32 a{aMSK+16+j}, v{vT0}
v_xor_b32 v{vT0}, 0xff000000, v{vT0}
v_accvgpr_write_b32 a{aMSK+j}, v{vT0}""")
rest = prog[init_mark:]; del prog[init_mark:]
gall = p1_dma(1) + p1_dma(2)
N0 = O("n0", 6)
E(rest)
stamp((2,))
E(flat(g0))
if O("w2t", 144) == 0: E(w2touch)
E(ann)
E(flat(gall[:N0]))
if O("w2t", 144) == 1: E(w2touch)
E(sent_st)
stamp((1, 2, 3))

def wf1(st, t): return aWF + (st * 3 + t) * 4
def wf2(k, t): return aWF + ((k % 3) * 3 + t) * 4
def p1_reads(c, s):
    sl = c & 3; st = s & 1
    o = [I(f"ds_read_b128 {ar(aX+(4*c+s)*4,4)}, v{vXr+s} offset:{sl*16384}")]
    for t in range(3):
        for n in range(2):
            o.append(I(f"ds_read_b64_tr_b16 {ar(wf1(st,t)+2*n,2)}, v{vWr+2*s+(sl>>1)} offset:{(sl&1)*24576+t*8192+n*512}"))
    o.insert(3, I(f"ds_read_b128 {ar(aXP+4*st,4)}, v{vXp+s} offset:{sl*16384}"))
    return o
def statread(g):
    c, s = g >> 2, g & 3
    return [I(f"ds_read_b128 {vr(vXT+4*s,4)}, v{vXr+s} offset:{(c&3)*16384}")]
def stats(s):
    o = []
    for j in range(4):
        x = vXT + 4 * s + j; a = vU + 2 * (j & 1)
        o += L(f"""v_lshlrev_b32 v{a}, 16, v{x}
v_and_b32 v{a+1}, 0xffff0000, v{x}
v_add_f32 v{vSum}, v{vSum}, v{a}
v_add_f32 v{vSum+1}, v{vSum+1}, v{a+1}
v_fmac_f32 v{vSum+2}, v{a}, v{a}
v_fmac_f32 v{vSum+3}, v{a+1}, v{a+1}""")
    return o
def cs_convert(vcs, vw, base, step):
    o = []
    for j in range(4):
        a = 252 if j & 1 else vU + 4
        o += L(f"""v_cvt_pk_bf16_f32 v{a}, v{vcs+j}, v{vcs+j}
v_and_b32 v{a+1}, 0xffff0000, v{a}
v_sub_f32 v{a+1}, v{vcs+j}, v{a+1}
v_cvt_pk_bf16_f32 v{a+1}, v{a+1}, v{a+1}""")
        o.append(I(f"ds_write_b64 v{vw}, {vr(a,2)} offset:{base+step*j}"))
    return o
C1 = -2.0 * 0.7978845608028654 * 1.4426950408889634
QC = 0.25 * 1.4426950408889634
stats_pub = L(f"""v_add_f32 v{vSum}, v{vSum}, v{vSum+1}
v_add_f32 v{vSum+1}, v{vSum+2}, v{vSum+3}
v_mov_b32 v{vSum+2}, v{vSum}
v_mov_b32 v{vSum+3}, v{vSum+1}
v_lshrrev_b32 v{vT0}, 5, v{vL}
v_permlane32_swap_b32 v{vSum}, v{vSum+2}
v_permlane32_swap_b32 v{vSum+1}, v{vSum+3}
v_lshl_add_u32 v{vT0}, v{vT0}, 28, v{vSPo}
v_add_f32 v{vSum}, v{vSum}, v{vSum+2}
v_add_f32 v{vSum+1}, v{vSum+1}, v{vSum+3}""") + [I(f"buffer_store_dwordx2 {vr(vSum,2)}, v{vT0}, {srd(SWS)}, s{sSP} offen sc1", tag="sp")]
stats_ld = [[I(f"buffer_load_dwordx2 {vr(vSL+2*i,2)}, v{vSPo}, {srd(SWS)}, s{sSG} offen offset:{512*i} sc1")] for i in range(4)]
b = vSL
stats_fin = L(f"""
v_add_f32 v{b}, v{b}, v{b+2}
v_add_f32 v{b+1}, v{b+1}, v{b+3}
v_add_f32 v{b+4}, v{b+4}, v{b+6}
v_add_f32 v{b+5}, v{b+5}, v{b+7}
v_add_f32 v{b}, v{b}, v{b+4}
v_add_f32 v{b+1}, v{b+1}, v{b+5}
v_mul_f32 v{vSum}, {fx(-1.0/512)}, v{b}
v_mul_f32 v{b+1}, {fx(1.0/512)}, v{b+1}
v_fma_f32 v{b+1}, -v{vSum}, v{vSum}, v{b+1}
v_max_f32 v{b+1}, 0, v{b+1}
v_add_f32 v{vSum+1}, {fx(1e-5)}, v{b+1}
v_mov_b32 v{vSum+2}, v{vSum}
v_mov_b32 v{vSum+3}, v{vSum+1}
s_nop 0
v_permlane32_swap_b32 v{vSum}, v{vSum+2}
v_permlane32_swap_b32 v{vSum+1}, v{vSum+3}
""")
def stats_k(o):
    R = vSum + 2 * o + 1; K = vK[o]; a = vU
    t = f"""
v_rsq_f32 v{K}, v{R}
v_mov_b32 v{K+3}, v{R}
v_mul_f32 v{K+1}, {fx(C1)}, v{K}
v_mul_f32 v{a}, v{K}, v{K}
v_mul_f32 v{a}, {fx(0.044715)}, v{a}
v_mul_f32 v{K+2}, v{K+1}, v{a}
"""
    if o == 0: t += f"v_mul_f32 v{vQS}, {fx(QC)}, v{K}\n"
    return L(t)
def stats_b(o):
    nm = vSum + 2 * o; B = vBx[o]; a = vU
    return L(f"""
v_cvt_pk_bf16_f32 v{a}, v{nm}, v{nm}
v_and_b32 v{a}, 0xffff0000, v{a}
v_sub_f32 v{a+1}, v{nm}, v{a}
v_cvt_pk_bf16_f32 v{B}, v{a}, v{a+1}
v_mov_b32 v{B+1}, v{B}
v_mov_b32 v{B+2}, v{B}
v_mov_b32 v{B+3}, v{B}
""")
E(I("s_barrier", need=["c0"]))
stamp((2,))
E(p1_reads(0, 0) + statread(0) + statread(1))
E(stats(0))
S1 = Sched()
P1 = lambda c, s, t: 24 * c + 6 * s + t
A1 = lambda t, o: ACC1 + 32 * t + 16 * o
for c in range(8):
    for s in range(4):
        st = s & 1; first = (c == 0 and s == 0)
        for q in range(6):
            t, o = q >> 1, q & 1
            acc = vr(A1(t, o), 16)
            xb = ar(aX + (4 * c + s) * 4, 4) if o == 0 else ar(aXP + 4 * st, 4)
            ops = [I(f"{MF} {acc}, {ar(wf1(st,t),4)}, {xb}, {'0' if first else acc}")]
            small = s < 2 and o == 1
            if small:
                cs = vr(vCS1, 4)
                ops.append(I(f"{MS} {cs}, {ar(wf1(st,t),4)}, {ar(aSEL+4*t,4)}, {'0' if (first and t == 0) else cs}"))
            pre = []
            if q == 0 and (O("fw", 0) == 0 or s == 3): pre.append(I("s_waitcnt lgkmcnt(0)"))
            if s == 3 and q == 0 and c < 7: pre.append(I("s_barrier", need=["c%d" % (c + 1)]))
            if s == 3 and q == 2 and c == 7: pre += [I("s_waitcnt lgkmcnt(0)"), I("s_barrier", need=["p0"])]
            if s == 0 and q == 0: pre += stampq((3,))
            S1.pos(ops, 8 if small else 6, pre)
NP1 = 192
CORR_K = 0
P2 = lambda k, t: NP1 + 3 * k + t + (6 if k >= CORR_K else 0)
PC = NP1 + 3 * CORR_K
for k in range(32):
    p, s = k >> 3, k & 3
    if k == CORR_K:
        for q in range(6):
            t, o = q >> 1, q & 1
            acc = vr(A1(t, o), 16)
            S1.pos(I(f"{MF} {acc}, {vr(vCSA[t],4)}, {vr(vBx[o],4)}, {acc}"), 6, stampq((1, 3)) if q == 0 else [])
    for t in range(3):
        acc = vr(ACC2 + 16 * t, 16)
        ops = [I(f"{MF} {acc}, {ar(wf2(k,t),4)}, {ar(aX+k*4,4)}, {'0' if k == 0 else acc}", xr=ar(wf2(k, 0), 12) if t == 0 else None)]
        if s == 0:
            cs = vr(vCS2, 4)
            ops.append(I(f"{MS} {cs}, {ar(wf2(k,t),4)}, {ar(aSEL+4*t,4)}, {'0' if (k == 0 and t == 0) else cs}"))
        pre = []
        if False:
            pre = []
        if (k & 7) == 6 and t == 1:
            pre = [I("s_waitcnt lgkmcnt(0)"), I("s_barrier", need=["p%d" % (p + 1)] if p < 3 else [])]
        if (k & 3) == 0 and t == 0: pre += stampq((4,))
        S1.pos(ops, 8 if s == 0 else 6, pre)
NP2 = len(S1.main)
def p2_reads(k):
    p, g, s = k >> 3, (k >> 2) & 1, k & 3
    return [I(f"ds_read_b64_tr_b16 {ar(wf2(k,t)+2*n,2)}, v{vW2r+2*s+(p>>1)} offset:{(p&1)*24576+t*8192+g*4096+n*256}") for t in range(3) for n in range(2)]
def store4(data, voff, soff, imm, tag):
    if O("x_nost", 0) and tag in ("kv", "h"): return I("s_nop 0")
    o = (" offset:%d" % imm) if imm else ""
    return I(f"buffer_store_dwordx4 {vr(data,4)}, v{voff}, {srd(SWS)}, {soff} offen{o} sc1", tag=tag)
def flag(stage, tag, va):
    if O("x_nofw", -1) == stage: tag = "none"
    return L(f"v_mov_b32 v{vT0}, 1\ns_mov_b32 s{sT}, {stage*8192}") + [I(f"buffer_store_dword v{vT0}, v{va}, {srd(SWS)}, s{sT} offen sc1", need=[tag])]
def poll_issue(va): return [I(f"buffer_load_dword v{vPoll}, v{va}, {srd(SWS)}, 0 offen sc1")]
def poll_check(name, S, reg, addr):
    rare.append(f"""
L_spin_{name}:
    s_mov_b32 s{sSPIN}, {OPT['spin']}
L_spin2_{name}:
    buffer_load_dword v{reg}, v{addr}, {srd(S)}, 0 offen sc1
    s_waitcnt vmcnt(0) lgkmcnt(0)
    v_cmp_eq_u32 vcc, 0, v{reg}
    s_nop 4
    s_cbranch_vccz L_ok_{name}
    s_sleep 1
    s_sub_u32 s{sSPIN}, s{sSPIN}, 1
    s_cmp_lg_u32 s{sSPIN}, 0
    s_cbranch_scc1 L_spin2_{name}
    s_endpgm
""")
    o = L(f"v_cmp_eq_u32 vcc, 0, v{reg}\ns_cbranch_vccnz L_spin_{name}")
    o[-1].post = f"\nL_ok_{name}:"
    return o
NST = 8
for c in range(8):
    for s in range(4):
        g = 4 * c + s
        rd = []
        if g + 1 < 32: rd += p1_reads((g + 1) >> 2, (g + 1) & 3)
        if s < 2 and g + 2 < NST: rd += statread(g + 2)
        if s == 3 and g + 1 < NST: rd = statread(g + 1) + rd + statread(g + 2)
        S1.spread(rd, P1(c, s, 0), P1(c, s, O("rdw", 4)), 0)
        if g + 1 < NST:
            if s != 3: S1.spread(stats((g + 1) & 3), P1(c, s, 0), P1(c, s, 6), 2)
            else: S1.spread(stats(0), P1(c, s, 2), P1(c, s, 6), 2)
    if c == 0: S1.spread(gall[N0:], P1(0, 0, 0), P1(0, 3, 0), 1, one)
    if c < 5: S1.spread(p1_dma(c + 3), P1(c, 3, 0), P1(c + 1, 3, 0), 1, one)
S1.spread(p2_dma(0), P1(6, O("p0a", 1), 0), P1(6, 3, 0), 1, one)
S1.spread(p2_dma(1), P1(6, 3, 0), P1(7, 3, 0), 1, one)
S1.put(P1(1, 0, 0), [L(f"v_and_b32 v{vT2}, 3, v{vL}\nv_lshlrev_b32 v{vT2}, 2, v{vT2}") + [I(f"buffer_load_dword v{vInit}, v{vT2}, {srd(SDBG)}, 0 offen")]], 1)
S1.spread(stats_pub, P1(1, 3, 0), P1(1, 3, 3), 2)
S1.put(P1(O("spf", 2), O("spf2", 3), 1), [poll_check("init", SDBG, vInit, vT2) + flag(4, "sp", vFl1)], 2)
S1.put(P1(O("spp", 4), O("spp2", 2), 5), [poll_issue(vPs)], 1)
S1.put(P1(5, 3, 1), [poll_check("st", SWS, vPoll, vPs)], 2)
S1.spread(stats_ld, P1(5, 3, 2), P1(5, 3, 6), 1, one)
S1.spread(stats_fin + stats_k(0) + stats_k(1), P1(7, 0, 0), P1(7, 2, 0), 2)
S1.spread(cs_convert(vCS1, vCSw1, CS1, 8), P1(7, 2, 0), P1(7, 2, 6), 2)
S1.spread(stats_b(0) + stats_b(1), P1(7, 3, 0), P1(7, 3, 4), 2)
S1.spread(p2_reads(0), P1(7, 3, 2), P1(7, 3, 4), 0)
S1.put(P1(7, 3, 5), p2_reads(1), 0)
if O("w2t", 144) >= 2: S1.put(O("w2t", 144), [w2touch], 1)
S1.spread(p2_dma(2), P1(7, 3, 2), P2(5, 0), 1, one)

def scale_pack(acc, sc, dst, pk=False):
    o = []
    if pk:
        sel = "op_sel:[0,1] op_sel_hi:[1,1]" if sc & 1 else "op_sel_hi:[1,0]"
        for j in range(0, 16, 2): o.append(I(f"v_pk_mul_f32 {vr(acc+j,2)}, {vr(acc+j,2)}, {vr(sc&~1,2)} {sel}"))
    else:
        for j in range(16): o.append(I(f"v_mul_f32 v{acc+j}, v{acc+j}, v{sc}"))
    for j in range(8): o.append(I(f"v_cvt_pk_bf16_f32 v{dst+j}, v{acc+2*j}, v{acc+2*j+1}"))
    return o
def gelu(g, u, K):
    if O("x_nogelu", 0): return [I("s_nop 0")] * 4
    A, B, R = K + 1, K + 2, K + 3
    o = []
    for b in range(4):
        js = range(4 * b, 4 * b + 4)
        T = lambda j: vG + (j & 3) + 4 * (b & 1)
        o += [I(f"v_mul_f32 v{T(j)}, v{g+j}, v{g+j}") for j in js]
        o += [I(f"v_fma_f32 v{T(j)}, v{T(j)}, v{B}, v{A}") for j in js]
        o += [I(f"v_mul_f32 v{T(j)}, v{g+j}, v{T(j)}") for j in js]
        for j in js: o += [I(f"v_exp_f32 v{T(j)}, v{T(j)}"), I(f"v_mul_f32 v{g+j}, v{g+j}, v{u+j}")]
        o += [I(f"v_fma_f32 v{T(j)}, v{T(j)}, v{R}, v{R}") for j in js]
        o += [I(f"v_rcp_f32 v{T(j)}, v{T(j)}") for j in js]
        o += [I(f"v_mul_f32 v{g+j}, v{g+j}, v{T(j)}") for j in js]
        o += [I(f"v_cvt_pk_bf16_f32 v{u+2*b+k}, v{g+4*b+2*k}, v{g+4*b+2*k+1}") for k in range(2)]
    return o
def gelu_pk(g, u, K):
    o = []
    for b in range(2):
        js = range(8 * b, 8 * b + 8, 2)
        T = lambda j: vG + (j & 7)
        o += [I(f"v_pk_mul_f32 {vr(T(j),2)}, {vr(g+j,2)}, {vr(g+j,2)}") for j in js]
        o += [I(f"v_pk_fma_f32 {vr(T(j),2)}, {vr(T(j),2)}, {vr(K+2,2)}, {vr(K,2)} op_sel:[0,0,1] op_sel_hi:[1,0,1]") for j in js]
        o += [I(f"v_pk_mul_f32 {vr(T(j),2)}, {vr(g+j,2)}, {vr(T(j),2)}") for j in js]
        for j in js: o += [I(f"v_exp_f32 v{T(j)}, v{T(j)}"), I(f"v_exp_f32 v{T(j)+1}, v{T(j)+1}"), I(f"v_pk_mul_f32 {vr(g+j,2)}, {vr(g+j,2)}, {vr(u+j,2)}")]
        o += [I(f"v_pk_fma_f32 {vr(T(j),2)}, {vr(T(j),2)}, {vr(K+2,2)}, {vr(K+2,2)} op_sel:[0,1,1] op_sel_hi:[1,1,1]") for j in js]
        for j in js: o += [I(f"v_rcp_f32 v{T(j)}, v{T(j)}"), I(f"v_rcp_f32 v{T(j)+1}, v{T(j)+1}")]
        o += [I(f"v_pk_mul_f32 {vr(g+j,2)}, {vr(g+j,2)}, {vr(T(j),2)}") for j in js]
        o += [I(f"v_cvt_pk_bf16_f32 v{u+(j>>1)}, v{g+j}, v{g+j+1}") for j in js]
    return o
S1.put(P1(7, 3, 2), [I(f"ds_read_b64 {vr(vCSA[t],2)}, v{vCSr} offset:{CS1+C1STR*t}") for t in range(3)], 0)
for k in range(30):
    o = 1 if (k & 7) == 6 else 0
    S1.spread(p2_reads(k + 2), P2(k, o), P2(k, o + (2 if (k & 7) in (5, 6) else 3)), 0)

fq = []
sOwn = [f"s{sPK}", f"s{sTd}"]; sOwnH = [f"s{sPH}", f"s{sTc}"]
fq += L(f"s_xor_b32 s{sTd}, s{sPK}, 4096\ns_sub_u32 s{sTc}, {HSTR}, s{sPH}")
for o in range(2):
    a = A1(0, o)
    fq += scale_pack(a, vK[o], a)
    fq += [store4(a, vKVst, sOwn[o], 0, "kv"), store4(a + 4, vKVst, sOwn[o], 1024, "kv")]
g = [gelu(A1(1, o), A1(2, o), vK[o]) + [store4(A1(2, o), vHst, sOwnH[o], 0, "h"), store4(A1(2, o) + 4, vHst, sOwnH[o], 1024, "h")] for o in range(2)]
KVF = O("kvflag", 100); KVP = O("kvpoll", 90)
tbl = [[I(f"buffer_load_dwordx4 {vr(vBF+4*i,4)}, v{vL16}, {srd(STB)}, {'0' if i < 4 else 's%d' % sX} offen offset:{1024*(i&3)}")] for i in range(8)]
tbl[0] = L(f"s_movk_i32 s{sX}, 4096") + tbl[0]
strip = [I(f"ds_write_b128 v{vL16}, {ar(aSTV,4)} offset:{STRIP+1024*i}") for i in range(2)]
unp = [I(f"v_accvgpr_read_b32 v{vBF+j}, a{aMSK+j}") for j in range(32)] if O("tblm", 1) else []
fq += g[0][:KVF] + [flag(0, "kv", vFl2)] + g[0][KVF:] + strip + unp
fq += g[1][:KVP] + poll_issue(vPa) + g[1][KVP:]
FQ_END = O("fqend", 28)
S1.spread(glue(fq), PC + 3, P2(FQ_END, 0), 2)
if not O("tblm", 1): S1.spread(tbl, P2(O("tbl", 9), 0), P2(O("tbl", 9) + 5, 0), 1, one)

def w2_dma(j):
    sl = j % 12
    m0 = (sl // 3) * 24576 + (sl % 3) * 2048
    nd = ["r%d" % (j - 12)]
    post = []
    if j < 22:
        base = sWE + (j >> 1) if j < 16 else sLW[(j - 16) >> 1]
        so, sr = ("s_nop 0", base) if j & 1 == 0 else (f"s_add_u32 s{sD}, s{base}, 16384", sD)
        vo, S = vDo, SD
    else:
        so, sr, vo, S = "s_nop 0", sWB, vEo, SO
        post = L(f"s_add_u32 s{sWB}, s{sWB}, 16384\ns_and_b32 s{sWB}, s{sWB}, 0x1ffff")
    return [L(f"s_add_u32 m0, s{sM0D}, {m0}\n{so}") + [dma(vo, S, f"s{sr}", 0, "w%d" % j, need=nd)],
            [dma(vo + 1, S, f"s{sr}", 1024, "w%d" % j, need=nd)] + post]
KCHK = O("kvchk", 28)
for p in range(3):
    if not O("x_now2", 0): S1.spread((p2_dma(3) if p == 0 else []) + w2_dma(3 * p) + w2_dma(3 * p + 1) + w2_dma(3 * p + 2), P2(8 * p + 6, 1), P2(8 * p + 14, 1) if p < 2 else P2(KCHK, 0), 1, one)
kvdma = []
for k in range(3):
    kvdma.append(L(f"s_add_u32 m0, s{sM0K}, {4096*k}\ns_nop 0") + [dma(vKVo, SWS, f"s{sKV[k]}", 0, "kvl", "sc1")])
    kvdma += [[dma(vKVo, SWS, f"s{sKV[k]}", 1024 * i, "kvl", "sc1")] for i in range(1, 4)]
if not O("x_nokv", 0):
    if not O("x_nochk", 0): S1.put(P2(KCHK, 0), [poll_check("kv", SWS, vPoll, vPa)], 1)
    S1.spread(kvdma, P2(KCHK, 1), NP2, 1, one)
S1.spread(cs_convert(vCS2, vCSw2, CS2, 16), P2(29, 0), P2(30, 0), 2)
S1.put(P2(30, 1), [I(f"ds_read_b128 {vr(vCSA[q],4)}, v{vL16} offset:{CS2+CSTR*q}") for q in range(3)], 0)
if OPT["stamps"] == 10:
    for g in range(O("l0", 2), min(O("l0", 2) + 30, 32)):
        k = nstamp[0]; nstamp[0] += 1
        S1.put(6 * g + 4, [I(f"{TIMER} s[88:89]")], 2)
        S1.put(6 * g + 6, [I(f"v_writelane_b32 v231, s88, {k}")], 2)
if OPT["stamps"] == 11:
    for kk in range(1, 31):
        k = nstamp[0]; nstamp[0] += 1
        S1.put(P2(kk, 0), [I(f"{TIMER} s[88:89]")], 0)
        S1.put(P2(kk + 1, 0) - 1, [I(f"v_writelane_b32 v231, s88, {k}")], 2)
if OPT["stamps"] == 9:
    for q in range(28):
        p = OPT["za"] + q * OPT["zs"]
        if p < len(S1.main): S1.pre[p] = stampq((9,)) + S1.pre[p]
E(S1.emit())
stamp((1, 4, 12))
for t in (1, 2, 0):
    acc = vr(ACC2 + 16 * t, 16)
    E(f"{MF} {acc}, {vr(vCSA[t],4)}, {vr(vBx[0],4)}, {acc}")
E(flag(1, "h", vFl2))
E(f"buffer_load_dwordx4 {vr(vXres,4)}, v{vOut}, {srd(SX)}, 0 offen")
E(f"buffer_load_dwordx4 {vr(vXres+4,4)}, v{vOut+1}, {srd(SX)}, 0 offen")
post = w2_dma(9) + w2_dma(10) + w2_dma(11)
gl = gelu_pk(ACC2 + 16, ACC2 + 32, vK[0])
for q in range(6):
    E(gl[len(gl) * q // 6:len(gl) * (q + 1) // 6] + post[q])
E([store4(ACC2 + 32, vHst, f"s{sH2}", 0, "h2"), store4(ACC2 + 36, vHst, f"s{sH2}", 1024, "h2")])
E(scale_pack(ACC2, vQS, vQ, pk=True))
stamp((4, 6, 12))
E(I("s_waitcnt lgkmcnt(0)"))
E(I("s_barrier", need=["kvl"]))
stamp((1, 4, 6, 12))

units = [(i, e) for i in range(9) for e in range(2)]
def kread(u):
    i, e = units[u]
    return [I(f"ds_read_b128 {ar(aK+4*(u&1),4)}, v{vKa} offset:{i*4096+e*1024}")]
def vread(u):
    i, e = units[u]
    o = [I(f"ds_read_b64_tr_b16 {ar(aV+8*(u&1)+4*s+2*n,2)}, v{vVa} offset:{e*1024+s*512+n*256}") for s in range(2) for n in range(2)]
    if e == 1: o.append(I(f"v_add_u32 v{vVa}, v{vVa}, v{vVinc}"))
    return o
def qk(u):
    i, e = units[u]
    c = vr(vBF, 16) if i == 0 else (vr(vBD, 16) if i == 8 else "0")
    return I(f"{MF} {vr(vS[u&1],16)}, {ar(aK+4*(u&1),4)}, {vr(vQ+4*e,4)}, {c}", xr=ar(aV + 8 * (u & 1), 8) if u >= 2 else None)
def pv(u, s):
    i, e = units[u]
    o = vr(vO[e], 16)
    return I(f"{MF} {o}, {ar(aV+8*(u&1)+4*s,4)}, {vr(vP[u&1]+4*s,4)}, {'0' if (i == 0 and s == 0) else o}")
def hload(j, tt):
    post = []
    if j < 16:
        soff = sA
        if tt == 1 and j & 1 == 1: post = L(f"s_add_u32 s{sA}, s{sA}, 2048\ns_and_b32 s{sA}, s{sA}, 0x3fff")
    else: soff = sLH[(j - 16) >> 1]
    o = " offset:1024" if j & 1 else ""
    return [I(f"buffer_load_dwordx4 {ar(aH+8*j+4*tt,4)}, v{vAo+tt}, {srd(SWS)}, s{soff} offen{o} sc1")] + post
NW2V = O("w2v", 10)
W2V = [152, 156, 192, 196, 200, 204, 4, 8, 12, 16, 20, 24, 36, 40, 44, 48, 240, 244, 248, 252]
def w2_reads(j):
    sl = j % 12
    base = (sl // 3) * 24576 + (sl % 3) * 2048
    o = []
    for ct in range(2):
        for n in range(2):
            off = base + n * 1024 + ct * 256
            reg = vW3r if off < 49152 else vW3r + 1
            off = off if off < 49152 else off - 49152
            dst = vr(W2V[2*j+ct]+2*n, 2) if j < NW2V else ar(aW2+8*(j&1)+4*ct+2*n, 2)
            o.append(I(f"ds_read_b64_tr_b16 {dst}, v{reg} offset:{off}", need=["w%d" % j], tag="r%d" % j))
    return o
extra = {u: [] for u in range(18)}
xds = {u: [] for u in range(18)}
WS0, WS1 = O("ws0", 0), O("ws1", 8)
for j in range(NW2V):
    u = WS0 + j * (WS1 - WS0) // max(NW2V, 1)
    xds[u] += w2_reads(j)
    extra[u + 1] += w2_dma(j + 12)
EP, EC = O("ep", 3), O("ec", 6)
LF, LP, LC = O("lf", 3), O("lp", 9), O("lc", 12)
extra[EP].append(poll_issue(vPb))
extra[LF].append(flag(2, "h2", vFl1))
extra[EC].append(poll_check("h", SWS, vPoll, vPb) + L(f"v_and_b32 v{vPb}, -5, v{vPb}\nv_add_u32 v{vPb}, 8192, v{vPb}"))
he = [hload(j, tt) for j in range(16) for tt in range(2)]
hlate = [hload(j, tt) for j in range(16, 22) for tt in range(2)]
EE = O("ee", 15)
for q in range(EE - EC):
    extra[EC + q] += he[len(he) * q // (EE - EC):len(he) * (q + 1) // (EE - EC)]
extra[LP].append(poll_issue(vPb))
extra[LC].append(poll_check("h2", SWS, vPoll, vPb) + L(f"v_add_u32 v{vPb}, 8192, v{vPb}"))
LS = max(LC, EE)
NL = O("nl", 12)
for q in range(18 - LS):
    extra[LS + q] += hlate[NL * q // (18 - LS):NL * (q + 1) // (18 - LS)]
hl_late = hlate[NL:]

E(kread(0) + kread(1) + vread(0))
E(qk(0))
for u in range(18):
    S, P = vS[u & 1], vP[u & 1]
    ex = [I(f"v_exp_f32 v{S+j}, v{S+j}") for j in range(16)]
    cv = [I(f"v_cvt_pk_bf16_f32 v{P+j}, v{S+2*j}, v{S+2*j+1}") for j in range(8)]
    seq = []
    xs = list(extra[u])
    X = lambda q: flat(xs[len(xs) * q // 3:len(xs) * (q + 1) // 3])
    vr_ = vread(u + 1) if u + 1 < 18 else []
    if u + 1 < 18: seq.append(qk(u + 1))
    if u + 2 < 18: seq += kread(u + 2)
    seq += xds[u] + X(0) + ex[0:6]
    if u > 0: seq.append(pv(u - 1, 0))
    seq += vr_[0:2] + X(1) + ex[6:11] + cv[0:3]
    if u > 0: seq.append(pv(u - 1, 1))
    seq += vr_[2:4] + X(2) + vr_[4:] + ex[11:16] + cv[3:8]
    if u % 2 == 0: seq = stampq((6,)) + seq
    if OPT["stamps"] == 12:
        if u > 0: seq.insert(2, I(f"v_writelane_b32 v231, s88, {nstamp[0]}")); nstamp[0] += 1
        seq.insert(3 if u > 0 else 1, I(f"{TIMER} s[88:89]"))
    E(seq)
def norm(e):
    o = vO[e]
    t = [f"v_rcp_f32 v{vT0+1}, v{o+8}", "s_nop 0"]
    if e == 0: t += [f"v_mul_f32 v{o+j}, v{o+j}, v{vT0+1}" for j in range(8)]
    else: t += [f"v_pk_mul_f32 {vr(o+j,2)}, {vr(o+j,2)}, {vr(vT0+1,2)} op_sel_hi:[1,0]" for j in range(0, 8, 2)]
    t += [f"v_cvt_pk_bf16_f32 v{o+12+j}, v{o+2*j}, v{o+2*j+1}" for j in range(4)]
    if SENT: t += [f"v_min_u32 v{o+12}, -2, v{o+12}"]
    return t
E([pv(17, 0), pv(17, 1)])
if OPT["stamps"] == 12: E(f"v_writelane_b32 v231, s88, {nstamp[0]}"); nstamp[0] += 1
E("\n".join(norm(0)))
E(store4(vO[0] + 12, vOst, "0", 0, "o"))
BLO, BHI = fx(2.0 ** -40), fx(2.0 ** 40)
E(f"""
s_mov_b32 s{sT}, {BLO}
s_mov_b32 s{sTb}, {BHI}
v_min_f32 v{vT0}, v{vO[0]+8}, v{vO[1]+8}
v_max_f32 v{vT1}, v{vO[0]+8}, v{vO[1]+8}
v_cmp_nle_f32 vcc, s{sT}, v{vT0}
v_cmp_nge_f32 s[4:5], s{sTb}, v{vT1}
v_cmp_u_f32 s[6:7], v{vO[0]+8}, v{vO[1]+8}
s_or_b64 vcc, vcc, s[4:5]
s_or_b64 vcc, vcc, s[6:7]
s_cbranch_vccnz L_truemax
""")
prog[-1].post = "\nL_att_done:"
E("\n".join(norm(1)))
E(store4(vO[1] + 12, vOst, "0", 1024, "o"))
stamp((6, 12))
E("s_barrier")
stamp((1, 5, 6, 12))

sa, sb_, sc_, sd_, se_, sf_ = sT, sTb, sTc, sTd, sX, sQ
tm = [f"""
L_truemax:
    s_waitcnt vmcnt(0) lgkmcnt(0)
    s_nop 15
    s_sub_i32 s{sa}, 8, s{sTB}
    s_max_i32 s{sa}, s{sa}, 0
    s_mov_b32 s{sb_}, 0
L_tm_head:
    s_cmp_eq_u32 s{sb_}, 0
    s_cselect_b64 vcc, -1, 0
    s_nop 4
"""]
tm += [f"    v_cndmask_b32 v{vP[1]+j}, v{vQ+4+j}, v{vQ+j}, vcc\n" for j in range(4)]
tm.append(f"""
    v_mov_b32 v{vT0}, 0xff000000
    s_mov_b32 s{sd_}, 0
L_tm_pass:
    s_mov_b32 s{sc_}, s{sa}
""")
tm += [f"    v_mov_b32 v{vS[1]+j}, 0\n" for j in range(16)]
tm.append(f"""
L_tm_blk:
    s_lshl_b32 s{se_}, s{sc_}, 12
    s_lshl_b32 s{sf_}, s{sb_}, 10
    s_add_u32 s{se_}, s{se_}, s{sf_}
    v_add_u32 v{vT1}, s{se_}, v{vKa}
    ds_read_b128 {ar(aK,4)}, v{vT1}
    s_sub_u32 s{se_}, 9, s{sc_}
    v_mul_lo_u32 v{vT2}, s{se_}, v{vVinc}
    v_sub_u32 v{vT2}, v{vVa}, v{vT2}
    v_add_u32 v{vT2}, s{sf_}, v{vT2}
    ds_read_b64_tr_b16 {ar(aV,2)}, v{vT2}
    ds_read_b64_tr_b16 {ar(aV+2,2)}, v{vT2} offset:256
    ds_read_b64_tr_b16 {ar(aV+4,2)}, v{vT2} offset:512
    ds_read_b64_tr_b16 {ar(aV+6,2)}, v{vT2} offset:768
    s_waitcnt lgkmcnt(0)
    s_cmp_eq_u32 s{sc_}, 0
    s_cbranch_scc1 L_tm_far
    s_cmp_eq_u32 s{sc_}, 8
    s_cbranch_scc1 L_tm_diag
    {MF} {vr(vS[0],16)}, {ar(aK,4)}, {vr(vP[1],4)}, 0
    s_branch L_tm_s
L_tm_far:
    {MF} {vr(vS[0],16)}, {ar(aK,4)}, {vr(vP[1],4)}, {vr(vBF,16)}
    s_branch L_tm_s
L_tm_diag:
    {MF} {vr(vS[0],16)}, {ar(aK,4)}, {vr(vP[1],4)}, {vr(vBD,16)}
L_tm_s:
    s_nop 15
    s_cmp_eq_u32 s{sd_}, 0
    s_cbranch_scc0 L_tm_exp
""")
tm += [f"    v_max_f32 v{vT0}, v{vT0}, v{vS[0]+j}\n" for j in range(16)]
tm.append("    s_branch L_tm_next\nL_tm_exp:\n")
tm += [f"    v_sub_f32 v{vS[0]+j}, v{vS[0]+j}, v{vT0}\n" for j in range(16)]
tm += [f"    v_exp_f32 v{vS[0]+j}, v{vS[0]+j}\n" for j in range(16)]
tm.append("    s_nop 1\n")
tm += [f"    v_cvt_pk_bf16_f32 v{vP[0]+j}, v{vS[0]+2*j}, v{vS[0]+2*j+1}\n" for j in range(8)]
tm.append(f"""
    s_nop 1
    {MF} {vr(vS[1],16)}, {ar(aV,4)}, {vr(vP[0],4)}, {vr(vS[1],16)}
    {MF} {vr(vS[1],16)}, {ar(aV+4,4)}, {vr(vP[0]+4,4)}, {vr(vS[1],16)}
    s_nop 15
L_tm_next:
    s_add_u32 s{sc_}, s{sc_}, 1
    s_cmp_lt_u32 s{sc_}, 9
    s_cbranch_scc1 L_tm_blk
    s_cmp_eq_u32 s{sd_}, 0
    s_cbranch_scc0 L_tm_fin
    v_mov_b32 v{vT1}, v{vT0}
    s_nop 1
    v_permlane32_swap_b32 v{vT0}, v{vT1}
    s_nop 1
    v_max_f32 v{vT0}, v{vT0}, v{vT1}
    s_mov_b32 s{sd_}, 1
    s_branch L_tm_pass
L_tm_fin:
    s_cmp_eq_u32 s{sb_}, 0
    s_cbranch_scc0 L_tm_h1
""")
tm += [f"    v_mov_b32 v{vO[0]+j}, v{vS[1]+j}\n" for j in range(16)]
tm.append(f"    s_mov_b32 s{sb_}, 1\n    s_branch L_tm_head\nL_tm_h1:\n")
tm += [f"    v_mov_b32 v{vO[1]+j}, v{vS[1]+j}\n" for j in range(16)]
tm += ["    " + x + "\n" for x in norm(0)]
tm.append(f"    s_nop 1\n    buffer_store_dwordx4 {vr(vO[0]+12,4)}, v{vOst}, {srd(SWS)}, 0 offen sc1\n    s_waitcnt vmcnt(0)\n    s_branch L_att_done\n")
rare.append("".join(tm))

def oload(j2, tt):
    post = L(f"s_add_u32 s{sWS}, s{sWS}, 1024\ns_and_b32 s{sWS}, s{sWS}, 0x1fff") if tt == 1 else []
    return [I(f"buffer_load_dwordx4 {vr(vOF+8*j2+4*tt,4)}, v{vOo+tt}, {srd(SWS)}, s{sWS} offen sc1")] + post
OF, OP, OC = O("oflag", 6), O("opoll", 12), O("ochk", 17)
if NW2V == 0: E(w2_reads(0))
S3 = Sched()
order = [(j, ct, tt) for j in range(28) for ct in range(2) for tt in range(2)]
order += [(j, ct, tt) for tt in range(2) for j in (28, 29) for ct in range(2)]
for n, (j, ct, tt) in enumerate(order):
    acc = ar(aACC + 32 * ct + 16 * tt, 16)
    bb = ar(aH + 8 * j + 4 * tt, 4) if j < 22 else vr(vOF + 8 * (j - 22) + 4 * tt, 4)
    xr = ar(aW2 + 8 * (j & 1), 8) if (ct == 0 and tt == 0 and j >= NW2V) else None
    aa = vr(W2V[2 * j + ct], 4) if j < NW2V else ar(aW2 + 8 * (j & 1) + 4 * ct, 4)
    S3.pos(I(f"{MF} {acc}, {aa}, {bb}, {'0' if j == 0 else acc}", xr=xr), 6, stampq((5,)) if (n % 8 == 0) else [])
for j in range(30):
    if NW2V <= j + 1 < 29: S3.spread(w2_reads(j + 1), 4 * j, 4 * j + 2, 0)
    if j >= NW2V and j + 12 < 30:
        g = w2_dma(j + 12); S3.put(4 * j + 1, [g[0]], 1); S3.put(4 * j + 3, [g[1]], 1)
S3.put(4 * 28, w2_reads(29), 0)
if hl_late: S3.spread(hl_late, 0, 16, 1, one)
ol = [oload(j2, tt) for j2 in range(8) for tt in range(2)]
if not SENT:
    S3.put(4 * OF, [flag(3, "o", vFl1)], 1)
    S3.put(4 * OP, [poll_issue(vPb)], 1)
    S3.put(4 * OC, [poll_check("o", SWS, vPoll, vPb)], 1)
    S3.spread(ol, 4 * OC + 1, 4 * O("oend", 23), 1, one)
else:
    OS, OE, OK_ = O("os", 8), O("oe", 14), O("ok", 21)
    S3.spread(ol, 4 * OS, 4 * OE, 1, one)
    chk = [f"v_max3_u32 v{vT0}, v{vOF}, v{vOF+4}, v{vOF+8}"] + [f"v_max3_u32 v{vT0}, v{vT0}, v{vOF+4*i}, v{vOF+4*i+4}" for i in range(3, 15, 2)] + [f"v_max_u32 v{vT0}, v{vT0}, v{vOF+60}", f"v_cmp_eq_u32 vcc, -1, v{vT0}"]
    br = L("s_cbranch_vccnz L_spin_o"); br[-1].post = "\nL_ok_o:"
    S3.spread(L("\n".join(chk[:-1])), 4 * OK_, 4 * OK_ + 3, 2)
    S3.put(4 * OK_ + 3, [L(chk[-1]) + br], 2)
    rare.append(f"""
L_spin_o:
    s_mov_b32 s{sSPIN}, {OPT['spin']}
L_spin2_o:
""" + "".join("    " + x.text + "\n" for g in ol for x in g) + "    s_waitcnt vmcnt(0) lgkmcnt(0)\n" + "".join("    " + x + "\n" for x in chk) + f"""    s_nop 4
    s_cbranch_vccz L_ok_o
    s_sleep 1
    s_sub_u32 s{sSPIN}, s{sSPIN}, 1
    s_cmp_lg_u32 s{sSPIN}, 0
    s_cbranch_scc1 L_spin2_o
    s_endpgm
""")
S3.spread(L("\n".join(f"v_xor_b32 v{vU+i}, {32*i}, v{vRw}" for i in range(4)) + f"\nv_xor_b32 v{vU+4}, 16, v{vRr}"), 4, 8, 2)
def pwrite(ct, tt): return [I(f"ds_write_b128 v{vU+i}, {ar(aACC+32*ct+16*tt+4*i,4)} offset:{tt*8192+ct*128}") for i in range(4)]
S3.put(118, pwrite(0, 0), 0)
S3.put(119, pwrite(1, 0), 0)
if OPT["stamps"] == 13:
    for jj in range(29):
        k = nstamp[0]; nstamp[0] += 1
        S3.put(4 * jj + 2, [I(f"{TIMER} s[88:89]")], 0)
        S3.put(4 * jj + 4, [I(f"v_writelane_b32 v231, s88, {k}")], 2)
E(S3.emit())
stamp((1, 5))
E(pwrite(0, 1) + pwrite(1, 1))
R0 = 128
assert vXres + 8 <= 40
for rho in range(2):
    for j in range(4):
        E(f"v_lshlrev_b32 v{R0+64+8*rho+2*j}, 16, v{vXres+4*rho+j}\nv_and_b32 v{R0+65+8*rho+2*j}, 0xffff0000, v{vXres+4*rho+j}")
E("s_waitcnt lgkmcnt(0)\ns_barrier")
for rho in range(2):
    for p in range(4):
        for n in range(2):
            E(f"ds_read_b128 {vr(R0+32*rho+8*p+4*n,4)}, v{vRr if n == 0 else vU+4} offset:{p*16384+rho*2048}")
for rho in range(2):
    b = R0 + 32 * rho; x = R0 + 64 + 8 * rho
    for p in range(4):
        for j in range(0, 8, 2): E(f"v_pk_add_f32 {vr(x+j,2)}, {vr(x+j,2)}, {vr(b+8*p+j,2)}")
    for j in range(4): E(f"v_cvt_pk_bf16_f32 v{b+j}, v{x+2*j}, v{x+2*j+1}")
    E(f"buffer_store_dwordx4 {vr(b,4)}, v{vOut+rho}, {srd(SOUT)}, 0 offen " + ["", "sc1", "nt", "sc0 sc1", "sc1 nt"][O("ofl", 1)])
if OPT["stamps"]:
    stamp()
    E(f"s_waitcnt vmcnt(0)")
    stamp((1, 2, 3, 4, 5, 6, 7, 9, 10, 11, 12, 13))
    E(f"s_lshl_b32 s{sT}, s2, 2\ns_add_u32 s{sT}, s{sT}, s{sW}\ns_lshl_b32 s{sT}, s{sT}, 7\ns_add_u32 s{sT}, s{sT}, {ST0}\nv_lshlrev_b32 v{vT0}, 2, v{vL}\nv_lshrrev_b32 v{vT1}, 5, v{vL}\nv_lshl_add_u32 v{vT0}, v{vT1}, 28, v{vT0}")
    E(f"buffer_store_dword v231, v{vT0}, {srd(SWS)}, s{sT} offen")
if O("xf", 0):
    E("s_waitcnt vmcnt(0)"); stamp()
    if OPT["xf"] == 99: E("s_mov_b32 s90, s88")
    E(("s_sub_u32 s90, s90, s92\ns_lshr_b32 s90, s90, 3" if O("xfc", 0) else "s_sub_u32 s90, s90, s88\ns_lshl_b32 s90, s90, 2") + "\ns_add_u32 s90, s90, 4000\nL_es:\ns_memrealtime s[4:5]\ns_waitcnt lgkmcnt(0)\ns_sub_u32 s4, s4, s88\ns_cmp_lt_u32 s4, s90\ns_cbranch_scc1 L_es")
E("L_end:\ns_endpgm")

lines = finalize(prog, verbose=True)
hdr = f"""; Fused LayerNorm + QKV/gate/up GEMM + sliding-window attention + GEGLU + down/out projection.
; @launch grid=(256,1,1) block=(256,1,1) lds={LDSSZ}
.amdgcn_target "amdgcn-amd-amdhsa--gfx950"
.text
.globl {KNAME}
.p2align 8
.type {KNAME},@function
{KNAME}:
"""
tail = f"""
L_table_end:
    s_endpgm
.section .rodata,"a"
.p2align 6
.amdhsa_kernel {KNAME}
  .amdhsa_next_free_vgpr 512
  .amdhsa_next_free_sgpr 102
  .amdhsa_accum_offset 256
  .amdhsa_group_segment_fixed_size 0
  .amdhsa_kernarg_size 80
  .amdhsa_user_sgpr_count 2
  .amdhsa_user_sgpr_kernarg_segment_ptr 1
  .amdhsa_system_sgpr_workgroup_id_x 1
.end_amdhsa_kernel
"""
open(sys.argv[1], "w").write(hdr + "\n".join(lines) + "\n" + "".join(rare) + tail)
```

```python
import sys, math, struct
from asmlib import I, Ins, finalize, weave, Sched

KNAME = "parallel_sum__sliding_block__glu_gated_geglu__prompt_kernel"
OPT = dict(stamps=0, spin=200000)
for a in sys.argv[2:]:
    k, v = a.split("="); OPT[k] = int(v)
def O(k, d): return OPT.get(k, d)

HUGE = 0x40000000
H0 = 4 << 20
HSTR = 88 * 1024
O0 = 10 << 20
FL0 = 12 << 20
ST0 = FL0 + (64 << 10)
SP0 = FL0 + (256 << 10)
WSSZ = 13 << 20
WB = 65536
CS1 = 0; C1STR = 520
STRIP = 49152
CS2 = 53248; CSTR = 1040
LDSSZ = 163840

STC = 4
STB = 18 + 2
sKV = [8, 9, 10]; sRHO, sWB, sWS, sAL, sWL, sMSK, sGp = 11, 12, 13, 14, 15, 16, 17
SX, SQ, SG, SU, SD, SO, SOUT, SWS, SDBG = 24, 28, 32, 36, 40, 44, 48, 52, 56
sW, sRB, sCB, sTB2, sNB, sT0, sT2, sH2, sTB = 3, 60, 61, 62, 63, 64, 65, 66, 67
sX, sQ, sG, sM0X, sM0W = 68, 69, 70, 71, 72
sT, sTb, sTc, sTd = 73, 74, 75, 76
sPK, sPH, sM0D, sD, sSPIN = 77, 78, 80, 81, 82
sPHI, sPH2, sC, sHUGE, sA = 83, 84, 85, 86, 87
sM0K = 79; sSP, sSG = 0, 1
STREG = list(range(90, 94)) + list(range(18, 24))
sWE = 94
sLH = [64, 65, 16]; sLW = [17, 14, 15]
def srd(n): return "s[%d:%d]" % (n, n + 3)
def vr(a, n): return "v[%d:%d]" % (a, a + n - 1)
def ar(a, n): return "a[%d:%d]" % (a, a + n - 1)

vL = 0; vT0, vT1, vT2 = 1, 2, 3
vXo = 4; vQo = 8; vGo = 10; vXr = 12; vXp = 16; vWr = 20
vK = [4, 8]
vBx = [12, 16]; vG = 20
vQo2 = 28; vGo2 = 30; vW2r = 32
vSum = 40; vCS1 = 44; vCS2 = 48
vL16, vKVst, vHst, vFl2, vCSw1, vCSw2, vPoll, vInit, vCSr, vSPo, vDo = 52, 53, 54, 55, 56, 57, 58, 59, 60, 61, 62
ACC1 = 64; ACC2 = 160
vXT = 160; vSL = 176
vKa, vVa, vVinc, vOst, vKVo, vPa, vPb, vW3r = 208, 209, 210, 211, 212, 213, 214, 215
vOut, vEo, vAo, vOo, vFl1, vRw, vRr, vPs, vQS = 217, 219, 221, 223, 225, 226, 227, 228, 229
vU = 232; vCSA = [240, 244, 248]
vXres = 28
vBF = 64; vBD = 80; vS = [96, 112]; vP = [128, 136]; vQ = 144; vO = [160, 176]
vOF = 64
aSTV = 200; aMSK = 216
aX = 0; aSEL = 128; aXP = 140; aWF = 152
aH = 0; aW2 = 176; aACC = 192; aK = 192; aV = 200

prog = []; rare = []
def L(txt, **kw): return [I(ln.strip(), **kw) for ln in txt.strip().split("\n") if ln.strip() and not ln.strip().startswith(";")]
def E(x, **kw):
    if isinstance(x, str): prog.extend(L(x, **kw))
    elif isinstance(x, Ins): prog.append(x)
    else: prog.extend(x)
def flat(g): return [x for y in g for x in y]
one = lambda g: 1
nstamp = [0]; xfc = [0]
TIMER = "s_memrealtime" if O("rt", 0) else "s_memtime"
def stampq(sets=(1,)):
    if O("xf", 0):
        if 1 in sets:
            xfc[0] += 1
            if xfc[0] == OPT["xf"]: return L("s_waitcnt lgkmcnt(0)\n%s s[90:91]\ns_waitcnt lgkmcnt(0)" % ("s_memtime" if O("xfc", 0) else "s_memrealtime"))
        return []
    if OPT["stamps"] in sets:
        k = nstamp[0]; nstamp[0] += 1
        return L("s_waitcnt lgkmcnt(0)\n%s s[88:89]\ns_waitcnt lgkmcnt(0)\nv_writelane_b32 v231, s88, %d" % (TIMER, k))
    return []
def stamp(sets=(1,)): E(stampq(sets))
def fx(f): return "0x%08x" % struct.unpack("<I", struct.pack("<f", f))[0]
MF = "v_mfma_f32_32x32x16_bf16"; MS = "v_mfma_f32_16x16x32_bf16"
HOME = dict(Ka=vKa, Va=vVa, Vinc=vVinc, Ost=vOst, KVo=vKVo, Pa=vPa, Pb=vPb, W3r=vW3r, W3s=vW3r+1, Out=vOut, Out1=vOut+1, Eo=vEo, Eo1=vEo+1, Ao=vAo, Ao1=vAo+1, Oo=vOo, Oo1=vOo+1, Fl1=vFl1, Rw=vRw, Rr=vRr)
def park(name, src): return f"v_mov_b32 v{HOME[name]}, {src}\n"
def dma(voff, S, soff, imm, tag, flags="", need=None):
    o = (" offset:%d" % imm) if imm else ""
    return I(f"buffer_load_dwordx4 v{voff}, {srd(S)}, {soff} offen{o} {flags} lds", tag=tag, need=need)
def glue(q):
    out = []; cur = []
    for n, x in enumerate(q):
        if isinstance(x, list):
            assert not cur
            out.append(x); continue
        cur.append(x)
        nxt = q[n + 1] if n + 1 < len(q) else None
        if x.op.startswith("s_cmp") or (nxt is not None and not isinstance(nxt, list) and nxt.op.startswith("s_cselect")): continue
        out.append(cur); cur = []
    if cur: out.append(cur)
    return out

E("""
s_cmp_ge_u32 s2, 256
s_cbranch_scc1 L_end
s_load_dwordx4 s[4:7], s[0:1], 0
s_load_dwordx2 s[8:9], s[0:1], 16
s_load_dwordx4 s[12:15], s[0:1], 32
s_load_dwordx4 s[16:19], s[0:1], 48
s_load_dwordx4 s[20:23], s[0:1], 64
""")
if OPT["stamps"]: E(TIMER + " s[88:89]")
if O("xf", 0): E("s_memrealtime s[88:89]\ns_memtime s[92:93]")
def ctouch(vtid):
    return L(f"""s_getpc_b64 s[40:41]
s_mov_b32 s42, L_table_end-.
s_mov_b32 s43, 0x20000
s_lshr_b32 s44, s2, 3
s_lshl_b32 s44, s44, 11
v_and_b32 v{vU}, 15, v{vtid}
v_lshrrev_b32 v{vU+1}, 4, v{vtid}
v_lshlrev_b32 v{vU}, 7, v{vU}
v_lshl_add_u32 v{vU}, v{vU+1}, 24, v{vU}
buffer_load_dword v255, v{vU}, s[40:43], s44 offen""")
if O("ctouch", 1) == 1: E(ctouch(0))
else: E(f"v_mov_b32 v{vU+2}, v0")
E(f"""
v_lshrrev_b32 v{vT0}, 6, v0
v_and_b32 v{vL}, 63, v0
v_readfirstlane_b32 s{sW}, v{vT0}
s_and_b32 s{sT}, s2, 7
s_lshr_b32 s{sTb}, s2, 3
s_lshr_b32 s{sTc}, s{sT}, 2
s_lshl_b32 s{sRB}, s{sTc}, 3
s_and_b32 s{sTd}, s{sTb}, 7
s_add_u32 s{sRB}, s{sRB}, s{sTd}
s_and_b32 s{sCB}, s{sT}, 3
s_lshl_b32 s{sCB}, s{sCB}, 2
s_lshr_b32 s{sTd}, s{sTb}, 3
s_add_u32 s{sCB}, s{sCB}, s{sTd}
s_lshl_b32 s{sTB2}, s{sT}, 2
s_and_b32 s{sTd}, s{sTb}, 3
s_add_u32 s{sTB2}, s{sTB2}, s{sTd}
s_lshr_b32 s{sNB}, s{sTb}, 2
""")
if O("phi", 2) == 1: E(f"s_lshl_b32 s{sPHI}, s{sCB}, 1\ns_add_u32 s{sPHI}, s{sPHI}, s{sRB}\ns_and_b32 s{sPHI}, s{sPHI}, 7")
elif O("phi", 2) == 2: E(f"s_add_u32 s{sPHI}, s{sCB}, s{sRB}\ns_and_b32 s{sPHI}, s{sPHI}, 3\ns_lshl_b32 s{sPHI}, s{sPHI}, 1")
elif O("phi", 2) == 3: E(f"s_add_u32 s{sPHI}, s{sCB}, s{sRB}\ns_and_b32 s{sPHI}, s{sPHI}, 1\ns_lshl_b32 s{sPHI}, s{sPHI}, 2")
else: E(f"s_mov_b32 s{sPHI}, 0")
E(f"""
s_lshl_b32 s{sTB}, s{sRB}, 2
s_add_u32 s{sTB}, s{sTB}, s{sW}
s_mul_i32 s{sT0}, s{sCB}, 3
s_lshl_b32 s{sT}, s{sCB}, 1
s_add_u32 s{sT}, s{sT}, 11
s_cmp_lt_u32 s{sCB}, 11
s_cselect_b32 s{sT0}, s{sT0}, s{sT}
s_lshl_b32 s{sM0X}, s{sW}, 12
s_lshl_b32 s{sM0W}, s{sW}, 11
s_add_u32 s{sM0W}, s{sM0W}, {WB}
s_lshl_b32 s{sT}, s{sTB}, 15
v_lshrrev_b32 v{vT0}, 3, v{vL}
v_lshlrev_b32 v{vT0}, 10, v{vT0}
v_add_u32 v{vT0}, s{sT}, v{vT0}
v_and_b32 v{vT1}, 7, v{vL}
v_lshrrev_b32 v{vT2}, 4, v{vL}
v_xor_b32 v{vT1}, v{vT1}, v{vT2}
v_lshl_add_u32 v{vXo}, v{vT1}, 4, v{vT0}
v_xor_b32 v{vT1}, 4, v{vT1}
v_lshl_add_u32 v{vXo+1}, v{vT1}, 4, v{vT0}
v_add_u32 v{vXo+1}, {7*1024}, v{vXo+1}
v_add_u32 v{vXo+2}, {14*1024}, v{vXo}
v_add_u32 v{vXo+3}, {14*1024}, v{vXo+1}
v_lshrrev_b32 v{vT0}, 5, v{vL}
v_bfe_u32 v{vT1}, v{vL}, 2, 2
v_lshl_add_u32 v{vT0}, v{vT0}, 2, v{vT1}
v_bfe_u32 v{vT1}, v{vL}, 4, 1
v_and_b32 v{vT2}, 3, v{vL}
v_lshlrev_b32 v{vT2}, 4, v{vT2}
v_lshl_add_u32 v{vT1}, v{vT1}, 6, v{vT2}
v_lshl_add_u32 v{vDo}, v{vT0}, 10, v{vT1}
s_lshl_b32 s{sT}, s{sW}, 4
v_add_u32 v{vT0}, s{sT}, v{vT0}
s_and_b32 s{sT}, s{sCB}, 1
s_add_u32 s{sT}, s{sT}, 1
s_lshl_b32 s{sT}, s{sT}, 10
s_lshr_b32 s{sTb}, s{sCB}, 1
s_lshl_b32 s{sTb}, s{sTb}, 7
s_add_u32 s{sT}, s{sT}, s{sTb}
v_mul_u32_u24 v{vQo}, 3072, v{vT0}
v_add3_u32 v{vQo}, v{vQo}, v{vT1}, s{sT}
v_add_u32 v{vQo+1}, {8*3072-1024}, v{vQo}
s_lshl_b32 s{sT}, s{sT0}, 6
v_mul_u32_u24 v{vGo}, 2752, v{vT0}
v_add3_u32 v{vGo}, v{vGo}, v{vT1}, s{sT}
v_add_u32 v{vGo+1}, {8*2752-1024}, v{vGo}
""")
def mksrd(n, p, size): return f"s_mov_b32 s{n}, s{p}\ns_mov_b32 s{n+1}, s{p+1}\ns_mov_b32 s{n+2}, {size}\ns_mov_b32 s{n+3}, 0x20000\n"
E(mksrd(SX, 4, 2097152) + mksrd(SQ, 6, 1572864) + mksrd(SG, 12, 1409024) + mksrd(SU, 14, 1409024))
if OPT["stamps"]:
    E("v_mov_b32 v231, -1\nv_writelane_b32 v231, s88, 0"); nstamp[0] = 1

def p1_dma(c):
    sl = c & 3; t = "c%d" % c
    g = []
    g.append(L(f"s_add_u32 s{sC}, s{sPHI}, {c}\ns_and_b32 s{sC}, s{sC}, 7\ns_add_u32 m0, s{sM0X}, {sl*16384}\ns_lshl_b32 s{sX}, s{sC}, 7") + [dma(vXo, SX, f"s{sX}", 0, t)])
    g += [[dma(vXo + i, SX, f"s{sX}", 1024 * i, t)] for i in range(1, 4)]
    g.append(L(f"s_add_u32 m0, s{sM0W}, {sl*24576}\ns_mul_i32 s{sQ}, s{sC}, 196608") + [dma(vQo, SQ, f"s{sQ}", 0, t)])
    g.append([dma(vQo + 1, SQ, f"s{sQ}", 1024, t), I(f"s_add_u32 m0, s{sM0W}, {sl*24576+8192}")])
    g.append(L(f"s_mul_i32 s{sG}, s{sC}, 176128") + [dma(vGo, SG, f"s{sG}", 0, t)])
    g.append([dma(vGo + 1, SG, f"s{sG}", 1024, t), I(f"s_add_u32 m0, s{sM0W}, {sl*24576+16384}")])
    g.append([dma(vGo, SU, f"s{sG}", 0, t)])
    g.append([dma(vGo + 1, SU, f"s{sG}", 1024, t)])
    return g
def p2_dma(p):
    t = "p%d" % p
    g = []
    g.append(L(f"s_add_u32 s{sC}, s{sPH2}, {2*p}\ns_and_b32 s{sC}, s{sC}, 7\ns_add_u32 m0, s{sM0W}, {p*24576}\ns_mul_i32 s{sQ}, s{sC}, 196608") + [dma(vQo2, SQ, f"s{sQ}", 0, t)])
    g.append([dma(vQo2 + 1, SQ, f"s{sQ}", 1024, t), I(f"s_add_u32 m0, s{sM0W}, {p*24576+8192}")])
    g.append(L(f"s_mul_i32 s{sG}, s{sC}, 176128") + [dma(vGo2, SG, f"s{sG}", 0, t)])
    g.append([dma(vGo2 + 1, SG, f"s{sG}", 1024, t), I(f"s_add_u32 m0, s{sM0W}, {p*24576+16384}")])
    g.append([dma(vGo2, SU, f"s{sG}", 0, t)])
    g.append([dma(vGo2 + 1, SU, f"s{sG}", 1024, t)])
    return g

E(mksrd(SWS, 22, WSSZ) + mksrd(SDBG, 20, 256) + f"""
s_mov_b32 s{sHUGE}, {HUGE}
v_lshlrev_b32 v{vL16}, 4, v{vL}
s_mul_i32 s{sT}, s{sW}, 10240
s_add_u32 s{sT}, s{sT}, {FL0}
s_cmp_lg_u32 s2, 0
s_cselect_b32 s{sT}, s{sHUGE}, s{sT}
s_cbranch_scc1 L_nozero
s_add_u32 s{sTb}, s{sT}, 4096
s_add_u32 s{sTc}, s{sT}, 8192
v_mov_b32 v{vXT}, 0
v_mov_b32 v{vXT+1}, 0
v_mov_b32 v{vXT+2}, 0
v_mov_b32 v{vXT+3}, 0
""")
for i in range(10):
    E(I(f"buffer_store_dwordx4 {vr(vXT,4)}, v{vL16}, {srd(SWS)}, s{[sT, sTb, sTc][i>>2]} offen offset:{1024*(i&3)} sc1", tag="zero"))
prog[-1].post = "\nL_nozero:"
stamp((2,))
if O("tlb", 0):
    E(f"""s_cmp_eq_u32 s{sW}, 1
s_cselect_b32 s44, s{SQ}, s{SX}
s_cselect_b32 s45, s{SQ+1}, s{SX+1}
s_cmp_eq_u32 s{sW}, 2
s_cselect_b32 s44, s{SG}, s44
s_cselect_b32 s45, s{SG+1}, s45
s_cmp_eq_u32 s{sW}, 3
s_cselect_b32 s44, s{SU}, s44
s_cselect_b32 s45, s{SU+1}, s45
s_mov_b32 s46, 1409024
s_mov_b32 s47, 0x20000
v_lshlrev_b32 v{vT0}, {O("tlbs", 24)}, v{vL}
buffer_load_dword v{vXT+7}, v{vT0}, s[44:47], 0 offen""")
g0 = p1_dma(0)
CT = O("ctouch", 1)
NI = O("ni", 7)
E(flat(g0[:NI])); g0 = g0[NI:]
if CT == 2: E(ctouch(vU + 2))
stamp((2,))
init_mark = len(prog)
E(mksrd(SD, 16, 1409024) + mksrd(SO, 8, 524288) + mksrd(SOUT, 18, 2097152))
ann = L(f"""
s_cmp_lg_u32 s2, 0
s_cselect_b32 s{sT}, s{sHUGE}, 0
s_lshl_b32 s{sTb}, s{sW}, 2
s_add_u32 s{sT}, s{sT}, s{sTb}
v_mov_b32 v{vT0}, 1
v_lshlrev_b32 v{vT1}, 8, v{vL}
""") + [I(f"buffer_store_dword v{vT0}, v{vT1}, {srd(SDBG)}, s{sT} offen sc1", need=["zero"])]
E(f"""
s_lshr_b32 s{sPH2}, s{sW}, 1
s_add_u32 s{sPH2}, s{sPH2}, s{sPHI}
s_cmp_lt_u32 s{sCB}, 11
s_cselect_b32 s{sT}, 2, 1
s_cselect_b32 s{sMSK}, 0, s{sHUGE}
s_add_u32 s{sT2}, s{sT0}, s{sT}
""")
if O("w2m", 0) == 0:
    w2touch = L(f"""s_mul_i32 s{sT}, s2, 3
s_add_u32 s{sT}, s{sT}, s{sW}
s_mov_b32 s{STC+3}, 0x20000
s_cmp_eq_u32 s{sW}, 3
s_cselect_b32 s{sT}, s2, s{sT}
s_cselect_b32 s{STC}, s{SO}, s{SD}
s_cselect_b32 s{STC+1}, s{SO+1}, s{SD+1}
s_cselect_b32 s{STC+2}, s{SO+2}, s{SD+2}
s_lshl_b32 s{sT}, s{sT}, 11
v_and_b32 v{vT0}, 15, v{vL}
v_lshlrev_b32 v{vT0}, 7, v{vT0}
v_lshrrev_b32 v{vT1}, 4, v{vL}
v_lshl_add_u32 v{vT0}, v{vT1}, 28, v{vT0}
buffer_load_dword v{vPoll}, v{vT0}, {srd(STC)}, s{sT} offen sc1""")
else:
    w2touch = L(f"""s_lshl_b32 s{sT}, s2, 1
s_and_b32 s{sTb}, s{sW}, 1
s_add_u32 s{sT}, s{sT}, s{sTb}
s_lshr_b32 s{sTb}, s{sT}, 5
s_mul_i32 s{sTb}, s{sTb}, 98304
s_add_u32 s{sTb}, s{sTb}, 65536
s_and_b32 s{STC}, s{sT}, 31
s_lshl_b32 s{STC}, s{STC}, 10
s_add_u32 s{sTb}, s{sTb}, s{STC}
s_lshl_b32 s{sT}, s{sT}, 10
s_mov_b32 s{STC+3}, 0x20000
s_cmp_lt_u32 s{sW}, 2
s_cselect_b32 s{sT}, s{sT}, s{sTb}
s_cselect_b32 s{STC}, s{SO}, s{SD}
s_cselect_b32 s{STC+1}, s{SO+1}, s{SD+1}
s_cselect_b32 s{STC+2}, s{SO+2}, s{SD+2}
v_and_b32 v{vT0}, 7, v{vL}
v_lshlrev_b32 v{vT0}, 7, v{vT0}
v_lshrrev_b32 v{vT1}, 3, v{vL}
v_lshl_add_u32 v{vT0}, v{vT1}, 27, v{vT0}
buffer_load_dword v{vPoll}, v{vT0}, {srd(STC)}, s{sT} offen sc1""")
E(f"""
v_and_b32 v{vT0}, 31, v{vL}
v_lshrrev_b32 v{vT1}, 5, v{vL}
v_bfe_u32 v{vT2}, v{vL}, 1, 3
v_xor_b32 v{vT2}, v{vT2}, v{vT1}
v_lshlrev_b32 v{vT0}, 7, v{vT0}
v_lshl_add_u32 v{vT0}, v{vT2}, 4, v{vT0}
v_add_u32 v{vT0}, s{sM0X}, v{vT0}
""")
for s in range(4):
    E(f"s_xor_b32 s{sT}, s{sW}, {s}\ns_lshl_b32 s{sT}, s{sT}, 5\nv_xor_b32 v{vXr+s}, s{sT}, v{vT0}\nv_xor_b32 v{vXp+s}, 4096, v{vXr+s}")
E(f"""
v_bfe_u32 v{vT2}, v{vL}, 2, 2
v_lshlrev_b32 v{vT2}, 6, v{vT2}
v_bfe_u32 v{vT0}, v{vL}, 4, 1
v_lshl_add_u32 v{vT2}, v{vT0}, 5, v{vT2}
v_and_b32 v{vT0}, 3, v{vL}
v_lshl_add_u32 v{vT2}, v{vT0}, 3, v{vT2}
v_lshl_add_u32 v{vT0}, v{vT1}, 10, v{vT2}
v_lshl_add_u32 v{vT2}, v{vT1}, 9, v{vT2}
s_and_b32 s{sTc}, s{sW}, 1
s_lshl_b32 s{sTc}, s{sTc}, 8
s_add_u32 s{sTc}, s{sTc}, {WB}
s_mul_i32 s{sT}, s{sW}, 6144
s_add_u32 s{sM0D}, s{sT}, {WB}
v_add_u32 v{vT1}, s{sM0D}, v{vT2}
{park("W3r", f"v{vT1}")}v_add_u32 v{vT1}, 49152, v{vT1}
{park("W3s", f"v{vT1}")}
""")
for s in range(4):
    E(f"""
s_xor_b32 s{sT}, s{sW}, {s}
s_lshl_b32 s{sTb}, s{sT}, 11
s_add_u32 s{sTb}, s{sTb}, s{sTc}
v_add_u32 v{vWr+2*s}, s{sTb}, v{vT0}
v_add_u32 v{vWr+2*s+1}, 49152, v{vWr+2*s}
s_lshl_b32 s{sTb}, s{sT}, 10
s_add_u32 s{sTb}, s{sTb}, {WB}
v_add_u32 v{vW2r+2*s}, s{sTb}, v{vT2}
v_add_u32 v{vW2r+2*s+1}, 49152, v{vW2r+2*s}
""")
E(f"""
v_lshrrev_b32 v{vT0}, 2, v{vL}
s_and_b32 s{sT}, s{sW}, 1
s_lshl_b32 s{sT}, s{sT}, 5
v_add_u32 v{vT0}, s{sT}, v{vT0}
v_and_b32 v{vT1}, 3, v{vL}
v_lshlrev_b32 v{vT1}, 4, v{vT1}
s_lshl_b32 s{sT}, s{sCB}, 6
v_mul_u32_u24 v{vQo2}, 3072, v{vT0}
v_add3_u32 v{vQo2}, v{vQo2}, v{vT1}, s{sT}
v_add_u32 v{vQo2+1}, {16*3072-1024}, v{vQo2}
s_lshl_b32 s{sT}, s{sT2}, 6
v_mul_u32_u24 v{vGo2}, 2752, v{vT0}
v_add3_u32 v{vGo2}, v{vGo2}, v{vT1}, s{sT}
v_add_u32 v{vGo2}, s{sMSK}, v{vGo2}
v_add_u32 v{vGo2+1}, {16*2752-1024}, v{vGo2}
v_and_b32 v{vT0}, 15, v{vL}
v_bfe_u32 v{vT1}, v{vL}, 4, 1
v_sub_u32 v{vT0}, v{vT0}, v{vT1}
v_mov_b32 v{vT1}, 0x3f803f80
""")
for t in range(3):
    E(f"v_cmp_eq_u32 vcc, {2*t}, v{vT0}\nv_cndmask_b32 v{vT2}, 0, v{vT1}, vcc")
    E("\n".join(f"v_accvgpr_write_b32 a{aSEL+4*t+j}, v{vT2}" for j in range(4)))
E(f"""
s_lshl_b32 s{sT}, s{sRB}, 2
s_sub_i32 s{sT}, 8, s{sT}
v_and_b32 v{vT0}, 7, v{vL}
v_lshlrev_b32 v{vT0}, 1, v{vT0}
v_mov_b32 v{vT1}, 0x3f80
v_cmp_le_i32 vcc, s{sT}, v{vT0}
v_cndmask_b32 v{vT2}, 0, v{vT1}, vcc
v_accvgpr_write_b32 a{aSTV}, v{vT2}
v_accvgpr_write_b32 a{aSTV+1}, 0
v_add_u32 v{vT0}, 1, v{vT0}
v_cmp_le_i32 vcc, s{sT}, v{vT0}
v_cndmask_b32 v{vT2}, 0, v{vT1}, vcc
v_cmp_ne_u32 vcc, 15, v{vT0}
v_cndmask_b32 v{vT2}, 0, v{vT2}, vcc
v_accvgpr_write_b32 a{aSTV+2}, v{vT2}
v_accvgpr_write_b32 a{aSTV+3}, 0
v_lshlrev_b32 v{vT0}, 3, v{vL}
s_and_b32 s{sTc}, s{sW}, 1
s_lshr_b32 s{sT}, s{sTB}, 1
s_lshl_b32 s{sTb}, s{sT}, 13
s_add_u32 s{sTb}, s{sTb}, {SP0}
s_lshl_b32 s{sTd}, s{sTc}, 8
v_xor_b32 v{vT1}, s{sTd}, v{vT0}
v_add_u32 v{vSPo}, s{sTb}, v{vT1}
s_lshl_b32 s{sSP}, s{sCB}, 9
s_and_b32 s{sSG}, s{sCB}, 12
s_lshl_b32 s{sSG}, s{sSG}, 9
s_lshl_b32 s{sT}, s{sT}, 8
s_and_b32 s{sTb}, s{sCB}, 12
s_lshl_b32 s{sTb}, s{sTb}, 3
s_add_u32 s{sT}, s{sT}, s{sTb}
s_add_u32 s{sT}, s{sT}, {FL0+4*8192}
v_bfe_u32 v{vT1}, v{vL}, 2, 1
v_and_b32 v{vT2}, 3, v{vL}
v_lshlrev_b32 v{vT2}, 3, v{vT2}
v_lshl_add_u32 v{vT1}, v{vT1}, 7, v{vT2}
v_add_u32 v{vPs}, s{sT}, v{vT1}
s_and_b32 s{sTc}, s{sW}, 1
s_mul_i32 s{sT}, s{sTc}, {8*C1STR}
v_add_u32 v{vCSr}, s{sT}, v{vT0}
s_lshr_b32 s{sTb}, s{sW}, 1
s_lshl_b32 s{sTd}, s{sTb}, 8
s_add_u32 s{sT}, s{sT}, s{sTd}
v_bfe_u32 v{vT0}, v{vL}, 1, 3
v_and_b32 v{vT1}, 1, v{vL}
v_lshrrev_b32 v{vT2}, 4, v{vL}
v_lshl_add_u32 v{vT1}, v{vT1}, 2, v{vT2}
v_mul_u32_u24 v{vT2}, {C1STR}, v{vT0}
v_lshl_add_u32 v{vT2}, v{vT1}, 5, v{vT2}
v_add_u32 v{vCSw1}, s{sT}, v{vT2}
s_lshl_b32 s{sT}, s{sTb}, 9
s_lshl_b32 s{sTd}, s{sTc}, 3
s_add_u32 s{sT}, s{sT}, s{sTd}
v_mul_u32_u24 v{vT2}, {CSTR}, v{vT0}
v_lshl_add_u32 v{vT2}, v{vT1}, 6, v{vT2}
v_add_u32 v{vCSw2}, s{sT}, v{vT2}
v_and_b32 v{vT0}, 31, v{vL}
v_lshrrev_b32 v{vT1}, 5, v{vL}
v_lshl_add_u32 v{vT0}, v{vT0}, 1, v{vT1}
v_lshlrev_b32 v{vT0}, 4, v{vT0}
v_add_u32 v{vT0}, 2048, v{vT0}
s_and_b32 s{sT}, s{sCB}, 1
s_cmp_eq_u32 s{sT}, 1
s_cselect_b64 vcc, -1, 0
v_cndmask_b32 v{vKVst}, v{vL16}, v{vT0}, vcc
s_and_b32 s{sT}, s{sCB}, 14
s_add_u32 s{sT}, s{sT}, s{sTc}
s_lshl_b32 s{sT}, s{sT}, 18
s_and_b32 s{sTb}, s{sTB}, -2
s_lshl_b32 s{sTd}, s{sTb}, 12
s_add_u32 s{sT}, s{sT}, s{sTd}
v_add_u32 v{vKVst}, s{sT}, v{vKVst}
s_lshl_b32 s{sPK}, s{sTc}, 12
s_mul_i32 s{sT}, s{sTb}, {HSTR}
s_add_u32 s{sT}, s{sT}, {H0}
s_lshl_b32 s{sTd}, s{sCB}, 12
s_add_u32 s{sT}, s{sT}, s{sTd}
s_lshl_b32 s{sTd}, s{sTc}, 11
s_add_u32 s{sT}, s{sT}, s{sTd}
v_add_u32 v{vHst}, s{sT}, v{vL16}
s_mul_i32 s{sPH}, s{sTc}, {HSTR}
s_lshl_b32 s{sT}, s{sCB}, 11
s_lshl_b32 s{sTd}, s{sTc}, 11
s_add_u32 s{sT}, s{sT}, s{sTd}
s_sub_u32 s{sT}, 65536, s{sT}
s_add_u32 s{sT}, s{sT}, s{sPH}
s_cmp_lt_u32 s{sCB}, 12
s_cselect_b32 s{sH2}, s{sT}, s{sHUGE}
s_lshl_b32 s{sT}, s{sTb}, 7
s_lshl_b32 s{sTd}, s{sCB}, 3
s_add_u32 s{sTd}, s{sTd}, {FL0}
s_add_u32 s{sT}, s{sT}, s{sTd}
s_lshl_b32 s{sTb}, s{sTc}, 2
s_add_u32 s{sT}, s{sT}, s{sTb}
v_lshlrev_b32 v{vT0}, 7, v{vL}
v_add_u32 v{vT0}, s{sT}, v{vT0}
v_mov_b32 v{vT1}, s{sHUGE}
v_cmp_gt_u32 vcc, 2, v{vL}
v_cndmask_b32 v{vFl2}, v{vT1}, v{vT0}, vcc
s_lshl_b32 s{sT}, s{sTB}, 7
s_add_u32 s{sT}, s{sT}, s{sTd}
v_mov_b32 v{vT0}, s{sT}
v_cmp_eq_u32 vcc, 0, v{vL}
v_cndmask_b32 v{vT0}, v{vT1}, v{vT0}, vcc
{park("Fl1", f"v{vT0}")}
v_mov_b32 v{vSum}, 0
v_mov_b32 v{vSum+1}, 0
v_mov_b32 v{vSum+2}, 0
v_mov_b32 v{vSum+3}, 0
v_mov_b32 v{vCSA[0]+2}, 0
v_mov_b32 v{vCSA[0]+3}, 0
v_mov_b32 v{vCSA[1]+2}, 0
v_mov_b32 v{vCSA[1]+3}, 0
v_mov_b32 v{vCSA[2]+2}, 0
v_mov_b32 v{vCSA[2]+3}, 0
s_lshl_b32 s{sT}, s{sNB}, 7
v_add_u32 v{vDo}, s{sT}, v{vDo}
v_add_u32 v{vDo+1}, {7*1024}, v{vDo}
s_lshl_b32 s{sT}, s{sW}, 17
v_add_u32 v{vT0}, s{sT}, v{vDo}
{park("Eo", f"v{vT0}")}v_add_u32 v{vT0}, {7*1024}, v{vT0}
{park("Eo1", f"v{vT0}")}
s_mul_i32 s{sT}, s{sTB2}, {2*HSTR}
s_lshl_b32 s{sTb}, s{sW}, 14
s_add_u32 s{sT}, s{sT}, s{sTb}
s_add_u32 s{sT}, s{sT}, {H0}
v_add_u32 v{vT0}, s{sT}, v{vL16}
{park("Ao", f"v{vT0}")}v_add_u32 v{vT0}, {HSTR}, v{vT0}
{park("Ao1", f"v{vT0}")}
s_lshl_b32 s{sT}, s{sTB2}, 16
s_lshl_b32 s{sTb}, s{sW}, 13
s_add_u32 s{sT}, s{sT}, s{sTb}
s_add_u32 s{sT}, s{sT}, {O0}
v_add_u32 v{vT0}, s{sT}, v{vL16}
{park("Oo", f"v{vT0}")}v_add_u32 v{vT0}, 32768, v{vT0}
{park("Oo1", f"v{vT0}")}
s_lshl_b32 s{sRHO}, s{sTB2}, 1
s_add_u32 s{sRHO}, s{sRHO}, s{sNB}
s_and_b32 s{sRHO}, s{sRHO}, {7 if O("rot", 1) else 0}
s_mul_i32 s{sWB}, s{sW}, {12*32768}
s_mov_b32 s{sWS}, 98304
s_cmp_eq_u32 s{sW}, 3
s_cselect_b32 s{sWB}, {35*32768}, s{sWB}
s_cselect_b32 s{sWS}, 65536, s{sWS}
""")
for q in range(8):
    E(f"""s_add_u32 s{sT}, s{sRHO}, {q}
s_bfe_u32 s{sTb}, s{sT}, 0x20001
s_mul_i32 s{sTb}, s{sTb}, s{sWS}
s_and_b32 s{sT}, s{sT}, 1
s_lshl_b32 s{sT}, s{sT}, 15
s_add_u32 s{sT}, s{sT}, s{sTb}
s_add_u32 s{sWE+q}, s{sT}, s{sWB}""")
E(f"""s_add_u32 s{sT}, s{sTB2}, s{sNB}
s_mul_i32 s{sTb}, s{sT}, 43
s_lshr_b32 s{sTb}, s{sTb}, 7
s_mul_i32 s{sTb}, s{sTb}, 3
s_sub_u32 s{sT}, s{sT}, s{sTb}
s_and_b32 s{sT}, s{sT}, {3 if O("rot", 1) else 0}
s_mul_i32 s{sTc}, s{sW}, 10240
s_sub_u32 s{sTc}, 65536, s{sTc}
s_mul_i32 s{sTd}, s{sW}, {9*32768}
s_add_u32 s{sTd}, s{sTd}, 65536""")
for q in range(3):
    E(f"""s_lshl_b32 s{sTb}, s{sT}, 11
s_add_u32 s{sLH[q]}, s{sTb}, s{sTc}
s_mul_i32 s{sTb}, s{sT}, 98304
s_add_u32 s{sLW[q]}, s{sTb}, s{sTd}
s_add_u32 s{sT}, s{sT}, 1
s_cmp_eq_u32 s{sT}, 3
s_cselect_b32 s{sT}, 0, s{sT}""")
E(f"""
s_lshl_b32 s{sA}, s{sRHO}, 11
s_lshl_b32 s{sWB}, s{sRHO}, 14
s_lshl_b32 s{sWS}, s{sRHO}, 10
v_lshrrev_b32 v{vT0}, 3, v{vL}
v_and_b32 v{vT1}, 7, v{vL}
s_lshl_b32 s{sT}, s{sTB2}, 6
s_lshl_b32 s{sTb}, s{sW}, 3
s_add_u32 s{sT}, s{sT}, s{sTb}
s_lshl_b32 s{sT}, s{sT}, 10
s_lshl_b32 s{sTb}, s{sNB}, 7
s_add_u32 s{sT}, s{sT}, s{sTb}
v_lshlrev_b32 v{vT2}, 10, v{vT0}
v_lshl_add_u32 v{vT2}, v{vT1}, 4, v{vT2}
v_add_u32 v{vT2}, s{sT}, v{vT2}
{park("Out", f"v{vT2}")}v_add_u32 v{vT2}, 32768, v{vT2}
{park("Out1", f"v{vT2}")}v_lshlrev_b32 v{vT1}, 1, v{vT1}
v_xor_b32 v{vT1}, v{vT1}, v{vT0}
v_lshlrev_b32 v{vT0}, 8, v{vT0}
v_lshl_add_u32 v{vT0}, v{vT1}, 4, v{vT0}
s_lshl_b32 s{sT}, s{sW}, 11
v_add_u32 v{vT0}, s{sT}, v{vT0}
{park("Rr", f"v{vT0}")}v_and_b32 v{vT0}, 31, v{vL}
v_lshrrev_b32 v{vT1}, 5, v{vL}
v_and_b32 v{vT2}, 7, v{vL}
v_xor_b32 v{vT1}, v{vT1}, v{vT2}
v_lshlrev_b32 v{vT0}, 8, v{vT0}
v_lshl_add_u32 v{vT0}, v{vT1}, 4, v{vT0}
s_lshl_b32 s{sT}, s{sW}, 14
v_add_u32 v{vT0}, s{sT}, v{vT0}
{park("Rw", f"v{vT0}")}
v_add_u32 v{vT0}, s{sM0X}, v{vL16}
{park("Ka", f"v{vT0}")}v_lshrrev_b32 v{vT1}, 5, v{vL}
v_bfe_u32 v{vT2}, v{vL}, 2, 2
v_lshl_add_u32 v{vT2}, v{vT1}, 2, v{vT2}
v_lshlrev_b32 v{vT2}, 5, v{vT2}
v_and_b32 v{vT0}, 1, v{vL}
v_lshl_add_u32 v{vT2}, v{vT0}, 4, v{vT2}
v_bfe_u32 v{vT0}, v{vL}, 1, 1
v_lshl_add_u32 v{vT2}, v{vT0}, 3, v{vT2}
s_add_u32 s{sT}, s{sM0X}, 2048
v_add_u32 v{vT2}, s{sT}, v{vT2}
v_xor_b32 v{vT1}, 1, v{vT1}
v_lshlrev_b32 v{vT1}, 7, v{vT1}
s_lshl_b32 s{sT}, s{sW}, 3
s_add_u32 s{sT}, s{sT}, {STRIP}
v_add_u32 v{vU}, {STRIP+120}, v{vT1}
v_add_u32 v{vT1}, s{sT}, v{vT1}
v_and_b32 v{vT0}, 2, v{vL}
v_cmp_eq_u32 vcc, 0, v{vT0}
v_cndmask_b32 v{vT1}, v{vU}, v{vT1}, vcc
v_cndmask_b32 v{vU}, 0, 8, vcc
v_and_b32 v{vT0}, 16, v{vL}
v_cmp_eq_u32 vcc, 0, v{vT0}
v_cndmask_b32 v{vT0}, v{vT1}, v{vT2}, vcc
{park("Va", f"v{vT0}")}v_mov_b32 v{vT2}, 4096
v_cndmask_b32 v{vT0}, v{vU}, v{vT2}, vcc
{park("Vinc", f"v{vT0}")}
s_lshl_b32 s{sT}, s{sTB}, 15
s_lshl_b32 s{sTb}, s{sCB}, 11
s_add_u32 s{sT}, s{sT}, s{sTb}
s_add_u32 s{sT}, s{sT}, {O0}
v_add_u32 v{vT0}, s{sT}, v{vL16}
{park("Ost", f"v{vT0}")}
s_lshl_b32 s{sT}, s{sCB}, 18
v_add_u32 v{vT0}, s{sT}, v{vL16}
{park("KVo", f"v{vT0}")}
s_mul_i32 s{sM0K}, s{sW}, 12288
""")
SENT = O("sent", 1)
sent_st = [I(f"buffer_store_dwordx4 {vr(vXT,4)}, v{vOst}, {srd(SWS)}, 0 offen offset:{1024*e} sc1", tag="sent") for e in range(2)] if SENT else []
for k in range(3):
    E(f"""
s_mul_i32 s{sT}, s{sW}, 3
s_lshl_b32 s{sTb}, s{sRB}, 2
s_add_u32 s{sT}, s{sT}, s{sTb}
s_add_i32 s{sT}, s{sT}, {k-8}
s_lshl_b32 s{sKV[k]}, s{sT}, 12
s_cmp_lt_i32 s{sT}, 0
s_cselect_b32 s{sKV[k]}, s{sHUGE}, s{sKV[k]}
""")
E(f"""
v_min_u32 v{vT1}, 5, v{vL}
v_lshrrev_b32 v{vT2}, 1, v{vT1}
s_add_i32 s{sT}, s{sT}, -2
v_add_u32 v{vT2}, s{sT}, v{vT2}
v_cmp_gt_i32 vcc, 0, v{vT2}
v_mov_b32 v{vT0}, s{sTB}
v_cndmask_b32 v{vT2}, v{vT2}, v{vT0}, vcc
v_lshlrev_b32 v{vT2}, 7, v{vT2}
v_and_b32 v{vT1}, 1, v{vT1}
v_lshl_add_u32 v{vT2}, v{vT1}, 3, v{vT2}
s_and_b32 s{sT}, s{sCB}, 14
s_lshl_b32 s{sT}, s{sT}, 3
s_and_b32 s{sTb}, s{sCB}, 1
s_lshl_b32 s{sTb}, s{sTb}, 2
s_add_u32 s{sT}, s{sT}, s{sTb}
s_add_u32 s{sT}, s{sT}, {FL0}
v_add_u32 v{vT0}, s{sT}, v{vT2}
{park("Pa", f"v{vT0}")}
s_lshl_b32 s{sT}, s{sTB2}, 8
s_add_u32 s{sT}, s{sT}, {FL0+8192}
v_lshlrev_b32 v{vT0}, 2, v{vL}
v_add_u32 v{vT0}, s{sT}, v{vT0}
{park("Pb", f"v{vT0}")}
""")
if O("tblm", 1):
    E(f"""v_and_b32 v{vT1}, 31, v{vL}
v_lshrrev_b32 v{vT2}, 5, v{vL}
v_lshlrev_b32 v{vT2}, 2, v{vT2}
v_sub_u32 v{vT1}, v{vT1}, v{vT2}""")
    for j in range(16):
        kl = 8 * (j >> 2) + (j & 3)
        E(f"""v_subrev_u32 v{vT0}, {kl}, v{vT1}
v_ashrrev_i32 v{vT0}, 31, v{vT0}
v_and_b32 v{vT0}, 0xff000000, v{vT0}
v_accvgpr_write_b32 a{aMSK+16+j}, v{vT0}
v_xor_b32 v{vT0}, 0xff000000, v{vT0}
v_accvgpr_write_b32 a{aMSK+j}, v{vT0}""")
rest = prog[init_mark:]; del prog[init_mark:]
gall = p1_dma(1) + p1_dma(2)
N0 = O("n0", 6)
E(rest)
stamp((2,))
E(flat(g0))
if O("w2t", 144) == 0: E(w2touch)
E(ann)
E(flat(gall[:N0]))
if O("w2t", 144) == 1: E(w2touch)
stamp((1, 2, 3))

def wf1(st, t): return aWF + (st * 3 + t) * 4
def wf2(k, t): return aWF + ((k % 3) * 3 + t) * 4
def p1_reads(c, s):
    sl = c & 3; st = s & 1
    o = [I(f"ds_read_b128 {ar(aX+(4*c+s)*4,4)}, v{vXr+s} offset:{sl*16384}")]
    for t in range(3):
        for n in range(2):
            o.append(I(f"ds_read_b64_tr_b16 {ar(wf1(st,t)+2*n,2)}, v{vWr+2*s+(sl>>1)} offset:{(sl&1)*24576+t*8192+n*512}"))
    o.insert(3, I(f"ds_read_b128 {ar(aXP+4*st,4)}, v{vXp+s} offset:{sl*16384}"))
    return o
def statread(g):
    c, s = g >> 2, g & 3
    return [I(f"ds_read_b128 {vr(vXT+4*s,4)}, v{vXr+s} offset:{(c&3)*16384}")]
def stats(s):
    o = []
    for j in range(4):
        x = vXT + 4 * s + j; a = vU + 2 * (j & 1)
        o += L(f"""v_lshlrev_b32 v{a}, 16, v{x}
v_and_b32 v{a+1}, 0xffff0000, v{x}
v_add_f32 v{vSum}, v{vSum}, v{a}
v_add_f32 v{vSum+1}, v{vSum+1}, v{a+1}
v_fmac_f32 v{vSum+2}, v{a}, v{a}
v_fmac_f32 v{vSum+3}, v{a+1}, v{a+1}""")
    return o
def cs_convert(vcs, vw, base, step):
    o = []
    for j in range(4):
        a = 252 if j & 1 else vU + 4
        o += L(f"""v_cvt_pk_bf16_f32 v{a}, v{vcs+j}, v{vcs+j}
v_and_b32 v{a+1}, 0xffff0000, v{a}
v_sub_f32 v{a+1}, v{vcs+j}, v{a+1}
v_cvt_pk_bf16_f32 v{a+1}, v{a+1}, v{a+1}""")
        o.append(I(f"ds_write_b64 v{vw}, {vr(a,2)} offset:{base+step*j}"))
    return o
C1 = -2.0 * 0.7978845608028654 * 1.4426950408889634
QC = 0.25 * 1.4426950408889634
stats_pub = L(f"""v_add_f32 v{vSum}, v{vSum}, v{vSum+1}
v_add_f32 v{vSum+1}, v{vSum+2}, v{vSum+3}
v_mov_b32 v{vSum+2}, v{vSum}
v_mov_b32 v{vSum+3}, v{vSum+1}
v_lshrrev_b32 v{vT0}, 5, v{vL}
v_permlane32_swap_b32 v{vSum}, v{vSum+2}
v_permlane32_swap_b32 v{vSum+1}, v{vSum+3}
v_lshl_add_u32 v{vT0}, v{vT0}, 28, v{vSPo}
v_add_f32 v{vSum}, v{vSum}, v{vSum+2}
v_add_f32 v{vSum+1}, v{vSum+1}, v{vSum+3}""") + [I(f"buffer_store_dwordx2 {vr(vSum,2)}, v{vT0}, {srd(SWS)}, s{sSP} offen sc1", tag="sp")]
stats_ld = [[I(f"buffer_load_dwordx2 {vr(vSL+2*i,2)}, v{vSPo}, {srd(SWS)}, s{sSG} offen offset:{512*i} sc1")] for i in range(4)]
b = vSL
stats_fin = L(f"""
v_add_f32 v{b}, v{b}, v{b+2}
v_add_f32 v{b+1}, v{b+1}, v{b+3}
v_add_f32 v{b+4}, v{b+4}, v{b+6}
v_add_f32 v{b+5}, v{b+5}, v{b+7}
v_add_f32 v{b}, v{b}, v{b+4}
v_add_f32 v{b+1}, v{b+1}, v{b+5}
v_mul_f32 v{vSum}, {fx(-1.0/512)}, v{b}
v_mul_f32 v{b+1}, {fx(1.0/512)}, v{b+1}
v_fma_f32 v{b+1}, -v{vSum}, v{vSum}, v{b+1}
v_max_f32 v{b+1}, 0, v{b+1}
v_add_f32 v{vSum+1}, {fx(1e-5)}, v{b+1}
v_mov_b32 v{vSum+2}, v{vSum}
v_mov_b32 v{vSum+3}, v{vSum+1}
s_nop 0
v_permlane32_swap_b32 v{vSum}, v{vSum+2}
v_permlane32_swap_b32 v{vSum+1}, v{vSum+3}
""")
def stats_k(o):
    R = vSum + 2 * o + 1; K = vK[o]; a = vU
    t = f"""
v_rsq_f32 v{K}, v{R}
v_mov_b32 v{K+3}, v{R}
v_mul_f32 v{K+1}, {fx(C1)}, v{K}
v_mul_f32 v{a}, v{K}, v{K}
v_mul_f32 v{a}, {fx(0.044715)}, v{a}
v_mul_f32 v{K+2}, v{K+1}, v{a}
"""
    if o == 0: t += f"v_mul_f32 v{vQS}, {fx(QC)}, v{K}\n"
    return L(t)
def stats_b(o):
    nm = vSum + 2 * o; B = vBx[o]; a = vU
    return L(f"""
v_cvt_pk_bf16_f32 v{a}, v{nm}, v{nm}
v_and_b32 v{a}, 0xffff0000, v{a}
v_sub_f32 v{a+1}, v{nm}, v{a}
v_cvt_pk_bf16_f32 v{B}, v{a}, v{a+1}
v_mov_b32 v{B+1}, v{B}
v_mov_b32 v{B+2}, v{B}
v_mov_b32 v{B+3}, v{B}
""")
E(I("s_barrier", need=["c0"]))
stamp((2,))
E(p1_reads(0, 0) + statread(0) + statread(1))
E(stats(0))
S1 = Sched()
P1 = lambda c, s, t: 24 * c + 6 * s + t
A1 = lambda t, o: ACC1 + 32 * t + 16 * o
for c in range(8):
    for s in range(4):
        st = s & 1; first = (c == 0 and s == 0)
        for q in range(6):
            t, o = q >> 1, q & 1
            acc = vr(A1(t, o), 16)
            xb = ar(aX + (4 * c + s) * 4, 4) if o == 0 else ar(aXP + 4 * st, 4)
            ops = [I(f"{MF} {acc}, {ar(wf1(st,t),4)}, {xb}, {'0' if first else acc}")]
            small = s < 2 and o == 1
            if small:
                cs = vr(vCS1, 4)
                ops.append(I(f"{MS} {cs}, {ar(wf1(st,t),4)}, {ar(aSEL+4*t,4)}, {'0' if (first and t == 0) else cs}"))
            pre = []
            if q == 0 and (O("fw", 0) == 0 or s == 3): pre.append(I("s_waitcnt lgkmcnt(0)"))
            if s == 3 and q == 0 and c < 7: pre.append(I("s_barrier", need=["c%d" % (c + 1)]))
            if s == 3 and q == 2 and c == 7: pre += [I("s_waitcnt lgkmcnt(0)"), I("s_barrier", need=["p0"])]
            if s == 0 and q == 0: pre += stampq((3,))
            S1.pos(ops, 8 if small else 6, pre)
NP1 = 192
CORR_K = 0
P2 = lambda k, t: NP1 + 3 * k + t + (6 if k >= CORR_K else 0)
PC = NP1 + 3 * CORR_K
for k in range(32):
    p, s = k >> 3, k & 3
    if k == CORR_K:
        for q in range(6):
            t, o = q >> 1, q & 1
            acc = vr(A1(t, o), 16)
            S1.pos(I(f"{MF} {acc}, {vr(vCSA[t],4)}, {vr(vBx[o],4)}, {acc}"), 6, stampq((1, 3)) if q == 0 else [])
    for t in range(3):
        acc = vr(ACC2 + 16 * t, 16)
        ops = [I(f"{MF} {acc}, {ar(wf2(k,t),4)}, {ar(aX+k*4,4)}, {'0' if k == 0 else acc}", xr=ar(wf2(k, 0), 12) if t == 0 else None)]
        if s == 0:
            cs = vr(vCS2, 4)
            ops.append(I(f"{MS} {cs}, {ar(wf2(k,t),4)}, {ar(aSEL+4*t,4)}, {'0' if (k == 0 and t == 0) else cs}"))
        pre = []
        if False:
            pre = []
        if (k & 7) == 6 and t == 1:
            pre = [I("s_waitcnt lgkmcnt(0)"), I("s_barrier", need=["p%d" % (p + 1)] if p < 3 else [])]
        if (k & 3) == 0 and t == 0: pre += stampq((4,))
        S1.pos(ops, 8 if s == 0 else 6, pre)
NP2 = len(S1.main)
def p2_reads(k):
    p, g, s = k >> 3, (k >> 2) & 1, k & 3
    return [I(f"ds_read_b64_tr_b16 {ar(wf2(k,t)+2*n,2)}, v{vW2r+2*s+(p>>1)} offset:{(p&1)*24576+t*8192+g*4096+n*256}") for t in range(3) for n in range(2)]
def store4(data, voff, soff, imm, tag):
    if O("x_nost", 0) and tag in ("kv", "h"): return I("s_nop 0")
    o = (" offset:%d" % imm) if imm else ""
    return I(f"buffer_store_dwordx4 {vr(data,4)}, v{voff}, {srd(SWS)}, {soff} offen{o} sc1", tag=tag)
def flag(stage, tag, va):
    if O("x_nofw", -1) == stage: tag = "none"
    return L(f"v_mov_b32 v{vT0}, 1\ns_mov_b32 s{sT}, {stage*8192}") + [I(f"buffer_store_dword v{vT0}, v{va}, {srd(SWS)}, s{sT} offen sc1", need=[tag])]
def poll_issue(va): return [I(f"buffer_load_dword v{vPoll}, v{va}, {srd(SWS)}, 0 offen sc1")]
def poll_check(name, S, reg, addr):
    rare.append(f"""
L_spin_{name}:
    s_mov_b32 s{sSPIN}, {OPT['spin']}
L_spin2_{name}:
    buffer_load_dword v{reg}, v{addr}, {srd(S)}, 0 offen sc1
    s_waitcnt vmcnt(0) lgkmcnt(0)
    v_cmp_eq_u32 vcc, 0, v{reg}
    s_nop 4
    s_cbranch_vccz L_ok_{name}
    s_sleep 1
    s_sub_u32 s{sSPIN}, s{sSPIN}, 1
    s_cmp_lg_u32 s{sSPIN}, 0
    s_cbranch_scc1 L_spin2_{name}
    s_endpgm
""")
    o = L(f"v_cmp_eq_u32 vcc, 0, v{reg}\ns_cbranch_vccnz L_spin_{name}")
    o[-1].post = f"\nL_ok_{name}:"
    return o
NST = 8
for c in range(8):
    for s in range(4):
        g = 4 * c + s
        rd = []
        if g + 1 < 32: rd += p1_reads((g + 1) >> 2, (g + 1) & 3)
        if s < 2 and g + 2 < NST: rd += statread(g + 2)
        if s == 3 and g + 1 < NST: rd = statread(g + 1) + rd + statread(g + 2)
        S1.spread(rd, P1(c, s, 0), P1(c, s, O("rdw", 4)), 0)
        if g + 1 < NST:
            if s != 3: S1.spread(stats((g + 1) & 3), P1(c, s, 0), P1(c, s, 6), 2)
            else: S1.spread(stats(0), P1(c, s, 2), P1(c, s, 6), 2)
    if c == 0: S1.spread(gall[N0:], P1(0, 0, 0), P1(0, 3, 0), 1, one)
    if c < 5: S1.spread(p1_dma(c + 3), P1(c, 3, 0), P1(c + 1, 3, 0), 1, one)
S1.spread(p2_dma(0), P1(6, O("p0a", 1), 0), P1(6, 3, 0), 1, one)
S1.spread(p2_dma(1), P1(6, 3, 0), P1(7, 3, 0), 1, one)
S1.put(P1(1, 0, 0), [L(f"v_and_b32 v{vT2}, 3, v{vL}\nv_lshlrev_b32 v{vT2}, 2, v{vT2}") + [I(f"buffer_load_dword v{vInit}, v{vT2}, {srd(SDBG)}, 0 offen")]], 1)
S1.spread(stats_pub, P1(1, 3, 0), P1(1, 3, 3), 2)
S1.put(P1(O("spf", 2), O("spf2", 3), 1), [poll_check("init", SDBG, vInit, vT2) + flag(4, "sp", vFl1)], 2)
S1.put(P1(O("spp", 4), O("spp2", 2), 5), [poll_issue(vPs)], 1)
S1.put(P1(5, 3, 1), [poll_check("st", SWS, vPoll, vPs)], 2)
S1.spread(stats_ld, P1(5, 3, 2), P1(5, 3, 6), 1, one)
S1.spread(stats_fin + stats_k(0) + stats_k(1), P1(7, 0, 0), P1(7, 2, 0), 2)
if SENT:
    S1.put(P1(4, 0, 0), L("\n".join(f"v_mov_b32 v{vXT+j}, -1" for j in range(4))), 2)
    S1.spread(sent_st, O("snp", 160), O("snp", 160) + 2, 1, one)
S1.spread(cs_convert(vCS1, vCSw1, CS1, 8), P1(7, 2, 0), P1(7, 2, 6), 2)
S1.spread(stats_b(0) + stats_b(1), P1(7, 3, 0), P1(7, 3, 4), 2)
S1.spread(p2_reads(0), P1(7, 3, 2), P1(7, 3, 4), 0)
S1.put(P1(7, 3, 5), p2_reads(1), 0)
if O("w2t", 144) >= 2: S1.put(O("w2t", 144), [w2touch], 1)
S1.spread(p2_dma(2), P1(7, 3, 2), P2(5, 0), 1, one)

def scale_pack(acc, sc, dst, pk=False):
    o = []
    if pk:
        sel = "op_sel:[0,1] op_sel_hi:[1,1]" if sc & 1 else "op_sel_hi:[1,0]"
        for j in range(0, 16, 2): o.append(I(f"v_pk_mul_f32 {vr(acc+j,2)}, {vr(acc+j,2)}, {vr(sc&~1,2)} {sel}"))
    else:
        for j in range(16): o.append(I(f"v_mul_f32 v{acc+j}, v{acc+j}, v{sc}"))
    for j in range(8): o.append(I(f"v_cvt_pk_bf16_f32 v{dst+j}, v{acc+2*j}, v{acc+2*j+1}"))
    return o
def gelu(g, u, K):
    if O("x_nogelu", 0): return [I("s_nop 0")] * 4
    A, B, R = K + 1, K + 2, K + 3
    o = []
    for b in range(4):
        js = range(4 * b, 4 * b + 4)
        T = lambda j: vG + (j & 3) + 4 * (b & 1)
        o += [I(f"v_mul_f32 v{T(j)}, v{g+j}, v{g+j}") for j in js]
        o += [I(f"v_fma_f32 v{T(j)}, v{T(j)}, v{B}, v{A}") for j in js]
        o += [I(f"v_mul_f32 v{T(j)}, v{g+j}, v{T(j)}") for j in js]
        for j in js: o += [I(f"v_exp_f32 v{T(j)}, v{T(j)}"), I(f"v_mul_f32 v{g+j}, v{g+j}, v{u+j}")]
        o += [I(f"v_fma_f32 v{T(j)}, v{T(j)}, v{R}, v{R}") for j in js]
        o += [I(f"v_rcp_f32 v{T(j)}, v{T(j)}") for j in js]
        o += [I(f"v_mul_f32 v{g+j}, v{g+j}, v{T(j)}") for j in js]
        o += [I(f"v_cvt_pk_bf16_f32 v{u+2*b+k}, v{g+4*b+2*k}, v{g+4*b+2*k+1}") for k in range(2)]
    return o
def gelu_pk(g, u, K):
    o = []
    for b in range(2):
        js = range(8 * b, 8 * b + 8, 2)
        T = lambda j: vG + (j & 7)
        o += [I(f"v_pk_mul_f32 {vr(T(j),2)}, {vr(g+j,2)}, {vr(g+j,2)}") for j in js]
        o += [I(f"v_pk_fma_f32 {vr(T(j),2)}, {vr(T(j),2)}, {vr(K+2,2)}, {vr(K,2)} op_sel:[0,0,1] op_sel_hi:[1,0,1]") for j in js]
        o += [I(f"v_pk_mul_f32 {vr(T(j),2)}, {vr(g+j,2)}, {vr(T(j),2)}") for j in js]
        for j in js: o += [I(f"v_exp_f32 v{T(j)}, v{T(j)}"), I(f"v_exp_f32 v{T(j)+1}, v{T(j)+1}"), I(f"v_pk_mul_f32 {vr(g+j,2)}, {vr(g+j,2)}, {vr(u+j,2)}")]
        o += [I(f"v_pk_fma_f32 {vr(T(j),2)}, {vr(T(j),2)}, {vr(K+2,2)}, {vr(K+2,2)} op_sel:[0,1,1] op_sel_hi:[1,1,1]") for j in js]
        for j in js: o += [I(f"v_rcp_f32 v{T(j)}, v{T(j)}"), I(f"v_rcp_f32 v{T(j)+1}, v{T(j)+1}")]
        o += [I(f"v_pk_mul_f32 {vr(g+j,2)}, {vr(g+j,2)}, {vr(T(j),2)}") for j in js]
        o += [I(f"v_cvt_pk_bf16_f32 v{u+(j>>1)}, v{g+j}, v{g+j+1}") for j in js]
    return o
S1.put(P1(7, 3, 2), [I(f"ds_read_b64 {vr(vCSA[t],2)}, v{vCSr} offset:{CS1+C1STR*t}") for t in range(3)], 0)
for k in range(30):
    o = 1 if (k & 7) == 6 else 0
    S1.spread(p2_reads(k + 2), P2(k, o), P2(k, o + (2 if (k & 7) in (5, 6) else 3)), 0)

fq = []
sOwn = [f"s{sPK}", f"s{sTd}"]; sOwnH = [f"s{sPH}", f"s{sTc}"]
fq += L(f"s_xor_b32 s{sTd}, s{sPK}, 4096\ns_sub_u32 s{sTc}, {HSTR}, s{sPH}")
for o in range(2):
    a = A1(0, o)
    fq += scale_pack(a, vK[o], a)
    fq += [store4(a, vKVst, sOwn[o], 0, "kv"), store4(a + 4, vKVst, sOwn[o], 1024, "kv")]
g = [gelu(A1(1, o), A1(2, o), vK[o]) + [store4(A1(2, o), vHst, sOwnH[o], 0, "h"), store4(A1(2, o) + 4, vHst, sOwnH[o], 1024, "h")] for o in range(2)]
KVF = O("kvflag", 100); KVP = O("kvpoll", 90)
tbl = [[I(f"buffer_load_dwordx4 {vr(vBF+4*i,4)}, v{vL16}, {srd(STB)}, {'0' if i < 4 else 's%d' % sX} offen offset:{1024*(i&3)}")] for i in range(8)]
tbl[0] = L(f"s_movk_i32 s{sX}, 4096") + tbl[0]
strip = [I(f"ds_write_b128 v{vL16}, {ar(aSTV,4)} offset:{STRIP+1024*i}") for i in range(2)]
unp = [I(f"v_accvgpr_read_b32 v{vBF+j}, a{aMSK+j}") for j in range(32)] if O("tblm", 1) else []
fq += g[0][:KVF] + [flag(0, "kv", vFl2)] + g[0][KVF:] + strip + unp
fq += g[1][:KVP] + poll_issue(vPa) + g[1][KVP:]
FQ_END = O("fqend", 28)
S1.spread(glue(fq), PC + 3, P2(FQ_END, 0), 2)
if not O("tblm", 1): S1.spread(tbl, P2(O("tbl", 9), 0), P2(O("tbl", 9) + 5, 0), 1, one)

def w2_dma(j):
    sl = j % 12
    m0 = (sl // 3) * 24576 + (sl % 3) * 2048
    nd = ["r%d" % (j - 12)]
    post = []
    if j >= 22:
        post = L(f"s_add_u32 s{sWB}, s{sWB}, 16384\ns_and_b32 s{sWB}, s{sWB}, 0x1ffff")
        return [L(f"s_add_u32 m0, s{sM0K}, {(j-22)*2048}\ns_nop 0") + [dma(vEo, SO, f"s{sWB}", 0, "w%d" % j)],
                [dma(vEo + 1, SO, f"s{sWB}", 1024, "w%d" % j)] + post]
    if j < 22:
        base = sWE + (j >> 1) if j < 16 else sLW[(j - 16) >> 1]
        so, sr = ("s_nop 0", base) if j & 1 == 0 else (f"s_add_u32 s{sD}, s{base}, 16384", sD)
        vo, S = vDo, SD
    else:
        so, sr, vo, S = "s_nop 0", sWB, vEo, SO
        post = L(f"s_add_u32 s{sWB}, s{sWB}, 16384\ns_and_b32 s{sWB}, s{sWB}, 0x1ffff")
    return [L(f"s_add_u32 m0, s{sM0D}, {m0}\n{so}") + [dma(vo, S, f"s{sr}", 0, "w%d" % j, need=nd)],
            [dma(vo + 1, S, f"s{sr}", 1024, "w%d" % j, need=nd)] + post]
KCHK = O("kvchk", 28)
for p in range(3):
    if not O("x_now2", 0): S1.spread((p2_dma(3) if p == 0 else []) + w2_dma(3 * p) + w2_dma(3 * p + 1) + w2_dma(3 * p + 2), P2(8 * p + 6, 1), P2(8 * p + 14, 1) if p < 2 else P2(KCHK, 0), 1, one)
kvdma = []
for k in range(3):
    kvdma.append(L(f"s_add_u32 m0, s{sM0K}, {4096*k}\ns_nop 0") + [dma(vKVo, SWS, f"s{sKV[k]}", 0, "kvl", "sc1")])
    kvdma += [[dma(vKVo, SWS, f"s{sKV[k]}", 1024 * i, "kvl", "sc1")] for i in range(1, 4)]
if not O("x_nokv", 0):
    if not O("x_nochk", 0): S1.put(P2(KCHK, 0), [poll_check("kv", SWS, vPoll, vPa)], 1)
    S1.spread(kvdma, P2(KCHK, 1), NP2, 1, one)
S1.spread(cs_convert(vCS2, vCSw2, CS2, 16), P2(29, 0), P2(30, 0), 2)
S1.put(P2(30, 1), [I(f"ds_read_b128 {vr(vCSA[q],4)}, v{vL16} offset:{CS2+CSTR*q}") for q in range(3)], 0)
if OPT["stamps"] == 10:
    for g in range(O("l0", 2), min(O("l0", 2) + 30, 32)):
        k = nstamp[0]; nstamp[0] += 1
        S1.put(6 * g + 4, [I(f"{TIMER} s[88:89]")], 2)
        S1.put(6 * g + 6, [I(f"v_writelane_b32 v231, s88, {k}")], 2)
if OPT["stamps"] == 11:
    for kk in range(1, 31):
        k = nstamp[0]; nstamp[0] += 1
        S1.put(P2(kk, 0), [I(f"{TIMER} s[88:89]")], 0)
        S1.put(P2(kk + 1, 0) - 1, [I(f"v_writelane_b32 v231, s88, {k}")], 2)
if OPT["stamps"] == 9:
    for q in range(28):
        p = OPT["za"] + q * OPT["zs"]
        if p < len(S1.main): S1.pre[p] = stampq((9,)) + S1.pre[p]
E(S1.emit())
stamp((1, 4, 12))
post = w2_dma(9) + w2_dma(10) + w2_dma(11)
xres = L(f"buffer_load_dwordx4 {vr(vXres,4)}, v{vOut}, {srd(SX)}, 0 offen\nbuffer_load_dwordx4 {vr(vXres+4,4)}, v{vOut+1}, {srd(SX)}, 0 offen")
for n, t in enumerate((0, 1, 2)):
    acc = vr(ACC2 + 16 * t, 16)
    E(f"{MF} {acc}, {vr(vCSA[t],4)}, {vr(vBx[0],4)}, {acc}")
    E(post[2 * n] + post[2 * n + 1])
E(scale_pack(ACC2, vQS, vQ, pk=False))
gl = gelu_pk(ACC2 + 16, ACC2 + 32, vK[0])
HF = O("hf", 60)
E(gl[:HF] + flag(1, "h", vFl2) + xres + gl[HF:])
E([store4(ACC2 + 32, vHst, f"s{sH2}", 0, "h2"), store4(ACC2 + 36, vHst, f"s{sH2}", 1024, "h2")])
stamp((4, 6, 12))
E(I("s_waitcnt lgkmcnt(0)"))
E(I("s_barrier", need=["kvl"]))
stamp((1, 4, 6, 12))

units = [(i, e) for i in range(9) for e in range(2)]
def kread(u):
    i, e = units[u]
    return [I(f"ds_read_b128 {ar(aK+4*(u&1),4)}, v{vKa} offset:{i*4096+e*1024}")]
def vread(u):
    i, e = units[u]
    o = [I(f"ds_read_b64_tr_b16 {ar(aV+8*(u&1)+4*s+2*n,2)}, v{vVa} offset:{e*1024+s*512+n*256}") for s in range(2) for n in range(2)]
    if e == 1: o.append(I(f"v_add_u32 v{vVa}, v{vVa}, v{vVinc}"))
    return o
def qk(u):
    i, e = units[u]
    c = vr(vBF, 16) if i == 0 else (vr(vBD, 16) if i == 8 else "0")
    return I(f"{MF} {vr(vS[u&1],16)}, {ar(aK+4*(u&1),4)}, {vr(vQ+4*e,4)}, {c}", xr=ar(aV + 8 * (u & 1), 8) if u >= 2 else None)
def pv(u, s):
    i, e = units[u]
    o = vr(vO[e], 16)
    return I(f"{MF} {o}, {ar(aV+8*(u&1)+4*s,4)}, {vr(vP[u&1]+4*s,4)}, {'0' if (i == 0 and s == 0) else o}")
def hload(j, tt):
    post = []
    if j < 16:
        soff = sA
        if tt == 1 and j & 1 == 1: post = L(f"s_add_u32 s{sA}, s{sA}, 2048\ns_and_b32 s{sA}, s{sA}, 0x3fff")
    else: soff = sLH[(j - 16) >> 1]
    o = " offset:1024" if j & 1 else ""
    return [I(f"buffer_load_dwordx4 {ar(aH+8*j+4*tt,4)}, v{vAo+tt}, {srd(SWS)}, s{soff} offen{o} sc1")] + post
NW2V = O("w2v", 10)
W2V = [152, 156, 192, 196, 200, 204, 4, 8, 12, 16, 20, 24, 36, 40, 44, 48, 240, 244, 248, 252]
def w2_reads(j):
    sl = j % 12
    base = (sl // 3) * 24576 + (sl % 3) * 2048
    o = []
    for ct in range(2):
        for n in range(2):
            off = base + n * 1024 + ct * 256
            reg = vW3r if off < 49152 else vW3r + 1
            off = off if off < 49152 else off - 49152
            if j >= 22: reg, off = vPa, (j - 22) * 2048 + n * 1024 + ct * 256
            dst = vr(W2V[2*j+ct]+2*n, 2) if j < NW2V else (ar(aW2+8*(j&1)+4*ct+2*n, 2) if j < 22 else ar(8*(j-22)+4*ct+2*n, 2))
            o.append(I(f"ds_read_b64_tr_b16 {dst}, v{reg} offset:{off}", need=["w%d" % j], tag="r%d" % j))
    return o
extra = {u: [] for u in range(18)}
xds = {u: [] for u in range(18)}
WS0, WS1 = O("ws0", 0), O("ws1", 8)
for j in range(NW2V):
    u = WS0 + j * (WS1 - WS0) // max(NW2V, 1)
    xds[u] += w2_reads(j)
    extra[u + 1] += w2_dma(j + 12)
EP, EC = O("ep", 3), O("ec", 6)
LF, LP, LC = O("lf", 3), O("lp", 9), O("lc", 12)
extra[EP].append(poll_issue(vPb))
extra[LF].append(flag(2, "h2", vFl1))
extra[EC].append(poll_check("h", SWS, vPoll, vPb) + L(f"v_and_b32 v{vPb}, -5, v{vPb}\nv_add_u32 v{vPb}, 8192, v{vPb}"))
he = [hload(j, tt) for j in range(16) for tt in range(2)]
hlate = [hload(j, tt) for j in range(16, 22) for tt in range(2)]
EE = O("ee", 15); NE = O("ne", 32)
he_late = he[NE:]; he = he[:NE]
for q in range(EE - EC):
    extra[EC + q] += he[len(he) * q // (EE - EC):len(he) * (q + 1) // (EE - EC)]
extra[LP].append(poll_issue(vPb))
extra[LC].append(poll_check("h2", SWS, vPoll, vPb) + L(f"v_add_u32 v{vPb}, 8192, v{vPb}"))
LS = max(LC, EE)
NL = O("nl", 12)
for q in range(18 - LS):
    extra[LS + q] += hlate[NL * q // (18 - LS):NL * (q + 1) // (18 - LS)]
hl_late = he_late + hlate[NL:]
assert not he_late or NL == 0

E(kread(0) + kread(1) + vread(0))
E(qk(0))
for u in range(18):
    S, P = vS[u & 1], vP[u & 1]
    ex = [I(f"v_exp_f32 v{S+j}, v{S+j}") for j in range(16)]
    cv = [I(f"v_cvt_pk_bf16_f32 v{P+j}, v{S+2*j}, v{S+2*j+1}") for j in range(8)]
    seq = []
    xs = list(extra[u])
    X = lambda q: flat(xs[len(xs) * q // 3:len(xs) * (q + 1) // 3])
    vr_ = vread(u + 1) if u + 1 < 18 else []
    if u + 1 < 18: seq.append(qk(u + 1))
    if u + 2 < 18: seq += kread(u + 2)
    seq += xds[u] + X(0) + ex[0:6]
    if u > 0: seq.append(pv(u - 1, 0))
    seq += vr_[0:2] + X(1) + ex[6:11] + cv[0:3]
    if u > 0: seq.append(pv(u - 1, 1))
    seq += vr_[2:4] + X(2) + vr_[4:] + ex[11:16] + cv[3:8]
    if u % 2 == 0: seq = stampq((6,)) + seq
    if OPT["stamps"] == 12:
        if u > 0: seq.insert(2, I(f"v_writelane_b32 v231, s88, {nstamp[0]}")); nstamp[0] += 1
        seq.insert(3 if u > 0 else 1, I(f"{TIMER} s[88:89]"))
    E(seq)
def norm(e):
    o = vO[e]
    t = [f"v_rcp_f32 v{vT0+1}, v{o+8}", "s_nop 0"]
    if e == 0: t += [f"v_mul_f32 v{o+j}, v{o+j}, v{vT0+1}" for j in range(8)]
    else: t += [f"v_pk_mul_f32 {vr(o+j,2)}, {vr(o+j,2)}, {vr(vT0+1,2)} op_sel_hi:[1,0]" for j in range(0, 8, 2)]
    t += [f"v_cvt_pk_bf16_f32 v{o+12+j}, v{o+2*j}, v{o+2*j+1}" for j in range(4)]
    if SENT: t += [f"v_min_u32 v{o+12}, -2, v{o+12}"]
    return t
E([pv(17, 0), pv(17, 1)])
if OPT["stamps"] == 12: E(f"v_writelane_b32 v231, s88, {nstamp[0]}"); nstamp[0] += 1
E("\n".join(norm(0)))
E(store4(vO[0] + 12, vOst, "0", 0, "o"))
BLO, BHI = fx(2.0 ** -40), fx(2.0 ** 40)
E(f"""
s_mov_b32 s{sT}, {BLO}
s_mov_b32 s{sTb}, {BHI}
v_min_f32 v{vT0}, v{vO[0]+8}, v{vO[1]+8}
v_max_f32 v{vT1}, v{vO[0]+8}, v{vO[1]+8}
v_cmp_nle_f32 vcc, s{sT}, v{vT0}
v_cmp_nge_f32 s[4:5], s{sTb}, v{vT1}
v_cmp_u_f32 s[6:7], v{vO[0]+8}, v{vO[1]+8}
s_or_b64 vcc, vcc, s[4:5]
s_or_b64 vcc, vcc, s[6:7]
s_cbranch_vccnz L_truemax
""")
prog[-1].post = "\nL_att_done:"
E("\n".join(norm(1)))
E(store4(vO[1] + 12, vOst, "0", 1024, "o"))
stamp((6, 12))
E("s_barrier")
stamp((1, 5, 6, 12))

sa, sb_, sc_, sd_, se_, sf_ = sT, sTb, sTc, sTd, sX, sQ
tm = [f"""
L_truemax:
    s_waitcnt vmcnt(0) lgkmcnt(0)
    s_nop 15
    s_sub_i32 s{sa}, 8, s{sTB}
    s_max_i32 s{sa}, s{sa}, 0
    s_mov_b32 s{sb_}, 0
L_tm_head:
    s_cmp_eq_u32 s{sb_}, 0
    s_cselect_b64 vcc, -1, 0
    s_nop 4
"""]
tm += [f"    v_cndmask_b32 v{vP[1]+j}, v{vQ+4+j}, v{vQ+j}, vcc\n" for j in range(4)]
tm.append(f"""
    v_mov_b32 v{vT0}, 0xff000000
    s_mov_b32 s{sd_}, 0
L_tm_pass:
    s_mov_b32 s{sc_}, s{sa}
""")
tm += [f"    v_mov_b32 v{vS[1]+j}, 0\n" for j in range(16)]
tm.append(f"""
L_tm_blk:
    s_lshl_b32 s{se_}, s{sc_}, 12
    s_lshl_b32 s{sf_}, s{sb_}, 10
    s_add_u32 s{se_}, s{se_}, s{sf_}
    v_add_u32 v{vT1}, s{se_}, v{vKa}
    ds_read_b128 {ar(aK,4)}, v{vT1}
    s_sub_u32 s{se_}, 9, s{sc_}
    v_mul_lo_u32 v{vT2}, s{se_}, v{vVinc}
    v_sub_u32 v{vT2}, v{vVa}, v{vT2}
    v_add_u32 v{vT2}, s{sf_}, v{vT2}
    ds_read_b64_tr_b16 {ar(aV,2)}, v{vT2}
    ds_read_b64_tr_b16 {ar(aV+2,2)}, v{vT2} offset:256
    ds_read_b64_tr_b16 {ar(aV+4,2)}, v{vT2} offset:512
    ds_read_b64_tr_b16 {ar(aV+6,2)}, v{vT2} offset:768
    s_waitcnt lgkmcnt(0)
    s_cmp_eq_u32 s{sc_}, 0
    s_cbranch_scc1 L_tm_far
    s_cmp_eq_u32 s{sc_}, 8
    s_cbranch_scc1 L_tm_diag
    {MF} {vr(vS[0],16)}, {ar(aK,4)}, {vr(vP[1],4)}, 0
    s_branch L_tm_s
L_tm_far:
    {MF} {vr(vS[0],16)}, {ar(aK,4)}, {vr(vP[1],4)}, {vr(vBF,16)}
    s_branch L_tm_s
L_tm_diag:
    {MF} {vr(vS[0],16)}, {ar(aK,4)}, {vr(vP[1],4)}, {vr(vBD,16)}
L_tm_s:
    s_nop 15
    s_cmp_eq_u32 s{sd_}, 0
    s_cbranch_scc0 L_tm_exp
""")
tm += [f"    v_max_f32 v{vT0}, v{vT0}, v{vS[0]+j}\n" for j in range(16)]
tm.append("    s_branch L_tm_next\nL_tm_exp:\n")
tm += [f"    v_sub_f32 v{vS[0]+j}, v{vS[0]+j}, v{vT0}\n" for j in range(16)]
tm += [f"    v_exp_f32 v{vS[0]+j}, v{vS[0]+j}\n" for j in range(16)]
tm.append("    s_nop 1\n")
tm += [f"    v_cvt_pk_bf16_f32 v{vP[0]+j}, v{vS[0]+2*j}, v{vS[0]+2*j+1}\n" for j in range(8)]
tm.append(f"""
    s_nop 1
    {MF} {vr(vS[1],16)}, {ar(aV,4)}, {vr(vP[0],4)}, {vr(vS[1],16)}
    {MF} {vr(vS[1],16)}, {ar(aV+4,4)}, {vr(vP[0]+4,4)}, {vr(vS[1],16)}
    s_nop 15
L_tm_next:
    s_add_u32 s{sc_}, s{sc_}, 1
    s_cmp_lt_u32 s{sc_}, 9
    s_cbranch_scc1 L_tm_blk
    s_cmp_eq_u32 s{sd_}, 0
    s_cbranch_scc0 L_tm_fin
    v_mov_b32 v{vT1}, v{vT0}
    s_nop 1
    v_permlane32_swap_b32 v{vT0}, v{vT1}
    s_nop 1
    v_max_f32 v{vT0}, v{vT0}, v{vT1}
    s_mov_b32 s{sd_}, 1
    s_branch L_tm_pass
L_tm_fin:
    s_cmp_eq_u32 s{sb_}, 0
    s_cbranch_scc0 L_tm_h1
""")
tm += [f"    v_mov_b32 v{vO[0]+j}, v{vS[1]+j}\n" for j in range(16)]
tm.append(f"    s_mov_b32 s{sb_}, 1\n    s_branch L_tm_head\nL_tm_h1:\n")
tm += [f"    v_mov_b32 v{vO[1]+j}, v{vS[1]+j}\n" for j in range(16)]
tm += ["    " + x + "\n" for x in norm(0)]
tm.append(f"    s_nop 1\n    buffer_store_dwordx4 {vr(vO[0]+12,4)}, v{vOst}, {srd(SWS)}, 0 offen sc1\n    s_waitcnt vmcnt(0)\n    s_branch L_att_done\n")
rare.append("".join(tm))

def oload(j2, tt):
    post = L(f"s_add_u32 s{sWS}, s{sWS}, 1024\ns_and_b32 s{sWS}, s{sWS}, 0x1fff")
    return [I(f"buffer_load_dwordx4 {vr(vOF+8*j2+4*tt,4)}, v{vOo+tt}, {srd(SWS)}, s{sWS} offen sc1")] + post
OF, OP, OC = O("oflag", 6), O("opoll", 12), O("ochk", 17)
if NW2V == 0: E(w2_reads(0))
S3 = Sched()
order = [(j, ct, tt) for j in range(22) for ct in range(2) for tt in range(2)]
order += [(j, ct, tt) for tt in range(2) for j in range(22, 30) for ct in range(2)]
def w2f(j, ct): return vr(W2V[2 * j + ct], 4) if j < NW2V else (ar(aW2 + 8 * (j & 1) + 4 * ct, 4) if j < 22 else ar(8 * (j - 22) + 4 * ct, 4))
for n, (j, ct, tt) in enumerate(order):
    acc = ar(aACC + 32 * ct + 16 * tt, 16)
    bb = ar(aH + 8 * j + 4 * tt, 4) if j < 22 else vr(vOF + 8 * (j - 22) + 4 * tt, 4)
    xr = None
    if ct == 0 and tt == 0 and j >= NW2V: xr = ar(aW2 + 8 * (j & 1), 8) if j < 22 else ar(8 * (j - 22), 8)
    aa = w2f(j, ct)
    S3.pos(I(f"{MF} {acc}, {aa}, {bb}, {'0' if j == 0 else acc}", xr=xr), 6, stampq((5,)) if (n % 8 == 0) else [])
for j in range(30):
    if NW2V <= j + 1 < 23: S3.spread(w2_reads(j + 1), 4 * j, 4 * j + 2, 0)
    if 23 <= j: S3.put(88 + 2 * (j - 24) if j > 23 else 86, w2_reads(j), 0)
    if j >= NW2V and j + 12 < 22:
        g = w2_dma(j + 12); S3.put(4 * j + 1, [g[0]], 1); S3.put(4 * j + 3, [g[1]], 1)
S3.pre[0] += L(f"s_lshl_b32 s{sM0K}, s{sW}, 14\ns_mul_i32 s{sT}, s{sW}, 10240\ns_sub_u32 s{sT}, s{sT}, {WB}\nv_add_u32 v{vPa}, s{sT}, v{vW3r}")
assert NW2V == 10
S3.spread(hl_late + flat([w2_dma(j) for j in range(22, 30)]), 0, O('hle', 44), 1, one)
ol = [oload(j2, tt) for tt in range(2) for j2 in range(8)]
if not SENT:
    S3.put(4 * OF, [flag(3, "o", vFl1)], 1)
    S3.put(4 * OP, [poll_issue(vPb)], 1)
    S3.put(4 * OC, [poll_check("o", SWS, vPoll, vPb)], 1)
    S3.spread(ol, 4 * OC + 1, 4 * O("oend", 24), 1, one)
else:
    OS, OE, OK_ = O("os", 10), O("oe", 18), O("ok", 21)
    S3.spread(ol, 4 * OS, 4 * OE, 1, one)
    for tt in range(2):
        rg = [vOF + 8 * j + 4 * tt for j in range(8)]
        chk = [f"v_max3_u32 v{vT0}, v{rg[0]}, v{rg[1]}, v{rg[2]}", f"v_max3_u32 v{vT0}, v{vT0}, v{rg[3]}, v{rg[4]}", f"v_max3_u32 v{vT0}, v{vT0}, v{rg[5]}, v{rg[6]}", f"v_max_u32 v{vT0}, v{vT0}, v{rg[7]}", f"v_cmp_eq_u32 vcc, -1, v{vT0}"]
        br = L(f"s_cbranch_vccnz L_spin_o{tt}"); br[-1].post = f"\nL_ok_o{tt}:"
        S3.put(87 if tt == 0 else 103, [L("\n".join(chk)) + br], 2)
        rare.append(f"""
L_spin_o{tt}:
    s_mov_b32 s{sSPIN}, {OPT['spin']}
    s_nop 7
L_spin2_o{tt}:
""" + "".join("    " + x.text + "\n" for g in ol[8*tt:8*tt+8] for x in g) + "    s_waitcnt vmcnt(0) lgkmcnt(0)\n" + "".join("    " + x + "\n" for x in chk) + f"""    s_nop 4
    s_cbranch_vccz L_ok_o{tt}
    s_sleep 1
    s_sub_u32 s{sSPIN}, s{sSPIN}, 1
    s_cmp_lg_u32 s{sSPIN}, 0
    s_cbranch_scc1 L_spin2_o{tt}
    s_endpgm
""")
    assert 4 * OE <= 87
S3.spread(L("\n".join(f"v_xor_b32 v{vU+i}, {32*i}, v{vRw}" for i in range(4)) + f"\nv_xor_b32 v{vU+4}, 16, v{vRr}"), 4, 8, 2)
def pwrite(ct, tt): return [I(f"ds_write_b128 v{vU+i}, {ar(aACC+32*ct+16*tt+4*i,4)} offset:{tt*8192+ct*128}") for i in range(4)]
R0 = 128
def fin_reads(tt): return [I(f"ds_read_b128 {vr(R0+8*p+4*n,4)}, v{vRr if n == 0 else vU+4} offset:{p*16384+tt*8192}") for p in range(4) for n in range(2)]
def fin_math(tt, pk):
    x = R0 + 64 + 8 * tt; o = []
    for p in range(4):
        if pk: o += [I(f"v_pk_add_f32 {vr(x+j,2)}, {vr(x+j,2)}, {vr(R0+8*p+j,2)}") for j in range(0, 8, 2)]
        else: o += [I(f"v_add_f32 v{x+j}, v{x+j}, v{R0+8*p+j}") for j in range(8)]
    o += [I(f"v_cvt_pk_bf16_f32 v{R0+32+4*tt+j}, v{x+2*j}, v{x+2*j+1}") for j in range(4)]
    o += [I(f"buffer_store_dwordx4 {vr(R0+32+4*tt,4)}, v{vOut+tt}, {srd(SOUT)}, 0 offen sc1")]
    return o
S3.spread(L("\n".join(f"v_lshlrev_b32 v{R0+64+2*j}, 16, v{vXres+j}\nv_and_b32 v{R0+65+2*j}, 0xffff0000, v{vXres+j}" for j in range(8))), 4 * 12, 4 * 16, 2)
FB = O("fb", 110)
S3.spread(pwrite(0, 0) + pwrite(1, 0), 105, 108, 0)
S3.pre[FB] += L("s_waitcnt lgkmcnt(0)\ns_barrier")
S3.spread(fin_reads(0), FB, FB + 2, 0)
S3.spread(fin_math(0, False), FB + 3, 120, 2)
if OPT["stamps"] == 13:
    for jj in range(29):
        k = nstamp[0]; nstamp[0] += 1
        S3.put(4 * jj + 2, [I(f"{TIMER} s[88:89]")], 0)
        S3.put(4 * jj + 4, [I(f"v_writelane_b32 v231, s88, {k}")], 2)
E(S3.emit())
stamp((1, 5))
E(pwrite(0, 1) + pwrite(1, 1))
E("s_waitcnt lgkmcnt(0)\ns_barrier")
E(fin_reads(1) + fin_math(1, True))
if OPT["stamps"]:
    stamp()
    E(f"s_waitcnt vmcnt(0)")
    stamp((1, 2, 3, 4, 5, 6, 7, 9, 10, 11, 12, 13))
    E(f"s_lshl_b32 s{sT}, s2, 2\ns_add_u32 s{sT}, s{sT}, s{sW}\ns_lshl_b32 s{sT}, s{sT}, 7\ns_add_u32 s{sT}, s{sT}, {ST0}\nv_lshlrev_b32 v{vT0}, 2, v{vL}\nv_lshrrev_b32 v{vT1}, 5, v{vL}\nv_lshl_add_u32 v{vT0}, v{vT1}, 28, v{vT0}")
    E(f"buffer_store_dword v231, v{vT0}, {srd(SWS)}, s{sT} offen")
if O("xf", 0):
    E("s_waitcnt vmcnt(0)"); stamp()
    if OPT["xf"] == 99: E("s_mov_b32 s90, s88")
    E(("s_sub_u32 s90, s90, s92\ns_lshr_b32 s90, s90, 3" if O("xfc", 0) else "s_sub_u32 s90, s90, s88\ns_lshl_b32 s90, s90, 2") + "\ns_add_u32 s90, s90, 4000\nL_es:\ns_memrealtime s[4:5]\ns_waitcnt lgkmcnt(0)\ns_sub_u32 s4, s4, s88\ns_cmp_lt_u32 s4, s90\ns_cbranch_scc1 L_es")
E("L_end:\ns_endpgm")

lines = finalize(prog, verbose=True)
hdr = f"""; Fused LayerNorm + QKV/gate/up GEMM + sliding-window attention + GEGLU + down/out projection.
; @launch grid=(256,1,1) block=(256,1,1) lds={LDSSZ}
.amdgcn_target "amdgcn-amd-amdhsa--gfx950"
.text
.globl {KNAME}
.p2align 8
.type {KNAME},@function
{KNAME}:
"""
tail = f"""
L_table_end:
    s_endpgm
.section .rodata,"a"
.p2align 6
.amdhsa_kernel {KNAME}
  .amdhsa_next_free_vgpr 512
  .amdhsa_next_free_sgpr 102
  .amdhsa_accum_offset 256
  .amdhsa_group_segment_fixed_size 0
  .amdhsa_kernarg_size 80
  .amdhsa_user_sgpr_count 2
  .amdhsa_user_sgpr_kernarg_segment_ptr 1
  .amdhsa_system_sgpr_workgroup_id_x 1
.end_amdhsa_kernel
"""
open(sys.argv[1], "w").write(hdr + "\n".join(lines) + "\n" + "".join(rare) + tail)
```

```python
import sys, math, struct
from asmlib import I, Ins, finalize, weave, Sched

KNAME = "parallel_sum__sliding_block__glu_gated_geglu__prompt_kernel"
OPT = dict(stamps=0, spin=200000)
for a in sys.argv[2:]:
    k, v = a.split("="); OPT[k] = int(v)
def O(k, d): return OPT.get(k, d)

HUGE = 0x40000000
H0 = 4 << 20
HSTR = 88 * 1024
O0 = 10 << 20
FL0 = 12 << 20
ST0 = FL0 + (64 << 10)
SP0 = FL0 + (256 << 10)
WSSZ = 13 << 20
WB = 65536
CS1 = 0; C1STR = 520
STRIP = 49152
CS2 = 53248; CSTR = 1040
LDSSZ = 163840

STC = 4
STB = 18 + 2
sKV = [8, 9, 10]; sRHO, sWB, sWS, sAL, sWL, sMSK, sGp = 11, 12, 13, 14, 15, 16, 17
SX, SQ, SG, SU, SD, SO, SOUT, SWS, SDBG = 24, 28, 32, 36, 40, 44, 48, 52, 56
sW, sRB, sCB, sTB2, sNB, sT0, sT2, sH2, sTB = 3, 60, 61, 62, 63, 64, 65, 66, 67
sX, sQ, sG, sM0X, sM0W = 68, 69, 70, 71, 72
sT, sTb, sTc, sTd = 73, 74, 75, 76
sPK, sPH, sM0D, sD, sSPIN = 77, 78, 80, 81, 82
sPHI, sPH2, sC, sHUGE, sA = 83, 84, 85, 86, 87
sM0K = 79; sSP, sSG = 0, 1
STREG = list(range(90, 94)) + list(range(18, 24))
sWE = 94
sLH = [64, 65, 16]; sLW = [17, 14, 15]
def srd(n): return "s[%d:%d]" % (n, n + 3)
def vr(a, n): return "v[%d:%d]" % (a, a + n - 1)
def ar(a, n): return "a[%d:%d]" % (a, a + n - 1)

vL = 0; vT0, vT1, vT2 = 1, 2, 3
vXo = 4; vQo = 8; vGo = 10; vXr = 12; vXp = 16; vWr = 20
vK = [4, 8]
vBx = [12, 16]; vG = 20
vQo2 = 28; vGo2 = 30; vW2r = 32
vSum = 40; vCS1 = 44; vCS2 = 48
vL16, vKVst, vHst, vFl2, vCSw1, vCSw2, vPoll, vInit, vCSr, vSPo, vDo = 52, 53, 54, 55, 56, 57, 58, 59, 60, 61, 62
ACC1 = 64; ACC2 = 160
vXT = 160; vSL = 176
vKa, vVa, vVinc, vOst, vKVo, vPa, vPb, vW3r = 208, 209, 210, 211, 212, 213, 214, 215
vOut, vEo, vAo, vOo, vFl1, vRw, vRr, vPs, vQS = 217, 219, 221, 223, 225, 226, 227, 228, 229
vU = 232; vCSA = [240, 244, 248]
vXres = 28
vBF = 64; vBD = 80; vS = [96, 112]; vP = [128, 136]; vQ = 144; vO = [160, 176]
vOF = 64
aSTV = 200; aMSK = 216
aX = 0; aSEL = 128; aXP = 140; aWF = 152
aH = 0; aW2 = 176; aACC = 192; aK = 192; aV = 200

prog = []; rare = []
def L(txt, **kw): return [I(ln.strip(), **kw) for ln in txt.strip().split("\n") if ln.strip() and not ln.strip().startswith(";")]
def E(x, **kw):
    if isinstance(x, str): prog.extend(L(x, **kw))
    elif isinstance(x, Ins): prog.append(x)
    else: prog.extend(x)
def flat(g): return [x for y in g for x in y]
one = lambda g: 1
nstamp = [0]; xfc = [0]
TIMER = "s_memrealtime" if O("rt", 0) else "s_memtime"
def stampq(sets=(1,)):
    if O("xf", 0):
        if 1 in sets:
            xfc[0] += 1
            if xfc[0] == OPT["xf"]: return L("s_waitcnt lgkmcnt(0)\n%s s[90:91]\ns_waitcnt lgkmcnt(0)" % ("s_memtime" if O("xfc", 0) else "s_memrealtime"))
        return []
    if OPT["stamps"] == 14 and 1 in sets:
        k = nstamp[0]; nstamp[0] += 2
        return L("s_waitcnt lgkmcnt(0)\ns_memtime s[88:89]\ns_memrealtime s[90:91]\ns_waitcnt lgkmcnt(0)\nv_writelane_b32 v231, s88, %d\nv_writelane_b32 v231, s90, %d" % (k, k + 1))
    if OPT["stamps"] in sets:
        k = nstamp[0]; nstamp[0] += 1
        return L("s_waitcnt lgkmcnt(0)\n%s s[88:89]\ns_waitcnt lgkmcnt(0)\nv_writelane_b32 v231, s88, %d" % (TIMER, k))
    return []
def stamp(sets=(1,)): E(stampq(sets))
def fx(f): return "0x%08x" % struct.unpack("<I", struct.pack("<f", f))[0]
MF = "v_mfma_f32_32x32x16_bf16"; MS = "v_mfma_f32_16x16x32_bf16"
HOME = dict(Ka=vKa, Va=vVa, Vinc=vVinc, Ost=vOst, KVo=vKVo, Pa=vPa, Pb=vPb, W3r=vW3r, W3s=vW3r+1, Out=vOut, Out1=vOut+1, Eo=vEo, Eo1=vEo+1, Ao=vAo, Ao1=vAo+1, Oo=vOo, Oo1=vOo+1, Fl1=vFl1, Rw=vRw, Rr=vRr)
def park(name, src): return f"v_mov_b32 v{HOME[name]}, {src}\n"
def dma(voff, S, soff, imm, tag, flags="", need=None):
    o = (" offset:%d" % imm) if imm else ""
    return I(f"buffer_load_dwordx4 v{voff}, {srd(S)}, {soff} offen{o} {flags} lds", tag=tag, need=need)
def glue(q):
    out = []; cur = []
    for n, x in enumerate(q):
        if isinstance(x, list):
            assert not cur
            out.append(x); continue
        cur.append(x)
        nxt = q[n + 1] if n + 1 < len(q) else None
        if x.op.startswith("s_cmp") or (nxt is not None and not isinstance(nxt, list) and nxt.op.startswith("s_cselect")): continue
        out.append(cur); cur = []
    if cur: out.append(cur)
    return out

E("""
s_cmp_ge_u32 s2, 256
s_cbranch_scc1 L_end
s_load_dwordx4 s[4:7], s[0:1], 0
s_load_dwordx2 s[8:9], s[0:1], 16
s_load_dwordx4 s[12:15], s[0:1], 32
s_load_dwordx4 s[16:19], s[0:1], 48
s_load_dwordx4 s[20:23], s[0:1], 64
""")
if OPT["stamps"]: E(TIMER + " s[88:89]")
if OPT["stamps"] == 14: E("s_memrealtime s[90:91]")
if O("xf", 0): E("s_memrealtime s[88:89]\ns_memtime s[92:93]")
def ctouch(vtid):
    return L(f"""s_getpc_b64 s[40:41]
s_mov_b32 s42, L_table_end-.
s_mov_b32 s43, 0x20000
s_lshr_b32 s44, s2, 3
s_lshl_b32 s44, s44, 11
v_and_b32 v{vU}, 15, v{vtid}
v_lshrrev_b32 v{vU+1}, 4, v{vtid}
v_lshlrev_b32 v{vU}, 7, v{vU}
v_lshl_add_u32 v{vU}, v{vU+1}, 24, v{vU}
buffer_load_dword v255, v{vU}, s[40:43], s44 offen""")
if O("ctouch", 1) == 1: E(ctouch(0))
else: E(f"v_mov_b32 v{vU+2}, v0")
E(f"""
v_lshrrev_b32 v{vT0}, 6, v0
v_and_b32 v{vL}, 63, v0
v_readfirstlane_b32 s{sW}, v{vT0}
s_and_b32 s{sT}, s2, 7
s_lshr_b32 s{sTb}, s2, 3
s_lshr_b32 s{sTc}, s{sT}, 2
s_lshl_b32 s{sRB}, s{sTc}, 3
s_and_b32 s{sTd}, s{sTb}, 7
s_add_u32 s{sRB}, s{sRB}, s{sTd}
s_and_b32 s{sCB}, s{sT}, 3
s_lshl_b32 s{sCB}, s{sCB}, 2
s_lshr_b32 s{sTd}, s{sTb}, 3
s_add_u32 s{sCB}, s{sCB}, s{sTd}
s_lshl_b32 s{sTB2}, s{sT}, 2
s_and_b32 s{sTd}, s{sTb}, 3
s_add_u32 s{sTB2}, s{sTB2}, s{sTd}
s_lshr_b32 s{sNB}, s{sTb}, 2
""")
if O("phi", 2) == 1: E(f"s_lshl_b32 s{sPHI}, s{sCB}, 1\ns_add_u32 s{sPHI}, s{sPHI}, s{sRB}\ns_and_b32 s{sPHI}, s{sPHI}, 7")
elif O("phi", 2) == 2: E(f"s_add_u32 s{sPHI}, s{sCB}, s{sRB}\ns_and_b32 s{sPHI}, s{sPHI}, 3\ns_lshl_b32 s{sPHI}, s{sPHI}, 1")
elif O("phi", 2) == 5: E(f"s_add_u32 s{sPHI}, s{sCB}, s{sRB}\ns_and_b32 s{sT}, s{sPHI}, 2\ns_and_b32 s{sPHI}, s{sPHI}, 1\ns_lshl_b32 s{sT}, s{sT}, 1\ns_add_u32 s{sPHI}, s{sPHI}, s{sT}")
elif O("phi", 2) == 6: E(f"s_add_u32 s{sPHI}, s{sCB}, s{sRB}\ns_and_b32 s{sPHI}, s{sPHI}, 3")
elif O("phi", 2) == 3: E(f"s_add_u32 s{sPHI}, s{sCB}, s{sRB}\ns_and_b32 s{sPHI}, s{sPHI}, 1\ns_lshl_b32 s{sPHI}, s{sPHI}, 2")
else: E(f"s_mov_b32 s{sPHI}, 0")
E(f"""
s_lshl_b32 s{sTB}, s{sRB}, 2
s_add_u32 s{sTB}, s{sTB}, s{sW}
s_mul_i32 s{sT0}, s{sCB}, 3
s_lshr_b32 s{sT}, s{sCB}, 2
s_sub_u32 s{sT0}, s{sT0}, s{sT}
s_min_u32 s{sT0}, s{sT0}, 41
s_lshl_b32 s{sM0X}, s{sW}, 12
s_lshl_b32 s{sM0W}, s{sW}, 11
s_add_u32 s{sM0W}, s{sM0W}, {WB}
s_lshl_b32 s{sT}, s{sTB}, 15
v_lshrrev_b32 v{vT0}, 3, v{vL}
v_lshlrev_b32 v{vT0}, 10, v{vT0}
v_add_u32 v{vT0}, s{sT}, v{vT0}
v_and_b32 v{vT1}, 7, v{vL}
v_lshrrev_b32 v{vT2}, 4, v{vL}
v_xor_b32 v{vT1}, v{vT1}, v{vT2}
v_lshl_add_u32 v{vXo}, v{vT1}, 4, v{vT0}
v_xor_b32 v{vT1}, 4, v{vT1}
v_lshl_add_u32 v{vXo+1}, v{vT1}, 4, v{vT0}
v_add_u32 v{vXo+1}, {7*1024}, v{vXo+1}
v_add_u32 v{vXo+2}, {14*1024}, v{vXo}
v_add_u32 v{vXo+3}, {14*1024}, v{vXo+1}
v_lshrrev_b32 v{vT0}, 5, v{vL}
v_bfe_u32 v{vT1}, v{vL}, 2, 2
v_lshl_add_u32 v{vT0}, v{vT0}, 2, v{vT1}
v_bfe_u32 v{vT1}, v{vL}, 4, 1
v_and_b32 v{vT2}, 3, v{vL}
v_lshlrev_b32 v{vT2}, 4, v{vT2}
v_lshl_add_u32 v{vT1}, v{vT1}, 6, v{vT2}
v_lshl_add_u32 v{vDo}, v{vT0}, 10, v{vT1}
s_lshl_b32 s{sT}, s{sW}, 4
v_add_u32 v{vT0}, s{sT}, v{vT0}
s_and_b32 s{sT}, s{sCB}, 1
s_add_u32 s{sT}, s{sT}, 1
s_lshl_b32 s{sT}, s{sT}, 10
s_lshr_b32 s{sTb}, s{sCB}, 1
s_lshl_b32 s{sTb}, s{sTb}, 7
s_add_u32 s{sT}, s{sT}, s{sTb}
v_mul_u32_u24 v{vQo}, 3072, v{vT0}
v_add3_u32 v{vQo}, v{vQo}, v{vT1}, s{sT}
v_add_u32 v{vQo+1}, {8*3072-1024}, v{vQo}
s_lshl_b32 s{sT}, s{sT0}, 6
v_mul_u32_u24 v{vGo}, 2752, v{vT0}
v_add3_u32 v{vGo}, v{vGo}, v{vT1}, s{sT}
v_add_u32 v{vGo+1}, {8*2752-1024}, v{vGo}
""")
def mksrd(n, p, size): return f"s_mov_b32 s{n}, s{p}\ns_mov_b32 s{n+1}, s{p+1}\ns_mov_b32 s{n+2}, {size}\ns_mov_b32 s{n+3}, 0x20000\n"
E(mksrd(SX, 4, 2097152) + mksrd(SQ, 6, 1572864) + mksrd(SG, 12, 1409024) + mksrd(SU, 14, 1409024))
if OPT["stamps"]:
    E("v_mov_b32 v231, -1\nv_writelane_b32 v231, s88, 0"); nstamp[0] = 1
    if OPT["stamps"] == 14: E("v_writelane_b32 v231, s90, 1"); nstamp[0] = 2

def p1_dma(c):
    sl = c & 3; t = "c%d" % c
    g = []
    g.append(L(f"s_add_u32 s{sC}, s{sPHI}, {c}\ns_and_b32 s{sC}, s{sC}, 7\ns_add_u32 m0, s{sM0X}, {sl*16384}\ns_lshl_b32 s{sX}, s{sC}, 7") + [dma(vXo, SX, f"s{sX}", 0, t)])
    g += [[dma(vXo + i, SX, f"s{sX}", 1024 * i, t)] for i in range(1, 4)]
    g.append(L(f"s_add_u32 m0, s{sM0W}, {sl*24576}\ns_mul_i32 s{sQ}, s{sC}, 196608") + [dma(vQo, SQ, f"s{sQ}", 0, t)])
    g.append([dma(vQo + 1, SQ, f"s{sQ}", 1024, t), I(f"s_add_u32 m0, s{sM0W}, {sl*24576+8192}")])
    g.append(L(f"s_mul_i32 s{sG}, s{sC}, 176128") + [dma(vGo, SG, f"s{sG}", 0, t)])
    g.append([dma(vGo + 1, SG, f"s{sG}", 1024, t), I(f"s_add_u32 m0, s{sM0W}, {sl*24576+16384}")])
    g.append([dma(vGo, SU, f"s{sG}", 0, t)])
    g.append([dma(vGo + 1, SU, f"s{sG}", 1024, t)])
    return g
def p2_dma(p):
    t = "p%d" % p
    g = []
    g.append(L(f"s_add_u32 s{sC}, s{sPH2}, {2*p}\ns_and_b32 s{sC}, s{sC}, 7\ns_add_u32 m0, s{sM0W}, {p*24576}\ns_mul_i32 s{sQ}, s{sC}, 196608") + [dma(vQo2, SQ, f"s{sQ}", 0, t)])
    g.append([dma(vQo2 + 1, SQ, f"s{sQ}", 1024, t), I(f"s_add_u32 m0, s{sM0W}, {p*24576+8192}")])
    g.append(L(f"s_mul_i32 s{sG}, s{sC}, 176128") + [dma(vGo2, SG, f"s{sG}", 0, t)])
    g.append([dma(vGo2 + 1, SG, f"s{sG}", 1024, t), I(f"s_add_u32 m0, s{sM0W}, {p*24576+16384}")])
    g.append([dma(vGo2, SU, f"s{sG}", 0, t)])
    g.append([dma(vGo2 + 1, SU, f"s{sG}", 1024, t)])
    return g

E(mksrd(SWS, 22, WSSZ) + mksrd(SDBG, 20, 256) + f"""
s_mov_b32 s{sHUGE}, {HUGE}
v_lshlrev_b32 v{vL16}, 4, v{vL}
s_mul_i32 s{sT}, s{sW}, 10240
s_add_u32 s{sT}, s{sT}, {FL0}
s_cmp_lg_u32 s2, 0
s_cselect_b32 s{sT}, s{sHUGE}, s{sT}
s_cbranch_scc1 L_nozero
s_add_u32 s{sTb}, s{sT}, 4096
s_add_u32 s{sTc}, s{sT}, 8192
v_mov_b32 v{vXT}, 0
v_mov_b32 v{vXT+1}, 0
v_mov_b32 v{vXT+2}, 0
v_mov_b32 v{vXT+3}, 0
""")
for i in range(10):
    E(I(f"buffer_store_dwordx4 {vr(vXT,4)}, v{vL16}, {srd(SWS)}, s{[sT, sTb, sTc][i>>2]} offen offset:{1024*(i&3)} sc1", tag="zero"))
prog[-1].post = "\nL_nozero:"
stamp((2, 15))
if O("tlb", 0):
    E(f"""s_cmp_eq_u32 s{sW}, 1
s_cselect_b32 s44, s{SQ}, s{SX}
s_cselect_b32 s45, s{SQ+1}, s{SX+1}
s_cmp_eq_u32 s{sW}, 2
s_cselect_b32 s44, s{SG}, s44
s_cselect_b32 s45, s{SG+1}, s45
s_cmp_eq_u32 s{sW}, 3
s_cselect_b32 s44, s{SU}, s44
s_cselect_b32 s45, s{SU+1}, s45
s_mov_b32 s46, 1409024
s_mov_b32 s47, 0x20000
v_lshlrev_b32 v{vT0}, {O("tlbs", 24)}, v{vL}
buffer_load_dword v{vXT+7}, v{vT0}, s[44:47], 0 offen""")
g0 = p1_dma(0)
CT = O("ctouch", 1)
NI = O("ni", 9)
if O("c0o", 0):
    t = "c0"
    mk = lambda m, vo, S, so, imm: L(f"s_add_u32 m0, s{m[0]}, {m[1]}\ns_nop 0") + [dma(vo, S, f"s{so}", imm, t)]
    E(f"s_lshl_b32 s{sX}, s{sPHI}, 7\ns_mul_i32 s{sQ}, s{sPHI}, 196608\ns_mul_i32 s{sG}, s{sPHI}, 176128")
    X_, K_, G_, U_ = (sM0X, 0), (sM0W, 0), (sM0W, 8192), (sM0W, 16384)
    g0 = [mk(X_, vXo, SX, sX, 0), mk(G_, vGo, SG, sG, 0), mk(U_, vGo, SU, sG, 0), mk(K_, vQo, SQ, sQ, 0), mk(X_, vXo + 1, SX, sX, 1024), [dma(vXo + 2, SX, f"s{sX}", 2048, t)], [dma(vXo + 3, SX, f"s{sX}", 3072, t)],
          mk(K_, vQo + 1, SQ, sQ, 1024), mk(G_, vGo + 1, SG, sG, 1024), mk(U_, vGo + 1, SU, sG, 1024)]
if CT >= 2: E(flat(g0[:CT - 1]) + ctouch(vU + 2) + flat(g0[CT - 1:NI]))
else: E(flat(g0[:NI]))
g0 = g0[NI:]
if OPT["stamps"] == 15:
    stamp((15,))
    for i in range(NI):
        E(f"s_waitcnt vmcnt({NI-1-i})"); stamp((15,))
stamp((2,))
init_mark = len(prog)
E(mksrd(SD, 16, 1409024) + mksrd(SO, 8, 524288) + mksrd(SOUT, 18, 2097152))
ann = L(f"""
s_cmp_lg_u32 s2, 0
s_cselect_b32 s{sT}, s{sHUGE}, 0
s_lshl_b32 s{sTb}, s{sW}, 2
s_add_u32 s{sT}, s{sT}, s{sTb}
v_mov_b32 v{vT0}, 1
v_lshlrev_b32 v{vT1}, 8, v{vL}
""") + [I(f"buffer_store_dword v{vT0}, v{vT1}, {srd(SDBG)}, s{sT} offen sc1", need=["zero"])]
E(f"""
s_lshr_b32 s{sPH2}, s{sW}, 1
s_add_u32 s{sPH2}, s{sPH2}, s{sPHI}
s_lshr_b32 s{sT}, 0xc888, s{sCB}
s_and_b32 s{sT}, s{sT}, 1
s_cselect_b32 s{sMSK}, s{sHUGE}, 0
s_add_u32 s{sT2}, s{sT0}, 2
""")
if O("w2m", 0) == 0:
    w2touch = L(f"""s_mul_i32 s{sT}, s2, 3
s_add_u32 s{sT}, s{sT}, s{sW}
s_mov_b32 s{STC+3}, 0x20000
s_cmp_eq_u32 s{sW}, 3
s_cselect_b32 s{sT}, s2, s{sT}
s_cselect_b32 s{STC}, s{SO}, s{SD}
s_cselect_b32 s{STC+1}, s{SO+1}, s{SD+1}
s_cselect_b32 s{STC+2}, s{SO+2}, s{SD+2}
s_lshl_b32 s{sT}, s{sT}, 11
v_and_b32 v{vT0}, 15, v{vL}
v_lshlrev_b32 v{vT0}, 7, v{vT0}
v_lshrrev_b32 v{vT1}, 4, v{vL}
v_lshl_add_u32 v{vT0}, v{vT1}, 28, v{vT0}
buffer_load_dword v{vPoll}, v{vT0}, {srd(STC)}, s{sT} offen sc1""")
else:
    w2touch = L(f"""s_lshl_b32 s{sT}, s2, 1
s_and_b32 s{sTb}, s{sW}, 1
s_add_u32 s{sT}, s{sT}, s{sTb}
s_lshr_b32 s{sTb}, s{sT}, 5
s_mul_i32 s{sTb}, s{sTb}, 98304
s_add_u32 s{sTb}, s{sTb}, 65536
s_and_b32 s{STC}, s{sT}, 31
s_lshl_b32 s{STC}, s{STC}, 10
s_add_u32 s{sTb}, s{sTb}, s{STC}
s_lshl_b32 s{sT}, s{sT}, 10
s_mov_b32 s{STC+3}, 0x20000
s_cmp_lt_u32 s{sW}, 2
s_cselect_b32 s{sT}, s{sT}, s{sTb}
s_cselect_b32 s{STC}, s{SO}, s{SD}
s_cselect_b32 s{STC+1}, s{SO+1}, s{SD+1}
s_cselect_b32 s{STC+2}, s{SO+2}, s{SD+2}
v_and_b32 v{vT0}, 7, v{vL}
v_lshlrev_b32 v{vT0}, 7, v{vT0}
v_lshrrev_b32 v{vT1}, 3, v{vL}
v_lshl_add_u32 v{vT0}, v{vT1}, 27, v{vT0}
buffer_load_dword v{vPoll}, v{vT0}, {srd(STC)}, s{sT} offen sc1""")
E(f"""
v_and_b32 v{vT0}, 31, v{vL}
v_lshrrev_b32 v{vT1}, 5, v{vL}
v_bfe_u32 v{vT2}, v{vL}, 1, 3
v_xor_b32 v{vT2}, v{vT2}, v{vT1}
v_lshlrev_b32 v{vT0}, 7, v{vT0}
v_lshl_add_u32 v{vT0}, v{vT2}, 4, v{vT0}
v_add_u32 v{vT0}, s{sM0X}, v{vT0}
""")
for s in range(4):
    E(f"s_xor_b32 s{sT}, s{sW}, {s}\ns_lshl_b32 s{sT}, s{sT}, 5\nv_xor_b32 v{vXr+s}, s{sT}, v{vT0}\nv_xor_b32 v{vXp+s}, 4096, v{vXr+s}")
E(f"""
v_bfe_u32 v{vT2}, v{vL}, 2, 2
v_lshlrev_b32 v{vT2}, 6, v{vT2}
v_bfe_u32 v{vT0}, v{vL}, 4, 1
v_lshl_add_u32 v{vT2}, v{vT0}, 5, v{vT2}
v_and_b32 v{vT0}, 3, v{vL}
v_lshl_add_u32 v{vT2}, v{vT0}, 3, v{vT2}
v_lshl_add_u32 v{vT0}, v{vT1}, 10, v{vT2}
v_lshl_add_u32 v{vT2}, v{vT1}, 9, v{vT2}
s_and_b32 s{sTc}, s{sW}, 1
s_lshl_b32 s{sTc}, s{sTc}, 8
s_add_u32 s{sTc}, s{sTc}, {WB}
s_mul_i32 s{sT}, s{sW}, 6144
s_add_u32 s{sM0D}, s{sT}, {WB}
v_add_u32 v{vT1}, s{sM0D}, v{vT2}
{park("W3r", f"v{vT1}")}v_add_u32 v{vT1}, 49152, v{vT1}
{park("W3s", f"v{vT1}")}
""")
for s in range(4):
    E(f"""
s_xor_b32 s{sT}, s{sW}, {s}
s_lshl_b32 s{sTb}, s{sT}, 11
s_add_u32 s{sTb}, s{sTb}, s{sTc}
v_add_u32 v{vWr+2*s}, s{sTb}, v{vT0}
v_add_u32 v{vWr+2*s+1}, 49152, v{vWr+2*s}
s_lshl_b32 s{sTb}, s{sT}, 10
s_add_u32 s{sTb}, s{sTb}, {WB}
v_add_u32 v{vW2r+2*s}, s{sTb}, v{vT2}
v_add_u32 v{vW2r+2*s+1}, 49152, v{vW2r+2*s}
""")
E(f"""
v_lshrrev_b32 v{vT0}, 2, v{vL}
s_and_b32 s{sT}, s{sW}, 1
s_lshl_b32 s{sT}, s{sT}, 5
v_add_u32 v{vT0}, s{sT}, v{vT0}
v_and_b32 v{vT1}, 3, v{vL}
v_lshlrev_b32 v{vT1}, 4, v{vT1}
s_lshl_b32 s{sT}, s{sCB}, 6
v_mul_u32_u24 v{vQo2}, 3072, v{vT0}
v_add3_u32 v{vQo2}, v{vQo2}, v{vT1}, s{sT}
v_add_u32 v{vQo2+1}, {16*3072-1024}, v{vQo2}
s_lshl_b32 s{sT}, s{sT2}, 6
v_mul_u32_u24 v{vGo2}, 2752, v{vT0}
v_add3_u32 v{vGo2}, v{vGo2}, v{vT1}, s{sT}
v_add_u32 v{vGo2}, s{sMSK}, v{vGo2}
v_add_u32 v{vGo2+1}, {16*2752-1024}, v{vGo2}
v_and_b32 v{vT0}, 15, v{vL}
v_bfe_u32 v{vT1}, v{vL}, 4, 1
v_sub_u32 v{vT0}, v{vT0}, v{vT1}
v_mov_b32 v{vT1}, 0x3f803f80
""")
for t in range(3):
    E(f"v_cmp_eq_u32 vcc, {2*t}, v{vT0}\nv_cndmask_b32 v{vT2}, 0, v{vT1}, vcc")
    E("\n".join(f"v_accvgpr_write_b32 a{aSEL+4*t+j}, v{vT2}" for j in range(4)))
E(f"""
s_lshl_b32 s{sT}, s{sRB}, 2
s_sub_i32 s{sT}, 8, s{sT}
v_and_b32 v{vT0}, 7, v{vL}
v_lshlrev_b32 v{vT0}, 1, v{vT0}
v_mov_b32 v{vT1}, 0x3f80
v_cmp_le_i32 vcc, s{sT}, v{vT0}
v_cndmask_b32 v{vT2}, 0, v{vT1}, vcc
v_accvgpr_write_b32 a{aSTV}, v{vT2}
v_accvgpr_write_b32 a{aSTV+1}, 0
v_add_u32 v{vT0}, 1, v{vT0}
v_cmp_le_i32 vcc, s{sT}, v{vT0}
v_cndmask_b32 v{vT2}, 0, v{vT1}, vcc
v_cmp_ne_u32 vcc, 15, v{vT0}
v_cndmask_b32 v{vT2}, 0, v{vT2}, vcc
v_accvgpr_write_b32 a{aSTV+2}, v{vT2}
v_accvgpr_write_b32 a{aSTV+3}, 0
v_lshlrev_b32 v{vT0}, 3, v{vL}
s_and_b32 s{sTc}, s{sW}, 1
s_lshr_b32 s{sT}, s{sTB}, 1
s_lshl_b32 s{sTb}, s{sT}, 13
s_add_u32 s{sTb}, s{sTb}, {SP0}
s_lshl_b32 s{sTd}, s{sTc}, 8
v_xor_b32 v{vT1}, s{sTd}, v{vT0}
v_add_u32 v{vSPo}, s{sTb}, v{vT1}
s_lshl_b32 s{sSP}, s{sCB}, 9
s_and_b32 s{sSG}, s{sCB}, 12
s_lshl_b32 s{sSG}, s{sSG}, 9
s_lshl_b32 s{sT}, s{sT}, 8
s_and_b32 s{sTb}, s{sCB}, 12
s_lshl_b32 s{sTb}, s{sTb}, 3
s_add_u32 s{sT}, s{sT}, s{sTb}
s_add_u32 s{sT}, s{sT}, {FL0+4*8192}
v_bfe_u32 v{vT1}, v{vL}, 2, 1
v_and_b32 v{vT2}, 3, v{vL}
v_lshlrev_b32 v{vT2}, 3, v{vT2}
v_lshl_add_u32 v{vT1}, v{vT1}, 7, v{vT2}
v_add_u32 v{vPs}, s{sT}, v{vT1}
s_and_b32 s{sTc}, s{sW}, 1
s_mul_i32 s{sT}, s{sTc}, {8*C1STR}
v_add_u32 v{vCSr}, s{sT}, v{vT0}
s_lshr_b32 s{sTb}, s{sW}, 1
s_lshl_b32 s{sTd}, s{sTb}, 8
s_add_u32 s{sT}, s{sT}, s{sTd}
v_bfe_u32 v{vT0}, v{vL}, 1, 3
v_and_b32 v{vT1}, 1, v{vL}
v_lshrrev_b32 v{vT2}, 4, v{vL}
v_lshl_add_u32 v{vT1}, v{vT1}, 2, v{vT2}
v_mul_u32_u24 v{vT2}, {C1STR}, v{vT0}
v_lshl_add_u32 v{vT2}, v{vT1}, 5, v{vT2}
v_add_u32 v{vCSw1}, s{sT}, v{vT2}
s_lshl_b32 s{sT}, s{sTb}, 9
s_lshl_b32 s{sTd}, s{sTc}, 3
s_add_u32 s{sT}, s{sT}, s{sTd}
v_mul_u32_u24 v{vT2}, {CSTR}, v{vT0}
v_lshl_add_u32 v{vT2}, v{vT1}, 6, v{vT2}
v_add_u32 v{vCSw2}, s{sT}, v{vT2}
v_and_b32 v{vT0}, 31, v{vL}
v_lshrrev_b32 v{vT1}, 5, v{vL}
v_lshl_add_u32 v{vT0}, v{vT0}, 1, v{vT1}
v_lshlrev_b32 v{vT0}, 4, v{vT0}
v_add_u32 v{vT0}, 2048, v{vT0}
s_and_b32 s{sT}, s{sCB}, 1
s_cmp_eq_u32 s{sT}, 1
s_cselect_b64 vcc, -1, 0
v_cndmask_b32 v{vKVst}, v{vL16}, v{vT0}, vcc
s_and_b32 s{sT}, s{sCB}, 14
s_add_u32 s{sT}, s{sT}, s{sTc}
s_lshl_b32 s{sT}, s{sT}, 18
s_and_b32 s{sTb}, s{sTB}, -2
s_lshl_b32 s{sTd}, s{sTb}, 12
s_add_u32 s{sT}, s{sT}, s{sTd}
v_add_u32 v{vKVst}, s{sT}, v{vKVst}
s_lshl_b32 s{sPK}, s{sTc}, 12
s_mul_i32 s{sT}, s{sTb}, {HSTR}
s_add_u32 s{sT}, s{sT}, {H0}
s_lshl_b32 s{sTd}, s{sCB}, 12
s_add_u32 s{sT}, s{sT}, s{sTd}
s_lshl_b32 s{sTd}, s{sTc}, 11
s_add_u32 s{sT}, s{sT}, s{sTd}
v_add_u32 v{vHst}, s{sT}, v{vL16}
s_mul_i32 s{sPH}, s{sTc}, {HSTR}
s_lshr_b32 s{sT}, s{sCB}, 2
s_mul_i32 s{sT}, s{sT}, 6144
s_and_b32 s{sH2}, s{sCB}, 3
s_lshl_b32 s{sTd}, s{sH2}, 11
s_add_u32 s{sT}, s{sT}, s{sTd}
s_add_u32 s{sT}, s{sT}, 65536
s_add_u32 s{sT}, s{sT}, s{sPH}
s_lshl_b32 s{sTd}, s{sCB}, 12
s_sub_u32 s{sT}, s{sT}, s{sTd}
s_lshl_b32 s{sTd}, s{sTc}, 11
s_sub_u32 s{sT}, s{sT}, s{sTd}
s_cmp_lt_u32 s{sH2}, 3
s_cselect_b32 s{sH2}, s{sT}, s{sHUGE}
s_lshl_b32 s{sT}, s{sTb}, 7
s_lshl_b32 s{sTd}, s{sCB}, 3
s_add_u32 s{sTd}, s{sTd}, {FL0}
s_add_u32 s{sT}, s{sT}, s{sTd}
s_lshl_b32 s{sTb}, s{sTc}, 2
s_add_u32 s{sT}, s{sT}, s{sTb}
v_lshlrev_b32 v{vT0}, 7, v{vL}
v_add_u32 v{vT0}, s{sT}, v{vT0}
v_mov_b32 v{vT1}, s{sHUGE}
v_cmp_gt_u32 vcc, 2, v{vL}
v_cndmask_b32 v{vFl2}, v{vT1}, v{vT0}, vcc
s_lshl_b32 s{sT}, s{sTB}, 7
s_add_u32 s{sT}, s{sT}, s{sTd}
v_mov_b32 v{vT0}, s{sT}
v_cmp_eq_u32 vcc, 0, v{vL}
v_cndmask_b32 v{vT0}, v{vT1}, v{vT0}, vcc
{park("Fl1", f"v{vT0}")}
v_mov_b32 v{vSum}, 0
v_mov_b32 v{vSum+1}, 0
v_mov_b32 v{vSum+2}, 0
v_mov_b32 v{vSum+3}, 0
v_mov_b32 v{vCSA[0]+2}, 0
v_mov_b32 v{vCSA[0]+3}, 0
v_mov_b32 v{vCSA[1]+2}, 0
v_mov_b32 v{vCSA[1]+3}, 0
v_mov_b32 v{vCSA[2]+2}, 0
v_mov_b32 v{vCSA[2]+3}, 0
s_lshl_b32 s{sT}, s{sNB}, 7
v_add_u32 v{vDo}, s{sT}, v{vDo}
v_add_u32 v{vDo+1}, {7*1024}, v{vDo}
s_lshl_b32 s{sT}, s{sW}, 17
v_add_u32 v{vT0}, s{sT}, v{vDo}
{park("Eo", f"v{vT0}")}v_add_u32 v{vT0}, {7*1024}, v{vT0}
{park("Eo1", f"v{vT0}")}
s_mul_i32 s{sT}, s{sTB2}, {2*HSTR}
s_lshl_b32 s{sTb}, s{sW}, 14
s_add_u32 s{sT}, s{sT}, s{sTb}
s_add_u32 s{sT}, s{sT}, {H0}
v_add_u32 v{vT0}, s{sT}, v{vL16}
{park("Ao", f"v{vT0}")}v_add_u32 v{vT0}, {HSTR}, v{vT0}
{park("Ao1", f"v{vT0}")}
s_lshl_b32 s{sT}, s{sTB2}, 16
s_lshl_b32 s{sTb}, s{sW}, 13
s_add_u32 s{sT}, s{sT}, s{sTb}
s_add_u32 s{sT}, s{sT}, {O0}
v_add_u32 v{vT0}, s{sT}, v{vL16}
{park("Oo", f"v{vT0}")}v_add_u32 v{vT0}, 32768, v{vT0}
{park("Oo1", f"v{vT0}")}
s_lshl_b32 s{sRHO}, s{sTB2}, 1
s_add_u32 s{sRHO}, s{sRHO}, s{sNB}
s_and_b32 s{sRHO}, s{sRHO}, {7 if O("rot", 1) else 0}
s_mul_i32 s{sWB}, s{sW}, 11
""")
for q in range(8):
    E(f"""s_add_u32 s{sT}, s{sRHO}, {q}
s_bfe_u32 s{sTb}, s{sT}, 0x20001
s_mul_i32 s{sTb}, s{sTb}, 3
s_add_u32 s{sTb}, s{sTb}, s{sWB}
s_min_u32 s{sTb}, s{sTb}, 41
s_and_b32 s{sT}, s{sT}, 1
s_add_u32 s{sT}, s{sT}, s{sTb}
s_lshl_b32 s{sWE+q}, s{sT}, 15""")
E(f"""s_add_u32 s{sT}, s{sTB2}, s{sNB}
s_mul_i32 s{sTb}, s{sT}, 43
s_lshr_b32 s{sTb}, s{sTb}, 7
s_mul_i32 s{sTb}, s{sTb}, 3
s_sub_u32 s{sT}, s{sT}, s{sTb}
s_and_b32 s{sT}, s{sT}, {3 if O("rot", 1) else 0}
s_mul_i32 s{sTc}, s{sW}, 10240
s_sub_u32 s{sTc}, 65536, s{sTc}
s_mul_i32 s{sTd}, s{sW}, {11*32768}
s_add_u32 s{sTd}, s{sTd}, 65536""")
for q in range(3):
    E(f"""s_lshl_b32 s{sTb}, s{sT}, 11
s_add_u32 s{sLH[q]}, s{sTb}, s{sTc}
s_mul_i32 s{sTb}, s{sT}, 98304
s_add_u32 s{sLW[q]}, s{sTb}, s{sTd}
s_add_u32 s{sT}, s{sT}, 1
s_cmp_eq_u32 s{sT}, 3
s_cselect_b32 s{sT}, 0, s{sT}""")
E(f"""
s_lshl_b32 s{sA}, s{sRHO}, 11
s_lshl_b32 s{sWB}, s{sRHO}, 14
s_lshl_b32 s{sWS}, s{sRHO}, 10
v_lshrrev_b32 v{vT0}, 3, v{vL}
v_and_b32 v{vT1}, 7, v{vL}
s_lshl_b32 s{sT}, s{sTB2}, 6
s_lshl_b32 s{sTb}, s{sW}, 3
s_add_u32 s{sT}, s{sT}, s{sTb}
s_lshl_b32 s{sT}, s{sT}, 10
s_lshl_b32 s{sTb}, s{sNB}, 7
s_add_u32 s{sT}, s{sT}, s{sTb}
v_lshlrev_b32 v{vT2}, 10, v{vT0}
v_lshl_add_u32 v{vT2}, v{vT1}, 4, v{vT2}
v_add_u32 v{vT2}, s{sT}, v{vT2}
{park("Out", f"v{vT2}")}v_add_u32 v{vT2}, 32768, v{vT2}
{park("Out1", f"v{vT2}")}v_lshlrev_b32 v{vT1}, 1, v{vT1}
v_xor_b32 v{vT1}, v{vT1}, v{vT0}
v_lshlrev_b32 v{vT0}, 8, v{vT0}
v_lshl_add_u32 v{vT0}, v{vT1}, 4, v{vT0}
s_lshl_b32 s{sT}, s{sW}, 11
v_add_u32 v{vT0}, s{sT}, v{vT0}
{park("Rr", f"v{vT0}")}v_and_b32 v{vT0}, 31, v{vL}
v_lshrrev_b32 v{vT1}, 5, v{vL}
v_and_b32 v{vT2}, 7, v{vL}
v_xor_b32 v{vT1}, v{vT1}, v{vT2}
v_lshlrev_b32 v{vT0}, 8, v{vT0}
v_lshl_add_u32 v{vT0}, v{vT1}, 4, v{vT0}
s_lshl_b32 s{sT}, s{sW}, 14
v_add_u32 v{vT0}, s{sT}, v{vT0}
{park("Rw", f"v{vT0}")}
v_add_u32 v{vT0}, s{sM0X}, v{vL16}
{park("Ka", f"v{vT0}")}v_lshrrev_b32 v{vT1}, 5, v{vL}
v_bfe_u32 v{vT2}, v{vL}, 2, 2
v_lshl_add_u32 v{vT2}, v{vT1}, 2, v{vT2}
v_lshlrev_b32 v{vT2}, 5, v{vT2}
v_and_b32 v{vT0}, 1, v{vL}
v_lshl_add_u32 v{vT2}, v{vT0}, 4, v{vT2}
v_bfe_u32 v{vT0}, v{vL}, 1, 1
v_lshl_add_u32 v{vT2}, v{vT0}, 3, v{vT2}
s_add_u32 s{sT}, s{sM0X}, 2048
v_add_u32 v{vT2}, s{sT}, v{vT2}
v_xor_b32 v{vT1}, 1, v{vT1}
v_lshlrev_b32 v{vT1}, 7, v{vT1}
s_lshl_b32 s{sT}, s{sW}, 3
s_add_u32 s{sT}, s{sT}, {STRIP}
v_add_u32 v{vU}, {STRIP+120}, v{vT1}
v_add_u32 v{vT1}, s{sT}, v{vT1}
v_and_b32 v{vT0}, 2, v{vL}
v_cmp_eq_u32 vcc, 0, v{vT0}
v_cndmask_b32 v{vT1}, v{vU}, v{vT1}, vcc
v_cndmask_b32 v{vU}, 0, 8, vcc
v_and_b32 v{vT0}, 16, v{vL}
v_cmp_eq_u32 vcc, 0, v{vT0}
v_cndmask_b32 v{vT0}, v{vT1}, v{vT2}, vcc
{park("Va", f"v{vT0}")}v_mov_b32 v{vT2}, 4096
v_cndmask_b32 v{vT0}, v{vU}, v{vT2}, vcc
{park("Vinc", f"v{vT0}")}
s_lshl_b32 s{sT}, s{sTB}, 15
s_lshl_b32 s{sTb}, s{sCB}, 11
s_add_u32 s{sT}, s{sT}, s{sTb}
s_add_u32 s{sT}, s{sT}, {O0}
v_add_u32 v{vT0}, s{sT}, v{vL16}
{park("Ost", f"v{vT0}")}
s_lshl_b32 s{sT}, s{sCB}, 18
v_add_u32 v{vT0}, s{sT}, v{vL16}
{park("KVo", f"v{vT0}")}
s_mul_i32 s{sM0K}, s{sW}, 12288
""")
SENT = O("sent", 1)
sent_st = [I(f"buffer_store_dwordx4 {vr(vXT,4)}, v{vOst}, {srd(SWS)}, 0 offen offset:{1024*e} sc1", tag="sent") for e in range(2)] if SENT else []
for k in range(3):
    E(f"""
s_mul_i32 s{sT}, s{sW}, 3
s_lshl_b32 s{sTb}, s{sRB}, 2
s_add_u32 s{sT}, s{sT}, s{sTb}
s_add_i32 s{sT}, s{sT}, {k-8}
s_lshl_b32 s{sKV[k]}, s{sT}, 12
s_cmp_lt_i32 s{sT}, 0
s_cselect_b32 s{sKV[k]}, s{sHUGE}, s{sKV[k]}
""")
E(f"""
v_min_u32 v{vT1}, 5, v{vL}
v_lshrrev_b32 v{vT2}, 1, v{vT1}
s_add_i32 s{sT}, s{sT}, -2
v_add_u32 v{vT2}, s{sT}, v{vT2}
v_cmp_gt_i32 vcc, 0, v{vT2}
v_mov_b32 v{vT0}, s{sTB}
v_cndmask_b32 v{vT2}, v{vT2}, v{vT0}, vcc
v_lshlrev_b32 v{vT2}, 7, v{vT2}
v_and_b32 v{vT1}, 1, v{vT1}
v_lshl_add_u32 v{vT2}, v{vT1}, 3, v{vT2}
s_and_b32 s{sT}, s{sCB}, 14
s_lshl_b32 s{sT}, s{sT}, 3
s_and_b32 s{sTb}, s{sCB}, 1
s_lshl_b32 s{sTb}, s{sTb}, 2
s_add_u32 s{sT}, s{sT}, s{sTb}
s_add_u32 s{sT}, s{sT}, {FL0}
v_add_u32 v{vT0}, s{sT}, v{vT2}
{park("Pa", f"v{vT0}")}
s_lshl_b32 s{sT}, s{sTB2}, 8
s_add_u32 s{sT}, s{sT}, {FL0+8192}
v_lshlrev_b32 v{vT0}, 2, v{vL}
v_add_u32 v{vT0}, s{sT}, v{vT0}
{park("Pb", f"v{vT0}")}
""")
if O("tblm", 1):
    E(f"""v_and_b32 v{vT1}, 31, v{vL}
v_lshrrev_b32 v{vT2}, 5, v{vL}
v_lshlrev_b32 v{vT2}, 2, v{vT2}
v_sub_u32 v{vT1}, v{vT1}, v{vT2}""")
    for j in range(16):
        kl = 8 * (j >> 2) + (j & 3)
        E(f"""v_subrev_u32 v{vT0}, {kl}, v{vT1}
v_ashrrev_i32 v{vT0}, 31, v{vT0}
v_and_b32 v{vT0}, 0xff000000, v{vT0}
v_accvgpr_write_b32 a{aMSK+16+j}, v{vT0}
v_xor_b32 v{vT0}, 0xff000000, v{vT0}
v_accvgpr_write_b32 a{aMSK+j}, v{vT0}""")
rest = prog[init_mark:]; del prog[init_mark:]
gall = p1_dma(1) + p1_dma(2)
N0 = O("n0", 10)
def safe_at(lst, n):
    x = lst[n]
    return not (x.op.startswith("s_cmp") or x.op == "s_and_b32" or (n + 1 < len(lst) and (lst[n + 1].op.startswith("s_cselect") or lst[n + 1].op.startswith("s_cbranch"))))
cut = int(len(rest) * O("f1", 30) / 100)
while not safe_at(rest, cut - 1): cut += 1
E(rest[:cut])
stamp((2,))
E(flat(g0))
rest = rest[cut:]
gs = gall[:N0]; k = 0
for n, x in enumerate(rest):
    E(x)
    if k < len(gs) and safe_at(rest, n) and n + 1 >= (k + 1) * len(rest) / (len(gs) + 1):
        E(gs[k]); k += 1
if O("w2t", -2) == 0: E(w2touch)
E(ann)
E(flat(gs[k:]))
if O("w2t", -2) == 1: E(w2touch)
stamp((1, 2, 3))

def wf1(st, t): return aWF + (st * 3 + t) * 4
def wf2(k, t): return aWF + ((k % 3) * 3 + t) * 4
def p1_reads(c, s):
    sl = c & 3; st = s & 1
    o = [I(f"ds_read_b128 {ar(aX+(4*c+s)*4,4)}, v{vXr+s} offset:{sl*16384}")]
    for t in range(3):
        for n in range(2):
            o.append(I(f"ds_read_b64_tr_b16 {ar(wf1(st,t)+2*n,2)}, v{vWr+2*s+(sl>>1)} offset:{(sl&1)*24576+t*8192+n*512}"))
    o.insert(3, I(f"ds_read_b128 {ar(aXP+4*st,4)}, v{vXp+s} offset:{sl*16384}"))
    return o
def statread(g):
    c, s = g >> 2, g & 3
    return [I(f"ds_read_b128 {vr(vXT+4*s,4)}, v{vXr+s} offset:{(c&3)*16384}")]
def stats(s):
    o = []
    for j in range(4):
        x = vXT + 4 * s + j; a = vU + 2 * (j & 1)
        o += L(f"""v_lshlrev_b32 v{a}, 16, v{x}
v_and_b32 v{a+1}, 0xffff0000, v{x}
v_add_f32 v{vSum}, v{vSum}, v{a}
v_add_f32 v{vSum+1}, v{vSum+1}, v{a+1}
v_fmac_f32 v{vSum+2}, v{a}, v{a}
v_fmac_f32 v{vSum+3}, v{a+1}, v{a+1}""")
    return o
def cs_convert(vcs, vw, base, step):
    o = []
    for j in range(4):
        a = 252 if j & 1 else vU + 4
        o += L(f"""v_cvt_pk_bf16_f32 v{a}, v{vcs+j}, v{vcs+j}
v_and_b32 v{a+1}, 0xffff0000, v{a}
v_sub_f32 v{a+1}, v{vcs+j}, v{a+1}
v_cvt_pk_bf16_f32 v{a+1}, v{a+1}, v{a+1}""")
        o.append(I(f"ds_write_b64 v{vw}, {vr(a,2)} offset:{base+step*j}"))
    return o
C1 = -2.0 * 0.7978845608028654 * 1.4426950408889634
QC = 0.25 * 1.4426950408889634
stats_pub = L(f"""v_add_f32 v{vSum}, v{vSum}, v{vSum+1}
v_add_f32 v{vSum+1}, v{vSum+2}, v{vSum+3}
v_mov_b32 v{vSum+2}, v{vSum}
v_mov_b32 v{vSum+3}, v{vSum+1}
v_lshrrev_b32 v{vT0}, 5, v{vL}
v_permlane32_swap_b32 v{vSum}, v{vSum+2}
v_permlane32_swap_b32 v{vSum+1}, v{vSum+3}
v_lshl_add_u32 v{vT0}, v{vT0}, 28, v{vSPo}
v_add_f32 v{vSum}, v{vSum}, v{vSum+2}
v_add_f32 v{vSum+1}, v{vSum+1}, v{vSum+3}""") + [I(f"buffer_store_dwordx2 {vr(vSum,2)}, v{vT0}, {srd(SWS)}, s{sSP} offen sc1", tag="sp")]
stats_ld = [[I(f"buffer_load_dwordx2 {vr(vSL+2*i,2)}, v{vSPo}, {srd(SWS)}, s{sSG} offen offset:{512*i} sc1")] for i in range(4)]
b = vSL
stats_fin = L(f"""
v_add_f32 v{b}, v{b}, v{b+2}
v_add_f32 v{b+1}, v{b+1}, v{b+3}
v_add_f32 v{b+4}, v{b+4}, v{b+6}
v_add_f32 v{b+5}, v{b+5}, v{b+7}
v_add_f32 v{b}, v{b}, v{b+4}
v_add_f32 v{b+1}, v{b+1}, v{b+5}
v_mul_f32 v{vSum}, {fx(-1.0/512)}, v{b}
v_mul_f32 v{b+1}, {fx(1.0/512)}, v{b+1}
v_fma_f32 v{b+1}, -v{vSum}, v{vSum}, v{b+1}
v_max_f32 v{b+1}, 0, v{b+1}
v_add_f32 v{vSum+1}, {fx(1e-5)}, v{b+1}
v_mov_b32 v{vSum+2}, v{vSum}
v_mov_b32 v{vSum+3}, v{vSum+1}
s_nop 0
v_permlane32_swap_b32 v{vSum}, v{vSum+2}
v_permlane32_swap_b32 v{vSum+1}, v{vSum+3}
""")
def stats_k(o):
    R = vSum + 2 * o + 1; K = vK[o]; a = vU
    t = f"""
v_rsq_f32 v{K}, v{R}
v_mov_b32 v{K+3}, v{R}
v_mul_f32 v{K+1}, {fx(C1)}, v{K}
v_mul_f32 v{a}, v{K}, v{K}
v_mul_f32 v{a}, {fx(0.044715)}, v{a}
v_mul_f32 v{K+2}, v{K+1}, v{a}
"""
    if o == 0: t += f"v_mul_f32 v{vQS}, {fx(QC)}, v{K}\n"
    return L(t)
def stats_b(o):
    nm = vSum + 2 * o; B = vBx[o]; a = vU
    return L(f"""
v_cvt_pk_bf16_f32 v{a}, v{nm}, v{nm}
v_and_b32 v{a}, 0xffff0000, v{a}
v_sub_f32 v{a+1}, v{nm}, v{a}
v_cvt_pk_bf16_f32 v{B}, v{a}, v{a+1}
v_mov_b32 v{B+1}, v{B}
v_mov_b32 v{B+2}, v{B}
v_mov_b32 v{B+3}, v{B}
""")
E(I("s_barrier", need=["c0"]))
stamp((2,))
E(p1_reads(0, 0) + statread(0) + statread(1))
E(stats(0))
S1 = Sched()
P1 = lambda c, s, t: 24 * c + 6 * s + t
A1 = lambda t, o: ACC1 + 32 * t + 16 * o
for c in range(8):
    for s in range(4):
        st = s & 1; first = (c == 0 and s == 0)
        for q in range(6):
            t, o = q >> 1, q & 1
            acc = vr(A1(t, o), 16)
            xb = ar(aX + (4 * c + s) * 4, 4) if o == 0 else ar(aXP + 4 * st, 4)
            ops = [I(f"{MF} {acc}, {ar(wf1(st,t),4)}, {xb}, {'0' if first else acc}")]
            small = s < 2 and o == 1
            if small:
                cs = vr(vCS1, 4)
                ops.append(I(f"{MS} {cs}, {ar(wf1(st,t),4)}, {ar(aSEL+4*t,4)}, {'0' if (first and t == 0) else cs}"))
            pre = []
            if q == 0 and (O("fw", 0) == 0 or s == 3): pre.append(I("s_waitcnt lgkmcnt(0)"))
            if s == 3 and q == 0 and c < 7: pre.append(I("s_barrier", need=["c%d" % (c + 1)]))
            if s == 3 and q == 2 and c == 7: pre += [I("s_waitcnt lgkmcnt(0)"), I("s_barrier", need=["p0"])]
            if s == 0 and q == 0: pre += stampq((3,))
            S1.pos(ops, 8 if small else 6, pre)
NP1 = 192
CORR_K = 0
P2 = lambda k, t: NP1 + 3 * k + t + (6 if k >= CORR_K else 0)
PC = NP1 + 3 * CORR_K
for k in range(32):
    p, s = k >> 3, k & 3
    if k == CORR_K:
        for q in range(6):
            t, o = q >> 1, q & 1
            acc = vr(A1(t, o), 16)
            S1.pos(I(f"{MF} {acc}, {vr(vCSA[t],4)}, {vr(vBx[o],4)}, {acc}"), 6, stampq((1, 3)) if q == 0 else [])
    for t in range(3):
        acc = vr(ACC2 + 16 * t, 16)
        ops = [I(f"{MF} {acc}, {ar(wf2(k,t),4)}, {ar(aX+k*4,4)}, {'0' if k == 0 else acc}", xr=ar(wf2(k, 0), 12) if t == 0 else None)]
        if s == 0:
            cs = vr(vCS2, 4)
            ops.append(I(f"{MS} {cs}, {ar(wf2(k,t),4)}, {ar(aSEL+4*t,4)}, {'0' if (k == 0 and t == 0) else cs}"))
        pre = []
        if False:
            pre = []
        if (k & 7) == 6 and t == 1:
            pre = [I("s_waitcnt lgkmcnt(0)"), I("s_barrier", need=["p%d" % (p + 1)] if p < 3 else [])]
        if (k & 3) == 0 and t == 0: pre += stampq((4,))
        S1.pos(ops, 8 if s == 0 else 6, pre)
NP2 = len(S1.main)
def p2_reads(k):
    p, g, s = k >> 3, (k >> 2) & 1, k & 3
    return [I(f"ds_read_b64_tr_b16 {ar(wf2(k,t)+2*n,2)}, v{vW2r+2*s+(p>>1)} offset:{(p&1)*24576+t*8192+g*4096+n*256}") for t in range(3) for n in range(2)]
def store4(data, voff, soff, imm, tag):
    if O("x_nost", 0) and tag in ("kv", "h"): return I("s_nop 0")
    o = (" offset:%d" % imm) if imm else ""
    return I(f"buffer_store_dwordx4 {vr(data,4)}, v{voff}, {srd(SWS)}, {soff} offen{o} sc1", tag=tag)
def flag(stage, tag, va):
    if O("x_nofw", -1) == stage: tag = "none"
    return L(f"v_mov_b32 v{vT0}, 1\ns_mov_b32 s{sT}, {stage*8192}") + [I(f"buffer_store_dword v{vT0}, v{va}, {srd(SWS)}, s{sT} offen sc1", need=[tag])]
def poll_issue(va): return [I(f"buffer_load_dword v{vPoll}, v{va}, {srd(SWS)}, 0 offen sc1")]
def poll_check(name, S, reg, addr):
    rare.append(f"""
L_spin_{name}:
    s_mov_b32 s{sSPIN}, {OPT['spin']}
L_spin2_{name}:
    buffer_load_dword v{reg}, v{addr}, {srd(S)}, 0 offen sc1
    s_waitcnt vmcnt(0) lgkmcnt(0)
    v_cmp_eq_u32 vcc, 0, v{reg}
    s_nop 4
    s_cbranch_vccz L_ok_{name}
    s_sleep 1
    s_sub_u32 s{sSPIN}, s{sSPIN}, 1
    s_cmp_lg_u32 s{sSPIN}, 0
    s_cbranch_scc1 L_spin2_{name}
    s_endpgm
""")
    o = L(f"v_cmp_eq_u32 vcc, 0, v{reg}\ns_cbranch_vccnz L_spin_{name}")
    o[-1].post = f"\nL_ok_{name}:"
    return o
SC2 = {5: 2, 6: 4}.get(O("phi", 2), 1)
SG_ = set(range(4)) | set(range(4 * SC2, 4 * SC2 + 4))
for c in range(8):
    for s in range(4):
        g = 4 * c + s
        rd = []
        if g + 1 < 32: rd += p1_reads((g + 1) >> 2, (g + 1) & 3)
        if s < 2 and g + 2 in SG_: rd += statread(g + 2)
        if s == 3 and g + 1 in SG_: rd = statread(g + 1) + rd + statread(g + 2)
        S1.spread(rd, P1(c, s, 0), P1(c, s, O("rdw", 4)), 0)
        if g + 1 in SG_:
            if s != 3: S1.spread(stats((g + 1) & 3), P1(c, s, 0), P1(c, s, 6), 2)
            else: S1.spread(stats(0), P1(c, s, 2), P1(c, s, 6), 2)
    if c == 0:
        gq = gall[N0:]
        if O("w2t", -2) == -1: gq = gq[:10 - N0] + [w2touch] + gq[10 - N0:]
        if O("w2t", -2) == -2: gq = gq + [w2touch]
        S1.spread(gq, P1(0, 0, 0), P1(0, 3, 0), 1, one)
    if c < 5: S1.spread(p1_dma(c + 3), P1(c, 3, 0), P1(c + 1, 3, 0), 1, one)
S1.spread(p2_dma(0), P1(6, O("p0a", 1), 0), P1(6, 3, 0), 1, one)
S1.spread(p2_dma(1), P1(6, 3, 0), P1(7, 3, 0), 1, one)
S1.put(P1(1, 0, 0), [L(f"v_and_b32 v{vT2}, 3, v{vL}\nv_lshlrev_b32 v{vT2}, 2, v{vT2}") + [I(f"buffer_load_dword v{vInit}, v{vT2}, {srd(SDBG)}, 0 offen")]], 1)
S1.spread(stats_pub, P1(SC2, 3, 0), P1(SC2, 3, 3), 2)
S1.put(P1(O("spf", SC2 + 1), O("spf2", 3), 1), [poll_check("init", SDBG, vInit, vT2) + flag(4, "sp", vFl1)], 2)
S1.put(P1(O("spp", 4 if SC2 == 1 else 5), O("spp2", 2 if SC2 == 1 else 0), 5), [poll_issue(vPs)], 1)
S1.put(P1(5, 3, 1), [poll_check("st", SWS, vPoll, vPs)], 2)
S1.spread(stats_ld, P1(5, 3, 2), P1(5, 3, 6), 1, one)
S1.spread(stats_fin + stats_k(0) + stats_k(1), P1(7, 0, 0), P1(7, 2, 0), 2)
if SENT:
    S1.put(P1(3, 0, 0), L("\n".join(f"v_mov_b32 v{vXT+j}, -1" for j in range(4))), 2)
    S1.put(O("snp", 172), [sent_st[0]], 1); S1.put(O("snp", 172) + O("snd", 8), [sent_st[1]], 1)
S1.spread(cs_convert(vCS1, vCSw1, CS1, 8), P1(7, 2, 0), P1(7, 2, 6), 2)
S1.spread(stats_b(0) + stats_b(1), P1(7, 3, 0), P1(7, 3, 4), 2)
S1.spread(p2_reads(0), P1(7, 3, 2), P1(7, 3, 4), 0)
S1.put(P1(7, 3, 5), p2_reads(1), 0)
if O("w2t", -2) >= 2: S1.put(O("w2t", -2), [w2touch], 1)
S1.spread(p2_dma(2), P1(7, 3, 2), P2(5, 0), 1, one)

def scale_pack(acc, sc, dst, pk=False):
    o = []
    if pk:
        sel = "op_sel:[0,1] op_sel_hi:[1,1]" if sc & 1 else "op_sel_hi:[1,0]"
        for j in range(0, 16, 2): o.append(I(f"v_pk_mul_f32 {vr(acc+j,2)}, {vr(acc+j,2)}, {vr(sc&~1,2)} {sel}"))
    else:
        for j in range(16): o.append(I(f"v_mul_f32 v{acc+j}, v{acc+j}, v{sc}"))
    for j in range(8): o.append(I(f"v_cvt_pk_bf16_f32 v{dst+j}, v{acc+2*j}, v{acc+2*j+1}"))
    return o
def gelu(g, u, K):
    if O("x_nogelu", 0): return [I("s_nop 0")] * 4
    A, B, R = K + 1, K + 2, K + 3
    o = []
    for b in range(4):
        js = range(4 * b, 4 * b + 4)
        T = lambda j: vG + (j & 3) + 4 * (b & 1)
        o += [I(f"v_mul_f32 v{T(j)}, v{g+j}, v{g+j}") for j in js]
        o += [I(f"v_fma_f32 v{T(j)}, v{T(j)}, v{B}, v{A}") for j in js]
        o += [I(f"v_mul_f32 v{T(j)}, v{g+j}, v{T(j)}") for j in js]
        for j in js: o += [I(f"v_exp_f32 v{T(j)}, v{T(j)}"), I(f"v_mul_f32 v{g+j}, v{g+j}, v{u+j}")]
        o += [I(f"v_fma_f32 v{T(j)}, v{T(j)}, v{R}, v{R}") for j in js]
        o += [I(f"v_rcp_f32 v{T(j)}, v{T(j)}") for j in js]
        o += [I(f"v_mul_f32 v{g+j}, v{g+j}, v{T(j)}") for j in js]
        o += [I(f"v_cvt_pk_bf16_f32 v{u+2*b+k}, v{g+4*b+2*k}, v{g+4*b+2*k+1}") for k in range(2)]
    return o
def gelu_pk(g, u, K):
    o = []
    for b in range(2):
        js = range(8 * b, 8 * b + 8, 2)
        T = lambda j: vG + (j & 7)
        o += [I(f"v_pk_mul_f32 {vr(T(j),2)}, {vr(g+j,2)}, {vr(g+j,2)}") for j in js]
        o += [I(f"v_pk_fma_f32 {vr(T(j),2)}, {vr(T(j),2)}, {vr(K+2,2)}, {vr(K,2)} op_sel:[0,0,1] op_sel_hi:[1,0,1]") for j in js]
        o += [I(f"v_pk_mul_f32 {vr(T(j),2)}, {vr(g+j,2)}, {vr(T(j),2)}") for j in js]
        for j in js: o += [I(f"v_exp_f32 v{T(j)}, v{T(j)}"), I(f"v_exp_f32 v{T(j)+1}, v{T(j)+1}"), I(f"v_pk_mul_f32 {vr(g+j,2)}, {vr(g+j,2)}, {vr(u+j,2)}")]
        o += [I(f"v_pk_fma_f32 {vr(T(j),2)}, {vr(T(j),2)}, {vr(K+2,2)}, {vr(K+2,2)} op_sel:[0,1,1] op_sel_hi:[1,1,1]") for j in js]
        for j in js: o += [I(f"v_rcp_f32 v{T(j)}, v{T(j)}"), I(f"v_rcp_f32 v{T(j)+1}, v{T(j)+1}")]
        o += [I(f"v_pk_mul_f32 {vr(g+j,2)}, {vr(g+j,2)}, {vr(T(j),2)}") for j in js]
        o += [I(f"v_cvt_pk_bf16_f32 v{u+(j>>1)}, v{g+j}, v{g+j+1}") for j in js]
    return o
S1.put(P1(7, 3, 2), [I(f"ds_read_b64 {vr(vCSA[t],2)}, v{vCSr} offset:{CS1+C1STR*t}") for t in range(3)], 0)
for k in range(30):
    o = 1 if (k & 7) == 6 else 0
    S1.spread(p2_reads(k + 2), P2(k, o), P2(k, o + (2 if (k & 7) in (5, 6) else 3)), 0)

fq = []
sOwn = [f"s{sPK}", f"s{sTd}"]; sOwnH = [f"s{sPH}", f"s{sTc}"]
fq += L(f"s_xor_b32 s{sTd}, s{sPK}, 4096\ns_sub_u32 s{sTc}, {HSTR}, s{sPH}")
for o in range(2):
    a = A1(0, o)
    sp = scale_pack(a, vK[o], a)
    fq += sp[0:8] + sp[16:20] + [store4(a, vKVst, sOwn[o], 0, "kv")] + sp[8:16] + sp[20:24] + [store4(a + 4, vKVst, sOwn[o], 1024, "kv")]
g = []
for o in range(2):
    gg = gelu(A1(1, o), A1(2, o), vK[o])
    g.append(gg[:68] + [store4(A1(2, o), vHst, sOwnH[o], 0, "h")] + gg[68:] + [store4(A1(2, o) + 4, vHst, sOwnH[o], 1024, "h")])
KVF = O("kvflag", 100); KVP = O("kvpoll", 90)
tbl = [[I(f"buffer_load_dwordx4 {vr(vBF+4*i,4)}, v{vL16}, {srd(STB)}, {'0' if i < 4 else 's%d' % sX} offen offset:{1024*(i&3)}")] for i in range(8)]
tbl[0] = L(f"s_movk_i32 s{sX}, 4096") + tbl[0]
strip = [I(f"ds_write_b128 v{vL16}, {ar(aSTV,4)} offset:{STRIP+1024*i}") for i in range(2)]
unp = [I(f"v_accvgpr_read_b32 v{vBF+j}, a{aMSK+j}") for j in range(32)] if O("tblm", 1) else []
fq += g[0][:KVF] + [flag(0, "kv", vFl2)] + g[0][KVF:] + strip + unp
fq += g[1][:KVP] + poll_issue(vPa) + g[1][KVP:]
FQ_END = O("fqend", 28)
S1.spread(glue(fq), PC + 3, P2(FQ_END, 0), 2)
if not O("tblm", 1): S1.spread(tbl, P2(O("tbl", 9), 0), P2(O("tbl", 9) + 5, 0), 1, one)

def w2_dma(j):
    sl = j % 12
    m0 = (sl // 3) * 24576 + (sl % 3) * 2048
    nd = ["r%d" % (j - 12)]
    post = []
    if j >= 22:
        post = L(f"s_add_u32 s{sWB}, s{sWB}, 16384\ns_and_b32 s{sWB}, s{sWB}, 0x1ffff")
        return [L(f"s_add_u32 m0, s{sM0K}, {(j-22)*2048}\ns_nop 0") + [dma(vEo, SO, f"s{sWB}", 0, "w%d" % j)],
                [dma(vEo + 1, SO, f"s{sWB}", 1024, "w%d" % j)] + post]
    if j < 22:
        base = sWE + (j >> 1) if j < 16 else sLW[(j - 16) >> 1]
        so, sr = ("s_nop 0", base) if j & 1 == 0 else (f"s_add_u32 s{sD}, s{base}, 16384", sD)
        vo, S = vDo, SD
    else:
        so, sr, vo, S = "s_nop 0", sWB, vEo, SO
        post = L(f"s_add_u32 s{sWB}, s{sWB}, 16384\ns_and_b32 s{sWB}, s{sWB}, 0x1ffff")
    return [L(f"s_add_u32 m0, s{sM0D}, {m0}\n{so}") + [dma(vo, S, f"s{sr}", 0, "w%d" % j, need=nd)],
            [dma(vo + 1, S, f"s{sr}", 1024, "w%d" % j, need=nd)] + post]
KCHK = O("kvchk", 28)
for p in range(3):
    if not O("x_now2", 0): S1.spread((p2_dma(3) if p == 0 else []) + w2_dma(3 * p) + w2_dma(3 * p + 1) + w2_dma(3 * p + 2), P2(8 * p + 6, 1), P2(8 * p + 14, 1) if p < 2 else P2(KCHK, 0), 1, one)
kvdma = []
for k in range(3):
    kvdma.append(L(f"s_add_u32 m0, s{sM0K}, {4096*k}\ns_nop 0") + [dma(vKVo, SWS, f"s{sKV[k]}", 0, "kvl", "sc1")])
    kvdma += [[dma(vKVo, SWS, f"s{sKV[k]}", 1024 * i, "kvl", "sc1")] for i in range(1, 4)]
if not O("x_nokv", 0):
    if not O("x_nochk", 0): S1.put(P2(KCHK, 0), [poll_check("kv", SWS, vPoll, vPa)], 1)
    S1.spread(kvdma, P2(KCHK, 1), NP2, 1, one)
S1.spread(cs_convert(vCS2, vCSw2, CS2, 16), P2(29, 0), P2(30, 0), 2)
S1.put(P2(30, 1), [I(f"ds_read_b128 {vr(vCSA[q],4)}, v{vL16} offset:{CS2+CSTR*q}") for q in range(3)], 0)
if OPT["stamps"] == 10:
    for g in range(O("l0", 2), min(O("l0", 2) + 30, 32)):
        k = nstamp[0]; nstamp[0] += 1
        S1.put(6 * g + 4, [I(f"{TIMER} s[88:89]")], 2)
        S1.put(6 * g + 6, [I(f"v_writelane_b32 v231, s88, {k}")], 2)
if OPT["stamps"] == 11:
    for kk in range(1, 31):
        k = nstamp[0]; nstamp[0] += 1
        S1.put(P2(kk, 0), [I(f"{TIMER} s[88:89]")], 0)
        S1.put(P2(kk + 1, 0) - 1, [I(f"v_writelane_b32 v231, s88, {k}")], 2)
if OPT["stamps"] == 9:
    for q in range(28):
        p = OPT["za"] + q * OPT["zs"]
        if p < len(S1.main): S1.pre[p] = stampq((9,)) + S1.pre[p]
E(S1.emit())
stamp((1, 4, 12))
post = w2_dma(9) + w2_dma(10) + w2_dma(11)
xres = L(f"buffer_load_dwordx4 {vr(vXres,4)}, v{vOut}, {srd(SX)}, 0 offen\nbuffer_load_dwordx4 {vr(vXres+4,4)}, v{vOut+1}, {srd(SX)}, 0 offen")
for n, t in enumerate((0, 1, 2)):
    acc = vr(ACC2 + 16 * t, 16)
    E(f"{MF} {acc}, {vr(vCSA[t],4)}, {vr(vBx[0],4)}, {acc}")
    E(post[2 * n] + post[2 * n + 1])
E(scale_pack(ACC2, vQS, vQ, pk=False))
gl = gelu_pk(ACC2 + 16, ACC2 + 32, vK[0])
HF = O("hf", 60)
gl = gl[:44] + [store4(ACC2 + 32, vHst, f"s{sH2}", 0, "h2")] + xres + gl[44:] + [store4(ACC2 + 36, vHst, f"s{sH2}", 1024, "h2")]
E(gl[:HF] + flag(1, "h", vFl2) + gl[HF:])
stamp((4, 6, 12))
E(I("s_waitcnt lgkmcnt(0)"))
E(I("s_barrier", need=["kvl"]))
stamp((1, 4, 6, 12))

units = [(i, e) for i in range(9) for e in range(2)]
def kread(u):
    i, e = units[u]
    return [I(f"ds_read_b128 {ar(aK+4*(u&1),4)}, v{vKa} offset:{i*4096+e*1024}")]
def vread(u):
    i, e = units[u]
    o = [I(f"ds_read_b64_tr_b16 {ar(aV+8*(u&1)+4*s+2*n,2)}, v{vVa} offset:{e*1024+s*512+n*256}") for s in range(2) for n in range(2)]
    if e == 1: o.append(I(f"v_add_u32 v{vVa}, v{vVa}, v{vVinc}"))
    return o
def qk(u):
    i, e = units[u]
    c = vr(vBF, 16) if i == 0 else (vr(vBD, 16) if i == 8 else "0")
    return I(f"{MF} {vr(vS[u&1],16)}, {ar(aK+4*(u&1),4)}, {vr(vQ+4*e,4)}, {c}", xr=ar(aV + 8 * (u & 1), 8) if u >= 2 else None)
def pv(u, s):
    i, e = units[u]
    o = vr(vO[e], 16)
    return I(f"{MF} {o}, {ar(aV+8*(u&1)+4*s,4)}, {vr(vP[u&1]+4*s,4)}, {'0' if (i == 0 and s == 0) else o}")
def hload(j, tt):
    post = []
    if j < 16:
        soff = sA
        if tt == 1 and j & 1 == 1: post = L(f"s_add_u32 s{sA}, s{sA}, 2048\ns_and_b32 s{sA}, s{sA}, 0x3fff")
    else: soff = sLH[(j - 16) >> 1]
    o = " offset:1024" if j & 1 else ""
    return [I(f"buffer_load_dwordx4 {ar(aH+8*j+4*tt,4)}, v{vAo+tt}, {srd(SWS)}, s{soff} offen{o} sc1")] + post
NW2V = O("w2v", 10)
W2V = [152, 156, 192, 196, 200, 204, 4, 8, 12, 16, 20, 24, 36, 40, 44, 48, 240, 244, 248, 252]
def w2_reads(j):
    sl = j % 12
    base = (sl // 3) * 24576 + (sl % 3) * 2048
    o = []
    for ct in range(2):
        for n in range(2):
            off = base + n * 1024 + ct * 256
            reg = vW3r if off < 49152 else vW3r + 1
            off = off if off < 49152 else off - 49152
            if j >= 22: reg, off = vPa, (j - 22) * 2048 + n * 1024 + ct * 256
            dst = vr(W2V[2*j+ct]+2*n, 2) if j < NW2V else (ar(aW2+8*(j&1)+4*ct+2*n, 2) if j < 22 else ar(8*(j-22)+4*ct+2*n, 2))
            o.append(I(f"ds_read_b64_tr_b16 {dst}, v{reg} offset:{off}", need=["w%d" % j], tag="r%d" % j))
    return o
extra = {u: [] for u in range(18)}
xds = {u: [] for u in range(18)}
WS0, WS1 = O("ws0", 0), O("ws1", 8)
for j in range(NW2V):
    u = WS0 + j * (WS1 - WS0) // max(NW2V, 1)
    xds[u] += w2_reads(j)
    extra[u + 1] += w2_dma(j + 12)
EP, EC = O("ep", 4), O("ec", 7)
LF, LP, LC = O("lf", 3), O("lp", 9), O("lc", 12)
extra[EP].append(poll_issue(vPb))
extra[LF].append(flag(2, "h2", vFl1))
extra[EC].append(poll_check("h", SWS, vPoll, vPb) + L(f"v_and_b32 v{vPb}, -5, v{vPb}\nv_add_u32 v{vPb}, 8192, v{vPb}"))
he = [hload(j, tt) for j in range(16) for tt in range(2)]
hlate = [hload(j, tt) for j in range(16, 22) for tt in range(2)]
EE = O("ee", 15); NE = O("ne", 32)
he_late = he[NE:]; he = he[:NE]
for q in range(EE - EC):
    extra[EC + q] += he[len(he) * q // (EE - EC):len(he) * (q + 1) // (EE - EC)]
extra[LP].append(poll_issue(vPb))
extra[LC].append(poll_check("h2", SWS, vPoll, vPb) + L(f"v_add_u32 v{vPb}, 8192, v{vPb}"))
LS = max(LC, EE)
NL = O("nl", 12)
for q in range(18 - LS):
    extra[LS + q] += hlate[NL * q // (18 - LS):NL * (q + 1) // (18 - LS)]
hl_late = he_late + hlate[NL:]
assert not he_late or NL == 0

E(kread(0) + kread(1) + vread(0))
E(qk(0))
for u in range(18):
    S, P = vS[u & 1], vP[u & 1]
    ex = [I(f"v_exp_f32 v{S+j}, v{S+j}") for j in range(16)]
    cv = [I(f"v_cvt_pk_bf16_f32 v{P+j}, v{S+2*j}, v{S+2*j+1}") for j in range(8)]
    seq = []
    xs = list(extra[u])
    X = lambda q: flat(xs[len(xs) * q // 3:len(xs) * (q + 1) // 3])
    vr_ = vread(u + 1) if u + 1 < 18 else []
    if u + 1 < 18: seq.append(qk(u + 1))
    if u + 2 < 18: seq += kread(u + 2)
    seq += xds[u] + X(0) + ex[0:6]
    if u > 0: seq.append(pv(u - 1, 0))
    seq += vr_[0:2] + X(1) + ex[6:11] + cv[0:3]
    if u > 0: seq.append(pv(u - 1, 1))
    seq += vr_[2:4] + X(2) + vr_[4:] + ex[11:16] + cv[3:8]
    if u % 2 == 0: seq = stampq((6,)) + seq
    if OPT["stamps"] == 12:
        if u > 0: seq.insert(2, I(f"v_writelane_b32 v231, s88, {nstamp[0]}")); nstamp[0] += 1
        seq.insert(3 if u > 0 else 1, I(f"{TIMER} s[88:89]"))
    E(seq)
def norm(e):
    o = vO[e]
    t = [f"v_rcp_f32 v{vT0+1}, v{o+8}", "s_nop 0"]
    if e == 0: t += [f"v_mul_f32 v{o+j}, v{o+j}, v{vT0+1}" for j in range(8)]
    else: t += [f"v_pk_mul_f32 {vr(o+j,2)}, {vr(o+j,2)}, {vr(vT0+1,2)} op_sel_hi:[1,0]" for j in range(0, 8, 2)]
    t += [f"v_cvt_pk_bf16_f32 v{o+12+j}, v{o+2*j}, v{o+2*j+1}" for j in range(4)]
    if SENT: t += [f"v_min_u32 v{o+12}, -2, v{o+12}"]
    return t
E([pv(17, 0), pv(17, 1)])
if OPT["stamps"] == 12: E(f"v_writelane_b32 v231, s88, {nstamp[0]}"); nstamp[0] += 1
E("\n".join(norm(0)))
BLO, BHI = fx(2.0 ** -40), fx(2.0 ** 40)
E(f"""
s_mov_b32 s{sT}, {BLO}
s_mov_b32 s{sTb}, {BHI}
v_min_f32 v{vT0}, v{vO[0]+8}, v{vO[1]+8}
v_max_f32 v{vT1}, v{vO[0]+8}, v{vO[1]+8}
v_cmp_nle_f32 vcc, s{sT}, v{vT0}
v_cmp_nge_f32 s[4:5], s{sTb}, v{vT1}
v_cmp_u_f32 s[6:7], v{vO[0]+8}, v{vO[1]+8}
s_or_b64 vcc, vcc, s[4:5]
s_or_b64 vcc, vcc, s[6:7]
s_cbranch_vccnz L_truemax
""")
prog[-1].post = "\nL_att_done:"
E(store4(vO[0] + 12, vOst, "0", 0, "o"))
E("\n".join(norm(1)))
E(store4(vO[1] + 12, vOst, "0", 1024, "o"))
stamp((6, 12))
E("s_barrier")
stamp((1, 5, 6, 12))

sa, sb_, sc_, sd_, se_, sf_ = sT, sTb, sTc, sTd, sX, sQ
tm = [f"""
L_truemax:
    s_waitcnt vmcnt(0) lgkmcnt(0)
    s_nop 15
    s_sub_i32 s{sa}, 8, s{sTB}
    s_max_i32 s{sa}, s{sa}, 0
    s_mov_b32 s{sb_}, 0
L_tm_head:
    s_cmp_eq_u32 s{sb_}, 0
    s_cselect_b64 vcc, -1, 0
    s_nop 4
"""]
tm += [f"    v_cndmask_b32 v{vP[1]+j}, v{vQ+4+j}, v{vQ+j}, vcc\n" for j in range(4)]
tm.append(f"""
    v_mov_b32 v{vT0}, 0xff000000
    s_mov_b32 s{sd_}, 0
L_tm_pass:
    s_mov_b32 s{sc_}, s{sa}
""")
tm += [f"    v_mov_b32 v{vS[1]+j}, 0\n" for j in range(16)]
tm.append(f"""
L_tm_blk:
    s_lshl_b32 s{se_}, s{sc_}, 12
    s_lshl_b32 s{sf_}, s{sb_}, 10
    s_add_u32 s{se_}, s{se_}, s{sf_}
    v_add_u32 v{vT1}, s{se_}, v{vKa}
    ds_read_b128 {ar(aK,4)}, v{vT1}
    s_sub_u32 s{se_}, 9, s{sc_}
    v_mul_lo_u32 v{vT2}, s{se_}, v{vVinc}
    v_sub_u32 v{vT2}, v{vVa}, v{vT2}
    v_add_u32 v{vT2}, s{sf_}, v{vT2}
    ds_read_b64_tr_b16 {ar(aV,2)}, v{vT2}
    ds_read_b64_tr_b16 {ar(aV+2,2)}, v{vT2} offset:256
    ds_read_b64_tr_b16 {ar(aV+4,2)}, v{vT2} offset:512
    ds_read_b64_tr_b16 {ar(aV+6,2)}, v{vT2} offset:768
    s_waitcnt lgkmcnt(0)
    s_cmp_eq_u32 s{sc_}, 0
    s_cbranch_scc1 L_tm_far
    s_cmp_eq_u32 s{sc_}, 8
    s_cbranch_scc1 L_tm_diag
    {MF} {vr(vS[0],16)}, {ar(aK,4)}, {vr(vP[1],4)}, 0
    s_branch L_tm_s
L_tm_far:
    {MF} {vr(vS[0],16)}, {ar(aK,4)}, {vr(vP[1],4)}, {vr(vBF,16)}
    s_branch L_tm_s
L_tm_diag:
    {MF} {vr(vS[0],16)}, {ar(aK,4)}, {vr(vP[1],4)}, {vr(vBD,16)}
L_tm_s:
    s_nop 15
    s_cmp_eq_u32 s{sd_}, 0
    s_cbranch_scc0 L_tm_exp
""")
tm += [f"    v_max_f32 v{vT0}, v{vT0}, v{vS[0]+j}\n" for j in range(16)]
tm.append("    s_branch L_tm_next\nL_tm_exp:\n")
tm += [f"    v_sub_f32 v{vS[0]+j}, v{vS[0]+j}, v{vT0}\n" for j in range(16)]
tm += [f"    v_exp_f32 v{vS[0]+j}, v{vS[0]+j}\n" for j in range(16)]
tm.append("    s_nop 1\n")
tm += [f"    v_cvt_pk_bf16_f32 v{vP[0]+j}, v{vS[0]+2*j}, v{vS[0]+2*j+1}\n" for j in range(8)]
tm.append(f"""
    s_nop 1
    {MF} {vr(vS[1],16)}, {ar(aV,4)}, {vr(vP[0],4)}, {vr(vS[1],16)}
    {MF} {vr(vS[1],16)}, {ar(aV+4,4)}, {vr(vP[0]+4,4)}, {vr(vS[1],16)}
    s_nop 15
L_tm_next:
    s_add_u32 s{sc_}, s{sc_}, 1
    s_cmp_lt_u32 s{sc_}, 9
    s_cbranch_scc1 L_tm_blk
    s_cmp_eq_u32 s{sd_}, 0
    s_cbranch_scc0 L_tm_fin
    v_mov_b32 v{vT1}, v{vT0}
    s_nop 1
    v_permlane32_swap_b32 v{vT0}, v{vT1}
    s_nop 1
    v_max_f32 v{vT0}, v{vT0}, v{vT1}
    s_mov_b32 s{sd_}, 1
    s_branch L_tm_pass
L_tm_fin:
    s_cmp_eq_u32 s{sb_}, 0
    s_cbranch_scc0 L_tm_h1
""")
tm += [f"    v_mov_b32 v{vO[0]+j}, v{vS[1]+j}\n" for j in range(16)]
tm.append(f"    s_mov_b32 s{sb_}, 1\n    s_branch L_tm_head\nL_tm_h1:\n")
tm += [f"    v_mov_b32 v{vO[1]+j}, v{vS[1]+j}\n" for j in range(16)]
tm += ["    " + x + "\n" for x in norm(0)]
tm.append(f"    s_nop 1\n    s_branch L_att_done\n")
rare.append("".join(tm))

def oload(j2, tt):
    post = L(f"s_add_u32 s{sWS}, s{sWS}, 1024\ns_and_b32 s{sWS}, s{sWS}, 0x1fff")
    return [I(f"buffer_load_dwordx4 {vr(vOF+8*j2+4*tt,4)}, v{vOo+tt}, {srd(SWS)}, s{sWS} offen sc1")] + post
OF, OP, OC = O("oflag", 6), O("opoll", 12), O("ochk", 17)
if NW2V == 0: E(w2_reads(0))
S3 = Sched()
order = [(j, ct, tt) for j in range(22) for ct in range(2) for tt in range(2)]
order += [(j, ct, tt) for tt in range(2) for j in range(22, 30) for ct in range(2)]
def w2f(j, ct): return vr(W2V[2 * j + ct], 4) if j < NW2V else (ar(aW2 + 8 * (j & 1) + 4 * ct, 4) if j < 22 else ar(8 * (j - 22) + 4 * ct, 4))
for n, (j, ct, tt) in enumerate(order):
    acc = ar(aACC + 32 * ct + 16 * tt, 16)
    bb = ar(aH + 8 * j + 4 * tt, 4) if j < 22 else vr(vOF + 8 * (j - 22) + 4 * tt, 4)
    xr = None
    if ct == 0 and tt == 0 and j >= NW2V: xr = ar(aW2 + 8 * (j & 1), 8) if j < 22 else ar(8 * (j - 22), 8)
    aa = w2f(j, ct)
    S3.pos(I(f"{MF} {acc}, {aa}, {bb}, {'0' if j == 0 else acc}", xr=xr), 6, stampq((5,)) if (n % 8 == 0) else [])
for j in range(30):
    if NW2V <= j + 1 < 23: S3.spread(w2_reads(j + 1), 4 * j, 4 * j + 2, 0)
    if 23 <= j: S3.put(88 + 2 * (j - 24) if j > 23 else 86, w2_reads(j), 0)
    if j >= NW2V and j + 12 < 22:
        g = w2_dma(j + 12); S3.put(4 * j + 1, [g[0]], 1); S3.put(4 * j + 3, [g[1]], 1)
S3.pre[0] += L(f"s_lshl_b32 s{sM0K}, s{sW}, 14\ns_mul_i32 s{sT}, s{sW}, 10240\ns_sub_u32 s{sT}, s{sT}, {WB}\nv_add_u32 v{vPa}, s{sT}, v{vW3r}")
assert NW2V == 10
S3.spread(hl_late + flat([w2_dma(j) for j in range(22, 30)]), 0, O('hle', 44), 1, one)
ol = [oload(j2, tt) for tt in range(2) for j2 in range(8)]
if not SENT:
    S3.put(4 * OF, [flag(3, "o", vFl1)], 1)
    S3.put(4 * OP, [poll_issue(vPb)], 1)
    S3.put(4 * OC, [poll_check("o", SWS, vPoll, vPb)], 1)
    S3.spread(ol, 4 * OC + 1, 4 * O("oend", 24), 1, one)
else:
    OS, OE, OK_ = O("os", 10), O("oe", 18), O("ok", 21)
    S3.spread(ol, 4 * OS, 4 * OE, 1, one)
    for tt in range(2):
        rg = [vOF + 8 * j + 4 * tt for j in range(8)]
        chk = [f"v_max3_u32 v{vT0}, v{rg[0]}, v{rg[1]}, v{rg[2]}", f"v_max3_u32 v{vT0}, v{vT0}, v{rg[3]}, v{rg[4]}", f"v_max3_u32 v{vT0}, v{vT0}, v{rg[5]}, v{rg[6]}", f"v_max_u32 v{vT0}, v{vT0}, v{rg[7]}", f"v_cmp_eq_u32 vcc, -1, v{vT0}"]
        br = L(f"s_cbranch_vccnz L_spin_o{tt}"); br[-1].post = f"\nL_ok_o{tt}:"
        S3.put(87 if tt == 0 else 103, [L("\n".join(chk)) + br], 2)
        rare.append(f"""
L_spin_o{tt}:
    s_mov_b32 s{sSPIN}, {OPT['spin']}
    s_nop 7
L_spin2_o{tt}:
""" + "".join("    " + x.text + "\n" for g in ol[8*tt:8*tt+8] for x in g) + "    s_waitcnt vmcnt(0) lgkmcnt(0)\n" + "".join("    " + x + "\n" for x in chk) + f"""    s_nop 4
    s_cbranch_vccz L_ok_o{tt}
    s_sleep 1
    s_sub_u32 s{sSPIN}, s{sSPIN}, 1
    s_cmp_lg_u32 s{sSPIN}, 0
    s_cbranch_scc1 L_spin2_o{tt}
    s_endpgm
""")
    assert 4 * OE <= 87
S3.spread(L("\n".join(f"v_xor_b32 v{vU+i}, {32*i}, v{vRw}" for i in range(4)) + f"\nv_xor_b32 v{vU+4}, 16, v{vRr}"), 4, 8, 2)
def pwrite(ct, tt): return [I(f"ds_write_b128 v{vU+i}, {ar(aACC+32*ct+16*tt+4*i,4)} offset:{tt*8192+ct*128}") for i in range(4)]
R0 = 128
def fin_reads(tt): return [I(f"ds_read_b128 {vr(R0+8*p+4*n,4)}, v{vRr if n == 0 else vU+4} offset:{p*16384+tt*8192}") for p in range(4) for n in range(2)]
def fin_math(tt, pk):
    x = R0 + 64 + 8 * tt; o = []
    for p in range(4):
        if pk: o += [I(f"v_pk_add_f32 {vr(x+j,2)}, {vr(x+j,2)}, {vr(R0+8*p+j,2)}") for j in range(0, 8, 2)]
        else: o += [I(f"v_add_f32 v{x+j}, v{x+j}, v{R0+8*p+j}") for j in range(8)]
    o += [I(f"v_cvt_pk_bf16_f32 v{R0+32+4*tt+j}, v{x+2*j}, v{x+2*j+1}") for j in range(4)]
    o += [I(f"buffer_store_dwordx4 {vr(R0+32+4*tt,4)}, v{vOut+tt}, {srd(SOUT)}, 0 offen sc1")]
    return o
S3.spread(L("\n".join(f"v_lshlrev_b32 v{R0+64+2*j}, 16, v{vXres+j}\nv_and_b32 v{R0+65+2*j}, 0xffff0000, v{vXres+j}" for j in range(8))), 4 * 12, 4 * 16, 2)
FB = O("fb", 110)
S3.spread(pwrite(0, 0) + pwrite(1, 0), 105, 108, 0)
S3.pre[FB] += L("s_waitcnt lgkmcnt(0)\ns_barrier")
S3.spread(fin_reads(0), FB, FB + 2, 0)
S3.spread(fin_math(0, False), FB + 3, 120, 2)
if OPT["stamps"] == 13:
    for jj in range(29):
        k = nstamp[0]; nstamp[0] += 1
        S3.put(4 * jj + 2, [I(f"{TIMER} s[88:89]")], 0)
        S3.put(4 * jj + 4, [I(f"v_writelane_b32 v231, s88, {k}")], 2)
E(S3.emit())
stamp((1, 5))
E(pwrite(0, 1) + pwrite(1, 1))
E("s_waitcnt lgkmcnt(0)\ns_barrier")
E(fin_reads(1) + fin_math(1, True))
if OPT["stamps"]:
    stamp()
    E(f"s_waitcnt vmcnt(0)")
    stamp((1, 2, 3, 4, 5, 6, 7, 9, 10, 11, 12, 13, 15))
    E(f"s_lshl_b32 s{sT}, s2, 2\ns_add_u32 s{sT}, s{sT}, s{sW}\ns_lshl_b32 s{sT}, s{sT}, 7\ns_add_u32 s{sT}, s{sT}, {ST0}\nv_lshlrev_b32 v{vT0}, 2, v{vL}\nv_lshrrev_b32 v{vT1}, 5, v{vL}\nv_lshl_add_u32 v{vT0}, v{vT1}, 28, v{vT0}")
    E(f"buffer_store_dword v231, v{vT0}, {srd(SWS)}, s{sT} offen")
if O("xf", 0):
    E("s_waitcnt vmcnt(0)"); stamp()
    if OPT["xf"] == 99: E("s_mov_b32 s90, s88")
    E(("s_sub_u32 s90, s90, s92\ns_lshr_b32 s90, s90, 3" if O("xfc", 0) else "s_sub_u32 s90, s90, s88\ns_lshl_b32 s90, s90, 2") + "\ns_add_u32 s90, s90, 4000\nL_es:\ns_memrealtime s[4:5]\ns_waitcnt lgkmcnt(0)\ns_sub_u32 s4, s4, s88\ns_cmp_lt_u32 s4, s90\ns_cbranch_scc1 L_es")
E("L_end:\ns_endpgm")

lines = finalize(prog, verbose=True)
hdr = f"""; Fused LayerNorm + QKV/gate/up GEMM + sliding-window attention + GEGLU + down/out projection.
; @launch grid=(256,1,1) block=(256,1,1) lds={LDSSZ}
.amdgcn_target "amdgcn-amd-amdhsa--gfx950"
.text
.globl {KNAME}
.p2align 8
.type {KNAME},@function
{KNAME}:
"""
tail = f"""
L_table_end:
    s_endpgm
.section .rodata,"a"
.p2align 6
.amdhsa_kernel {KNAME}
  .amdhsa_next_free_vgpr 512
  .amdhsa_next_free_sgpr 102
  .amdhsa_accum_offset 256
  .amdhsa_group_segment_fixed_size 0
  .amdhsa_kernarg_size 80
  .amdhsa_user_sgpr_count 2
  .amdhsa_user_sgpr_kernarg_segment_ptr 1
  .amdhsa_system_sgpr_workgroup_id_x 1
.end_amdhsa_kernel
"""
open(sys.argv[1], "w").write(hdr + "\n".join(lines) + "\n" + "".join(rare) + tail)
```

```python
import sys, math, struct
from asmlib import I, Ins, finalize, weave, Sched

KNAME = "parallel_sum__sliding_block__glu_gated_geglu__prompt_kernel"
OPT = dict(stamps=0, spin=200000)
for a in sys.argv[2:]:
    k, v = a.split("="); OPT[k] = int(v)
def O(k, d): return OPT.get(k, d)

HUGE = 0x40000000
H0 = 4 << 20
HSTR = 88 * 1024
O0 = 10 << 20
FL0 = 12 << 20
ST0 = FL0 + (64 << 10)
SP0 = FL0 + (256 << 10)
WSSZ = 13 << 20
WB = 65536
CS1 = 0; C1STR = 520
STRIP = 49152
CS2 = 53248; CSTR = 1040
LDSSZ = 163840

STC = 4
STB = 18 + 2
sKV = [8, 9, 10]; sRHO, sWB, sWS, sAL, sWL, sMSK, sGp = 11, 12, 13, 14, 15, 16, 17
SX, SQ, SG, SU, SD, SO, SOUT, SWS, SDBG = 24, 28, 32, 36, 40, 44, 48, 52, 56
sW, sRB, sCB, sTB2, sNB, sT0, sT2, sH2, sTB = 3, 60, 61, 62, 63, 64, 65, 66, 67
sX, sQ, sG, sM0X, sM0W = 68, 69, 70, 71, 72
sT, sTb, sTc, sTd = 73, 74, 75, 76
sPK, sPH, sM0D, sD, sSPIN = 77, 78, 80, 81, 82
sPHI, sPH2, sC, sHUGE, sA = 83, 84, 85, 86, 87
sM0K = 79; sSP, sSG = 0, 1
STREG = list(range(90, 94)) + list(range(18, 24))
sWE = 94
sLH = [64, 65, 16]; sLW = [17, 14, 15]
def srd(n): return "s[%d:%d]" % (n, n + 3)
def vr(a, n): return "v[%d:%d]" % (a, a + n - 1)
def ar(a, n): return "a[%d:%d]" % (a, a + n - 1)

vL = 0; vT0, vT1, vT2 = 1, 2, 3
vXo = 4; vQo = 8; vGo = 10; vXr = 12; vXp = 16; vWr = 20
vK = [4, 8]
vBx = [12, 16]; vG = 20
vQo2 = 28; vGo2 = 30; vW2r = 32
vSum = 40; vCS1 = 44; vCS2 = 48
vL16, vKVst, vHst, vFl2, vCSw1, vCSw2, vPoll, vInit, vCSr, vSPo, vDo = 52, 53, 54, 55, 56, 57, 58, 59, 60, 61, 62
ACC1 = 64; ACC2 = 160
vXT = 160; vSL = 176
vKa, vVa, vVinc, vOst, vKVo, vPa, vPb, vW3r = 208, 209, 210, 211, 212, 213, 214, 215
vOut, vEo, vAo, vOo, vFl1, vRw, vRr, vPs, vQS = 217, 219, 221, 223, 225, 226, 227, 228, 229
vU = 232; vCSA = [240, 244, 248]
vXres = 28
vBF = 64; vBD = 80; vS = [96, 112]; vP = [128, 136]; vQ = 144; vO = [160, 176]
vOF = 64
aSTV = 200; aMSK = 216
aX = 0; aSEL = 128; aXP = 140; aWF = 152
aH = 0; aW2 = 176; aACC = 192; aK = 192; aV = 200

prog = []; rare = []
def L(txt, **kw): return [I(ln.strip(), **kw) for ln in txt.strip().split("\n") if ln.strip() and not ln.strip().startswith(";")]
def E(x, **kw):
    if isinstance(x, str): prog.extend(L(x, **kw))
    elif isinstance(x, Ins): prog.append(x)
    else: prog.extend(x)
def flat(g): return [x for y in g for x in y]
one = lambda g: 1
nstamp = [0]; xfc = [0]
TIMER = "s_memrealtime" if O("rt", 0) else "s_memtime"
def stampq(sets=(1,)):
    if O("xf", 0):
        if 1 in sets:
            xfc[0] += 1
            if xfc[0] == OPT["xf"]: return L("s_waitcnt lgkmcnt(0)\n%s s[90:91]\ns_waitcnt lgkmcnt(0)" % ("s_memtime" if O("xfc", 0) else "s_memrealtime"))
        return []
    if OPT["stamps"] == 14 and 1 in sets:
        k = nstamp[0]; nstamp[0] += 2
        return L("s_waitcnt lgkmcnt(0)\ns_memtime s[88:89]\ns_memrealtime s[90:91]\ns_waitcnt lgkmcnt(0)\nv_writelane_b32 v231, s88, %d\nv_writelane_b32 v231, s90, %d" % (k, k + 1))
    if OPT["stamps"] in sets:
        k = nstamp[0]; nstamp[0] += 1
        return L("s_waitcnt lgkmcnt(0)\n%s s[88:89]\ns_waitcnt lgkmcnt(0)\nv_writelane_b32 v231, s88, %d" % (TIMER, k))
    return []
def stamp(sets=(1,)): E(stampq(sets))
def fx(f): return "0x%08x" % struct.unpack("<I", struct.pack("<f", f))[0]
MF = "v_mfma_f32_32x32x16_bf16"; MS = "v_mfma_f32_16x16x32_bf16"
HOME = dict(Ka=vKa, Va=vVa, Vinc=vVinc, Ost=vOst, KVo=vKVo, Pa=vPa, Pb=vPb, W3r=vW3r, W3s=vW3r+1, Out=vOut, Out1=vOut+1, Eo=vEo, Eo1=vEo+1, Ao=vAo, Ao1=vAo+1, Oo=vOo, Oo1=vOo+1, Fl1=vFl1, Rw=vRw, Rr=vRr)
def park(name, src): return f"v_mov_b32 v{HOME[name]}, {src}\n"
def dma(voff, S, soff, imm, tag, flags="", need=None):
    o = (" offset:%d" % imm) if imm else ""
    return I(f"buffer_load_dwordx4 v{voff}, {srd(S)}, {soff} offen{o} {flags} lds", tag=tag, need=need)
def glue(q):
    out = []; cur = []
    for n, x in enumerate(q):
        if isinstance(x, list):
            assert not cur
            out.append(x); continue
        cur.append(x)
        nxt = q[n + 1] if n + 1 < len(q) else None
        if x.op.startswith("s_cmp") or (nxt is not None and not isinstance(nxt, list) and nxt.op.startswith("s_cselect")): continue
        out.append(cur); cur = []
    if cur: out.append(cur)
    return out

E("""
s_cmp_ge_u32 s2, 256
s_cbranch_scc1 L_end
s_load_dwordx4 s[4:7], s[0:1], 0
s_load_dwordx2 s[8:9], s[0:1], 16
s_load_dwordx4 s[12:15], s[0:1], 32
s_load_dwordx4 s[16:19], s[0:1], 48
s_load_dwordx4 s[20:23], s[0:1], 64
""")
if OPT["stamps"]: E(TIMER + " s[88:89]")
if OPT["stamps"] == 14: E("s_memrealtime s[90:91]")
if O("xf", 0): E("s_memrealtime s[88:89]\ns_memtime s[92:93]")
def ctouch(vtid):
    return L(f"""s_getpc_b64 s[40:41]
s_mov_b32 s42, L_table_end-.
s_mov_b32 s43, 0x20000
s_lshr_b32 s44, s2, 3
s_lshl_b32 s44, s44, 11
v_and_b32 v{vU}, 15, v{vtid}
v_lshrrev_b32 v{vU+1}, 4, v{vtid}
v_lshlrev_b32 v{vU}, 7, v{vU}
v_lshl_add_u32 v{vU}, v{vU+1}, 24, v{vU}
buffer_load_dword v255, v{vU}, s[40:43], s44 offen""")
if O("ctouch", 1) == 1: E(ctouch(0))
else: E(f"v_mov_b32 v{vU+2}, v0")
E(f"""
v_lshrrev_b32 v{vT0}, 6, v0
v_and_b32 v{vL}, 63, v0
v_readfirstlane_b32 s{sW}, v{vT0}
s_and_b32 s{sT}, s2, 7
s_lshr_b32 s{sTb}, s2, 3
s_lshr_b32 s{sTc}, s{sT}, 2
s_lshl_b32 s{sRB}, s{sTc}, 3
s_and_b32 s{sTd}, s{sTb}, 7
s_add_u32 s{sRB}, s{sRB}, s{sTd}
s_and_b32 s{sCB}, s{sT}, 3
s_lshl_b32 s{sCB}, s{sCB}, 2
s_lshr_b32 s{sTd}, s{sTb}, 3
s_add_u32 s{sCB}, s{sCB}, s{sTd}
s_lshl_b32 s{sTB2}, s{sT}, 2
s_and_b32 s{sTd}, s{sTb}, 3
s_add_u32 s{sTB2}, s{sTB2}, s{sTd}
s_lshr_b32 s{sNB}, s{sTb}, 2
""")
if O("phi", 2) == 1: E(f"s_lshl_b32 s{sPHI}, s{sCB}, 1\ns_add_u32 s{sPHI}, s{sPHI}, s{sRB}\ns_and_b32 s{sPHI}, s{sPHI}, 7")
elif O("phi", 2) == 2: E(f"s_add_u32 s{sPHI}, s{sCB}, s{sRB}\ns_and_b32 s{sPHI}, s{sPHI}, 3\ns_lshl_b32 s{sPHI}, s{sPHI}, 1")
elif O("phi", 2) == 5: E(f"s_add_u32 s{sPHI}, s{sCB}, s{sRB}\ns_and_b32 s{sT}, s{sPHI}, 2\ns_and_b32 s{sPHI}, s{sPHI}, 1\ns_lshl_b32 s{sT}, s{sT}, 1\ns_add_u32 s{sPHI}, s{sPHI}, s{sT}")
elif O("phi", 2) == 6: E(f"s_add_u32 s{sPHI}, s{sCB}, s{sRB}\ns_and_b32 s{sPHI}, s{sPHI}, 3")
elif O("phi", 2) == 3: E(f"s_add_u32 s{sPHI}, s{sCB}, s{sRB}\ns_and_b32 s{sPHI}, s{sPHI}, 1\ns_lshl_b32 s{sPHI}, s{sPHI}, 2")
else: E(f"s_mov_b32 s{sPHI}, 0")
E(f"""
s_lshl_b32 s{sTB}, s{sRB}, 2
s_add_u32 s{sTB}, s{sTB}, s{sW}
s_mul_i32 s{sT0}, s{sCB}, 3
s_lshr_b32 s{sT}, s{sCB}, 2
s_sub_u32 s{sT0}, s{sT0}, s{sT}
s_min_u32 s{sT0}, s{sT0}, 41
s_lshl_b32 s{sM0X}, s{sW}, 12
s_lshl_b32 s{sM0W}, s{sW}, 11
s_add_u32 s{sM0W}, s{sM0W}, {WB}
s_lshl_b32 s{sT}, s{sTB}, 15
v_lshrrev_b32 v{vT0}, 3, v{vL}
v_lshlrev_b32 v{vT0}, 10, v{vT0}
v_add_u32 v{vT0}, s{sT}, v{vT0}
v_and_b32 v{vT1}, 7, v{vL}
v_lshrrev_b32 v{vT2}, 4, v{vL}
v_xor_b32 v{vT1}, v{vT1}, v{vT2}
v_lshl_add_u32 v{vXo}, v{vT1}, 4, v{vT0}
v_xor_b32 v{vT1}, 4, v{vT1}
v_lshl_add_u32 v{vXo+1}, v{vT1}, 4, v{vT0}
v_add_u32 v{vXo+1}, {7*1024}, v{vXo+1}
v_add_u32 v{vXo+2}, {14*1024}, v{vXo}
v_add_u32 v{vXo+3}, {14*1024}, v{vXo+1}
v_lshrrev_b32 v{vT0}, 5, v{vL}
v_bfe_u32 v{vT1}, v{vL}, 2, 2
v_lshl_add_u32 v{vT0}, v{vT0}, 2, v{vT1}
v_bfe_u32 v{vT1}, v{vL}, 4, 1
v_and_b32 v{vT2}, 3, v{vL}
v_lshlrev_b32 v{vT2}, 4, v{vT2}
v_lshl_add_u32 v{vT1}, v{vT1}, 6, v{vT2}
v_lshl_add_u32 v{vDo}, v{vT0}, 10, v{vT1}
s_lshl_b32 s{sT}, s{sW}, 4
v_add_u32 v{vT0}, s{sT}, v{vT0}
s_and_b32 s{sT}, s{sCB}, 1
s_add_u32 s{sT}, s{sT}, 1
s_lshl_b32 s{sT}, s{sT}, 10
s_lshr_b32 s{sTb}, s{sCB}, 1
s_lshl_b32 s{sTb}, s{sTb}, 7
s_add_u32 s{sT}, s{sT}, s{sTb}
v_mul_u32_u24 v{vQo}, 3072, v{vT0}
v_add3_u32 v{vQo}, v{vQo}, v{vT1}, s{sT}
v_add_u32 v{vQo+1}, {8*3072-1024}, v{vQo}
s_lshl_b32 s{sT}, s{sT0}, 6
v_mul_u32_u24 v{vGo}, 2752, v{vT0}
v_add3_u32 v{vGo}, v{vGo}, v{vT1}, s{sT}
v_add_u32 v{vGo+1}, {8*2752-1024}, v{vGo}
""")
def mksrd(n, p, size): return f"s_mov_b32 s{n}, s{p}\ns_mov_b32 s{n+1}, s{p+1}\ns_mov_b32 s{n+2}, {size}\ns_mov_b32 s{n+3}, 0x20000\n"
E(mksrd(SX, 4, 2097152) + mksrd(SQ, 6, 1572864) + mksrd(SG, 12, 1409024) + mksrd(SU, 14, 1409024))
if OPT["stamps"]:
    E("v_mov_b32 v231, -1\nv_writelane_b32 v231, s88, 0"); nstamp[0] = 1
    if OPT["stamps"] == 14: E("v_writelane_b32 v231, s90, 1"); nstamp[0] = 2

def p1_dma(c):
    sl = c & 3; t = "c%d" % c
    g = []
    g.append(L(f"s_add_u32 s{sC}, s{sPHI}, {c}\ns_and_b32 s{sC}, s{sC}, 7\ns_add_u32 m0, s{sM0X}, {sl*16384}\ns_lshl_b32 s{sX}, s{sC}, 7") + [dma(vXo, SX, f"s{sX}", 0, t)])
    g += [[dma(vXo + i, SX, f"s{sX}", 1024 * i, t)] for i in range(1, 4)]
    g.append(L(f"s_add_u32 m0, s{sM0W}, {sl*24576}\ns_mul_i32 s{sQ}, s{sC}, 196608") + [dma(vQo, SQ, f"s{sQ}", 0, t)])
    g.append([dma(vQo + 1, SQ, f"s{sQ}", 1024, t), I(f"s_add_u32 m0, s{sM0W}, {sl*24576+8192}")])
    g.append(L(f"s_mul_i32 s{sG}, s{sC}, 176128") + [dma(vGo, SG, f"s{sG}", 0, t)])
    g.append([dma(vGo + 1, SG, f"s{sG}", 1024, t), I(f"s_add_u32 m0, s{sM0W}, {sl*24576+16384}")])
    g.append([dma(vGo, SU, f"s{sG}", 0, t)])
    g.append([dma(vGo + 1, SU, f"s{sG}", 1024, t)])
    return g
def p2_dma(p):
    t = "p%d" % p
    g = []
    g.append(L(f"s_add_u32 s{sC}, s{sPH2}, {2*p}\ns_and_b32 s{sC}, s{sC}, 7\ns_add_u32 m0, s{sM0W}, {p*24576}\ns_mul_i32 s{sQ}, s{sC}, 196608") + [dma(vQo2, SQ, f"s{sQ}", 0, t)])
    g.append([dma(vQo2 + 1, SQ, f"s{sQ}", 1024, t), I(f"s_add_u32 m0, s{sM0W}, {p*24576+8192}")])
    g.append(L(f"s_mul_i32 s{sG}, s{sC}, 176128") + [dma(vGo2, SG, f"s{sG}", 0, t)])
    g.append([dma(vGo2 + 1, SG, f"s{sG}", 1024, t), I(f"s_add_u32 m0, s{sM0W}, {p*24576+16384}")])
    g.append([dma(vGo2, SU, f"s{sG}", 0, t)])
    g.append([dma(vGo2 + 1, SU, f"s{sG}", 1024, t)])
    return g

E(mksrd(SWS, 22, WSSZ) + mksrd(SDBG, 20, 256) + f"""
s_mov_b32 s{sHUGE}, {HUGE}
v_lshlrev_b32 v{vL16}, 4, v{vL}
s_mul_i32 s{sT}, s{sW}, 10240
s_add_u32 s{sT}, s{sT}, {FL0}
s_cmp_lg_u32 s2, 0
s_cselect_b32 s{sT}, s{sHUGE}, s{sT}
s_cbranch_scc1 L_nozero
s_add_u32 s{sTb}, s{sT}, 4096
s_add_u32 s{sTc}, s{sT}, 8192
v_mov_b32 v{vXT}, 0
v_mov_b32 v{vXT+1}, 0
v_mov_b32 v{vXT+2}, 0
v_mov_b32 v{vXT+3}, 0
""")
for i in range(10):
    E(I(f"buffer_store_dwordx4 {vr(vXT,4)}, v{vL16}, {srd(SWS)}, s{[sT, sTb, sTc][i>>2]} offen offset:{1024*(i&3)} sc1", tag="zero"))
prog[-1].post = "\nL_nozero:"
stamp((2, 15))
if O("tlb", 0):
    E(f"""s_cmp_eq_u32 s{sW}, 1
s_cselect_b32 s44, s{SQ}, s{SX}
s_cselect_b32 s45, s{SQ+1}, s{SX+1}
s_cmp_eq_u32 s{sW}, 2
s_cselect_b32 s44, s{SG}, s44
s_cselect_b32 s45, s{SG+1}, s45
s_cmp_eq_u32 s{sW}, 3
s_cselect_b32 s44, s{SU}, s44
s_cselect_b32 s45, s{SU+1}, s45
s_mov_b32 s46, 1409024
s_mov_b32 s47, 0x20000
v_lshlrev_b32 v{vT0}, {O("tlbs", 24)}, v{vL}
buffer_load_dword v{vXT+7}, v{vT0}, s[44:47], 0 offen""")
g0 = p1_dma(0)
CT = O("ctouch", 1)
NI = O("ni", 9)
if O("c0o", 0):
    t = "c0"
    mk = lambda m, vo, S, so, imm: L(f"s_add_u32 m0, s{m[0]}, {m[1]}\ns_nop 0") + [dma(vo, S, f"s{so}", imm, t)]
    E(f"s_lshl_b32 s{sX}, s{sPHI}, 7\ns_mul_i32 s{sQ}, s{sPHI}, 196608\ns_mul_i32 s{sG}, s{sPHI}, 176128")
    X_, K_, G_, U_ = (sM0X, 0), (sM0W, 0), (sM0W, 8192), (sM0W, 16384)
    g0 = [mk(X_, vXo, SX, sX, 0), mk(G_, vGo, SG, sG, 0), mk(U_, vGo, SU, sG, 0), mk(K_, vQo, SQ, sQ, 0), mk(X_, vXo + 1, SX, sX, 1024), [dma(vXo + 2, SX, f"s{sX}", 2048, t)], [dma(vXo + 3, SX, f"s{sX}", 3072, t)],
          mk(K_, vQo + 1, SQ, sQ, 1024), mk(G_, vGo + 1, SG, sG, 1024), mk(U_, vGo + 1, SU, sG, 1024)]
if CT >= 2: E(flat(g0[:CT - 1]) + ctouch(vU + 2) + flat(g0[CT - 1:NI]))
else: E(flat(g0[:NI]))
g0 = g0[NI:]
if OPT["stamps"] == 15:
    stamp((15,))
    for i in range(NI):
        E(f"s_waitcnt vmcnt({NI-1-i})"); stamp((15,))
stamp((2,))
init_mark = len(prog)
E(mksrd(SD, 16, 1409024) + mksrd(SO, 8, 524288) + mksrd(SOUT, 18, 2097152))
ann = L(f"""
s_cmp_lg_u32 s2, 0
s_cselect_b32 s{sT}, s{sHUGE}, 0
s_lshl_b32 s{sTb}, s{sW}, 2
s_add_u32 s{sT}, s{sT}, s{sTb}
v_mov_b32 v{vT0}, 1
v_lshlrev_b32 v{vT1}, 8, v{vL}
""") + [I(f"buffer_store_dword v{vT0}, v{vT1}, {srd(SDBG)}, s{sT} offen sc1", need=["zero"])]
E(f"""
s_lshr_b32 s{sPH2}, s{sW}, 1
s_add_u32 s{sPH2}, s{sPH2}, s{sPHI}
s_lshr_b32 s{sT}, 0xc888, s{sCB}
s_and_b32 s{sT}, s{sT}, 1
s_cselect_b32 s{sMSK}, s{sHUGE}, 0
s_add_u32 s{sT2}, s{sT0}, 2
""")
if O("w2m", 0) == 0:
    w2touch = L(f"""s_mul_i32 s{sT}, s2, 3
s_add_u32 s{sT}, s{sT}, s{sW}
s_mov_b32 s{STC+3}, 0x20000
s_cmp_eq_u32 s{sW}, 3
s_cselect_b32 s{sT}, s2, s{sT}
s_cselect_b32 s{STC}, s{SO}, s{SD}
s_cselect_b32 s{STC+1}, s{SO+1}, s{SD+1}
s_cselect_b32 s{STC+2}, s{SO+2}, s{SD+2}
s_lshl_b32 s{sT}, s{sT}, 11
v_and_b32 v{vT0}, 15, v{vL}
v_lshlrev_b32 v{vT0}, 7, v{vT0}
v_lshrrev_b32 v{vT1}, 4, v{vL}
v_lshl_add_u32 v{vT0}, v{vT1}, 28, v{vT0}
buffer_load_dword v{vPoll}, v{vT0}, {srd(STC)}, s{sT} offen sc1""")
else:
    w2touch = L(f"""s_lshl_b32 s{sT}, s2, 1
s_and_b32 s{sTb}, s{sW}, 1
s_add_u32 s{sT}, s{sT}, s{sTb}
s_lshr_b32 s{sTb}, s{sT}, 5
s_mul_i32 s{sTb}, s{sTb}, 98304
s_add_u32 s{sTb}, s{sTb}, 65536
s_and_b32 s{STC}, s{sT}, 31
s_lshl_b32 s{STC}, s{STC}, 10
s_add_u32 s{sTb}, s{sTb}, s{STC}
s_lshl_b32 s{sT}, s{sT}, 10
s_mov_b32 s{STC+3}, 0x20000
s_cmp_lt_u32 s{sW}, 2
s_cselect_b32 s{sT}, s{sT}, s{sTb}
s_cselect_b32 s{STC}, s{SO}, s{SD}
s_cselect_b32 s{STC+1}, s{SO+1}, s{SD+1}
s_cselect_b32 s{STC+2}, s{SO+2}, s{SD+2}
v_and_b32 v{vT0}, 7, v{vL}
v_lshlrev_b32 v{vT0}, 7, v{vT0}
v_lshrrev_b32 v{vT1}, 3, v{vL}
v_lshl_add_u32 v{vT0}, v{vT1}, 27, v{vT0}
buffer_load_dword v{vPoll}, v{vT0}, {srd(STC)}, s{sT} offen sc1""")
E(f"""
v_and_b32 v{vT0}, 31, v{vL}
v_lshrrev_b32 v{vT1}, 5, v{vL}
v_bfe_u32 v{vT2}, v{vL}, 1, 3
v_xor_b32 v{vT2}, v{vT2}, v{vT1}
v_lshlrev_b32 v{vT0}, 7, v{vT0}
v_lshl_add_u32 v{vT0}, v{vT2}, 4, v{vT0}
v_add_u32 v{vT0}, s{sM0X}, v{vT0}
""")
for s in range(4):
    E(f"s_xor_b32 s{sT}, s{sW}, {s}\ns_lshl_b32 s{sT}, s{sT}, 5\nv_xor_b32 v{vXr+s}, s{sT}, v{vT0}\nv_xor_b32 v{vXp+s}, 4096, v{vXr+s}")
E(f"""
v_bfe_u32 v{vT2}, v{vL}, 2, 2
v_lshlrev_b32 v{vT2}, 6, v{vT2}
v_bfe_u32 v{vT0}, v{vL}, 4, 1
v_lshl_add_u32 v{vT2}, v{vT0}, 5, v{vT2}
v_and_b32 v{vT0}, 3, v{vL}
v_lshl_add_u32 v{vT2}, v{vT0}, 3, v{vT2}
v_lshl_add_u32 v{vT0}, v{vT1}, 10, v{vT2}
v_lshl_add_u32 v{vT2}, v{vT1}, 9, v{vT2}
s_and_b32 s{sTc}, s{sW}, 1
s_lshl_b32 s{sTc}, s{sTc}, 8
s_add_u32 s{sTc}, s{sTc}, {WB}
s_mul_i32 s{sT}, s{sW}, 6144
s_add_u32 s{sM0D}, s{sT}, {WB}
v_add_u32 v{vT1}, s{sM0D}, v{vT2}
{park("W3r", f"v{vT1}")}v_add_u32 v{vT1}, 49152, v{vT1}
{park("W3s", f"v{vT1}")}
""")
for s in range(4):
    E(f"""
s_xor_b32 s{sT}, s{sW}, {s}
s_lshl_b32 s{sTb}, s{sT}, 11
s_add_u32 s{sTb}, s{sTb}, s{sTc}
v_add_u32 v{vWr+2*s}, s{sTb}, v{vT0}
v_add_u32 v{vWr+2*s+1}, 49152, v{vWr+2*s}
s_lshl_b32 s{sTb}, s{sT}, 10
s_add_u32 s{sTb}, s{sTb}, {WB}
v_add_u32 v{vW2r+2*s}, s{sTb}, v{vT2}
v_add_u32 v{vW2r+2*s+1}, 49152, v{vW2r+2*s}
""")
E(f"""
v_lshrrev_b32 v{vT0}, 2, v{vL}
s_and_b32 s{sT}, s{sW}, 1
s_lshl_b32 s{sT}, s{sT}, 5
v_add_u32 v{vT0}, s{sT}, v{vT0}
v_and_b32 v{vT1}, 3, v{vL}
v_lshlrev_b32 v{vT1}, 4, v{vT1}
s_lshl_b32 s{sT}, s{sCB}, 6
v_mul_u32_u24 v{vQo2}, 3072, v{vT0}
v_add3_u32 v{vQo2}, v{vQo2}, v{vT1}, s{sT}
v_add_u32 v{vQo2+1}, {16*3072-1024}, v{vQo2}
s_lshl_b32 s{sT}, s{sT2}, 6
v_mul_u32_u24 v{vGo2}, 2752, v{vT0}
v_add3_u32 v{vGo2}, v{vGo2}, v{vT1}, s{sT}
v_add_u32 v{vGo2}, s{sMSK}, v{vGo2}
v_add_u32 v{vGo2+1}, {16*2752-1024}, v{vGo2}
v_and_b32 v{vT0}, 15, v{vL}
v_bfe_u32 v{vT1}, v{vL}, 4, 1
v_sub_u32 v{vT0}, v{vT0}, v{vT1}
v_mov_b32 v{vT1}, 0x3f803f80
""")
for t in range(3):
    E(f"v_cmp_eq_u32 vcc, {2*t}, v{vT0}\nv_cndmask_b32 v{vT2}, 0, v{vT1}, vcc")
    E("\n".join(f"v_accvgpr_write_b32 a{aSEL+4*t+j}, v{vT2}" for j in range(4)))
E(f"""
s_lshl_b32 s{sT}, s{sRB}, 2
s_sub_i32 s{sT}, 8, s{sT}
v_and_b32 v{vT0}, 7, v{vL}
v_lshlrev_b32 v{vT0}, 1, v{vT0}
v_mov_b32 v{vT1}, 0x3f80
v_cmp_le_i32 vcc, s{sT}, v{vT0}
v_cndmask_b32 v{vT2}, 0, v{vT1}, vcc
v_accvgpr_write_b32 a{aSTV}, v{vT2}
v_accvgpr_write_b32 a{aSTV+1}, 0
v_add_u32 v{vT0}, 1, v{vT0}
v_cmp_le_i32 vcc, s{sT}, v{vT0}
v_cndmask_b32 v{vT2}, 0, v{vT1}, vcc
v_cmp_ne_u32 vcc, 15, v{vT0}
v_cndmask_b32 v{vT2}, 0, v{vT2}, vcc
v_accvgpr_write_b32 a{aSTV+2}, v{vT2}
v_accvgpr_write_b32 a{aSTV+3}, 0
v_lshlrev_b32 v{vT0}, 3, v{vL}
s_and_b32 s{sTc}, s{sW}, 1
s_lshr_b32 s{sT}, s{sTB}, 1
s_lshl_b32 s{sTb}, s{sT}, 13
s_add_u32 s{sTb}, s{sTb}, {SP0}
s_lshl_b32 s{sTd}, s{sTc}, 8
v_xor_b32 v{vT1}, s{sTd}, v{vT0}
v_add_u32 v{vSPo}, s{sTb}, v{vT1}
s_lshl_b32 s{sSP}, s{sCB}, 9
s_and_b32 s{sSG}, s{sCB}, 12
s_lshl_b32 s{sSG}, s{sSG}, 9
s_lshl_b32 s{sT}, s{sT}, 8
s_and_b32 s{sTb}, s{sCB}, 12
s_lshl_b32 s{sTb}, s{sTb}, 3
s_add_u32 s{sT}, s{sT}, s{sTb}
s_add_u32 s{sT}, s{sT}, {FL0+4*8192}
v_bfe_u32 v{vT1}, v{vL}, 2, 1
v_and_b32 v{vT2}, 3, v{vL}
v_lshlrev_b32 v{vT2}, 3, v{vT2}
v_lshl_add_u32 v{vT1}, v{vT1}, 7, v{vT2}
v_add_u32 v{vPs}, s{sT}, v{vT1}
s_and_b32 s{sTc}, s{sW}, 1
s_mul_i32 s{sT}, s{sTc}, {8*C1STR}
v_add_u32 v{vCSr}, s{sT}, v{vT0}
s_lshr_b32 s{sTb}, s{sW}, 1
s_lshl_b32 s{sTd}, s{sTb}, 8
s_add_u32 s{sT}, s{sT}, s{sTd}
v_bfe_u32 v{vT0}, v{vL}, 1, 3
v_and_b32 v{vT1}, 1, v{vL}
v_lshrrev_b32 v{vT2}, 4, v{vL}
v_lshl_add_u32 v{vT1}, v{vT1}, 2, v{vT2}
v_mul_u32_u24 v{vT2}, {C1STR}, v{vT0}
v_lshl_add_u32 v{vT2}, v{vT1}, 5, v{vT2}
v_add_u32 v{vCSw1}, s{sT}, v{vT2}
s_lshl_b32 s{sT}, s{sTb}, 9
s_lshl_b32 s{sTd}, s{sTc}, 3
s_add_u32 s{sT}, s{sT}, s{sTd}
v_mul_u32_u24 v{vT2}, {CSTR}, v{vT0}
v_lshl_add_u32 v{vT2}, v{vT1}, 6, v{vT2}
v_add_u32 v{vCSw2}, s{sT}, v{vT2}
v_and_b32 v{vT0}, 31, v{vL}
v_lshrrev_b32 v{vT1}, 5, v{vL}
v_lshl_add_u32 v{vT0}, v{vT0}, 1, v{vT1}
v_lshlrev_b32 v{vT0}, 4, v{vT0}
v_add_u32 v{vT0}, 2048, v{vT0}
s_and_b32 s{sT}, s{sCB}, 1
s_cmp_eq_u32 s{sT}, 1
s_cselect_b64 vcc, -1, 0
v_cndmask_b32 v{vKVst}, v{vL16}, v{vT0}, vcc
s_and_b32 s{sT}, s{sCB}, 14
s_add_u32 s{sT}, s{sT}, s{sTc}
s_lshl_b32 s{sT}, s{sT}, 18
s_and_b32 s{sTb}, s{sTB}, -2
s_lshl_b32 s{sTd}, s{sTb}, 12
s_add_u32 s{sT}, s{sT}, s{sTd}
v_add_u32 v{vKVst}, s{sT}, v{vKVst}
s_lshl_b32 s{sPK}, s{sTc}, 12
s_mul_i32 s{sT}, s{sTb}, {HSTR}
s_add_u32 s{sT}, s{sT}, {H0}
s_lshl_b32 s{sTd}, s{sCB}, 12
s_add_u32 s{sT}, s{sT}, s{sTd}
s_lshl_b32 s{sTd}, s{sTc}, 11
s_add_u32 s{sT}, s{sT}, s{sTd}
v_add_u32 v{vHst}, s{sT}, v{vL16}
s_mul_i32 s{sPH}, s{sTc}, {HSTR}
s_lshr_b32 s{sT}, s{sCB}, 2
s_mul_i32 s{sT}, s{sT}, 6144
s_and_b32 s{sH2}, s{sCB}, 3
s_lshl_b32 s{sTd}, s{sH2}, 11
s_add_u32 s{sT}, s{sT}, s{sTd}
s_add_u32 s{sT}, s{sT}, 65536
s_add_u32 s{sT}, s{sT}, s{sPH}
s_lshl_b32 s{sTd}, s{sCB}, 12
s_sub_u32 s{sT}, s{sT}, s{sTd}
s_lshl_b32 s{sTd}, s{sTc}, 11
s_sub_u32 s{sT}, s{sT}, s{sTd}
s_cmp_lt_u32 s{sH2}, 3
s_cselect_b32 s{sH2}, s{sT}, s{sHUGE}
s_lshl_b32 s{sT}, s{sTb}, 7
s_lshl_b32 s{sTd}, s{sCB}, 3
s_add_u32 s{sTd}, s{sTd}, {FL0}
s_add_u32 s{sT}, s{sT}, s{sTd}
s_lshl_b32 s{sTb}, s{sTc}, 2
s_add_u32 s{sT}, s{sT}, s{sTb}
v_lshlrev_b32 v{vT0}, 7, v{vL}
v_add_u32 v{vT0}, s{sT}, v{vT0}
v_mov_b32 v{vT1}, s{sHUGE}
v_cmp_gt_u32 vcc, 2, v{vL}
v_cndmask_b32 v{vFl2}, v{vT1}, v{vT0}, vcc
s_lshl_b32 s{sT}, s{sTB}, 7
s_add_u32 s{sT}, s{sT}, s{sTd}
v_mov_b32 v{vT0}, s{sT}
v_cmp_eq_u32 vcc, 0, v{vL}
v_cndmask_b32 v{vT0}, v{vT1}, v{vT0}, vcc
{park("Fl1", f"v{vT0}")}
v_mov_b32 v{vSum}, 0
v_mov_b32 v{vSum+1}, 0
v_mov_b32 v{vSum+2}, 0
v_mov_b32 v{vSum+3}, 0
v_mov_b32 v{vCSA[0]+2}, 0
v_mov_b32 v{vCSA[0]+3}, 0
v_mov_b32 v{vCSA[1]+2}, 0
v_mov_b32 v{vCSA[1]+3}, 0
v_mov_b32 v{vCSA[2]+2}, 0
v_mov_b32 v{vCSA[2]+3}, 0
s_lshl_b32 s{sT}, s{sNB}, 7
v_add_u32 v{vDo}, s{sT}, v{vDo}
v_add_u32 v{vDo+1}, {7*1024}, v{vDo}
s_lshl_b32 s{sT}, s{sW}, 17
v_add_u32 v{vT0}, s{sT}, v{vDo}
{park("Eo", f"v{vT0}")}v_add_u32 v{vT0}, {7*1024}, v{vT0}
{park("Eo1", f"v{vT0}")}
s_mul_i32 s{sT}, s{sTB2}, {2*HSTR}
s_lshl_b32 s{sTb}, s{sW}, 14
s_add_u32 s{sT}, s{sT}, s{sTb}
s_add_u32 s{sT}, s{sT}, {H0}
v_add_u32 v{vT0}, s{sT}, v{vL16}
{park("Ao", f"v{vT0}")}v_add_u32 v{vT0}, {HSTR}, v{vT0}
{park("Ao1", f"v{vT0}")}
s_lshl_b32 s{sT}, s{sTB2}, 16
s_lshl_b32 s{sTb}, s{sW}, 13
s_add_u32 s{sT}, s{sT}, s{sTb}
s_add_u32 s{sT}, s{sT}, {O0}
v_add_u32 v{vT0}, s{sT}, v{vL16}
{park("Oo", f"v{vT0}")}v_add_u32 v{vT0}, 32768, v{vT0}
{park("Oo1", f"v{vT0}")}
s_lshl_b32 s{sRHO}, s{sTB2}, 1
s_add_u32 s{sRHO}, s{sRHO}, s{sNB}
s_and_b32 s{sRHO}, s{sRHO}, {7 if O("rot", 1) else 0}
s_mul_i32 s{sWB}, s{sW}, 11
""")
for q in range(8):
    E(f"""s_add_u32 s{sT}, s{sRHO}, {q}
s_bfe_u32 s{sTb}, s{sT}, 0x20001
s_mul_i32 s{sTb}, s{sTb}, 3
s_add_u32 s{sTb}, s{sTb}, s{sWB}
s_min_u32 s{sTb}, s{sTb}, 41
s_and_b32 s{sT}, s{sT}, 1
s_add_u32 s{sT}, s{sT}, s{sTb}
s_lshl_b32 s{sWE+q}, s{sT}, 15""")
E(f"""s_add_u32 s{sT}, s{sTB2}, s{sNB}
s_mul_i32 s{sTb}, s{sT}, 43
s_lshr_b32 s{sTb}, s{sTb}, 7
s_mul_i32 s{sTb}, s{sTb}, 3
s_sub_u32 s{sT}, s{sT}, s{sTb}
s_and_b32 s{sT}, s{sT}, {3 if O("rot", 1) else 0}
s_mul_i32 s{sTc}, s{sW}, 10240
s_sub_u32 s{sTc}, 65536, s{sTc}
s_mul_i32 s{sTd}, s{sW}, {11*32768}
s_add_u32 s{sTd}, s{sTd}, 65536""")
for q in range(3):
    E(f"""s_lshl_b32 s{sTb}, s{sT}, 11
s_add_u32 s{sLH[q]}, s{sTb}, s{sTc}
s_mul_i32 s{sTb}, s{sT}, 98304
s_add_u32 s{sLW[q]}, s{sTb}, s{sTd}
s_add_u32 s{sT}, s{sT}, 1
s_cmp_eq_u32 s{sT}, 3
s_cselect_b32 s{sT}, 0, s{sT}""")
E(f"""
s_lshl_b32 s{sA}, s{sRHO}, 11
s_lshl_b32 s{sWB}, s{sRHO}, 14
s_lshl_b32 s{sWS}, s{sRHO}, 10
v_lshrrev_b32 v{vT0}, 3, v{vL}
v_and_b32 v{vT1}, 7, v{vL}
s_lshl_b32 s{sT}, s{sTB2}, 6
s_lshl_b32 s{sTb}, s{sW}, 3
s_add_u32 s{sT}, s{sT}, s{sTb}
s_lshl_b32 s{sT}, s{sT}, 10
s_lshl_b32 s{sTb}, s{sNB}, 7
s_add_u32 s{sT}, s{sT}, s{sTb}
v_lshlrev_b32 v{vT2}, 10, v{vT0}
v_lshl_add_u32 v{vT2}, v{vT1}, 4, v{vT2}
v_add_u32 v{vT2}, s{sT}, v{vT2}
{park("Out", f"v{vT2}")}v_add_u32 v{vT2}, 32768, v{vT2}
{park("Out1", f"v{vT2}")}v_lshlrev_b32 v{vT1}, 1, v{vT1}
v_xor_b32 v{vT1}, v{vT1}, v{vT0}
v_lshlrev_b32 v{vT0}, 8, v{vT0}
v_lshl_add_u32 v{vT0}, v{vT1}, 4, v{vT0}
s_lshl_b32 s{sT}, s{sW}, 11
v_add_u32 v{vT0}, s{sT}, v{vT0}
{park("Rr", f"v{vT0}")}v_and_b32 v{vT0}, 31, v{vL}
v_lshrrev_b32 v{vT1}, 5, v{vL}
v_and_b32 v{vT2}, 7, v{vL}
v_xor_b32 v{vT1}, v{vT1}, v{vT2}
v_lshlrev_b32 v{vT0}, 8, v{vT0}
v_lshl_add_u32 v{vT0}, v{vT1}, 4, v{vT0}
s_lshl_b32 s{sT}, s{sW}, 14
v_add_u32 v{vT0}, s{sT}, v{vT0}
{park("Rw", f"v{vT0}")}
v_add_u32 v{vT0}, s{sM0X}, v{vL16}
{park("Ka", f"v{vT0}")}v_lshrrev_b32 v{vT1}, 5, v{vL}
v_bfe_u32 v{vT2}, v{vL}, 2, 2
v_lshl_add_u32 v{vT2}, v{vT1}, 2, v{vT2}
v_lshlrev_b32 v{vT2}, 5, v{vT2}
v_and_b32 v{vT0}, 1, v{vL}
v_lshl_add_u32 v{vT2}, v{vT0}, 4, v{vT2}
v_bfe_u32 v{vT0}, v{vL}, 1, 1
v_lshl_add_u32 v{vT2}, v{vT0}, 3, v{vT2}
s_add_u32 s{sT}, s{sM0X}, 2048
v_add_u32 v{vT2}, s{sT}, v{vT2}
v_xor_b32 v{vT1}, 1, v{vT1}
v_lshlrev_b32 v{vT1}, 7, v{vT1}
s_lshl_b32 s{sT}, s{sW}, 3
s_add_u32 s{sT}, s{sT}, {STRIP}
v_add_u32 v{vU}, {STRIP+120}, v{vT1}
v_add_u32 v{vT1}, s{sT}, v{vT1}
v_and_b32 v{vT0}, 2, v{vL}
v_cmp_eq_u32 vcc, 0, v{vT0}
v_cndmask_b32 v{vT1}, v{vU}, v{vT1}, vcc
v_cndmask_b32 v{vU}, 0, 8, vcc
v_and_b32 v{vT0}, 16, v{vL}
v_cmp_eq_u32 vcc, 0, v{vT0}
v_cndmask_b32 v{vT0}, v{vT1}, v{vT2}, vcc
{park("Va", f"v{vT0}")}v_mov_b32 v{vT2}, 4096
v_cndmask_b32 v{vT0}, v{vU}, v{vT2}, vcc
{park("Vinc", f"v{vT0}")}
s_lshl_b32 s{sT}, s{sTB}, 15
s_lshl_b32 s{sTb}, s{sCB}, 11
s_add_u32 s{sT}, s{sT}, s{sTb}
s_add_u32 s{sT}, s{sT}, {O0}
v_add_u32 v{vT0}, s{sT}, v{vL16}
{park("Ost", f"v{vT0}")}
s_lshl_b32 s{sT}, s{sCB}, 18
v_add_u32 v{vT0}, s{sT}, v{vL16}
{park("KVo", f"v{vT0}")}
s_mul_i32 s{sM0K}, s{sW}, 12288
""")
SENT = O("sent", 1)
sent_st = [I(f"buffer_store_dwordx4 {vr(vXT,4)}, v{vOst}, {srd(SWS)}, 0 offen offset:{1024*e} sc1", tag="sent") for e in range(2)] if SENT else []
for k in range(3):
    E(f"""
s_mul_i32 s{sT}, s{sW}, 3
s_lshl_b32 s{sTb}, s{sRB}, 2
s_add_u32 s{sT}, s{sT}, s{sTb}
s_add_i32 s{sT}, s{sT}, {k-8}
s_lshl_b32 s{sKV[k]}, s{sT}, 12
s_cmp_lt_i32 s{sT}, 0
s_cselect_b32 s{sKV[k]}, s{sHUGE}, s{sKV[k]}
""")
E(f"""
v_min_u32 v{vT1}, 5, v{vL}
v_lshrrev_b32 v{vT2}, 1, v{vT1}
s_add_i32 s{sT}, s{sT}, -2
v_add_u32 v{vT2}, s{sT}, v{vT2}
v_cmp_gt_i32 vcc, 0, v{vT2}
v_mov_b32 v{vT0}, s{sTB}
v_cndmask_b32 v{vT2}, v{vT2}, v{vT0}, vcc
v_lshlrev_b32 v{vT2}, 7, v{vT2}
v_and_b32 v{vT1}, 1, v{vT1}
v_lshl_add_u32 v{vT2}, v{vT1}, 3, v{vT2}
s_and_b32 s{sT}, s{sCB}, 14
s_lshl_b32 s{sT}, s{sT}, 3
s_and_b32 s{sTb}, s{sCB}, 1
s_lshl_b32 s{sTb}, s{sTb}, 2
s_add_u32 s{sT}, s{sT}, s{sTb}
s_add_u32 s{sT}, s{sT}, {FL0}
v_add_u32 v{vT0}, s{sT}, v{vT2}
{park("Pa", f"v{vT0}")}
s_lshl_b32 s{sT}, s{sTB2}, 8
s_add_u32 s{sT}, s{sT}, {FL0+8192}
v_lshlrev_b32 v{vT0}, 2, v{vL}
v_add_u32 v{vT0}, s{sT}, v{vT0}
{park("Pb", f"v{vT0}")}
""")
if O("tblm", 1):
    E(f"""v_and_b32 v{vT1}, 31, v{vL}
v_lshrrev_b32 v{vT2}, 5, v{vL}
v_lshlrev_b32 v{vT2}, 2, v{vT2}
v_sub_u32 v{vT1}, v{vT1}, v{vT2}""")
    for j in range(16):
        kl = 8 * (j >> 2) + (j & 3)
        E(f"""v_subrev_u32 v{vT0}, {kl}, v{vT1}
v_ashrrev_i32 v{vT0}, 31, v{vT0}
v_and_b32 v{vT0}, 0xff000000, v{vT0}
v_accvgpr_write_b32 a{aMSK+16+j}, v{vT0}
v_xor_b32 v{vT0}, 0xff000000, v{vT0}
v_accvgpr_write_b32 a{aMSK+j}, v{vT0}""")
rest = prog[init_mark:]; del prog[init_mark:]
gall = p1_dma(1) + p1_dma(2)
N0 = O("n0", 10)
def safe_at(lst, n):
    x = lst[n]
    return not (x.op.startswith("s_cmp") or x.op == "s_and_b32" or (n + 1 < len(lst) and (lst[n + 1].op.startswith("s_cselect") or lst[n + 1].op.startswith("s_cbranch"))))
cut = int(len(rest) * O("f1", 30) / 100)
while not safe_at(rest, cut - 1): cut += 1
E(rest[:cut])
stamp((2,))
E(flat(g0))
rest = rest[cut:]
gs = gall[:N0]; k = 0
for n, x in enumerate(rest):
    E(x)
    if k < len(gs) and safe_at(rest, n) and n + 1 >= (k + 1) * len(rest) / (len(gs) + 1):
        E(gs[k]); k += 1
if O("w2t", -2) == 0: E(w2touch)
E(ann)
E(flat(gs[k:]))
if O("w2t", -2) == 1: E(w2touch)
stamp((1, 2, 3))

def wf1(st, t): return aWF + (st * 3 + t) * 4
def wf2(k, t): return aWF + ((k % 3) * 3 + t) * 4
def p1_reads(c, s):
    sl = c & 3; st = s & 1
    o = [I(f"ds_read_b128 {ar(aX+(4*c+s)*4,4)}, v{vXr+s} offset:{sl*16384}")]
    for t in range(3):
        for n in range(2):
            o.append(I(f"ds_read_b64_tr_b16 {ar(wf1(st,t)+2*n,2)}, v{vWr+2*s+(sl>>1)} offset:{(sl&1)*24576+t*8192+n*512}"))
    o.insert(3, I(f"ds_read_b128 {ar(aXP+4*st,4)}, v{vXp+s} offset:{sl*16384}"))
    return o
def statread(g):
    c, s = g >> 2, g & 3
    return [I(f"ds_read_b128 {vr(vXT+4*s,4)}, v{vXr+s} offset:{(c&3)*16384}")]
def stats(s):
    o = []
    for j in range(4):
        x = vXT + 4 * s + j; a = vU + 2 * (j & 1)
        o += L(f"""v_lshlrev_b32 v{a}, 16, v{x}
v_and_b32 v{a+1}, 0xffff0000, v{x}
v_add_f32 v{vSum}, v{vSum}, v{a}
v_add_f32 v{vSum+1}, v{vSum+1}, v{a+1}
v_fmac_f32 v{vSum+2}, v{a}, v{a}
v_fmac_f32 v{vSum+3}, v{a+1}, v{a+1}""")
    return o
def cs_convert(vcs, vw, base, step):
    o = []
    for j in range(4):
        a = 252 if j & 1 else vU + 4
        o += L(f"""v_cvt_pk_bf16_f32 v{a}, v{vcs+j}, v{vcs+j}
v_and_b32 v{a+1}, 0xffff0000, v{a}
v_sub_f32 v{a+1}, v{vcs+j}, v{a+1}
v_cvt_pk_bf16_f32 v{a+1}, v{a+1}, v{a+1}""")
        o.append(I(f"ds_write_b64 v{vw}, {vr(a,2)} offset:{base+step*j}"))
    return o
C1 = -2.0 * 0.7978845608028654 * 1.4426950408889634
QC = 0.25 * 1.4426950408889634
stats_pub = L(f"""v_add_f32 v{vSum}, v{vSum}, v{vSum+1}
v_add_f32 v{vSum+1}, v{vSum+2}, v{vSum+3}
v_mov_b32 v{vSum+2}, v{vSum}
v_mov_b32 v{vSum+3}, v{vSum+1}
v_lshrrev_b32 v{vT0}, 5, v{vL}
v_permlane32_swap_b32 v{vSum}, v{vSum+2}
v_permlane32_swap_b32 v{vSum+1}, v{vSum+3}
v_lshl_add_u32 v{vT0}, v{vT0}, 28, v{vSPo}
v_add_f32 v{vSum}, v{vSum}, v{vSum+2}
v_add_f32 v{vSum+1}, v{vSum+1}, v{vSum+3}""") + [I(f"buffer_store_dwordx2 {vr(vSum,2)}, v{vT0}, {srd(SWS)}, s{sSP} offen sc1", tag="sp")]
stats_ld = [[I(f"buffer_load_dwordx2 {vr(vSL+2*i,2)}, v{vSPo}, {srd(SWS)}, s{sSG} offen offset:{512*i} sc1")] for i in range(4)]
b = vSL
stats_fin = L(f"""
v_add_f32 v{b}, v{b}, v{b+2}
v_add_f32 v{b+1}, v{b+1}, v{b+3}
v_add_f32 v{b+4}, v{b+4}, v{b+6}
v_add_f32 v{b+5}, v{b+5}, v{b+7}
v_add_f32 v{b}, v{b}, v{b+4}
v_add_f32 v{b+1}, v{b+1}, v{b+5}
v_mul_f32 v{vSum}, {fx(-1.0/512)}, v{b}
v_mul_f32 v{b+1}, {fx(1.0/512)}, v{b+1}
v_fma_f32 v{b+1}, -v{vSum}, v{vSum}, v{b+1}
v_max_f32 v{b+1}, 0, v{b+1}
v_add_f32 v{vSum+1}, {fx(1e-5)}, v{b+1}
v_mov_b32 v{vSum+2}, v{vSum}
v_mov_b32 v{vSum+3}, v{vSum+1}
s_nop 0
v_permlane32_swap_b32 v{vSum}, v{vSum+2}
v_permlane32_swap_b32 v{vSum+1}, v{vSum+3}
""")
def stats_k(o):
    R = vSum + 2 * o + 1; K = vK[o]; a = vU
    t = f"""
v_rsq_f32 v{K}, v{R}
v_mov_b32 v{K+3}, v{R}
v_mul_f32 v{K+1}, {fx(C1)}, v{K}
v_mul_f32 v{a}, v{K}, v{K}
v_mul_f32 v{a}, {fx(0.044715)}, v{a}
v_mul_f32 v{K+2}, v{K+1}, v{a}
"""
    if o == 0: t += f"v_mul_f32 v{vQS}, {fx(QC)}, v{K}\n"
    return L(t)
def stats_b(o):
    nm = vSum + 2 * o; B = vBx[o]; a = vU
    return L(f"""
v_cvt_pk_bf16_f32 v{a}, v{nm}, v{nm}
v_and_b32 v{a}, 0xffff0000, v{a}
v_sub_f32 v{a+1}, v{nm}, v{a}
v_cvt_pk_bf16_f32 v{B}, v{a}, v{a+1}
v_mov_b32 v{B+1}, v{B}
v_mov_b32 v{B+2}, v{B}
v_mov_b32 v{B+3}, v{B}
""")
E(I("s_barrier", need=["c0"]))
stamp((2,))
E(p1_reads(0, 0) + statread(0) + statread(1))
E(stats(0))
S1 = Sched()
P1 = lambda c, s, t: 24 * c + 6 * s + t
A1 = lambda t, o: ACC1 + 32 * t + 16 * o
for c in range(8):
    for s in range(4):
        st = s & 1; first = (c == 0 and s == 0)
        for q in range(6):
            t, o = q >> 1, q & 1
            acc = vr(A1(t, o), 16)
            xb = ar(aX + (4 * c + s) * 4, 4) if o == 0 else ar(aXP + 4 * st, 4)
            ops = [I(f"{MF} {acc}, {ar(wf1(st,t),4)}, {xb}, {'0' if first else acc}")]
            small = s < 2 and o == 1
            if small:
                cs = vr(vCS1, 4)
                ops.append(I(f"{MS} {cs}, {ar(wf1(st,t),4)}, {ar(aSEL+4*t,4)}, {'0' if (first and t == 0) else cs}"))
            pre = []
            if q == 0 and (O("fw", 0) == 0 or s == 3) and not (c == 7 and s == 3): pre.append(I("s_waitcnt lgkmcnt(0)"))
            if s == 3 and q == 0 and c < 7: pre.append(I("s_barrier", need=["c%d" % (c + 1)]))
            if s == 3 and q == 2 and c == 7: pre += [I("s_waitcnt lgkmcnt(0)"), I("s_barrier", need=["p0"])]
            if s == 0 and q == 0: pre += stampq((3,))
            S1.pos(ops, 8 if small else 6, pre)
NP1 = 192
CORR_K = 0
P2 = lambda k, t: NP1 + 3 * k + t + (6 if k >= CORR_K else 0)
PC = NP1 + 3 * CORR_K
for k in range(32):
    p, s = k >> 3, k & 3
    if k == CORR_K:
        for q in range(6):
            t, o = q >> 1, q & 1
            acc = vr(A1(t, o), 16)
            S1.pos(I(f"{MF} {acc}, {vr(vCSA[t],4)}, {vr(vBx[o],4)}, {acc}"), 6, stampq((1, 3)) if q == 0 else [])
    for t in range(3):
        acc = vr(ACC2 + 16 * t, 16)
        ops = [I(f"{MF} {acc}, {ar(wf2(k,t),4)}, {ar(aX+k*4,4)}, {'0' if k == 0 else acc}", xr=ar(wf2(k, 0), 12) if t == 0 else None)]
        if s == 0:
            cs = vr(vCS2, 4)
            ops.append(I(f"{MS} {cs}, {ar(wf2(k,t),4)}, {ar(aSEL+4*t,4)}, {'0' if (k == 0 and t == 0) else cs}"))
        pre = []
        if False:
            pre = []
        if (k & 7) == 6 and t == 1:
            pre = [I("s_waitcnt lgkmcnt(0)"), I("s_barrier", need=["p%d" % (p + 1)] if p < 3 else [])]
        if (k & 3) == 0 and t == 0: pre += stampq((4,))
        S1.pos(ops, 8 if s == 0 else 6, pre)
NP2 = len(S1.main)
def p2_reads(k):
    p, g, s = k >> 3, (k >> 2) & 1, k & 3
    return [I(f"ds_read_b64_tr_b16 {ar(wf2(k,t)+2*n,2)}, v{vW2r+2*s+(p>>1)} offset:{(p&1)*24576+t*8192+g*4096+n*256}") for t in range(3) for n in range(2)]
def store4(data, voff, soff, imm, tag):
    if O("x_nost", 0) and tag in ("kv", "h"): return I("s_nop 0")
    o = (" offset:%d" % imm) if imm else ""
    return I(f"buffer_store_dwordx4 {vr(data,4)}, v{voff}, {srd(SWS)}, {soff} offen{o} sc1", tag=tag)
def flag(stage, tag, va):
    if O("x_nofw", -1) == stage: tag = "none"
    return L(f"v_mov_b32 v{vT0}, 1\ns_mov_b32 s{sT}, {stage*8192}") + [I(f"buffer_store_dword v{vT0}, v{va}, {srd(SWS)}, s{sT} offen sc1", need=[tag])]
def poll_issue(va): return [I(f"buffer_load_dword v{vPoll}, v{va}, {srd(SWS)}, 0 offen sc1")]
def poll_check(name, S, reg, addr):
    rare.append(f"""
L_spin_{name}:
    s_mov_b32 s{sSPIN}, {OPT['spin']}
L_spin2_{name}:
    buffer_load_dword v{reg}, v{addr}, {srd(S)}, 0 offen sc1
    s_waitcnt vmcnt(0) lgkmcnt(0)
    v_cmp_eq_u32 vcc, 0, v{reg}
    s_nop 4
    s_cbranch_vccz L_ok_{name}
    s_sleep 1
    s_sub_u32 s{sSPIN}, s{sSPIN}, 1
    s_cmp_lg_u32 s{sSPIN}, 0
    s_cbranch_scc1 L_spin2_{name}
    s_endpgm
""")
    o = L(f"v_cmp_eq_u32 vcc, 0, v{reg}\ns_cbranch_vccnz L_spin_{name}")
    o[-1].post = f"\nL_ok_{name}:"
    return o
SC2 = {5: 2, 6: 4}.get(O("phi", 2), 1)
SG_ = set(range(4)) | set(range(4 * SC2, 4 * SC2 + 4))
for c in range(8):
    for s in range(4):
        g = 4 * c + s
        rd = []
        if g + 1 < 32: rd += p1_reads((g + 1) >> 2, (g + 1) & 3)
        if s < 2 and g + 2 in SG_: rd += statread(g + 2)
        if s == 3 and g + 1 in SG_: rd = statread(g + 1) + rd + statread(g + 2)
        S1.spread(rd, P1(c, s, 0), P1(c, s, O("rdw", 4)), 0)
        if g + 1 in SG_:
            if s != 3: S1.spread(stats((g + 1) & 3), P1(c, s, 0), P1(c, s, 6), 2)
            else: S1.spread(stats(0), P1(c, s, 2), P1(c, s, 6), 2)
    if c == 0:
        gq = gall[N0:]
        if O("w2t", -2) == -1: gq = gq[:10 - N0] + [w2touch] + gq[10 - N0:]
        if O("w2t", -2) == -2: gq = gq + [w2touch]
        S1.spread(gq, P1(0, 0, 0), P1(0, 3, 0), 1, one)
    if c < 5: S1.spread(p1_dma(c + 3), P1(c, 3, 0), P1(c + 1, 3, 0), 1, one)
S1.spread(p2_dma(0), P1(6, O("p0a", 1), 0), P1(6, 3, 0), 1, one)
S1.spread(p2_dma(1), P1(6, 3, 0), P1(7, 3, 0), 1, one)
S1.put(P1(1, 0, 0), [L(f"v_and_b32 v{vT2}, 3, v{vL}\nv_lshlrev_b32 v{vT2}, 2, v{vT2}") + [I(f"buffer_load_dword v{vInit}, v{vT2}, {srd(SDBG)}, 0 offen")]], 1)
S1.spread(stats_pub, P1(SC2, 3, 0), P1(SC2, 3, 3), 2)
S1.put(P1(O("spf", SC2 + 1), O("spf2", 3), 1), [poll_check("init", SDBG, vInit, vT2) + flag(4, "sp", vFl1)], 2)
S1.put(P1(O("spp", 4 if SC2 == 1 else 5), O("spp2", 2 if SC2 == 1 else 0), 5), [poll_issue(vPs)], 1)
S1.put(P1(5, 3, 1), [poll_check("st", SWS, vPoll, vPs)], 2)
S1.spread(stats_ld, P1(5, 3, 2), P1(5, 3, 6), 1, one)
S1.spread(stats_fin + stats_k(0) + stats_k(1), P1(7, 0, 0), P1(7, 2, 0), 2)
if SENT:
    S1.put(P1(3, 0, 0), L("\n".join(f"v_mov_b32 v{vXT+j}, -1" for j in range(4))), 2)
    S1.put(O("snp", 172), [sent_st[0]], 1); S1.put(O("snp", 172) + O("snd", 8), [sent_st[1]], 1)
S1.spread(cs_convert(vCS1, vCSw1, CS1, 8), P1(7, 2, 0), P1(7, 2, O('cse', 5)), 2)
S1.spread(stats_b(0) + stats_b(1), P1(7, 3, 0), P1(7, 3, 4), 2)
S1.spread(p2_reads(0), P1(7, 3, 2), P1(7, 3, 4), 0)
S1.put(P1(7, 3, 5), p2_reads(1), 0)
if O("w2t", -2) >= 2: S1.put(O("w2t", -2), [w2touch], 1)
S1.spread(p2_dma(2), P1(7, 3, 2), P2(5, 0), 1, one)

def scale_pack(acc, sc, dst, pk=False):
    o = []
    if pk:
        sel = "op_sel:[0,1] op_sel_hi:[1,1]" if sc & 1 else "op_sel_hi:[1,0]"
        for j in range(0, 16, 2): o.append(I(f"v_pk_mul_f32 {vr(acc+j,2)}, {vr(acc+j,2)}, {vr(sc&~1,2)} {sel}"))
    else:
        for j in range(16): o.append(I(f"v_mul_f32 v{acc+j}, v{acc+j}, v{sc}"))
    for j in range(8): o.append(I(f"v_cvt_pk_bf16_f32 v{dst+j}, v{acc+2*j}, v{acc+2*j+1}"))
    return o
def gelu(g, u, K):
    if O("x_nogelu", 0): return [I("s_nop 0")] * 4
    A, B, R = K + 1, K + 2, K + 3
    o = []
    for b in range(4):
        js = range(4 * b, 4 * b + 4)
        T = lambda j: vG + (j & 3) + 4 * (b & 1)
        o += [I(f"v_mul_f32 v{T(j)}, v{g+j}, v{g+j}") for j in js]
        o += [I(f"v_fma_f32 v{T(j)}, v{T(j)}, v{B}, v{A}") for j in js]
        o += [I(f"v_mul_f32 v{T(j)}, v{g+j}, v{T(j)}") for j in js]
        for j in js: o += [I(f"v_exp_f32 v{T(j)}, v{T(j)}"), I(f"v_mul_f32 v{g+j}, v{g+j}, v{u+j}")]
        o += [I(f"v_fma_f32 v{T(j)}, v{T(j)}, v{R}, v{R}") for j in js]
        o += [I(f"v_rcp_f32 v{T(j)}, v{T(j)}") for j in js]
        o += [I(f"v_mul_f32 v{g+j}, v{g+j}, v{T(j)}") for j in js]
        o += [I(f"v_cvt_pk_bf16_f32 v{u+2*b+k}, v{g+4*b+2*k}, v{g+4*b+2*k+1}") for k in range(2)]
    return o
def gelu_pk(g, u, K):
    o = []
    for b in range(2):
        js = range(8 * b, 8 * b + 8, 2)
        T = lambda j: vG + (j & 7)
        o += [I(f"v_pk_mul_f32 {vr(T(j),2)}, {vr(g+j,2)}, {vr(g+j,2)}") for j in js]
        o += [I(f"v_pk_fma_f32 {vr(T(j),2)}, {vr(T(j),2)}, {vr(K+2,2)}, {vr(K,2)} op_sel:[0,0,1] op_sel_hi:[1,0,1]") for j in js]
        o += [I(f"v_pk_mul_f32 {vr(T(j),2)}, {vr(g+j,2)}, {vr(T(j),2)}") for j in js]
        for j in js: o += [I(f"v_exp_f32 v{T(j)}, v{T(j)}"), I(f"v_exp_f32 v{T(j)+1}, v{T(j)+1}"), I(f"v_pk_mul_f32 {vr(g+j,2)}, {vr(g+j,2)}, {vr(u+j,2)}")]
        o += [I(f"v_pk_fma_f32 {vr(T(j),2)}, {vr(T(j),2)}, {vr(K+2,2)}, {vr(K+2,2)} op_sel:[0,1,1] op_sel_hi:[1,1,1]") for j in js]
        for j in js: o += [I(f"v_rcp_f32 v{T(j)}, v{T(j)}"), I(f"v_rcp_f32 v{T(j)+1}, v{T(j)+1}")]
        o += [I(f"v_pk_mul_f32 {vr(g+j,2)}, {vr(g+j,2)}, {vr(T(j),2)}") for j in js]
        o += [I(f"v_cvt_pk_bf16_f32 v{u+(j>>1)}, v{g+j}, v{g+j+1}") for j in js]
    return o
S1.put(P1(7, 3, 2), [I(f"ds_read_b64 {vr(vCSA[t],2)}, v{vCSr} offset:{CS1+C1STR*t}") for t in range(3)], 0)
for k in range(30):
    o = 1 if (k & 7) == 6 else 0
    S1.spread(p2_reads(k + 2), P2(k, o), P2(k, o + (2 if (k & 7) in (5, 6) else 3)), 0)

fq = []
sOwn = [f"s{sPK}", f"s{sTd}"]; sOwnH = [f"s{sPH}", f"s{sTc}"]
fq += L(f"s_xor_b32 s{sTd}, s{sPK}, 4096\ns_sub_u32 s{sTc}, {HSTR}, s{sPH}")
for o in range(2):
    a = A1(0, o)
    sp = scale_pack(a, vK[o], a)
    fq += sp[0:8] + sp[16:20] + [store4(a, vKVst, sOwn[o], 0, "kv")] + sp[8:16] + sp[20:24] + [store4(a + 4, vKVst, sOwn[o], 1024, "kv")]
g = []
for o in range(2):
    gg = gelu(A1(1, o), A1(2, o), vK[o])
    g.append(gg[:68] + [store4(A1(2, o), vHst, sOwnH[o], 0, "h")] + gg[68:] + [store4(A1(2, o) + 4, vHst, sOwnH[o], 1024, "h")])
KVF = O("kvflag", 75); KVP = O("kvpoll", 110)
tbl = [[I(f"buffer_load_dwordx4 {vr(vBF+4*i,4)}, v{vL16}, {srd(STB)}, {'0' if i < 4 else 's%d' % sX} offen offset:{1024*(i&3)}")] for i in range(8)]
tbl[0] = L(f"s_movk_i32 s{sX}, 4096") + tbl[0]
strip = [I(f"ds_write_b128 v{vL16}, {ar(aSTV,4)} offset:{STRIP+1024*i}") for i in range(2)]
unp = [I(f"v_accvgpr_read_b32 v{vBF+j}, a{aMSK+j}") for j in range(32)] if O("tblm", 1) else []
fq += g[0][:KVF] + [flag(0, "kv", vFl2)] + g[0][KVF:] + strip + unp
fq += g[1][:KVP] + poll_issue(vPa) + g[1][KVP:]
FQ_END = O("fqend", 29)
S1.spread(glue(fq), PC + 3, P2(FQ_END, 0), 2)
if not O("tblm", 1): S1.spread(tbl, P2(O("tbl", 9), 0), P2(O("tbl", 9) + 5, 0), 1, one)

def w2_dma(j):
    sl = j % 12
    m0 = (sl // 3) * 24576 + (sl % 3) * 2048
    nd = ["r%d" % (j - 12)]
    post = []
    if j >= 22:
        post = L(f"s_add_u32 s{sWB}, s{sWB}, 16384\ns_and_b32 s{sWB}, s{sWB}, 0x1ffff")
        return [L(f"s_add_u32 m0, s{sM0K}, {(j-22)*2048}\ns_nop 0") + [dma(vEo, SO, f"s{sWB}", 0, "w%d" % j)],
                [dma(vEo + 1, SO, f"s{sWB}", 1024, "w%d" % j)] + post]
    if j < 22:
        base = sWE + (j >> 1) if j < 16 else sLW[(j - 16) >> 1]
        so, sr = ("s_nop 0", base) if j & 1 == 0 else (f"s_add_u32 s{sD}, s{base}, 16384", sD)
        vo, S = vDo, SD
    else:
        so, sr, vo, S = "s_nop 0", sWB, vEo, SO
        post = L(f"s_add_u32 s{sWB}, s{sWB}, 16384\ns_and_b32 s{sWB}, s{sWB}, 0x1ffff")
    return [L(f"s_add_u32 m0, s{sM0D}, {m0}\n{so}") + [dma(vo, S, f"s{sr}", 0, "w%d" % j, need=nd)],
            [dma(vo + 1, S, f"s{sr}", 1024, "w%d" % j, need=nd)] + post]
KCHK = O("kvchk", 29)
for p in range(3):
    if not O("x_now2", 0): S1.spread((p2_dma(3) if p == 0 else []) + w2_dma(3 * p) + w2_dma(3 * p + 1) + w2_dma(3 * p + 2), P2(8 * p + 6, 1), P2(8 * p + 14, 1) if p < 2 else P2(KCHK, 0), 1, one)
kvdma = []
for k in range(3):
    kvdma.append(L(f"s_add_u32 m0, s{sM0K}, {4096*k}\ns_nop 0") + [dma(vKVo, SWS, f"s{sKV[k]}", 0, "kvl", "sc1")])
    kvdma += [[dma(vKVo, SWS, f"s{sKV[k]}", 1024 * i, "kvl", "sc1")] for i in range(1, 4)]
if not O("x_nokv", 0):
    if not O("x_nochk", 0): S1.put(P2(KCHK, 0), [poll_check("kv", SWS, vPoll, vPa)], 1)
    S1.spread(kvdma, P2(KCHK, 1), NP2, 1, one)
S1.spread(cs_convert(vCS2, vCSw2, CS2, 16), P2(29, 0), P2(30, 0), 2)
S1.put(P2(30, 1), [I(f"ds_read_b128 {vr(vCSA[q],4)}, v{vL16} offset:{CS2+CSTR*q}") for q in range(3)], 0)
if OPT["stamps"] == 10:
    for g in range(O("l0", 2), min(O("l0", 2) + 30, 32)):
        k = nstamp[0]; nstamp[0] += 1
        S1.put(6 * g + 4, [I(f"{TIMER} s[88:89]")], 2)
        S1.put(6 * g + 6, [I(f"v_writelane_b32 v231, s88, {k}")], 2)
if OPT["stamps"] == 11:
    for kk in range(1, 31):
        k = nstamp[0]; nstamp[0] += 1
        S1.put(P2(kk, 0), [I(f"{TIMER} s[88:89]")], 0)
        S1.put(P2(kk + 1, 0) - 1, [I(f"v_writelane_b32 v231, s88, {k}")], 2)
if OPT["stamps"] == 9:
    for q in range(28):
        p = OPT["za"] + q * OPT["zs"]
        if p < len(S1.main): S1.pre[p] = stampq((9,)) + S1.pre[p]
E(S1.emit())
stamp((1, 4, 12))
post = w2_dma(9) + w2_dma(10) + w2_dma(11)
xres = L(f"buffer_load_dwordx4 {vr(vXres,4)}, v{vOut}, {srd(SX)}, 0 offen\nbuffer_load_dwordx4 {vr(vXres+4,4)}, v{vOut+1}, {srd(SX)}, 0 offen")
for n, t in enumerate((0, 1, 2)):
    acc = vr(ACC2 + 16 * t, 16)
    E(f"{MF} {acc}, {vr(vCSA[t],4)}, {vr(vBx[0],4)}, {acc}")
    E(post[2 * n] + post[2 * n + 1])
E(scale_pack(ACC2, vQS, vQ, pk=False))
gl = gelu_pk(ACC2 + 16, ACC2 + 32, vK[0])
HF = O("hf", 60)
gl = gl[:44] + [store4(ACC2 + 32, vHst, f"s{sH2}", 0, "h2")] + xres + gl[44:] + [store4(ACC2 + 36, vHst, f"s{sH2}", 1024, "h2")]
E(gl[:HF] + flag(1, "h", vFl2) + gl[HF:])
stamp((4, 6, 12))
E(I("s_waitcnt lgkmcnt(0)"))
E(I("s_barrier", need=["kvl"]))
stamp((1, 4, 6, 12))

units = [(i, e) for i in range(9) for e in range(2)]
def kread(u):
    i, e = units[u]
    return [I(f"ds_read_b128 {ar(aK+4*(u&1),4)}, v{vKa} offset:{i*4096+e*1024}")]
def vread(u):
    i, e = units[u]
    o = [I(f"ds_read_b64_tr_b16 {ar(aV+8*(u&1)+4*s+2*n,2)}, v{vVa} offset:{e*1024+s*512+n*256}") for s in range(2) for n in range(2)]
    if e == 1: o.append(I(f"v_add_u32 v{vVa}, v{vVa}, v{vVinc}"))
    return o
def qk(u):
    i, e = units[u]
    c = vr(vBF, 16) if i == 0 else (vr(vBD, 16) if i == 8 else "0")
    return I(f"{MF} {vr(vS[u&1],16)}, {ar(aK+4*(u&1),4)}, {vr(vQ+4*e,4)}, {c}", xr=ar(aV + 8 * (u & 1), 8) if u >= 2 else None)
def pv(u, s):
    i, e = units[u]
    o = vr(vO[e], 16)
    return I(f"{MF} {o}, {ar(aV+8*(u&1)+4*s,4)}, {vr(vP[u&1]+4*s,4)}, {'0' if (i == 0 and s == 0) else o}")
def hload(j, tt):
    post = []
    if j < 16:
        soff = sA
        if tt == 1 and j & 1 == 1: post = L(f"s_add_u32 s{sA}, s{sA}, 2048\ns_and_b32 s{sA}, s{sA}, 0x3fff")
    else: soff = sLH[(j - 16) >> 1]
    o = " offset:1024" if j & 1 else ""
    return [I(f"buffer_load_dwordx4 {ar(aH+8*j+4*tt,4)}, v{vAo+tt}, {srd(SWS)}, s{soff} offen{o} sc1")] + post
NW2V = O("w2v", 10)
W2V = [152, 156, 192, 196, 200, 204, 4, 8, 12, 16, 20, 24, 36, 40, 44, 48, 240, 244, 248, 252]
def w2_reads(j):
    sl = j % 12
    base = (sl // 3) * 24576 + (sl % 3) * 2048
    o = []
    for ct in range(2):
        for n in range(2):
            off = base + n * 1024 + ct * 256
            reg = vW3r if off < 49152 else vW3r + 1
            off = off if off < 49152 else off - 49152
            if j >= 22: reg, off = vPa, (j - 22) * 2048 + n * 1024 + ct * 256
            dst = vr(W2V[2*j+ct]+2*n, 2) if j < NW2V else (ar(aW2+8*(j&1)+4*ct+2*n, 2) if j < 22 else ar(8*(j-22)+4*ct+2*n, 2))
            o.append(I(f"ds_read_b64_tr_b16 {dst}, v{reg} offset:{off}", need=["w%d" % j], tag="r%d" % j))
    return o
extra = {u: [] for u in range(18)}
xds = {u: [] for u in range(18)}
WS0, WS1 = O("ws0", 0), O("ws1", 6)
for j in range(NW2V):
    u = WS0 + j * (WS1 - WS0) // max(NW2V, 1)
    xds[u] += w2_reads(j)
    extra[u + 1] += w2_dma(j + 12)
EP, EC = O("ep", 4), O("ec", 7)
LF, LP, LC = O("lf", 2), O("lp", 11), O("lc", 14)
extra[EP].append(poll_issue(vPb))
extra[LF].append(flag(2, "h2", vFl1))
extra[EC].append(poll_check("h", SWS, vPoll, vPb) + L(f"v_and_b32 v{vPb}, -5, v{vPb}\nv_add_u32 v{vPb}, 8192, v{vPb}"))
he = [hload(j, tt) for j in range(16) for tt in range(2)]
hlate = [hload(j, tt) for j in range(16, 22) for tt in range(2)]
EE = O("ee", 16); NE = O("ne", 32)
he_late = he[NE:]; he = he[:NE]
for q in range(EE - EC):
    extra[EC + q] += he[len(he) * q // (EE - EC):len(he) * (q + 1) // (EE - EC)]
extra[LP].append(poll_issue(vPb))
extra[LC].append(poll_check("h2", SWS, vPoll, vPb) + L(f"v_add_u32 v{vPb}, 8192, v{vPb}"))
LS = max(LC, EE)
NL = O("nl", 8)
for q in range(18 - LS):
    extra[LS + q] += hlate[NL * q // (18 - LS):NL * (q + 1) // (18 - LS)]
hl_late = he_late + hlate[NL:]
assert not he_late or NL == 0

E(kread(0) + kread(1) + vread(0))
E(qk(0))
for u in range(18):
    S, P = vS[u & 1], vP[u & 1]
    ex = [I(f"v_exp_f32 v{S+j}, v{S+j}") for j in range(16)]
    cv = [I(f"v_cvt_pk_bf16_f32 v{P+j}, v{S+2*j}, v{S+2*j+1}") for j in range(8)]
    seq = []
    xs = list(extra[u])
    X = lambda q: flat(xs[len(xs) * q // 3:len(xs) * (q + 1) // 3])
    vr_ = vread(u + 1) if u + 1 < 18 else []
    if u + 1 < 18: seq.append(qk(u + 1))
    if u + 2 < 18: seq += kread(u + 2)
    seq += xds[u] + X(0) + ex[0:6]
    if u > 0: seq.append(pv(u - 1, 0))
    seq += vr_[0:2] + X(1) + ex[6:11] + cv[0:3]
    if u > 0: seq.append(pv(u - 1, 1))
    seq += vr_[2:4] + X(2) + vr_[4:] + ex[11:16] + cv[3:8]
    if u % 2 == 0: seq = stampq((6,)) + seq
    if OPT["stamps"] == 12:
        if u > 0: seq.insert(2, I(f"v_writelane_b32 v231, s88, {nstamp[0]}")); nstamp[0] += 1
        seq.insert(3 if u > 0 else 1, I(f"{TIMER} s[88:89]"))
    E(seq)
def norm(e):
    o = vO[e]
    t = [f"v_rcp_f32 v{vT0+1}, v{o+8}", "s_nop 0"]
    if e == 0 or O("n1", 1): t += [f"v_mul_f32 v{o+j}, v{o+j}, v{vT0+1}" for j in range(8)]
    else: t += [f"v_pk_mul_f32 {vr(o+j,2)}, {vr(o+j,2)}, {vr(vT0+1,2)} op_sel_hi:[1,0]" for j in range(0, 8, 2)]
    t += [f"v_cvt_pk_bf16_f32 v{o+12+j}, v{o+2*j}, v{o+2*j+1}" for j in range(4)]
    if SENT: t += [f"v_min_u32 v{o+12}, -2, v{o+12}"]
    return t
E([pv(17, 0), pv(17, 1)])
if OPT["stamps"] == 12: E(f"v_writelane_b32 v231, s88, {nstamp[0]}"); nstamp[0] += 1
E("\n".join(norm(0)))
BLO, BHI = fx(2.0 ** -40), fx(2.0 ** 40)
E(f"""
s_mov_b32 s{sT}, {BLO}
s_mov_b32 s{sTb}, {BHI}
v_min_f32 v{vT0}, v{vO[0]+8}, v{vO[1]+8}
v_max_f32 v{vT1}, v{vO[0]+8}, v{vO[1]+8}
v_cmp_nle_f32 vcc, s{sT}, v{vT0}
v_cmp_nge_f32 s[4:5], s{sTb}, v{vT1}
v_cmp_u_f32 s[6:7], v{vO[0]+8}, v{vO[1]+8}
s_or_b64 vcc, vcc, s[4:5]
s_or_b64 vcc, vcc, s[6:7]
s_cbranch_vccnz L_truemax
""")
prog[-1].post = "\nL_att_done:"
E(store4(vO[0] + 12, vOst, "0", 0, "o"))
N1 = O("n1", 1)
if not N1:
    E("\n".join(norm(1)))
    E(store4(vO[1] + 12, vOst, "0", 1024, "o"))
    stamp((6, 12))
    E("s_barrier")
stamp((1, 5, 6, 12))

sa, sb_, sc_, sd_, se_, sf_ = sT, sTb, sTc, sTd, sX, sQ
tm = [f"""
L_truemax:
    s_waitcnt vmcnt(0) lgkmcnt(0)
    s_nop 15
    s_sub_i32 s{sa}, 8, s{sTB}
    s_max_i32 s{sa}, s{sa}, 0
    s_mov_b32 s{sb_}, 0
L_tm_head:
    s_cmp_eq_u32 s{sb_}, 0
    s_cselect_b64 vcc, -1, 0
    s_nop 4
"""]
tm += [f"    v_cndmask_b32 v{vP[1]+j}, v{vQ+4+j}, v{vQ+j}, vcc\n" for j in range(4)]
tm.append(f"""
    v_mov_b32 v{vT0}, 0xff000000
    s_mov_b32 s{sd_}, 0
L_tm_pass:
    s_mov_b32 s{sc_}, s{sa}
""")
tm += [f"    v_mov_b32 v{vS[1]+j}, 0\n" for j in range(16)]
tm.append(f"""
L_tm_blk:
    s_lshl_b32 s{se_}, s{sc_}, 12
    s_lshl_b32 s{sf_}, s{sb_}, 10
    s_add_u32 s{se_}, s{se_}, s{sf_}
    v_add_u32 v{vT1}, s{se_}, v{vKa}
    ds_read_b128 {ar(aK,4)}, v{vT1}
    s_sub_u32 s{se_}, 9, s{sc_}
    v_mul_lo_u32 v{vT2}, s{se_}, v{vVinc}
    v_sub_u32 v{vT2}, v{vVa}, v{vT2}
    v_add_u32 v{vT2}, s{sf_}, v{vT2}
    ds_read_b64_tr_b16 {ar(aV,2)}, v{vT2}
    ds_read_b64_tr_b16 {ar(aV+2,2)}, v{vT2} offset:256
    ds_read_b64_tr_b16 {ar(aV+4,2)}, v{vT2} offset:512
    ds_read_b64_tr_b16 {ar(aV+6,2)}, v{vT2} offset:768
    s_waitcnt lgkmcnt(0)
    s_cmp_eq_u32 s{sc_}, 0
    s_cbranch_scc1 L_tm_far
    s_cmp_eq_u32 s{sc_}, 8
    s_cbranch_scc1 L_tm_diag
    {MF} {vr(vS[0],16)}, {ar(aK,4)}, {vr(vP[1],4)}, 0
    s_branch L_tm_s
L_tm_far:
    {MF} {vr(vS[0],16)}, {ar(aK,4)}, {vr(vP[1],4)}, {vr(vBF,16)}
    s_branch L_tm_s
L_tm_diag:
    {MF} {vr(vS[0],16)}, {ar(aK,4)}, {vr(vP[1],4)}, {vr(vBD,16)}
L_tm_s:
    s_nop 15
    s_cmp_eq_u32 s{sd_}, 0
    s_cbranch_scc0 L_tm_exp
""")
tm += [f"    v_max_f32 v{vT0}, v{vT0}, v{vS[0]+j}\n" for j in range(16)]
tm.append("    s_branch L_tm_next\nL_tm_exp:\n")
tm += [f"    v_sub_f32 v{vS[0]+j}, v{vS[0]+j}, v{vT0}\n" for j in range(16)]
tm += [f"    v_exp_f32 v{vS[0]+j}, v{vS[0]+j}\n" for j in range(16)]
tm.append("    s_nop 1\n")
tm += [f"    v_cvt_pk_bf16_f32 v{vP[0]+j}, v{vS[0]+2*j}, v{vS[0]+2*j+1}\n" for j in range(8)]
tm.append(f"""
    s_nop 1
    {MF} {vr(vS[1],16)}, {ar(aV,4)}, {vr(vP[0],4)}, {vr(vS[1],16)}
    {MF} {vr(vS[1],16)}, {ar(aV+4,4)}, {vr(vP[0]+4,4)}, {vr(vS[1],16)}
    s_nop 15
L_tm_next:
    s_add_u32 s{sc_}, s{sc_}, 1
    s_cmp_lt_u32 s{sc_}, 9
    s_cbranch_scc1 L_tm_blk
    s_cmp_eq_u32 s{sd_}, 0
    s_cbranch_scc0 L_tm_fin
    v_mov_b32 v{vT1}, v{vT0}
    s_nop 1
    v_permlane32_swap_b32 v{vT0}, v{vT1}
    s_nop 1
    v_max_f32 v{vT0}, v{vT0}, v{vT1}
    s_mov_b32 s{sd_}, 1
    s_branch L_tm_pass
L_tm_fin:
    s_cmp_eq_u32 s{sb_}, 0
    s_cbranch_scc0 L_tm_h1
""")
tm += [f"    v_mov_b32 v{vO[0]+j}, v{vS[1]+j}\n" for j in range(16)]
tm.append(f"    s_mov_b32 s{sb_}, 1\n    s_branch L_tm_head\nL_tm_h1:\n")
tm += [f"    v_mov_b32 v{vO[1]+j}, v{vS[1]+j}\n" for j in range(16)]
tm += ["    " + x + "\n" for x in norm(0)]
tm.append(f"    s_nop 1\n    s_branch L_att_done\n")
rare.append("".join(tm))

def oload(j2, tt):
    post = L(f"s_add_u32 s{sWS}, s{sWS}, 1024\ns_and_b32 s{sWS}, s{sWS}, 0x1fff")
    return [I(f"buffer_load_dwordx4 {vr(vOF+8*j2+4*tt,4)}, v{vOo+tt}, {srd(SWS)}, s{sWS} offen sc1")] + post
OF, OP, OC = O("oflag", 6), O("opoll", 12), O("ochk", 17)
if NW2V == 0: E(w2_reads(0))
S3 = Sched()
order = [(j, ct, tt) for j in range(22) for ct in range(2) for tt in range(2)]
order += [(j, ct, tt) for tt in range(2) for j in range(22, 30) for ct in range(2)]
def w2f(j, ct): return vr(W2V[2 * j + ct], 4) if j < NW2V else (ar(aW2 + 8 * (j & 1) + 4 * ct, 4) if j < 22 else ar(8 * (j - 22) + 4 * ct, 4))
for n, (j, ct, tt) in enumerate(order):
    acc = ar(aACC + 32 * ct + 16 * tt, 16)
    bb = ar(aH + 8 * j + 4 * tt, 4) if j < 22 else vr(vOF + 8 * (j - 22) + 4 * tt, 4)
    xr = None
    if ct == 0 and tt == 0 and j >= NW2V: xr = ar(aW2 + 8 * (j & 1), 8) if j < 22 else ar(8 * (j - 22), 8)
    aa = w2f(j, ct)
    S3.pos(I(f"{MF} {acc}, {aa}, {bb}, {'0' if j == 0 else acc}", xr=xr), 6, stampq((5,)) if (n % 8 == 0) else [])
for j in range(30):
    if NW2V <= j + 1 < 23: S3.spread(w2_reads(j + 1), 4 * j, 4 * j + 2, 0)
    if 23 <= j: S3.put(88 + 2 * (j - 24) if j > 23 else 86, w2_reads(j), 0)
    if j >= NW2V and j + 12 < 22:
        g = w2_dma(j + 12); S3.put(4 * j + 1, [g[0]], 1); S3.put(4 * j + 3, [g[1]], 1)
S3.pre[0] += L(f"s_lshl_b32 s{sM0K}, s{sW}, 14\ns_mul_i32 s{sT}, s{sW}, 10240\ns_sub_u32 s{sT}, s{sT}, {WB}\nv_add_u32 v{vPa}, s{sT}, v{vW3r}")
assert NW2V == 10
if N1:
    S3.spread(L("\n".join(norm(1))) + [store4(vO[1] + 12, vOst, "0", 1024, "o")], 0, 3, 2)
    S3.pre[4] += L("s_barrier")
S3.spread(hl_late + flat([w2_dma(j) for j in range(22, 30)]), 4 if N1 else 0, O('hle', 44), 1, one)
ol = [oload(j2, tt) for tt in range(2) for j2 in range(8)]
if not SENT:
    S3.put(4 * OF, [flag(3, "o", vFl1)], 1)
    S3.put(4 * OP, [poll_issue(vPb)], 1)
    S3.put(4 * OC, [poll_check("o", SWS, vPoll, vPb)], 1)
    S3.spread(ol, 4 * OC + 1, 4 * O("oend", 24), 1, one)
else:
    OS, OE, OK_ = O("os", 11), O("oe", 20), O("ok", 21)
    S3.spread(ol, 4 * OS, 4 * OE, 1, one)
    for tt in range(2):
        rg = [vOF + 8 * j + 4 * tt for j in range(8)]
        chk = [f"v_max3_u32 v{vT0}, v{rg[0]}, v{rg[1]}, v{rg[2]}", f"v_max3_u32 v{vT0}, v{vT0}, v{rg[3]}, v{rg[4]}", f"v_max3_u32 v{vT0}, v{vT0}, v{rg[5]}, v{rg[6]}", f"v_max_u32 v{vT0}, v{vT0}, v{rg[7]}", f"v_cmp_eq_u32 vcc, -1, v{vT0}"]
        br = L(f"s_cbranch_vccnz L_spin_o{tt}"); br[-1].post = f"\nL_ok_o{tt}:"
        S3.put(87 if tt == 0 else 103, [L("\n".join(chk)) + br], 2)
        rare.append(f"""
L_spin_o{tt}:
    s_mov_b32 s{sSPIN}, {OPT['spin']}
    s_nop 7
L_spin2_o{tt}:
""" + "".join("    " + x.text + "\n" for g in ol[8*tt:8*tt+8] for x in g) + "    s_waitcnt vmcnt(0) lgkmcnt(0)\n" + "".join("    " + x + "\n" for x in chk) + f"""    s_nop 4
    s_cbranch_vccz L_ok_o{tt}
    s_sleep 1
    s_sub_u32 s{sSPIN}, s{sSPIN}, 1
    s_cmp_lg_u32 s{sSPIN}, 0
    s_cbranch_scc1 L_spin2_o{tt}
    s_endpgm
""")
    assert 4 * OE <= 87
S3.spread(L("\n".join(f"v_xor_b32 v{vU+i}, {32*i}, v{vRw}" for i in range(4)) + f"\nv_xor_b32 v{vU+4}, 16, v{vRr}"), 4, 8, 2)
def pwrite(ct, tt): return [I(f"ds_write_b128 v{vU+i}, {ar(aACC+32*ct+16*tt+4*i,4)} offset:{tt*8192+ct*128}") for i in range(4)]
R0 = 128
def fin_reads(tt): return [I(f"ds_read_b128 {vr(R0+8*p+4*n,4)}, v{vRr if n == 0 else vU+4} offset:{p*16384+tt*8192}") for p in range(4) for n in range(2)]
def fin_math(tt, pk):
    x = R0 + 64 + 8 * tt; o = []
    for p in range(4):
        if pk: o += [I(f"v_pk_add_f32 {vr(x+j,2)}, {vr(x+j,2)}, {vr(R0+8*p+j,2)}") for j in range(0, 8, 2)]
        else: o += [I(f"v_add_f32 v{x+j}, v{x+j}, v{R0+8*p+j}") for j in range(8)]
    o += [I(f"v_cvt_pk_bf16_f32 v{R0+32+4*tt+j}, v{x+2*j}, v{x+2*j+1}") for j in range(4)]
    o += [I(f"buffer_store_dwordx4 {vr(R0+32+4*tt,4)}, v{vOut+tt}, {srd(SOUT)}, 0 offen sc1")]
    return o
S3.spread(L("\n".join(f"v_lshlrev_b32 v{R0+64+2*j}, 16, v{vXres+j}\nv_and_b32 v{R0+65+2*j}, 0xffff0000, v{vXres+j}" for j in range(8))), 4 * 12, 4 * 16, 2)
FB = O("fb", 110)
S3.spread(pwrite(0, 0) + pwrite(1, 0), 105, 108, 0)
S3.pre[FB] += L("s_waitcnt lgkmcnt(0)\ns_barrier")
S3.spread(fin_reads(0), FB, FB + 2, 0)
S3.spread(fin_math(0, False), FB + 3, 120, 2)
if OPT["stamps"] == 13:
    for jj in range(29):
        k = nstamp[0]; nstamp[0] += 1
        S3.put(4 * jj + 2, [I(f"{TIMER} s[88:89]")], 0)
        S3.put(4 * jj + 4, [I(f"v_writelane_b32 v231, s88, {k}")], 2)
E(S3.emit())
stamp((1, 5))
E(pwrite(0, 1) + pwrite(1, 1))
E("s_waitcnt lgkmcnt(0)\ns_barrier")
E(fin_reads(1) + fin_math(1, True))
if OPT["stamps"]:
    stamp()
    E(f"s_waitcnt vmcnt(0)")
    stamp((1, 2, 3, 4, 5, 6, 7, 9, 10, 11, 12, 13, 15))
    E(f"s_lshl_b32 s{sT}, s2, 2\ns_add_u32 s{sT}, s{sT}, s{sW}\ns_lshl_b32 s{sT}, s{sT}, 7\ns_add_u32 s{sT}, s{sT}, {ST0}\nv_lshlrev_b32 v{vT0}, 2, v{vL}\nv_lshrrev_b32 v{vT1}, 5, v{vL}\nv_lshl_add_u32 v{vT0}, v{vT1}, 28, v{vT0}")
    E(f"buffer_store_dword v231, v{vT0}, {srd(SWS)}, s{sT} offen")
if O("xf", 0):
    E("s_waitcnt vmcnt(0)"); stamp()
    if OPT["xf"] == 99: E("s_mov_b32 s90, s88")
    E(("s_sub_u32 s90, s90, s92\ns_lshr_b32 s90, s90, 3" if O("xfc", 0) else "s_sub_u32 s90, s90, s88\ns_lshl_b32 s90, s90, 2") + "\ns_add_u32 s90, s90, 4000\nL_es:\ns_memrealtime s[4:5]\ns_waitcnt lgkmcnt(0)\ns_sub_u32 s4, s4, s88\ns_cmp_lt_u32 s4, s90\ns_cbranch_scc1 L_es")
E("L_end:\ns_endpgm")

lines = finalize(prog, verbose=True)
hdr = f"""; Fused LayerNorm + QKV/gate/up GEMM + sliding-window attention + GEGLU + down/out projection.
; @launch grid=(256,1,1) block=(256,1,1) lds={LDSSZ}
.amdgcn_target "amdgcn-amd-amdhsa--gfx950"
.text
.globl {KNAME}
.p2align 8
.type {KNAME},@function
{KNAME}:
"""
tail = f"""
L_table_end:
    s_endpgm
.section .rodata,"a"
.p2align 6
.amdhsa_kernel {KNAME}
  .amdhsa_next_free_vgpr 512
  .amdhsa_next_free_sgpr 102
  .amdhsa_accum_offset 256
  .amdhsa_group_segment_fixed_size 0
  .amdhsa_kernarg_size 80
  .amdhsa_user_sgpr_count 2
  .amdhsa_user_sgpr_kernarg_segment_ptr 1
  .amdhsa_system_sgpr_workgroup_id_x 1
.end_amdhsa_kernel
"""
open(sys.argv[1], "w").write(hdr + "\n".join(lines) + "\n" + "".join(rare) + tail)
```

```python
import sys, math, struct
from asmlib import I, Ins, finalize, weave, Sched

KNAME = "parallel_sum__sliding_block__glu_gated_geglu__prompt_kernel"
OPT = dict(stamps=0, spin=200000)
for a in sys.argv[2:]:
    k, v = a.split("="); OPT[k] = int(v)
def O(k, d): return OPT.get(k, d)

HUGE = 0x40000000
H0 = 4 << 20
HSTR = 88 * 1024
O0 = 10 << 20
FL0 = 12 << 20
ST0 = FL0 + (64 << 10)
SP0 = FL0 + (256 << 10)
WSSZ = 13 << 20
WB = 65536
CS1 = 0; C1STR = 520
STRIP = 49152
CS2 = 53248; CSTR = 1040
LDSSZ = 163840

STC = 4
STB = 18 + 2
sKV = [8, 9, 10]; sRHO, sWB, sWS, sAL, sWL, sMSK, sGp = 11, 12, 13, 14, 15, 16, 17
SX, SQ, SG, SU, SD, SO, SOUT, SWS, SDBG = 24, 28, 32, 36, 40, 44, 48, 52, 56
sW, sRB, sCB, sTB2, sNB, sT0, sT2, sH2, sTB = 3, 60, 61, 62, 63, 64, 65, 66, 67
sX, sQ, sG, sM0X, sM0W = 68, 69, 70, 71, 72
sT, sTb, sTc, sTd = 73, 74, 75, 76
sPK, sPH, sM0D, sD, sSPIN = 77, 78, 80, 81, 82
sPHI, sPH2, sC, sHUGE, sA = 83, 84, 85, 86, 87
sM0K = 79; sSP, sSG = 0, 1
STREG = list(range(90, 94)) + list(range(18, 24))
sHE = [18, 19, 20, 21, 22, 23, 92, 93]
sWE = 94
sLH = [64, 65, 16]; sLW = [17, 14, 15]
def srd(n): return "s[%d:%d]" % (n, n + 3)
def vr(a, n): return "v[%d:%d]" % (a, a + n - 1)
def ar(a, n): return "a[%d:%d]" % (a, a + n - 1)

vL = 0; vT0, vT1, vT2 = 1, 2, 3
vXo = 4; vQo = 8; vGo = 10; vXr = 12; vXp = 16; vWr = 20
vK = [4, 8]
vBx = [12, 16]; vG = 20
vQo2 = 28; vGo2 = 30; vW2r = 32
vSum = 40; vCS1 = 44; vCS2 = 48
vL16, vKVst, vHst, vFl2, vCSw1, vCSw2, vPoll, vInit, vCSr, vSPo, vDo = 52, 53, 54, 55, 56, 57, 58, 59, 60, 61, 62
ACC1 = 64; ACC2 = 160
vXT = 160; vSL = 176
vKa, vVa, vVinc, vOst, vKVo, vPa, vPb, vW3r = 208, 209, 210, 211, 212, 213, 214, 215
vOut, vEo, vAo, vOo, vFl1, vRw, vRr, vPs, vQS = 217, 219, 221, 223, 225, 226, 227, 228, 229
vU = 232; vCSA = [240, 244, 248]
vXres = 28
vBF = 64; vBD = 80; vS = [96, 112]; vP = [128, 136]; vQ = 144; vO = [160, 176]
vOF = 64
aSTV = 200; aMSK = 216
aX = 0; aSEL = 128; aXP = 140; aWF = 152
aH = 0; aW2 = 176; aACC = 192; aK = 192; aV = 200

prog = []; rare = []
def L(txt, **kw): return [I(ln.strip(), **kw) for ln in txt.strip().split("\n") if ln.strip() and not ln.strip().startswith(";")]
def E(x, **kw):
    if isinstance(x, str): prog.extend(L(x, **kw))
    elif isinstance(x, Ins): prog.append(x)
    else: prog.extend(x)
def flat(g): return [x for y in g for x in y]
one = lambda g: 1
nstamp = [0]; xfc = [0]
TIMER = "s_memrealtime" if O("rt", 0) else "s_memtime"
def stampq(sets=(1,)):
    if O("xf", 0):
        if 1 in sets:
            xfc[0] += 1
            if xfc[0] == OPT["xf"]: return L("s_waitcnt lgkmcnt(0)\n%s s[90:91]\ns_waitcnt lgkmcnt(0)" % ("s_memtime" if O("xfc", 0) else "s_memrealtime"))
        return []
    if OPT["stamps"] == 14 and 1 in sets:
        k = nstamp[0]; nstamp[0] += 2
        return L("s_waitcnt lgkmcnt(0)\ns_memtime s[88:89]\ns_memrealtime s[90:91]\ns_waitcnt lgkmcnt(0)\nv_writelane_b32 v231, s88, %d\nv_writelane_b32 v231, s90, %d" % (k, k + 1))
    if OPT["stamps"] in sets:
        k = nstamp[0]; nstamp[0] += 1
        return L("s_waitcnt lgkmcnt(0)\n%s s[88:89]\ns_waitcnt lgkmcnt(0)\nv_writelane_b32 v231, s88, %d" % (TIMER, k))
    return []
def stamp(sets=(1,)): E(stampq(sets))
def fx(f): return "0x%08x" % struct.unpack("<I", struct.pack("<f", f))[0]
MF = "v_mfma_f32_32x32x16_bf16"; MS = "v_mfma_f32_16x16x32_bf16"
HOME = dict(Ka=vKa, Va=vVa, Vinc=vVinc, Ost=vOst, KVo=vKVo, Pa=vPa, Pb=vPb, W3r=vW3r, W3s=vW3r+1, Out=vOut, Out1=vOut+1, Eo=vEo, Eo1=vEo+1, Ao=vAo, Ao1=vAo+1, Oo=vOo, Oo1=vOo+1, Fl1=vFl1, Rw=vRw, Rr=vRr)
def park(name, src): return f"v_mov_b32 v{HOME[name]}, {src}\n"
def dma(voff, S, soff, imm, tag, flags="", need=None):
    o = (" offset:%d" % imm) if imm else ""
    return I(f"buffer_load_dwordx4 v{voff}, {srd(S)}, {soff} offen{o} {flags} lds", tag=tag, need=need)
def glue(q):
    out = []; cur = []
    for n, x in enumerate(q):
        if isinstance(x, list):
            assert not cur
            out.append(x); continue
        cur.append(x)
        nxt = q[n + 1] if n + 1 < len(q) else None
        if x.op.startswith("s_cmp") or (nxt is not None and not isinstance(nxt, list) and nxt.op.startswith("s_cselect")): continue
        out.append(cur); cur = []
    if cur: out.append(cur)
    return out

def t0_of(dst, cb, tmp):
    tab = sum(((c >= 7) + (c >= 8) + (c >= 14) + (c >= 15) & 3) << (2 * c) for c in range(16))
    return f"""s_lshl_b32 s{tmp}, s{cb}, 1
s_lshr_b32 s{tmp}, 0x{tab:08x}, s{tmp}
s_and_b32 s{tmp}, s{tmp}, 3
s_mul_i32 s{dst}, s{cb}, 3
s_sub_u32 s{dst}, s{dst}, s{tmp}
s_min_u32 s{dst}, s{dst}, 41
"""
E("""
s_cmp_ge_u32 s2, 256
s_cbranch_scc1 L_end
s_load_dwordx4 s[4:7], s[0:1], 0
s_load_dwordx2 s[8:9], s[0:1], 16
s_load_dwordx4 s[12:15], s[0:1], 32
s_load_dwordx4 s[16:19], s[0:1], 48
s_load_dwordx4 s[20:23], s[0:1], 64
""")
if OPT["stamps"]: E(TIMER + " s[88:89]")
if OPT["stamps"] == 14: E("s_memrealtime s[90:91]")
if O("xf", 0): E("s_memrealtime s[88:89]\ns_memtime s[92:93]")
def ctouch(vtid):
    return L(f"""s_getpc_b64 s[40:41]
s_mov_b32 s42, L_table_end-.
s_mov_b32 s43, 0x20000
s_lshr_b32 s44, s2, 3
s_lshl_b32 s44, s44, 11
v_and_b32 v{vU}, 15, v{vtid}
v_lshrrev_b32 v{vU+1}, 4, v{vtid}
v_lshlrev_b32 v{vU}, 7, v{vU}
v_lshl_add_u32 v{vU}, v{vU+1}, 24, v{vU}
buffer_load_dword v255, v{vU}, s[40:43], s44 offen""")
if O("ctouch", 1) == 1: E(ctouch(0))
else: E(f"v_mov_b32 v{vU+2}, v0")
E(f"""
v_lshrrev_b32 v{vT0}, 6, v0
v_and_b32 v{vL}, 63, v0
v_readfirstlane_b32 s{sW}, v{vT0}
s_and_b32 s{sT}, s2, 7
s_lshr_b32 s{sTb}, s2, 3
s_lshr_b32 s{sTc}, s{sT}, 2
s_lshl_b32 s{sRB}, s{sTc}, 3
s_and_b32 s{sTd}, s{sTb}, 7
s_add_u32 s{sRB}, s{sRB}, s{sTd}
s_and_b32 s{sCB}, s{sT}, 3
s_lshl_b32 s{sCB}, s{sCB}, 2
s_lshr_b32 s{sTd}, s{sTb}, 3
s_add_u32 s{sCB}, s{sCB}, s{sTd}
s_lshl_b32 s{sTB2}, s{sT}, 2
s_and_b32 s{sTd}, s{sTb}, 3
s_add_u32 s{sTB2}, s{sTB2}, s{sTd}
s_lshr_b32 s{sNB}, s{sTb}, 2
""")
PH = O("phi", 2); NL_ = O("nlock", 2)
def table(order): return sum(c << (4 * i) for i, c in enumerate(order))
if PH == 2: tabs = [table([(c + 2 * r) & 7 for c in range(8)]) for r in range(4)]
else:
    d = O("dst", 3); n = 8 - NL_
    tabs = [table(list(range(NL_)) + [NL_ + (c + (n * r) // d) % n for c in range(n)]) for r in range(d)]
nt = len(tabs)
E(f"s_add_u32 s{sT}, s{sCB}, s{sRB}")
if nt == 4: E(f"s_and_b32 s{sT}, s{sT}, 3")
elif nt == 2: E(f"s_and_b32 s{sT}, s{sT}, 1")
else: E(f"s_mul_i32 s{sTb}, s{sT}, 43\ns_lshr_b32 s{sTb}, s{sTb}, 7\ns_mul_i32 s{sTb}, s{sTb}, 3\ns_sub_u32 s{sT}, s{sT}, s{sTb}")
E(f"s_mov_b32 s{sPHI}, 0x{tabs[0]:08x}")
for r in range(1, nt): E(f"s_cmp_eq_u32 s{sT}, {r}\ns_cselect_b32 s{sPHI}, 0x{tabs[r]:08x}, s{sPHI}")
E(f"""
s_lshl_b32 s{sTB}, s{sRB}, 2
s_add_u32 s{sTB}, s{sTB}, s{sW}

s_lshl_b32 s{sM0X}, s{sW}, 12
s_lshl_b32 s{sM0W}, s{sW}, 11
s_add_u32 s{sM0W}, s{sM0W}, {WB}
s_lshl_b32 s{sT}, s{sTB}, 15
v_lshrrev_b32 v{vT0}, 3, v{vL}
v_lshlrev_b32 v{vT0}, 10, v{vT0}
v_add_u32 v{vT0}, s{sT}, v{vT0}
v_and_b32 v{vT1}, 7, v{vL}
v_lshrrev_b32 v{vT2}, 4, v{vL}
v_xor_b32 v{vT1}, v{vT1}, v{vT2}
v_lshl_add_u32 v{vXo}, v{vT1}, 4, v{vT0}
v_xor_b32 v{vT1}, 4, v{vT1}
v_lshl_add_u32 v{vXo+1}, v{vT1}, 4, v{vT0}
v_add_u32 v{vXo+1}, {7*1024}, v{vXo+1}
v_add_u32 v{vXo+2}, {14*1024}, v{vXo}
v_add_u32 v{vXo+3}, {14*1024}, v{vXo+1}
""")
def mksrd(n, p, size): return f"s_mov_b32 s{n}, s{p}\ns_mov_b32 s{n+1}, s{p+1}\ns_mov_b32 s{n+2}, {size}\ns_mov_b32 s{n+3}, 0x20000\n"
EX = O("ex", 1)
if EX:
    E(f"s_mov_b32 m0, s{sM0X}\ns_and_b32 s{sC}, s{sPHI}, 7\ns_lshl_b32 s{sX}, s{sC}, 7\n" + mksrd(SX, 4, 2097152))
    E([dma(vXo + i, SX, f"s{sX}", 1024 * i, "c0") for i in range(4)])
E(f"""
{t0_of(sT0, sCB, sT)}v_lshrrev_b32 v{vT0}, 5, v{vL}
v_bfe_u32 v{vT1}, v{vL}, 2, 2
v_lshl_add_u32 v{vT0}, v{vT0}, 2, v{vT1}
v_bfe_u32 v{vT1}, v{vL}, 4, 1
v_and_b32 v{vT2}, 3, v{vL}
v_lshlrev_b32 v{vT2}, 4, v{vT2}
v_lshl_add_u32 v{vT1}, v{vT1}, 6, v{vT2}
v_lshl_add_u32 v{vDo}, v{vT0}, 10, v{vT1}
s_lshl_b32 s{sT}, s{sW}, 4
v_add_u32 v{vT0}, s{sT}, v{vT0}
s_and_b32 s{sT}, s{sCB}, 1
s_add_u32 s{sT}, s{sT}, 1
s_lshl_b32 s{sT}, s{sT}, 10
s_lshr_b32 s{sTb}, s{sCB}, 1
s_lshl_b32 s{sTb}, s{sTb}, 7
s_add_u32 s{sT}, s{sT}, s{sTb}
v_mul_u32_u24 v{vQo}, 3072, v{vT0}
v_add3_u32 v{vQo}, v{vQo}, v{vT1}, s{sT}
v_add_u32 v{vQo+1}, {8*3072-1024}, v{vQo}
s_lshl_b32 s{sT}, s{sT0}, 6
v_mul_u32_u24 v{vGo}, 2752, v{vT0}
v_add3_u32 v{vGo}, v{vGo}, v{vT1}, s{sT}
v_add_u32 v{vGo+1}, {8*2752-1024}, v{vGo}
""")
E(("" if EX else mksrd(SX, 4, 2097152)) + mksrd(SQ, 6, 1572864) + mksrd(SG, 12, 1409024) + mksrd(SU, 14, 1409024))
if OPT["stamps"]:
    E("v_mov_b32 v231, -1\nv_writelane_b32 v231, s88, 0"); nstamp[0] = 1
    if OPT["stamps"] == 14: E("v_writelane_b32 v231, s90, 1"); nstamp[0] = 2

def p1_dma(c):
    sl = c & 3; t = "c%d" % c
    g = []
    g.append(L(f"s_bfe_u32 s{sC}, s{sPHI}, {0x30000 + 4*c}\ns_add_u32 m0, s{sM0X}, {sl*16384}\ns_lshl_b32 s{sX}, s{sC}, 7") + [dma(vXo, SX, f"s{sX}", 0, t)])
    g += [[dma(vXo + i, SX, f"s{sX}", 1024 * i, t)] for i in range(1, 4)]
    g.append(L(f"s_add_u32 m0, s{sM0W}, {sl*24576}\ns_mul_i32 s{sQ}, s{sC}, 196608") + [dma(vQo, SQ, f"s{sQ}", 0, t)])
    g.append([dma(vQo + 1, SQ, f"s{sQ}", 1024, t), I(f"s_add_u32 m0, s{sM0W}, {sl*24576+8192}")])
    g.append(L(f"s_mul_i32 s{sG}, s{sC}, 176128") + [dma(vGo, SG, f"s{sG}", 0, t)])
    g.append([dma(vGo + 1, SG, f"s{sG}", 1024, t), I(f"s_add_u32 m0, s{sM0W}, {sl*24576+16384}")])
    g.append([dma(vGo, SU, f"s{sG}", 0, t)])
    g.append([dma(vGo + 1, SU, f"s{sG}", 1024, t)])
    return g
def p2_dma(p):
    t = "p%d" % p
    g = []
    g.append(L(f"s_bfe_u32 s{sC}, s{sPH2}, {0x30000 + 8*p}\ns_add_u32 m0, s{sM0W}, {p*24576}\ns_mul_i32 s{sQ}, s{sC}, 196608") + [dma(vQo2, SQ, f"s{sQ}", 0, t)])
    g.append([dma(vQo2 + 1, SQ, f"s{sQ}", 1024, t), I(f"s_add_u32 m0, s{sM0W}, {p*24576+8192}")])
    g.append(L(f"s_mul_i32 s{sG}, s{sC}, 176128") + [dma(vGo2, SG, f"s{sG}", 0, t)])
    g.append([dma(vGo2 + 1, SG, f"s{sG}", 1024, t), I(f"s_add_u32 m0, s{sM0W}, {p*24576+16384}")])
    g.append([dma(vGo2, SU, f"s{sG}", 0, t)])
    g.append([dma(vGo2 + 1, SU, f"s{sG}", 1024, t)])
    return g

E(mksrd(SWS, 22, WSSZ) + mksrd(SDBG, 20, 256) + f"""
s_mov_b32 s{sHUGE}, {HUGE}
v_lshlrev_b32 v{vL16}, 4, v{vL}
s_mul_i32 s{sT}, s{sW}, 10240
s_add_u32 s{sT}, s{sT}, {FL0}
s_cmp_lg_u32 s2, 0
s_cselect_b32 s{sT}, s{sHUGE}, s{sT}
s_cbranch_scc1 L_nozero
s_add_u32 s{sTb}, s{sT}, 4096
s_add_u32 s{sTc}, s{sT}, 8192
v_mov_b32 v{vXT}, 0
v_mov_b32 v{vXT+1}, 0
v_mov_b32 v{vXT+2}, 0
v_mov_b32 v{vXT+3}, 0
""")
for i in range(10):
    E(I(f"buffer_store_dwordx4 {vr(vXT,4)}, v{vL16}, {srd(SWS)}, s{[sT, sTb, sTc][i>>2]} offen offset:{1024*(i&3)} sc1", tag="zero"))
prog[-1].post = "\nL_nozero:"
stamp((2, 15))
if O("tlb", 0):
    E(f"""s_cmp_eq_u32 s{sW}, 1
s_cselect_b32 s44, s{SQ}, s{SX}
s_cselect_b32 s45, s{SQ+1}, s{SX+1}
s_cmp_eq_u32 s{sW}, 2
s_cselect_b32 s44, s{SG}, s44
s_cselect_b32 s45, s{SG+1}, s45
s_cmp_eq_u32 s{sW}, 3
s_cselect_b32 s44, s{SU}, s44
s_cselect_b32 s45, s{SU+1}, s45
s_mov_b32 s46, 1409024
s_mov_b32 s47, 0x20000
v_lshlrev_b32 v{vT0}, {O("tlbs", 24)}, v{vL}
buffer_load_dword v{vXT+7}, v{vT0}, s[44:47], 0 offen""")
g0 = p1_dma(0)
CT = O("ctouch", 1)
NI = O("ni", 9)
if O("c0o", 0):
    t = "c0"
    mk = lambda m, vo, S, so, imm: L(f"s_add_u32 m0, s{m[0]}, {m[1]}\ns_nop 0") + [dma(vo, S, f"s{so}", imm, t)]
    E(f"s_lshl_b32 s{sX}, s{sPHI}, 7\ns_mul_i32 s{sQ}, s{sPHI}, 196608\ns_mul_i32 s{sG}, s{sPHI}, 176128")
    X_, K_, G_, U_ = (sM0X, 0), (sM0W, 0), (sM0W, 8192), (sM0W, 16384)
    g0 = [mk(X_, vXo, SX, sX, 0), mk(G_, vGo, SG, sG, 0), mk(U_, vGo, SU, sG, 0), mk(K_, vQo, SQ, sQ, 0), mk(X_, vXo + 1, SX, sX, 1024), [dma(vXo + 2, SX, f"s{sX}", 2048, t)], [dma(vXo + 3, SX, f"s{sX}", 3072, t)],
          mk(K_, vQo + 1, SQ, sQ, 1024), mk(G_, vGo + 1, SG, sG, 1024), mk(U_, vGo + 1, SU, sG, 1024)]
if EX:
    E(flat(g0[4:NI]))
elif CT >= 2: E(flat(g0[:CT - 1]) + ctouch(vU + 2) + flat(g0[CT - 1:NI]))
else: E(flat(g0[:NI]))
g0 = g0[NI:]
if OPT["stamps"] == 15:
    stamp((15,))
    for i in range(NI):
        E(f"s_waitcnt vmcnt({NI-1-i})"); stamp((15,))
stamp((2,))
init_mark = len(prog)
E(mksrd(SD, 16, 1409024) + mksrd(SO, 8, 524288) + mksrd(SOUT, 18, 2097152))
ann = L(f"""
s_cmp_lg_u32 s2, 0
s_cselect_b32 s{sT}, s{sHUGE}, 0
s_lshl_b32 s{sTb}, s{sW}, 2
s_add_u32 s{sT}, s{sT}, s{sTb}
v_mov_b32 v{vT0}, 1
v_lshlrev_b32 v{vT1}, 8, v{vL}
""") + [I(f"buffer_store_dword v{vT0}, v{vT1}, {srd(SDBG)}, s{sT} offen sc1", need=["zero"])]
E(f"""
s_lshr_b32 s{sPH2}, s{sW}, 1
s_lshl_b32 s{sPH2}, s{sPH2}, 2
s_lshr_b32 s{sPH2}, s{sPHI}, s{sPH2}
s_lshr_b32 s{sT}, 0xe0c0, s{sCB}
s_and_b32 s{sT}, s{sT}, 1
s_cselect_b32 s{sMSK}, s{sHUGE}, 0
s_add_u32 s{sT2}, s{sT0}, 2
""")
if O("w2m", 0) == 0:
    w2touch = L(f"""s_mul_i32 s{sT}, s2, 3
s_add_u32 s{sT}, s{sT}, s{sW}
s_mov_b32 s{STC+3}, 0x20000
s_cmp_eq_u32 s{sW}, 3
s_cselect_b32 s{sT}, s2, s{sT}
s_cselect_b32 s{STC}, s{SO}, s{SD}
s_cselect_b32 s{STC+1}, s{SO+1}, s{SD+1}
s_cselect_b32 s{STC+2}, s{SO+2}, s{SD+2}
s_lshl_b32 s{sT}, s{sT}, 11
v_and_b32 v{vT0}, 15, v{vL}
v_lshlrev_b32 v{vT0}, 7, v{vT0}
v_lshrrev_b32 v{vT1}, 4, v{vL}
v_lshl_add_u32 v{vT0}, v{vT1}, 28, v{vT0}
buffer_load_dword v{vPoll}, v{vT0}, {srd(STC)}, s{sT} offen sc1""")
else:
    w2touch = L(f"""s_lshr_b32 s{sTb}, s2, 3
s_lshl_b32 s{sTb}, s{sTb}, 2
s_and_b32 s{sT}, s2, 3
s_add_u32 s{sTb}, s{sTb}, s{sT}
s_mul_i32 s{sT}, s{sTb}, 3
s_add_u32 s{sT}, s{sT}, s{sW}
s_mov_b32 s{STC+3}, 0x20000
s_cmp_eq_u32 s{sW}, 3
s_cselect_b32 s{sT}, s{sTb}, s{sT}
s_cselect_b32 s{STC}, s{SO}, s{SD}
s_cselect_b32 s{STC+1}, s{SO+1}, s{SD+1}
s_cselect_b32 s{STC+2}, s{SO+2}, s{SD+2}
s_lshl_b32 s{sT}, s{sT}, 12
s_and_b32 s{sTb}, s2, 4
s_lshl_b32 s{sTb}, s{sTb}, 27
s_add_u32 s{sT}, s{sT}, s{sTb}
v_and_b32 v{vT0}, 31, v{vL}
v_lshlrev_b32 v{vT0}, 7, v{vT0}
v_lshrrev_b32 v{vT1}, 5, v{vL}
v_lshl_add_u32 v{vT0}, v{vT1}, 28, v{vT0}
buffer_load_dword v{vPoll}, v{vT0}, {srd(STC)}, s{sT} offen sc1""")
if O("xt", 0):
    E(f"""s_lshr_b32 s{sTb}, s2, 3
s_lshl_b32 s{sTb}, s{sTb}, 2
s_and_b32 s{sT}, s2, 3
s_add_u32 s{sTb}, s{sTb}, s{sT}
s_lshl_b32 s{sTb}, s{sTb}, 2
s_add_u32 s{sT}, s{sTb}, s{sW}
s_lshl_b32 s{sT}, s{sT}, 11
s_add_u32 s{sT}, s{sT}, 0x100000
s_and_b32 s{sTb}, s2, 4
s_lshl_b32 s{sTb}, s{sTb}, 27
s_add_u32 s{sT}, s{sT}, s{sTb}
v_and_b32 v{vT0}, 15, v{vL}
v_lshlrev_b32 v{vT0}, 7, v{vT0}
v_lshrrev_b32 v{vT1}, 4, v{vL}
v_lshl_add_u32 v{vT0}, v{vT1}, 28, v{vT0}
buffer_load_dword v254, v{vT0}, {srd(SX)}, s{sT} offen sc1""")
E(f"""
v_and_b32 v{vT0}, 31, v{vL}
v_lshrrev_b32 v{vT1}, 5, v{vL}
v_bfe_u32 v{vT2}, v{vL}, 1, 3
v_xor_b32 v{vT2}, v{vT2}, v{vT1}
v_lshlrev_b32 v{vT0}, 7, v{vT0}
v_lshl_add_u32 v{vT0}, v{vT2}, 4, v{vT0}
v_add_u32 v{vT0}, s{sM0X}, v{vT0}
""")
for s in range(4):
    E(f"s_xor_b32 s{sT}, s{sW}, {s}\ns_lshl_b32 s{sT}, s{sT}, 5\nv_xor_b32 v{vXr+s}, s{sT}, v{vT0}\nv_xor_b32 v{vXp+s}, 4096, v{vXr+s}")
E(f"""
v_bfe_u32 v{vT2}, v{vL}, 2, 2
v_lshlrev_b32 v{vT2}, 6, v{vT2}
v_bfe_u32 v{vT0}, v{vL}, 4, 1
v_lshl_add_u32 v{vT2}, v{vT0}, 5, v{vT2}
v_and_b32 v{vT0}, 3, v{vL}
v_lshl_add_u32 v{vT2}, v{vT0}, 3, v{vT2}
v_lshl_add_u32 v{vT0}, v{vT1}, 10, v{vT2}
v_lshl_add_u32 v{vT2}, v{vT1}, 9, v{vT2}
s_and_b32 s{sTc}, s{sW}, 1
s_lshl_b32 s{sTc}, s{sTc}, 8
s_add_u32 s{sTc}, s{sTc}, {WB}
s_mul_i32 s{sT}, s{sW}, 6144
s_add_u32 s{sM0D}, s{sT}, {WB}
v_add_u32 v{vT1}, s{sM0D}, v{vT2}
{park("W3r", f"v{vT1}")}v_add_u32 v{vT1}, 49152, v{vT1}
{park("W3s", f"v{vT1}")}
""")
for s in range(4):
    E(f"""
s_xor_b32 s{sT}, s{sW}, {s}
s_lshl_b32 s{sTb}, s{sT}, 11
s_add_u32 s{sTb}, s{sTb}, s{sTc}
v_add_u32 v{vWr+2*s}, s{sTb}, v{vT0}
v_add_u32 v{vWr+2*s+1}, 49152, v{vWr+2*s}
s_lshl_b32 s{sTb}, s{sT}, 10
s_add_u32 s{sTb}, s{sTb}, {WB}
v_add_u32 v{vW2r+2*s}, s{sTb}, v{vT2}
v_add_u32 v{vW2r+2*s+1}, 49152, v{vW2r+2*s}
""")
E(f"""
v_lshrrev_b32 v{vT0}, 2, v{vL}
s_and_b32 s{sT}, s{sW}, 1
s_lshl_b32 s{sT}, s{sT}, 5
v_add_u32 v{vT0}, s{sT}, v{vT0}
v_and_b32 v{vT1}, 3, v{vL}
v_lshlrev_b32 v{vT1}, 4, v{vT1}
s_lshl_b32 s{sT}, s{sCB}, 6
v_mul_u32_u24 v{vQo2}, 3072, v{vT0}
v_add3_u32 v{vQo2}, v{vQo2}, v{vT1}, s{sT}
v_add_u32 v{vQo2+1}, {16*3072-1024}, v{vQo2}
s_lshl_b32 s{sT}, s{sT2}, 6
v_mul_u32_u24 v{vGo2}, 2752, v{vT0}
v_add3_u32 v{vGo2}, v{vGo2}, v{vT1}, s{sT}
v_add_u32 v{vGo2}, s{sMSK}, v{vGo2}
v_add_u32 v{vGo2+1}, {16*2752-1024}, v{vGo2}
v_and_b32 v{vT0}, 15, v{vL}
v_bfe_u32 v{vT1}, v{vL}, 4, 1
v_sub_u32 v{vT0}, v{vT0}, v{vT1}
v_mov_b32 v{vT1}, 0x3f803f80
""")
for t in range(3):
    E(f"v_cmp_eq_u32 vcc, {2*t}, v{vT0}\nv_cndmask_b32 v{vT2}, 0, v{vT1}, vcc")
    E("\n".join(f"v_accvgpr_write_b32 a{aSEL+4*t+j}, v{vT2}" for j in range(4)))
E(f"""
s_lshl_b32 s{sT}, s{sRB}, 2
s_sub_i32 s{sT}, 8, s{sT}
v_and_b32 v{vT0}, 7, v{vL}
v_lshlrev_b32 v{vT0}, 1, v{vT0}
v_mov_b32 v{vT1}, 0x3f80
v_cmp_le_i32 vcc, s{sT}, v{vT0}
v_cndmask_b32 v{vT2}, 0, v{vT1}, vcc
v_accvgpr_write_b32 a{aSTV}, v{vT2}
v_accvgpr_write_b32 a{aSTV+1}, 0
v_add_u32 v{vT0}, 1, v{vT0}
v_cmp_le_i32 vcc, s{sT}, v{vT0}
v_cndmask_b32 v{vT2}, 0, v{vT1}, vcc
v_cmp_ne_u32 vcc, 15, v{vT0}
v_cndmask_b32 v{vT2}, 0, v{vT2}, vcc
v_accvgpr_write_b32 a{aSTV+2}, v{vT2}
v_accvgpr_write_b32 a{aSTV+3}, 0
v_lshlrev_b32 v{vT0}, 3, v{vL}
s_and_b32 s{sTc}, s{sW}, 1
s_lshr_b32 s{sT}, s{sTB}, 1
s_lshl_b32 s{sTb}, s{sT}, 13
s_add_u32 s{sTb}, s{sTb}, {SP0}
s_lshl_b32 s{sTd}, s{sTc}, 8
v_xor_b32 v{vT1}, s{sTd}, v{vT0}
v_add_u32 v{vSPo}, s{sTb}, v{vT1}
s_lshl_b32 s{sSP}, s{sCB}, 9
s_and_b32 s{sSG}, s{sCB}, 12
s_lshl_b32 s{sSG}, s{sSG}, 9
s_lshl_b32 s{sT}, s{sT}, 8
s_and_b32 s{sTb}, s{sCB}, 12
s_lshl_b32 s{sTb}, s{sTb}, 3
s_add_u32 s{sT}, s{sT}, s{sTb}
s_add_u32 s{sT}, s{sT}, {FL0+4*8192}
v_bfe_u32 v{vT1}, v{vL}, 2, 1
v_and_b32 v{vT2}, 3, v{vL}
v_lshlrev_b32 v{vT2}, 3, v{vT2}
v_lshl_add_u32 v{vT1}, v{vT1}, 7, v{vT2}
v_add_u32 v{vPs}, s{sT}, v{vT1}
s_and_b32 s{sTc}, s{sW}, 1
s_mul_i32 s{sT}, s{sTc}, {8*C1STR}
v_add_u32 v{vCSr}, s{sT}, v{vT0}
s_lshr_b32 s{sTb}, s{sW}, 1
s_lshl_b32 s{sTd}, s{sTb}, 8
s_add_u32 s{sT}, s{sT}, s{sTd}
v_bfe_u32 v{vT0}, v{vL}, 1, 3
v_and_b32 v{vT1}, 1, v{vL}
v_lshrrev_b32 v{vT2}, 4, v{vL}
v_lshl_add_u32 v{vT1}, v{vT1}, 2, v{vT2}
v_mul_u32_u24 v{vT2}, {C1STR}, v{vT0}
v_lshl_add_u32 v{vT2}, v{vT1}, 5, v{vT2}
v_add_u32 v{vCSw1}, s{sT}, v{vT2}
s_lshl_b32 s{sT}, s{sTb}, 9
s_lshl_b32 s{sTd}, s{sTc}, 3
s_add_u32 s{sT}, s{sT}, s{sTd}
v_mul_u32_u24 v{vT2}, {CSTR}, v{vT0}
v_lshl_add_u32 v{vT2}, v{vT1}, 6, v{vT2}
v_add_u32 v{vCSw2}, s{sT}, v{vT2}
v_and_b32 v{vT0}, 31, v{vL}
v_lshrrev_b32 v{vT1}, 5, v{vL}
v_lshl_add_u32 v{vT0}, v{vT0}, 1, v{vT1}
v_lshlrev_b32 v{vT0}, 4, v{vT0}
v_add_u32 v{vT0}, 2048, v{vT0}
s_and_b32 s{sT}, s{sCB}, 1
s_cmp_eq_u32 s{sT}, 1
s_cselect_b64 vcc, -1, 0
v_cndmask_b32 v{vKVst}, v{vL16}, v{vT0}, vcc
s_and_b32 s{sT}, s{sCB}, 14
s_add_u32 s{sT}, s{sT}, s{sTc}
s_lshl_b32 s{sT}, s{sT}, 18
s_and_b32 s{sTb}, s{sTB}, -2
s_lshl_b32 s{sTd}, s{sTb}, 12
s_add_u32 s{sT}, s{sT}, s{sTd}
v_add_u32 v{vKVst}, s{sT}, v{vKVst}
s_lshl_b32 s{sPK}, s{sTc}, 12
s_mul_i32 s{sT}, s{sTb}, {HSTR}
s_add_u32 s{sT}, s{sT}, {H0}
s_lshl_b32 s{sTd}, s{sCB}, 12
s_add_u32 s{sT}, s{sT}, s{sTd}
s_lshl_b32 s{sTd}, s{sTc}, 11
s_add_u32 s{sT}, s{sT}, s{sTd}
v_add_u32 v{vHst}, s{sT}, v{vL16}
s_mul_i32 s{sPH}, s{sTc}, {HSTR}
s_lshr_b32 s{sT}, s{sCB}, 3
s_lshl_b32 s{sT}, s{sT}, 1
s_sub_u32 s{sT}, s{sCB}, s{sT}
s_lshl_b32 s{sT}, s{sT}, 11
s_add_u32 s{sT}, s{sT}, 65536
s_add_u32 s{sT}, s{sT}, s{sPH}
s_lshl_b32 s{sTd}, s{sCB}, 12
s_sub_u32 s{sT}, s{sT}, s{sTd}
s_lshl_b32 s{sTd}, s{sTc}, 11
s_sub_u32 s{sT}, s{sT}, s{sTd}
s_and_b32 s{sH2}, s{sCB}, 7
s_cmp_lt_u32 s{sH2}, 6
s_cselect_b32 s{sH2}, s{sT}, s{sHUGE}
s_lshl_b32 s{sT}, s{sTb}, 7
s_lshl_b32 s{sTd}, s{sCB}, 3
s_add_u32 s{sTd}, s{sTd}, {FL0}
s_add_u32 s{sT}, s{sT}, s{sTd}
s_lshl_b32 s{sTb}, s{sTc}, 2
s_add_u32 s{sT}, s{sT}, s{sTb}
v_lshlrev_b32 v{vT0}, 7, v{vL}
v_add_u32 v{vT0}, s{sT}, v{vT0}
v_mov_b32 v{vT1}, s{sHUGE}
v_cmp_gt_u32 vcc, 2, v{vL}
v_cndmask_b32 v{vFl2}, v{vT1}, v{vT0}, vcc
s_lshl_b32 s{sT}, s{sTB}, 7
s_add_u32 s{sT}, s{sT}, s{sTd}
v_mov_b32 v{vT0}, s{sT}
v_cmp_eq_u32 vcc, 0, v{vL}
v_cndmask_b32 v{vT0}, v{vT1}, v{vT0}, vcc
{park("Fl1", f"v{vT0}")}
v_mov_b32 v{vSum}, 0
v_mov_b32 v{vSum+1}, 0
v_mov_b32 v{vSum+2}, 0
v_mov_b32 v{vSum+3}, 0
v_mov_b32 v{vCSA[0]+2}, 0
v_mov_b32 v{vCSA[0]+3}, 0
v_mov_b32 v{vCSA[1]+2}, 0
v_mov_b32 v{vCSA[1]+3}, 0
v_mov_b32 v{vCSA[2]+2}, 0
v_mov_b32 v{vCSA[2]+3}, 0
s_lshl_b32 s{sT}, s{sNB}, 7
v_add_u32 v{vDo}, s{sT}, v{vDo}
v_add_u32 v{vDo+1}, {7*1024}, v{vDo}
s_lshl_b32 s{sT}, s{sW}, 17
v_add_u32 v{vT0}, s{sT}, v{vDo}
{park("Eo", f"v{vT0}")}v_add_u32 v{vT0}, {7*1024}, v{vT0}
{park("Eo1", f"v{vT0}")}
s_mul_i32 s{sT}, s{sTB2}, {2*HSTR}
s_lshl_b32 s{sTb}, s{sW}, 14
s_add_u32 s{sT}, s{sT}, s{sTb}
s_add_u32 s{sT}, s{sT}, {H0}
v_add_u32 v{vT0}, s{sT}, v{vL16}
{park("Ao", f"v{vT0}")}v_add_u32 v{vT0}, {HSTR}, v{vT0}
{park("Ao1", f"v{vT0}")}
s_lshl_b32 s{sT}, s{sTB2}, 16
s_lshl_b32 s{sTb}, s{sW}, 13
s_add_u32 s{sT}, s{sT}, s{sTb}
s_add_u32 s{sT}, s{sT}, {O0}
v_add_u32 v{vT0}, s{sT}, v{vL16}
{park("Oo", f"v{vT0}")}v_add_u32 v{vT0}, 32768, v{vT0}
{park("Oo1", f"v{vT0}")}
s_lshl_b32 s{sRHO}, s{sTB2}, 1
s_add_u32 s{sRHO}, s{sRHO}, s{sNB}
s_and_b32 s{sRHO}, s{sRHO}, {7 if O("rot", 1) else 0}
s_lshl_b32 s{sWB}, s{sW}, 2
""")
for q in range(8):
    E(f"""s_add_u32 s{sT}, s{sRHO}, {q}
s_bfe_u32 s{sTb}, s{sT}, 0x20001
s_add_u32 s{sTb}, s{sTb}, s{sWB}
{t0_of(sTc, sTb, sTd)}s_and_b32 s{sT}, s{sT}, 1
s_add_u32 s{sT}, s{sT}, s{sTc}
s_lshl_b32 s{sWE+q}, s{sT}, 15
s_add_u32 s{sT}, s{sRHO}, {q}
s_and_b32 s{sT}, s{sT}, 7
s_lshl_b32 s{sHE[q]}, s{sT}, 11""")
E(f"""s_add_u32 s{sT}, s{sTB2}, s{sNB}
s_mul_i32 s{sTb}, s{sT}, 43
s_lshr_b32 s{sTb}, s{sTb}, 7
s_mul_i32 s{sTb}, s{sTb}, 3
s_sub_u32 s{sT}, s{sT}, s{sTb}
s_and_b32 s{sT}, s{sT}, {3 if O("rot", 1) else 0}
s_mul_i32 s{sTc}, s{sW}, 10240
s_sub_u32 s{sTc}, 65536, s{sTc}
s_mul_i32 s{sTd}, s{sW}, 9
s_lshr_b32 s{sTb}, s{sW}, 1
s_lshl_b32 s{sTb}, s{sTb}, 2
s_add_u32 s{sTd}, s{sTd}, s{sTb}
s_add_u32 s{sTd}, s{sTd}, 2
s_lshl_b32 s{sTd}, s{sTd}, 15""")
for q in range(3):
    E(f"""s_lshl_b32 s{sTb}, s{sT}, 11
s_add_u32 s{sLH[q]}, s{sTb}, s{sTc}
s_mul_i32 s{sTb}, s{sT}, 98304
s_add_u32 s{sLW[q]}, s{sTb}, s{sTd}
s_add_u32 s{sT}, s{sT}, 1
s_cmp_eq_u32 s{sT}, 3
s_cselect_b32 s{sT}, 0, s{sT}""")
E(f"""
s_lshl_b32 s{sA}, s{sRHO}, 11
s_lshl_b32 s{sWB}, s{sRHO}, 14
s_lshl_b32 s{sWS}, s{sRHO}, 10
v_lshrrev_b32 v{vT0}, 3, v{vL}
v_and_b32 v{vT1}, 7, v{vL}
s_lshl_b32 s{sT}, s{sTB2}, 6
s_lshl_b32 s{sTb}, s{sW}, 3
s_add_u32 s{sT}, s{sT}, s{sTb}
s_lshl_b32 s{sT}, s{sT}, 10
s_lshl_b32 s{sTb}, s{sNB}, 7
s_add_u32 s{sT}, s{sT}, s{sTb}
v_lshlrev_b32 v{vT2}, 10, v{vT0}
v_lshl_add_u32 v{vT2}, v{vT1}, 4, v{vT2}
v_add_u32 v{vT2}, s{sT}, v{vT2}
{park("Out", f"v{vT2}")}v_add_u32 v{vT2}, 32768, v{vT2}
{park("Out1", f"v{vT2}")}v_lshlrev_b32 v{vT1}, 1, v{vT1}
v_xor_b32 v{vT1}, v{vT1}, v{vT0}
v_lshlrev_b32 v{vT0}, 8, v{vT0}
v_lshl_add_u32 v{vT0}, v{vT1}, 4, v{vT0}
s_lshl_b32 s{sT}, s{sW}, 11
v_add_u32 v{vT0}, s{sT}, v{vT0}
{park("Rr", f"v{vT0}")}v_and_b32 v{vT0}, 31, v{vL}
v_lshrrev_b32 v{vT1}, 5, v{vL}
v_and_b32 v{vT2}, 7, v{vL}
v_xor_b32 v{vT1}, v{vT1}, v{vT2}
v_lshlrev_b32 v{vT0}, 8, v{vT0}
v_lshl_add_u32 v{vT0}, v{vT1}, 4, v{vT0}
s_lshl_b32 s{sT}, s{sW}, 14
v_add_u32 v{vT0}, s{sT}, v{vT0}
{park("Rw", f"v{vT0}")}
v_add_u32 v{vT0}, s{sM0X}, v{vL16}
{park("Ka", f"v{vT0}")}v_lshrrev_b32 v{vT1}, 5, v{vL}
v_bfe_u32 v{vT2}, v{vL}, 2, 2
v_lshl_add_u32 v{vT2}, v{vT1}, 2, v{vT2}
v_lshlrev_b32 v{vT2}, 5, v{vT2}
v_and_b32 v{vT0}, 1, v{vL}
v_lshl_add_u32 v{vT2}, v{vT0}, 4, v{vT2}
v_bfe_u32 v{vT0}, v{vL}, 1, 1
v_lshl_add_u32 v{vT2}, v{vT0}, 3, v{vT2}
s_add_u32 s{sT}, s{sM0X}, 2048
v_add_u32 v{vT2}, s{sT}, v{vT2}
v_xor_b32 v{vT1}, 1, v{vT1}
v_lshlrev_b32 v{vT1}, 7, v{vT1}
s_lshl_b32 s{sT}, s{sW}, 3
s_add_u32 s{sT}, s{sT}, {STRIP}
v_add_u32 v{vU}, {STRIP+120}, v{vT1}
v_add_u32 v{vT1}, s{sT}, v{vT1}
v_and_b32 v{vT0}, 2, v{vL}
v_cmp_eq_u32 vcc, 0, v{vT0}
v_cndmask_b32 v{vT1}, v{vU}, v{vT1}, vcc
v_cndmask_b32 v{vU}, 0, 8, vcc
v_and_b32 v{vT0}, 16, v{vL}
v_cmp_eq_u32 vcc, 0, v{vT0}
v_cndmask_b32 v{vT0}, v{vT1}, v{vT2}, vcc
{park("Va", f"v{vT0}")}v_mov_b32 v{vT2}, 4096
v_cndmask_b32 v{vT0}, v{vU}, v{vT2}, vcc
{park("Vinc", f"v{vT0}")}
s_lshl_b32 s{sT}, s{sTB}, 15
s_lshl_b32 s{sTb}, s{sCB}, 11
s_add_u32 s{sT}, s{sT}, s{sTb}
s_add_u32 s{sT}, s{sT}, {O0}
v_add_u32 v{vT0}, s{sT}, v{vL16}
{park("Ost", f"v{vT0}")}
s_lshl_b32 s{sT}, s{sCB}, 18
v_add_u32 v{vT0}, s{sT}, v{vL16}
{park("KVo", f"v{vT0}")}
""")
SENT = O("sent", 1)
sent_st = [I(f"buffer_store_dwordx4 {vr(vXT,4)}, v{vOst}, {srd(SWS)}, 0 offen offset:{1024*e} sc1", tag="sent") for e in range(2)] if SENT else []
for k in range(3):
    E(f"""
s_add_i32 s{sT}, s{sTB}, {-4*k}
s_lshl_b32 s{sKV[k]}, s{sT}, 12
s_cmp_lt_i32 s{sT}, 0
s_cselect_b32 s{sKV[k]}, s{sHUGE}, s{sKV[k]}
""")
E(f"""
v_min_u32 v{vT1}, 5, v{vL}
v_lshrrev_b32 v{vT2}, 1, v{vT1}
v_lshlrev_b32 v{vT2}, 2, v{vT2}
v_sub_u32 v{vT2}, s{sTB}, v{vT2}
v_cmp_gt_i32 vcc, 0, v{vT2}
v_mov_b32 v{vT0}, s{sTB}
v_cndmask_b32 v{vT2}, v{vT2}, v{vT0}, vcc
v_lshlrev_b32 v{vT2}, 7, v{vT2}
v_and_b32 v{vT1}, 1, v{vT1}
v_lshl_add_u32 v{vT2}, v{vT1}, 3, v{vT2}
s_and_b32 s{sT}, s{sCB}, 14
s_lshl_b32 s{sT}, s{sT}, 3
s_and_b32 s{sTb}, s{sCB}, 1
s_lshl_b32 s{sTb}, s{sTb}, 2
s_add_u32 s{sT}, s{sT}, s{sTb}
s_add_u32 s{sT}, s{sT}, {FL0}
v_add_u32 v{vT0}, s{sT}, v{vT2}
{park("Pa", f"v{vT0}")}
s_lshl_b32 s{sT}, s{sTB2}, 8
s_add_u32 s{sT}, s{sT}, {FL0+8192}
v_lshlrev_b32 v{vT0}, 2, v{vL}
v_add_u32 v{vT0}, s{sT}, v{vT0}
{park("Pb", f"v{vT0}")}
""")
if O("tblm", 1):
    E(f"""v_and_b32 v{vT1}, 31, v{vL}
v_lshrrev_b32 v{vT2}, 5, v{vL}
v_lshlrev_b32 v{vT2}, 2, v{vT2}
v_sub_u32 v{vT1}, v{vT1}, v{vT2}""")
    for j in range(16):
        kl = 8 * (j >> 2) + (j & 3)
        E(f"""v_subrev_u32 v{vT0}, {kl}, v{vT1}
v_ashrrev_i32 v{vT0}, 31, v{vT0}
v_and_b32 v{vT0}, 0xff000000, v{vT0}
v_accvgpr_write_b32 a{aMSK+16+j}, v{vT0}
v_xor_b32 v{vT0}, 0xff000000, v{vT0}
v_accvgpr_write_b32 a{aMSK+j}, v{vT0}""")
rest = prog[init_mark:]; del prog[init_mark:]
gall = p1_dma(1) + p1_dma(2)
N0 = O("n0", 10)
def safe_at(lst, n):
    x = lst[n]
    return not (x.op.startswith("s_cmp") or x.op == "s_and_b32" or (n + 1 < len(lst) and (lst[n + 1].op.startswith("s_cselect") or lst[n + 1].op.startswith("s_cbranch"))))
cut = int(len(rest) * O("f1", 30) / 100)
while not safe_at(rest, cut - 1): cut += 1
E(rest[:cut])
stamp((2,))
E(flat(g0))
rest = rest[cut:]
gs = gall[:N0]; k = 0
for n, x in enumerate(rest):
    E(x)
    if k < len(gs) and safe_at(rest, n) and n + 1 >= (k + 1) * len(rest) / (len(gs) + 1):
        E(gs[k]); k += 1
if O("w2t", 90) == 0: E(w2touch)
E(ann)
E(flat(gs[k:]))
if O("w2t", 90) == 1: E(w2touch)
stamp((1, 2, 3))

def wf1(st, t): return aWF + (st * 3 + t) * 4
LK = O('lk', 3)
def wf2(k, t): return aWF + ((k % (LK + 1)) * 3 + t) * 4
def p1_reads(c, s):
    sl = c & 3; st = s & 1
    o = [I(f"ds_read_b128 {ar(aX+(4*c+s)*4,4)}, v{vXr+s} offset:{sl*16384}")]
    for t in range(3):
        for n in range(2):
            o.append(I(f"ds_read_b64_tr_b16 {ar(wf1(st,t)+2*n,2)}, v{vWr+2*s+(sl>>1)} offset:{(sl&1)*24576+t*8192+n*512}"))
    o.insert(3, I(f"ds_read_b128 {ar(aXP+4*st,4)}, v{vXp+s} offset:{sl*16384}"))
    return o
def statread(g):
    c, s = g >> 2, g & 3
    return [I(f"ds_read_b128 {vr(vXT+4*s,4)}, v{vXr+s} offset:{(c&3)*16384}")]
def stats(s):
    o = []
    for j in range(4):
        x = vXT + 4 * s + j; a = vU + 2 * (j & 1)
        o += L(f"""v_lshlrev_b32 v{a}, 16, v{x}
v_and_b32 v{a+1}, 0xffff0000, v{x}
v_add_f32 v{vSum}, v{vSum}, v{a}
v_add_f32 v{vSum+1}, v{vSum+1}, v{a+1}
v_fmac_f32 v{vSum+2}, v{a}, v{a}
v_fmac_f32 v{vSum+3}, v{a+1}, v{a+1}""")
    return o
def cs_convert(vcs, vw, base, step):
    o = []
    for j in range(4):
        a = 252 if j & 1 else vU + 4
        o += L(f"""v_cvt_pk_bf16_f32 v{a}, v{vcs+j}, v{vcs+j}
v_and_b32 v{a+1}, 0xffff0000, v{a}
v_sub_f32 v{a+1}, v{vcs+j}, v{a+1}
v_cvt_pk_bf16_f32 v{a+1}, v{a+1}, v{a+1}""")
        o.append(I(f"ds_write_b64 v{vw}, {vr(a,2)} offset:{base+step*j}"))
    return o
C1 = -2.0 * 0.7978845608028654 * 1.4426950408889634
QC = 0.25 * 1.4426950408889634
stats_pub = L(f"""v_add_f32 v{vSum}, v{vSum}, v{vSum+1}
v_add_f32 v{vSum+1}, v{vSum+2}, v{vSum+3}
v_mov_b32 v{vSum+2}, v{vSum}
v_mov_b32 v{vSum+3}, v{vSum+1}
v_lshrrev_b32 v{vT0}, 5, v{vL}
v_permlane32_swap_b32 v{vSum}, v{vSum+2}
v_permlane32_swap_b32 v{vSum+1}, v{vSum+3}
v_lshl_add_u32 v{vT0}, v{vT0}, 28, v{vSPo}
v_add_f32 v{vSum}, v{vSum}, v{vSum+2}
v_add_f32 v{vSum+1}, v{vSum+1}, v{vSum+3}""") + [I(f"buffer_store_dwordx2 {vr(vSum,2)}, v{vT0}, {srd(SWS)}, s{sSP} offen sc1", tag="sp")]
stats_ld = [[I(f"buffer_load_dwordx2 {vr(vSL+2*i,2)}, v{vSPo}, {srd(SWS)}, s{sSG} offen offset:{512*i} sc1")] for i in range(4)]
b = vSL
stats_fin = L(f"""
v_add_f32 v{b}, v{b}, v{b+2}
v_add_f32 v{b+1}, v{b+1}, v{b+3}
v_add_f32 v{b+4}, v{b+4}, v{b+6}
v_add_f32 v{b+5}, v{b+5}, v{b+7}
v_add_f32 v{b}, v{b}, v{b+4}
v_add_f32 v{b+1}, v{b+1}, v{b+5}
v_mul_f32 v{vSum}, {fx(-1.0/512)}, v{b}
v_mul_f32 v{b+1}, {fx(1.0/512)}, v{b+1}
v_fma_f32 v{b+1}, -v{vSum}, v{vSum}, v{b+1}
v_max_f32 v{b+1}, 0, v{b+1}
v_add_f32 v{vSum+1}, {fx(1e-5)}, v{b+1}
v_mov_b32 v{vSum+2}, v{vSum}
v_mov_b32 v{vSum+3}, v{vSum+1}
s_nop 0
v_permlane32_swap_b32 v{vSum}, v{vSum+2}
v_permlane32_swap_b32 v{vSum+1}, v{vSum+3}
""")
def stats_k(o):
    R = vSum + 2 * o + 1; K = vK[o]; a = vU
    t = f"""
v_rsq_f32 v{K}, v{R}
v_mov_b32 v{K+3}, v{R}
v_mul_f32 v{K+1}, {fx(C1)}, v{K}
v_mul_f32 v{a}, v{K}, v{K}
v_mul_f32 v{a}, {fx(0.044715)}, v{a}
v_mul_f32 v{K+2}, v{K+1}, v{a}
"""
    if o == 0: t += f"v_mul_f32 v{vQS}, {fx(QC)}, v{K}\n"
    return L(t)
def stats_b(o):
    nm = vSum + 2 * o; B = vBx[o]; a = vU
    return L(f"""
v_cvt_pk_bf16_f32 v{a}, v{nm}, v{nm}
v_and_b32 v{a}, 0xffff0000, v{a}
v_sub_f32 v{a+1}, v{nm}, v{a}
v_cvt_pk_bf16_f32 v{B}, v{a}, v{a+1}
v_mov_b32 v{B+1}, v{B}
v_mov_b32 v{B+2}, v{B}
v_mov_b32 v{B+3}, v{B}
""")
E(I("s_barrier", need=["c0"]))
stamp((2,))
E(p1_reads(0, 0) + statread(0) + statread(1))
E(stats(0))
S1 = Sched()
P1 = lambda c, s, t: 24 * c + 6 * s + t
A1 = lambda t, o: ACC1 + 32 * t + 16 * o
for c in range(8):
    for s in range(4):
        st = s & 1; first = (c == 0 and s == 0)
        for q in range(6):
            t, o = q >> 1, q & 1
            acc = vr(A1(t, o), 16)
            xb = ar(aX + (4 * c + s) * 4, 4) if o == 0 else ar(aXP + 4 * st, 4)
            ops = [I(f"{MF} {acc}, {ar(wf1(st,t),4)}, {xb}, {'0' if first else acc}")]
            small = s < 2 and o == 1 and not (O('x_nocs', 0) and c > 0)
            if small:
                cs = vr(vCS1, 4)
                ops.append(I(f"{MS} {cs}, {ar(wf1(st,t),4)}, {ar(aSEL+4*t,4)}, {'0' if (first and t == 0) else cs}"))
            pre = []
            if q == 0 and (O("fw", 0) == 0 or s == 3) and not (c == 7 and s == 3): pre.append(I("s_waitcnt lgkmcnt(0)"))
            if s == 3 and q == 0 and c < 7: pre.append(I("s_barrier", need=["c%d" % (c + 1)]))
            if s == 3 and q == 2 and c == 7: pre += [I("s_waitcnt lgkmcnt(0)"), I("s_barrier", need=["p0"])]
            if s == 0 and q == 0: pre += stampq((3,))
            S1.pos(ops, 8 if small else 6, pre)
NP1 = 192
CORR_K = 0
P2 = lambda k, t: NP1 + 3 * k + t + (6 if k >= CORR_K else 0)
PC = NP1 + 3 * CORR_K
for k in range(32):
    p, s = k >> 3, k & 3
    if k == CORR_K:
        for q in range(6):
            t, o = q >> 1, q & 1
            acc = vr(A1(t, o), 16)
            S1.pos(I(f"{MF} {acc}, {vr(vCSA[t],4)}, {vr(vBx[o],4)}, {acc}"), 6, stampq((1, 3)) if q == 0 else [])
    for t in range(3):
        acc = vr(ACC2 + 16 * t, 16)
        ops = [I(f"{MF} {acc}, {ar(wf2(k,t),4)}, {ar(aX+k*4,4)}, {'0' if k == 0 else acc}", xr=(ar(wf2(k, 0), 24 if (LK == 3 and k % 2 == 0) else 12) if t == 0 else None))]
        if s == 0:
            cs = vr(vCS2, 4)
            ops.append(I(f"{MS} {cs}, {ar(wf2(k,t),4)}, {ar(aSEL+4*t,4)}, {'0' if (k == 0 and t == 0) else cs}"))
        pre = []
        if False:
            pre = []
        if (k & 7) == 8 - LK and t == 1:
            pre = [I("s_waitcnt lgkmcnt(0)"), I("s_barrier", need=["p%d" % (p + 1)] if p < 3 else [])]
        if LK == 3 and k == 30 and t == 1: pre = [I("s_waitcnt lgkmcnt(0)"), I("s_barrier")]
        if LK == 3 and k == 29 and t == 1: pre = []
        if (k & 3) == 0 and t == 0: pre += stampq((4,))
        S1.pos(ops, 8 if s == 0 else 6, pre)
NP2 = len(S1.main)
def p2_reads(k):
    p, g, s = k >> 3, (k >> 2) & 1, k & 3
    return [I(f"ds_read_b64_tr_b16 {ar(wf2(k,t)+2*n,2)}, v{vW2r+2*s+(p>>1)} offset:{(p&1)*24576+t*8192+g*4096+n*256}") for t in range(3) for n in range(2)]
def store4(data, voff, soff, imm, tag):
    if O("x_nost", 0) and tag in ("kv", "h"): return I("s_nop 0")
    o = (" offset:%d" % imm) if imm else ""
    return I(f"buffer_store_dwordx4 {vr(data,4)}, v{voff}, {srd(SWS)}, {soff} offen{o} sc1", tag=tag)
def flag(stage, tag, va):
    if O("x_nofw", -1) == stage: tag = "none"
    return L(f"v_mov_b32 v{vT0}, 1\ns_mov_b32 s{sT}, {stage*8192}") + [I(f"buffer_store_dword v{vT0}, v{va}, {srd(SWS)}, s{sT} offen sc1", need=[tag])]
def poll_issue(va): return [I(f"buffer_load_dword v{vPoll}, v{va}, {srd(SWS)}, 0 offen sc1")]
def poll_check(name, S, reg, addr):
    SITE = {"init": 24, "st": 25, "kv": 26, "h": 27, "h2": 28, "o": 29}[name]
    mark = f"    v_writelane_b32 v231, s{sSPIN}, {SITE}\n" if OPT["stamps"] else ""
    rare.append(f"""
L_spin_{name}:
    s_mov_b32 s{sSPIN}, {OPT['spin']}
L_spin2_{name}:
{mark}    buffer_load_dword v{reg}, v{addr}, {srd(S)}, 0 offen sc1
    s_waitcnt vmcnt(0) lgkmcnt(0)
    v_cmp_eq_u32 vcc, 0, v{reg}
    s_nop 4
    s_cbranch_vccz L_ok_{name}
    s_sleep 1
    s_sub_u32 s{sSPIN}, s{sSPIN}, 1
    s_cmp_lg_u32 s{sSPIN}, 0
    s_cbranch_scc1 L_spin2_{name}
    s_endpgm
""")
    o = L(f"v_cmp_eq_u32 vcc, 0, v{reg}\ns_cbranch_vccnz L_spin_{name}")
    o[-1].post = f"\nL_ok_{name}:"
    return o
SC2 = 1
SG_ = set(range(4)) | set(range(4 * SC2, 4 * SC2 + 4))
for c in range(8):
    for s in range(4):
        g = 4 * c + s
        rd = []
        if g + 1 < 32: rd += p1_reads((g + 1) >> 2, (g + 1) & 3)
        if s < 2 and g + 2 in SG_: rd += statread(g + 2)
        if s == 3 and g + 1 in SG_: rd = statread(g + 1) + rd + statread(g + 2)
        S1.spread(rd, P1(c, s, 0), P1(c, s, O("rdw", 4)), 0)
        if g + 1 in SG_:
            if s != 3: S1.spread(stats((g + 1) & 3), P1(c, s, 0), P1(c, s, 6), 2)
            else: S1.spread(stats(0), P1(c, s, 2), P1(c, s, 6), 2)
    if c == 0:
        gq = gall[N0:]
        if O("w2t", 90) == -1: gq = gq[:10 - N0] + [w2touch] + gq[10 - N0:]
        if O("w2t", 90) == -2: gq = gq + [w2touch]
        N2 = O("n2", 99); carry = gq[N2:]
        S1.spread(gq[:N2], P1(0, O("n2a", 0), 0), P1(0, 3, 0), 1, one)
    if c == 0 and carry:
        S1.spread(carry, P1(0, 3, 0), P1(1, O("n2e", 1), 0), 1, one)
        S1.spread(p1_dma(3), P1(1, O("n2e", 1), 0), P1(1, 3, 0), 1, one)
    elif c < 5: S1.spread(p1_dma(c + 3), P1(c, 3, 0), P1(c + 1, 3, 0), 1, one)
S1.spread(p2_dma(0), P1(6, O("p0a", 1), 0), P1(6, 3, 0), 1, one)
S1.spread(p2_dma(1), P1(6, 3, 0), P1(7, 3, 0), 1, one)
S1.put(O("ipos", 24), [L(f"v_and_b32 v{vT2}, 3, v{vL}\nv_lshlrev_b32 v{vT2}, 2, v{vT2}") + [I(f"buffer_load_dword v{vInit}, v{vT2}, {srd(SDBG)}, 0 offen" + (" sc1" if O("isc", 1) else ""))]], 1)
S1.spread(stats_pub, P1(SC2, 3, 0), P1(SC2, 3, 3), 2)
S1.put(P1(O("spf", SC2 + 1), O("spf2", 3), 1), [poll_check("init", SDBG, vInit, vT2) + flag(4, "sp", vFl1)], 2)
S1.put(P1(O("spp", 4 if SC2 == 1 else 5), O("spp2", 2 if SC2 == 1 else 0), 5), [poll_issue(vPs)], 1)
S1.put(P1(5, 3, 1), [poll_check("st", SWS, vPoll, vPs)], 2)
S1.spread(stats_ld, P1(5, 3, 2), P1(5, 3, 6), 1, one)
S1.spread(stats_fin + stats_k(0) + stats_k(1), P1(7, 0, 0), P1(7, 2, 0), 2)
if SENT:
    S1.put(P1(3, 0, 0), L("\n".join(f"v_mov_b32 v{vXT+j}, -1" for j in range(4))), 2)
    S1.put(O("snp", 172), [sent_st[0]], 1); S1.put(O("snp", 172) + O("snd", 8), [sent_st[1]], 1)
S1.spread(cs_convert(vCS1, vCSw1, CS1, 8), P1(7, 2, 0), P1(7, 2, O('cse', 5)), 2)
S1.spread(stats_b(0) + stats_b(1), P1(7, 3, 0), P1(7, 3, 4), 2)
S1.spread(p2_reads(0), P1(7, 3, 2), P1(7, 3, 4), 0)
S1.put(P1(7, 3, 5), p2_reads(1), 0)
if O("w2t", 90) >= 2: S1.put(O("w2t", 90), [w2touch], 1)
S1.spread(p2_dma(2), P1(7, 3, 2), P2(7 - LK, 0), 1, one)

def scale_pack(acc, sc, dst, pk=False):
    o = []
    if pk:
        sel = "op_sel:[0,1] op_sel_hi:[1,1]" if sc & 1 else "op_sel_hi:[1,0]"
        for j in range(0, 16, 2): o.append(I(f"v_pk_mul_f32 {vr(acc+j,2)}, {vr(acc+j,2)}, {vr(sc&~1,2)} {sel}"))
    else:
        for j in range(16): o.append(I(f"v_mul_f32 v{acc+j}, v{acc+j}, v{sc}"))
    for j in range(8): o.append(I(f"v_cvt_pk_bf16_f32 v{dst+j}, v{acc+2*j}, v{acc+2*j+1}"))
    return o
def gelu(g, u, K):
    if O("x_nogelu", 0): return [I("s_nop 0")] * 4
    A, B, R = K + 1, K + 2, K + 3
    o = []
    for b in range(4):
        js = range(4 * b, 4 * b + 4)
        T = lambda j: vG + (j & 3) + 4 * (b & 1)
        o += [I(f"v_mul_f32 v{T(j)}, v{g+j}, v{g+j}") for j in js]
        o += [I(f"v_fma_f32 v{T(j)}, v{T(j)}, v{B}, v{A}") for j in js]
        o += [I(f"v_mul_f32 v{T(j)}, v{g+j}, v{T(j)}") for j in js]
        for j in js: o += [I(f"v_exp_f32 v{T(j)}, v{T(j)}"), I(f"v_mul_f32 v{g+j}, v{g+j}, v{u+j}")]
        o += [I(f"v_fma_f32 v{T(j)}, v{T(j)}, v{R}, v{R}") for j in js]
        o += [I(f"v_rcp_f32 v{T(j)}, v{T(j)}") for j in js]
        o += [I(f"v_mul_f32 v{g+j}, v{g+j}, v{T(j)}") for j in js]
        o += [I(f"v_cvt_pk_bf16_f32 v{u+2*b+k}, v{g+4*b+2*k}, v{g+4*b+2*k+1}") for k in range(2)]
    return o
def gelu_pk(g, u, K):
    o = []
    for b in range(2):
        js = range(8 * b, 8 * b + 8, 2)
        T = lambda j: vG + (j & 7)
        o += [I(f"v_pk_mul_f32 {vr(T(j),2)}, {vr(g+j,2)}, {vr(g+j,2)}") for j in js]
        o += [I(f"v_pk_fma_f32 {vr(T(j),2)}, {vr(T(j),2)}, {vr(K+2,2)}, {vr(K,2)} op_sel:[0,0,1] op_sel_hi:[1,0,1]") for j in js]
        o += [I(f"v_pk_mul_f32 {vr(T(j),2)}, {vr(g+j,2)}, {vr(T(j),2)}") for j in js]
        for j in js: o += [I(f"v_exp_f32 v{T(j)}, v{T(j)}"), I(f"v_exp_f32 v{T(j)+1}, v{T(j)+1}"), I(f"v_pk_mul_f32 {vr(g+j,2)}, {vr(g+j,2)}, {vr(u+j,2)}")]
        o += [I(f"v_pk_fma_f32 {vr(T(j),2)}, {vr(T(j),2)}, {vr(K+2,2)}, {vr(K+2,2)} op_sel:[0,1,1] op_sel_hi:[1,1,1]") for j in js]
        for j in js: o += [I(f"v_rcp_f32 v{T(j)}, v{T(j)}"), I(f"v_rcp_f32 v{T(j)+1}, v{T(j)+1}")]
        o += [I(f"v_pk_mul_f32 {vr(g+j,2)}, {vr(g+j,2)}, {vr(T(j),2)}") for j in js]
        o += [I(f"v_cvt_pk_bf16_f32 v{u+(j>>1)}, v{g+j}, v{g+j+1}") for j in js]
    return o
S1.put(P1(7, 3, 2), [I(f"ds_read_b64 {vr(vCSA[t],2)}, v{vCSr} offset:{CS1+C1STR*t}") for t in range(3)], 0)
if LK == 3: S1.spread(p2_reads(2), PC, PC + 3, 0)
for k in range(32 - LK):
    o = 1 if (k & 7) == 8 - LK else 0
    S1.spread(p2_reads(k + LK), P2(k, o), P2(k, o + (2 if (k & 7) in (7 - LK, 8 - LK) else 3)), 0)

fq = []
sOwn = [f"s{sPK}", f"s{sTd}"]; sOwnH = [f"s{sPH}", f"s{sTc}"]
fq += L(f"s_xor_b32 s{sTd}, s{sPK}, 4096\ns_sub_u32 s{sTc}, {HSTR}, s{sPH}")
for o in range(2):
    a = A1(0, o)
    sp = scale_pack(a, vK[o], a)
    fq += sp[0:8] + sp[16:20] + [store4(a, vKVst, sOwn[o], 0, "kv")] + sp[8:16] + sp[20:24] + [store4(a + 4, vKVst, sOwn[o], 1024, "kv")]
g = []
for o in range(2):
    gg = gelu(A1(1, o), A1(2, o), vK[o])
    g.append(gg[:68] + [store4(A1(2, o), vHst, sOwnH[o], 0, "h")] + gg[68:] + [store4(A1(2, o) + 4, vHst, sOwnH[o], 1024, "h")])
KVF = O("kvflag", 65); KVP = O("kvpoll", 110)
tbl = [[I(f"buffer_load_dwordx4 {vr(vBF+4*i,4)}, v{vL16}, {srd(STB)}, {'0' if i < 4 else 's%d' % sX} offen offset:{1024*(i&3)}")] for i in range(8)]
tbl[0] = L(f"s_movk_i32 s{sX}, 4096") + tbl[0]
strip = [I(f"ds_write_b128 v{vL16}, {ar(aSTV,4)} offset:{STRIP+1024*i}") for i in range(2)]
unp = [I(f"v_accvgpr_read_b32 v{vBF+j}, a{aMSK+j}") for j in range(32)] if O("tblm", 1) else []
fq += g[0][:KVF] + [flag(0, "kv", vFl2)] + g[0][KVF:] + strip + unp
fq += g[1][:KVP] + poll_issue(vPa) + g[1][KVP:]
FQ_END = O("fqend", 29)
S1.spread(glue(fq), PC + 3, P2(FQ_END, 0), 2)
if not O("tblm", 1): S1.spread(tbl, P2(O("tbl", 9), 0), P2(O("tbl", 9) + 5, 0), 1, one)

def w2_dma(j):
    sl = j % 12
    m0 = (sl // 3) * 24576 + (sl % 3) * 2048
    nd = ["r%d" % (j - 12)]
    post = []
    if j >= 22:
        post = L(f"s_add_u32 s{sWB}, s{sWB}, 16384\ns_and_b32 s{sWB}, s{sWB}, 0x1ffff")
        return [L(f"s_add_u32 m0, s{sM0K}, {(j-22)*2048}\ns_nop 0") + [dma(vEo, SO, f"s{sWB}", 0, "w%d" % j)],
                [dma(vEo + 1, SO, f"s{sWB}", 1024, "w%d" % j)] + post]
    if j < 22:
        base = sWE + (j >> 1) if j < 16 else sLW[(j - 16) >> 1]
        so, sr = ("s_nop 0", base) if j & 1 == 0 else (f"s_add_u32 s{sD}, s{base}, 16384", sD)
        vo, S = vDo, SD
    else:
        so, sr, vo, S = "s_nop 0", sWB, vEo, SO
        post = L(f"s_add_u32 s{sWB}, s{sWB}, 16384\ns_and_b32 s{sWB}, s{sWB}, 0x1ffff")
    return [L(f"s_add_u32 m0, s{sM0D}, {m0}\n{so}") + [dma(vo, S, f"s{sr}", 0, "w%d" % j, need=nd)],
            [dma(vo + 1, S, f"s{sr}", 1024, "w%d" % j, need=nd)] + post]
KCHK = O("kvchk", 29)
for p in range(3):
    if not O("x_now2", 0): S1.spread((p2_dma(3) if p == 0 else []) + w2_dma(3 * p) + w2_dma(3 * p + 1) + w2_dma(3 * p + 2), P2(8 * p + 8 - LK, 1), P2(8 * p + 16 - LK, 1) if p < 2 else P2(KCHK, 0), 1, one)
kvdma = []
for k in range(3):
    kvdma.append(L(f"s_add_u32 m0, s{sM0X}, {4096*(8-4*k)}\ns_nop 0") + [dma(vKVo, SWS, f"s{sKV[k]}", 0, "kvl", "sc1")])
    kvdma += [[dma(vKVo, SWS, f"s{sKV[k]}", 1024 * i, "kvl", "sc1")] for i in range(1, 4)]
if not O("x_nokv", 0):
    if not O("x_nochk", 0): S1.put(P2(KCHK, 0), [poll_check("kv", SWS, vPoll, vPa)], 1)
    S1.spread(kvdma, P2(KCHK, 1), NP2, 1, one)
S1.spread(cs_convert(vCS2, vCSw2, CS2, 16), P2(29, 0), P2(30, 0), 2)
S1.put(P2(30, 1), [I(f"ds_read_b128 {vr(vCSA[q],4)}, v{vL16} offset:{CS2+CSTR*q}") for q in range(3)], 0)
if O("x_idle", 0): S1.pre[O("x_idlep", 250)] += L("s_nop 15\n" * (O("x_idle", 0) // 64))
if OPT["stamps"] == 10:
    for g in range(O("l0", 2), min(O("l0", 2) + 30, 32)):
        k = nstamp[0]; nstamp[0] += 1
        S1.put(6 * g + 4, [I(f"{TIMER} s[88:89]")], 2)
        S1.put(6 * g + 6, [I(f"v_writelane_b32 v231, s88, {k}")], 2)
if OPT["stamps"] == 11:
    for kk in range(1, 31):
        k = nstamp[0]; nstamp[0] += 1
        S1.put(P2(kk, 0), [I(f"{TIMER} s[88:89]")], 0)
        S1.put(P2(kk + 1, 0) - 1, [I(f"v_writelane_b32 v231, s88, {k}")], 2)
if OPT["stamps"] == 9:
    for q in range(28):
        p = OPT["za"] + q * OPT["zs"]
        if p < len(S1.main): S1.pre[p] = stampq((9,)) + S1.pre[p]
E(S1.emit())
stamp((1, 4, 12))
post = w2_dma(9) + w2_dma(10) + w2_dma(11)
xres = L(f"buffer_load_dwordx4 {vr(vXres,4)}, v{vOut}, {srd(SX)}, 0 offen\nbuffer_load_dwordx4 {vr(vXres+4,4)}, v{vOut+1}, {srd(SX)}, 0 offen")
for n, t in enumerate((0, 1, 2)):
    acc = vr(ACC2 + 16 * t, 16)
    E(f"{MF} {acc}, {vr(vCSA[t],4)}, {vr(vBx[0],4)}, {acc}")
    E(post[2 * n] + post[2 * n + 1])
E(scale_pack(ACC2, vQS, vQ, pk=False))
gl = gelu_pk(ACC2 + 16, ACC2 + 32, vK[0])
HF = O("hf", 60)
gl = gl[:44] + [store4(ACC2 + 32, vHst, f"s{sH2}", 0, "h2")] + xres + gl[44:] + [store4(ACC2 + 36, vHst, f"s{sH2}", 1024, "h2")]
gl = gl[:HF] + flag(1, "h", vFl2) + gl[HF:]
G2 = O("g2l", 0)
E(gl[:len(gl) - G2]); gl = gl[len(gl) - G2:]
stamp((4, 6, 12))
E(I("s_waitcnt lgkmcnt(0)"))
E(I("s_barrier", need=["kvl"]))
stamp((1, 4, 6, 12))

units = [(i, e) for i in range(9) for e in range(2)]
def kread(u):
    i, e = units[u]
    return [I(f"ds_read_b128 {ar(aK+4*(u&1),4)}, v{vKa} offset:{i*4096+e*1024}")]
def vread(u):
    i, e = units[u]
    o = [I(f"ds_read_b64_tr_b16 {ar(aV+8*(u&1)+4*s+2*n,2)}, v{vVa} offset:{e*1024+s*512+n*256}") for s in range(2) for n in range(2)]
    if e == 1: o.append(I(f"v_add_u32 v{vVa}, v{vVa}, v{vVinc}"))
    return o
def qk(u):
    i, e = units[u]
    c = vr(vBF, 16) if i == 0 else (vr(vBD, 16) if i == 8 else "0")
    return I(f"{MF} {vr(vS[u&1],16)}, {ar(aK+4*(u&1),4)}, {vr(vQ+4*e,4)}, {c}", xr=ar(aV + 8 * (u & 1), 8) if u >= 2 else None)
def pv(u, s):
    i, e = units[u]
    o = vr(vO[e], 16)
    return I(f"{MF} {o}, {ar(aV+8*(u&1)+4*s,4)}, {vr(vP[u&1]+4*s,4)}, {'0' if (i == 0 and s == 0) else o}")
def hload(j, tt):
    post = []
    if j < 16:
        soff = sHE[j >> 1]
    else: soff = sLH[(j - 16) >> 1]
    o = " offset:1024" if j & 1 else ""
    return [I(f"buffer_load_dwordx4 {ar(aH+8*j+4*tt,4)}, v{vAo+tt}, {srd(SWS)}, s{soff} offen{o} sc1")] + post
NW2V = O("w2v", 10)
W2V = [152, 156, 192, 196, 200, 204, 4, 8, 12, 16, 20, 24, 36, 40, 44, 48, 240, 244, 248, 252]
def w2_reads(j):
    sl = j % 12
    base = (sl // 3) * 24576 + (sl % 3) * 2048
    o = []
    for ct in range(2):
        for n in range(2):
            off = base + n * 1024 + ct * 256
            reg = vW3r if off < 49152 else vW3r + 1
            off = off if off < 49152 else off - 49152
            if j >= 22: reg, off = vPa, (j - 22) * 2048 + n * 1024 + ct * 256
            dst = vr(W2V[2*j+ct]+2*n, 2) if j < NW2V else (ar(aW2+8*(j&1)+4*ct+2*n, 2) if j < 22 else ar(8*(j-22)+4*ct+2*n, 2))
            o.append(I(f"ds_read_b64_tr_b16 {dst}, v{reg} offset:{off}", need=["w%d" % j], tag="r%d" % j))
    return o
extra = {u: [] for u in range(18)}
xds = {u: [] for u in range(18)}
WS0, WS1 = O("ws0", 0), O("ws1", 6)
for j in range(NW2V):
    u = WS0 + j * (WS1 - WS0) // max(NW2V, 1)
    xds[u] += w2_reads(j)
    gd = w2_dma(j + 12)
    if j > 0: gd[0] = [x for x in gd[0][1:] if x.op != "s_nop"]
    if j + 1 < NW2V: gd[1] = gd[1] + [w2_dma(j + 13)[0][0]]
    extra[u + 1] += gd
EP, EC = O("ep", 4), O("ec", 7)
LF, LP, LC = O("lf", 2), O("lp", 11), O("lc", 14)
extra[EP].append(poll_issue(vPb))
extra[LF].append(flag(2, "h2", vFl1))
extra[EC].append(poll_check("h", SWS, vPoll, vPb) + L(f"v_and_b32 v{vPb}, -5, v{vPb}\nv_add_u32 v{vPb}, 8192, v{vPb}"))
he = [hload(j, tt) for j in range(16) for tt in range(2)]
hlate = [hload(j, tt) for j in range(16, 22) for tt in range(2)]
EE = O("ee", 16); NE = O("ne", 32)
he_late = he[NE:]; he = he[:NE]
for q in range(EE - EC):
    extra[EC + q] += he[len(he) * q // (EE - EC):len(he) * (q + 1) // (EE - EC)]
extra[LP].append(poll_issue(vPb))
extra[LC].append(poll_check("h2", SWS, vPoll, vPb) + L(f"v_add_u32 v{vPb}, 8192, v{vPb}"))
LS = max(LC, EE)
NL = O("nl", 8)
for q in range(18 - LS):
    extra[LS + q] += hlate[NL * q // (18 - LS):NL * (q + 1) // (18 - LS)]
hl_late = he_late + hlate[NL:]
assert not he_late or NL == 0

E(kread(0) + kread(1) + vread(0))
E(gl[:O("g2m", 12)])
E(qk(0))
E(gl[O("g2m", 12):])
for u in range(18):
    S, P = vS[u & 1], vP[u & 1]
    ex = [I(f"v_exp_f32 v{S+j}, v{S+j}") for j in range(16)]
    cv = [I(f"v_cvt_pk_bf16_f32 v{P+j}, v{S+2*j}, v{S+2*j+1}") for j in range(8)]
    seq = []
    xs = list(extra[u])
    X = lambda q: flat(xs[len(xs) * q // 3:len(xs) * (q + 1) // 3])
    vr_ = vread(u + 1) if u + 1 < 18 else []
    if u + 1 < 18: seq.append(qk(u + 1))
    seq += xds[u]
    if u + 2 < 18: seq += kread(u + 2)
    seq += X(0) + ex[0:6]
    if u > 0: seq.append(pv(u - 1, 0))
    seq += vr_[0:2] + X(1) + ex[6:11] + cv[0:3]
    if u > 0: seq.append(pv(u - 1, 1))
    seq += vr_[2:4] + X(2) + vr_[4:] + ex[11:16] + cv[3:8]
    if u % 2 == 0: seq = stampq((6,)) + seq
    if OPT["stamps"] == 12:
        if u > 0: seq.insert(2, I(f"v_writelane_b32 v231, s88, {nstamp[0]}")); nstamp[0] += 1
        seq.insert(3 if u > 0 else 1, I(f"{TIMER} s[88:89]"))
    E(seq)
def norm(e):
    o = vO[e]
    t = [f"v_rcp_f32 v{vT0+1}, v{o+8}", "s_nop 0"]
    if e == 0 or O("n1", 1): t += [f"v_mul_f32 v{o+j}, v{o+j}, v{vT0+1}" for j in range(8)]
    else: t += [f"v_pk_mul_f32 {vr(o+j,2)}, {vr(o+j,2)}, {vr(vT0+1,2)} op_sel_hi:[1,0]" for j in range(0, 8, 2)]
    t += [f"v_cvt_pk_bf16_f32 v{o+12+j}, v{o+2*j}, v{o+2*j+1}" for j in range(4)]
    if SENT: t += [f"v_min_u32 v{o+12}, -2, v{o+12}"]
    return t
E([pv(17, 0), pv(17, 1)])
if OPT["stamps"] == 12: E(f"v_writelane_b32 v231, s88, {nstamp[0]}"); nstamp[0] += 1
E("\n".join(norm(0)))
BLO, BHI = fx(2.0 ** -40), fx(2.0 ** 40)
E(f"""
s_mov_b32 s{sT}, {BLO}
s_mov_b32 s{sTb}, {BHI}
v_min_f32 v{vT0}, v{vO[0]+8}, v{vO[1]+8}
v_max_f32 v{vT1}, v{vO[0]+8}, v{vO[1]+8}
v_cmp_nle_f32 vcc, s{sT}, v{vT0}
v_cmp_nge_f32 s[4:5], s{sTb}, v{vT1}
v_cmp_u_f32 s[6:7], v{vO[0]+8}, v{vO[1]+8}
s_or_b64 vcc, vcc, s[4:5]
s_or_b64 vcc, vcc, s[6:7]
s_cbranch_vccnz L_truemax
""")
prog[-1].post = "\nL_att_done:"
E(store4(vO[0] + 12, vOst, "0", 0, "o"))
N1 = O("n1", 1)
if not N1:
    E("\n".join(norm(1)))
    E(store4(vO[1] + 12, vOst, "0", 1024, "o"))
    stamp((6, 12))
    E("s_barrier")
stamp((1, 5, 6, 12))

sa, sb_, sc_, sd_, se_, sf_ = sT, sTb, sTc, sTd, sX, sQ
tm = [f"""
L_truemax:
    s_waitcnt vmcnt(0) lgkmcnt(0)
    s_nop 15
    s_sub_i32 s{sa}, 8, s{sTB}
    s_max_i32 s{sa}, s{sa}, 0
    s_mov_b32 s{sb_}, 0
L_tm_head:
    s_cmp_eq_u32 s{sb_}, 0
    s_cselect_b64 vcc, -1, 0
    s_nop 4
"""]
tm += [f"    v_cndmask_b32 v{vP[1]+j}, v{vQ+4+j}, v{vQ+j}, vcc\n" for j in range(4)]
tm.append(f"""
    v_mov_b32 v{vT0}, 0xff000000
    s_mov_b32 s{sd_}, 0
L_tm_pass:
    s_mov_b32 s{sc_}, s{sa}
""")
tm += [f"    v_mov_b32 v{vS[1]+j}, 0\n" for j in range(16)]
tm.append(f"""
L_tm_blk:
    s_lshl_b32 s{se_}, s{sc_}, 12
    s_lshl_b32 s{sf_}, s{sb_}, 10
    s_add_u32 s{se_}, s{se_}, s{sf_}
    v_add_u32 v{vT1}, s{se_}, v{vKa}
    ds_read_b128 {ar(aK,4)}, v{vT1}
    s_sub_u32 s{se_}, 9, s{sc_}
    v_mul_lo_u32 v{vT2}, s{se_}, v{vVinc}
    v_sub_u32 v{vT2}, v{vVa}, v{vT2}
    v_add_u32 v{vT2}, s{sf_}, v{vT2}
    ds_read_b64_tr_b16 {ar(aV,2)}, v{vT2}
    ds_read_b64_tr_b16 {ar(aV+2,2)}, v{vT2} offset:256
    ds_read_b64_tr_b16 {ar(aV+4,2)}, v{vT2} offset:512
    ds_read_b64_tr_b16 {ar(aV+6,2)}, v{vT2} offset:768
    s_waitcnt lgkmcnt(0)
    s_cmp_eq_u32 s{sc_}, 0
    s_cbranch_scc1 L_tm_far
    s_cmp_eq_u32 s{sc_}, 8
    s_cbranch_scc1 L_tm_diag
    {MF} {vr(vS[0],16)}, {ar(aK,4)}, {vr(vP[1],4)}, 0
    s_branch L_tm_s
L_tm_far:
    {MF} {vr(vS[0],16)}, {ar(aK,4)}, {vr(vP[1],4)}, {vr(vBF,16)}
    s_branch L_tm_s
L_tm_diag:
    {MF} {vr(vS[0],16)}, {ar(aK,4)}, {vr(vP[1],4)}, {vr(vBD,16)}
L_tm_s:
    s_nop 15
    s_cmp_eq_u32 s{sd_}, 0
    s_cbranch_scc0 L_tm_exp
""")
tm += [f"    v_max_f32 v{vT0}, v{vT0}, v{vS[0]+j}\n" for j in range(16)]
tm.append("    s_branch L_tm_next\nL_tm_exp:\n")
tm += [f"    v_sub_f32 v{vS[0]+j}, v{vS[0]+j}, v{vT0}\n" for j in range(16)]
tm += [f"    v_exp_f32 v{vS[0]+j}, v{vS[0]+j}\n" for j in range(16)]
tm.append("    s_nop 1\n")
tm += [f"    v_cvt_pk_bf16_f32 v{vP[0]+j}, v{vS[0]+2*j}, v{vS[0]+2*j+1}\n" for j in range(8)]
tm.append(f"""
    s_nop 1
    {MF} {vr(vS[1],16)}, {ar(aV,4)}, {vr(vP[0],4)}, {vr(vS[1],16)}
    {MF} {vr(vS[1],16)}, {ar(aV+4,4)}, {vr(vP[0]+4,4)}, {vr(vS[1],16)}
    s_nop 15
L_tm_next:
    s_add_u32 s{sc_}, s{sc_}, 1
    s_cmp_lt_u32 s{sc_}, 9
    s_cbranch_scc1 L_tm_blk
    s_cmp_eq_u32 s{sd_}, 0
    s_cbranch_scc0 L_tm_fin
    v_mov_b32 v{vT1}, v{vT0}
    s_nop 1
    v_permlane32_swap_b32 v{vT0}, v{vT1}
    s_nop 1
    v_max_f32 v{vT0}, v{vT0}, v{vT1}
    s_mov_b32 s{sd_}, 1
    s_branch L_tm_pass
L_tm_fin:
    s_cmp_eq_u32 s{sb_}, 0
    s_cbranch_scc0 L_tm_h1
""")
tm += [f"    v_mov_b32 v{vO[0]+j}, v{vS[1]+j}\n" for j in range(16)]
tm.append(f"    s_mov_b32 s{sb_}, 1\n    s_branch L_tm_head\nL_tm_h1:\n")
tm += [f"    v_mov_b32 v{vO[1]+j}, v{vS[1]+j}\n" for j in range(16)]
tm += ["    " + x + "\n" for x in norm(0)]
tm.append(f"    s_nop 1\n    s_branch L_att_done\n")
rare.append("".join(tm))

def oload(j2, tt):
    post = L(f"s_add_u32 s{sWS}, s{sWS}, 1024\ns_and_b32 s{sWS}, s{sWS}, 0x1fff")
    return [I(f"buffer_load_dwordx4 {vr(vOF+8*j2+4*tt,4)}, v{vOo+tt}, {srd(SWS)}, s{sWS} offen sc1")] + post
OF, OP, OC = O("oflag", 6), O("opoll", 12), O("ochk", 17)
if NW2V == 0: E(w2_reads(0))
S3 = Sched()
order = [(j, ct, tt) for j in range(22) for ct in range(2) for tt in range(2)]
order += [(j, ct, 0) for j in range(22, 30) for ct in range(2)]
CTM = O("ctm", 0)
order += [(j, ct, 1) for ct in range(2) for j in range(22, 30)] if CTM else [(j, ct, 1) for j in range(22, 30) for ct in range(2)]
def w2f(j, ct): return vr(W2V[2 * j + ct], 4) if j < NW2V else (ar(aW2 + 8 * (j & 1) + 4 * ct, 4) if j < 22 else ar(8 * (j - 22) + 4 * ct, 4))
for n, (j, ct, tt) in enumerate(order):
    acc = ar(aACC + 32 * ct + 16 * tt, 16)
    bb = ar(aH + 8 * j + 4 * tt, 4) if j < 22 else vr(vOF + 8 * (j - 22) + 4 * tt, 4)
    xr = None
    if ct == 0 and tt == 0 and j >= NW2V: xr = ar(aW2 + 8 * (j & 1), 8) if j < 22 else ar(8 * (j - 22), 8)
    aa = w2f(j, ct)
    S3.pos(I(f"{MF} {acc}, {aa}, {bb}, {'0' if j == 0 else acc}", xr=xr), 6, stampq((5,)) if (n % 8 == 0) else [])
for j in range(30):
    if NW2V <= j + 1 < 23: S3.spread(w2_reads(j + 1), 4 * j, 4 * j + 2, 0)
    if 23 <= j: S3.put(88 + 2 * (j - 24) if j > 23 else 86, w2_reads(j), 0)
    if j >= NW2V and j + 12 < 22:
        S3.put(4 * j + 2, [flat(w2_dma(j + 12))], 1)
S3.pre[0] += L(f"s_lshl_b32 s{sM0K}, s{sW}, 14\ns_mul_i32 s{sT}, s{sW}, 10240\ns_sub_u32 s{sT}, s{sT}, {WB}\nv_add_u32 v{vPa}, s{sT}, v{vW3r}")
if N1:
    S3.spread(L("\n".join(norm(1))) + [store4(vO[1] + 12, vOst, "0", 1024, "o")], 0, 3, 2)
    S3.pre[4] += L("s_barrier")
if NW2V == 10: S3.spread(hl_late + flat([w2_dma(j) for j in range(22, 30)]), 4 if N1 else 0, O('hle', 44), 1, one)
else:
    S3.spread(hl_late, 4, 12, 1, one)
    S3.spread([flat(w2_dma(j)) for j in range(22, 30)], O('wos', 4), O('hle', 44), 1, one)
ol = [oload(j2, tt) for tt in range(2) for j2 in range(8)]
if not SENT:
    S3.put(4 * OF, [flag(3, "o", vFl1)], 1)
    S3.put(4 * OP, [poll_issue(vPb)], 1)
    S3.put(4 * OC, [poll_check("o", SWS, vPoll, vPb)], 1)
    S3.spread(ol, 4 * OC + 1, 4 * O("oend", 24), 1, one)
else:
    OS, OE, OK_ = O("os", 11), O("oe", 20), O("ok", 21)
    S3.spread(ol, 4 * OS, 4 * OE, 1, one)
    for tt in range(2):
        rg = [vOF + 8 * j + 4 * tt for j in range(8)]
        chk = [f"v_max3_u32 v{vT0}, v{rg[0]}, v{rg[1]}, v{rg[2]}", f"v_max3_u32 v{vT0}, v{vT0}, v{rg[3]}, v{rg[4]}", f"v_max3_u32 v{vT0}, v{vT0}, v{rg[5]}, v{rg[6]}", f"v_max_u32 v{vT0}, v{vT0}, v{rg[7]}", f"v_cmp_eq_u32 vcc, -1, v{vT0}"]
        br = L(f"s_cbranch_vccnz L_spin_o{tt}"); br[-1].post = f"\nL_ok_o{tt}:"
        S3.put(87 if tt == 0 else 103, [L("\n".join(chk)) + br], 2)
        rare.append(f"""
L_spin_o{tt}:
    s_mov_b32 s{sSPIN}, {OPT['spin']}
    s_nop 7
L_spin2_o{tt}:
""" + (f"    v_writelane_b32 v231, s{sSPIN}, {29+tt}\n" if OPT["stamps"] else "") + "".join("    " + x.text + "\n" for g in ol[8*tt:8*tt+8] for x in g) + "    s_waitcnt vmcnt(0) lgkmcnt(0)\n" + "".join("    " + x + "\n" for x in chk) + f"""    s_nop 4
    s_cbranch_vccz L_ok_o{tt}
    s_sleep 1
    s_sub_u32 s{sSPIN}, s{sSPIN}, 1
    s_cmp_lg_u32 s{sSPIN}, 0
    s_cbranch_scc1 L_spin2_o{tt}
    s_endpgm
""")
    assert 4 * OE <= 87
S3.spread(L("\n".join(f"v_xor_b32 v{vU+i}, {32*i}, v{vRw}" for i in range(4)) + f"\nv_xor_b32 v{vU+4}, 16, v{vRr}"), 4, 8, 2)
def pwrite(ct, tt): return [I(f"ds_write_b128 v{vU+i}, {ar(aACC+32*ct+16*tt+4*i,4)} offset:{tt*8192+ct*128}") for i in range(4)]
R0 = 128
def fin_reads(tt): return [I(f"ds_read_b128 {vr(R0+8*p+4*n,4)}, v{vRr if n == 0 else vU+4} offset:{p*16384+tt*8192}") for p in range(4) for n in range(2)]
def fin_math(tt, pk):
    x = R0 + 64 + 8 * tt; o = []
    for p in range(4):
        if pk: o += [I(f"v_pk_add_f32 {vr(x+j,2)}, {vr(x+j,2)}, {vr(R0+8*p+j,2)}") for j in range(0, 8, 2)]
        else: o += [I(f"v_add_f32 v{x+j}, v{x+j}, v{R0+8*p+j}") for j in range(8)]
    o += [I(f"v_cvt_pk_bf16_f32 v{R0+32+4*tt+j}, v{x+2*j}, v{x+2*j+1}") for j in range(4)]
    o += [I(f"buffer_store_dwordx4 {vr(R0+32+4*tt,4)}, v{vOut+tt}, {srd(SOUT)}, 0 offen sc1")]
    return o
S3.spread(L("\n".join(f"v_lshlrev_b32 v{R0+64+2*j}, 16, v{vXres+j}\nv_and_b32 v{R0+65+2*j}, 0xffff0000, v{vXres+j}" for j in range(8))), 4 * 12, 4 * 16, 2)
FB = O("fb", 110)
S3.spread(pwrite(0, 0) + pwrite(1, 0), 105, 108, 0)
S3.pre[FB] += L("s_waitcnt lgkmcnt(0)\ns_barrier")
S3.spread(fin_reads(0), FB, FB + 2, 0)
S3.spread(fin_math(0, False), FB + 3, 120, 2)
if CTM: S3.spread(pwrite(0, 1), 116, 120, 0)
if OPT["stamps"] == 13:
    for jj in range(29):
        k = nstamp[0]; nstamp[0] += 1
        S3.put(4 * jj + 2, [I(f"{TIMER} s[88:89]")], 0)
        S3.put(4 * jj + 4, [I(f"v_writelane_b32 v231, s88, {k}")], 2)
E(S3.emit())
stamp((1, 5))
E(pwrite(1, 1) if CTM else pwrite(0, 1) + pwrite(1, 1))
E("s_waitcnt lgkmcnt(0)\ns_barrier")
E(fin_reads(1) + fin_math(1, True))
if OPT["stamps"]:
    stamp()
    E(f"s_waitcnt vmcnt(0)")
    stamp((1, 2, 3, 4, 5, 6, 7, 9, 10, 11, 12, 13, 15))
    E(f"s_lshl_b32 s{sT}, s2, 2\ns_add_u32 s{sT}, s{sT}, s{sW}\ns_lshl_b32 s{sT}, s{sT}, 7\ns_add_u32 s{sT}, s{sT}, {ST0}\nv_lshlrev_b32 v{vT0}, 2, v{vL}\nv_lshrrev_b32 v{vT1}, 5, v{vL}\nv_lshl_add_u32 v{vT0}, v{vT1}, 28, v{vT0}")
    E(f"buffer_store_dword v231, v{vT0}, {srd(SWS)}, s{sT} offen")
if O("xf", 0):
    E("s_waitcnt vmcnt(0)"); stamp()
    if OPT["xf"] == 99: E("s_mov_b32 s90, s88")
    E(("s_sub_u32 s90, s90, s92\ns_lshr_b32 s90, s90, 3" if O("xfc", 0) else "s_sub_u32 s90, s90, s88\ns_lshl_b32 s90, s90, 2") + "\ns_add_u32 s90, s90, 4000\nL_es:\ns_memrealtime s[4:5]\ns_waitcnt lgkmcnt(0)\ns_sub_u32 s4, s4, s88\ns_cmp_lt_u32 s4, s90\ns_cbranch_scc1 L_es")
E("L_end:\ns_endpgm")

lines = finalize(prog, verbose=True)
hdr = f"""; Fused LayerNorm + QKV/gate/up GEMM + sliding-window attention + GEGLU + down/out projection.
; @launch grid=(256,1,1) block=(256,1,1) lds={LDSSZ}
.amdgcn_target "amdgcn-amd-amdhsa--gfx950"
.text
.globl {KNAME}
.p2align 8
.type {KNAME},@function
{KNAME}:
"""
tail = f"""
L_table_end:
    s_endpgm
.section .rodata,"a"
.p2align 6
.amdhsa_kernel {KNAME}
  .amdhsa_next_free_vgpr 512
  .amdhsa_next_free_sgpr 102
  .amdhsa_accum_offset 256
  .amdhsa_group_segment_fixed_size 0
  .amdhsa_kernarg_size 80
  .amdhsa_user_sgpr_count 2
  .amdhsa_user_sgpr_kernarg_segment_ptr 1
  .amdhsa_system_sgpr_workgroup_id_x 1
.end_amdhsa_kernel
"""
open(sys.argv[1], "w").write(hdr + "\n".join(lines) + "\n" + "".join(rare) + tail)
```

```python
import sys, math, struct
from asmlib import I, Ins, finalize, weave, Sched

KNAME = "parallel_sum__sliding_block__glu_gated_geglu__prompt_kernel"
OPT = dict(stamps=0, spin=200000)
for a in sys.argv[2:]:
    k, v = a.split("="); OPT[k] = int(v)
def O(k, d): return OPT.get(k, d)

HUGE = 0x40000000
H0 = 4 << 20
HSTR = 88 * 1024
O0 = 10 << 20
FL0 = 12 << 20
ST0 = FL0 + (64 << 10)
SP0 = FL0 + (256 << 10)
WSSZ = 13 << 20
WB = 65536
CS1 = 0; C1STR = 520
STRIP = 49152
CS2 = 53248; CSTR = 1040
LDSSZ = 163840

STC = 4
STB = 18 + 2
sKV = [8, 9, 10]; sRHO, sWB, sWS, sAL, sWL, sMSK, sGp = 11, 12, 13, 14, 15, 16, 17
SX, SQ, SG, SU, SD, SO, SOUT, SWS, SDBG = 24, 28, 32, 36, 40, 44, 48, 52, 56
sW, sRB, sCB, sTB2, sNB, sT0, sT2, sH2, sTB = 3, 60, 61, 62, 63, 64, 65, 66, 67
sX, sQ, sG, sM0X, sM0W = 68, 69, 70, 71, 72
sT, sTb, sTc, sTd = 73, 74, 75, 76
sPK, sPH, sM0D, sD, sSPIN = 77, 78, 80, 81, 82
sPHI, sPH2, sC, sHUGE, sA = 83, 84, 85, 86, 87
sM0K = 79; sSP, sSG = 0, 1
STREG = list(range(90, 94)) + list(range(18, 24))
sHE = [18, 19, 20, 21, 22, 23, 92, 93]
sWE = 94
sLH = [64, 65, 16]; sLW = [17, 14, 15]
def srd(n): return "s[%d:%d]" % (n, n + 3)
def vr(a, n): return "v[%d:%d]" % (a, a + n - 1)
def ar(a, n): return "a[%d:%d]" % (a, a + n - 1)

vL = 0; vT0, vT1, vT2 = 1, 2, 3
vXo = 4; vQo = 8; vGo = 10; vXr = 12; vXp = 16; vWr = 20
vK = [4, 8]
vBx = [12, 16]; vG = 20
vQo2 = 28; vGo2 = 30; vW2r = 32
vSum = 40; vCS1 = 44; vCS2 = 48
vL16, vKVst, vHst, vFl2, vCSw1, vCSw2, vPoll, vInit, vCSr, vSPo, vDo = 52, 53, 54, 55, 56, 57, 58, 59, 60, 61, 62
ACC1 = 64; ACC2 = 160
vXT = 160; vSL = 176
vKa, vVa, vVinc, vOst, vKVo, vPa, vPb, vW3r = 208, 209, 210, 211, 212, 213, 214, 215
vOut, vEo, vAo, vOo, vFl1, vRw, vRr, vPs, vQS = 217, 219, 221, 223, 225, 226, 227, 228, 229
vU = 232; vCSA = [240, 244, 248]
vXres = 28
vBF = 64; vBD = 80; vS = [96, 112]; vP = [128, 136]; vQ = 144; vO = [160, 176]
vOF = 64
aSTV = 200; aMSK = 216
aX = 0; aSEL = 128; aXP = 140; aWF = 152
aH = 0; aW2 = 176; aACC = 192; aK = 192; aV = 200

prog = []; rare = []
def L(txt, **kw): return [I(ln.strip(), **kw) for ln in txt.strip().split("\n") if ln.strip() and not ln.strip().startswith(";")]
def E(x, **kw):
    if isinstance(x, str): prog.extend(L(x, **kw))
    elif isinstance(x, Ins): prog.append(x)
    else: prog.extend(x)
def flat(g): return [x for y in g for x in y]
one = lambda g: 1
nstamp = [0]; xfc = [0]
TIMER = "s_memrealtime" if O("rt", 0) else "s_memtime"
def stampq(sets=(1,)):
    if O("xf", 0):
        if 1 in sets:
            xfc[0] += 1
            if xfc[0] == OPT["xf"]: return L("s_waitcnt lgkmcnt(0)\n%s s[90:91]\ns_waitcnt lgkmcnt(0)" % ("s_memtime" if O("xfc", 0) else "s_memrealtime"))
        return []
    if OPT["stamps"] == 14 and 1 in sets:
        k = nstamp[0]; nstamp[0] += 2
        return L("s_waitcnt lgkmcnt(0)\ns_memtime s[88:89]\ns_memrealtime s[90:91]\ns_waitcnt lgkmcnt(0)\nv_writelane_b32 v231, s88, %d\nv_writelane_b32 v231, s90, %d" % (k, k + 1))
    if OPT["stamps"] in sets:
        k = nstamp[0]; nstamp[0] += 1
        return L("s_waitcnt lgkmcnt(0)\n%s s[88:89]\ns_waitcnt lgkmcnt(0)\nv_writelane_b32 v231, s88, %d" % (TIMER, k))
    return []
def stamp(sets=(1,)): E(stampq(sets))
def fx(f): return "0x%08x" % struct.unpack("<I", struct.pack("<f", f))[0]
MF = "v_mfma_f32_32x32x16_bf16"; MS = "v_mfma_f32_16x16x32_bf16"
HOME = dict(Ka=vKa, Va=vVa, Vinc=vVinc, Ost=vOst, KVo=vKVo, Pa=vPa, Pb=vPb, W3r=vW3r, W3s=vW3r+1, Out=vOut, Out1=vOut+1, Eo=vEo, Eo1=vEo+1, Ao=vAo, Ao1=vAo+1, Oo=vOo, Oo1=vOo+1, Fl1=vFl1, Rw=vRw, Rr=vRr)
def park(name, src): return f"v_mov_b32 v{HOME[name]}, {src}\n"
def dma(voff, S, soff, imm, tag, flags="", need=None):
    o = (" offset:%d" % imm) if imm else ""
    return I(f"buffer_load_dwordx4 v{voff}, {srd(S)}, {soff} offen{o} {flags} lds", tag=tag, need=need)
def glue(q):
    out = []; cur = []
    for n, x in enumerate(q):
        if isinstance(x, list):
            assert not cur
            out.append(x); continue
        cur.append(x)
        nxt = q[n + 1] if n + 1 < len(q) else None
        if x.op.startswith("s_cmp") or (nxt is not None and not isinstance(nxt, list) and nxt.op.startswith("s_cselect")): continue
        out.append(cur); cur = []
    if cur: out.append(cur)
    return out

def t0_of(dst, cb, tmp):
    tab = sum(((c >= 7) + (c >= 8) + (c >= 14) + (c >= 15) & 3) << (2 * c) for c in range(16))
    return f"""s_lshl_b32 s{tmp}, s{cb}, 1
s_lshr_b32 s{tmp}, 0x{tab:08x}, s{tmp}
s_and_b32 s{tmp}, s{tmp}, 3
s_mul_i32 s{dst}, s{cb}, 3
s_sub_u32 s{dst}, s{dst}, s{tmp}
s_min_u32 s{dst}, s{dst}, 41
"""
E("""
s_cmp_ge_u32 s2, 256
s_cbranch_scc1 L_end
s_load_dwordx4 s[4:7], s[0:1], 0
s_load_dwordx2 s[8:9], s[0:1], 16
s_load_dwordx4 s[12:15], s[0:1], 32
s_load_dwordx4 s[16:19], s[0:1], 48
s_load_dwordx4 s[20:23], s[0:1], 64
""")
if OPT["stamps"]: E(TIMER + " s[88:89]")
if OPT["stamps"] == 14: E("s_memrealtime s[90:91]")
if O("xf", 0): E("s_memrealtime s[88:89]\ns_memtime s[92:93]")
def ctouch(vtid):
    return L(f"""s_getpc_b64 s[40:41]
s_mov_b32 s42, L_table_end-.
s_mov_b32 s43, 0x20000
s_lshr_b32 s44, s2, 3
s_lshl_b32 s44, s44, 11
v_and_b32 v{vU}, 15, v{vtid}
v_lshrrev_b32 v{vU+1}, 4, v{vtid}
v_lshlrev_b32 v{vU}, 7, v{vU}
v_lshl_add_u32 v{vU}, v{vU+1}, 24, v{vU}
buffer_load_dword v255, v{vU}, s[40:43], s44 offen""")
if O("ctouch", 1) == 1: E(ctouch(0))
else: E(f"v_mov_b32 v{vU+2}, v0")
E(f"""
v_lshrrev_b32 v{vT0}, 6, v0
v_and_b32 v{vL}, 63, v0
v_readfirstlane_b32 s{sW}, v{vT0}
s_and_b32 s{sT}, s2, 7
s_lshr_b32 s{sTb}, s2, 3
s_lshr_b32 s{sTc}, s{sT}, 2
s_lshl_b32 s{sRB}, s{sTc}, 3
s_and_b32 s{sTd}, s{sTb}, 7
s_add_u32 s{sRB}, s{sRB}, s{sTd}
s_and_b32 s{sCB}, s{sT}, 3
s_lshl_b32 s{sCB}, s{sCB}, 2
s_lshr_b32 s{sTd}, s{sTb}, 3
s_add_u32 s{sCB}, s{sCB}, s{sTd}
s_lshl_b32 s{sTB2}, s{sT}, 2
s_and_b32 s{sTd}, s{sTb}, 3
s_add_u32 s{sTB2}, s{sTB2}, s{sTd}
s_lshr_b32 s{sNB}, s{sTb}, 2
""")
PH = O("phi", 2); NL_ = O("nlock", 2)
def table(order): return sum(c << (4 * i) for i, c in enumerate(order))
if PH == 2: tabs = [table([(c + 2 * r) & 7 for c in range(8)]) for r in range(4)]
else:
    d = O("dst", 3); n = 8 - NL_
    tabs = [table(list(range(NL_)) + [NL_ + (c + (n * r) // d) % n for c in range(n)]) for r in range(d)]
nt = len(tabs)
E(f"s_add_u32 s{sT}, s{sCB}, s{sRB}")
if nt == 4: E(f"s_and_b32 s{sT}, s{sT}, 3")
elif nt == 2: E(f"s_and_b32 s{sT}, s{sT}, 1")
else: E(f"s_mul_i32 s{sTb}, s{sT}, 43\ns_lshr_b32 s{sTb}, s{sTb}, 7\ns_mul_i32 s{sTb}, s{sTb}, 3\ns_sub_u32 s{sT}, s{sT}, s{sTb}")
E(f"s_mov_b32 s{sPHI}, 0x{tabs[0]:08x}")
for r in range(1, nt): E(f"s_cmp_eq_u32 s{sT}, {r}\ns_cselect_b32 s{sPHI}, 0x{tabs[r]:08x}, s{sPHI}")
E(f"""
s_lshl_b32 s{sTB}, s{sRB}, 2
s_add_u32 s{sTB}, s{sTB}, s{sW}

s_lshl_b32 s{sM0X}, s{sW}, 12
s_lshl_b32 s{sM0W}, s{sW}, 11
s_add_u32 s{sM0W}, s{sM0W}, {WB}
s_lshl_b32 s{sT}, s{sTB}, 15
v_lshrrev_b32 v{vT0}, 3, v{vL}
v_lshlrev_b32 v{vT0}, 10, v{vT0}
v_add_u32 v{vT0}, s{sT}, v{vT0}
v_and_b32 v{vT1}, 7, v{vL}
v_lshrrev_b32 v{vT2}, 4, v{vL}
v_xor_b32 v{vT1}, v{vT1}, v{vT2}
v_lshl_add_u32 v{vXo}, v{vT1}, 4, v{vT0}
v_xor_b32 v{vT1}, 4, v{vT1}
v_lshl_add_u32 v{vXo+1}, v{vT1}, 4, v{vT0}
v_add_u32 v{vXo+1}, {7*1024}, v{vXo+1}
v_add_u32 v{vXo+2}, {14*1024}, v{vXo}
v_add_u32 v{vXo+3}, {14*1024}, v{vXo+1}
""")
def mksrd(n, p, size): return f"s_mov_b32 s{n}, s{p}\ns_mov_b32 s{n+1}, s{p+1}\ns_mov_b32 s{n+2}, {size}\ns_mov_b32 s{n+3}, 0x20000\n"
EX = O("ex", 1)
if EX:
    E(f"s_mov_b32 m0, s{sM0X}\ns_and_b32 s{sC}, s{sPHI}, 7\ns_lshl_b32 s{sX}, s{sC}, 7\n" + mksrd(SX, 4, 2097152))
    E([dma(vXo + i, SX, f"s{sX}", 1024 * i, "c0") for i in range(4)])
E(f"""
{t0_of(sT0, sCB, sT)}v_lshrrev_b32 v{vT0}, 5, v{vL}
v_bfe_u32 v{vT1}, v{vL}, 2, 2
v_lshl_add_u32 v{vT0}, v{vT0}, 2, v{vT1}
v_bfe_u32 v{vT1}, v{vL}, 4, 1
v_and_b32 v{vT2}, 3, v{vL}
v_lshlrev_b32 v{vT2}, 4, v{vT2}
v_lshl_add_u32 v{vT1}, v{vT1}, 6, v{vT2}
v_lshl_add_u32 v{vDo}, v{vT0}, 10, v{vT1}
s_lshl_b32 s{sT}, s{sW}, 4
v_add_u32 v{vT0}, s{sT}, v{vT0}
s_and_b32 s{sT}, s{sCB}, 1
s_add_u32 s{sT}, s{sT}, 1
s_lshl_b32 s{sT}, s{sT}, 10
s_lshr_b32 s{sTb}, s{sCB}, 1
s_lshl_b32 s{sTb}, s{sTb}, 7
s_add_u32 s{sT}, s{sT}, s{sTb}
v_mul_u32_u24 v{vQo}, 3072, v{vT0}
v_add3_u32 v{vQo}, v{vQo}, v{vT1}, s{sT}
v_add_u32 v{vQo+1}, {8*3072-1024}, v{vQo}
s_lshl_b32 s{sT}, s{sT0}, 6
v_mul_u32_u24 v{vGo}, 2752, v{vT0}
v_add3_u32 v{vGo}, v{vGo}, v{vT1}, s{sT}
v_add_u32 v{vGo+1}, {8*2752-1024}, v{vGo}
""")
E(("" if EX else mksrd(SX, 4, 2097152)) + mksrd(SQ, 6, 1572864) + mksrd(SG, 12, 1409024) + mksrd(SU, 14, 1409024))
if OPT["stamps"]:
    E("v_mov_b32 v231, -1\nv_writelane_b32 v231, s88, 0"); nstamp[0] = 1
    if OPT["stamps"] == 14: E("v_writelane_b32 v231, s90, 1"); nstamp[0] = 2

def p1_dma(c):
    sl = c & 3; t = "c%d" % c
    g = []
    g.append(L(f"s_bfe_u32 s{sC}, s{sPHI}, {0x30000 + 4*c}\ns_add_u32 m0, s{sM0X}, {sl*16384}\ns_lshl_b32 s{sX}, s{sC}, 7") + [dma(vXo, SX, f"s{sX}", 0, t)])
    g += [[dma(vXo + i, SX, f"s{sX}", 1024 * i, t)] for i in range(1, 4)]
    g.append(L(f"s_add_u32 m0, s{sM0W}, {sl*24576}\ns_mul_i32 s{sQ}, s{sC}, 196608") + [dma(vQo, SQ, f"s{sQ}", 0, t)])
    g.append([dma(vQo + 1, SQ, f"s{sQ}", 1024, t), I(f"s_add_u32 m0, s{sM0W}, {sl*24576+8192}")])
    g.append(L(f"s_mul_i32 s{sG}, s{sC}, 176128") + [dma(vGo, SG, f"s{sG}", 0, t)])
    g.append([dma(vGo + 1, SG, f"s{sG}", 1024, t), I(f"s_add_u32 m0, s{sM0W}, {sl*24576+16384}")])
    g.append([dma(vGo, SU, f"s{sG}", 0, t)])
    g.append([dma(vGo + 1, SU, f"s{sG}", 1024, t)])
    return g
def p2_dma(p):
    t = "p%d" % p
    g = []
    g.append(L(f"s_bfe_u32 s{sC}, s{sPH2}, {0x30000 + 8*p}\ns_add_u32 m0, s{sM0W}, {p*24576}\ns_mul_i32 s{sQ}, s{sC}, 196608") + [dma(vQo2, SQ, f"s{sQ}", 0, t)])
    g.append([dma(vQo2 + 1, SQ, f"s{sQ}", 1024, t), I(f"s_add_u32 m0, s{sM0W}, {p*24576+8192}")])
    g.append(L(f"s_mul_i32 s{sG}, s{sC}, 176128") + [dma(vGo2, SG, f"s{sG}", 0, t)])
    g.append([dma(vGo2 + 1, SG, f"s{sG}", 1024, t), I(f"s_add_u32 m0, s{sM0W}, {p*24576+16384}")])
    g.append([dma(vGo2, SU, f"s{sG}", 0, t)])
    g.append([dma(vGo2 + 1, SU, f"s{sG}", 1024, t)])
    return g

E(mksrd(SWS, 22, WSSZ) + mksrd(SDBG, 20, 256) + f"""
s_mov_b32 s{sHUGE}, {HUGE}
v_lshlrev_b32 v{vL16}, 4, v{vL}
s_mul_i32 s{sT}, s{sW}, 10240
s_add_u32 s{sT}, s{sT}, {FL0}
s_cmp_lg_u32 s2, 0
s_cselect_b32 s{sT}, s{sHUGE}, s{sT}
s_cbranch_scc1 L_nozero
s_add_u32 s{sTb}, s{sT}, 4096
s_add_u32 s{sTc}, s{sT}, 8192
v_mov_b32 v{vXT}, 0
v_mov_b32 v{vXT+1}, 0
v_mov_b32 v{vXT+2}, 0
v_mov_b32 v{vXT+3}, 0
""")
for i in range(10):
    E(I(f"buffer_store_dwordx4 {vr(vXT,4)}, v{vL16}, {srd(SWS)}, s{[sT, sTb, sTc][i>>2]} offen offset:{1024*(i&3)} sc1", tag="zero"))
prog[-1].post = "\nL_nozero:"
stamp((2, 15))
if O("tlb", 0):
    E(f"""s_cmp_eq_u32 s{sW}, 1
s_cselect_b32 s44, s{SQ}, s{SX}
s_cselect_b32 s45, s{SQ+1}, s{SX+1}
s_cmp_eq_u32 s{sW}, 2
s_cselect_b32 s44, s{SG}, s44
s_cselect_b32 s45, s{SG+1}, s45
s_cmp_eq_u32 s{sW}, 3
s_cselect_b32 s44, s{SU}, s44
s_cselect_b32 s45, s{SU+1}, s45
s_mov_b32 s46, 1409024
s_mov_b32 s47, 0x20000
v_lshlrev_b32 v{vT0}, {O("tlbs", 24)}, v{vL}
buffer_load_dword v{vXT+7}, v{vT0}, s[44:47], 0 offen""")
g0 = p1_dma(0)
CT = O("ctouch", 1)
NI = O("ni", 9)
if O("c0o", 0):
    t = "c0"
    mk = lambda m, vo, S, so, imm: L(f"s_add_u32 m0, s{m[0]}, {m[1]}\ns_nop 0") + [dma(vo, S, f"s{so}", imm, t)]
    E(f"s_lshl_b32 s{sX}, s{sPHI}, 7\ns_mul_i32 s{sQ}, s{sPHI}, 196608\ns_mul_i32 s{sG}, s{sPHI}, 176128")
    X_, K_, G_, U_ = (sM0X, 0), (sM0W, 0), (sM0W, 8192), (sM0W, 16384)
    g0 = [mk(X_, vXo, SX, sX, 0), mk(G_, vGo, SG, sG, 0), mk(U_, vGo, SU, sG, 0), mk(K_, vQo, SQ, sQ, 0), mk(X_, vXo + 1, SX, sX, 1024), [dma(vXo + 2, SX, f"s{sX}", 2048, t)], [dma(vXo + 3, SX, f"s{sX}", 3072, t)],
          mk(K_, vQo + 1, SQ, sQ, 1024), mk(G_, vGo + 1, SG, sG, 1024), mk(U_, vGo + 1, SU, sG, 1024)]
if EX:
    E(flat(g0[4:NI]))
elif CT >= 2: E(flat(g0[:CT - 1]) + ctouch(vU + 2) + flat(g0[CT - 1:NI]))
else: E(flat(g0[:NI]))
g0 = g0[NI:]
if OPT["stamps"] == 15:
    stamp((15,))
    for i in range(NI):
        E(f"s_waitcnt vmcnt({NI-1-i})"); stamp((15,))
stamp((2,))
init_mark = len(prog)
E(mksrd(SD, 16, 1409024) + mksrd(SO, 8, 524288) + mksrd(SOUT, 18, 2097152))
ann = L(f"""
s_cmp_lg_u32 s2, 0
s_cselect_b32 s{sT}, s{sHUGE}, 0
s_lshl_b32 s{sTb}, s{sW}, 2
s_add_u32 s{sT}, s{sT}, s{sTb}
v_mov_b32 v{vT0}, 1
v_lshlrev_b32 v{vT1}, 8, v{vL}
""") + [I(f"buffer_store_dword v{vT0}, v{vT1}, {srd(SDBG)}, s{sT} offen sc1", need=["zero"])]
E(f"""
s_lshr_b32 s{sPH2}, s{sW}, 1
s_lshl_b32 s{sPH2}, s{sPH2}, 2
s_lshr_b32 s{sPH2}, s{sPHI}, s{sPH2}
s_lshr_b32 s{sT}, 0xe0c0, s{sCB}
s_and_b32 s{sT}, s{sT}, 1
s_cselect_b32 s{sMSK}, s{sHUGE}, 0
s_add_u32 s{sT2}, s{sT0}, 2
""")
if O("w2m", 0) == 0:
    w2touch = L(f"""s_mul_i32 s{sT}, s2, 3
s_add_u32 s{sT}, s{sT}, s{sW}
s_mov_b32 s{STC+3}, 0x20000
s_cmp_eq_u32 s{sW}, 3
s_cselect_b32 s{sT}, s2, s{sT}
s_cselect_b32 s{STC}, s{SO}, s{SD}
s_cselect_b32 s{STC+1}, s{SO+1}, s{SD+1}
s_cselect_b32 s{STC+2}, s{SO+2}, s{SD+2}
s_lshl_b32 s{sT}, s{sT}, 11
v_and_b32 v{vT0}, 15, v{vL}
v_lshlrev_b32 v{vT0}, 7, v{vT0}
v_lshrrev_b32 v{vT1}, 4, v{vL}
v_lshl_add_u32 v{vT0}, v{vT1}, 28, v{vT0}
buffer_load_dword v{vPoll}, v{vT0}, {srd(STC)}, s{sT} offen sc1""")
else:
    w2touch = L(f"""s_lshr_b32 s{sTb}, s2, 3
s_lshl_b32 s{sTb}, s{sTb}, 2
s_and_b32 s{sT}, s2, 3
s_add_u32 s{sTb}, s{sTb}, s{sT}
s_mul_i32 s{sT}, s{sTb}, 3
s_add_u32 s{sT}, s{sT}, s{sW}
s_mov_b32 s{STC+3}, 0x20000
s_cmp_eq_u32 s{sW}, 3
s_cselect_b32 s{sT}, s{sTb}, s{sT}
s_cselect_b32 s{STC}, s{SO}, s{SD}
s_cselect_b32 s{STC+1}, s{SO+1}, s{SD+1}
s_cselect_b32 s{STC+2}, s{SO+2}, s{SD+2}
s_lshl_b32 s{sT}, s{sT}, 12
s_and_b32 s{sTb}, s2, 4
s_lshl_b32 s{sTb}, s{sTb}, 27
s_add_u32 s{sT}, s{sT}, s{sTb}
v_and_b32 v{vT0}, 31, v{vL}
v_lshlrev_b32 v{vT0}, 7, v{vT0}
v_lshrrev_b32 v{vT1}, 5, v{vL}
v_lshl_add_u32 v{vT0}, v{vT1}, 28, v{vT0}
buffer_load_dword v{vPoll}, v{vT0}, {srd(STC)}, s{sT} offen sc1""")
if O("xt", 0):
    E(f"""s_lshr_b32 s{sTb}, s2, 3
s_lshl_b32 s{sTb}, s{sTb}, 2
s_and_b32 s{sT}, s2, 3
s_add_u32 s{sTb}, s{sTb}, s{sT}
s_lshl_b32 s{sTb}, s{sTb}, 2
s_add_u32 s{sT}, s{sTb}, s{sW}
s_lshl_b32 s{sT}, s{sT}, 11
s_add_u32 s{sT}, s{sT}, 0x100000
s_and_b32 s{sTb}, s2, 4
s_lshl_b32 s{sTb}, s{sTb}, 27
s_add_u32 s{sT}, s{sT}, s{sTb}
v_and_b32 v{vT0}, 15, v{vL}
v_lshlrev_b32 v{vT0}, 7, v{vT0}
v_lshrrev_b32 v{vT1}, 4, v{vL}
v_lshl_add_u32 v{vT0}, v{vT1}, 28, v{vT0}
buffer_load_dword v254, v{vT0}, {srd(SX)}, s{sT} offen sc1""")
E(f"""
v_and_b32 v{vT0}, 31, v{vL}
v_lshrrev_b32 v{vT1}, 5, v{vL}
v_bfe_u32 v{vT2}, v{vL}, 1, 3
v_xor_b32 v{vT2}, v{vT2}, v{vT1}
v_lshlrev_b32 v{vT0}, 7, v{vT0}
v_lshl_add_u32 v{vT0}, v{vT2}, 4, v{vT0}
v_add_u32 v{vT0}, s{sM0X}, v{vT0}
""")
for s in range(4):
    E(f"s_xor_b32 s{sT}, s{sW}, {s}\ns_lshl_b32 s{sT}, s{sT}, 5\nv_xor_b32 v{vXr+s}, s{sT}, v{vT0}\nv_xor_b32 v{vXp+s}, 4096, v{vXr+s}")
E(f"""
v_bfe_u32 v{vT2}, v{vL}, 2, 2
v_lshlrev_b32 v{vT2}, 6, v{vT2}
v_bfe_u32 v{vT0}, v{vL}, 4, 1
v_lshl_add_u32 v{vT2}, v{vT0}, 5, v{vT2}
v_and_b32 v{vT0}, 3, v{vL}
v_lshl_add_u32 v{vT2}, v{vT0}, 3, v{vT2}
v_lshl_add_u32 v{vT0}, v{vT1}, 10, v{vT2}
v_lshl_add_u32 v{vT2}, v{vT1}, 9, v{vT2}
s_and_b32 s{sTc}, s{sW}, 1
s_lshl_b32 s{sTc}, s{sTc}, 8
s_add_u32 s{sTc}, s{sTc}, {WB}
s_mul_i32 s{sT}, s{sW}, 6144
s_add_u32 s{sM0D}, s{sT}, {WB}
v_add_u32 v{vT1}, s{sM0D}, v{vT2}
{park("W3r", f"v{vT1}")}v_add_u32 v{vT1}, 49152, v{vT1}
{park("W3s", f"v{vT1}")}
""")
for s in range(4):
    E(f"""
s_xor_b32 s{sT}, s{sW}, {s}
s_lshl_b32 s{sTb}, s{sT}, 11
s_add_u32 s{sTb}, s{sTb}, s{sTc}
v_add_u32 v{vWr+2*s}, s{sTb}, v{vT0}
v_add_u32 v{vWr+2*s+1}, 49152, v{vWr+2*s}
s_lshl_b32 s{sTb}, s{sT}, 10
s_add_u32 s{sTb}, s{sTb}, {WB}
v_add_u32 v{vW2r+2*s}, s{sTb}, v{vT2}
v_add_u32 v{vW2r+2*s+1}, 49152, v{vW2r+2*s}
""")
E(f"""
v_lshrrev_b32 v{vT0}, 2, v{vL}
s_and_b32 s{sT}, s{sW}, 1
s_lshl_b32 s{sT}, s{sT}, 5
v_add_u32 v{vT0}, s{sT}, v{vT0}
v_and_b32 v{vT1}, 3, v{vL}
v_lshlrev_b32 v{vT1}, 4, v{vT1}
s_lshl_b32 s{sT}, s{sCB}, 6
v_mul_u32_u24 v{vQo2}, 3072, v{vT0}
v_add3_u32 v{vQo2}, v{vQo2}, v{vT1}, s{sT}
v_add_u32 v{vQo2+1}, {16*3072-1024}, v{vQo2}
s_lshl_b32 s{sT}, s{sT2}, 6
v_mul_u32_u24 v{vGo2}, 2752, v{vT0}
v_add3_u32 v{vGo2}, v{vGo2}, v{vT1}, s{sT}
v_add_u32 v{vGo2}, s{sMSK}, v{vGo2}
v_add_u32 v{vGo2+1}, {16*2752-1024}, v{vGo2}
v_and_b32 v{vT0}, 15, v{vL}
v_bfe_u32 v{vT1}, v{vL}, 4, 1
v_sub_u32 v{vT0}, v{vT0}, v{vT1}
v_mov_b32 v{vT1}, 0x3f803f80
""")
for t in range(3):
    E(f"v_cmp_eq_u32 vcc, {2*t}, v{vT0}\nv_cndmask_b32 v{vT2}, 0, v{vT1}, vcc")
    E("\n".join(f"v_accvgpr_write_b32 a{aSEL+4*t+j}, v{vT2}" for j in range(4)))
E(f"""
s_lshl_b32 s{sT}, s{sRB}, 2
s_sub_i32 s{sT}, 8, s{sT}
v_and_b32 v{vT0}, 7, v{vL}
v_lshlrev_b32 v{vT0}, 1, v{vT0}
v_mov_b32 v{vT1}, 0x3f80
v_cmp_le_i32 vcc, s{sT}, v{vT0}
v_cndmask_b32 v{vT2}, 0, v{vT1}, vcc
v_accvgpr_write_b32 a{aSTV}, v{vT2}
v_accvgpr_write_b32 a{aSTV+1}, 0
v_add_u32 v{vT0}, 1, v{vT0}
v_cmp_le_i32 vcc, s{sT}, v{vT0}
v_cndmask_b32 v{vT2}, 0, v{vT1}, vcc
v_cmp_ne_u32 vcc, 15, v{vT0}
v_cndmask_b32 v{vT2}, 0, v{vT2}, vcc
v_accvgpr_write_b32 a{aSTV+2}, v{vT2}
v_accvgpr_write_b32 a{aSTV+3}, 0
v_lshlrev_b32 v{vT0}, 3, v{vL}
s_and_b32 s{sTc}, s{sW}, 1
s_lshr_b32 s{sT}, s{sTB}, 1
s_lshl_b32 s{sTb}, s{sT}, 13
s_add_u32 s{sTb}, s{sTb}, {SP0}
s_lshl_b32 s{sTd}, s{sTc}, 8
v_xor_b32 v{vT1}, s{sTd}, v{vT0}
v_add_u32 v{vSPo}, s{sTb}, v{vT1}
s_lshl_b32 s{sSP}, s{sCB}, 9
s_and_b32 s{sSG}, s{sCB}, 12
s_lshl_b32 s{sSG}, s{sSG}, 9
s_lshl_b32 s{sT}, s{sT}, 8
s_and_b32 s{sTb}, s{sCB}, 12
s_lshl_b32 s{sTb}, s{sTb}, 3
s_add_u32 s{sT}, s{sT}, s{sTb}
s_add_u32 s{sT}, s{sT}, {FL0+4*8192}
v_bfe_u32 v{vT1}, v{vL}, 2, 1
v_and_b32 v{vT2}, 3, v{vL}
v_lshlrev_b32 v{vT2}, 3, v{vT2}
v_lshl_add_u32 v{vT1}, v{vT1}, 7, v{vT2}
v_add_u32 v{vPs}, s{sT}, v{vT1}
s_and_b32 s{sTc}, s{sW}, 1
s_mul_i32 s{sT}, s{sTc}, {8*C1STR}
v_add_u32 v{vCSr}, s{sT}, v{vT0}
s_lshr_b32 s{sTb}, s{sW}, 1
s_lshl_b32 s{sTd}, s{sTb}, 8
s_add_u32 s{sT}, s{sT}, s{sTd}
v_bfe_u32 v{vT0}, v{vL}, 1, 3
v_and_b32 v{vT1}, 1, v{vL}
v_lshrrev_b32 v{vT2}, 4, v{vL}
v_lshl_add_u32 v{vT1}, v{vT1}, 2, v{vT2}
v_mul_u32_u24 v{vT2}, {C1STR}, v{vT0}
v_lshl_add_u32 v{vT2}, v{vT1}, 5, v{vT2}
v_add_u32 v{vCSw1}, s{sT}, v{vT2}
s_lshl_b32 s{sT}, s{sTb}, 9
s_lshl_b32 s{sTd}, s{sTc}, 3
s_add_u32 s{sT}, s{sT}, s{sTd}
v_mul_u32_u24 v{vT2}, {CSTR}, v{vT0}
v_lshl_add_u32 v{vT2}, v{vT1}, 6, v{vT2}
v_add_u32 v{vCSw2}, s{sT}, v{vT2}
v_and_b32 v{vT0}, 31, v{vL}
v_lshrrev_b32 v{vT1}, 5, v{vL}
v_lshl_add_u32 v{vT0}, v{vT0}, 1, v{vT1}
v_lshlrev_b32 v{vT0}, 4, v{vT0}
v_add_u32 v{vT0}, 2048, v{vT0}
s_and_b32 s{sT}, s{sCB}, 1
s_cmp_eq_u32 s{sT}, 1
s_cselect_b64 vcc, -1, 0
v_cndmask_b32 v{vKVst}, v{vL16}, v{vT0}, vcc
s_and_b32 s{sT}, s{sCB}, 14
s_add_u32 s{sT}, s{sT}, s{sTc}
s_lshl_b32 s{sT}, s{sT}, 18
s_and_b32 s{sTb}, s{sTB}, -2
s_lshl_b32 s{sTd}, s{sTb}, 12
s_add_u32 s{sT}, s{sT}, s{sTd}
v_add_u32 v{vKVst}, s{sT}, v{vKVst}
s_lshl_b32 s{sPK}, s{sTc}, 12
s_mul_i32 s{sT}, s{sTb}, {HSTR}
s_add_u32 s{sT}, s{sT}, {H0}
s_lshl_b32 s{sTd}, s{sCB}, 12
s_add_u32 s{sT}, s{sT}, s{sTd}
s_lshl_b32 s{sTd}, s{sTc}, 11
s_add_u32 s{sT}, s{sT}, s{sTd}
v_add_u32 v{vHst}, s{sT}, v{vL16}
s_mul_i32 s{sPH}, s{sTc}, {HSTR}
s_lshr_b32 s{sT}, s{sCB}, 3
s_lshl_b32 s{sT}, s{sT}, 1
s_sub_u32 s{sT}, s{sCB}, s{sT}
s_lshl_b32 s{sT}, s{sT}, 11
s_add_u32 s{sT}, s{sT}, 65536
s_add_u32 s{sT}, s{sT}, s{sPH}
s_lshl_b32 s{sTd}, s{sCB}, 12
s_sub_u32 s{sT}, s{sT}, s{sTd}
s_lshl_b32 s{sTd}, s{sTc}, 11
s_sub_u32 s{sT}, s{sT}, s{sTd}
s_and_b32 s{sH2}, s{sCB}, 7
s_cmp_lt_u32 s{sH2}, 6
s_cselect_b32 s{sH2}, s{sT}, s{sHUGE}
s_lshl_b32 s{sT}, s{sTb}, 7
s_lshl_b32 s{sTd}, s{sCB}, 3
s_add_u32 s{sTd}, s{sTd}, {FL0}
s_add_u32 s{sT}, s{sT}, s{sTd}
s_lshl_b32 s{sTb}, s{sTc}, 2
s_add_u32 s{sT}, s{sT}, s{sTb}
v_lshlrev_b32 v{vT0}, 7, v{vL}
v_add_u32 v{vT0}, s{sT}, v{vT0}
v_mov_b32 v{vT1}, s{sHUGE}
v_cmp_gt_u32 vcc, 2, v{vL}
v_cndmask_b32 v{vFl2}, v{vT1}, v{vT0}, vcc
s_lshl_b32 s{sT}, s{sTB}, 7
s_add_u32 s{sT}, s{sT}, s{sTd}
v_mov_b32 v{vT0}, s{sT}
v_cmp_eq_u32 vcc, 0, v{vL}
v_cndmask_b32 v{vT0}, v{vT1}, v{vT0}, vcc
{park("Fl1", f"v{vT0}")}
v_mov_b32 v{vSum}, 0
v_mov_b32 v{vSum+1}, 0
v_mov_b32 v{vSum+2}, 0
v_mov_b32 v{vSum+3}, 0
v_mov_b32 v{vCSA[0]+2}, 0
v_mov_b32 v{vCSA[0]+3}, 0
v_mov_b32 v{vCSA[1]+2}, 0
v_mov_b32 v{vCSA[1]+3}, 0
v_mov_b32 v{vCSA[2]+2}, 0
v_mov_b32 v{vCSA[2]+3}, 0
s_lshl_b32 s{sT}, s{sNB}, 7
v_add_u32 v{vDo}, s{sT}, v{vDo}
v_add_u32 v{vDo+1}, {7*1024}, v{vDo}
s_lshl_b32 s{sT}, s{sW}, 17
v_add_u32 v{vT0}, s{sT}, v{vDo}
{park("Eo", f"v{vT0}")}v_add_u32 v{vT0}, {7*1024}, v{vT0}
{park("Eo1", f"v{vT0}")}
s_mul_i32 s{sT}, s{sTB2}, {2*HSTR}
s_lshl_b32 s{sTb}, s{sW}, 14
s_add_u32 s{sT}, s{sT}, s{sTb}
s_add_u32 s{sT}, s{sT}, {H0}
v_add_u32 v{vT0}, s{sT}, v{vL16}
{park("Ao", f"v{vT0}")}v_add_u32 v{vT0}, {HSTR}, v{vT0}
{park("Ao1", f"v{vT0}")}
s_lshl_b32 s{sT}, s{sTB2}, 16
s_lshl_b32 s{sTb}, s{sW}, 13
s_add_u32 s{sT}, s{sT}, s{sTb}
s_add_u32 s{sT}, s{sT}, {O0}
v_add_u32 v{vT0}, s{sT}, v{vL16}
{park("Oo", f"v{vT0}")}v_add_u32 v{vT0}, 32768, v{vT0}
{park("Oo1", f"v{vT0}")}
s_lshl_b32 s{sRHO}, s{sTB2}, 1
s_add_u32 s{sRHO}, s{sRHO}, s{sNB}
s_and_b32 s{sRHO}, s{sRHO}, {7 if O("rot", 1) else 0}
s_lshl_b32 s{sWB}, s{sW}, 2
""")
for q in range(8):
    E(f"""s_add_u32 s{sT}, s{sRHO}, {q}
s_bfe_u32 s{sTb}, s{sT}, 0x20001
s_add_u32 s{sTb}, s{sTb}, s{sWB}
{t0_of(sTc, sTb, sTd)}s_and_b32 s{sT}, s{sT}, 1
s_add_u32 s{sT}, s{sT}, s{sTc}
s_lshl_b32 s{sWE+q}, s{sT}, 15
s_add_u32 s{sT}, s{sRHO}, {q}
s_and_b32 s{sT}, s{sT}, 7
s_lshl_b32 s{sHE[q]}, s{sT}, 11""")
E(f"""s_add_u32 s{sT}, s{sTB2}, s{sNB}
s_mul_i32 s{sTb}, s{sT}, 43
s_lshr_b32 s{sTb}, s{sTb}, 7
s_mul_i32 s{sTb}, s{sTb}, 3
s_sub_u32 s{sT}, s{sT}, s{sTb}
s_and_b32 s{sT}, s{sT}, {3 if O("rot", 1) else 0}
s_mul_i32 s{sTc}, s{sW}, 10240
s_sub_u32 s{sTc}, 65536, s{sTc}
s_mul_i32 s{sTd}, s{sW}, 9
s_lshr_b32 s{sTb}, s{sW}, 1
s_lshl_b32 s{sTb}, s{sTb}, 2
s_add_u32 s{sTd}, s{sTd}, s{sTb}
s_add_u32 s{sTd}, s{sTd}, 2
s_lshl_b32 s{sTd}, s{sTd}, 15""")
for q in range(3):
    E(f"""s_lshl_b32 s{sTb}, s{sT}, 11
s_add_u32 s{sLH[q]}, s{sTb}, s{sTc}
s_mul_i32 s{sTb}, s{sT}, 98304
s_add_u32 s{sLW[q]}, s{sTb}, s{sTd}
s_add_u32 s{sT}, s{sT}, 1
s_cmp_eq_u32 s{sT}, 3
s_cselect_b32 s{sT}, 0, s{sT}""")
E(f"""
s_lshl_b32 s{sA}, s{sRHO}, 11
s_lshl_b32 s{sWB}, s{sRHO}, 14
s_lshl_b32 s{sWS}, s{sRHO}, 10
v_lshrrev_b32 v{vT0}, 3, v{vL}
v_and_b32 v{vT1}, 7, v{vL}
s_lshl_b32 s{sT}, s{sTB2}, 6
s_lshl_b32 s{sTb}, s{sW}, 3
s_add_u32 s{sT}, s{sT}, s{sTb}
s_lshl_b32 s{sT}, s{sT}, 10
s_lshl_b32 s{sTb}, s{sNB}, 7
s_add_u32 s{sT}, s{sT}, s{sTb}
v_lshlrev_b32 v{vT2}, 10, v{vT0}
v_lshl_add_u32 v{vT2}, v{vT1}, 4, v{vT2}
v_add_u32 v{vT2}, s{sT}, v{vT2}
{park("Out", f"v{vT2}")}v_add_u32 v{vT2}, 32768, v{vT2}
{park("Out1", f"v{vT2}")}v_lshlrev_b32 v{vT1}, 1, v{vT1}
v_xor_b32 v{vT1}, v{vT1}, v{vT0}
v_lshlrev_b32 v{vT0}, 8, v{vT0}
v_lshl_add_u32 v{vT0}, v{vT1}, 4, v{vT0}
s_lshl_b32 s{sT}, s{sW}, 11
v_add_u32 v{vT0}, s{sT}, v{vT0}
{park("Rr", f"v{vT0}")}v_and_b32 v{vT0}, 31, v{vL}
v_lshrrev_b32 v{vT1}, 5, v{vL}
v_and_b32 v{vT2}, 7, v{vL}
v_xor_b32 v{vT1}, v{vT1}, v{vT2}
v_lshlrev_b32 v{vT0}, 8, v{vT0}
v_lshl_add_u32 v{vT0}, v{vT1}, 4, v{vT0}
s_lshl_b32 s{sT}, s{sW}, 14
v_add_u32 v{vT0}, s{sT}, v{vT0}
{park("Rw", f"v{vT0}")}
v_add_u32 v{vT0}, s{sM0X}, v{vL16}
{park("Ka", f"v{vT0}")}v_lshrrev_b32 v{vT1}, 5, v{vL}
v_bfe_u32 v{vT2}, v{vL}, 2, 2
v_lshl_add_u32 v{vT2}, v{vT1}, 2, v{vT2}
v_lshlrev_b32 v{vT2}, 5, v{vT2}
v_and_b32 v{vT0}, 1, v{vL}
v_lshl_add_u32 v{vT2}, v{vT0}, 4, v{vT2}
v_bfe_u32 v{vT0}, v{vL}, 1, 1
v_lshl_add_u32 v{vT2}, v{vT0}, 3, v{vT2}
s_add_u32 s{sT}, s{sM0X}, 2048
v_add_u32 v{vT2}, s{sT}, v{vT2}
v_xor_b32 v{vT1}, 1, v{vT1}
v_lshlrev_b32 v{vT1}, 7, v{vT1}
s_lshl_b32 s{sT}, s{sW}, 3
s_add_u32 s{sT}, s{sT}, {STRIP}
v_add_u32 v{vU}, {STRIP+120}, v{vT1}
v_add_u32 v{vT1}, s{sT}, v{vT1}
v_and_b32 v{vT0}, 2, v{vL}
v_cmp_eq_u32 vcc, 0, v{vT0}
v_cndmask_b32 v{vT1}, v{vU}, v{vT1}, vcc
v_cndmask_b32 v{vU}, 0, 8, vcc
v_and_b32 v{vT0}, 16, v{vL}
v_cmp_eq_u32 vcc, 0, v{vT0}
v_cndmask_b32 v{vT0}, v{vT1}, v{vT2}, vcc
{park("Va", f"v{vT0}")}v_mov_b32 v{vT2}, 4096
v_cndmask_b32 v{vT0}, v{vU}, v{vT2}, vcc
{park("Vinc", f"v{vT0}")}
s_lshl_b32 s{sT}, s{sTB}, 15
s_lshl_b32 s{sTb}, s{sCB}, 11
s_add_u32 s{sT}, s{sT}, s{sTb}
s_add_u32 s{sT}, s{sT}, {O0}
v_add_u32 v{vT0}, s{sT}, v{vL16}
{park("Ost", f"v{vT0}")}
s_lshl_b32 s{sT}, s{sCB}, 18
v_add_u32 v{vT0}, s{sT}, v{vL16}
{park("KVo", f"v{vT0}")}
""")
SENT = O("sent", 1)
sent_st = [I(f"buffer_store_dwordx4 {vr(vXT,4)}, v{vOst}, {srd(SWS)}, 0 offen offset:{1024*e} sc1", tag="sent") for e in range(2)] if SENT else []
for k in range(3):
    E(f"""
s_add_i32 s{sT}, s{sTB}, {-4*k}
s_lshl_b32 s{sKV[k]}, s{sT}, 12
s_cmp_lt_i32 s{sT}, 0
s_cselect_b32 s{sKV[k]}, s{sHUGE}, s{sKV[k]}
""")
E(f"""
v_min_u32 v{vT1}, 5, v{vL}
v_lshrrev_b32 v{vT2}, 1, v{vT1}
v_lshlrev_b32 v{vT2}, 2, v{vT2}
v_sub_u32 v{vT2}, s{sTB}, v{vT2}
v_cmp_gt_i32 vcc, 0, v{vT2}
v_mov_b32 v{vT0}, s{sTB}
v_cndmask_b32 v{vT2}, v{vT2}, v{vT0}, vcc
v_lshlrev_b32 v{vT2}, 7, v{vT2}
v_and_b32 v{vT1}, 1, v{vT1}
v_lshl_add_u32 v{vT2}, v{vT1}, 3, v{vT2}
s_and_b32 s{sT}, s{sCB}, 14
s_lshl_b32 s{sT}, s{sT}, 3
s_and_b32 s{sTb}, s{sCB}, 1
s_lshl_b32 s{sTb}, s{sTb}, 2
s_add_u32 s{sT}, s{sT}, s{sTb}
s_add_u32 s{sT}, s{sT}, {FL0}
v_add_u32 v{vT0}, s{sT}, v{vT2}
{park("Pa", f"v{vT0}")}
s_lshl_b32 s{sT}, s{sTB2}, 8
s_add_u32 s{sT}, s{sT}, {FL0+8192}
v_lshlrev_b32 v{vT0}, 2, v{vL}
v_add_u32 v{vT0}, s{sT}, v{vT0}
{park("Pb", f"v{vT0}")}
""")
if O("tblm", 1):
    E(f"""v_and_b32 v{vT1}, 31, v{vL}
v_lshrrev_b32 v{vT2}, 5, v{vL}
v_lshlrev_b32 v{vT2}, 2, v{vT2}
v_sub_u32 v{vT1}, v{vT1}, v{vT2}""")
    for j in range(16):
        kl = 8 * (j >> 2) + (j & 3)
        E(f"""v_subrev_u32 v{vT0}, {kl}, v{vT1}
v_ashrrev_i32 v{vT0}, 31, v{vT0}
v_and_b32 v{vT0}, 0xff000000, v{vT0}
v_accvgpr_write_b32 a{aMSK+16+j}, v{vT0}
v_xor_b32 v{vT0}, 0xff000000, v{vT0}
v_accvgpr_write_b32 a{aMSK+j}, v{vT0}""")
rest = prog[init_mark:]; del prog[init_mark:]
gall = p1_dma(1) + p1_dma(2)
N0 = O("n0", 10)
def safe_at(lst, n):
    x = lst[n]
    return not (x.op.startswith("s_cmp") or x.op == "s_and_b32" or (n + 1 < len(lst) and (lst[n + 1].op.startswith("s_cselect") or lst[n + 1].op.startswith("s_cbranch"))))
cut = int(len(rest) * O("f1", 30) / 100)
while not safe_at(rest, cut - 1): cut += 1
E(rest[:cut])
stamp((2,))
E(flat(g0))
rest = rest[cut:]
gs = gall[:N0]; k = 0
for n, x in enumerate(rest):
    E(x)
    if k < len(gs) and safe_at(rest, n) and n + 1 >= (k + 1) * len(rest) / (len(gs) + 1):
        E(gs[k]); k += 1
if O("w2t", -2) == 0: E(w2touch)
E(ann)
E(flat(gs[k:]))
if O("w2t", -2) == 1: E(w2touch)
stamp((1, 2, 3))

def wf1(st, t): return aWF + (st * 3 + t) * 4
LK = O('lk', 3)
def wf2(k, t): return aWF + ((k % (LK + 1)) * 3 + t) * 4
def p1_reads(c, s):
    sl = c & 3; st = s & 1
    o = [I(f"ds_read_b128 {ar(aX+(4*c+s)*4,4)}, v{vXr+s} offset:{sl*16384}")]
    for t in range(3):
        for n in range(2):
            o.append(I(f"ds_read_b64_tr_b16 {ar(wf1(st,t)+2*n,2)}, v{vWr+2*s+(sl>>1)} offset:{(sl&1)*24576+t*8192+n*512}"))
    o.insert(3, I(f"ds_read_b128 {ar(aXP+4*st,4)}, v{vXp+s} offset:{sl*16384}"))
    return o
def statread(g):
    c, s = g >> 2, g & 3
    return [I(f"ds_read_b128 {vr(vXT+4*s,4)}, v{vXr+s} offset:{(c&3)*16384}")]
def stats(s):
    o = []
    for j in range(4):
        x = vXT + 4 * s + j; a = vU + 2 * (j & 1)
        o += L(f"""v_lshlrev_b32 v{a}, 16, v{x}
v_and_b32 v{a+1}, 0xffff0000, v{x}
v_add_f32 v{vSum}, v{vSum}, v{a}
v_add_f32 v{vSum+1}, v{vSum+1}, v{a+1}
v_fmac_f32 v{vSum+2}, v{a}, v{a}
v_fmac_f32 v{vSum+3}, v{a+1}, v{a+1}""")
    return o
def cs_convert(vcs, vw, base, step):
    o = []
    for j in range(4):
        a = 252 if j & 1 else vU + 4
        o += L(f"""v_cvt_pk_bf16_f32 v{a}, v{vcs+j}, v{vcs+j}
v_and_b32 v{a+1}, 0xffff0000, v{a}
v_sub_f32 v{a+1}, v{vcs+j}, v{a+1}
v_cvt_pk_bf16_f32 v{a+1}, v{a+1}, v{a+1}""")
        o.append(I(f"ds_write_b64 v{vw}, {vr(a,2)} offset:{base+step*j}"))
    return o
C1 = -2.0 * 0.7978845608028654 * 1.4426950408889634
QC = 0.25 * 1.4426950408889634
stats_pub = L(f"""v_add_f32 v{vSum}, v{vSum}, v{vSum+1}
v_add_f32 v{vSum+1}, v{vSum+2}, v{vSum+3}
v_mov_b32 v{vSum+2}, v{vSum}
v_mov_b32 v{vSum+3}, v{vSum+1}
v_lshrrev_b32 v{vT0}, 5, v{vL}
v_permlane32_swap_b32 v{vSum}, v{vSum+2}
v_permlane32_swap_b32 v{vSum+1}, v{vSum+3}
v_lshl_add_u32 v{vT0}, v{vT0}, 28, v{vSPo}
v_add_f32 v{vSum}, v{vSum}, v{vSum+2}
v_add_f32 v{vSum+1}, v{vSum+1}, v{vSum+3}""") + [I(f"buffer_store_dwordx2 {vr(vSum,2)}, v{vT0}, {srd(SWS)}, s{sSP} offen sc1", tag="sp")]
stats_ld = [[I(f"buffer_load_dwordx2 {vr(vSL+2*i,2)}, v{vSPo}, {srd(SWS)}, s{sSG} offen offset:{512*i} sc1")] for i in range(4)]
b = vSL
stats_fin = L(f"""
v_add_f32 v{b}, v{b}, v{b+2}
v_add_f32 v{b+1}, v{b+1}, v{b+3}
v_add_f32 v{b+4}, v{b+4}, v{b+6}
v_add_f32 v{b+5}, v{b+5}, v{b+7}
v_add_f32 v{b}, v{b}, v{b+4}
v_add_f32 v{b+1}, v{b+1}, v{b+5}
v_mul_f32 v{vSum}, {fx(-1.0/512)}, v{b}
v_mul_f32 v{b+1}, {fx(1.0/512)}, v{b+1}
v_fma_f32 v{b+1}, -v{vSum}, v{vSum}, v{b+1}
v_max_f32 v{b+1}, 0, v{b+1}
v_add_f32 v{vSum+1}, {fx(1e-5)}, v{b+1}
v_mov_b32 v{vSum+2}, v{vSum}
v_mov_b32 v{vSum+3}, v{vSum+1}
s_nop 0
v_permlane32_swap_b32 v{vSum}, v{vSum+2}
v_permlane32_swap_b32 v{vSum+1}, v{vSum+3}
""")
def stats_k(o):
    R = vSum + 2 * o + 1; K = vK[o]; a = vU
    t = f"""
v_rsq_f32 v{K}, v{R}
v_mov_b32 v{K+3}, v{R}
v_mul_f32 v{K+1}, {fx(C1)}, v{K}
v_mul_f32 v{a}, v{K}, v{K}
v_mul_f32 v{a}, {fx(0.044715)}, v{a}
v_mul_f32 v{K+2}, v{K+1}, v{a}
"""
    if o == 0: t += f"v_mul_f32 v{vQS}, {fx(QC)}, v{K}\n"
    return L(t)
def stats_b(o):
    nm = vSum + 2 * o; B = vBx[o]; a = vU
    return L(f"""
v_cvt_pk_bf16_f32 v{a}, v{nm}, v{nm}
v_and_b32 v{a}, 0xffff0000, v{a}
v_sub_f32 v{a+1}, v{nm}, v{a}
v_cvt_pk_bf16_f32 v{B}, v{a}, v{a+1}
v_mov_b32 v{B+1}, v{B}
v_mov_b32 v{B+2}, v{B}
v_mov_b32 v{B+3}, v{B}
""")
E(I("s_barrier", need=["c0"]))
stamp((2,))
E(p1_reads(0, 0) + statread(0) + statread(1))
E(stats(0))
S1 = Sched()
P1 = lambda c, s, t: 24 * c + 6 * s + t
A1 = lambda t, o: ACC1 + 32 * t + 16 * o
for c in range(8):
    for s in range(4):
        st = s & 1; first = (c == 0 and s == 0)
        for q in range(6):
            t, o = q >> 1, q & 1
            acc = vr(A1(t, o), 16)
            xb = ar(aX + (4 * c + s) * 4, 4) if o == 0 else ar(aXP + 4 * st, 4)
            ops = [I(f"{MF} {acc}, {ar(wf1(st,t),4)}, {xb}, {'0' if first else acc}")]
            small = s < 2 and o == 1 and not (O('x_nocs', 0) and c > 0)
            if small:
                cs = vr(vCS1, 4)
                ops.append(I(f"{MS} {cs}, {ar(wf1(st,t),4)}, {ar(aSEL+4*t,4)}, {'0' if (first and t == 0) else cs}"))
            pre = []
            if q == 0 and (O("fw", 0) == 0 or s == 3) and not (c == 7 and s == 3): pre.append(I("s_waitcnt lgkmcnt(0)"))
            if s == 3 and q == 0 and c < 7: pre.append(I("s_barrier", need=["c%d" % (c + 1)]))
            if s == 3 and q == 2 and c == 7: pre += [I("s_waitcnt lgkmcnt(0)"), I("s_barrier", need=["p0"])]
            if s == 0 and q == 0: pre += stampq((3,))
            S1.pos(ops, 8 if small else 6, pre)
NP1 = 192
CORR_K = 0
P2 = lambda k, t: NP1 + 3 * k + t + (6 if k >= CORR_K else 0)
PC = NP1 + 3 * CORR_K
for k in range(32):
    p, s = k >> 3, k & 3
    if k == CORR_K:
        for q in range(6):
            t, o = q >> 1, q & 1
            acc = vr(A1(t, o), 16)
            S1.pos(I(f"{MF} {acc}, {vr(vCSA[t],4)}, {vr(vBx[o],4)}, {acc}"), 6, stampq((1, 3)) if q == 0 else [])
    for t in range(3):
        acc = vr(ACC2 + 16 * t, 16)
        ops = [I(f"{MF} {acc}, {ar(wf2(k,t),4)}, {ar(aX+k*4,4)}, {'0' if k == 0 else acc}", xr=(ar(wf2(k, 0), 24 if (LK == 3 and k % 2 == 0) else 12) if t == 0 else None))]
        if s == 0:
            cs = vr(vCS2, 4)
            ops.append(I(f"{MS} {cs}, {ar(wf2(k,t),4)}, {ar(aSEL+4*t,4)}, {'0' if (k == 0 and t == 0) else cs}"))
        pre = []
        if False:
            pre = []
        if (k & 7) == 8 - LK and t == 1:
            pre = [I("s_waitcnt lgkmcnt(0)"), I("s_barrier", need=["p%d" % (p + 1)] if p < 3 else [])]
        if LK == 3 and k == 30 and t == 1: pre = [I("s_waitcnt lgkmcnt(0)"), I("s_barrier")]
        if LK == 3 and k == 29 and t == 1: pre = []
        if (k & 3) == 0 and t == 0: pre += stampq((4,))
        S1.pos(ops, 8 if s == 0 else 6, pre)
NP2 = len(S1.main)
def p2_reads(k):
    p, g, s = k >> 3, (k >> 2) & 1, k & 3
    return [I(f"ds_read_b64_tr_b16 {ar(wf2(k,t)+2*n,2)}, v{vW2r+2*s+(p>>1)} offset:{(p&1)*24576+t*8192+g*4096+n*256}") for t in range(3) for n in range(2)]
def store4(data, voff, soff, imm, tag):
    if O("x_nost", 0) and tag in ("kv", "h"): return I("s_nop 0")
    o = (" offset:%d" % imm) if imm else ""
    return I(f"buffer_store_dwordx4 {vr(data,4)}, v{voff}, {srd(SWS)}, {soff} offen{o} sc1", tag=tag)
def flag(stage, tag, va):
    if O("x_nofw", -1) == stage: tag = "none"
    return L(f"v_mov_b32 v{vT0}, 1\ns_mov_b32 s{sT}, {stage*8192}") + [I(f"buffer_store_dword v{vT0}, v{va}, {srd(SWS)}, s{sT} offen sc1", need=[tag])]
def poll_issue(va): return [I(f"buffer_load_dword v{vPoll}, v{va}, {srd(SWS)}, 0 offen sc1")]
def poll_check(name, S, reg, addr):
    SITE = {"init": 24, "st": 25, "kv": 26, "h": 27, "h2": 28, "o": 29}[name]
    mark = f"    v_writelane_b32 v231, s{sSPIN}, {SITE}\n" if OPT["stamps"] else ""
    rare.append(f"""
L_spin_{name}:
    s_mov_b32 s{sSPIN}, {OPT['spin']}
L_spin2_{name}:
{mark}    buffer_load_dword v{reg}, v{addr}, {srd(S)}, 0 offen sc1
    s_waitcnt vmcnt(0) lgkmcnt(0)
    v_cmp_eq_u32 vcc, 0, v{reg}
    s_nop 4
    s_cbranch_vccz L_ok_{name}
    s_sleep 1
    s_sub_u32 s{sSPIN}, s{sSPIN}, 1
    s_cmp_lg_u32 s{sSPIN}, 0
    s_cbranch_scc1 L_spin2_{name}
    s_endpgm
""")
    o = L(f"v_cmp_eq_u32 vcc, 0, v{reg}\ns_cbranch_vccnz L_spin_{name}")
    o[-1].post = f"\nL_ok_{name}:"
    return o
SC2 = 1
SG_ = set(range(4)) | set(range(4 * SC2, 4 * SC2 + 4))
for c in range(8):
    for s in range(4):
        g = 4 * c + s
        rd = []
        if g + 1 < 32: rd += p1_reads((g + 1) >> 2, (g + 1) & 3)
        if s < 2 and g + 2 in SG_: rd += statread(g + 2)
        if s == 3 and g + 1 in SG_: rd = statread(g + 1) + rd + statread(g + 2)
        S1.spread(rd, P1(c, s, 0), P1(c, s, O("rdw", 4)), 0)
        if g + 1 in SG_:
            if s != 3: S1.spread(stats((g + 1) & 3), P1(c, s, 0), P1(c, s, 6), 2)
            else: S1.spread(stats(0), P1(c, s, 2), P1(c, s, 6), 2)
    if c == 0:
        gq = gall[N0:]
        if O("w2t", -2) == -1: gq = gq[:10 - N0] + [w2touch] + gq[10 - N0:]
        if O("w2t", -2) == -2: gq = gq + [w2touch]
        N2 = O("n2", 99); carry = gq[N2:]
        S1.spread(gq[:N2], P1(0, O("n2a", 0), 0), P1(0, 3, 0), 1, one)
    if c == 0 and carry:
        S1.spread(carry, P1(0, 3, 0), P1(1, O("n2e", 1), 0), 1, one)
        S1.spread(p1_dma(3), P1(1, O("n2e", 1), 0), P1(1, 3, 0), 1, one)
    elif c < 5: S1.spread(p1_dma(c + 3), P1(c, 3, 0), P1(c + 1, 3, 0), 1, one)
S1.spread(p2_dma(0), P1(6, O("p0a", 1), 0), P1(6, 3, 0), 1, one)
S1.spread(p2_dma(1), P1(6, 3, 0), P1(7, 3, 0), 1, one)
S1.put(O("ipos", 24), [L(f"v_and_b32 v{vT2}, 3, v{vL}\nv_lshlrev_b32 v{vT2}, 2, v{vT2}") + [I(f"buffer_load_dword v{vInit}, v{vT2}, {srd(SDBG)}, 0 offen" + (" sc1" if O("isc", 1) else ""))]], 1)
S1.spread(stats_pub, P1(SC2, 3, 0), P1(SC2, 3, 3), 2)
S1.put(P1(O("spf", SC2 + 1), O("spf2", 3), 1), [poll_check("init", SDBG, vInit, vT2) + flag(4, "sp", vFl1)], 2)
S1.put(P1(O("spp", 4 if SC2 == 1 else 5), O("spp2", 2 if SC2 == 1 else 0), 5), [poll_issue(vPs)], 1)
S1.put(P1(5, 3, 1), [poll_check("st", SWS, vPoll, vPs)], 2)
S1.spread(stats_ld, P1(5, 3, 2), P1(5, 3, 6), 1, one)
S1.spread(stats_fin + stats_k(0) + stats_k(1), P1(7, 0, 0), P1(7, 2, 0), 2)
if SENT:
    S1.put(P1(3, 0, 0), L("\n".join(f"v_mov_b32 v{vXT+j}, -1" for j in range(4))), 2)
    S1.put(O("snp", 172), [sent_st[0]], 1); S1.put(O("snp", 172) + O("snd", 8), [sent_st[1]], 1)
S1.spread(cs_convert(vCS1, vCSw1, CS1, 8), P1(7, 2, 0), P1(7, 2, O('cse', 5)), 2)
S1.spread(stats_b(0) + stats_b(1), P1(7, 3, 0), P1(7, 3, 4), 2)
S1.spread(p2_reads(0), P1(7, 3, 2), P1(7, 3, 4), 0)
S1.put(P1(7, 3, 5), p2_reads(1), 0)
if O("w2t", -2) >= 2: S1.put(O("w2t", -2), [w2touch], 1)
S1.spread(p2_dma(2), P1(7, 3, 2), P2(7 - LK, 0), 1, one)

def scale_pack(acc, sc, dst, pk=False):
    o = []
    if pk:
        sel = "op_sel:[0,1] op_sel_hi:[1,1]" if sc & 1 else "op_sel_hi:[1,0]"
        for j in range(0, 16, 2): o.append(I(f"v_pk_mul_f32 {vr(acc+j,2)}, {vr(acc+j,2)}, {vr(sc&~1,2)} {sel}"))
    else:
        for j in range(16): o.append(I(f"v_mul_f32 v{acc+j}, v{acc+j}, v{sc}"))
    for j in range(8): o.append(I(f"v_cvt_pk_bf16_f32 v{dst+j}, v{acc+2*j}, v{acc+2*j+1}"))
    return o
def gelu(g, u, K):
    if O("x_nogelu", 0): return [I("s_nop 0")] * 4
    A, B, R = K + 1, K + 2, K + 3
    o = []
    for b in range(4):
        js = range(4 * b, 4 * b + 4)
        T = lambda j: vG + (j & 3) + 4 * (b & 1)
        o += [I(f"v_mul_f32 v{T(j)}, v{g+j}, v{g+j}") for j in js]
        o += [I(f"v_fma_f32 v{T(j)}, v{T(j)}, v{B}, v{A}") for j in js]
        o += [I(f"v_mul_f32 v{T(j)}, v{g+j}, v{T(j)}") for j in js]
        for j in js: o += [I(f"v_exp_f32 v{T(j)}, v{T(j)}"), I(f"v_mul_f32 v{g+j}, v{g+j}, v{u+j}")]
        o += [I(f"v_fma_f32 v{T(j)}, v{T(j)}, v{R}, v{R}") for j in js]
        o += [I(f"v_rcp_f32 v{T(j)}, v{T(j)}") for j in js]
        o += [I(f"v_mul_f32 v{g+j}, v{g+j}, v{T(j)}") for j in js]
        o += [I(f"v_cvt_pk_bf16_f32 v{u+2*b+k}, v{g+4*b+2*k}, v{g+4*b+2*k+1}") for k in range(2)]
    return o
def gelu_pk(g, u, K):
    o = []
    for b in range(2):
        js = range(8 * b, 8 * b + 8, 2)
        T = lambda j: vG + (j & 7)
        o += [I(f"v_pk_mul_f32 {vr(T(j),2)}, {vr(g+j,2)}, {vr(g+j,2)}") for j in js]
        o += [I(f"v_pk_fma_f32 {vr(T(j),2)}, {vr(T(j),2)}, {vr(K+2,2)}, {vr(K,2)} op_sel:[0,0,1] op_sel_hi:[1,0,1]") for j in js]
        o += [I(f"v_pk_mul_f32 {vr(T(j),2)}, {vr(g+j,2)}, {vr(T(j),2)}") for j in js]
        for j in js: o += [I(f"v_exp_f32 v{T(j)}, v{T(j)}"), I(f"v_exp_f32 v{T(j)+1}, v{T(j)+1}"), I(f"v_pk_mul_f32 {vr(g+j,2)}, {vr(g+j,2)}, {vr(u+j,2)}")]
        o += [I(f"v_pk_fma_f32 {vr(T(j),2)}, {vr(T(j),2)}, {vr(K+2,2)}, {vr(K+2,2)} op_sel:[0,1,1] op_sel_hi:[1,1,1]") for j in js]
        for j in js: o += [I(f"v_rcp_f32 v{T(j)}, v{T(j)}"), I(f"v_rcp_f32 v{T(j)+1}, v{T(j)+1}")]
        o += [I(f"v_pk_mul_f32 {vr(g+j,2)}, {vr(g+j,2)}, {vr(T(j),2)}") for j in js]
        o += [I(f"v_cvt_pk_bf16_f32 v{u+(j>>1)}, v{g+j}, v{g+j+1}") for j in js]
    return o
S1.put(P1(7, 3, 2), [I(f"ds_read_b64 {vr(vCSA[t],2)}, v{vCSr} offset:{CS1+C1STR*t}") for t in range(3)], 0)
if LK == 3: S1.spread(p2_reads(2), PC, PC + 3, 0)
for k in range(32 - LK):
    o = 1 if (k & 7) == 8 - LK else 0
    S1.spread(p2_reads(k + LK), P2(k, o), P2(k, o + (2 if (k & 7) in (7 - LK, 8 - LK) else 3)), 0)

fq = []
sOwn = [f"s{sPK}", f"s{sTd}"]; sOwnH = [f"s{sPH}", f"s{sTc}"]
fq += L(f"s_xor_b32 s{sTd}, s{sPK}, 4096\ns_sub_u32 s{sTc}, {HSTR}, s{sPH}")
for o in range(2):
    a = A1(0, o)
    sp = scale_pack(a, vK[o], a)
    fq += sp[0:8] + sp[16:20] + [store4(a, vKVst, sOwn[o], 0, "kv")] + sp[8:16] + sp[20:24] + [store4(a + 4, vKVst, sOwn[o], 1024, "kv")]
g = []
for o in range(2):
    gg = gelu(A1(1, o), A1(2, o), vK[o])
    g.append(gg[:68] + [store4(A1(2, o), vHst, sOwnH[o], 0, "h")] + gg[68:] + [store4(A1(2, o) + 4, vHst, sOwnH[o], 1024, "h")])
KVF = O("kvflag", 65); KVP = O("kvpoll", 110)
tbl = [[I(f"buffer_load_dwordx4 {vr(vBF+4*i,4)}, v{vL16}, {srd(STB)}, {'0' if i < 4 else 's%d' % sX} offen offset:{1024*(i&3)}")] for i in range(8)]
tbl[0] = L(f"s_movk_i32 s{sX}, 4096") + tbl[0]
strip = [I(f"ds_write_b128 v{vL16}, {ar(aSTV,4)} offset:{STRIP+1024*i}") for i in range(2)]
unp = [I(f"v_accvgpr_read_b32 v{vBF+j}, a{aMSK+j}") for j in range(32)] if O("tblm", 1) else []
fq += g[0][:KVF] + [flag(0, "kv", vFl2)] + g[0][KVF:] + strip + unp
fq += g[1][:KVP] + poll_issue(vPa) + g[1][KVP:]
FQ_END = O("fqend", 29)
S1.spread(glue(fq), PC + 3, P2(FQ_END, 0), 2)
if not O("tblm", 1): S1.spread(tbl, P2(O("tbl", 9), 0), P2(O("tbl", 9) + 5, 0), 1, one)

def w2_dma(j):
    sl = j % 12
    m0 = (sl // 3) * 24576 + (sl % 3) * 2048
    nd = ["r%d" % (j - 12)]
    post = []
    if j >= 22:
        post = L(f"s_add_u32 s{sWB}, s{sWB}, 16384\ns_and_b32 s{sWB}, s{sWB}, 0x1ffff")
        return [L(f"s_add_u32 m0, s{sM0K}, {(j-22)*2048}\ns_nop 0") + [dma(vEo, SO, f"s{sWB}", 0, "w%d" % j)],
                [dma(vEo + 1, SO, f"s{sWB}", 1024, "w%d" % j)] + post]
    if j < 22:
        base = sWE + (j >> 1) if j < 16 else sLW[(j - 16) >> 1]
        so, sr = ("s_nop 0", base) if j & 1 == 0 else (f"s_add_u32 s{sD}, s{base}, 16384", sD)
        vo, S = vDo, SD
    else:
        so, sr, vo, S = "s_nop 0", sWB, vEo, SO
        post = L(f"s_add_u32 s{sWB}, s{sWB}, 16384\ns_and_b32 s{sWB}, s{sWB}, 0x1ffff")
    return [L(f"s_add_u32 m0, s{sM0D}, {m0}\n{so}") + [dma(vo, S, f"s{sr}", 0, "w%d" % j, need=nd)],
            [dma(vo + 1, S, f"s{sr}", 1024, "w%d" % j, need=nd)] + post]
KCHK = O("kvchk", 29)
for p in range(3):
    if not O("x_now2", 0): S1.spread((p2_dma(3) if p == 0 else []) + w2_dma(3 * p) + w2_dma(3 * p + 1) + w2_dma(3 * p + 2), P2(8 * p + 8 - LK, 1), P2(8 * p + 16 - LK, 1) if p < 2 else P2(KCHK, 0), 1, one)
kvdma = []
for k in range(3):
    kvdma.append(L(f"s_add_u32 m0, s{sM0X}, {4096*(8-4*k)}\ns_nop 0") + [dma(vKVo, SWS, f"s{sKV[k]}", 0, "kvl", "sc1")])
    kvdma += [[dma(vKVo, SWS, f"s{sKV[k]}", 1024 * i, "kvl", "sc1")] for i in range(1, 4)]
if not O("x_nokv", 0):
    if not O("x_nochk", 0): S1.put(P2(KCHK, 0), [poll_check("kv", SWS, vPoll, vPa)], 1)
    S1.spread(kvdma, P2(KCHK, 1), NP2, 1, one)
S1.spread(cs_convert(vCS2, vCSw2, CS2, 16), P2(29, 0), P2(30, 0), 2)
S1.put(P2(30, 1), [I(f"ds_read_b128 {vr(vCSA[q],4)}, v{vL16} offset:{CS2+CSTR*q}") for q in range(3)], 0)
if O("x_idle", 0): S1.pre[O("x_idlep", 250)] += L("s_nop 15\n" * (O("x_idle", 0) // 64))
if OPT["stamps"] == 10:
    for g in range(O("l0", 2), min(O("l0", 2) + 30, 32)):
        k = nstamp[0]; nstamp[0] += 1
        S1.put(6 * g + 4, [I(f"{TIMER} s[88:89]")], 2)
        S1.put(6 * g + 6, [I(f"v_writelane_b32 v231, s88, {k}")], 2)
if OPT["stamps"] == 11:
    for kk in range(1, 31):
        k = nstamp[0]; nstamp[0] += 1
        S1.put(P2(kk, 0), [I(f"{TIMER} s[88:89]")], 0)
        S1.put(P2(kk + 1, 0) - 1, [I(f"v_writelane_b32 v231, s88, {k}")], 2)
if OPT["stamps"] == 9:
    for q in range(28):
        p = OPT["za"] + q * OPT["zs"]
        if p < len(S1.main): S1.pre[p] = stampq((9,)) + S1.pre[p]
E(S1.emit())
stamp((1, 4, 12))
post = w2_dma(9) + w2_dma(10) + w2_dma(11)
xres = L(f"buffer_load_dwordx4 {vr(vXres,4)}, v{vOut}, {srd(SX)}, 0 offen\nbuffer_load_dwordx4 {vr(vXres+4,4)}, v{vOut+1}, {srd(SX)}, 0 offen")
for n, t in enumerate((0, 1, 2)):
    acc = vr(ACC2 + 16 * t, 16)
    E(f"{MF} {acc}, {vr(vCSA[t],4)}, {vr(vBx[0],4)}, {acc}")
    E(post[2 * n] + post[2 * n + 1])
E(scale_pack(ACC2, vQS, vQ, pk=False))
gl = gelu_pk(ACC2 + 16, ACC2 + 32, vK[0])
HF = O("hf", 60)
gl = gl[:44] + [store4(ACC2 + 32, vHst, f"s{sH2}", 0, "h2")] + xres + gl[44:] + [store4(ACC2 + 36, vHst, f"s{sH2}", 1024, "h2")]
gl = gl[:HF] + flag(1, "h", vFl2) + gl[HF:]
G2 = O("g2l", 0)
E(gl[:len(gl) - G2]); gl = gl[len(gl) - G2:]
stamp((4, 6, 12))
E(I("s_waitcnt lgkmcnt(0)"))
E(I("s_barrier", need=["kvl"]))
stamp((1, 4, 6, 12))

units = [(i, e) for i in range(9) for e in range(2)]
def kread(u):
    i, e = units[u]
    return [I(f"ds_read_b128 {ar(aK+4*(u&1),4)}, v{vKa} offset:{i*4096+e*1024}")]
def vread(u):
    i, e = units[u]
    o = [I(f"ds_read_b64_tr_b16 {ar(aV+8*(u&1)+4*s+2*n,2)}, v{vVa} offset:{e*1024+s*512+n*256}") for s in range(2) for n in range(2)]
    if e == 1: o.append(I(f"v_add_u32 v{vVa}, v{vVa}, v{vVinc}"))
    return o
def qk(u):
    i, e = units[u]
    c = vr(vBF, 16) if i == 0 else (vr(vBD, 16) if i == 8 else "0")
    return I(f"{MF} {vr(vS[u&1],16)}, {ar(aK+4*(u&1),4)}, {vr(vQ+4*e,4)}, {c}", xr=ar(aV + 8 * (u & 1), 8) if u >= 2 else None)
def pv(u, s):
    i, e = units[u]
    o = vr(vO[e], 16)
    return I(f"{MF} {o}, {ar(aV+8*(u&1)+4*s,4)}, {vr(vP[u&1]+4*s,4)}, {'0' if (i == 0 and s == 0) else o}")
def hload(j, tt):
    post = []
    if j < 16:
        soff = sHE[j >> 1]
    else: soff = sLH[(j - 16) >> 1]
    o = " offset:1024" if j & 1 else ""
    return [I(f"buffer_load_dwordx4 {ar(aH+8*j+4*tt,4)}, v{vAo+tt}, {srd(SWS)}, s{soff} offen{o} sc1")] + post
NW2V = O("w2v", 10)
W2V = [152, 156, 192, 196, 200, 204, 4, 8, 12, 16, 20, 24, 36, 40, 44, 48, 240, 244, 248, 252]
def w2_reads(j):
    sl = j % 12
    base = (sl // 3) * 24576 + (sl % 3) * 2048
    o = []
    for ct in range(2):
        for n in range(2):
            off = base + n * 1024 + ct * 256
            reg = vW3r if off < 49152 else vW3r + 1
            off = off if off < 49152 else off - 49152
            if j >= 22: reg, off = vPa, (j - 22) * 2048 + n * 1024 + ct * 256
            dst = vr(W2V[2*j+ct]+2*n, 2) if j < NW2V else (ar(aW2+8*(j&1)+4*ct+2*n, 2) if j < 22 else ar(8*(j-22)+4*ct+2*n, 2))
            o.append(I(f"ds_read_b64_tr_b16 {dst}, v{reg} offset:{off}", need=["w%d" % j], tag="r%d" % j))
    return o
extra = {u: [] for u in range(18)}
xds = {u: [] for u in range(18)}
WS0, WS1 = O("ws0", 0), O("ws1", 6)
for j in range(NW2V):
    u = WS0 + j * (WS1 - WS0) // max(NW2V, 1)
    xds[u] += w2_reads(j)
    gd = w2_dma(j + 12)
    if j > 0: gd[0] = [x for x in gd[0][1:] if x.op != "s_nop"]
    if j + 1 < NW2V: gd[1] = gd[1] + [w2_dma(j + 13)[0][0]]
    extra[u + 1] += gd
EP, EC = O("ep", 4), O("ec", 7)
LF, LP, LC = O("lf", 2), O("lp", 11), O("lc", 14)
extra[EP].append(poll_issue(vPb))
extra[LF].append(flag(2, "h2", vFl1))
extra[EC].append(poll_check("h", SWS, vPoll, vPb) + L(f"v_and_b32 v{vPb}, -5, v{vPb}\nv_add_u32 v{vPb}, 8192, v{vPb}"))
he = [hload(j, tt) for j in range(16) for tt in range(2)]
hlate = [hload(j, tt) for j in range(16, 22) for tt in range(2)]
EE = O("ee", 16); NE = O("ne", 32)
he_late = he[NE:]; he = he[:NE]
for q in range(EE - EC):
    extra[EC + q] += he[len(he) * q // (EE - EC):len(he) * (q + 1) // (EE - EC)]
extra[LP].append(poll_issue(vPb))
extra[LC].append(poll_check("h2", SWS, vPoll, vPb) + L(f"v_add_u32 v{vPb}, 8192, v{vPb}"))
LS = max(LC, EE)
NL = O("nl", 8)
for q in range(18 - LS):
    extra[LS + q] += hlate[NL * q // (18 - LS):NL * (q + 1) // (18 - LS)]
hl_late = he_late + hlate[NL:]
assert not he_late or NL == 0

E(kread(0) + kread(1) + vread(0))
E(gl[:O("g2m", 12)])
E(qk(0))
E(gl[O("g2m", 12):])
for u in range(18):
    S, P = vS[u & 1], vP[u & 1]
    ex = [I(f"v_exp_f32 v{S+j}, v{S+j}") for j in range(16)]
    cv = [I(f"v_cvt_pk_bf16_f32 v{P+j}, v{S+2*j}, v{S+2*j+1}") for j in range(8)]
    seq = []
    xs = list(extra[u])
    X = lambda q: flat(xs[len(xs) * q // 3:len(xs) * (q + 1) // 3])
    vr_ = vread(u + 1) if u + 1 < 18 else []
    if u + 1 < 18: seq.append(qk(u + 1))
    seq += xds[u]
    if u + 2 < 18: seq += kread(u + 2)
    seq += X(0) + ex[0:6]
    if u > 0: seq.append(pv(u - 1, 0))
    seq += vr_[0:2] + X(1) + ex[6:11] + cv[0:3]
    if u > 0: seq.append(pv(u - 1, 1))
    seq += vr_[2:4] + X(2) + vr_[4:] + ex[11:16] + cv[3:8]
    if u % 2 == 0: seq = stampq((6,)) + seq
    if OPT["stamps"] == 12:
        if u > 0: seq.insert(2, I(f"v_writelane_b32 v231, s88, {nstamp[0]}")); nstamp[0] += 1
        seq.insert(3 if u > 0 else 1, I(f"{TIMER} s[88:89]"))
    E(seq)
def norm(e):
    o = vO[e]
    t = [f"v_rcp_f32 v{vT0+1}, v{o+8}", "s_nop 0"]
    if e == 0 or O("n1", 1): t += [f"v_mul_f32 v{o+j}, v{o+j}, v{vT0+1}" for j in range(8)]
    else: t += [f"v_pk_mul_f32 {vr(o+j,2)}, {vr(o+j,2)}, {vr(vT0+1,2)} op_sel_hi:[1,0]" for j in range(0, 8, 2)]
    t += [f"v_cvt_pk_bf16_f32 v{o+12+j}, v{o+2*j}, v{o+2*j+1}" for j in range(4)]
    if SENT: t += [f"v_min_u32 v{o+12}, -2, v{o+12}"]
    return t
E([pv(17, 0), pv(17, 1)])
if OPT["stamps"] == 12: E(f"v_writelane_b32 v231, s88, {nstamp[0]}"); nstamp[0] += 1
E("\n".join(norm(0)))
BLO, BHI = fx(2.0 ** -40), fx(2.0 ** 40)
E(f"""
s_mov_b32 s{sT}, {BLO}
s_mov_b32 s{sTb}, {BHI}
v_min_f32 v{vT0}, v{vO[0]+8}, v{vO[1]+8}
v_max_f32 v{vT1}, v{vO[0]+8}, v{vO[1]+8}
v_cmp_nle_f32 vcc, s{sT}, v{vT0}
v_cmp_nge_f32 s[4:5], s{sTb}, v{vT1}
v_cmp_u_f32 s[6:7], v{vO[0]+8}, v{vO[1]+8}
s_or_b64 vcc, vcc, s[4:5]
s_or_b64 vcc, vcc, s[6:7]
s_cbranch_vccnz L_truemax
""")
prog[-1].post = "\nL_att_done:"
E(store4(vO[0] + 12, vOst, "0", 0, "o"))
N1 = O("n1", 1)
if not N1:
    E("\n".join(norm(1)))
    E(store4(vO[1] + 12, vOst, "0", 1024, "o"))
    stamp((6, 12))
    E("s_barrier")
stamp((1, 5, 6, 12))

sa, sb_, sc_, sd_, se_, sf_ = sT, sTb, sTc, sTd, sX, sQ
tm = [f"""
L_truemax:
    s_waitcnt vmcnt(0) lgkmcnt(0)
    s_nop 15
    s_sub_i32 s{sa}, 8, s{sTB}
    s_max_i32 s{sa}, s{sa}, 0
    s_mov_b32 s{sb_}, 0
L_tm_head:
    s_cmp_eq_u32 s{sb_}, 0
    s_cselect_b64 vcc, -1, 0
    s_nop 4
"""]
tm += [f"    v_cndmask_b32 v{vP[1]+j}, v{vQ+4+j}, v{vQ+j}, vcc\n" for j in range(4)]
tm.append(f"""
    v_mov_b32 v{vT0}, 0xff000000
    s_mov_b32 s{sd_}, 0
L_tm_pass:
    s_mov_b32 s{sc_}, s{sa}
""")
tm += [f"    v_mov_b32 v{vS[1]+j}, 0\n" for j in range(16)]
tm.append(f"""
L_tm_blk:
    s_lshl_b32 s{se_}, s{sc_}, 12
    s_lshl_b32 s{sf_}, s{sb_}, 10
    s_add_u32 s{se_}, s{se_}, s{sf_}
    v_add_u32 v{vT1}, s{se_}, v{vKa}
    ds_read_b128 {ar(aK,4)}, v{vT1}
    s_sub_u32 s{se_}, 9, s{sc_}
    v_mul_lo_u32 v{vT2}, s{se_}, v{vVinc}
    v_sub_u32 v{vT2}, v{vVa}, v{vT2}
    v_add_u32 v{vT2}, s{sf_}, v{vT2}
    ds_read_b64_tr_b16 {ar(aV,2)}, v{vT2}
    ds_read_b64_tr_b16 {ar(aV+2,2)}, v{vT2} offset:256
    ds_read_b64_tr_b16 {ar(aV+4,2)}, v{vT2} offset:512
    ds_read_b64_tr_b16 {ar(aV+6,2)}, v{vT2} offset:768
    s_waitcnt lgkmcnt(0)
    s_cmp_eq_u32 s{sc_}, 0
    s_cbranch_scc1 L_tm_far
    s_cmp_eq_u32 s{sc_}, 8
    s_cbranch_scc1 L_tm_diag
    {MF} {vr(vS[0],16)}, {ar(aK,4)}, {vr(vP[1],4)}, 0
    s_branch L_tm_s
L_tm_far:
    {MF} {vr(vS[0],16)}, {ar(aK,4)}, {vr(vP[1],4)}, {vr(vBF,16)}
    s_branch L_tm_s
L_tm_diag:
    {MF} {vr(vS[0],16)}, {ar(aK,4)}, {vr(vP[1],4)}, {vr(vBD,16)}
L_tm_s:
    s_nop 15
    s_cmp_eq_u32 s{sd_}, 0
    s_cbranch_scc0 L_tm_exp
""")
tm += [f"    v_max_f32 v{vT0}, v{vT0}, v{vS[0]+j}\n" for j in range(16)]
tm.append("    s_branch L_tm_next\nL_tm_exp:\n")
tm += [f"    v_sub_f32 v{vS[0]+j}, v{vS[0]+j}, v{vT0}\n" for j in range(16)]
tm += [f"    v_exp_f32 v{vS[0]+j}, v{vS[0]+j}\n" for j in range(16)]
tm.append("    s_nop 1\n")
tm += [f"    v_cvt_pk_bf16_f32 v{vP[0]+j}, v{vS[0]+2*j}, v{vS[0]+2*j+1}\n" for j in range(8)]
tm.append(f"""
    s_nop 1
    {MF} {vr(vS[1],16)}, {ar(aV,4)}, {vr(vP[0],4)}, {vr(vS[1],16)}
    {MF} {vr(vS[1],16)}, {ar(aV+4,4)}, {vr(vP[0]+4,4)}, {vr(vS[1],16)}
    s_nop 15
L_tm_next:
    s_add_u32 s{sc_}, s{sc_}, 1
    s_cmp_lt_u32 s{sc_}, 9
    s_cbranch_scc1 L_tm_blk
    s_cmp_eq_u32 s{sd_}, 0
    s_cbranch_scc0 L_tm_fin
    v_mov_b32 v{vT1}, v{vT0}
    s_nop 1
    v_permlane32_swap_b32 v{vT0}, v{vT1}
    s_nop 1
    v_max_f32 v{vT0}, v{vT0}, v{vT1}
    s_mov_b32 s{sd_}, 1
    s_branch L_tm_pass
L_tm_fin:
    s_cmp_eq_u32 s{sb_}, 0
    s_cbranch_scc0 L_tm_h1
""")
tm += [f"    v_mov_b32 v{vO[0]+j}, v{vS[1]+j}\n" for j in range(16)]
tm.append(f"    s_mov_b32 s{sb_}, 1\n    s_branch L_tm_head\nL_tm_h1:\n")
tm += [f"    v_mov_b32 v{vO[1]+j}, v{vS[1]+j}\n" for j in range(16)]
tm += ["    " + x + "\n" for x in norm(0)]
tm.append(f"    s_nop 1\n    s_branch L_att_done\n")
rare.append("".join(tm))

def oload(j2, tt):
    post = L(f"s_add_u32 s{sWS}, s{sWS}, 1024\ns_and_b32 s{sWS}, s{sWS}, 0x1fff")
    return [I(f"buffer_load_dwordx4 {vr(vOF+8*j2+4*tt,4)}, v{vOo+tt}, {srd(SWS)}, s{sWS} offen sc1")] + post
OF, OP, OC = O("oflag", 6), O("opoll", 12), O("ochk", 17)
if NW2V == 0: E(w2_reads(0))
S3 = Sched()
order = [(j, ct, tt) for j in range(22) for ct in range(2) for tt in range(2)]
order += [(j, ct, 0) for j in range(22, 30) for ct in range(2)]
CTM = O("ctm", 0)
order += [(j, ct, 1) for ct in range(2) for j in range(22, 30)] if CTM else [(j, ct, 1) for j in range(22, 30) for ct in range(2)]
def w2f(j, ct): return vr(W2V[2 * j + ct], 4) if j < NW2V else (ar(aW2 + 8 * (j & 1) + 4 * ct, 4) if j < 22 else ar(8 * (j - 22) + 4 * ct, 4))
for n, (j, ct, tt) in enumerate(order):
    acc = ar(aACC + 32 * ct + 16 * tt, 16)
    bb = ar(aH + 8 * j + 4 * tt, 4) if j < 22 else vr(vOF + 8 * (j - 22) + 4 * tt, 4)
    xr = None
    if ct == 0 and tt == 0 and j >= NW2V: xr = ar(aW2 + 8 * (j & 1), 8) if j < 22 else ar(8 * (j - 22), 8)
    aa = w2f(j, ct)
    S3.pos(I(f"{MF} {acc}, {aa}, {bb}, {'0' if j == 0 else acc}", xr=xr), 6, stampq((5,)) if (n % 8 == 0) else [])
for j in range(30):
    if NW2V <= j + 1 < 23: S3.spread(w2_reads(j + 1), 4 * j, 4 * j + 2, 0)
    if 23 <= j: S3.put(88 + 2 * (j - 24) if j > 23 else 86, w2_reads(j), 0)
    if j >= NW2V and j + 12 < 22:
        S3.put(4 * j + 2, [flat(w2_dma(j + 12))], 1)
S3.pre[0] += L(f"s_lshl_b32 s{sM0K}, s{sW}, 14\ns_mul_i32 s{sT}, s{sW}, 10240\ns_sub_u32 s{sT}, s{sT}, {WB}\nv_add_u32 v{vPa}, s{sT}, v{vW3r}")
if N1:
    S3.spread(L("\n".join(norm(1))) + [store4(vO[1] + 12, vOst, "0", 1024, "o")], 0, 3, 2)
    S3.pre[4] += L("s_barrier")
if NW2V == 10: S3.spread(hl_late + flat([w2_dma(j) for j in range(22, 30)]), 4 if N1 else 0, O('hle', 44), 1, one)
else:
    S3.spread(hl_late, 4, 12, 1, one)
    S3.spread([flat(w2_dma(j)) for j in range(22, 30)], O('wos', 4), O('hle', 44), 1, one)
ol = [oload(j2, tt) for tt in range(2) for j2 in range(8)]
if not SENT:
    S3.put(4 * OF, [flag(3, "o", vFl1)], 1)
    S3.put(4 * OP, [poll_issue(vPb)], 1)
    S3.put(4 * OC, [poll_check("o", SWS, vPoll, vPb)], 1)
    S3.spread(ol, 4 * OC + 1, 4 * O("oend", 24), 1, one)
else:
    OS, OE, OK_ = O("os", 11), O("oe", 20), O("ok", 21)
    S3.spread(ol, 4 * OS, 4 * OE, 1, one)
    for tt in range(2):
        rg = [vOF + 8 * j + 4 * tt for j in range(8)]
        chk = [f"v_max3_u32 v{vT0}, v{rg[0]}, v{rg[1]}, v{rg[2]}", f"v_max3_u32 v{vT0}, v{vT0}, v{rg[3]}, v{rg[4]}", f"v_max3_u32 v{vT0}, v{vT0}, v{rg[5]}, v{rg[6]}", f"v_max_u32 v{vT0}, v{vT0}, v{rg[7]}", f"v_cmp_eq_u32 vcc, -1, v{vT0}"]
        br = L(f"s_cbranch_vccnz L_spin_o{tt}"); br[-1].post = f"\nL_ok_o{tt}:"
        S3.put(87 if tt == 0 else 103, [L("\n".join(chk)) + br], 2)
        rare.append(f"""
L_spin_o{tt}:
    s_mov_b32 s{sSPIN}, {OPT['spin']}
    s_nop 7
L_spin2_o{tt}:
""" + (f"    v_writelane_b32 v231, s{sSPIN}, {29+tt}\n" if OPT["stamps"] else "") + "".join("    " + x.text + "\n" for g in ol[8*tt:8*tt+8] for x in g) + "    s_waitcnt vmcnt(0) lgkmcnt(0)\n" + "".join("    " + x + "\n" for x in chk) + f"""    s_nop 4
    s_cbranch_vccz L_ok_o{tt}
    s_sleep 1
    s_sub_u32 s{sSPIN}, s{sSPIN}, 1
    s_cmp_lg_u32 s{sSPIN}, 0
    s_cbranch_scc1 L_spin2_o{tt}
    s_endpgm
""")
    assert 4 * OE <= 87
S3.spread(L("\n".join(f"v_xor_b32 v{vU+i}, {32*i}, v{vRw}" for i in range(4)) + f"\nv_xor_b32 v{vU+4}, 16, v{vRr}"), 4, 8, 2)
def pwrite(ct, tt): return [I(f"ds_write_b128 v{vU+i}, {ar(aACC+32*ct+16*tt+4*i,4)} offset:{tt*8192+ct*128}") for i in range(4)]
R0 = 128
def fin_reads(tt): return [I(f"ds_read_b128 {vr(R0+8*p+4*n,4)}, v{vRr if n == 0 else vU+4} offset:{p*16384+tt*8192}") for p in range(4) for n in range(2)]
def fin_math(tt, pk):
    x = R0 + 64 + 8 * tt; o = []
    for p in range(4):
        if pk: o += [I(f"v_pk_add_f32 {vr(x+j,2)}, {vr(x+j,2)}, {vr(R0+8*p+j,2)}") for j in range(0, 8, 2)]
        else: o += [I(f"v_add_f32 v{x+j}, v{x+j}, v{R0+8*p+j}") for j in range(8)]
    o += [I(f"v_cvt_pk_bf16_f32 v{R0+32+4*tt+j}, v{x+2*j}, v{x+2*j+1}") for j in range(4)]
    o += [I(f"buffer_store_dwordx4 {vr(R0+32+4*tt,4)}, v{vOut+tt}, {srd(SOUT)}, 0 offen sc1")]
    return o
S3.spread(L("\n".join(f"v_lshlrev_b32 v{R0+64+2*j}, 16, v{vXres+j}\nv_and_b32 v{R0+65+2*j}, 0xffff0000, v{vXres+j}" for j in range(8))), 4 * 12, 4 * 16, 2)
FB = O("fb", 110)
S3.spread(pwrite(0, 0) + pwrite(1, 0), 105, 108, 0)
S3.pre[FB] += L("s_waitcnt lgkmcnt(0)\ns_barrier")
S3.spread(fin_reads(0), FB, FB + 2, 0)
S3.spread(fin_math(0, False), FB + 3, 120, 2)
if CTM: S3.spread(pwrite(0, 1), 116, 120, 0)
if OPT["stamps"] == 13:
    for jj in range(29):
        k = nstamp[0]; nstamp[0] += 1
        S3.put(4 * jj + 2, [I(f"{TIMER} s[88:89]")], 0)
        S3.put(4 * jj + 4, [I(f"v_writelane_b32 v231, s88, {k}")], 2)
E(S3.emit())
stamp((1, 5))
E(pwrite(1, 1) if CTM else pwrite(0, 1) + pwrite(1, 1))
E("s_waitcnt lgkmcnt(0)\ns_barrier")
E(fin_reads(1) + fin_math(1, True))
if OPT["stamps"]:
    stamp()
    E(f"s_waitcnt vmcnt(0)")
    stamp((1, 2, 3, 4, 5, 6, 7, 9, 10, 11, 12, 13, 15))
    E(f"s_lshl_b32 s{sT}, s2, 2\ns_add_u32 s{sT}, s{sT}, s{sW}\ns_lshl_b32 s{sT}, s{sT}, 7\ns_add_u32 s{sT}, s{sT}, {ST0}\nv_lshlrev_b32 v{vT0}, 2, v{vL}\nv_lshrrev_b32 v{vT1}, 5, v{vL}\nv_lshl_add_u32 v{vT0}, v{vT1}, 28, v{vT0}")
    E(f"buffer_store_dword v231, v{vT0}, {srd(SWS)}, s{sT} offen")
if O("xf", 0):
    E("s_waitcnt vmcnt(0)"); stamp()
    if OPT["xf"] == 99: E("s_mov_b32 s90, s88")
    E(("s_sub_u32 s90, s90, s92\ns_lshr_b32 s90, s90, 3" if O("xfc", 0) else "s_sub_u32 s90, s90, s88\ns_lshl_b32 s90, s90, 2") + "\ns_add_u32 s90, s90, 4000\nL_es:\ns_memrealtime s[4:5]\ns_waitcnt lgkmcnt(0)\ns_sub_u32 s4, s4, s88\ns_cmp_lt_u32 s4, s90\ns_cbranch_scc1 L_es")
E("L_end:\ns_endpgm")

lines = finalize(prog, verbose=True)
hdr = f"""; out = x + attn(LN(x)) @ wo + (gelu(LN(x) @ w_gate) * (LN(x) @ w_up)) @ w_down      (one launch, 256 workgroups, one per CU)
; kernarg: x, wqkv, wo, (unused), w_gate, w_up, w_down, out, debug, ws
; @launch grid=(256,1,1) block=(256,1,1) lds={LDSSZ}
.amdgcn_target "amdgcn-amd-amdhsa--gfx950"
.text
.globl {KNAME}
.p2align 8
.type {KNAME},@function
{KNAME}:
"""
tail = f"""
L_table_end:
    s_endpgm
.section .rodata,"a"
.p2align 6
.amdhsa_kernel {KNAME}
  .amdhsa_next_free_vgpr 512
  .amdhsa_next_free_sgpr 102
  .amdhsa_accum_offset 256
  .amdhsa_group_segment_fixed_size 0
  .amdhsa_kernarg_size 80
  .amdhsa_user_sgpr_count 2
  .amdhsa_user_sgpr_kernarg_segment_ptr 1
  .amdhsa_system_sgpr_workgroup_id_x 1
.end_amdhsa_kernel
"""
open(sys.argv[1], "w").write(hdr + "\n".join(lines) + "\n" + "".join(rare) + tail)
```

```python
import sys, math, struct
from asmlib import I, Ins, finalize, weave, Sched

KNAME = "parallel_sum__sliding_block__glu_gated_geglu__prompt_kernel"
OPT = dict(stamps=0, spin=200000)
for a in sys.argv[2:]:
    k, v = a.split("="); OPT[k] = int(v)
def O(k, d): return OPT.get(k, d)

HUGE = 0x40000000
H0 = 4 << 20
HSTR = 88 * 1024
O0 = 10 << 20
FL0 = 12 << 20
ST0 = FL0 + (64 << 10)
SP0 = FL0 + (256 << 10)
WSSZ = 13 << 20
WB = 65536
CS1 = 0; C1STR = 520
STRIP = 49152
CS2 = 53248; CSTR = 1040
LDSSZ = 163840

STC = 4
STB = 18 + 2
sKV = [8, 9, 10]; sRHO, sWB, sWS, sAL, sWL, sMSK, sGp = 11, 12, 13, 14, 15, 16, 17
SX, SQ, SG, SU, SD, SO, SOUT, SWS, SDBG = 24, 28, 32, 36, 40, 44, 48, 52, 56
sW, sRB, sCB, sTB2, sNB, sT0, sT2, sH2, sTB = 3, 60, 61, 62, 63, 64, 65, 66, 67
sX, sQ, sG, sM0X, sM0W = 68, 69, 70, 71, 72
sT, sTb, sTc, sTd = 73, 74, 75, 76
sPK, sPH, sM0D, sD, sSPIN = 77, 78, 80, 81, 82
sPHI, sPH2, sC, sHUGE, sA = 83, 84, 85, 86, 87
sM0K = 79; sSP, sSG = 0, 1
STREG = list(range(90, 94)) + list(range(18, 24))
sHE = [18, 19, 20, 21, 22, 23, 92, 93]
sWE = 94
sLH = [64, 65, 16]; sLW = [17, 14, 15]
def srd(n): return "s[%d:%d]" % (n, n + 3)
def vr(a, n): return "v[%d:%d]" % (a, a + n - 1)
def ar(a, n): return "a[%d:%d]" % (a, a + n - 1)

vL = 0; vT0, vT1, vT2 = 1, 2, 3
vXo = 4; vQo = 8; vGo = 10; vXr = 12; vXp = 16; vWr = 20
vK = [4, 8]
vBx = [12, 16]; vG = 20
vQo2 = 28; vGo2 = 30; vW2r = 32
vSum = 40; vCS1 = 44; vCS2 = 48
vL16, vKVst, vHst, vFl2, vCSw1, vCSw2, vPoll, vInit, vCSr, vSPo, vDo = 52, 53, 54, 55, 56, 57, 58, 59, 60, 61, 62
ACC1 = 64; ACC2 = 160
vXT = 160; vSL = 176
vKa, vVa, vVinc, vOst, vKVo, vPa, vPb, vW3r = 208, 209, 210, 211, 212, 213, 214, 215
vOut, vEo, vAo, vOo, vFl1, vRw, vRr, vPs, vQS = 217, 219, 221, 223, 225, 226, 227, 228, 229
vU = 232; vCSA = [240, 244, 248]
vXres = 28
vBF = 64; vBD = 80; vS = [96, 112]; vP = [128, 136]; vQ = 144; vO = [160, 176]
vOF = 64
aSTV = 200; aMSK = 216
aX = 0; aSEL = 128; aXP = 140; aWF = 152
aH = 0; aW2 = 176; aACC = 192; aK = 192; aV = 200

prog = []; rare = []
def L(txt, **kw): return [I(ln.strip(), **kw) for ln in txt.strip().split("\n") if ln.strip() and not ln.strip().startswith(";")]
def E(x, **kw):
    if isinstance(x, str): prog.extend(L(x, **kw))
    elif isinstance(x, Ins): prog.append(x)
    else: prog.extend(x)
def flat(g): return [x for y in g for x in y]
one = lambda g: 1
nstamp = [0]; xfc = [0]
TIMER = "s_memrealtime" if O("rt", 0) else "s_memtime"
def stampq(sets=(1,)):
    if O("xf", 0):
        if 1 in sets:
            xfc[0] += 1
            if xfc[0] == OPT["xf"]: return L("s_waitcnt lgkmcnt(0)\n%s s[90:91]\ns_waitcnt lgkmcnt(0)" % ("s_memtime" if O("xfc", 0) else "s_memrealtime"))
        return []
    if OPT["stamps"] == 14 and 1 in sets:
        k = nstamp[0]; nstamp[0] += 2
        return L("s_waitcnt lgkmcnt(0)\ns_memtime s[88:89]\ns_memrealtime s[90:91]\ns_waitcnt lgkmcnt(0)\nv_writelane_b32 v231, s88, %d\nv_writelane_b32 v231, s90, %d" % (k, k + 1))
    if OPT["stamps"] in sets:
        k = nstamp[0]; nstamp[0] += 1
        return L("s_waitcnt lgkmcnt(0)\n%s s[88:89]\ns_waitcnt lgkmcnt(0)\nv_writelane_b32 v231, s88, %d" % (TIMER, k))
    return []
def stamp(sets=(1,)): E(stampq(sets))
def fx(f): return "0x%08x" % struct.unpack("<I", struct.pack("<f", f))[0]
MF = "v_mfma_f32_32x32x16_bf16"; MS = "v_mfma_f32_16x16x32_bf16"
HOME = dict(Ka=vKa, Va=vVa, Vinc=vVinc, Ost=vOst, KVo=vKVo, Pa=vPa, Pb=vPb, W3r=vW3r, W3s=vW3r+1, Out=vOut, Out1=vOut+1, Eo=vEo, Eo1=vEo+1, Ao=vAo, Ao1=vAo+1, Oo=vOo, Oo1=vOo+1, Fl1=vFl1, Rw=vRw, Rr=vRr)
def park(name, src): return f"v_mov_b32 v{HOME[name]}, {src}\n"
def dma(voff, S, soff, imm, tag, flags="", need=None):
    o = (" offset:%d" % imm) if imm else ""
    return I(f"buffer_load_dwordx4 v{voff}, {srd(S)}, {soff} offen{o} {flags} lds", tag=tag, need=need)
def glue(q):
    out = []; cur = []
    for n, x in enumerate(q):
        if isinstance(x, list):
            assert not cur
            out.append(x); continue
        cur.append(x)
        nxt = q[n + 1] if n + 1 < len(q) else None
        if x.op.startswith("s_cmp") or (nxt is not None and not isinstance(nxt, list) and nxt.op.startswith("s_cselect")): continue
        out.append(cur); cur = []
    if cur: out.append(cur)
    return out

def t0_of(dst, cb, tmp):
    tab = sum(((c >= 7) + (c >= 8) + (c >= 14) + (c >= 15) & 3) << (2 * c) for c in range(16))
    return f"""s_lshl_b32 s{tmp}, s{cb}, 1
s_lshr_b32 s{tmp}, 0x{tab:08x}, s{tmp}
s_and_b32 s{tmp}, s{tmp}, 3
s_mul_i32 s{dst}, s{cb}, 3
s_sub_u32 s{dst}, s{dst}, s{tmp}
s_min_u32 s{dst}, s{dst}, 41
"""
def mksrd(n, p, size): return f"s_mov_b32 s{n}, s{p}\ns_mov_b32 s{n+1}, s{p+1}\ns_mov_b32 s{n+2}, {size}\ns_mov_b32 s{n+3}, 0x20000\n"
E(f"""
s_cmp_ge_u32 s2, 256
s_cbranch_scc1 L_end
s_load_dwordx2 s[{SX}:{SX+1}], s[0:1], 0
s_load_dwordx2 s[{SQ}:{SQ+1}], s[0:1], 8
s_load_dwordx2 s[{SG}:{SG+1}], s[0:1], 32
s_load_dwordx2 s[{SU}:{SU+1}], s[0:1], 40
""")
if OPT["stamps"]: E(TIMER + " s[88:89]")
if OPT["stamps"] == 14: E("s_memrealtime s[90:91]")
if O("xf", 0): E("s_memrealtime s[88:89]\ns_memtime s[92:93]")
E(f"""
s_getpc_b64 s[40:41]
s_lshr_b32 s{sTb}, s2, 3
s_lshl_b32 s44, s{sTb}, 10
s_add_u32 s42, s44, 1024
s_mov_b32 s43, 0x20000
v_lshlrev_b32 v{vT1}, 7, v0
buffer_load_dword v255, v{vT1}, s[40:43], s44 offen
v_lshrrev_b32 v{vT0}, 6, v0
v_and_b32 v{vL}, 63, v0
v_readfirstlane_b32 s{sW}, v{vT0}
s_bfe_u32 s{sT}, s2, 0x10002
s_and_b32 s{sTd}, s{sTb}, 7
s_lshl3_add_u32 s{sRB}, s{sT}, s{sTd}
s_and_b32 s{sT}, s2, 3
s_lshr_b32 s{sTd}, s2, 6
s_lshl2_add_u32 s{sCB}, s{sT}, s{sTd}
s_add_u32 s{sC}, s{sCB}, s{sRB}
s_and_b32 s{sC}, s{sC}, 3
s_lshl_b32 s{sX}, s{sC}, 8
s_mul_i32 s{sQ}, s{sC}, {2*196608}
s_mul_i32 s{sG}, s{sC}, {2*176128}
s_lshl2_add_u32 s{sTB}, s{sRB}, s{sW}
s_lshl_b32 s{sT}, s{sTB}, 15
s_lshl_b32 s{sM0X}, s{sW}, 12
s_lshl_b32 s{sM0W}, s{sW}, 11
s_bitset1_b32 s{sM0W}, 16
v_lshrrev_b32 v{vT0}, 3, v{vL}
v_lshl_add_u32 v{vT0}, v{vT0}, 10, s{sT}
v_and_b32 v{vT1}, 7, v{vL}
v_lshrrev_b32 v{vT2}, 4, v{vL}
v_xor_b32 v{vT1}, v{vT1}, v{vT2}
v_lshl_add_u32 v{vXo}, v{vT1}, 4, v{vT0}
v_xor_b32 v{vXo+1}, 64, v{vXo}
v_add_u32 v{vXo+1}, {7*1024}, v{vXo+1}
v_add_u32 v{vXo+2}, {14*1024}, v{vXo}
v_add_u32 v{vXo+3}, {14*1024}, v{vXo+1}
{t0_of(sT0, sCB, sT)}v_lshrrev_b32 v{vT0}, 5, v{vL}
v_bfe_u32 v{vT1}, v{vL}, 2, 2
v_lshl_add_u32 v{vT0}, v{vT0}, 2, v{vT1}
v_and_b32 v{vT1}, 16, v{vL}
v_and_b32 v{vT2}, 3, v{vL}
v_lshl_add_u32 v{vT1}, v{vT2}, 2, v{vT1}
v_lshlrev_b32 v{vT1}, 2, v{vT1}
v_lshl_add_u32 v{vDo}, v{vT0}, 10, v{vT1}
s_lshl_b32 s{sT}, s{sW}, 4
v_add_u32 v{vT0}, s{sT}, v{vT0}
s_and_b32 s{sT}, s{sCB}, 1
s_lshr_b32 s{sTd}, s{sCB}, 1
s_lshl3_add_u32 s{sT}, s{sT}, s{sTd}
s_add_u32 s{sT}, s{sT}, 8
s_lshl_b32 s{sT}, s{sT}, 7
s_movk_i32 s{sTd}, 3072
v_mad_u32_u24 v{vQo}, v{vT0}, s{sTd}, v{vT1}
v_add_u32 v{vQo}, s{sT}, v{vQo}
v_add_u32 v{vQo+1}, {8*3072-1024}, v{vQo}
s_lshl_b32 s{sT}, s{sT0}, 6
s_movk_i32 s{sTd}, 2752
v_mad_u32_u24 v{vGo}, v{vT0}, s{sTd}, v{vT1}
v_add_u32 v{vGo}, s{sT}, v{vGo}
v_add_u32 v{vGo+1}, {8*2752-1024}, v{vGo}
s_mov_b32 s{SX+2}, 2097152
s_mov_b32 s{SX+3}, 0x20000
s_mov_b32 s{SQ+2}, 1572864
s_mov_b32 s{SQ+3}, s{SX+3}
s_mov_b32 s{SG+2}, 1409024
s_mov_b32 s{SG+3}, s{SX+3}
s_mov_b32 s{SU+2}, s{SG+2}
s_mov_b32 s{SU+3}, s{SX+3}
s_mov_b32 m0, s{sM0X}
""")
if OPT["stamps"] == 17: E("s_waitcnt lgkmcnt(0)\n" + TIMER + " s[94:95]")
NI = O("ni", 8)
g0 = [[dma(vXo + i, SX, f"s{sX}", 1024 * i, "c0")] for i in range(4)]
g0[3].append(I(f"s_mov_b32 m0, s{sM0W}"))
g0 += [[dma(vQo, SQ, f"s{sQ}", 0, "c0")], [dma(vQo + 1, SQ, f"s{sQ}", 1024, "c0"), I(f"s_add_u32 m0, s{sM0W}, 8192")]]
g0 += [[dma(vGo, SG, f"s{sG}", 0, "c0")], [dma(vGo + 1, SG, f"s{sG}", 1024, "c0"), I(f"s_add_u32 m0, s{sM0W}, 16384")]]
g0 += [[dma(vGo, SU, f"s{sG}", 0, "c0")], [dma(vGo + 1, SU, f"s{sG}", 1024, "c0")]]
E(flat(g0[:NI])); g0 = g0[NI:]
E("""
s_load_dwordx2 s[8:9], s[0:1], 16
s_load_dwordx4 s[16:19], s[0:1], 48
s_load_dwordx4 s[20:23], s[0:1], 64
""")
if OPT["stamps"]:
    E("v_mov_b32 v231, -1\nv_writelane_b32 v231, s88, 0"); nstamp[0] = 1
    if OPT["stamps"] == 14: E("v_writelane_b32 v231, s90, 1"); nstamp[0] = 2
if OPT["stamps"] == 17:
    E(TIMER + " s[96:97]\ns_waitcnt lgkmcnt(0)\nv_writelane_b32 v231, s94, 1\nv_writelane_b32 v231, s96, 2"); nstamp[0] = 3
def table(order): return sum(c << (4 * i) for i, c in enumerate(order))
E(f"""
s_and_b32 s{sT}, s2, 7
s_and_b32 s{sTd}, s{sTb}, 3
s_lshl2_add_u32 s{sTB2}, s{sT}, s{sTd}
s_lshr_b32 s{sNB}, s{sTb}, 2
s_mov_b32 s{sPHI}, 0x76543210
""")
for r in range(1, 4): E(f"s_cmp_eq_u32 s{sC}, {r}\ns_cselect_b32 s{sPHI}, 0x{table([(c + 2 * r) & 7 for c in range(8)]):08x}, s{sPHI}")

def p1_dma(c):
    sl = c & 3; t = "c%d" % c
    g = []
    g.append(L(f"s_bfe_u32 s{sC}, s{sPHI}, {0x30000 + 4*c}\ns_add_u32 m0, s{sM0X}, {sl*16384}\ns_lshl_b32 s{sX}, s{sC}, 7") + [dma(vXo, SX, f"s{sX}", 0, t)])
    g += [[dma(vXo + i, SX, f"s{sX}", 1024 * i, t)] for i in range(1, 4)]
    g.append(L(f"s_add_u32 m0, s{sM0W}, {sl*24576}\ns_mul_i32 s{sQ}, s{sC}, 196608") + [dma(vQo, SQ, f"s{sQ}", 0, t)])
    g.append([dma(vQo + 1, SQ, f"s{sQ}", 1024, t), I(f"s_add_u32 m0, s{sM0W}, {sl*24576+8192}")])
    g.append(L(f"s_mul_i32 s{sG}, s{sC}, 176128") + [dma(vGo, SG, f"s{sG}", 0, t)])
    g.append([dma(vGo + 1, SG, f"s{sG}", 1024, t), I(f"s_add_u32 m0, s{sM0W}, {sl*24576+16384}")])
    g.append([dma(vGo, SU, f"s{sG}", 0, t)])
    g.append([dma(vGo + 1, SU, f"s{sG}", 1024, t)])
    return g
def p2_dma(p):
    t = "p%d" % p
    g = []
    g.append(L(f"s_bfe_u32 s{sC}, s{sPH2}, {0x30000 + 8*p}\ns_add_u32 m0, s{sM0W}, {p*24576}\ns_mul_i32 s{sQ}, s{sC}, 196608") + [dma(vQo2, SQ, f"s{sQ}", 0, t)])
    g.append([dma(vQo2 + 1, SQ, f"s{sQ}", 1024, t), I(f"s_add_u32 m0, s{sM0W}, {p*24576+8192}")])
    g.append(L(f"s_mul_i32 s{sG}, s{sC}, 176128") + [dma(vGo2, SG, f"s{sG}", 0, t)])
    g.append([dma(vGo2 + 1, SG, f"s{sG}", 1024, t), I(f"s_add_u32 m0, s{sM0W}, {p*24576+16384}")])
    g.append([dma(vGo2, SU, f"s{sG}", 0, t)])
    g.append([dma(vGo2 + 1, SU, f"s{sG}", 1024, t)])
    return g

E(mksrd(SWS, 22, WSSZ) + mksrd(SDBG, 20, 256) + f"""
s_mov_b32 s{sHUGE}, {HUGE}
v_lshlrev_b32 v{vL16}, 4, v{vL}
s_cmp_eq_u32 s2, 0
s_cbranch_scc1 L_zero
""")
prog[-1].post = "\nL_zero_done:"
rare.append(f"""
L_zero:
    s_mul_i32 s{sT}, s{sW}, 10240
    s_add_u32 s{sT}, s{sT}, {FL0}
    s_add_u32 s{sTb}, s{sT}, 4096
    s_add_u32 s{sTc}, s{sT}, 8192
    v_mov_b32 v{vXT}, 0
    v_mov_b32 v{vXT+1}, 0
    v_mov_b32 v{vXT+2}, 0
    v_mov_b32 v{vXT+3}, 0
""" + "".join(f"    buffer_store_dwordx4 {vr(vXT,4)}, v{vL16}, {srd(SWS)}, s{[sT, sTb, sTc][i>>2]} offen offset:{1024*(i&3)} sc1\n" for i in range(10)) + "    s_branch L_zero_done\n")
stamp((2,))
init_mark = len(prog)
E(mksrd(SD, 16, 1409024) + mksrd(SO, 8, 524288) + mksrd(SOUT, 18, 2097152))
ann = L(f"""
s_cmp_lg_u32 s2, 0
s_cselect_b32 s{sT}, s{sHUGE}, 0
s_lshl_b32 s{sTb}, s{sW}, 2
s_add_u32 s{sT}, s{sT}, s{sTb}
v_mov_b32 v{vT0}, 1
v_lshlrev_b32 v{vT1}, 8, v{vL}
""") + [I(f"buffer_store_dword v{vT0}, v{vT1}, {srd(SDBG)}, s{sT} offen sc1", need=["c0"])]
E(f"""
s_lshr_b32 s{sPH2}, s{sW}, 1
s_lshl_b32 s{sPH2}, s{sPH2}, 2
s_lshr_b32 s{sPH2}, s{sPHI}, s{sPH2}
s_lshr_b32 s{sT}, 0xe0c0, s{sCB}
s_and_b32 s{sT}, s{sT}, 1
s_cselect_b32 s{sMSK}, s{sHUGE}, 0
s_add_u32 s{sT2}, s{sT0}, 2
""")
if O("w2m", 0) == 0:
    w2touch = L(f"""s_mul_i32 s{sT}, s2, 3
s_add_u32 s{sT}, s{sT}, s{sW}
s_mov_b32 s{STC+3}, 0x20000
s_cmp_eq_u32 s{sW}, 3
s_cselect_b32 s{sT}, s2, s{sT}
s_cselect_b32 s{STC}, s{SO}, s{SD}
s_cselect_b32 s{STC+1}, s{SO+1}, s{SD+1}
s_cselect_b32 s{STC+2}, s{SO+2}, s{SD+2}
s_lshl_b32 s{sT}, s{sT}, 11
v_and_b32 v{vT0}, 15, v{vL}
v_lshlrev_b32 v{vT0}, 7, v{vT0}
v_lshrrev_b32 v{vT1}, 4, v{vL}
v_lshl_add_u32 v{vT0}, v{vT1}, 28, v{vT0}
buffer_load_dword v{vPoll}, v{vT0}, {srd(STC)}, s{sT} offen sc1""")
else:
    w2touch = L(f"""s_lshr_b32 s{sTb}, s2, 3
s_lshl_b32 s{sTb}, s{sTb}, 2
s_and_b32 s{sT}, s2, 3
s_add_u32 s{sTb}, s{sTb}, s{sT}
s_mul_i32 s{sT}, s{sTb}, 3
s_add_u32 s{sT}, s{sT}, s{sW}
s_mov_b32 s{STC+3}, 0x20000
s_cmp_eq_u32 s{sW}, 3
s_cselect_b32 s{sT}, s{sTb}, s{sT}
s_cselect_b32 s{STC}, s{SO}, s{SD}
s_cselect_b32 s{STC+1}, s{SO+1}, s{SD+1}
s_cselect_b32 s{STC+2}, s{SO+2}, s{SD+2}
s_lshl_b32 s{sT}, s{sT}, 12
s_and_b32 s{sTb}, s2, 4
s_lshl_b32 s{sTb}, s{sTb}, 27
s_add_u32 s{sT}, s{sT}, s{sTb}
v_and_b32 v{vT0}, 31, v{vL}
v_lshlrev_b32 v{vT0}, 7, v{vT0}
v_lshrrev_b32 v{vT1}, 5, v{vL}
v_lshl_add_u32 v{vT0}, v{vT1}, 28, v{vT0}
buffer_load_dword v{vPoll}, v{vT0}, {srd(STC)}, s{sT} offen sc1""")
if O("xt", 0):
    E(f"""s_lshr_b32 s{sTb}, s2, 3
s_lshl_b32 s{sTb}, s{sTb}, 2
s_and_b32 s{sT}, s2, 3
s_add_u32 s{sTb}, s{sTb}, s{sT}
s_lshl_b32 s{sTb}, s{sTb}, 2
s_add_u32 s{sT}, s{sTb}, s{sW}
s_lshl_b32 s{sT}, s{sT}, 11
s_add_u32 s{sT}, s{sT}, 0x100000
s_and_b32 s{sTb}, s2, 4
s_lshl_b32 s{sTb}, s{sTb}, 27
s_add_u32 s{sT}, s{sT}, s{sTb}
v_and_b32 v{vT0}, 15, v{vL}
v_lshlrev_b32 v{vT0}, 7, v{vT0}
v_lshrrev_b32 v{vT1}, 4, v{vL}
v_lshl_add_u32 v{vT0}, v{vT1}, 28, v{vT0}
buffer_load_dword v254, v{vT0}, {srd(SX)}, s{sT} offen sc1""")
E(f"""
v_and_b32 v{vT0}, 31, v{vL}
v_lshrrev_b32 v{vT1}, 5, v{vL}
v_bfe_u32 v{vT2}, v{vL}, 1, 3
v_xor_b32 v{vT2}, v{vT2}, v{vT1}
v_lshlrev_b32 v{vT0}, 7, v{vT0}
v_lshl_add_u32 v{vT0}, v{vT2}, 4, v{vT0}
v_add_u32 v{vT0}, s{sM0X}, v{vT0}
""")
for s in range(4):
    E(f"s_xor_b32 s{sT}, s{sW}, {s}\ns_lshl_b32 s{sT}, s{sT}, 5\nv_xor_b32 v{vXr+s}, s{sT}, v{vT0}\nv_xor_b32 v{vXp+s}, 4096, v{vXr+s}")
E(f"""
v_bfe_u32 v{vT2}, v{vL}, 2, 2
v_lshlrev_b32 v{vT2}, 6, v{vT2}
v_bfe_u32 v{vT0}, v{vL}, 4, 1
v_lshl_add_u32 v{vT2}, v{vT0}, 5, v{vT2}
v_and_b32 v{vT0}, 3, v{vL}
v_lshl_add_u32 v{vT2}, v{vT0}, 3, v{vT2}
v_lshl_add_u32 v{vT0}, v{vT1}, 10, v{vT2}
v_lshl_add_u32 v{vT2}, v{vT1}, 9, v{vT2}
s_and_b32 s{sTc}, s{sW}, 1
s_lshl_b32 s{sTc}, s{sTc}, 8
s_add_u32 s{sTc}, s{sTc}, {WB}
s_mul_i32 s{sT}, s{sW}, 6144
s_add_u32 s{sM0D}, s{sT}, {WB}
v_add_u32 v{vT1}, s{sM0D}, v{vT2}
{park("W3r", f"v{vT1}")}v_add_u32 v{vT1}, 49152, v{vT1}
{park("W3s", f"v{vT1}")}
""")
for s in range(4):
    E(f"""
s_xor_b32 s{sT}, s{sW}, {s}
s_lshl_b32 s{sTb}, s{sT}, 11
s_add_u32 s{sTb}, s{sTb}, s{sTc}
v_add_u32 v{vWr+2*s}, s{sTb}, v{vT0}
v_add_u32 v{vWr+2*s+1}, 49152, v{vWr+2*s}
s_lshl_b32 s{sTb}, s{sT}, 10
s_add_u32 s{sTb}, s{sTb}, {WB}
v_add_u32 v{vW2r+2*s}, s{sTb}, v{vT2}
v_add_u32 v{vW2r+2*s+1}, 49152, v{vW2r+2*s}
""")
E(f"""
v_lshrrev_b32 v{vT0}, 2, v{vL}
s_and_b32 s{sT}, s{sW}, 1
s_lshl_b32 s{sT}, s{sT}, 5
v_add_u32 v{vT0}, s{sT}, v{vT0}
v_and_b32 v{vT1}, 3, v{vL}
v_lshlrev_b32 v{vT1}, 4, v{vT1}
s_lshl_b32 s{sT}, s{sCB}, 6
v_mul_u32_u24 v{vQo2}, 3072, v{vT0}
v_add3_u32 v{vQo2}, v{vQo2}, v{vT1}, s{sT}
v_add_u32 v{vQo2+1}, {16*3072-1024}, v{vQo2}
s_lshl_b32 s{sT}, s{sT2}, 6
v_mul_u32_u24 v{vGo2}, 2752, v{vT0}
v_add3_u32 v{vGo2}, v{vGo2}, v{vT1}, s{sT}
v_add_u32 v{vGo2}, s{sMSK}, v{vGo2}
v_add_u32 v{vGo2+1}, {16*2752-1024}, v{vGo2}
v_and_b32 v{vT0}, 15, v{vL}
v_bfe_u32 v{vT1}, v{vL}, 4, 1
v_sub_u32 v{vT0}, v{vT0}, v{vT1}
v_mov_b32 v{vT1}, 0x3f803f80
""")
for t in range(3):
    E(f"v_cmp_eq_u32 vcc, {2*t}, v{vT0}\nv_cndmask_b32 v{vT2}, 0, v{vT1}, vcc")
    E("\n".join(f"v_accvgpr_write_b32 a{aSEL+4*t+j}, v{vT2}" for j in range(4)))
E(f"""
s_lshl_b32 s{sT}, s{sRB}, 2
s_sub_i32 s{sT}, 8, s{sT}
v_and_b32 v{vT0}, 7, v{vL}
v_lshlrev_b32 v{vT0}, 1, v{vT0}
v_mov_b32 v{vT1}, 0x3f80
v_cmp_le_i32 vcc, s{sT}, v{vT0}
v_cndmask_b32 v{vT2}, 0, v{vT1}, vcc
v_accvgpr_write_b32 a{aSTV}, v{vT2}
v_accvgpr_write_b32 a{aSTV+1}, 0
v_add_u32 v{vT0}, 1, v{vT0}
v_cmp_le_i32 vcc, s{sT}, v{vT0}
v_cndmask_b32 v{vT2}, 0, v{vT1}, vcc
v_cmp_ne_u32 vcc, 15, v{vT0}
v_cndmask_b32 v{vT2}, 0, v{vT2}, vcc
v_accvgpr_write_b32 a{aSTV+2}, v{vT2}
v_accvgpr_write_b32 a{aSTV+3}, 0
v_lshlrev_b32 v{vT0}, 3, v{vL}
s_and_b32 s{sTc}, s{sW}, 1
s_lshr_b32 s{sT}, s{sTB}, 1
s_lshl_b32 s{sTb}, s{sT}, 13
s_add_u32 s{sTb}, s{sTb}, {SP0}
s_lshl_b32 s{sTd}, s{sTc}, 8
v_xor_b32 v{vT1}, s{sTd}, v{vT0}
v_add_u32 v{vSPo}, s{sTb}, v{vT1}
s_lshl_b32 s{sSP}, s{sCB}, 9
s_and_b32 s{sSG}, s{sCB}, 12
s_lshl_b32 s{sSG}, s{sSG}, 9
s_lshl_b32 s{sT}, s{sT}, 8
s_and_b32 s{sTb}, s{sCB}, 12
s_lshl_b32 s{sTb}, s{sTb}, 3
s_add_u32 s{sT}, s{sT}, s{sTb}
s_add_u32 s{sT}, s{sT}, {FL0+4*8192}
v_bfe_u32 v{vT1}, v{vL}, 2, 1
v_and_b32 v{vT2}, 3, v{vL}
v_lshlrev_b32 v{vT2}, 3, v{vT2}
v_lshl_add_u32 v{vT1}, v{vT1}, 7, v{vT2}
v_add_u32 v{vPs}, s{sT}, v{vT1}
s_and_b32 s{sTc}, s{sW}, 1
s_mul_i32 s{sT}, s{sTc}, {8*C1STR}
v_add_u32 v{vCSr}, s{sT}, v{vT0}
s_lshr_b32 s{sTb}, s{sW}, 1
s_lshl_b32 s{sTd}, s{sTb}, 8
s_add_u32 s{sT}, s{sT}, s{sTd}
v_bfe_u32 v{vT0}, v{vL}, 1, 3
v_and_b32 v{vT1}, 1, v{vL}
v_lshrrev_b32 v{vT2}, 4, v{vL}
v_lshl_add_u32 v{vT1}, v{vT1}, 2, v{vT2}
v_mul_u32_u24 v{vT2}, {C1STR}, v{vT0}
v_lshl_add_u32 v{vT2}, v{vT1}, 5, v{vT2}
v_add_u32 v{vCSw1}, s{sT}, v{vT2}
s_lshl_b32 s{sT}, s{sTb}, 9
s_lshl_b32 s{sTd}, s{sTc}, 3
s_add_u32 s{sT}, s{sT}, s{sTd}
v_mul_u32_u24 v{vT2}, {CSTR}, v{vT0}
v_lshl_add_u32 v{vT2}, v{vT1}, 6, v{vT2}
v_add_u32 v{vCSw2}, s{sT}, v{vT2}
v_and_b32 v{vT0}, 31, v{vL}
v_lshrrev_b32 v{vT1}, 5, v{vL}
v_lshl_add_u32 v{vT0}, v{vT0}, 1, v{vT1}
v_lshlrev_b32 v{vT0}, 4, v{vT0}
v_add_u32 v{vT0}, 2048, v{vT0}
s_and_b32 s{sT}, s{sCB}, 1
s_cmp_eq_u32 s{sT}, 1
s_cselect_b64 vcc, -1, 0
v_cndmask_b32 v{vKVst}, v{vL16}, v{vT0}, vcc
s_and_b32 s{sT}, s{sCB}, 14
s_add_u32 s{sT}, s{sT}, s{sTc}
s_lshl_b32 s{sT}, s{sT}, 18
s_and_b32 s{sTb}, s{sTB}, -2
s_lshl_b32 s{sTd}, s{sTb}, 12
s_add_u32 s{sT}, s{sT}, s{sTd}
v_add_u32 v{vKVst}, s{sT}, v{vKVst}
s_lshl_b32 s{sPK}, s{sTc}, 12
s_mul_i32 s{sT}, s{sTb}, {HSTR}
s_add_u32 s{sT}, s{sT}, {H0}
s_lshl_b32 s{sTd}, s{sCB}, 12
s_add_u32 s{sT}, s{sT}, s{sTd}
s_lshl_b32 s{sTd}, s{sTc}, 11
s_add_u32 s{sT}, s{sT}, s{sTd}
v_add_u32 v{vHst}, s{sT}, v{vL16}
s_mul_i32 s{sPH}, s{sTc}, {HSTR}
s_lshr_b32 s{sT}, s{sCB}, 3
s_lshl_b32 s{sT}, s{sT}, 1
s_sub_u32 s{sT}, s{sCB}, s{sT}
s_lshl_b32 s{sT}, s{sT}, 11
s_add_u32 s{sT}, s{sT}, 65536
s_add_u32 s{sT}, s{sT}, s{sPH}
s_lshl_b32 s{sTd}, s{sCB}, 12
s_sub_u32 s{sT}, s{sT}, s{sTd}
s_lshl_b32 s{sTd}, s{sTc}, 11
s_sub_u32 s{sT}, s{sT}, s{sTd}
s_and_b32 s{sH2}, s{sCB}, 7
s_cmp_lt_u32 s{sH2}, 6
s_cselect_b32 s{sH2}, s{sT}, s{sHUGE}
s_lshl_b32 s{sT}, s{sTb}, 7
s_lshl_b32 s{sTd}, s{sCB}, 3
s_add_u32 s{sTd}, s{sTd}, {FL0}
s_add_u32 s{sT}, s{sT}, s{sTd}
s_lshl_b32 s{sTb}, s{sTc}, 2
s_add_u32 s{sT}, s{sT}, s{sTb}
v_lshlrev_b32 v{vT0}, 7, v{vL}
v_add_u32 v{vT0}, s{sT}, v{vT0}
v_mov_b32 v{vT1}, s{sHUGE}
v_cmp_gt_u32 vcc, 2, v{vL}
v_cndmask_b32 v{vFl2}, v{vT1}, v{vT0}, vcc
s_lshl_b32 s{sT}, s{sTB}, 7
s_add_u32 s{sT}, s{sT}, s{sTd}
v_mov_b32 v{vT0}, s{sT}
v_cmp_eq_u32 vcc, 0, v{vL}
v_cndmask_b32 v{vT0}, v{vT1}, v{vT0}, vcc
{park("Fl1", f"v{vT0}")}
v_mov_b32 v{vSum}, 0
v_mov_b32 v{vSum+1}, 0
v_mov_b32 v{vSum+2}, 0
v_mov_b32 v{vSum+3}, 0
v_mov_b32 v{vCSA[0]+2}, 0
v_mov_b32 v{vCSA[0]+3}, 0
v_mov_b32 v{vCSA[1]+2}, 0
v_mov_b32 v{vCSA[1]+3}, 0
v_mov_b32 v{vCSA[2]+2}, 0
v_mov_b32 v{vCSA[2]+3}, 0
""")
late_mark = len(prog)
saved = (vT0, vT1, vT2, vU, sT, sTb, sTc, sTd)
if O("defer", 1): vT0, vT1, vT2, vU, sT, sTb, sTc, sTd = 192, 193, 194, 196, 4, 5, 6, 7
E(f"""
s_lshl_b32 s{sT}, s{sNB}, 7
v_add_u32 v{vDo}, s{sT}, v{vDo}
v_add_u32 v{vDo+1}, {7*1024}, v{vDo}
s_lshl_b32 s{sT}, s{sW}, 17
v_add_u32 v{vT0}, s{sT}, v{vDo}
{park("Eo", f"v{vT0}")}v_add_u32 v{vT0}, {7*1024}, v{vT0}
{park("Eo1", f"v{vT0}")}
s_mul_i32 s{sT}, s{sTB2}, {2*HSTR}
s_lshl_b32 s{sTb}, s{sW}, 14
s_add_u32 s{sT}, s{sT}, s{sTb}
s_add_u32 s{sT}, s{sT}, {H0}
v_add_u32 v{vT0}, s{sT}, v{vL16}
{park("Ao", f"v{vT0}")}v_add_u32 v{vT0}, {HSTR}, v{vT0}
{park("Ao1", f"v{vT0}")}
s_lshl_b32 s{sT}, s{sTB2}, 16
s_lshl_b32 s{sTb}, s{sW}, 13
s_add_u32 s{sT}, s{sT}, s{sTb}
s_add_u32 s{sT}, s{sT}, {O0}
v_add_u32 v{vT0}, s{sT}, v{vL16}
{park("Oo", f"v{vT0}")}v_add_u32 v{vT0}, 32768, v{vT0}
{park("Oo1", f"v{vT0}")}
s_lshl_b32 s{sRHO}, s{sTB2}, 1
s_add_u32 s{sRHO}, s{sRHO}, s{sNB}
s_and_b32 s{sRHO}, s{sRHO}, {7 if O("rot", 1) else 0}
s_lshl_b32 s{sWB}, s{sW}, 2
""")
for q in range(8):
    E(f"""s_add_u32 s{sT}, s{sRHO}, {q}
s_bfe_u32 s{sTb}, s{sT}, 0x20001
s_add_u32 s{sTb}, s{sTb}, s{sWB}
{t0_of(sTc, sTb, sTd)}s_and_b32 s{sT}, s{sT}, 1
s_add_u32 s{sT}, s{sT}, s{sTc}
s_lshl_b32 s{sWE+q}, s{sT}, 15
s_add_u32 s{sT}, s{sRHO}, {q}
s_and_b32 s{sT}, s{sT}, 7
s_lshl_b32 s{sHE[q]}, s{sT}, 11""")
E(f"""s_add_u32 s{sT}, s{sTB2}, s{sNB}
s_mul_i32 s{sTb}, s{sT}, 43
s_lshr_b32 s{sTb}, s{sTb}, 7
s_mul_i32 s{sTb}, s{sTb}, 3
s_sub_u32 s{sT}, s{sT}, s{sTb}
s_and_b32 s{sT}, s{sT}, {3 if O("rot", 1) else 0}
s_mul_i32 s{sTc}, s{sW}, 10240
s_sub_u32 s{sTc}, 65536, s{sTc}
s_mul_i32 s{sTd}, s{sW}, 9
s_lshr_b32 s{sTb}, s{sW}, 1
s_lshl_b32 s{sTb}, s{sTb}, 2
s_add_u32 s{sTd}, s{sTd}, s{sTb}
s_add_u32 s{sTd}, s{sTd}, 2
s_lshl_b32 s{sTd}, s{sTd}, 15""")
for q in range(3):
    E(f"""s_lshl_b32 s{sTb}, s{sT}, 11
s_add_u32 s{sLH[q]}, s{sTb}, s{sTc}
s_mul_i32 s{sTb}, s{sT}, 98304
s_add_u32 s{sLW[q]}, s{sTb}, s{sTd}
s_add_u32 s{sT}, s{sT}, 1
s_cmp_eq_u32 s{sT}, 3
s_cselect_b32 s{sT}, 0, s{sT}""")
E(f"""
s_lshl_b32 s{sA}, s{sRHO}, 11
s_lshl_b32 s{sWB}, s{sRHO}, 14
s_lshl_b32 s{sWS}, s{sRHO}, 10
v_lshrrev_b32 v{vT0}, 3, v{vL}
v_and_b32 v{vT1}, 7, v{vL}
s_lshl_b32 s{sT}, s{sTB2}, 6
s_lshl_b32 s{sTb}, s{sW}, 3
s_add_u32 s{sT}, s{sT}, s{sTb}
s_lshl_b32 s{sT}, s{sT}, 10
s_lshl_b32 s{sTb}, s{sNB}, 7
s_add_u32 s{sT}, s{sT}, s{sTb}
v_lshlrev_b32 v{vT2}, 10, v{vT0}
v_lshl_add_u32 v{vT2}, v{vT1}, 4, v{vT2}
v_add_u32 v{vT2}, s{sT}, v{vT2}
{park("Out", f"v{vT2}")}v_add_u32 v{vT2}, 32768, v{vT2}
{park("Out1", f"v{vT2}")}v_lshlrev_b32 v{vT1}, 1, v{vT1}
v_xor_b32 v{vT1}, v{vT1}, v{vT0}
v_lshlrev_b32 v{vT0}, 8, v{vT0}
v_lshl_add_u32 v{vT0}, v{vT1}, 4, v{vT0}
s_lshl_b32 s{sT}, s{sW}, 11
v_add_u32 v{vT0}, s{sT}, v{vT0}
{park("Rr", f"v{vT0}")}v_and_b32 v{vT0}, 31, v{vL}
v_lshrrev_b32 v{vT1}, 5, v{vL}
v_and_b32 v{vT2}, 7, v{vL}
v_xor_b32 v{vT1}, v{vT1}, v{vT2}
v_lshlrev_b32 v{vT0}, 8, v{vT0}
v_lshl_add_u32 v{vT0}, v{vT1}, 4, v{vT0}
s_lshl_b32 s{sT}, s{sW}, 14
v_add_u32 v{vT0}, s{sT}, v{vT0}
{park("Rw", f"v{vT0}")}
v_add_u32 v{vT0}, s{sM0X}, v{vL16}
{park("Ka", f"v{vT0}")}v_lshrrev_b32 v{vT1}, 5, v{vL}
v_bfe_u32 v{vT2}, v{vL}, 2, 2
v_lshl_add_u32 v{vT2}, v{vT1}, 2, v{vT2}
v_lshlrev_b32 v{vT2}, 5, v{vT2}
v_and_b32 v{vT0}, 1, v{vL}
v_lshl_add_u32 v{vT2}, v{vT0}, 4, v{vT2}
v_bfe_u32 v{vT0}, v{vL}, 1, 1
v_lshl_add_u32 v{vT2}, v{vT0}, 3, v{vT2}
s_add_u32 s{sT}, s{sM0X}, 2048
v_add_u32 v{vT2}, s{sT}, v{vT2}
v_xor_b32 v{vT1}, 1, v{vT1}
v_lshlrev_b32 v{vT1}, 7, v{vT1}
s_lshl_b32 s{sT}, s{sW}, 3
s_add_u32 s{sT}, s{sT}, {STRIP}
v_add_u32 v{vU}, {STRIP+120}, v{vT1}
v_add_u32 v{vT1}, s{sT}, v{vT1}
v_and_b32 v{vT0}, 2, v{vL}
v_cmp_eq_u32 vcc, 0, v{vT0}
v_cndmask_b32 v{vT1}, v{vU}, v{vT1}, vcc
v_cndmask_b32 v{vU}, 0, 8, vcc
v_and_b32 v{vT0}, 16, v{vL}
v_cmp_eq_u32 vcc, 0, v{vT0}
v_cndmask_b32 v{vT0}, v{vT1}, v{vT2}, vcc
{park("Va", f"v{vT0}")}v_mov_b32 v{vT2}, 4096
v_cndmask_b32 v{vT0}, v{vU}, v{vT2}, vcc
{park("Vinc", f"v{vT0}")}
s_lshl_b32 s{sT}, s{sTB}, 15
s_lshl_b32 s{sTb}, s{sCB}, 11
s_add_u32 s{sT}, s{sT}, s{sTb}
s_add_u32 s{sT}, s{sT}, {O0}
v_add_u32 v{vT0}, s{sT}, v{vL16}
{park("Ost", f"v{vT0}")}
s_lshl_b32 s{sT}, s{sCB}, 18
v_add_u32 v{vT0}, s{sT}, v{vL16}
{park("KVo", f"v{vT0}")}
""")
SENT = O("sent", 1)
sent_st = [I(f"buffer_store_dwordx4 {vr(vXT,4)}, v{vOst}, {srd(SWS)}, 0 offen offset:{1024*e} sc1", tag="sent") for e in range(2)] if SENT else []
for k in range(3):
    E(f"""
s_add_i32 s{sT}, s{sTB}, {-4*k}
s_lshl_b32 s{sKV[k]}, s{sT}, 12
s_cmp_lt_i32 s{sT}, 0
s_cselect_b32 s{sKV[k]}, s{sHUGE}, s{sKV[k]}
""")
E(f"""
v_min_u32 v{vT1}, 5, v{vL}
v_lshrrev_b32 v{vT2}, 1, v{vT1}
v_lshlrev_b32 v{vT2}, 2, v{vT2}
v_sub_u32 v{vT2}, s{sTB}, v{vT2}
v_cmp_gt_i32 vcc, 0, v{vT2}
v_mov_b32 v{vT0}, s{sTB}
v_cndmask_b32 v{vT2}, v{vT2}, v{vT0}, vcc
v_lshlrev_b32 v{vT2}, 7, v{vT2}
v_and_b32 v{vT1}, 1, v{vT1}
v_lshl_add_u32 v{vT2}, v{vT1}, 3, v{vT2}
s_and_b32 s{sT}, s{sCB}, 14
s_lshl_b32 s{sT}, s{sT}, 3
s_and_b32 s{sTb}, s{sCB}, 1
s_lshl_b32 s{sTb}, s{sTb}, 2
s_add_u32 s{sT}, s{sT}, s{sTb}
s_add_u32 s{sT}, s{sT}, {FL0}
v_add_u32 v{vT0}, s{sT}, v{vT2}
{park("Pa", f"v{vT0}")}
s_lshl_b32 s{sT}, s{sTB2}, 8
s_add_u32 s{sT}, s{sT}, {FL0+8192}
v_lshlrev_b32 v{vT0}, 2, v{vL}
v_add_u32 v{vT0}, s{sT}, v{vT0}
{park("Pb", f"v{vT0}")}
""")
if O("tblm", 1):
    E(f"""v_and_b32 v{vT1}, 31, v{vL}
v_lshrrev_b32 v{vT2}, 5, v{vL}
v_lshlrev_b32 v{vT2}, 2, v{vT2}
v_sub_u32 v{vT1}, v{vT1}, v{vT2}""")
    for j in range(16):
        kl = 8 * (j >> 2) + (j & 3)
        E(f"""v_subrev_u32 v{vT0}, {kl}, v{vT1}
v_ashrrev_i32 v{vT0}, 31, v{vT0}
v_and_b32 v{vT0}, 0xff000000, v{vT0}
v_accvgpr_write_b32 a{aMSK+16+j}, v{vT0}
v_xor_b32 v{vT0}, 0xff000000, v{vT0}
v_accvgpr_write_b32 a{aMSK+j}, v{vT0}""")
vT0, vT1, vT2, vU, sT, sTb, sTc, sTd = saved
late = []
if O("defer", 1): late = prog[late_mark:]; del prog[late_mark:]
rest = prog[init_mark:]; del prog[init_mark:]
gall = p1_dma(1) + p1_dma(2)
N0 = O("n0", 10)
def safe_at(lst, n):
    x = lst[n]
    return not (x.op.startswith("s_cmp") or x.op == "s_and_b32" or (n + 1 < len(lst) and (lst[n + 1].op.startswith("s_cselect") or lst[n + 1].op.startswith("s_cbranch"))))
cut = int(len(rest) * O("f1", 30) / 100)
while not safe_at(rest, cut - 1): cut += 1
E(rest[:cut])
stamp((2,))
E(flat(g0))
rest = rest[cut:]
gs = gall[:N0]; k = 0
for n, x in enumerate(rest):
    E(x)
    if k < len(gs) and safe_at(rest, n) and n + 1 >= (k + 1) * len(rest) / (len(gs) + 1):
        E(gs[k]); k += 1
if O("w2t", -2) == 0: E(w2touch)
E(flat(gs[k:]))
if O("w2t", -2) == 1: E(w2touch)
stamp((1, 2, 3, 17))

def wf1(st, t): return aWF + (st * 3 + t) * 4
LK = O('lk', 3)
def wf2(k, t): return aWF + ((k % (LK + 1)) * 3 + t) * 4
def p1_reads(c, s):
    sl = c & 3; st = s & 1
    o = [I(f"ds_read_b128 {ar(aX+(4*c+s)*4,4)}, v{vXr+s} offset:{sl*16384}")]
    for t in range(3):
        for n in range(2):
            o.append(I(f"ds_read_b64_tr_b16 {ar(wf1(st,t)+2*n,2)}, v{vWr+2*s+(sl>>1)} offset:{(sl&1)*24576+t*8192+n*512}"))
    o.insert(3, I(f"ds_read_b128 {ar(aXP+4*st,4)}, v{vXp+s} offset:{sl*16384}"))
    return o
def statread(g):
    c, s = g >> 2, g & 3
    return [I(f"ds_read_b128 {vr(vXT+4*s,4)}, v{vXr+s} offset:{(c&3)*16384}")]
def stats(s):
    o = []
    for j in range(4):
        x = vXT + 4 * s + j; a = vU + 2 * (j & 1)
        o += L(f"""v_lshlrev_b32 v{a}, 16, v{x}
v_and_b32 v{a+1}, 0xffff0000, v{x}
v_add_f32 v{vSum}, v{vSum}, v{a}
v_add_f32 v{vSum+1}, v{vSum+1}, v{a+1}
v_fmac_f32 v{vSum+2}, v{a}, v{a}
v_fmac_f32 v{vSum+3}, v{a+1}, v{a+1}""")
    return o
def cs_convert(vcs, vw, base, step):
    o = []
    for j in range(4):
        a = 252 if j & 1 else vU + 4
        o += L(f"""v_cvt_pk_bf16_f32 v{a}, v{vcs+j}, v{vcs+j}
v_and_b32 v{a+1}, 0xffff0000, v{a}
v_sub_f32 v{a+1}, v{vcs+j}, v{a+1}
v_cvt_pk_bf16_f32 v{a+1}, v{a+1}, v{a+1}""")
        o.append(I(f"ds_write_b64 v{vw}, {vr(a,2)} offset:{base+step*j}"))
    return o
C1 = -2.0 * 0.7978845608028654 * 1.4426950408889634
QC = 0.25 * 1.4426950408889634
stats_pub = L(f"""v_add_f32 v{vSum}, v{vSum}, v{vSum+1}
v_add_f32 v{vSum+1}, v{vSum+2}, v{vSum+3}
v_mov_b32 v{vSum+2}, v{vSum}
v_mov_b32 v{vSum+3}, v{vSum+1}
v_lshrrev_b32 v{vT0}, 5, v{vL}
v_permlane32_swap_b32 v{vSum}, v{vSum+2}
v_permlane32_swap_b32 v{vSum+1}, v{vSum+3}
v_lshl_add_u32 v{vT0}, v{vT0}, 28, v{vSPo}
v_add_f32 v{vSum}, v{vSum}, v{vSum+2}
v_add_f32 v{vSum+1}, v{vSum+1}, v{vSum+3}""") + [I(f"buffer_store_dwordx2 {vr(vSum,2)}, v{vT0}, {srd(SWS)}, s{sSP} offen sc1", tag="sp")]
stats_ld = [[I(f"buffer_load_dwordx2 {vr(vSL+2*i,2)}, v{vSPo}, {srd(SWS)}, s{sSG} offen offset:{512*i} sc1")] for i in range(4)]
b = vSL
stats_fin = L(f"""
v_add_f32 v{b}, v{b}, v{b+2}
v_add_f32 v{b+1}, v{b+1}, v{b+3}
v_add_f32 v{b+4}, v{b+4}, v{b+6}
v_add_f32 v{b+5}, v{b+5}, v{b+7}
v_add_f32 v{b}, v{b}, v{b+4}
v_add_f32 v{b+1}, v{b+1}, v{b+5}
v_mul_f32 v{vSum}, {fx(-1.0/512)}, v{b}
v_mul_f32 v{b+1}, {fx(1.0/512)}, v{b+1}
v_fma_f32 v{b+1}, -v{vSum}, v{vSum}, v{b+1}
v_max_f32 v{b+1}, 0, v{b+1}
v_add_f32 v{vSum+1}, {fx(1e-5)}, v{b+1}
v_mov_b32 v{vSum+2}, v{vSum}
v_mov_b32 v{vSum+3}, v{vSum+1}
s_nop 0
v_permlane32_swap_b32 v{vSum}, v{vSum+2}
v_permlane32_swap_b32 v{vSum+1}, v{vSum+3}
""")
def stats_k(o):
    R = vSum + 2 * o + 1; K = vK[o]; a = vU
    t = f"""
v_rsq_f32 v{K}, v{R}
v_mov_b32 v{K+3}, v{R}
v_mul_f32 v{K+1}, {fx(C1)}, v{K}
v_mul_f32 v{a}, v{K}, v{K}
v_mul_f32 v{a}, {fx(0.044715)}, v{a}
v_mul_f32 v{K+2}, v{K+1}, v{a}
"""
    if o == 0: t += f"v_mul_f32 v{vQS}, {fx(QC)}, v{K}\n"
    return L(t)
def stats_b(o):
    nm = vSum + 2 * o; B = vBx[o]; a = vU
    return L(f"""
v_cvt_pk_bf16_f32 v{a}, v{nm}, v{nm}
v_and_b32 v{a}, 0xffff0000, v{a}
v_sub_f32 v{a+1}, v{nm}, v{a}
v_cvt_pk_bf16_f32 v{B}, v{a}, v{a+1}
v_mov_b32 v{B+1}, v{B}
v_mov_b32 v{B+2}, v{B}
v_mov_b32 v{B+3}, v{B}
""")
assert NI < 10
E(ann)
E(I("s_barrier", need=["c0"]))
stamp((2, 17))
E(p1_reads(0, 0) + statread(0) + statread(1))
E(stats(0))
S1 = Sched()
P1 = lambda c, s, t: 24 * c + 6 * s + t
A1 = lambda t, o: ACC1 + 32 * t + 16 * o
for c in range(8):
    for s in range(4):
        st = s & 1; first = (c == 0 and s == 0)
        for q in range(6):
            t, o = q >> 1, q & 1
            acc = vr(A1(t, o), 16)
            xb = ar(aX + (4 * c + s) * 4, 4) if o == 0 else ar(aXP + 4 * st, 4)
            ops = [I(f"{MF} {acc}, {ar(wf1(st,t),4)}, {xb}, {'0' if first else acc}")]
            small = s < 2 and o == 1 and not (O('x_nocs', 0) and c > 0)
            if small:
                cs = vr(vCS1, 4)
                ops.append(I(f"{MS} {cs}, {ar(wf1(st,t),4)}, {ar(aSEL+4*t,4)}, {'0' if (first and t == 0) else cs}"))
            pre = []
            if q == 0 and (O("fw", 0) == 0 or s == 3) and not (c == 7 and s == 3): pre.append(I("s_waitcnt lgkmcnt(0)"))
            if s == 3 and q == 0 and c < 7: pre.append(I("s_barrier", need=["c%d" % (c + 1)]))
            if s == 3 and q == 2 and c == 7: pre += [I("s_waitcnt lgkmcnt(0)"), I("s_barrier", need=["p0"])]
            if s == 0 and q == 0: pre += stampq((3,))
            S1.pos(ops, 8 if small else 6, pre)
NP1 = 192
CORR_K = 0
P2 = lambda k, t: NP1 + 3 * k + t + (6 if k >= CORR_K else 0)
PC = NP1 + 3 * CORR_K
for k in range(32):
    p, s = k >> 3, k & 3
    if k == CORR_K:
        for q in range(6):
            t, o = q >> 1, q & 1
            acc = vr(A1(t, o), 16)
            S1.pos(I(f"{MF} {acc}, {vr(vCSA[t],4)}, {vr(vBx[o],4)}, {acc}"), 6, stampq((1, 3, 17)) if q == 0 else [])
    for t in range(3):
        acc = vr(ACC2 + 16 * t, 16)
        ops = [I(f"{MF} {acc}, {ar(wf2(k,t),4)}, {ar(aX+k*4,4)}, {'0' if k == 0 else acc}", xr=(ar(wf2(k, 0), 24 if (LK == 3 and k % 2 == 0) else 12) if t == 0 else None))]
        if s == 0:
            cs = vr(vCS2, 4)
            ops.append(I(f"{MS} {cs}, {ar(wf2(k,t),4)}, {ar(aSEL+4*t,4)}, {'0' if (k == 0 and t == 0) else cs}"))
        pre = []
        if False:
            pre = []
        if (k & 7) == 8 - LK and t == 1:
            pre = [I("s_waitcnt lgkmcnt(0)"), I("s_barrier", need=["p%d" % (p + 1)] if p < 3 else [])]
        if LK == 3 and k == 30 and t == 1: pre = [I("s_waitcnt lgkmcnt(0)"), I("s_barrier")]
        if LK == 3 and k == 29 and t == 1: pre = []
        if (k & 3) == 0 and t == 0: pre += stampq((4,))
        S1.pos(ops, 8 if s == 0 else 6, pre)
NP2 = len(S1.main)
def p2_reads(k):
    p, g, s = k >> 3, (k >> 2) & 1, k & 3
    return [I(f"ds_read_b64_tr_b16 {ar(wf2(k,t)+2*n,2)}, v{vW2r+2*s+(p>>1)} offset:{(p&1)*24576+t*8192+g*4096+n*256}") for t in range(3) for n in range(2)]
def store4(data, voff, soff, imm, tag):
    if O("x_nost", 0) and tag in ("kv", "h"): return I("s_nop 0")
    o = (" offset:%d" % imm) if imm else ""
    return I(f"buffer_store_dwordx4 {vr(data,4)}, v{voff}, {srd(SWS)}, {soff} offen{o} sc1", tag=tag)
def flag(stage, tag, va):
    if O("x_nofw", -1) == stage: tag = "none"
    return L(f"v_mov_b32 v{vT0}, 1\ns_mov_b32 s{sT}, {stage*8192}") + [I(f"buffer_store_dword v{vT0}, v{va}, {srd(SWS)}, s{sT} offen sc1", need=[tag])]
def poll_issue(va): return [I(f"buffer_load_dword v{vPoll}, v{va}, {srd(SWS)}, 0 offen sc1")]
def poll_check(name, S, reg, addr):
    SITE = {"init": 24, "st": 25, "kv": 26, "h": 27, "h2": 28, "o": 29}[name]
    mark = f"    v_writelane_b32 v231, s{sSPIN}, {SITE}\n" if OPT["stamps"] else ""
    rare.append(f"""
L_spin_{name}:
    s_mov_b32 s{sSPIN}, {OPT['spin']}
L_spin2_{name}:
{mark}    buffer_load_dword v{reg}, v{addr}, {srd(S)}, 0 offen sc1
    s_waitcnt vmcnt(0) lgkmcnt(0)
    v_cmp_eq_u32 vcc, 0, v{reg}
    s_nop 4
    s_cbranch_vccz L_ok_{name}
    s_sleep 1
    s_sub_u32 s{sSPIN}, s{sSPIN}, 1
    s_cmp_lg_u32 s{sSPIN}, 0
    s_cbranch_scc1 L_spin2_{name}
    s_endpgm
""")
    o = L(f"v_cmp_eq_u32 vcc, 0, v{reg}\ns_cbranch_vccnz L_spin_{name}")
    o[-1].post = f"\nL_ok_{name}:"
    return o
SC2 = 1
SG_ = set(range(4)) | set(range(4 * SC2, 4 * SC2 + 4))
for c in range(8):
    for s in range(4):
        g = 4 * c + s
        rd = []
        if g + 1 < 32: rd += p1_reads((g + 1) >> 2, (g + 1) & 3)
        if s < 2 and g + 2 in SG_: rd += statread(g + 2)
        if s == 3 and g + 1 in SG_: rd = statread(g + 1) + rd + statread(g + 2)
        S1.spread(rd, P1(c, s, 0), P1(c, s, O("rdw", 4)), 0)
        if g + 1 in SG_:
            if s != 3: S1.spread(stats((g + 1) & 3), P1(c, s, 0), P1(c, s, 6), 2)
            else: S1.spread(stats(0), P1(c, s, 2), P1(c, s, 6), 2)
    if c == 0:
        gq = gall[N0:]
        if O("w2t", -2) == -1: gq = gq[:10 - N0] + [w2touch] + gq[10 - N0:]
        if O("w2t", -2) == -2: gq = gq + [w2touch]
        N2 = O("n2", 99); carry = gq[N2:]
        S1.spread(gq[:N2], P1(0, O("n2a", 0), 0), P1(0, 3, 0), 1, one)
    if c == 0 and carry:
        S1.spread(carry, P1(0, 3, 0), P1(1, O("n2e", 1), 0), 1, one)
        S1.spread(p1_dma(3), P1(1, O("n2e", 1), 0), P1(1, 3, 0), 1, one)
    elif c < 5: S1.spread(p1_dma(c + 3), P1(c, 3, 0), P1(c + 1, 3, 0), 1, one)
S1.spread(p2_dma(0), P1(6, O("p0a", 1), 0), P1(6, 3, 0), 1, one)
S1.spread(p2_dma(1), P1(6, 3, 0), P1(7, 3, 0), 1, one)
S1.put(O("ipos", 24), [L(f"v_and_b32 v{vT2}, 3, v{vL}\nv_lshlrev_b32 v{vT2}, 2, v{vT2}") + [I(f"buffer_load_dword v{vInit}, v{vT2}, {srd(SDBG)}, 0 offen" + (" sc1" if O("isc", 1) else ""))]], 1)
def glue2(q):
    out = []; cur = []; n = 0
    while n < len(q):
        x = q[n]; cur = [x]; n += 1
        if x.op.startswith("s_cmp"):
            while n < len(q) and q[n].op.startswith("s_cselect"): cur.append(q[n]); n += 1
        elif x.op.startswith("v_cmp"):
            last = n
            for m in range(n, len(q)):
                if q[m].op.startswith("v_cmp"): break
                if q[m].op.startswith("v_cndmask"): last = m + 1
            cur += q[n:last]; n = last
        out.append(cur)
    return out
if late: S1.spread(glue2(late), O("la0", 48), O("la1", 166), 2)
S1.spread(stats_pub, P1(SC2, 3, 0), P1(SC2, 3, 3), 2)
S1.put(P1(O("spf", SC2 + 1), O("spf2", 3), 1), [poll_check("init", SDBG, vInit, vT2) + flag(4, "sp", vFl1)], 2)
S1.put(P1(O("spp", 4 if SC2 == 1 else 5), O("spp2", 2 if SC2 == 1 else 0), 5), [poll_issue(vPs)], 1)
S1.put(P1(5, 3, 1), [poll_check("st", SWS, vPoll, vPs)], 2)
S1.spread(stats_ld, P1(5, 3, 2), P1(5, 3, 6), 1, one)
S1.spread(stats_fin + stats_k(0) + stats_k(1), P1(7, 0, 0), P1(7, 2, 0), 2)
if SENT:
    S1.put(P1(3, 0, 0), L("\n".join(f"v_mov_b32 v{vXT+j}, -1" for j in range(4))), 2)
    S1.put(O("snp", 172), [sent_st[0]], 1); S1.put(O("snp", 172) + O("snd", 8), [sent_st[1]], 1)
S1.spread(cs_convert(vCS1, vCSw1, CS1, 8), P1(7, 2, 0), P1(7, 2, O('cse', 5)), 2)
S1.spread(stats_b(0) + stats_b(1), P1(7, 3, 0), P1(7, 3, 4), 2)
S1.spread(p2_reads(0), P1(7, 3, 2), P1(7, 3, 4), 0)
S1.put(P1(7, 3, 5), p2_reads(1), 0)
if O("w2t", -2) >= 2: S1.put(O("w2t", -2), [w2touch], 1)
S1.spread(p2_dma(2), P1(7, 3, 2), P2(7 - LK, 0), 1, one)

def scale_pack(acc, sc, dst, pk=False):
    o = []
    if pk:
        sel = "op_sel:[0,1] op_sel_hi:[1,1]" if sc & 1 else "op_sel_hi:[1,0]"
        for j in range(0, 16, 2): o.append(I(f"v_pk_mul_f32 {vr(acc+j,2)}, {vr(acc+j,2)}, {vr(sc&~1,2)} {sel}"))
    else:
        for j in range(16): o.append(I(f"v_mul_f32 v{acc+j}, v{acc+j}, v{sc}"))
    for j in range(8): o.append(I(f"v_cvt_pk_bf16_f32 v{dst+j}, v{acc+2*j}, v{acc+2*j+1}"))
    return o
def gelu(g, u, K):
    if O("x_nogelu", 0): return [I("s_nop 0")] * 4
    A, B, R = K + 1, K + 2, K + 3
    o = []
    for b in range(4):
        js = range(4 * b, 4 * b + 4)
        T = lambda j: vG + (j & 3) + 4 * (b & 1)
        o += [I(f"v_mul_f32 v{T(j)}, v{g+j}, v{g+j}") for j in js]
        o += [I(f"v_fma_f32 v{T(j)}, v{T(j)}, v{B}, v{A}") for j in js]
        o += [I(f"v_mul_f32 v{T(j)}, v{g+j}, v{T(j)}") for j in js]
        for j in js: o += [I(f"v_exp_f32 v{T(j)}, v{T(j)}"), I(f"v_mul_f32 v{g+j}, v{g+j}, v{u+j}")]
        o += [I(f"v_fma_f32 v{T(j)}, v{T(j)}, v{R}, v{R}") for j in js]
        o += [I(f"v_rcp_f32 v{T(j)}, v{T(j)}") for j in js]
        o += [I(f"v_mul_f32 v{g+j}, v{g+j}, v{T(j)}") for j in js]
        o += [I(f"v_cvt_pk_bf16_f32 v{u+2*b+k}, v{g+4*b+2*k}, v{g+4*b+2*k+1}") for k in range(2)]
    return o
def gelu_pk(g, u, K):
    o = []
    for b in range(2):
        js = range(8 * b, 8 * b + 8, 2)
        T = lambda j: vG + (j & 7)
        o += [I(f"v_pk_mul_f32 {vr(T(j),2)}, {vr(g+j,2)}, {vr(g+j,2)}") for j in js]
        o += [I(f"v_pk_fma_f32 {vr(T(j),2)}, {vr(T(j),2)}, {vr(K+2,2)}, {vr(K,2)} op_sel:[0,0,1] op_sel_hi:[1,0,1]") for j in js]
        o += [I(f"v_pk_mul_f32 {vr(T(j),2)}, {vr(g+j,2)}, {vr(T(j),2)}") for j in js]
        for j in js: o += [I(f"v_exp_f32 v{T(j)}, v{T(j)}"), I(f"v_exp_f32 v{T(j)+1}, v{T(j)+1}"), I(f"v_pk_mul_f32 {vr(g+j,2)}, {vr(g+j,2)}, {vr(u+j,2)}")]
        o += [I(f"v_pk_fma_f32 {vr(T(j),2)}, {vr(T(j),2)}, {vr(K+2,2)}, {vr(K+2,2)} op_sel:[0,1,1] op_sel_hi:[1,1,1]") for j in js]
        for j in js: o += [I(f"v_rcp_f32 v{T(j)}, v{T(j)}"), I(f"v_rcp_f32 v{T(j)+1}, v{T(j)+1}")]
        o += [I(f"v_pk_mul_f32 {vr(g+j,2)}, {vr(g+j,2)}, {vr(T(j),2)}") for j in js]
        o += [I(f"v_cvt_pk_bf16_f32 v{u+(j>>1)}, v{g+j}, v{g+j+1}") for j in js]
    return o
S1.put(P1(7, 3, 2), [I(f"ds_read_b64 {vr(vCSA[t],2)}, v{vCSr} offset:{CS1+C1STR*t}") for t in range(3)], 0)
if LK == 3: S1.spread(p2_reads(2), PC, PC + 3, 0)
for k in range(32 - LK):
    o = 1 if (k & 7) == 8 - LK else 0
    S1.spread(p2_reads(k + LK), P2(k, o), P2(k, o + (2 if (k & 7) in (7 - LK, 8 - LK) else 3)), 0)

fq = []
sOwn = [f"s{sPK}", f"s{sTd}"]; sOwnH = [f"s{sPH}", f"s{sTc}"]
fq += L(f"s_xor_b32 s{sTd}, s{sPK}, 4096\ns_sub_u32 s{sTc}, {HSTR}, s{sPH}")
for o in range(2):
    a = A1(0, o)
    sp = scale_pack(a, vK[o], a)
    fq += sp[0:8] + sp[16:20] + [store4(a, vKVst, sOwn[o], 0, "kv")] + sp[8:16] + sp[20:24] + [store4(a + 4, vKVst, sOwn[o], 1024, "kv")]
g = []
for o in range(2):
    gg = gelu(A1(1, o), A1(2, o), vK[o])
    g.append(gg[:68] + [store4(A1(2, o), vHst, sOwnH[o], 0, "h")] + gg[68:] + [store4(A1(2, o) + 4, vHst, sOwnH[o], 1024, "h")])
KVF = O("kvflag", 65); KVP = O("kvpoll", 110)
tbl = [[I(f"buffer_load_dwordx4 {vr(vBF+4*i,4)}, v{vL16}, {srd(STB)}, {'0' if i < 4 else 's%d' % sX} offen offset:{1024*(i&3)}")] for i in range(8)]
tbl[0] = L(f"s_movk_i32 s{sX}, 4096") + tbl[0]
strip = [I(f"ds_write_b128 v{vL16}, {ar(aSTV,4)} offset:{STRIP+1024*i}") for i in range(2)]
unp = [I(f"v_accvgpr_read_b32 v{vBF+j}, a{aMSK+j}") for j in range(32)] if O("tblm", 1) else []
fq += g[0][:KVF] + [flag(0, "kv", vFl2)] + g[0][KVF:] + strip + unp
fq += g[1][:KVP] + poll_issue(vPa) + g[1][KVP:]
FQ_END = O("fqend", 29)
S1.spread(glue(fq), PC + 3, P2(FQ_END, 0), 2)
if not O("tblm", 1): S1.spread(tbl, P2(O("tbl", 9), 0), P2(O("tbl", 9) + 5, 0), 1, one)

def w2_dma(j):
    sl = j % 12
    m0 = (sl // 3) * 24576 + (sl % 3) * 2048
    nd = ["r%d" % (j - 12)]
    post = []
    if j >= 22:
        post = L(f"s_add_u32 s{sWB}, s{sWB}, 16384\ns_and_b32 s{sWB}, s{sWB}, 0x1ffff")
        return [L(f"s_add_u32 m0, s{sM0K}, {(j-22)*2048}\ns_nop 0") + [dma(vEo, SO, f"s{sWB}", 0, "w%d" % j)],
                [dma(vEo + 1, SO, f"s{sWB}", 1024, "w%d" % j)] + post]
    if j < 22:
        base = sWE + (j >> 1) if j < 16 else sLW[(j - 16) >> 1]
        so, sr = ("s_nop 0", base) if j & 1 == 0 else (f"s_add_u32 s{sD}, s{base}, 16384", sD)
        vo, S = vDo, SD
    else:
        so, sr, vo, S = "s_nop 0", sWB, vEo, SO
        post = L(f"s_add_u32 s{sWB}, s{sWB}, 16384\ns_and_b32 s{sWB}, s{sWB}, 0x1ffff")
    return [L(f"s_add_u32 m0, s{sM0D}, {m0}\n{so}") + [dma(vo, S, f"s{sr}", 0, "w%d" % j, need=nd)],
            [dma(vo + 1, S, f"s{sr}", 1024, "w%d" % j, need=nd)] + post]
KCHK = O("kvchk", 29)
for p in range(3):
    if not O("x_now2", 0): S1.spread((p2_dma(3) if p == 0 else []) + w2_dma(3 * p) + w2_dma(3 * p + 1) + w2_dma(3 * p + 2), P2(8 * p + 8 - LK, 1), P2(8 * p + 16 - LK, 1) if p < 2 else P2(KCHK, 0), 1, one)
kvdma = []
for k in range(3):
    kvdma.append(L(f"s_add_u32 m0, s{sM0X}, {4096*(8-4*k)}\ns_nop 0") + [dma(vKVo, SWS, f"s{sKV[k]}", 0, "kvl", "sc1")])
    kvdma += [[dma(vKVo, SWS, f"s{sKV[k]}", 1024 * i, "kvl", "sc1")] for i in range(1, 4)]
if not O("x_nokv", 0):
    if not O("x_nochk", 0): S1.put(P2(KCHK, 0), [poll_check("kv", SWS, vPoll, vPa)], 1)
    S1.spread(kvdma, P2(KCHK, 1), NP2, 1, one)
S1.spread(cs_convert(vCS2, vCSw2, CS2, 16), P2(29, 0), P2(30, 0), 2)
S1.put(P2(30, 1), [I(f"ds_read_b128 {vr(vCSA[q],4)}, v{vL16} offset:{CS2+CSTR*q}") for q in range(3)], 0)
if O("x_idle", 0): S1.pre[O("x_idlep", 250)] += L("s_nop 15\n" * (O("x_idle", 0) // 64))
if OPT["stamps"] == 10:
    for g in range(O("l0", 2), min(O("l0", 2) + 30, 32)):
        k = nstamp[0]; nstamp[0] += 1
        S1.put(6 * g + 4, [I(f"{TIMER} s[88:89]")], 2)
        S1.put(6 * g + 6, [I(f"v_writelane_b32 v231, s88, {k}")], 2)
if OPT["stamps"] == 11:
    for kk in range(1, 31):
        k = nstamp[0]; nstamp[0] += 1
        S1.put(P2(kk, 0), [I(f"{TIMER} s[88:89]")], 0)
        S1.put(P2(kk + 1, 0) - 1, [I(f"v_writelane_b32 v231, s88, {k}")], 2)
if OPT["stamps"] == 9:
    for q in range(28):
        p = OPT["za"] + q * OPT["zs"]
        if p < len(S1.main): S1.pre[p] = stampq((9,)) + S1.pre[p]
E(S1.emit())
stamp((1, 4, 12))
post = w2_dma(9) + w2_dma(10) + w2_dma(11)
xres = L(f"buffer_load_dwordx4 {vr(vXres,4)}, v{vOut}, {srd(SX)}, 0 offen\nbuffer_load_dwordx4 {vr(vXres+4,4)}, v{vOut+1}, {srd(SX)}, 0 offen")
for n, t in enumerate((0, 1, 2)):
    acc = vr(ACC2 + 16 * t, 16)
    E(f"{MF} {acc}, {vr(vCSA[t],4)}, {vr(vBx[0],4)}, {acc}")
    E(post[2 * n] + post[2 * n + 1])
E(scale_pack(ACC2, vQS, vQ, pk=False))
gl = gelu_pk(ACC2 + 16, ACC2 + 32, vK[0])
HF = O("hf", 60)
gl = gl[:44] + [store4(ACC2 + 32, vHst, f"s{sH2}", 0, "h2")] + xres + gl[44:] + [store4(ACC2 + 36, vHst, f"s{sH2}", 1024, "h2")]
gl = gl[:HF] + flag(1, "h", vFl2) + gl[HF:]
G2 = O("g2l", 0)
E(gl[:len(gl) - G2]); gl = gl[len(gl) - G2:]
stamp((4, 6, 12))
E(I("s_waitcnt lgkmcnt(0)"))
E(I("s_barrier", need=["kvl"]))
stamp((1, 4, 6, 12))

units = [(i, e) for i in range(9) for e in range(2)]
def kread(u):
    i, e = units[u]
    return [I(f"ds_read_b128 {ar(aK+4*(u&1),4)}, v{vKa} offset:{i*4096+e*1024}")]
def vread(u):
    i, e = units[u]
    o = [I(f"ds_read_b64_tr_b16 {ar(aV+8*(u&1)+4*s+2*n,2)}, v{vVa} offset:{e*1024+s*512+n*256}") for s in range(2) for n in range(2)]
    if e == 1: o.append(I(f"v_add_u32 v{vVa}, v{vVa}, v{vVinc}"))
    return o
def qk(u):
    i, e = units[u]
    c = vr(vBF, 16) if i == 0 else (vr(vBD, 16) if i == 8 else "0")
    return I(f"{MF} {vr(vS[u&1],16)}, {ar(aK+4*(u&1),4)}, {vr(vQ+4*e,4)}, {c}", xr=ar(aV + 8 * (u & 1), 8) if u >= 2 else None)
def pv(u, s):
    i, e = units[u]
    o = vr(vO[e], 16)
    return I(f"{MF} {o}, {ar(aV+8*(u&1)+4*s,4)}, {vr(vP[u&1]+4*s,4)}, {'0' if (i == 0 and s == 0) else o}")
def hload(j, tt):
    post = []
    if j < 16:
        soff = sHE[j >> 1]
    else: soff = sLH[(j - 16) >> 1]
    o = " offset:1024" if j & 1 else ""
    return [I(f"buffer_load_dwordx4 {ar(aH+8*j+4*tt,4)}, v{vAo+tt}, {srd(SWS)}, s{soff} offen{o} sc1")] + post
NW2V = O("w2v", 10)
W2V = [152, 156, 192, 196, 200, 204, 4, 8, 12, 16, 20, 24, 36, 40, 44, 48, 240, 244, 248, 252]
def w2_reads(j):
    sl = j % 12
    base = (sl // 3) * 24576 + (sl % 3) * 2048
    o = []
    for ct in range(2):
        for n in range(2):
            off = base + n * 1024 + ct * 256
            reg = vW3r if off < 49152 else vW3r + 1
            off = off if off < 49152 else off - 49152
            if j >= 22: reg, off = vPa, (j - 22) * 2048 + n * 1024 + ct * 256
            dst = vr(W2V[2*j+ct]+2*n, 2) if j < NW2V else (ar(aW2+8*(j&1)+4*ct+2*n, 2) if j < 22 else ar(8*(j-22)+4*ct+2*n, 2))
            o.append(I(f"ds_read_b64_tr_b16 {dst}, v{reg} offset:{off}", need=["w%d" % j], tag="r%d" % j))
    return o
extra = {u: [] for u in range(18)}
xds = {u: [] for u in range(18)}
WS0, WS1 = O("ws0", 0), O("ws1", 6)
for j in range(NW2V):
    u = WS0 + j * (WS1 - WS0) // max(NW2V, 1)
    xds[u] += w2_reads(j)
    gd = w2_dma(j + 12)
    if j > 0: gd[0] = [x for x in gd[0][1:] if x.op != "s_nop"]
    if j + 1 < NW2V: gd[1] = gd[1] + [w2_dma(j + 13)[0][0]]
    extra[u + 1] += gd
EP, EC = O("ep", 4), O("ec", 7)
LF, LP, LC = O("lf", 2), O("lp", 11), O("lc", 14)
extra[EP].append(poll_issue(vPb))
extra[LF].append(flag(2, "h2", vFl1))
extra[EC].append(poll_check("h", SWS, vPoll, vPb) + L(f"v_and_b32 v{vPb}, -5, v{vPb}\nv_add_u32 v{vPb}, 8192, v{vPb}"))
he = [hload(j, tt) for j in range(16) for tt in range(2)]
hlate = [hload(j, tt) for j in range(16, 22) for tt in range(2)]
EE = O("ee", 16); NE = O("ne", 32)
he_late = he[NE:]; he = he[:NE]
for q in range(EE - EC):
    extra[EC + q] += he[len(he) * q // (EE - EC):len(he) * (q + 1) // (EE - EC)]
extra[LP].append(poll_issue(vPb))
extra[LC].append(poll_check("h2", SWS, vPoll, vPb) + L(f"v_add_u32 v{vPb}, 8192, v{vPb}"))
LS = max(LC, EE)
NL = O("nl", 8)
for q in range(18 - LS):
    extra[LS + q] += hlate[NL * q // (18 - LS):NL * (q + 1) // (18 - LS)]
hl_late = he_late + hlate[NL:]
assert not he_late or NL == 0

E(kread(0) + kread(1) + vread(0))
E(gl[:O("g2m", 12)])
E(qk(0))
E(gl[O("g2m", 12):])
for u in range(18):
    S, P = vS[u & 1], vP[u & 1]
    ex = [I(f"v_exp_f32 v{S+j}, v{S+j}") for j in range(16)]
    cv = [I(f"v_cvt_pk_bf16_f32 v{P+j}, v{S+2*j}, v{S+2*j+1}") for j in range(8)]
    seq = []
    xs = list(extra[u])
    X = lambda q: flat(xs[len(xs) * q // 3:len(xs) * (q + 1) // 3])
    vr_ = vread(u + 1) if u + 1 < 18 else []
    if u + 1 < 18: seq.append(qk(u + 1))
    seq += xds[u]
    if u + 2 < 18: seq += kread(u + 2)
    seq += X(0) + ex[0:6]
    if u > 0: seq.append(pv(u - 1, 0))
    seq += vr_[0:2] + X(1) + ex[6:11] + cv[0:3]
    if u > 0: seq.append(pv(u - 1, 1))
    seq += vr_[2:4] + X(2) + vr_[4:] + ex[11:16] + cv[3:8]
    if u % 2 == 0: seq = stampq((6,)) + seq
    if OPT["stamps"] == 12:
        if u > 0: seq.insert(2, I(f"v_writelane_b32 v231, s88, {nstamp[0]}")); nstamp[0] += 1
        seq.insert(3 if u > 0 else 1, I(f"{TIMER} s[88:89]"))
    E(seq)
def norm(e):
    o = vO[e]
    t = [f"v_rcp_f32 v{vT0+1}, v{o+8}", "s_nop 0"]
    if e == 0 or O("n1", 1): t += [f"v_mul_f32 v{o+j}, v{o+j}, v{vT0+1}" for j in range(8)]
    else: t += [f"v_pk_mul_f32 {vr(o+j,2)}, {vr(o+j,2)}, {vr(vT0+1,2)} op_sel_hi:[1,0]" for j in range(0, 8, 2)]
    t += [f"v_cvt_pk_bf16_f32 v{o+12+j}, v{o+2*j}, v{o+2*j+1}" for j in range(4)]
    if SENT: t += [f"v_min_u32 v{o+12}, -2, v{o+12}"]
    return t
E([pv(17, 0), pv(17, 1)])
if OPT["stamps"] == 12: E(f"v_writelane_b32 v231, s88, {nstamp[0]}"); nstamp[0] += 1
E("\n".join(norm(0)))
BLO, BHI = fx(2.0 ** -40), fx(2.0 ** 40)
E(f"""
s_mov_b32 s{sT}, {BLO}
s_mov_b32 s{sTb}, {BHI}
v_min_f32 v{vT0}, v{vO[0]+8}, v{vO[1]+8}
v_max_f32 v{vT1}, v{vO[0]+8}, v{vO[1]+8}
v_cmp_nle_f32 vcc, s{sT}, v{vT0}
v_cmp_nge_f32 s[4:5], s{sTb}, v{vT1}
v_cmp_u_f32 s[6:7], v{vO[0]+8}, v{vO[1]+8}
s_or_b64 vcc, vcc, s[4:5]
s_or_b64 vcc, vcc, s[6:7]
s_cbranch_vccnz L_truemax
""")
prog[-1].post = "\nL_att_done:"
E(store4(vO[0] + 12, vOst, "0", 0, "o"))
N1 = O("n1", 1)
if not N1:
    E("\n".join(norm(1)))
    E(store4(vO[1] + 12, vOst, "0", 1024, "o"))
    stamp((6, 12))
    E("s_barrier")
stamp((1, 5, 6, 12))

sa, sb_, sc_, sd_, se_, sf_ = sT, sTb, sTc, sTd, sX, sQ
tm = [f"""
L_truemax:
    s_waitcnt vmcnt(0) lgkmcnt(0)
    s_nop 15
    s_sub_i32 s{sa}, 8, s{sTB}
    s_max_i32 s{sa}, s{sa}, 0
    s_mov_b32 s{sb_}, 0
L_tm_head:
    s_cmp_eq_u32 s{sb_}, 0
    s_cselect_b64 vcc, -1, 0
    s_nop 4
"""]
tm += [f"    v_cndmask_b32 v{vP[1]+j}, v{vQ+4+j}, v{vQ+j}, vcc\n" for j in range(4)]
tm.append(f"""
    v_mov_b32 v{vT0}, 0xff000000
    s_mov_b32 s{sd_}, 0
L_tm_pass:
    s_mov_b32 s{sc_}, s{sa}
""")
tm += [f"    v_mov_b32 v{vS[1]+j}, 0\n" for j in range(16)]
tm.append(f"""
L_tm_blk:
    s_lshl_b32 s{se_}, s{sc_}, 12
    s_lshl_b32 s{sf_}, s{sb_}, 10
    s_add_u32 s{se_}, s{se_}, s{sf_}
    v_add_u32 v{vT1}, s{se_}, v{vKa}
    ds_read_b128 {ar(aK,4)}, v{vT1}
    s_sub_u32 s{se_}, 9, s{sc_}
    v_mul_lo_u32 v{vT2}, s{se_}, v{vVinc}
    v_sub_u32 v{vT2}, v{vVa}, v{vT2}
    v_add_u32 v{vT2}, s{sf_}, v{vT2}
    ds_read_b64_tr_b16 {ar(aV,2)}, v{vT2}
    ds_read_b64_tr_b16 {ar(aV+2,2)}, v{vT2} offset:256
    ds_read_b64_tr_b16 {ar(aV+4,2)}, v{vT2} offset:512
    ds_read_b64_tr_b16 {ar(aV+6,2)}, v{vT2} offset:768
    s_waitcnt lgkmcnt(0)
    s_cmp_eq_u32 s{sc_}, 0
    s_cbranch_scc1 L_tm_far
    s_cmp_eq_u32 s{sc_}, 8
    s_cbranch_scc1 L_tm_diag
    {MF} {vr(vS[0],16)}, {ar(aK,4)}, {vr(vP[1],4)}, 0
    s_branch L_tm_s
L_tm_far:
    {MF} {vr(vS[0],16)}, {ar(aK,4)}, {vr(vP[1],4)}, {vr(vBF,16)}
    s_branch L_tm_s
L_tm_diag:
    {MF} {vr(vS[0],16)}, {ar(aK,4)}, {vr(vP[1],4)}, {vr(vBD,16)}
L_tm_s:
    s_nop 15
    s_cmp_eq_u32 s{sd_}, 0
    s_cbranch_scc0 L_tm_exp
""")
tm += [f"    v_max_f32 v{vT0}, v{vT0}, v{vS[0]+j}\n" for j in range(16)]
tm.append("    s_branch L_tm_next\nL_tm_exp:\n")
tm += [f"    v_sub_f32 v{vS[0]+j}, v{vS[0]+j}, v{vT0}\n" for j in range(16)]
tm += [f"    v_exp_f32 v{vS[0]+j}, v{vS[0]+j}\n" for j in range(16)]
tm.append("    s_nop 1\n")
tm += [f"    v_cvt_pk_bf16_f32 v{vP[0]+j}, v{vS[0]+2*j}, v{vS[0]+2*j+1}\n" for j in range(8)]
tm.append(f"""
    s_nop 1
    {MF} {vr(vS[1],16)}, {ar(aV,4)}, {vr(vP[0],4)}, {vr(vS[1],16)}
    {MF} {vr(vS[1],16)}, {ar(aV+4,4)}, {vr(vP[0]+4,4)}, {vr(vS[1],16)}
    s_nop 15
L_tm_next:
    s_add_u32 s{sc_}, s{sc_}, 1
    s_cmp_lt_u32 s{sc_}, 9
    s_cbranch_scc1 L_tm_blk
    s_cmp_eq_u32 s{sd_}, 0
    s_cbranch_scc0 L_tm_fin
    v_mov_b32 v{vT1}, v{vT0}
    s_nop 1
    v_permlane32_swap_b32 v{vT0}, v{vT1}
    s_nop 1
    v_max_f32 v{vT0}, v{vT0}, v{vT1}
    s_mov_b32 s{sd_}, 1
    s_branch L_tm_pass
L_tm_fin:
    s_cmp_eq_u32 s{sb_}, 0
    s_cbranch_scc0 L_tm_h1
""")
tm += [f"    v_mov_b32 v{vO[0]+j}, v{vS[1]+j}\n" for j in range(16)]
tm.append(f"    s_mov_b32 s{sb_}, 1\n    s_branch L_tm_head\nL_tm_h1:\n")
tm += [f"    v_mov_b32 v{vO[1]+j}, v{vS[1]+j}\n" for j in range(16)]
tm += ["    " + x + "\n" for x in norm(0)]
tm.append(f"    s_nop 1\n    s_branch L_att_done\n")
rare.append("".join(tm))

def oload(j2, tt):
    post = L(f"s_add_u32 s{sWS}, s{sWS}, 1024\ns_and_b32 s{sWS}, s{sWS}, 0x1fff")
    return [I(f"buffer_load_dwordx4 {vr(vOF+8*j2+4*tt,4)}, v{vOo+tt}, {srd(SWS)}, s{sWS} offen sc1")] + post
OF, OP, OC = O("oflag", 6), O("opoll", 12), O("ochk", 17)
if NW2V == 0: E(w2_reads(0))
S3 = Sched()
order = [(j, ct, tt) for j in range(22) for ct in range(2) for tt in range(2)]
order += [(j, ct, 0) for j in range(22, 30) for ct in range(2)]
CTM = O("ctm", 0)
order += [(j, ct, 1) for ct in range(2) for j in range(22, 30)] if CTM else [(j, ct, 1) for j in range(22, 30) for ct in range(2)]
def w2f(j, ct): return vr(W2V[2 * j + ct], 4) if j < NW2V else (ar(aW2 + 8 * (j & 1) + 4 * ct, 4) if j < 22 else ar(8 * (j - 22) + 4 * ct, 4))
for n, (j, ct, tt) in enumerate(order):
    acc = ar(aACC + 32 * ct + 16 * tt, 16)
    bb = ar(aH + 8 * j + 4 * tt, 4) if j < 22 else vr(vOF + 8 * (j - 22) + 4 * tt, 4)
    xr = None
    if ct == 0 and tt == 0 and j >= NW2V: xr = ar(aW2 + 8 * (j & 1), 8) if j < 22 else ar(8 * (j - 22), 8)
    aa = w2f(j, ct)
    S3.pos(I(f"{MF} {acc}, {aa}, {bb}, {'0' if j == 0 else acc}", xr=xr), 6, stampq((5,)) if (n % 8 == 0) else [])
for j in range(30):
    if NW2V <= j + 1 < 23: S3.spread(w2_reads(j + 1), 4 * j, 4 * j + 2, 0)
    if 23 <= j: S3.put(88 + 2 * (j - 24) if j > 23 else 86, w2_reads(j), 0)
    if j >= NW2V and j + 12 < 22:
        S3.put(4 * j + 2, [flat(w2_dma(j + 12))], 1)
S3.pre[0] += L(f"s_lshl_b32 s{sM0K}, s{sW}, 14\ns_mul_i32 s{sT}, s{sW}, 10240\ns_sub_u32 s{sT}, s{sT}, {WB}\nv_add_u32 v{vPa}, s{sT}, v{vW3r}")
if N1:
    S3.spread(L("\n".join(norm(1))) + [store4(vO[1] + 12, vOst, "0", 1024, "o")], 0, 3, 2)
    S3.pre[4] += L("s_barrier")
if NW2V == 10: S3.spread(hl_late + flat([w2_dma(j) for j in range(22, 30)]), 4 if N1 else 0, O('hle', 44), 1, one)
else:
    S3.spread(hl_late, 4, 12, 1, one)
    S3.spread([flat(w2_dma(j)) for j in range(22, 30)], O('wos', 4), O('hle', 44), 1, one)
ol = [oload(j2, tt) for tt in range(2) for j2 in range(8)]
if not SENT:
    S3.put(4 * OF, [flag(3, "o", vFl1)], 1)
    S3.put(4 * OP, [poll_issue(vPb)], 1)
    S3.put(4 * OC, [poll_check("o", SWS, vPoll, vPb)], 1)
    S3.spread(ol, 4 * OC + 1, 4 * O("oend", 24), 1, one)
else:
    OS, OE, OK_ = O("os", 11), O("oe", 20), O("ok", 21)
    S3.spread(ol, 4 * OS, 4 * OE, 1, one)
    for tt in range(2):
        rg = [vOF + 8 * j + 4 * tt for j in range(8)]
        chk = [f"v_max3_u32 v{vT0}, v{rg[0]}, v{rg[1]}, v{rg[2]}", f"v_max3_u32 v{vT0}, v{vT0}, v{rg[3]}, v{rg[4]}", f"v_max3_u32 v{vT0}, v{vT0}, v{rg[5]}, v{rg[6]}", f"v_max_u32 v{vT0}, v{vT0}, v{rg[7]}", f"v_cmp_eq_u32 vcc, -1, v{vT0}"]
        br = L(f"s_cbranch_vccnz L_spin_o{tt}"); br[-1].post = f"\nL_ok_o{tt}:"
        S3.put(87 if tt == 0 else 103, [L("\n".join(chk)) + br], 2)
        rare.append(f"""
L_spin_o{tt}:
    s_mov_b32 s{sSPIN}, {OPT['spin']}
    s_nop 7
L_spin2_o{tt}:
""" + (f"    v_writelane_b32 v231, s{sSPIN}, {29+tt}\n" if OPT["stamps"] else "") + "".join("    " + x.text + "\n" for g in ol[8*tt:8*tt+8] for x in g) + "    s_waitcnt vmcnt(0) lgkmcnt(0)\n" + "".join("    " + x + "\n" for x in chk) + f"""    s_nop 4
    s_cbranch_vccz L_ok_o{tt}
    s_sleep 1
    s_sub_u32 s{sSPIN}, s{sSPIN}, 1
    s_cmp_lg_u32 s{sSPIN}, 0
    s_cbranch_scc1 L_spin2_o{tt}
    s_endpgm
""")
    assert 4 * OE <= 87
S3.spread(L("\n".join(f"v_xor_b32 v{vU+i}, {32*i}, v{vRw}" for i in range(4)) + f"\nv_xor_b32 v{vU+4}, 16, v{vRr}"), 4, 8, 2)
def pwrite(ct, tt): return [I(f"ds_write_b128 v{vU+i}, {ar(aACC+32*ct+16*tt+4*i,4)} offset:{tt*8192+ct*128}") for i in range(4)]
R0 = 128
def fin_reads(tt): return [I(f"ds_read_b128 {vr(R0+8*p+4*n,4)}, v{vRr if n == 0 else vU+4} offset:{p*16384+tt*8192}") for p in range(4) for n in range(2)]
def fin_math(tt, pk):
    x = R0 + 64 + 8 * tt; o = []
    for p in range(4):
        if pk: o += [I(f"v_pk_add_f32 {vr(x+j,2)}, {vr(x+j,2)}, {vr(R0+8*p+j,2)}") for j in range(0, 8, 2)]
        else: o += [I(f"v_add_f32 v{x+j}, v{x+j}, v{R0+8*p+j}") for j in range(8)]
    o += [I(f"v_cvt_pk_bf16_f32 v{R0+32+4*tt+j}, v{x+2*j}, v{x+2*j+1}") for j in range(4)]
    o += [I(f"buffer_store_dwordx4 {vr(R0+32+4*tt,4)}, v{vOut+tt}, {srd(SOUT)}, 0 offen sc1")]
    return o
S3.spread(L("\n".join(f"v_lshlrev_b32 v{R0+64+2*j}, 16, v{vXres+j}\nv_and_b32 v{R0+65+2*j}, 0xffff0000, v{vXres+j}" for j in range(8))), 4 * 12, 4 * 16, 2)
FB = O("fb", 110)
S3.spread(pwrite(0, 0) + pwrite(1, 0), 105, 108, 0)
S3.pre[FB] += L("s_waitcnt lgkmcnt(0)\ns_barrier")
S3.spread(fin_reads(0), FB, FB + 2, 0)
S3.spread(fin_math(0, False), FB + 3, 120, 2)
if CTM: S3.spread(pwrite(0, 1), 116, 120, 0)
if OPT["stamps"] == 13:
    for jj in range(29):
        k = nstamp[0]; nstamp[0] += 1
        S3.put(4 * jj + 2, [I(f"{TIMER} s[88:89]")], 0)
        S3.put(4 * jj + 4, [I(f"v_writelane_b32 v231, s88, {k}")], 2)
E(S3.emit())
stamp((1, 5))
E(pwrite(1, 1) if CTM else pwrite(0, 1) + pwrite(1, 1))
E("s_waitcnt lgkmcnt(0)\ns_barrier")
E(fin_reads(1) + fin_math(1, True))
if OPT["stamps"]:
    stamp()
    E(f"s_waitcnt vmcnt(0)")
    stamp((1, 2, 3, 4, 5, 6, 7, 9, 10, 11, 12, 13, 15, 17))
    E(f"s_lshl_b32 s{sT}, s2, 2\ns_add_u32 s{sT}, s{sT}, s{sW}\ns_lshl_b32 s{sT}, s{sT}, 7\ns_add_u32 s{sT}, s{sT}, {ST0}\nv_lshlrev_b32 v{vT0}, 2, v{vL}\nv_lshrrev_b32 v{vT1}, 5, v{vL}\nv_lshl_add_u32 v{vT0}, v{vT1}, 28, v{vT0}")
    E(f"buffer_store_dword v231, v{vT0}, {srd(SWS)}, s{sT} offen")
if O("xf", 0):
    E("s_waitcnt vmcnt(0)"); stamp()
    if OPT["xf"] == 99: E("s_mov_b32 s90, s88")
    E(("s_sub_u32 s90, s90, s92\ns_lshr_b32 s90, s90, 3" if O("xfc", 0) else "s_sub_u32 s90, s90, s88\ns_lshl_b32 s90, s90, 2") + "\ns_add_u32 s90, s90, 4000\nL_es:\ns_memrealtime s[4:5]\ns_waitcnt lgkmcnt(0)\ns_sub_u32 s4, s4, s88\ns_cmp_lt_u32 s4, s90\ns_cbranch_scc1 L_es")
E("L_end:\ns_endpgm")

lines = finalize(prog, verbose=True)
hdr = f"""; out = x + attn(LN(x)) @ wo + (gelu(LN(x) @ w_gate) * (LN(x) @ w_up)) @ w_down      (one launch, 256 workgroups, one per CU)
; kernarg: x, wqkv, wo, (unused), w_gate, w_up, w_down, out, debug, ws
; @launch grid=(256,1,1) block=(256,1,1) lds={LDSSZ}
.amdgcn_target "amdgcn-amd-amdhsa--gfx950"
.text
.globl {KNAME}
.p2align 8
.type {KNAME},@function
{KNAME}:
"""
tail = f"""
.fill (({KNAME}+33024-.)/4), 4, 0xbf800000
    s_endpgm
.section .rodata,"a"
.p2align 6
.amdhsa_kernel {KNAME}
  .amdhsa_next_free_vgpr 512
  .amdhsa_next_free_sgpr 102
  .amdhsa_accum_offset 256
  .amdhsa_group_segment_fixed_size 0
  .amdhsa_kernarg_size 80
  .amdhsa_user_sgpr_count 2
  .amdhsa_user_sgpr_kernarg_segment_ptr 1
  .amdhsa_system_sgpr_workgroup_id_x 1
.end_amdhsa_kernel
"""
open(sys.argv[1], "w").write(hdr + "\n".join(lines) + "\n" + "".join(rare) + tail)
```

```python
import sys, math, struct
from asmlib import I, Ins, finalize, weave, Sched

KNAME = "parallel_sum__sliding_block__glu_gated_geglu__prompt_kernel"
OPT = dict(stamps=0, spin=200000)
for a in sys.argv[2:]:
    k, v = a.split("="); OPT[k] = int(v)
def O(k, d): return OPT.get(k, d)

HUGE = 0x40000000
H0 = 4 << 20
HSTR = 88 * 1024
O0 = 10 << 20
FL0 = 12 << 20
ST0 = FL0 + (64 << 10)
SP0 = FL0 + (256 << 10)
WSSZ = 13 << 20
WB = 65536
CS1 = 0; C1STR = 520
STRIP = 49152
CS2 = 53248; CSTR = 1040
LDSSZ = 163840

STC = 4
STB = 18 + 2
sKV = [8, 9, 10]; sRHO, sWB, sWS, sAL, sWL, sMSK, sGp = 11, 12, 13, 14, 15, 16, 17
SX, SQ, SG, SU, SD, SO, SOUT, SWS, SDBG = 24, 28, 32, 36, 40, 44, 48, 52, 56
sW, sRB, sCB, sTB2, sNB, sT0, sT2, sH2, sTB = 3, 60, 61, 62, 63, 64, 65, 66, 67
sX, sQ, sG, sM0X, sM0W = 68, 69, 70, 71, 72
sT, sTb, sTc, sTd = 73, 74, 75, 76
sPK, sPH, sM0D, sD, sSPIN = 77, 78, 80, 81, 82
sPHI, sPH2, sC, sHUGE, sA = 83, 84, 85, 86, 87
sM0K = 79; sSP, sSG = 0, 1
STREG = list(range(90, 94)) + list(range(18, 24))
sHE = [18, 19, 20, 21, 22, 23, 92, 93]
sWE = 94
sLH = [64, 65, 16]; sLW = [17, 14, 15]
def srd(n): return "s[%d:%d]" % (n, n + 3)
def vr(a, n): return "v[%d:%d]" % (a, a + n - 1)
def ar(a, n): return "a[%d:%d]" % (a, a + n - 1)

vL = 0; vT0, vT1, vT2 = 1, 2, 3
vXo = 4; vQo = 8; vGo = 10; vXr = 12; vXp = 16; vWr = 20
vK = [4, 8]
vBx = [12, 16]; vG = 20
vQo2 = 28; vGo2 = 30; vW2r = 32
vSum = 40; vCS1 = 44; vCS2 = 48
vL16, vKVst, vHst, vFl2, vCSw1, vCSw2, vPoll, vInit, vCSr, vSPo, vDo = 52, 53, 54, 55, 56, 57, 58, 59, 60, 61, 62
ACC1 = 64; ACC2 = 160
vXT = 160; vSL = 176
vKa, vVa, vVinc, vOst, vKVo, vPa, vPb, vW3r = 208, 209, 210, 211, 212, 213, 214, 215
vOut, vEo, vAo, vOo, vFl1, vRw, vRr, vPs, vQS = 217, 219, 221, 223, 225, 226, 227, 228, 229
vU = 232; vCSA = [240, 244, 248]
vXres = 28
vBF = 64; vBD = 80; vS = [96, 112]; vP = [128, 136]; vQ = 144; vO = [160, 176]
vOF = 64
aSTV = 200; aMSK = 216
aX = 0; aSEL = 128; aXP = 140; aWF = 152
aH = 0; aW2 = 176; aACC = 192; aK = 192; aV = 200

prog = []; rare = []
def L(txt, **kw): return [I(ln.strip(), **kw) for ln in txt.strip().split("\n") if ln.strip() and not ln.strip().startswith(";")]
def E(x, **kw):
    if isinstance(x, str): prog.extend(L(x, **kw))
    elif isinstance(x, Ins): prog.append(x)
    else: prog.extend(x)
def flat(g): return [x for y in g for x in y]
one = lambda g: 1
nstamp = [0]; xfc = [0]
TIMER = "s_memrealtime" if O("rt", 0) else "s_memtime"
def stampq(sets=(1,)):
    if O("xf", 0):
        if 1 in sets:
            xfc[0] += 1
            if xfc[0] == OPT["xf"]: return L("s_waitcnt lgkmcnt(0)\n%s s[90:91]\ns_waitcnt lgkmcnt(0)" % ("s_memtime" if O("xfc", 0) else "s_memrealtime"))
        return []
    if OPT["stamps"] == 14 and 1 in sets:
        k = nstamp[0]; nstamp[0] += 2
        return L("s_waitcnt lgkmcnt(0)\ns_memtime s[88:89]\ns_memrealtime s[90:91]\ns_waitcnt lgkmcnt(0)\nv_writelane_b32 v231, s88, %d\nv_writelane_b32 v231, s90, %d" % (k, k + 1))
    if OPT["stamps"] in sets:
        k = nstamp[0]; nstamp[0] += 1
        return L("s_waitcnt lgkmcnt(0)\n%s s[88:89]\ns_waitcnt lgkmcnt(0)\nv_writelane_b32 v231, s88, %d" % (TIMER, k))
    return []
def stamp(sets=(1,)): E(stampq(sets))
def fx(f): return "0x%08x" % struct.unpack("<I", struct.pack("<f", f))[0]
MF = "v_mfma_f32_32x32x16_bf16"; MS = "v_mfma_f32_16x16x32_bf16"
HOME = dict(Ka=vKa, Va=vVa, Vinc=vVinc, Ost=vOst, KVo=vKVo, Pa=vPa, Pb=vPb, W3r=vW3r, W3s=vW3r+1, Out=vOut, Out1=vOut+1, Eo=vEo, Eo1=vEo+1, Ao=vAo, Ao1=vAo+1, Oo=vOo, Oo1=vOo+1, Fl1=vFl1, Rw=vRw, Rr=vRr)
def park(name, src): return f"v_mov_b32 v{HOME[name]}, {src}\n"
def dma(voff, S, soff, imm, tag, flags="", need=None):
    if tag in ("c0", "c1", "c2", "c3", "c4", "c5", "c6", "c7")[:O("ntw", 0)] and S != SX: flags = "nt"
    if tag in ("c0", "c1", "c2", "c3", "c4", "c5", "c6", "c7")[:O("ntx", 0)] and S == SX: flags = "nt"
    if tag in ("p0", "p1", "p2", "p3")[:O("ntp", 0)]: flags = "nt"
    o = (" offset:%d" % imm) if imm else ""
    return I(f"buffer_load_dwordx4 v{voff}, {srd(S)}, {soff} offen{o} {flags} lds", tag=tag, need=need)
def glue(q):
    out = []; cur = []
    for n, x in enumerate(q):
        if isinstance(x, list):
            assert not cur
            out.append(x); continue
        cur.append(x)
        nxt = q[n + 1] if n + 1 < len(q) else None
        if x.op.startswith("s_cmp") or (nxt is not None and not isinstance(nxt, list) and nxt.op.startswith("s_cselect")): continue
        out.append(cur); cur = []
    if cur: out.append(cur)
    return out

def t0_of(dst, cb, tmp):
    tab = sum(((c >= 7) + (c >= 8) + (c >= 14) + (c >= 15) & 3) << (2 * c) for c in range(16))
    return f"""s_lshl_b32 s{tmp}, s{cb}, 1
s_lshr_b32 s{tmp}, 0x{tab:08x}, s{tmp}
s_and_b32 s{tmp}, s{tmp}, 3
s_mul_i32 s{dst}, s{cb}, 3
s_sub_u32 s{dst}, s{dst}, s{tmp}
s_min_u32 s{dst}, s{dst}, 41
"""
def mksrd(n, p, size): return f"s_mov_b32 s{n}, s{p}\ns_mov_b32 s{n+1}, s{p+1}\ns_mov_b32 s{n+2}, {size}\ns_mov_b32 s{n+3}, 0x20000\n"
E(f"""
s_cmp_ge_u32 s2, 256
s_cbranch_scc1 L_end
s_load_dwordx2 s[{SX}:{SX+1}], s[0:1], 0
s_load_dwordx2 s[{SQ}:{SQ+1}], s[0:1], 8
s_load_dwordx2 s[{SG}:{SG+1}], s[0:1], 32
s_load_dwordx2 s[{SU}:{SU+1}], s[0:1], 40
""")
if OPT["stamps"]: E(TIMER + " s[88:89]")
if OPT["stamps"] == 14: E("s_memrealtime s[90:91]")
if O("xf", 0): E("s_memrealtime s[88:89]\ns_memtime s[92:93]")
E(f"""
s_getpc_b64 s[40:41]
s_lshr_b32 s{sTb}, s2, 3
s_lshl_b32 s44, s{sTb}, 10
s_add_u32 s42, s44, 1024
s_mov_b32 s43, 0x20000
v_lshlrev_b32 v{vT1}, 7, v0
buffer_load_dword v255, v{vT1}, s[40:43], s44 offen
v_lshrrev_b32 v{vT0}, 6, v0
v_and_b32 v{vL}, 63, v0
v_readfirstlane_b32 s{sW}, v{vT0}
s_bfe_u32 s{sT}, s2, 0x10002
s_and_b32 s{sTd}, s{sTb}, 7
s_lshl3_add_u32 s{sRB}, s{sT}, s{sTd}
s_and_b32 s{sT}, s2, 3
s_lshr_b32 s{sTd}, s2, 6
s_lshl2_add_u32 s{sCB}, s{sT}, s{sTd}
s_add_u32 s{sC}, s{sCB}, s{sRB}
s_and_b32 s{sC}, s{sC}, 3
s_lshl_b32 s{sX}, s{sC}, 8
s_mul_i32 s{sQ}, s{sC}, {2*196608}
s_mul_i32 s{sG}, s{sC}, {2*176128}
s_lshl2_add_u32 s{sTB}, s{sRB}, s{sW}
s_lshl_b32 s{sT}, s{sTB}, 15
s_lshl_b32 s{sM0X}, s{sW}, 12
s_lshl_b32 s{sM0W}, s{sW}, 11
s_bitset1_b32 s{sM0W}, 16
v_lshrrev_b32 v{vT0}, 3, v{vL}
v_lshl_add_u32 v{vT0}, v{vT0}, 10, s{sT}
v_and_b32 v{vT1}, 7, v{vL}
v_lshrrev_b32 v{vT2}, 4, v{vL}
v_xor_b32 v{vT1}, v{vT1}, v{vT2}
v_lshl_add_u32 v{vXo}, v{vT1}, 4, v{vT0}
v_xor_b32 v{vXo+1}, 64, v{vXo}
v_add_u32 v{vXo+1}, {7*1024}, v{vXo+1}
v_add_u32 v{vXo+2}, {14*1024}, v{vXo}
v_add_u32 v{vXo+3}, {14*1024}, v{vXo+1}
{t0_of(sT0, sCB, sT)}v_lshrrev_b32 v{vT0}, 5, v{vL}
v_bfe_u32 v{vT1}, v{vL}, 2, 2
v_lshl_add_u32 v{vT0}, v{vT0}, 2, v{vT1}
v_and_b32 v{vT1}, 16, v{vL}
v_and_b32 v{vT2}, 3, v{vL}
v_lshl_add_u32 v{vT1}, v{vT2}, 2, v{vT1}
v_lshlrev_b32 v{vT1}, 2, v{vT1}
v_lshl_add_u32 v{vDo}, v{vT0}, 10, v{vT1}
s_lshl_b32 s{sT}, s{sW}, 4
v_add_u32 v{vT0}, s{sT}, v{vT0}
s_and_b32 s{sT}, s{sCB}, 1
s_lshr_b32 s{sTd}, s{sCB}, 1
s_lshl3_add_u32 s{sT}, s{sT}, s{sTd}
s_add_u32 s{sT}, s{sT}, 8
s_lshl_b32 s{sT}, s{sT}, 7
s_movk_i32 s{sTd}, 3072
v_mad_u32_u24 v{vQo}, v{vT0}, s{sTd}, v{vT1}
v_add_u32 v{vQo}, s{sT}, v{vQo}
v_add_u32 v{vQo+1}, {8*3072-1024}, v{vQo}
s_lshl_b32 s{sT}, s{sT0}, 6
s_movk_i32 s{sTd}, 2752
v_mad_u32_u24 v{vGo}, v{vT0}, s{sTd}, v{vT1}
v_add_u32 v{vGo}, s{sT}, v{vGo}
v_add_u32 v{vGo+1}, {8*2752-1024}, v{vGo}
s_mov_b32 s{SX+2}, 2097152
s_mov_b32 s{SX+3}, 0x20000
s_mov_b32 s{SQ+2}, 1572864
s_mov_b32 s{SQ+3}, s{SX+3}
s_mov_b32 s{SG+2}, 1409024
s_mov_b32 s{SG+3}, s{SX+3}
s_mov_b32 s{SU+2}, s{SG+2}
s_mov_b32 s{SU+3}, s{SX+3}
s_mov_b32 m0, s{sM0X}
""")
if OPT["stamps"] == 17: E("s_waitcnt lgkmcnt(0)\n" + TIMER + " s[94:95]")
NI = O("ni", 9)
g0 = [[dma(vXo + i, SX, f"s{sX}", 1024 * i, "c0")] for i in range(4)]
g0[3].append(I(f"s_mov_b32 m0, s{sM0W}"))
g0 += [[dma(vQo, SQ, f"s{sQ}", 0, "c0")], [dma(vQo + 1, SQ, f"s{sQ}", 1024, "c0"), I(f"s_add_u32 m0, s{sM0W}, 8192")]]
g0 += [[dma(vGo, SG, f"s{sG}", 0, "c0")], [dma(vGo + 1, SG, f"s{sG}", 1024, "c0"), I(f"s_add_u32 m0, s{sM0W}, 16384")]]
g0 += [[dma(vGo, SU, f"s{sG}", 0, "c0")], [dma(vGo + 1, SU, f"s{sG}", 1024, "c0")]]
E(flat(g0[:NI])); g0 = g0[NI:]
E("""
s_load_dwordx2 s[8:9], s[0:1], 16
s_load_dwordx4 s[16:19], s[0:1], 48
s_load_dwordx4 s[20:23], s[0:1], 64
""")
if OPT["stamps"]:
    E("v_mov_b32 v231, -1\nv_writelane_b32 v231, s88, 0"); nstamp[0] = 1
    if OPT["stamps"] == 14: E("v_writelane_b32 v231, s90, 1"); nstamp[0] = 2
if OPT["stamps"] == 17:
    E(TIMER + " s[96:97]\ns_waitcnt lgkmcnt(0)\nv_writelane_b32 v231, s94, 1\nv_writelane_b32 v231, s96, 2"); nstamp[0] = 3
def table(order): return sum(c << (4 * i) for i, c in enumerate(order))
E(f"""
s_and_b32 s{sT}, s2, 7
s_and_b32 s{sTd}, s{sTb}, 3
s_lshl2_add_u32 s{sTB2}, s{sT}, s{sTd}
s_lshr_b32 s{sNB}, s{sTb}, 2
s_mov_b32 s{sPHI}, 0x76543210
""")
for r in range(1, 4): E(f"s_cmp_eq_u32 s{sC}, {r}\ns_cselect_b32 s{sPHI}, 0x{table([(c + 2 * r) & 7 for c in range(8)]):08x}, s{sPHI}")

def p1_dma(c):
    sl = c & 3; t = "c%d" % c
    g = []
    g.append(L(f"s_bfe_u32 s{sC}, s{sPHI}, {0x30000 + 4*c}\ns_add_u32 m0, s{sM0X}, {sl*16384}\ns_lshl_b32 s{sX}, s{sC}, 7") + [dma(vXo, SX, f"s{sX}", 0, t)])
    g += [[dma(vXo + i, SX, f"s{sX}", 1024 * i, t)] for i in range(1, 4)]
    g.append(L(f"s_add_u32 m0, s{sM0W}, {sl*24576}\ns_mul_i32 s{sQ}, s{sC}, 196608") + [dma(vQo, SQ, f"s{sQ}", 0, t)])
    g.append([dma(vQo + 1, SQ, f"s{sQ}", 1024, t), I(f"s_add_u32 m0, s{sM0W}, {sl*24576+8192}")])
    g.append(L(f"s_mul_i32 s{sG}, s{sC}, 176128") + [dma(vGo, SG, f"s{sG}", 0, t)])
    g.append([dma(vGo + 1, SG, f"s{sG}", 1024, t), I(f"s_add_u32 m0, s{sM0W}, {sl*24576+16384}")])
    g.append([dma(vGo, SU, f"s{sG}", 0, t)])
    g.append([dma(vGo + 1, SU, f"s{sG}", 1024, t)])
    return g
def p2_dma(p):
    t = "p%d" % p
    g = []
    g.append(L(f"s_bfe_u32 s{sC}, s{sPH2}, {0x30000 + 8*p}\ns_add_u32 m0, s{sM0W}, {p*24576}\ns_mul_i32 s{sQ}, s{sC}, 196608") + [dma(vQo2, SQ, f"s{sQ}", 0, t)])
    g.append([dma(vQo2 + 1, SQ, f"s{sQ}", 1024, t), I(f"s_add_u32 m0, s{sM0W}, {p*24576+8192}")])
    g.append(L(f"s_mul_i32 s{sG}, s{sC}, 176128") + [dma(vGo2, SG, f"s{sG}", 0, t)])
    g.append([dma(vGo2 + 1, SG, f"s{sG}", 1024, t), I(f"s_add_u32 m0, s{sM0W}, {p*24576+16384}")])
    g.append([dma(vGo2, SU, f"s{sG}", 0, t)])
    g.append([dma(vGo2 + 1, SU, f"s{sG}", 1024, t)])
    return g

E(mksrd(SWS, 22, WSSZ) + mksrd(SDBG, 20, 256) + f"""
s_mov_b32 s{sHUGE}, {HUGE}
v_lshlrev_b32 v{vL16}, 4, v{vL}
s_cmp_eq_u32 s2, 0
s_cbranch_scc1 L_zero
""")
prog[-1].post = "\nL_zero_done:"
rare.append(f"""
L_zero:
    s_mul_i32 s{sT}, s{sW}, 10240
    s_add_u32 s{sT}, s{sT}, {FL0}
    s_add_u32 s{sTb}, s{sT}, 4096
    s_add_u32 s{sTc}, s{sT}, 8192
    v_mov_b32 v{vXT}, 0
    v_mov_b32 v{vXT+1}, 0
    v_mov_b32 v{vXT+2}, 0
    v_mov_b32 v{vXT+3}, 0
""" + "".join(f"    buffer_store_dwordx4 {vr(vXT,4)}, v{vL16}, {srd(SWS)}, s{[sT, sTb, sTc][i>>2]} offen offset:{1024*(i&3)} sc1\n" for i in range(10)) + "    s_branch L_zero_done\n")
stamp((2,))
init_mark = len(prog)
E(mksrd(SD, 16, 1409024) + mksrd(SO, 8, 524288) + mksrd(SOUT, 18, 2097152))
ann = L(f"""
s_cmp_lg_u32 s2, 0
s_cselect_b32 s{sT}, s{sHUGE}, 0
s_lshl_b32 s{sTb}, s{sW}, 2
s_add_u32 s{sT}, s{sT}, s{sTb}
v_mov_b32 v{vT0}, 1
v_lshlrev_b32 v{vT1}, 8, v{vL}
""") + [I(f"buffer_store_dword v{vT0}, v{vT1}, {srd(SDBG)}, s{sT} offen sc1", need=["c0"])]
E(f"""
s_lshr_b32 s{sPH2}, s{sW}, 1
s_lshl_b32 s{sPH2}, s{sPH2}, 2
s_lshr_b32 s{sPH2}, s{sPHI}, s{sPH2}
s_lshr_b32 s{sT}, 0xe0c0, s{sCB}
s_and_b32 s{sT}, s{sT}, 1
s_cselect_b32 s{sMSK}, s{sHUGE}, 0
s_add_u32 s{sT2}, s{sT0}, 2
""")
if O("w2m", 0) == 0:
    w2touch = L(f"""s_mul_i32 s{sT}, s2, 3
s_add_u32 s{sT}, s{sT}, s{sW}
s_mov_b32 s{STC+3}, 0x20000
s_cmp_eq_u32 s{sW}, 3
s_cselect_b32 s{sT}, s2, s{sT}
s_cselect_b32 s{STC}, s{SO}, s{SD}
s_cselect_b32 s{STC+1}, s{SO+1}, s{SD+1}
s_cselect_b32 s{STC+2}, s{SO+2}, s{SD+2}
s_lshl_b32 s{sT}, s{sT}, 11
v_and_b32 v{vT0}, 15, v{vL}
v_lshlrev_b32 v{vT0}, 7, v{vT0}
v_lshrrev_b32 v{vT1}, 4, v{vL}
v_lshl_add_u32 v{vT0}, v{vT1}, 28, v{vT0}
buffer_load_dword v{vPoll}, v{vT0}, {srd(STC)}, s{sT} offen sc1""")
else:
    w2touch = L(f"""s_lshr_b32 s{sTb}, s2, 3
s_lshl_b32 s{sTb}, s{sTb}, 2
s_and_b32 s{sT}, s2, 3
s_add_u32 s{sTb}, s{sTb}, s{sT}
s_mul_i32 s{sT}, s{sTb}, 3
s_add_u32 s{sT}, s{sT}, s{sW}
s_mov_b32 s{STC+3}, 0x20000
s_cmp_eq_u32 s{sW}, 3
s_cselect_b32 s{sT}, s{sTb}, s{sT}
s_cselect_b32 s{STC}, s{SO}, s{SD}
s_cselect_b32 s{STC+1}, s{SO+1}, s{SD+1}
s_cselect_b32 s{STC+2}, s{SO+2}, s{SD+2}
s_lshl_b32 s{sT}, s{sT}, 12
s_and_b32 s{sTb}, s2, 4
s_lshl_b32 s{sTb}, s{sTb}, 27
s_add_u32 s{sT}, s{sT}, s{sTb}
v_and_b32 v{vT0}, 31, v{vL}
v_lshlrev_b32 v{vT0}, 7, v{vT0}
v_lshrrev_b32 v{vT1}, 5, v{vL}
v_lshl_add_u32 v{vT0}, v{vT1}, 28, v{vT0}
buffer_load_dword v{vPoll}, v{vT0}, {srd(STC)}, s{sT} offen sc1""")
if O("xt", 0):
    E(f"""s_lshr_b32 s{sTb}, s2, 3
s_lshl_b32 s{sTb}, s{sTb}, 2
s_and_b32 s{sT}, s2, 3
s_add_u32 s{sTb}, s{sTb}, s{sT}
s_lshl_b32 s{sTb}, s{sTb}, 2
s_add_u32 s{sT}, s{sTb}, s{sW}
s_lshl_b32 s{sT}, s{sT}, 11
s_add_u32 s{sT}, s{sT}, 0x100000
s_and_b32 s{sTb}, s2, 4
s_lshl_b32 s{sTb}, s{sTb}, 27
s_add_u32 s{sT}, s{sT}, s{sTb}
v_and_b32 v{vT0}, 15, v{vL}
v_lshlrev_b32 v{vT0}, 7, v{vT0}
v_lshrrev_b32 v{vT1}, 4, v{vL}
v_lshl_add_u32 v{vT0}, v{vT1}, 28, v{vT0}
buffer_load_dword v254, v{vT0}, {srd(SX)}, s{sT} offen sc1""")
E(f"""
v_and_b32 v{vT0}, 31, v{vL}
v_lshrrev_b32 v{vT1}, 5, v{vL}
v_bfe_u32 v{vT2}, v{vL}, 1, 3
v_xor_b32 v{vT2}, v{vT2}, v{vT1}
v_lshlrev_b32 v{vT0}, 7, v{vT0}
v_lshl_add_u32 v{vT0}, v{vT2}, 4, v{vT0}
v_add_u32 v{vT0}, s{sM0X}, v{vT0}
""")
for s in range(4):
    E(f"s_xor_b32 s{sT}, s{sW}, {s}\ns_lshl_b32 s{sT}, s{sT}, 5\nv_xor_b32 v{vXr+s}, s{sT}, v{vT0}\nv_xor_b32 v{vXp+s}, 4096, v{vXr+s}")
E(f"""
v_bfe_u32 v{vT2}, v{vL}, 2, 2
v_lshlrev_b32 v{vT2}, 6, v{vT2}
v_bfe_u32 v{vT0}, v{vL}, 4, 1
v_lshl_add_u32 v{vT2}, v{vT0}, 5, v{vT2}
v_and_b32 v{vT0}, 3, v{vL}
v_lshl_add_u32 v{vT2}, v{vT0}, 3, v{vT2}
v_lshl_add_u32 v{vT0}, v{vT1}, 10, v{vT2}
v_lshl_add_u32 v{vT2}, v{vT1}, 9, v{vT2}
s_and_b32 s{sTc}, s{sW}, 1
s_lshl_b32 s{sTc}, s{sTc}, 8
s_add_u32 s{sTc}, s{sTc}, {WB}
s_mul_i32 s{sT}, s{sW}, 6144
s_add_u32 s{sM0D}, s{sT}, {WB}
v_add_u32 v{vT1}, s{sM0D}, v{vT2}
{park("W3r", f"v{vT1}")}v_add_u32 v{vT1}, 49152, v{vT1}
{park("W3s", f"v{vT1}")}
""")
for s in range(4):
    E(f"""
s_xor_b32 s{sT}, s{sW}, {s}
s_lshl_b32 s{sTb}, s{sT}, 11
s_add_u32 s{sTb}, s{sTb}, s{sTc}
v_add_u32 v{vWr+2*s}, s{sTb}, v{vT0}
v_add_u32 v{vWr+2*s+1}, 49152, v{vWr+2*s}
s_lshl_b32 s{sTb}, s{sT}, 10
s_add_u32 s{sTb}, s{sTb}, {WB}
v_add_u32 v{vW2r+2*s}, s{sTb}, v{vT2}
v_add_u32 v{vW2r+2*s+1}, 49152, v{vW2r+2*s}
""")
E(f"""
v_lshrrev_b32 v{vT0}, 2, v{vL}
s_and_b32 s{sT}, s{sW}, 1
s_lshl_b32 s{sT}, s{sT}, 5
v_add_u32 v{vT0}, s{sT}, v{vT0}
v_and_b32 v{vT1}, 3, v{vL}
v_lshlrev_b32 v{vT1}, 4, v{vT1}
s_lshl_b32 s{sT}, s{sCB}, 6
v_mul_u32_u24 v{vQo2}, 3072, v{vT0}
v_add3_u32 v{vQo2}, v{vQo2}, v{vT1}, s{sT}
v_add_u32 v{vQo2+1}, {16*3072-1024}, v{vQo2}
s_lshl_b32 s{sT}, s{sT2}, 6
v_mul_u32_u24 v{vGo2}, 2752, v{vT0}
v_add3_u32 v{vGo2}, v{vGo2}, v{vT1}, s{sT}
v_add_u32 v{vGo2}, s{sMSK}, v{vGo2}
v_add_u32 v{vGo2+1}, {16*2752-1024}, v{vGo2}
v_and_b32 v{vT0}, 15, v{vL}
v_bfe_u32 v{vT1}, v{vL}, 4, 1
v_sub_u32 v{vT0}, v{vT0}, v{vT1}
v_mov_b32 v{vT1}, 0x3f803f80
""")
for t in range(3):
    E(f"v_cmp_eq_u32 vcc, {2*t}, v{vT0}\nv_cndmask_b32 v{vT2}, 0, v{vT1}, vcc")
    E("\n".join(f"v_accvgpr_write_b32 a{aSEL+4*t+j}, v{vT2}" for j in range(4)))
E(f"""
s_lshl_b32 s{sT}, s{sRB}, 2
s_sub_i32 s{sT}, 8, s{sT}
v_and_b32 v{vT0}, 7, v{vL}
v_lshlrev_b32 v{vT0}, 1, v{vT0}
v_mov_b32 v{vT1}, 0x3f80
v_cmp_le_i32 vcc, s{sT}, v{vT0}
v_cndmask_b32 v{vT2}, 0, v{vT1}, vcc
v_accvgpr_write_b32 a{aSTV}, v{vT2}
v_accvgpr_write_b32 a{aSTV+1}, 0
v_add_u32 v{vT0}, 1, v{vT0}
v_cmp_le_i32 vcc, s{sT}, v{vT0}
v_cndmask_b32 v{vT2}, 0, v{vT1}, vcc
v_cmp_ne_u32 vcc, 15, v{vT0}
v_cndmask_b32 v{vT2}, 0, v{vT2}, vcc
v_accvgpr_write_b32 a{aSTV+2}, v{vT2}
v_accvgpr_write_b32 a{aSTV+3}, 0
v_lshlrev_b32 v{vT0}, 3, v{vL}
s_and_b32 s{sTc}, s{sW}, 1
s_lshr_b32 s{sT}, s{sTB}, 1
s_lshl_b32 s{sTb}, s{sT}, 13
s_add_u32 s{sTb}, s{sTb}, {SP0}
s_lshl_b32 s{sTd}, s{sTc}, 8
v_xor_b32 v{vT1}, s{sTd}, v{vT0}
v_add_u32 v{vSPo}, s{sTb}, v{vT1}
s_lshl_b32 s{sSP}, s{sCB}, 9
s_and_b32 s{sSG}, s{sCB}, 12
s_lshl_b32 s{sSG}, s{sSG}, 9
s_lshl_b32 s{sT}, s{sT}, 8
s_and_b32 s{sTb}, s{sCB}, 12
s_lshl_b32 s{sTb}, s{sTb}, 3
s_add_u32 s{sT}, s{sT}, s{sTb}
s_add_u32 s{sT}, s{sT}, {FL0+4*8192}
v_bfe_u32 v{vT1}, v{vL}, 2, 1
v_and_b32 v{vT2}, 3, v{vL}
v_lshlrev_b32 v{vT2}, 3, v{vT2}
v_lshl_add_u32 v{vT1}, v{vT1}, 7, v{vT2}
v_add_u32 v{vPs}, s{sT}, v{vT1}
s_and_b32 s{sTc}, s{sW}, 1
s_mul_i32 s{sT}, s{sTc}, {8*C1STR}
v_add_u32 v{vCSr}, s{sT}, v{vT0}
s_lshr_b32 s{sTb}, s{sW}, 1
s_lshl_b32 s{sTd}, s{sTb}, 8
s_add_u32 s{sT}, s{sT}, s{sTd}
v_bfe_u32 v{vT0}, v{vL}, 1, 3
v_and_b32 v{vT1}, 1, v{vL}
v_lshrrev_b32 v{vT2}, 4, v{vL}
v_lshl_add_u32 v{vT1}, v{vT1}, 2, v{vT2}
v_mul_u32_u24 v{vT2}, {C1STR}, v{vT0}
v_lshl_add_u32 v{vT2}, v{vT1}, 5, v{vT2}
v_add_u32 v{vCSw1}, s{sT}, v{vT2}
s_lshl_b32 s{sT}, s{sTb}, 9
s_lshl_b32 s{sTd}, s{sTc}, 3
s_add_u32 s{sT}, s{sT}, s{sTd}
v_mul_u32_u24 v{vT2}, {CSTR}, v{vT0}
v_lshl_add_u32 v{vT2}, v{vT1}, 6, v{vT2}
v_add_u32 v{vCSw2}, s{sT}, v{vT2}
v_and_b32 v{vT0}, 31, v{vL}
v_lshrrev_b32 v{vT1}, 5, v{vL}
v_lshl_add_u32 v{vT0}, v{vT0}, 1, v{vT1}
v_lshlrev_b32 v{vT0}, 4, v{vT0}
v_add_u32 v{vT0}, 2048, v{vT0}
s_and_b32 s{sT}, s{sCB}, 1
s_cmp_eq_u32 s{sT}, 1
s_cselect_b64 vcc, -1, 0
v_cndmask_b32 v{vKVst}, v{vL16}, v{vT0}, vcc
s_and_b32 s{sT}, s{sCB}, 14
s_add_u32 s{sT}, s{sT}, s{sTc}
s_lshl_b32 s{sT}, s{sT}, 18
s_and_b32 s{sTb}, s{sTB}, -2
s_lshl_b32 s{sTd}, s{sTb}, 12
s_add_u32 s{sT}, s{sT}, s{sTd}
v_add_u32 v{vKVst}, s{sT}, v{vKVst}
s_lshl_b32 s{sPK}, s{sTc}, 12
s_mul_i32 s{sT}, s{sTb}, {HSTR}
s_add_u32 s{sT}, s{sT}, {H0}
s_lshl_b32 s{sTd}, s{sCB}, 12
s_add_u32 s{sT}, s{sT}, s{sTd}
s_lshl_b32 s{sTd}, s{sTc}, 11
s_add_u32 s{sT}, s{sT}, s{sTd}
v_add_u32 v{vHst}, s{sT}, v{vL16}
s_mul_i32 s{sPH}, s{sTc}, {HSTR}
s_lshr_b32 s{sT}, s{sCB}, 3
s_lshl_b32 s{sT}, s{sT}, 1
s_sub_u32 s{sT}, s{sCB}, s{sT}
s_lshl_b32 s{sT}, s{sT}, 11
s_add_u32 s{sT}, s{sT}, 65536
s_add_u32 s{sT}, s{sT}, s{sPH}
s_lshl_b32 s{sTd}, s{sCB}, 12
s_sub_u32 s{sT}, s{sT}, s{sTd}
s_lshl_b32 s{sTd}, s{sTc}, 11
s_sub_u32 s{sT}, s{sT}, s{sTd}
s_and_b32 s{sH2}, s{sCB}, 7
s_cmp_lt_u32 s{sH2}, 6
s_cselect_b32 s{sH2}, s{sT}, s{sHUGE}
s_lshl_b32 s{sT}, s{sTb}, 7
s_lshl_b32 s{sTd}, s{sCB}, 3
s_add_u32 s{sTd}, s{sTd}, {FL0}
s_add_u32 s{sT}, s{sT}, s{sTd}
s_lshl_b32 s{sTb}, s{sTc}, 2
s_add_u32 s{sT}, s{sT}, s{sTb}
v_lshlrev_b32 v{vT0}, 7, v{vL}
v_add_u32 v{vT0}, s{sT}, v{vT0}
v_mov_b32 v{vT1}, s{sHUGE}
v_cmp_gt_u32 vcc, 2, v{vL}
v_cndmask_b32 v{vFl2}, v{vT1}, v{vT0}, vcc
s_lshl_b32 s{sT}, s{sTB}, 7
s_add_u32 s{sT}, s{sT}, s{sTd}
v_mov_b32 v{vT0}, s{sT}
v_cmp_eq_u32 vcc, 0, v{vL}
v_cndmask_b32 v{vT0}, v{vT1}, v{vT0}, vcc
{park("Fl1", f"v{vT0}")}
v_mov_b32 v{vSum}, 0
v_mov_b32 v{vSum+1}, 0
v_mov_b32 v{vSum+2}, 0
v_mov_b32 v{vSum+3}, 0
v_mov_b32 v{vCSA[0]+2}, 0
v_mov_b32 v{vCSA[0]+3}, 0
v_mov_b32 v{vCSA[1]+2}, 0
v_mov_b32 v{vCSA[1]+3}, 0
v_mov_b32 v{vCSA[2]+2}, 0
v_mov_b32 v{vCSA[2]+3}, 0
""")
late_mark = len(prog)
saved = (vT0, vT1, vT2, vU, sT, sTb, sTc, sTd)
if O("defer", 1): vT0, vT1, vT2, vU, sT, sTb, sTc, sTd = 192, 193, 194, 196, 4, 5, 6, 7
E(f"""
s_lshl_b32 s{sT}, s{sNB}, 7
v_add_u32 v{vDo}, s{sT}, v{vDo}
v_add_u32 v{vDo+1}, {7*1024}, v{vDo}
s_lshl_b32 s{sT}, s{sW}, 17
v_add_u32 v{vT0}, s{sT}, v{vDo}
{park("Eo", f"v{vT0}")}v_add_u32 v{vT0}, {7*1024}, v{vT0}
{park("Eo1", f"v{vT0}")}
s_mul_i32 s{sT}, s{sTB2}, {2*HSTR}
s_lshl_b32 s{sTb}, s{sW}, 14
s_add_u32 s{sT}, s{sT}, s{sTb}
s_add_u32 s{sT}, s{sT}, {H0}
v_add_u32 v{vT0}, s{sT}, v{vL16}
{park("Ao", f"v{vT0}")}v_add_u32 v{vT0}, {HSTR}, v{vT0}
{park("Ao1", f"v{vT0}")}
s_lshl_b32 s{sT}, s{sTB2}, 16
s_lshl_b32 s{sTb}, s{sW}, 13
s_add_u32 s{sT}, s{sT}, s{sTb}
s_add_u32 s{sT}, s{sT}, {O0}
v_add_u32 v{vT0}, s{sT}, v{vL16}
{park("Oo", f"v{vT0}")}v_add_u32 v{vT0}, 32768, v{vT0}
{park("Oo1", f"v{vT0}")}
s_lshl_b32 s{sRHO}, s{sTB2}, 1
s_add_u32 s{sRHO}, s{sRHO}, s{sNB}
s_and_b32 s{sRHO}, s{sRHO}, {7 if O("rot", 1) else 0}
s_lshl_b32 s{sWB}, s{sW}, 2
""")
for q in range(8):
    E(f"""s_add_u32 s{sT}, s{sRHO}, {q}
s_bfe_u32 s{sTb}, s{sT}, 0x20001
s_add_u32 s{sTb}, s{sTb}, s{sWB}
{t0_of(sTc, sTb, sTd)}s_and_b32 s{sT}, s{sT}, 1
s_add_u32 s{sT}, s{sT}, s{sTc}
s_lshl_b32 s{sWE+q}, s{sT}, 15
s_add_u32 s{sT}, s{sRHO}, {q}
s_and_b32 s{sT}, s{sT}, 7
s_lshl_b32 s{sHE[q]}, s{sT}, 11""")
E(f"""s_add_u32 s{sT}, s{sTB2}, s{sNB}
s_mul_i32 s{sTb}, s{sT}, 43
s_lshr_b32 s{sTb}, s{sTb}, 7
s_mul_i32 s{sTb}, s{sTb}, 3
s_sub_u32 s{sT}, s{sT}, s{sTb}
s_and_b32 s{sT}, s{sT}, {3 if O("rot", 1) else 0}
s_mul_i32 s{sTc}, s{sW}, 10240
s_sub_u32 s{sTc}, 65536, s{sTc}
s_mul_i32 s{sTd}, s{sW}, 9
s_lshr_b32 s{sTb}, s{sW}, 1
s_lshl_b32 s{sTb}, s{sTb}, 2
s_add_u32 s{sTd}, s{sTd}, s{sTb}
s_add_u32 s{sTd}, s{sTd}, 2
s_lshl_b32 s{sTd}, s{sTd}, 15""")
for q in range(3):
    E(f"""s_lshl_b32 s{sTb}, s{sT}, 11
s_add_u32 s{sLH[q]}, s{sTb}, s{sTc}
s_mul_i32 s{sTb}, s{sT}, 98304
s_add_u32 s{sLW[q]}, s{sTb}, s{sTd}
s_add_u32 s{sT}, s{sT}, 1
s_cmp_eq_u32 s{sT}, 3
s_cselect_b32 s{sT}, 0, s{sT}""")
E(f"""
s_lshl_b32 s{sA}, s{sRHO}, 11
s_lshl_b32 s{sWB}, s{sRHO}, 14
s_lshl_b32 s{sWS}, s{sRHO}, 10
v_lshrrev_b32 v{vT0}, 3, v{vL}
v_and_b32 v{vT1}, 7, v{vL}
s_lshl_b32 s{sT}, s{sTB2}, 6
s_lshl_b32 s{sTb}, s{sW}, 3
s_add_u32 s{sT}, s{sT}, s{sTb}
s_lshl_b32 s{sT}, s{sT}, 10
s_lshl_b32 s{sTb}, s{sNB}, 7
s_add_u32 s{sT}, s{sT}, s{sTb}
v_lshlrev_b32 v{vT2}, 10, v{vT0}
v_lshl_add_u32 v{vT2}, v{vT1}, 4, v{vT2}
v_add_u32 v{vT2}, s{sT}, v{vT2}
{park("Out", f"v{vT2}")}v_add_u32 v{vT2}, 32768, v{vT2}
{park("Out1", f"v{vT2}")}v_lshlrev_b32 v{vT1}, 1, v{vT1}
v_xor_b32 v{vT1}, v{vT1}, v{vT0}
v_lshlrev_b32 v{vT0}, 8, v{vT0}
v_lshl_add_u32 v{vT0}, v{vT1}, 4, v{vT0}
s_lshl_b32 s{sT}, s{sW}, 11
v_add_u32 v{vT0}, s{sT}, v{vT0}
{park("Rr", f"v{vT0}")}v_and_b32 v{vT0}, 31, v{vL}
v_lshrrev_b32 v{vT1}, 5, v{vL}
v_and_b32 v{vT2}, 7, v{vL}
v_xor_b32 v{vT1}, v{vT1}, v{vT2}
v_lshlrev_b32 v{vT0}, 8, v{vT0}
v_lshl_add_u32 v{vT0}, v{vT1}, 4, v{vT0}
s_lshl_b32 s{sT}, s{sW}, 14
v_add_u32 v{vT0}, s{sT}, v{vT0}
{park("Rw", f"v{vT0}")}
v_add_u32 v{vT0}, s{sM0X}, v{vL16}
{park("Ka", f"v{vT0}")}v_lshrrev_b32 v{vT1}, 5, v{vL}
v_bfe_u32 v{vT2}, v{vL}, 2, 2
v_lshl_add_u32 v{vT2}, v{vT1}, 2, v{vT2}
v_lshlrev_b32 v{vT2}, 5, v{vT2}
v_and_b32 v{vT0}, 1, v{vL}
v_lshl_add_u32 v{vT2}, v{vT0}, 4, v{vT2}
v_bfe_u32 v{vT0}, v{vL}, 1, 1
v_lshl_add_u32 v{vT2}, v{vT0}, 3, v{vT2}
s_add_u32 s{sT}, s{sM0X}, 2048
v_add_u32 v{vT2}, s{sT}, v{vT2}
v_xor_b32 v{vT1}, 1, v{vT1}
v_lshlrev_b32 v{vT1}, 7, v{vT1}
s_lshl_b32 s{sT}, s{sW}, 3
s_add_u32 s{sT}, s{sT}, {STRIP}
v_add_u32 v{vU}, {STRIP+120}, v{vT1}
v_add_u32 v{vT1}, s{sT}, v{vT1}
v_and_b32 v{vT0}, 2, v{vL}
v_cmp_eq_u32 vcc, 0, v{vT0}
v_cndmask_b32 v{vT1}, v{vU}, v{vT1}, vcc
v_cndmask_b32 v{vU}, 0, 8, vcc
v_and_b32 v{vT0}, 16, v{vL}
v_cmp_eq_u32 vcc, 0, v{vT0}
v_cndmask_b32 v{vT0}, v{vT1}, v{vT2}, vcc
{park("Va", f"v{vT0}")}v_mov_b32 v{vT2}, 4096
v_cndmask_b32 v{vT0}, v{vU}, v{vT2}, vcc
{park("Vinc", f"v{vT0}")}
s_lshl_b32 s{sT}, s{sTB}, 15
s_lshl_b32 s{sTb}, s{sCB}, 11
s_add_u32 s{sT}, s{sT}, s{sTb}
s_add_u32 s{sT}, s{sT}, {O0}
v_add_u32 v{vT0}, s{sT}, v{vL16}
{park("Ost", f"v{vT0}")}
s_lshl_b32 s{sT}, s{sCB}, 18
v_add_u32 v{vT0}, s{sT}, v{vL16}
{park("KVo", f"v{vT0}")}
""")
SENT = O("sent", 1)
sent_st = [I(f"buffer_store_dwordx4 {vr(vXT,4)}, v{vOst}, {srd(SWS)}, 0 offen offset:{1024*e} sc1", tag="sent") for e in range(2)] if SENT else []
for k in range(3):
    E(f"""
s_add_i32 s{sT}, s{sTB}, {-4*k}
s_lshl_b32 s{sKV[k]}, s{sT}, 12
s_cmp_lt_i32 s{sT}, 0
s_cselect_b32 s{sKV[k]}, s{sHUGE}, s{sKV[k]}
""")
E(f"""
v_min_u32 v{vT1}, 5, v{vL}
v_lshrrev_b32 v{vT2}, 1, v{vT1}
v_lshlrev_b32 v{vT2}, 2, v{vT2}
v_sub_u32 v{vT2}, s{sTB}, v{vT2}
v_cmp_gt_i32 vcc, 0, v{vT2}
v_mov_b32 v{vT0}, s{sTB}
v_cndmask_b32 v{vT2}, v{vT2}, v{vT0}, vcc
v_lshlrev_b32 v{vT2}, 7, v{vT2}
v_and_b32 v{vT1}, 1, v{vT1}
v_lshl_add_u32 v{vT2}, v{vT1}, 3, v{vT2}
s_and_b32 s{sT}, s{sCB}, 14
s_lshl_b32 s{sT}, s{sT}, 3
s_and_b32 s{sTb}, s{sCB}, 1
s_lshl_b32 s{sTb}, s{sTb}, 2
s_add_u32 s{sT}, s{sT}, s{sTb}
s_add_u32 s{sT}, s{sT}, {FL0}
v_add_u32 v{vT0}, s{sT}, v{vT2}
{park("Pa", f"v{vT0}")}
s_lshl_b32 s{sT}, s{sTB2}, 8
s_add_u32 s{sT}, s{sT}, {FL0+8192}
v_lshlrev_b32 v{vT0}, 2, v{vL}
v_add_u32 v{vT0}, s{sT}, v{vT0}
{park("Pb", f"v{vT0}")}
""")
if O("tblm", 1):
    E(f"""v_and_b32 v{vT1}, 31, v{vL}
v_lshrrev_b32 v{vT2}, 5, v{vL}
v_lshlrev_b32 v{vT2}, 2, v{vT2}
v_sub_u32 v{vT1}, v{vT1}, v{vT2}""")
    for j in range(16):
        kl = 8 * (j >> 2) + (j & 3)
        E(f"""v_subrev_u32 v{vT0}, {kl}, v{vT1}
v_ashrrev_i32 v{vT0}, 31, v{vT0}
v_and_b32 v{vT0}, 0xff000000, v{vT0}
v_accvgpr_write_b32 a{aMSK+16+j}, v{vT0}
v_xor_b32 v{vT0}, 0xff000000, v{vT0}
v_accvgpr_write_b32 a{aMSK+j}, v{vT0}""")
vT0, vT1, vT2, vU, sT, sTb, sTc, sTd = saved
late = []
if O("defer", 1): late = prog[late_mark:]; del prog[late_mark:]
rest = prog[init_mark:]; del prog[init_mark:]
gall = p1_dma(1) + p1_dma(2)
N0 = O("n0", 8)
def safe_at(lst, n):
    x = lst[n]
    return not (x.op.startswith("s_cmp") or x.op == "s_and_b32" or (n + 1 < len(lst) and (lst[n + 1].op.startswith("s_cselect") or lst[n + 1].op.startswith("s_cbranch"))))
cut = int(len(rest) * O("f1", 30) / 100)
while not safe_at(rest, cut - 1): cut += 1
E(rest[:cut])
stamp((2,))
E(flat(g0))
rest = rest[cut:]
gs = gall[:N0]; k = 0
for n, x in enumerate(rest):
    E(x)
    if k < len(gs) and safe_at(rest, n) and n + 1 >= (k + 1) * len(rest) / (len(gs) + 1):
        E(gs[k]); k += 1
if O("w2t", -2) == 0: E(w2touch)
E(flat(gs[k:]))
if O("w2t", -2) == 1: E(w2touch)
stamp((1, 2, 3, 17))

def wf1(st, t): return aWF + (st * 3 + t) * 4
LK = O('lk', 3)
def wf2(k, t): return aWF + ((k % (LK + 1)) * 3 + t) * 4
def p1_reads(c, s):
    sl = c & 3; st = s & 1
    o = [I(f"ds_read_b128 {ar(aX+(4*c+s)*4,4)}, v{vXr+s} offset:{sl*16384}")]
    for t in range(3):
        for n in range(2):
            o.append(I(f"ds_read_b64_tr_b16 {ar(wf1(st,t)+2*n,2)}, v{vWr+2*s+(sl>>1)} offset:{(sl&1)*24576+t*8192+n*512}"))
    o.insert(3, I(f"ds_read_b128 {ar(aXP+4*st,4)}, v{vXp+s} offset:{sl*16384}"))
    return o
def statread(g):
    c, s = g >> 2, g & 3
    return [I(f"ds_read_b128 {vr(vXT+4*s,4)}, v{vXr+s} offset:{(c&3)*16384}")]
def stats(s):
    o = []
    for j in range(4):
        x = vXT + 4 * s + j; a = vU + 2 * (j & 1)
        o += L(f"""v_lshlrev_b32 v{a}, 16, v{x}
v_and_b32 v{a+1}, 0xffff0000, v{x}
v_add_f32 v{vSum}, v{vSum}, v{a}
v_add_f32 v{vSum+1}, v{vSum+1}, v{a+1}
v_fmac_f32 v{vSum+2}, v{a}, v{a}
v_fmac_f32 v{vSum+3}, v{a+1}, v{a+1}""")
    return o
def cs_convert(vcs, vw, base, step):
    o = []
    for j in range(4):
        a = 252 if j & 1 else vU + 4
        o += L(f"""v_cvt_pk_bf16_f32 v{a}, v{vcs+j}, v{vcs+j}
v_and_b32 v{a+1}, 0xffff0000, v{a}
v_sub_f32 v{a+1}, v{vcs+j}, v{a+1}
v_cvt_pk_bf16_f32 v{a+1}, v{a+1}, v{a+1}""")
        o.append(I(f"ds_write_b64 v{vw}, {vr(a,2)} offset:{base+step*j}"))
    return o
C1 = -2.0 * 0.7978845608028654 * 1.4426950408889634
QC = 0.25 * 1.4426950408889634
stats_pub = L(f"""v_add_f32 v{vSum}, v{vSum}, v{vSum+1}
v_add_f32 v{vSum+1}, v{vSum+2}, v{vSum+3}
v_mov_b32 v{vSum+2}, v{vSum}
v_mov_b32 v{vSum+3}, v{vSum+1}
v_lshrrev_b32 v{vT0}, 5, v{vL}
v_permlane32_swap_b32 v{vSum}, v{vSum+2}
v_permlane32_swap_b32 v{vSum+1}, v{vSum+3}
v_lshl_add_u32 v{vT0}, v{vT0}, 28, v{vSPo}
v_add_f32 v{vSum}, v{vSum}, v{vSum+2}
v_add_f32 v{vSum+1}, v{vSum+1}, v{vSum+3}""") + [I(f"buffer_store_dwordx2 {vr(vSum,2)}, v{vT0}, {srd(SWS)}, s{sSP} offen sc1", tag="sp")]
stats_ld = [[I(f"buffer_load_dwordx2 {vr(vSL+2*i,2)}, v{vSPo}, {srd(SWS)}, s{sSG} offen offset:{512*i} sc1")] for i in range(4)]
b = vSL
stats_fin = L(f"""
v_add_f32 v{b}, v{b}, v{b+2}
v_add_f32 v{b+1}, v{b+1}, v{b+3}
v_add_f32 v{b+4}, v{b+4}, v{b+6}
v_add_f32 v{b+5}, v{b+5}, v{b+7}
v_add_f32 v{b}, v{b}, v{b+4}
v_add_f32 v{b+1}, v{b+1}, v{b+5}
v_mul_f32 v{vSum}, {fx(-1.0/512)}, v{b}
v_mul_f32 v{b+1}, {fx(1.0/512)}, v{b+1}
v_fma_f32 v{b+1}, -v{vSum}, v{vSum}, v{b+1}
v_max_f32 v{b+1}, 0, v{b+1}
v_add_f32 v{vSum+1}, {fx(1e-5)}, v{b+1}
v_mov_b32 v{vSum+2}, v{vSum}
v_mov_b32 v{vSum+3}, v{vSum+1}
s_nop 0
v_permlane32_swap_b32 v{vSum}, v{vSum+2}
v_permlane32_swap_b32 v{vSum+1}, v{vSum+3}
""")
def stats_k(o):
    R = vSum + 2 * o + 1; K = vK[o]; a = vU
    t = f"""
v_rsq_f32 v{K}, v{R}
v_mov_b32 v{K+3}, v{R}
v_mul_f32 v{K+1}, {fx(C1)}, v{K}
v_mul_f32 v{a}, v{K}, v{K}
v_mul_f32 v{a}, {fx(0.044715)}, v{a}
v_mul_f32 v{K+2}, v{K+1}, v{a}
"""
    if o == 0: t += f"v_mul_f32 v{vQS}, {fx(QC)}, v{K}\n"
    return L(t)
def stats_b(o):
    nm = vSum + 2 * o; B = vBx[o]; a = vU
    return L(f"""
v_cvt_pk_bf16_f32 v{a}, v{nm}, v{nm}
v_and_b32 v{a}, 0xffff0000, v{a}
v_sub_f32 v{a+1}, v{nm}, v{a}
v_cvt_pk_bf16_f32 v{B}, v{a}, v{a+1}
v_mov_b32 v{B+1}, v{B}
v_mov_b32 v{B+2}, v{B}
v_mov_b32 v{B+3}, v{B}
""")
assert NI < 10
E(ann)
E(I("s_barrier", need=["c0"]))
stamp((2, 17))
E(p1_reads(0, 0) + statread(0) + statread(1))
E(stats(0))
S1 = Sched()
P1 = lambda c, s, t: 24 * c + 6 * s + t
A1 = lambda t, o: ACC1 + 32 * t + 16 * o
for c in range(8):
    for s in range(4):
        st = s & 1; first = (c == 0 and s == 0)
        for q in range(6):
            t, o = q >> 1, q & 1
            acc = vr(A1(t, o), 16)
            xb = ar(aX + (4 * c + s) * 4, 4) if o == 0 else ar(aXP + 4 * st, 4)
            ops = [I(f"{MF} {acc}, {ar(wf1(st,t),4)}, {xb}, {'0' if first else acc}")]
            small = s < 2 and o == 1 and not (O('x_nocs', 0) and c > 0)
            if small:
                cs = vr(vCS1, 4)
                ops.append(I(f"{MS} {cs}, {ar(wf1(st,t),4)}, {ar(aSEL+4*t,4)}, {'0' if (first and t == 0) else cs}"))
            pre = []
            if q == 0 and (O("fw", 0) == 0 or s == 3) and not (c == 7 and s == 3): pre.append(I("s_waitcnt lgkmcnt(0)"))
            if s == 3 and q == 0 and c < 7: pre.append(I("s_barrier", need=["c%d" % (c + 1)]))
            if s == 3 and q == 2 and c == 7: pre += [I("s_waitcnt lgkmcnt(0)"), I("s_barrier", need=["p0"])]
            if s == 0 and q == 0: pre += stampq((3,))
            S1.pos(ops, 8 if small else 6, pre)
NP1 = 192
CORR_K = 0
P2 = lambda k, t: NP1 + 3 * k + t + (6 if k >= CORR_K else 0)
PC = NP1 + 3 * CORR_K
for k in range(32):
    p, s = k >> 3, k & 3
    if k == CORR_K:
        for q in range(6):
            t, o = q >> 1, q & 1
            acc = vr(A1(t, o), 16)
            S1.pos(I(f"{MF} {acc}, {vr(vCSA[t],4)}, {vr(vBx[o],4)}, {acc}"), 6, stampq((1, 3, 17)) if q == 0 else [])
    for t in range(3):
        acc = vr(ACC2 + 16 * t, 16)
        ops = [I(f"{MF} {acc}, {ar(wf2(k,t),4)}, {ar(aX+k*4,4)}, {'0' if k == 0 else acc}", xr=(ar(wf2(k, 0), 24 if (LK == 3 and k % 2 == 0) else 12) if t == 0 else None))]
        if s == 0:
            cs = vr(vCS2, 4)
            ops.append(I(f"{MS} {cs}, {ar(wf2(k,t),4)}, {ar(aSEL+4*t,4)}, {'0' if (k == 0 and t == 0) else cs}"))
        pre = []
        if False:
            pre = []
        if (k & 7) == 8 - LK and t == 1:
            pre = [I("s_waitcnt lgkmcnt(0)"), I("s_barrier", need=["p%d" % (p + 1)] if p < 3 else [])]
        if LK == 3 and k == 30 and t == 1: pre = [I("s_waitcnt lgkmcnt(0)"), I("s_barrier")]
        if LK == 3 and k == 29 and t == 1: pre = []
        if (k & 3) == 0 and t == 0: pre += stampq((4,))
        S1.pos(ops, 8 if s == 0 else 6, pre)
NP2 = len(S1.main)
def p2_reads(k):
    p, g, s = k >> 3, (k >> 2) & 1, k & 3
    return [I(f"ds_read_b64_tr_b16 {ar(wf2(k,t)+2*n,2)}, v{vW2r+2*s+(p>>1)} offset:{(p&1)*24576+t*8192+g*4096+n*256}") for t in range(3) for n in range(2)]
def store4(data, voff, soff, imm, tag):
    if O("x_nost", 0) and tag in ("kv", "h"): return I("s_nop 0")
    o = (" offset:%d" % imm) if imm else ""
    return I(f"buffer_store_dwordx4 {vr(data,4)}, v{voff}, {srd(SWS)}, {soff} offen{o} sc1", tag=tag)
def flag(stage, tag, va):
    if O("x_nofw", -1) == stage: tag = "none"
    return L(f"v_mov_b32 v{vT0}, 1\ns_mov_b32 s{sT}, {stage*8192}") + [I(f"buffer_store_dword v{vT0}, v{va}, {srd(SWS)}, s{sT} offen sc1", need=[tag])]
def poll_issue(va): return [I(f"buffer_load_dword v{vPoll}, v{va}, {srd(SWS)}, 0 offen sc1")]
def poll_check(name, S, reg, addr):
    SITE = {"init": 24, "st": 25, "kv": 26, "h": 27, "h2": 28, "o": 29}[name]
    mark = f"    v_writelane_b32 v231, s{sSPIN}, {SITE}\n" if OPT["stamps"] else ""
    rare.append(f"""
L_spin_{name}:
    s_mov_b32 s{sSPIN}, {OPT['spin']}
L_spin2_{name}:
{mark}    buffer_load_dword v{reg}, v{addr}, {srd(S)}, 0 offen sc1
    s_waitcnt vmcnt(0) lgkmcnt(0)
    v_cmp_eq_u32 vcc, 0, v{reg}
    s_nop 4
    s_cbranch_vccz L_ok_{name}
    s_sleep 1
    s_sub_u32 s{sSPIN}, s{sSPIN}, 1
    s_cmp_lg_u32 s{sSPIN}, 0
    s_cbranch_scc1 L_spin2_{name}
    s_endpgm
""")
    o = L(f"v_cmp_eq_u32 vcc, 0, v{reg}\ns_cbranch_vccnz L_spin_{name}")
    o[-1].post = f"\nL_ok_{name}:"
    return o
SC2 = 1
SG_ = set(range(4)) | set(range(4 * SC2, 4 * SC2 + 4))
for c in range(8):
    for s in range(4):
        g = 4 * c + s
        rd = []
        if g + 1 < 32: rd += p1_reads((g + 1) >> 2, (g + 1) & 3)
        if s < 2 and g + 2 in SG_: rd += statread(g + 2)
        if s == 3 and g + 1 in SG_: rd = statread(g + 1) + rd + statread(g + 2)
        S1.spread(rd, P1(c, s, 0), P1(c, s, O("rdw", 4)), 0)
        if g + 1 in SG_:
            if s != 3: S1.spread(stats((g + 1) & 3), P1(c, s, 0), P1(c, s, 6), 2)
            else: S1.spread(stats(0), P1(c, s, 2), P1(c, s, 6), 2)
    if c == 0:
        gq = gall[N0:]
        if O("w2t", -2) == -1: gq = gq[:10 - N0] + [w2touch] + gq[10 - N0:]
        if O("w2t", -2) == -2: gq = gq + [w2touch]
        N2 = O("n2", 99); carry = gq[N2:]
        S1.spread(gq[:N2], P1(0, O("n2a", 0), 0), P1(0, 3, 0), 1, one)
    if c == 0 and carry:
        S1.spread(carry, P1(0, 3, 0), P1(1, O("n2e", 1), 0), 1, one)
        S1.spread(p1_dma(3), P1(1, O("n2e", 1), 0), P1(1, 3, 0), 1, one)
    elif c < 5: S1.spread(p1_dma(c + 3), P1(c, 3, 0), P1(c + 1, 3, 0), 1, one)
S1.spread(p2_dma(0), P1(6, O("p0a", 1), 0), P1(6, 3, 0), 1, one)
S1.spread(p2_dma(1), P1(6, 3, 0), P1(7, 3, 0), 1, one)
S1.put(O("ipos", 24), [L(f"v_and_b32 v{vT2}, 3, v{vL}\nv_lshlrev_b32 v{vT2}, 2, v{vT2}") + [I(f"buffer_load_dword v{vInit}, v{vT2}, {srd(SDBG)}, 0 offen" + (" sc1" if O("isc", 1) else ""))]], 1)
def glue2(q):
    out = []; cur = []; n = 0
    while n < len(q):
        x = q[n]; cur = [x]; n += 1
        if x.op.startswith("s_cmp"):
            while n < len(q) and q[n].op.startswith("s_cselect"): cur.append(q[n]); n += 1
        elif x.op.startswith("v_cmp"):
            last = n
            for m in range(n, len(q)):
                if q[m].op.startswith("v_cmp"): break
                if q[m].op.startswith("v_cndmask"): last = m + 1
            cur += q[n:last]; n = last
        out.append(cur)
    return out
if late: S1.spread(glue2(late), O("la0", 44), O("la1", 170), 2)
S1.spread(stats_pub, P1(SC2, 3, 0), P1(SC2, 3, 3), 2)
S1.put(P1(O("spf", SC2 + 1), O("spf2", 3), 1), [poll_check("init", SDBG, vInit, vT2) + flag(4, "sp", vFl1)], 2)
S1.put(P1(O("spp", 4 if SC2 == 1 else 5), O("spp2", 2 if SC2 == 1 else 0), 5), [poll_issue(vPs)], 1)
S1.put(P1(5, 3, 1), [poll_check("st", SWS, vPoll, vPs)], 2)
S1.spread(stats_ld, P1(5, 3, 2), P1(5, 3, 6), 1, one)
S1.spread(stats_fin + stats_k(0) + stats_k(1), P1(7, 0, 0), P1(7, 2, 0), 2)
if SENT:
    S1.put(P1(3, 0, 0), L("\n".join(f"v_mov_b32 v{vXT+j}, -1" for j in range(4))), 2)
    S1.put(O("snp", 172), [sent_st[0]], 1); S1.put(O("snp", 172) + O("snd", 8), [sent_st[1]], 1)
S1.spread(cs_convert(vCS1, vCSw1, CS1, 8), P1(7, 2, 0), P1(7, 2, O('cse', 5)), 2)
S1.spread(stats_b(0) + stats_b(1), P1(7, 3, 0), P1(7, 3, 4), 2)
S1.spread(p2_reads(0), P1(7, 3, 2), P1(7, 3, 4), 0)
S1.put(P1(7, 3, 5), p2_reads(1), 0)
if O("w2t", -2) >= 2: S1.put(O("w2t", -2), [w2touch], 1)
S1.spread(p2_dma(2), P1(7, 3, 2), P2(7 - LK, 0), 1, one)

def scale_pack(acc, sc, dst, pk=False):
    o = []
    if pk:
        sel = "op_sel:[0,1] op_sel_hi:[1,1]" if sc & 1 else "op_sel_hi:[1,0]"
        for j in range(0, 16, 2): o.append(I(f"v_pk_mul_f32 {vr(acc+j,2)}, {vr(acc+j,2)}, {vr(sc&~1,2)} {sel}"))
    else:
        for j in range(16): o.append(I(f"v_mul_f32 v{acc+j}, v{acc+j}, v{sc}"))
    for j in range(8): o.append(I(f"v_cvt_pk_bf16_f32 v{dst+j}, v{acc+2*j}, v{acc+2*j+1}"))
    return o
def gelu(g, u, K):
    if O("x_nogelu", 0): return [I("s_nop 0")] * 4
    A, B, R = K + 1, K + 2, K + 3
    o = []
    for b in range(4):
        js = range(4 * b, 4 * b + 4)
        T = lambda j: vG + (j & 3) + 4 * (b & 1)
        o += [I(f"v_mul_f32 v{T(j)}, v{g+j}, v{g+j}") for j in js]
        o += [I(f"v_fma_f32 v{T(j)}, v{T(j)}, v{B}, v{A}") for j in js]
        o += [I(f"v_mul_f32 v{T(j)}, v{g+j}, v{T(j)}") for j in js]
        for j in js: o += [I(f"v_exp_f32 v{T(j)}, v{T(j)}"), I(f"v_mul_f32 v{g+j}, v{g+j}, v{u+j}")]
        o += [I(f"v_fma_f32 v{T(j)}, v{T(j)}, v{R}, v{R}") for j in js]
        o += [I(f"v_rcp_f32 v{T(j)}, v{T(j)}") for j in js]
        o += [I(f"v_mul_f32 v{g+j}, v{g+j}, v{T(j)}") for j in js]
        o += [I(f"v_cvt_pk_bf16_f32 v{u+2*b+k}, v{g+4*b+2*k}, v{g+4*b+2*k+1}") for k in range(2)]
    return o
def gelu_pk(g, u, K):
    o = []
    for b in range(2):
        js = range(8 * b, 8 * b + 8, 2)
        T = lambda j: vG + (j & 7)
        o += [I(f"v_pk_mul_f32 {vr(T(j),2)}, {vr(g+j,2)}, {vr(g+j,2)}") for j in js]
        o += [I(f"v_pk_fma_f32 {vr(T(j),2)}, {vr(T(j),2)}, {vr(K+2,2)}, {vr(K,2)} op_sel:[0,0,1] op_sel_hi:[1,0,1]") for j in js]
        o += [I(f"v_pk_mul_f32 {vr(T(j),2)}, {vr(g+j,2)}, {vr(T(j),2)}") for j in js]
        for j in js: o += [I(f"v_exp_f32 v{T(j)}, v{T(j)}"), I(f"v_exp_f32 v{T(j)+1}, v{T(j)+1}"), I(f"v_pk_mul_f32 {vr(g+j,2)}, {vr(g+j,2)}, {vr(u+j,2)}")]
        o += [I(f"v_pk_fma_f32 {vr(T(j),2)}, {vr(T(j),2)}, {vr(K+2,2)}, {vr(K+2,2)} op_sel:[0,1,1] op_sel_hi:[1,1,1]") for j in js]
        for j in js: o += [I(f"v_rcp_f32 v{T(j)}, v{T(j)}"), I(f"v_rcp_f32 v{T(j)+1}, v{T(j)+1}")]
        o += [I(f"v_pk_mul_f32 {vr(g+j,2)}, {vr(g+j,2)}, {vr(T(j),2)}") for j in js]
        o += [I(f"v_cvt_pk_bf16_f32 v{u+(j>>1)}, v{g+j}, v{g+j+1}") for j in js]
    return o
S1.put(P1(7, 3, 2), [I(f"ds_read_b64 {vr(vCSA[t],2)}, v{vCSr} offset:{CS1+C1STR*t}") for t in range(3)], 0)
if LK == 3: S1.spread(p2_reads(2), PC, PC + 3, 0)
for k in range(32 - LK):
    o = 1 if (k & 7) == 8 - LK else 0
    S1.spread(p2_reads(k + LK), P2(k, o), P2(k, o + (2 if (k & 7) in (7 - LK, 8 - LK) else 3)), 0)

fq = []
sOwn = [f"s{sPK}", f"s{sTd}"]; sOwnH = [f"s{sPH}", f"s{sTc}"]
fq += L(f"s_xor_b32 s{sTd}, s{sPK}, 4096\ns_sub_u32 s{sTc}, {HSTR}, s{sPH}")
for o in range(2):
    a = A1(0, o)
    sp = scale_pack(a, vK[o], a)
    fq += sp[0:8] + sp[16:20] + [store4(a, vKVst, sOwn[o], 0, "kv")] + sp[8:16] + sp[20:24] + [store4(a + 4, vKVst, sOwn[o], 1024, "kv")]
g = []
for o in range(2):
    gg = gelu(A1(1, o), A1(2, o), vK[o])
    g.append(gg[:68] + [store4(A1(2, o), vHst, sOwnH[o], 0, "h")] + gg[68:] + [store4(A1(2, o) + 4, vHst, sOwnH[o], 1024, "h")])
KVF = O("kvflag", 65); KVP = O("kvpoll", 110)
tbl = [[I(f"buffer_load_dwordx4 {vr(vBF+4*i,4)}, v{vL16}, {srd(STB)}, {'0' if i < 4 else 's%d' % sX} offen offset:{1024*(i&3)}")] for i in range(8)]
tbl[0] = L(f"s_movk_i32 s{sX}, 4096") + tbl[0]
strip = [I(f"ds_write_b128 v{vL16}, {ar(aSTV,4)} offset:{STRIP+1024*i}") for i in range(2)]
unp = [I(f"v_accvgpr_read_b32 v{vBF+j}, a{aMSK+j}") for j in range(32)] if O("tblm", 1) else []
fq += g[0][:KVF] + [flag(0, "kv", vFl2)] + g[0][KVF:] + strip + unp
fq += g[1][:KVP] + poll_issue(vPa) + g[1][KVP:]
FQ_END = O("fqend", 29)
S1.spread(glue(fq), PC + 3, P2(FQ_END, 0), 2)
if not O("tblm", 1): S1.spread(tbl, P2(O("tbl", 9), 0), P2(O("tbl", 9) + 5, 0), 1, one)

def w2_dma(j):
    sl = j % 12
    m0 = (sl // 3) * 24576 + (sl % 3) * 2048
    nd = ["r%d" % (j - 12)]
    post = []
    if j >= 22:
        post = L(f"s_add_u32 s{sWB}, s{sWB}, 16384\ns_and_b32 s{sWB}, s{sWB}, 0x1ffff")
        return [L(f"s_add_u32 m0, s{sM0K}, {(j-22)*2048}\ns_nop 0") + [dma(vEo, SO, f"s{sWB}", 0, "w%d" % j)],
                [dma(vEo + 1, SO, f"s{sWB}", 1024, "w%d" % j)] + post]
    if j < 22:
        base = sWE + (j >> 1) if j < 16 else sLW[(j - 16) >> 1]
        so, sr = ("s_nop 0", base) if j & 1 == 0 else (f"s_add_u32 s{sD}, s{base}, 16384", sD)
        vo, S = vDo, SD
    else:
        so, sr, vo, S = "s_nop 0", sWB, vEo, SO
        post = L(f"s_add_u32 s{sWB}, s{sWB}, 16384\ns_and_b32 s{sWB}, s{sWB}, 0x1ffff")
    return [L(f"s_add_u32 m0, s{sM0D}, {m0}\n{so}") + [dma(vo, S, f"s{sr}", 0, "w%d" % j, need=nd)],
            [dma(vo + 1, S, f"s{sr}", 1024, "w%d" % j, need=nd)] + post]
KCHK = O("kvchk", 29)
for p in range(3):
    if not O("x_now2", 0): S1.spread((p2_dma(3) if p == 0 else []) + w2_dma(3 * p) + w2_dma(3 * p + 1) + w2_dma(3 * p + 2), P2(8 * p + 8 - LK, 1), P2(8 * p + 16 - LK, 1) if p < 2 else P2(KCHK, 0), 1, one)
kvdma = []
for k in range(3):
    kvdma.append(L(f"s_add_u32 m0, s{sM0X}, {4096*(8-4*k)}\ns_nop 0") + [dma(vKVo, SWS, f"s{sKV[k]}", 0, "kvl", "sc1")])
    kvdma += [[dma(vKVo, SWS, f"s{sKV[k]}", 1024 * i, "kvl", "sc1")] for i in range(1, 4)]
if not O("x_nokv", 0):
    if not O("x_nochk", 0): S1.put(P2(KCHK, 0), [poll_check("kv", SWS, vPoll, vPa)], 1)
    S1.spread(kvdma, P2(KCHK, 1), NP2, 1, one)
S1.spread(cs_convert(vCS2, vCSw2, CS2, 16), P2(29, 0), P2(30, 0), 2)
S1.put(P2(30, 1), [I(f"ds_read_b128 {vr(vCSA[q],4)}, v{vL16} offset:{CS2+CSTR*q}") for q in range(3)], 0)
if O("x_idle", 0): S1.pre[O("x_idlep", 250)] += L("s_nop 15\n" * (O("x_idle", 0) // 64))
if OPT["stamps"] == 10:
    for g in range(O("l0", 2), min(O("l0", 2) + 30, 32)):
        k = nstamp[0]; nstamp[0] += 1
        S1.put(6 * g + 4, [I(f"{TIMER} s[88:89]")], 2)
        S1.put(6 * g + 6, [I(f"v_writelane_b32 v231, s88, {k}")], 2)
if OPT["stamps"] == 11:
    for kk in range(1, 31):
        k = nstamp[0]; nstamp[0] += 1
        S1.put(P2(kk, 0), [I(f"{TIMER} s[88:89]")], 0)
        S1.put(P2(kk + 1, 0) - 1, [I(f"v_writelane_b32 v231, s88, {k}")], 2)
if OPT["stamps"] == 9:
    for q in range(28):
        p = OPT["za"] + q * OPT["zs"]
        if p < len(S1.main): S1.pre[p] = stampq((9,)) + S1.pre[p]
E(S1.emit())
stamp((1, 4, 12))
post = w2_dma(9) + w2_dma(10) + w2_dma(11)
xres = L(f"buffer_load_dwordx4 {vr(vXres,4)}, v{vOut}, {srd(SX)}, 0 offen\nbuffer_load_dwordx4 {vr(vXres+4,4)}, v{vOut+1}, {srd(SX)}, 0 offen")
for n, t in enumerate((0, 1, 2)):
    acc = vr(ACC2 + 16 * t, 16)
    E(f"{MF} {acc}, {vr(vCSA[t],4)}, {vr(vBx[0],4)}, {acc}")
    E(post[2 * n] + post[2 * n + 1])
E(scale_pack(ACC2, vQS, vQ, pk=False))
gl = gelu_pk(ACC2 + 16, ACC2 + 32, vK[0])
HF = O("hf", 60)
gl = gl[:44] + [store4(ACC2 + 32, vHst, f"s{sH2}", 0, "h2")] + xres + gl[44:] + [store4(ACC2 + 36, vHst, f"s{sH2}", 1024, "h2")]
gl = gl[:HF] + flag(1, "h", vFl2) + gl[HF:]
G2 = O("g2l", 0)
E(gl[:len(gl) - G2]); gl = gl[len(gl) - G2:]
stamp((4, 6, 12))
E(I("s_waitcnt lgkmcnt(0)"))
E(I("s_barrier", need=["kvl"]))
stamp((1, 4, 6, 12))

units = [(i, e) for i in range(9) for e in range(2)]
def kread(u):
    i, e = units[u]
    return [I(f"ds_read_b128 {ar(aK+4*(u&1),4)}, v{vKa} offset:{i*4096+e*1024}")]
def vread(u):
    i, e = units[u]
    o = [I(f"ds_read_b64_tr_b16 {ar(aV+8*(u&1)+4*s+2*n,2)}, v{vVa} offset:{e*1024+s*512+n*256}") for s in range(2) for n in range(2)]
    if e == 1: o.append(I(f"v_add_u32 v{vVa}, v{vVa}, v{vVinc}"))
    return o
def qk(u):
    i, e = units[u]
    c = vr(vBF, 16) if i == 0 else (vr(vBD, 16) if i == 8 else "0")
    return I(f"{MF} {vr(vS[u&1],16)}, {ar(aK+4*(u&1),4)}, {vr(vQ+4*e,4)}, {c}", xr=ar(aV + 8 * (u & 1), 8) if u >= 2 else None)
def pv(u, s):
    i, e = units[u]
    o = vr(vO[e], 16)
    return I(f"{MF} {o}, {ar(aV+8*(u&1)+4*s,4)}, {vr(vP[u&1]+4*s,4)}, {'0' if (i == 0 and s == 0) else o}")
def hload(j, tt):
    post = []
    if j < 16:
        soff = sHE[j >> 1]
    else: soff = sLH[(j - 16) >> 1]
    o = " offset:1024" if j & 1 else ""
    return [I(f"buffer_load_dwordx4 {ar(aH+8*j+4*tt,4)}, v{vAo+tt}, {srd(SWS)}, s{soff} offen{o} sc1")] + post
NW2V = O("w2v", 10)
W2V = [152, 156, 192, 196, 200, 204, 4, 8, 12, 16, 20, 24, 36, 40, 44, 48, 240, 244, 248, 252]
def w2_reads(j):
    sl = j % 12
    base = (sl // 3) * 24576 + (sl % 3) * 2048
    o = []
    for ct in range(2):
        for n in range(2):
            off = base + n * 1024 + ct * 256
            reg = vW3r if off < 49152 else vW3r + 1
            off = off if off < 49152 else off - 49152
            if j >= 22: reg, off = vPa, (j - 22) * 2048 + n * 1024 + ct * 256
            dst = vr(W2V[2*j+ct]+2*n, 2) if j < NW2V else (ar(aW2+8*(j&1)+4*ct+2*n, 2) if j < 22 else ar(8*(j-22)+4*ct+2*n, 2))
            o.append(I(f"ds_read_b64_tr_b16 {dst}, v{reg} offset:{off}", need=["w%d" % j], tag="r%d" % j))
    return o
extra = {u: [] for u in range(18)}
xds = {u: [] for u in range(18)}
WS0, WS1 = O("ws0", 0), O("ws1", 6)
for j in range(NW2V):
    u = WS0 + j * (WS1 - WS0) // max(NW2V, 1)
    xds[u] += w2_reads(j)
    gd = w2_dma(j + 12)
    if j > 0: gd[0] = [x for x in gd[0][1:] if x.op != "s_nop"]
    if j + 1 < NW2V: gd[1] = gd[1] + [w2_dma(j + 13)[0][0]]
    extra[u + 1] += gd
EP, EC = O("ep", 4), O("ec", 7)
LF, LP, LC = O("lf", 2), O("lp", 11), O("lc", 14)
extra[EP].append(poll_issue(vPb))
extra[LF].append(flag(2, "h2", vFl1))
extra[EC].append(poll_check("h", SWS, vPoll, vPb) + L(f"v_and_b32 v{vPb}, -5, v{vPb}\nv_add_u32 v{vPb}, 8192, v{vPb}"))
he = [hload(j, tt) for j in range(16) for tt in range(2)]
hlate = [hload(j, tt) for j in range(16, 22) for tt in range(2)]
EE = O("ee", 16); NE = O("ne", 32)
he_late = he[NE:]; he = he[:NE]
for q in range(EE - EC):
    extra[EC + q] += he[len(he) * q // (EE - EC):len(he) * (q + 1) // (EE - EC)]
extra[LP].append(poll_issue(vPb))
extra[LC].append(poll_check("h2", SWS, vPoll, vPb) + L(f"v_add_u32 v{vPb}, 8192, v{vPb}"))
LS = max(LC, EE)
NL = O("nl", 8)
for q in range(18 - LS):
    extra[LS + q] += hlate[NL * q // (18 - LS):NL * (q + 1) // (18 - LS)]
hl_late = he_late + hlate[NL:]
assert not he_late or NL == 0

E(kread(0) + kread(1) + vread(0))
E(gl[:O("g2m", 12)])
E(qk(0))
E(gl[O("g2m", 12):])
for u in range(18):
    S, P = vS[u & 1], vP[u & 1]
    ex = [I(f"v_exp_f32 v{S+j}, v{S+j}") for j in range(16)]
    cv = [I(f"v_cvt_pk_bf16_f32 v{P+j}, v{S+2*j}, v{S+2*j+1}") for j in range(8)]
    seq = []
    xs = list(extra[u])
    X = lambda q: flat(xs[len(xs) * q // 3:len(xs) * (q + 1) // 3])
    vr_ = vread(u + 1) if u + 1 < 18 else []
    if u + 1 < 18: seq.append(qk(u + 1))
    seq += xds[u]
    if u + 2 < 18: seq += kread(u + 2)
    seq += X(0) + ex[0:6]
    if u > 0: seq.append(pv(u - 1, 0))
    seq += vr_[0:2] + X(1) + ex[6:11] + cv[0:3]
    if u > 0: seq.append(pv(u - 1, 1))
    seq += vr_[2:4] + X(2) + vr_[4:] + ex[11:16] + cv[3:8]
    if u % 2 == 0: seq = stampq((6,)) + seq
    if OPT["stamps"] == 12:
        if u > 0: seq.insert(2, I(f"v_writelane_b32 v231, s88, {nstamp[0]}")); nstamp[0] += 1
        seq.insert(3 if u > 0 else 1, I(f"{TIMER} s[88:89]"))
    E(seq)
def norm(e):
    o = vO[e]
    t = [f"v_rcp_f32 v{vT0+1}, v{o+8}", "s_nop 0"]
    if e == 0 or O("n1", 1): t += [f"v_mul_f32 v{o+j}, v{o+j}, v{vT0+1}" for j in range(8)]
    else: t += [f"v_pk_mul_f32 {vr(o+j,2)}, {vr(o+j,2)}, {vr(vT0+1,2)} op_sel_hi:[1,0]" for j in range(0, 8, 2)]
    t += [f"v_cvt_pk_bf16_f32 v{o+12+j}, v{o+2*j}, v{o+2*j+1}" for j in range(4)]
    if SENT: t += [f"v_min_u32 v{o+12}, -2, v{o+12}"]
    return t
E([pv(17, 0), pv(17, 1)])
if OPT["stamps"] == 12: E(f"v_writelane_b32 v231, s88, {nstamp[0]}"); nstamp[0] += 1
E("\n".join(norm(0)))
BLO, BHI = fx(2.0 ** -40), fx(2.0 ** 40)
E(f"""
s_mov_b32 s{sT}, {BLO}
s_mov_b32 s{sTb}, {BHI}
v_min_f32 v{vT0}, v{vO[0]+8}, v{vO[1]+8}
v_max_f32 v{vT1}, v{vO[0]+8}, v{vO[1]+8}
v_cmp_nle_f32 vcc, s{sT}, v{vT0}
v_cmp_nge_f32 s[4:5], s{sTb}, v{vT1}
v_cmp_u_f32 s[6:7], v{vO[0]+8}, v{vO[1]+8}
s_or_b64 vcc, vcc, s[4:5]
s_or_b64 vcc, vcc, s[6:7]
s_cbranch_vccnz L_truemax
""")
prog[-1].post = "\nL_att_done:"
E(store4(vO[0] + 12, vOst, "0", 0, "o"))
N1 = O("n1", 1)
if not N1:
    E("\n".join(norm(1)))
    E(store4(vO[1] + 12, vOst, "0", 1024, "o"))
    stamp((6, 12))
    E("s_barrier")
stamp((1, 5, 6, 12))

sa, sb_, sc_, sd_, se_, sf_ = sT, sTb, sTc, sTd, sX, sQ
tm = [f"""
L_truemax:
    s_waitcnt vmcnt(0) lgkmcnt(0)
    s_nop 15
    s_sub_i32 s{sa}, 8, s{sTB}
    s_max_i32 s{sa}, s{sa}, 0
    s_mov_b32 s{sb_}, 0
L_tm_head:
    s_cmp_eq_u32 s{sb_}, 0
    s_cselect_b64 vcc, -1, 0
    s_nop 4
"""]
tm += [f"    v_cndmask_b32 v{vP[1]+j}, v{vQ+4+j}, v{vQ+j}, vcc\n" for j in range(4)]
tm.append(f"""
    v_mov_b32 v{vT0}, 0xff000000
    s_mov_b32 s{sd_}, 0
L_tm_pass:
    s_mov_b32 s{sc_}, s{sa}
""")
tm += [f"    v_mov_b32 v{vS[1]+j}, 0\n" for j in range(16)]
tm.append(f"""
L_tm_blk:
    s_lshl_b32 s{se_}, s{sc_}, 12
    s_lshl_b32 s{sf_}, s{sb_}, 10
    s_add_u32 s{se_}, s{se_}, s{sf_}
    v_add_u32 v{vT1}, s{se_}, v{vKa}
    ds_read_b128 {ar(aK,4)}, v{vT1}
    s_sub_u32 s{se_}, 9, s{sc_}
    v_mul_lo_u32 v{vT2}, s{se_}, v{vVinc}
    v_sub_u32 v{vT2}, v{vVa}, v{vT2}
    v_add_u32 v{vT2}, s{sf_}, v{vT2}
    ds_read_b64_tr_b16 {ar(aV,2)}, v{vT2}
    ds_read_b64_tr_b16 {ar(aV+2,2)}, v{vT2} offset:256
    ds_read_b64_tr_b16 {ar(aV+4,2)}, v{vT2} offset:512
    ds_read_b64_tr_b16 {ar(aV+6,2)}, v{vT2} offset:768
    s_waitcnt lgkmcnt(0)
    s_cmp_eq_u32 s{sc_}, 0
    s_cbranch_scc1 L_tm_far
    s_cmp_eq_u32 s{sc_}, 8
    s_cbranch_scc1 L_tm_diag
    {MF} {vr(vS[0],16)}, {ar(aK,4)}, {vr(vP[1],4)}, 0
    s_branch L_tm_s
L_tm_far:
    {MF} {vr(vS[0],16)}, {ar(aK,4)}, {vr(vP[1],4)}, {vr(vBF,16)}
    s_branch L_tm_s
L_tm_diag:
    {MF} {vr(vS[0],16)}, {ar(aK,4)}, {vr(vP[1],4)}, {vr(vBD,16)}
L_tm_s:
    s_nop 15
    s_cmp_eq_u32 s{sd_}, 0
    s_cbranch_scc0 L_tm_exp
""")
tm += [f"    v_max_f32 v{vT0}, v{vT0}, v{vS[0]+j}\n" for j in range(16)]
tm.append("    s_branch L_tm_next\nL_tm_exp:\n")
tm += [f"    v_sub_f32 v{vS[0]+j}, v{vS[0]+j}, v{vT0}\n" for j in range(16)]
tm += [f"    v_exp_f32 v{vS[0]+j}, v{vS[0]+j}\n" for j in range(16)]
tm.append("    s_nop 1\n")
tm += [f"    v_cvt_pk_bf16_f32 v{vP[0]+j}, v{vS[0]+2*j}, v{vS[0]+2*j+1}\n" for j in range(8)]
tm.append(f"""
    s_nop 1
    {MF} {vr(vS[1],16)}, {ar(aV,4)}, {vr(vP[0],4)}, {vr(vS[1],16)}
    {MF} {vr(vS[1],16)}, {ar(aV+4,4)}, {vr(vP[0]+4,4)}, {vr(vS[1],16)}
    s_nop 15
L_tm_next:
    s_add_u32 s{sc_}, s{sc_}, 1
    s_cmp_lt_u32 s{sc_}, 9
    s_cbranch_scc1 L_tm_blk
    s_cmp_eq_u32 s{sd_}, 0
    s_cbranch_scc0 L_tm_fin
    v_mov_b32 v{vT1}, v{vT0}
    s_nop 1
    v_permlane32_swap_b32 v{vT0}, v{vT1}
    s_nop 1
    v_max_f32 v{vT0}, v{vT0}, v{vT1}
    s_mov_b32 s{sd_}, 1
    s_branch L_tm_pass
L_tm_fin:
    s_cmp_eq_u32 s{sb_}, 0
    s_cbranch_scc0 L_tm_h1
""")
tm += [f"    v_mov_b32 v{vO[0]+j}, v{vS[1]+j}\n" for j in range(16)]
tm.append(f"    s_mov_b32 s{sb_}, 1\n    s_branch L_tm_head\nL_tm_h1:\n")
tm += [f"    v_mov_b32 v{vO[1]+j}, v{vS[1]+j}\n" for j in range(16)]
tm += ["    " + x + "\n" for x in norm(0)]
tm.append(f"    s_nop 1\n    s_branch L_att_done\n")
rare.append("".join(tm))

def oload(j2, tt):
    post = L(f"s_add_u32 s{sWS}, s{sWS}, 1024\ns_and_b32 s{sWS}, s{sWS}, 0x1fff")
    return [I(f"buffer_load_dwordx4 {vr(vOF+8*j2+4*tt,4)}, v{vOo+tt}, {srd(SWS)}, s{sWS} offen sc1")] + post
OF, OP, OC = O("oflag", 6), O("opoll", 12), O("ochk", 17)
if NW2V == 0: E(w2_reads(0))
S3 = Sched()
order = [(j, ct, tt) for j in range(22) for ct in range(2) for tt in range(2)]
order += [(j, ct, 0) for j in range(22, 30) for ct in range(2)]
CTM = O("ctm", 0)
order += [(j, ct, 1) for ct in range(2) for j in range(22, 30)] if CTM else [(j, ct, 1) for j in range(22, 30) for ct in range(2)]
def w2f(j, ct): return vr(W2V[2 * j + ct], 4) if j < NW2V else (ar(aW2 + 8 * (j & 1) + 4 * ct, 4) if j < 22 else ar(8 * (j - 22) + 4 * ct, 4))
for n, (j, ct, tt) in enumerate(order):
    acc = ar(aACC + 32 * ct + 16 * tt, 16)
    bb = ar(aH + 8 * j + 4 * tt, 4) if j < 22 else vr(vOF + 8 * (j - 22) + 4 * tt, 4)
    xr = None
    if ct == 0 and tt == 0 and j >= NW2V: xr = ar(aW2 + 8 * (j & 1), 8) if j < 22 else ar(8 * (j - 22), 8)
    aa = w2f(j, ct)
    S3.pos(I(f"{MF} {acc}, {aa}, {bb}, {'0' if j == 0 else acc}", xr=xr), 6, stampq((5,)) if (n % 8 == 0) else [])
for j in range(30):
    if NW2V <= j + 1 < 23: S3.spread(w2_reads(j + 1), 4 * j, 4 * j + 2, 0)
    if 23 <= j: S3.put(88 + 2 * (j - 24) if j > 23 else 86, w2_reads(j), 0)
    if j >= NW2V and j + 12 < 22:
        S3.put(4 * j + 2, [flat(w2_dma(j + 12))], 1)
S3.pre[0] += L(f"s_lshl_b32 s{sM0K}, s{sW}, 14\ns_mul_i32 s{sT}, s{sW}, 10240\ns_sub_u32 s{sT}, s{sT}, {WB}\nv_add_u32 v{vPa}, s{sT}, v{vW3r}")
if N1:
    S3.spread(L("\n".join(norm(1))) + [store4(vO[1] + 12, vOst, "0", 1024, "o")], 0, 3, 2)
    S3.pre[4] += L("s_barrier")
if NW2V == 10: S3.spread(hl_late + flat([w2_dma(j) for j in range(22, 30)]), 4 if N1 else 0, O('hle', 44), 1, one)
else:
    S3.spread(hl_late, 4, 12, 1, one)
    S3.spread([flat(w2_dma(j)) for j in range(22, 30)], O('wos', 4), O('hle', 44), 1, one)
ol = [oload(j2, tt) for tt in range(2) for j2 in range(8)]
if not SENT:
    S3.put(4 * OF, [flag(3, "o", vFl1)], 1)
    S3.put(4 * OP, [poll_issue(vPb)], 1)
    S3.put(4 * OC, [poll_check("o", SWS, vPoll, vPb)], 1)
    S3.spread(ol, 4 * OC + 1, 4 * O("oend", 24), 1, one)
else:
    OS, OE, OK_ = O("os", 11), O("oe", 20), O("ok", 21)
    S3.spread(ol, 4 * OS, 4 * OE, 1, one)
    for tt in range(2):
        rg = [vOF + 8 * j + 4 * tt for j in range(8)]
        chk = [f"v_max3_u32 v{vT0}, v{rg[0]}, v{rg[1]}, v{rg[2]}", f"v_max3_u32 v{vT0}, v{vT0}, v{rg[3]}, v{rg[4]}", f"v_max3_u32 v{vT0}, v{vT0}, v{rg[5]}, v{rg[6]}", f"v_max_u32 v{vT0}, v{vT0}, v{rg[7]}", f"v_cmp_eq_u32 vcc, -1, v{vT0}"]
        br = L(f"s_cbranch_vccnz L_spin_o{tt}"); br[-1].post = f"\nL_ok_o{tt}:"
        S3.put(87 if tt == 0 else 103, [L("\n".join(chk)) + br], 2)
        rare.append(f"""
L_spin_o{tt}:
    s_mov_b32 s{sSPIN}, {OPT['spin']}
    s_nop 7
L_spin2_o{tt}:
""" + (f"    v_writelane_b32 v231, s{sSPIN}, {29+tt}\n" if OPT["stamps"] else "") + "".join("    " + x.text + "\n" for g in ol[8*tt:8*tt+8] for x in g) + "    s_waitcnt vmcnt(0) lgkmcnt(0)\n" + "".join("    " + x + "\n" for x in chk) + f"""    s_nop 4
    s_cbranch_vccz L_ok_o{tt}
    s_sleep 1
    s_sub_u32 s{sSPIN}, s{sSPIN}, 1
    s_cmp_lg_u32 s{sSPIN}, 0
    s_cbranch_scc1 L_spin2_o{tt}
    s_endpgm
""")
    assert 4 * OE <= 87
S3.spread(L("\n".join(f"v_xor_b32 v{vU+i}, {32*i}, v{vRw}" for i in range(4)) + f"\nv_xor_b32 v{vU+4}, 16, v{vRr}"), 4, 8, 2)
def pwrite(ct, tt): return [I(f"ds_write_b128 v{vU+i}, {ar(aACC+32*ct+16*tt+4*i,4)} offset:{tt*8192+ct*128}") for i in range(4)]
R0 = 128
def fin_reads(tt): return [I(f"ds_read_b128 {vr(R0+8*p+4*n,4)}, v{vRr if n == 0 else vU+4} offset:{p*16384+tt*8192}") for p in range(4) for n in range(2)]
def fin_math(tt, pk):
    x = R0 + 64 + 8 * tt; o = []
    for p in range(4):
        if pk: o += [I(f"v_pk_add_f32 {vr(x+j,2)}, {vr(x+j,2)}, {vr(R0+8*p+j,2)}") for j in range(0, 8, 2)]
        else: o += [I(f"v_add_f32 v{x+j}, v{x+j}, v{R0+8*p+j}") for j in range(8)]
    o += [I(f"v_cvt_pk_bf16_f32 v{R0+32+4*tt+j}, v{x+2*j}, v{x+2*j+1}") for j in range(4)]
    o += [I(f"buffer_store_dwordx4 {vr(R0+32+4*tt,4)}, v{vOut+tt}, {srd(SOUT)}, 0 offen sc1")]
    return o
S3.spread(L("\n".join(f"v_lshlrev_b32 v{R0+64+2*j}, 16, v{vXres+j}\nv_and_b32 v{R0+65+2*j}, 0xffff0000, v{vXres+j}" for j in range(8))), 4 * 12, 4 * 16, 2)
FB = O("fb", 110)
S3.spread(pwrite(0, 0) + pwrite(1, 0), 105, 108, 0)
S3.pre[FB] += L("s_waitcnt lgkmcnt(0)\ns_barrier")
S3.spread(fin_reads(0), FB, FB + 2, 0)
S3.spread(fin_math(0, False), FB + 3, 120, 2)
if CTM: S3.spread(pwrite(0, 1), 116, 120, 0)
if OPT["stamps"] == 13:
    for jj in range(29):
        k = nstamp[0]; nstamp[0] += 1
        S3.put(4 * jj + 2, [I(f"{TIMER} s[88:89]")], 0)
        S3.put(4 * jj + 4, [I(f"v_writelane_b32 v231, s88, {k}")], 2)
E(S3.emit())
stamp((1, 5))
E(pwrite(1, 1) if CTM else pwrite(0, 1) + pwrite(1, 1))
E("s_waitcnt lgkmcnt(0)\ns_barrier")
E(fin_reads(1) + fin_math(1, True))
if OPT["stamps"]:
    stamp()
    E(f"s_waitcnt vmcnt(0)")
    stamp((1, 2, 3, 4, 5, 6, 7, 9, 10, 11, 12, 13, 15, 17))
    E(f"s_lshl_b32 s{sT}, s2, 2\ns_add_u32 s{sT}, s{sT}, s{sW}\ns_lshl_b32 s{sT}, s{sT}, 7\ns_add_u32 s{sT}, s{sT}, {ST0}\nv_lshlrev_b32 v{vT0}, 2, v{vL}\nv_lshrrev_b32 v{vT1}, 5, v{vL}\nv_lshl_add_u32 v{vT0}, v{vT1}, 28, v{vT0}")
    E(f"buffer_store_dword v231, v{vT0}, {srd(SWS)}, s{sT} offen")
if O("xf", 0):
    E("s_waitcnt vmcnt(0)"); stamp()
    if OPT["xf"] == 99: E("s_mov_b32 s90, s88")
    E(("s_sub_u32 s90, s90, s92\ns_lshr_b32 s90, s90, 3" if O("xfc", 0) else "s_sub_u32 s90, s90, s88\ns_lshl_b32 s90, s90, 2") + "\ns_add_u32 s90, s90, 4000\nL_es:\ns_memrealtime s[4:5]\ns_waitcnt lgkmcnt(0)\ns_sub_u32 s4, s4, s88\ns_cmp_lt_u32 s4, s90\ns_cbranch_scc1 L_es")
E("L_end:\ns_endpgm")

lines = finalize(prog, verbose=True)
hdr = f"""; out = x + attn(LN(x)) @ wo + (gelu(LN(x) @ w_gate) * (LN(x) @ w_up)) @ w_down      (one launch, 256 workgroups, one per CU)
; kernarg: x, wqkv, wo, (unused), w_gate, w_up, w_down, out, debug, ws
; pass-1 epilogues in its shadow, sliding-window attention (2 heads x 32 queries per wave; exp2 of the raw scores with a range
; @launch grid=(256,1,1) block=(256,1,1) lds={LDSSZ}
.amdgcn_target "amdgcn-amd-amdhsa--gfx950"
.text
.globl {KNAME}
.p2align 8
.type {KNAME},@function
{KNAME}:
"""
tail = f"""
.fill (({KNAME}+33024-.)/4), 4, 0xbf800000
    s_endpgm
.section .rodata,"a"
.p2align 6
.amdhsa_kernel {KNAME}
  .amdhsa_next_free_vgpr 512
  .amdhsa_next_free_sgpr 102
  .amdhsa_accum_offset 256
  .amdhsa_group_segment_fixed_size 0
  .amdhsa_kernarg_size 80
  .amdhsa_user_sgpr_count 2
  .amdhsa_user_sgpr_kernarg_segment_ptr 1
  .amdhsa_system_sgpr_workgroup_id_x 1
.end_amdhsa_kernel
"""
open(sys.argv[1], "w").write(hdr + "\n".join(lines) + "\n" + "".join(rare) + tail)
```

```python
import sys, math, struct
from asmlib import I, Ins, finalize, weave, Sched

KNAME = "parallel_sum__sliding_block__glu_gated_geglu__prompt_kernel"
OPT = dict(stamps=0, spin=200000)
for a in sys.argv[2:]:
    k, v = a.split("="); OPT[k] = int(v)
def O(k, d): return OPT.get(k, d)

HUGE = 0x40000000
H0 = 4 << 20
HSTR = 88 * 1024
O0 = 10 << 20
FL0 = 12 << 20
ST0 = FL0 + (64 << 10)
SP0 = FL0 + (256 << 10)
WSSZ = 13 << 20
WB = 65536
CS1 = 0; C1STR = 520
STRIP = 49152
CS2 = 53248; CSTR = 1040
LDSSZ = 163840

STC = 4
STB = 18 + 2
sKV = [8, 9, 10]; sRHO, sWB, sWS, sAL, sWL, sMSK, sGp = 11, 12, 13, 14, 15, 16, 17
SX, SQ, SG, SU, SD, SO, SOUT, SWS, SDBG = 24, 28, 32, 36, 40, 44, 48, 52, 56
sW, sRB, sCB, sTB2, sNB, sT0, sT2, sH2, sTB = 3, 60, 61, 62, 63, 64, 65, 66, 67
sX, sQ, sG, sM0X, sM0W = 68, 69, 70, 71, 72
sT, sTb, sTc, sTd = 73, 74, 75, 76
sPK, sPH, sM0D, sD, sSPIN = 77, 78, 80, 81, 82
sPHI, sPH2, sC, sHUGE, sA = 83, 84, 85, 86, 87
sM0K = 79; sSP, sSG = 0, 1
STREG = list(range(90, 94)) + list(range(18, 24))
sHE = [18, 19, 20, 21, 22, 23, 92, 93]
sWE = 94
sLH = [64, 65, 16]; sLW = [17, 14, 15]
def srd(n): return "s[%d:%d]" % (n, n + 3)
def vr(a, n): return "v[%d:%d]" % (a, a + n - 1)
def ar(a, n): return "a[%d:%d]" % (a, a + n - 1)

vL = 0; vT0, vT1, vT2 = 1, 2, 3
vXo = 4; vQo = 8; vGo = 10; vXr = 12; vXp = 16; vWr = 20
vK = [4, 8]
vBx = [12, 16]; vG = 20
vQo2 = 28; vGo2 = 30; vW2r = 32
vSum = 40; vCS1 = 44; vCS2 = 48
vL16, vKVst, vHst, vFl2, vCSw1, vCSw2, vPoll, vInit, vCSr, vSPo, vDo = 52, 53, 54, 55, 56, 57, 58, 59, 60, 61, 62
ACC1 = 64; ACC2 = 160
vXT = 160; vSL = 176
vKa, vVa, vVinc, vOst, vKVo, vPa, vPb, vW3r = 208, 209, 210, 211, 212, 213, 214, 215
vOut, vEo, vAo, vOo, vFl1, vRw, vRr, vPs, vQS = 217, 219, 221, 223, 225, 226, 227, 228, 229
vU = 232; vCSA = [240, 244, 248]
vXres = 28
vBF = 64; vBD = 80; vS = [96, 112]; vP = [128, 136]; vQ = 144; vO = [160, 176]
vOF = 64
aSTV = 200; aMSK = 216
aX = 0; aSEL = 128; aXP = 140; aWF = 152
aH = 0; aW2 = 176; aACC = 192; aK = 192; aV = 200

prog = []; rare = []
def L(txt, **kw): return [I(ln.strip(), **kw) for ln in txt.strip().split("\n") if ln.strip() and not ln.strip().startswith(";")]
def E(x, **kw):
    if isinstance(x, str): prog.extend(L(x, **kw))
    elif isinstance(x, Ins): prog.append(x)
    else: prog.extend(x)
def flat(g): return [x for y in g for x in y]
one = lambda g: 1
nstamp = [0]; xfc = [0]
TIMER = "s_memrealtime" if O("rt", 0) else "s_memtime"
def stampq(sets=(1,)):
    if O("xf", 0):
        if 1 in sets:
            xfc[0] += 1
            if xfc[0] == OPT["xf"]: return L("s_waitcnt lgkmcnt(0)\n%s s[90:91]\ns_waitcnt lgkmcnt(0)" % ("s_memtime" if O("xfc", 0) else "s_memrealtime"))
        return []
    if OPT["stamps"] == 14 and 1 in sets:
        k = nstamp[0]; nstamp[0] += 2
        return L("s_waitcnt lgkmcnt(0)\ns_memtime s[88:89]\ns_memrealtime s[90:91]\ns_waitcnt lgkmcnt(0)\nv_writelane_b32 v231, s88, %d\nv_writelane_b32 v231, s90, %d" % (k, k + 1))
    if OPT["stamps"] in sets:
        k = nstamp[0]; nstamp[0] += 1
        return L("s_waitcnt lgkmcnt(0)\n%s s[88:89]\ns_waitcnt lgkmcnt(0)\nv_writelane_b32 v231, s88, %d" % (TIMER, k))
    return []
def stamp(sets=(1,)): E(stampq(sets))
def fx(f): return "0x%08x" % struct.unpack("<I", struct.pack("<f", f))[0]
MF = "v_mfma_f32_32x32x16_bf16"; MS = "v_mfma_f32_16x16x32_bf16"
HOME = dict(Ka=vKa, Va=vVa, Vinc=vVinc, Ost=vOst, KVo=vKVo, Pa=vPa, Pb=vPb, W3r=vW3r, W3s=vW3r+1, Out=vOut, Out1=vOut+1, Eo=vEo, Eo1=vEo+1, Ao=vAo, Ao1=vAo+1, Oo=vOo, Oo1=vOo+1, Fl1=vFl1, Rw=vRw, Rr=vRr)
def park(name, src): return f"v_mov_b32 v{HOME[name]}, {src}\n"
def dma(voff, S, soff, imm, tag, flags="", need=None):
    if tag in ("c0", "c1", "c2", "c3", "c4", "c5", "c6", "c7")[:O("ntw", 0)] and S != SX: flags = "nt"
    if tag in ("c0", "c1", "c2", "c3", "c4", "c5", "c6", "c7")[:O("ntx", 0)] and S == SX: flags = "nt"
    if tag in ("p0", "p1", "p2", "p3")[:O("ntp", 0)]: flags = "nt"
    o = (" offset:%d" % imm) if imm else ""
    return I(f"buffer_load_dwordx4 v{voff}, {srd(S)}, {soff} offen{o} {flags} lds", tag=tag, need=need)
def glue(q):
    out = []; cur = []
    for n, x in enumerate(q):
        if isinstance(x, list):
            assert not cur
            out.append(x); continue
        cur.append(x)
        nxt = q[n + 1] if n + 1 < len(q) else None
        if x.op.startswith("s_cmp") or (nxt is not None and not isinstance(nxt, list) and nxt.op.startswith("s_cselect")): continue
        out.append(cur); cur = []
    if cur: out.append(cur)
    return out

def t0_of(dst, cb, tmp):
    tab = sum(((c >= 7) + (c >= 8) + (c >= 14) + (c >= 15) & 3) << (2 * c) for c in range(16))
    return f"""s_lshl_b32 s{tmp}, s{cb}, 1
s_lshr_b32 s{tmp}, 0x{tab:08x}, s{tmp}
s_and_b32 s{tmp}, s{tmp}, 3
s_mul_i32 s{dst}, s{cb}, 3
s_sub_u32 s{dst}, s{dst}, s{tmp}
s_min_u32 s{dst}, s{dst}, 41
"""
def mksrd(n, p, size): return f"s_mov_b32 s{n}, s{p}\ns_mov_b32 s{n+1}, s{p+1}\ns_mov_b32 s{n+2}, {size}\ns_mov_b32 s{n+3}, 0x20000\n"
E(f"""
s_cmp_ge_u32 s2, 256
s_cbranch_scc1 L_end
s_load_dwordx2 s[{SX}:{SX+1}], s[0:1], 0
s_load_dwordx2 s[{SQ}:{SQ+1}], s[0:1], 8
s_load_dwordx2 s[{SG}:{SG+1}], s[0:1], 32
s_load_dwordx2 s[{SU}:{SU+1}], s[0:1], 40
""")
if OPT["stamps"]: E(TIMER + " s[88:89]")
if OPT["stamps"] == 14: E("s_memrealtime s[90:91]")
if O("xf", 0): E("s_memrealtime s[88:89]\ns_memtime s[92:93]")
E(f"""
s_getpc_b64 s[40:41]
s_lshr_b32 s{sTb}, s2, 3
s_lshl_b32 s44, s{sTb}, 10
s_add_u32 s42, s44, 1024
s_mov_b32 s43, 0x20000
v_lshlrev_b32 v{vT1}, 7, v0
buffer_load_dword v255, v{vT1}, s[40:43], s44 offen
v_lshrrev_b32 v{vT0}, 6, v0
v_and_b32 v{vL}, 63, v0
v_readfirstlane_b32 s{sW}, v{vT0}
s_bfe_u32 s{sT}, s2, 0x10002
s_and_b32 s{sTd}, s{sTb}, 7
s_lshl3_add_u32 s{sRB}, s{sT}, s{sTd}
s_and_b32 s{sT}, s2, 3
s_lshr_b32 s{sTd}, s2, 6
s_lshl2_add_u32 s{sCB}, s{sT}, s{sTd}
s_add_u32 s{sC}, s{sCB}, s{sRB}
s_and_b32 s{sC}, s{sC}, 3
s_lshl_b32 s{sX}, s{sC}, 8
s_mul_i32 s{sQ}, s{sC}, {2*196608}
s_mul_i32 s{sG}, s{sC}, {2*176128}
s_lshl2_add_u32 s{sTB}, s{sRB}, s{sW}
s_lshl_b32 s{sT}, s{sTB}, 15
s_lshl_b32 s{sM0X}, s{sW}, 12
s_lshl_b32 s{sM0W}, s{sW}, 11
s_bitset1_b32 s{sM0W}, 16
v_lshrrev_b32 v{vT0}, 3, v{vL}
v_lshl_add_u32 v{vT0}, v{vT0}, 10, s{sT}
v_and_b32 v{vT1}, 7, v{vL}
v_lshrrev_b32 v{vT2}, 4, v{vL}
v_xor_b32 v{vT1}, v{vT1}, v{vT2}
v_lshl_add_u32 v{vXo}, v{vT1}, 4, v{vT0}
v_xor_b32 v{vXo+1}, 64, v{vXo}
v_add_u32 v{vXo+1}, {7*1024}, v{vXo+1}
v_add_u32 v{vXo+2}, {14*1024}, v{vXo}
v_add_u32 v{vXo+3}, {14*1024}, v{vXo+1}
{t0_of(sT0, sCB, sT)}v_lshrrev_b32 v{vT0}, 5, v{vL}
v_bfe_u32 v{vT1}, v{vL}, 2, 2
v_lshl_add_u32 v{vT0}, v{vT0}, 2, v{vT1}
v_and_b32 v{vT1}, 16, v{vL}
v_and_b32 v{vT2}, 3, v{vL}
v_lshl_add_u32 v{vT1}, v{vT2}, 2, v{vT1}
v_lshlrev_b32 v{vT1}, 2, v{vT1}
v_lshl_add_u32 v{vDo}, v{vT0}, 10, v{vT1}
s_lshl_b32 s{sT}, s{sW}, 4
v_add_u32 v{vT0}, s{sT}, v{vT0}
s_and_b32 s{sT}, s{sCB}, 1
s_lshr_b32 s{sTd}, s{sCB}, 1
s_lshl3_add_u32 s{sT}, s{sT}, s{sTd}
s_add_u32 s{sT}, s{sT}, 8
s_lshl_b32 s{sT}, s{sT}, 7
s_movk_i32 s{sTd}, 3072
v_mad_u32_u24 v{vQo}, v{vT0}, s{sTd}, v{vT1}
v_add_u32 v{vQo}, s{sT}, v{vQo}
v_add_u32 v{vQo+1}, {8*3072-1024}, v{vQo}
s_lshl_b32 s{sT}, s{sT0}, 6
s_movk_i32 s{sTd}, 2752
v_mad_u32_u24 v{vGo}, v{vT0}, s{sTd}, v{vT1}
v_add_u32 v{vGo}, s{sT}, v{vGo}
v_add_u32 v{vGo+1}, {8*2752-1024}, v{vGo}
s_mov_b32 s{SX+2}, 2097152
s_mov_b32 s{SX+3}, 0x20000
s_mov_b32 s{SQ+2}, 1572864
s_mov_b32 s{SQ+3}, s{SX+3}
s_mov_b32 s{SG+2}, 1409024
s_mov_b32 s{SG+3}, s{SX+3}
s_mov_b32 s{SU+2}, s{SG+2}
s_mov_b32 s{SU+3}, s{SX+3}
s_mov_b32 m0, s{sM0X}
""")
if OPT["stamps"] == 17: E("s_waitcnt lgkmcnt(0)\n" + TIMER + " s[94:95]")
NI = O("ni", 9)
g0 = [[dma(vXo + i, SX, f"s{sX}", 1024 * i, "c0")] for i in range(4)]
g0[3].append(I(f"s_mov_b32 m0, s{sM0W}"))
g0 += [[dma(vQo, SQ, f"s{sQ}", 0, "c0")], [dma(vQo + 1, SQ, f"s{sQ}", 1024, "c0"), I(f"s_add_u32 m0, s{sM0W}, 8192")]]
g0 += [[dma(vGo, SG, f"s{sG}", 0, "c0")], [dma(vGo + 1, SG, f"s{sG}", 1024, "c0"), I(f"s_add_u32 m0, s{sM0W}, 16384")]]
g0 += [[dma(vGo, SU, f"s{sG}", 0, "c0")], [dma(vGo + 1, SU, f"s{sG}", 1024, "c0")]]
E(flat(g0[:NI])); g0 = g0[NI:]
E("""
s_load_dwordx2 s[8:9], s[0:1], 16
s_load_dwordx4 s[16:19], s[0:1], 48
s_load_dwordx4 s[20:23], s[0:1], 64
""")
if OPT["stamps"]:
    E("v_mov_b32 v231, -1\nv_writelane_b32 v231, s88, 0"); nstamp[0] = 1
    if OPT["stamps"] == 14: E("v_writelane_b32 v231, s90, 1"); nstamp[0] = 2
if OPT["stamps"] == 17:
    E(TIMER + " s[96:97]\ns_waitcnt lgkmcnt(0)\nv_writelane_b32 v231, s94, 1\nv_writelane_b32 v231, s96, 2"); nstamp[0] = 3
def table(order): return sum(c << (4 * i) for i, c in enumerate(order))
E(f"""
s_and_b32 s{sT}, s2, 7
s_and_b32 s{sTd}, s{sTb}, 3
s_lshl2_add_u32 s{sTB2}, s{sT}, s{sTd}
s_lshr_b32 s{sNB}, s{sTb}, 2
s_mov_b32 s{sPHI}, 0x76543210
""")
for r in range(1, 4): E(f"s_cmp_eq_u32 s{sC}, {r}\ns_cselect_b32 s{sPHI}, 0x{table([(c + 2 * r) & 7 for c in range(8)]):08x}, s{sPHI}")

def p1_dma(c):
    sl = c & 3; t = "c%d" % c
    g = []
    g.append(L(f"s_bfe_u32 s{sC}, s{sPHI}, {0x30000 + 4*c}\ns_add_u32 m0, s{sM0X}, {sl*16384}\ns_lshl_b32 s{sX}, s{sC}, 7") + [dma(vXo, SX, f"s{sX}", 0, t)])
    g += [[dma(vXo + i, SX, f"s{sX}", 1024 * i, t)] for i in range(1, 4)]
    g.append(L(f"s_add_u32 m0, s{sM0W}, {sl*24576}\ns_mul_i32 s{sQ}, s{sC}, 196608") + [dma(vQo, SQ, f"s{sQ}", 0, t)])
    g.append([dma(vQo + 1, SQ, f"s{sQ}", 1024, t), I(f"s_add_u32 m0, s{sM0W}, {sl*24576+8192}")])
    g.append(L(f"s_mul_i32 s{sG}, s{sC}, 176128") + [dma(vGo, SG, f"s{sG}", 0, t)])
    g.append([dma(vGo + 1, SG, f"s{sG}", 1024, t), I(f"s_add_u32 m0, s{sM0W}, {sl*24576+16384}")])
    g.append([dma(vGo, SU, f"s{sG}", 0, t)])
    g.append([dma(vGo + 1, SU, f"s{sG}", 1024, t)])
    return g
def p2_dma(p):
    t = "p%d" % p
    g = []
    g.append(L(f"s_bfe_u32 s{sC}, s{sPH2}, {0x30000 + 8*p}\ns_add_u32 m0, s{sM0W}, {p*24576}\ns_mul_i32 s{sQ}, s{sC}, 196608") + [dma(vQo2, SQ, f"s{sQ}", 0, t)])
    g.append([dma(vQo2 + 1, SQ, f"s{sQ}", 1024, t), I(f"s_add_u32 m0, s{sM0W}, {p*24576+8192}")])
    g.append(L(f"s_mul_i32 s{sG}, s{sC}, 176128") + [dma(vGo2, SG, f"s{sG}", 0, t)])
    g.append([dma(vGo2 + 1, SG, f"s{sG}", 1024, t), I(f"s_add_u32 m0, s{sM0W}, {p*24576+16384}")])
    g.append([dma(vGo2, SU, f"s{sG}", 0, t)])
    g.append([dma(vGo2 + 1, SU, f"s{sG}", 1024, t)])
    return g

E(mksrd(SWS, 22, WSSZ) + mksrd(SDBG, 20, 256) + f"""
s_mov_b32 s{sHUGE}, {HUGE}
v_lshlrev_b32 v{vL16}, 4, v{vL}
s_cmp_eq_u32 s2, 0
s_cbranch_scc1 L_zero
""")
prog[-1].post = "\nL_zero_done:"
rare.append(f"""
L_zero:
    s_mul_i32 s{sT}, s{sW}, 10240
    s_add_u32 s{sT}, s{sT}, {FL0}
    s_add_u32 s{sTb}, s{sT}, 4096
    s_add_u32 s{sTc}, s{sT}, 8192
    v_mov_b32 v{vXT}, 0
    v_mov_b32 v{vXT+1}, 0
    v_mov_b32 v{vXT+2}, 0
    v_mov_b32 v{vXT+3}, 0
""" + "".join(f"    buffer_store_dwordx4 {vr(vXT,4)}, v{vL16}, {srd(SWS)}, s{[sT, sTb, sTc][i>>2]} offen offset:{1024*(i&3)} sc1\n" for i in range(10)) + "    s_branch L_zero_done\n")
stamp((2,))
init_mark = len(prog)
E(mksrd(SD, 16, 1409024) + mksrd(SO, 8, 524288) + mksrd(SOUT, 18, 2097152))
ann = L(f"""
s_cmp_lg_u32 s2, 0
s_cselect_b32 s{sT}, s{sHUGE}, 0
s_lshl_b32 s{sTb}, s{sW}, 2
s_add_u32 s{sT}, s{sT}, s{sTb}
v_mov_b32 v{vT0}, 1
v_lshlrev_b32 v{vT1}, 8, v{vL}
""") + [I(f"buffer_store_dword v{vT0}, v{vT1}, {srd(SDBG)}, s{sT} offen sc1", need=["c0"])]
E(f"""
s_lshr_b32 s{sPH2}, s{sW}, 1
s_lshl_b32 s{sPH2}, s{sPH2}, 2
s_lshr_b32 s{sPH2}, s{sPHI}, s{sPH2}
s_lshr_b32 s{sT}, 0xe0c0, s{sCB}
s_and_b32 s{sT}, s{sT}, 1
s_cselect_b32 s{sMSK}, s{sHUGE}, 0
s_add_u32 s{sT2}, s{sT0}, 2
""")
if O("w2m", 0) == 0:
    w2touch = L(f"""s_mul_i32 s{sT}, s2, 3
s_add_u32 s{sT}, s{sT}, s{sW}
s_mov_b32 s{STC+3}, 0x20000
s_cmp_eq_u32 s{sW}, 3
s_cselect_b32 s{sT}, s2, s{sT}
s_cselect_b32 s{STC}, s{SO}, s{SD}
s_cselect_b32 s{STC+1}, s{SO+1}, s{SD+1}
s_cselect_b32 s{STC+2}, s{SO+2}, s{SD+2}
s_lshl_b32 s{sT}, s{sT}, 11
v_and_b32 v{vT0}, 15, v{vL}
v_lshlrev_b32 v{vT0}, 7, v{vT0}
v_lshrrev_b32 v{vT1}, 4, v{vL}
v_lshl_add_u32 v{vT0}, v{vT1}, 28, v{vT0}
buffer_load_dword v{vPoll}, v{vT0}, {srd(STC)}, s{sT} offen sc1""")
else:
    w2touch = L(f"""s_lshr_b32 s{sTb}, s2, 3
s_lshl_b32 s{sTb}, s{sTb}, 2
s_and_b32 s{sT}, s2, 3
s_add_u32 s{sTb}, s{sTb}, s{sT}
s_mul_i32 s{sT}, s{sTb}, 3
s_add_u32 s{sT}, s{sT}, s{sW}
s_mov_b32 s{STC+3}, 0x20000
s_cmp_eq_u32 s{sW}, 3
s_cselect_b32 s{sT}, s{sTb}, s{sT}
s_cselect_b32 s{STC}, s{SO}, s{SD}
s_cselect_b32 s{STC+1}, s{SO+1}, s{SD+1}
s_cselect_b32 s{STC+2}, s{SO+2}, s{SD+2}
s_lshl_b32 s{sT}, s{sT}, 12
s_and_b32 s{sTb}, s2, 4
s_lshl_b32 s{sTb}, s{sTb}, 27
s_add_u32 s{sT}, s{sT}, s{sTb}
v_and_b32 v{vT0}, 31, v{vL}
v_lshlrev_b32 v{vT0}, 7, v{vT0}
v_lshrrev_b32 v{vT1}, 5, v{vL}
v_lshl_add_u32 v{vT0}, v{vT1}, 28, v{vT0}
buffer_load_dword v{vPoll}, v{vT0}, {srd(STC)}, s{sT} offen sc1""")
if O("xt", 0):
    E(f"""s_lshr_b32 s{sTb}, s2, 3
s_lshl_b32 s{sTb}, s{sTb}, 2
s_and_b32 s{sT}, s2, 3
s_add_u32 s{sTb}, s{sTb}, s{sT}
s_lshl_b32 s{sTb}, s{sTb}, 2
s_add_u32 s{sT}, s{sTb}, s{sW}
s_lshl_b32 s{sT}, s{sT}, 11
s_add_u32 s{sT}, s{sT}, 0x100000
s_and_b32 s{sTb}, s2, 4
s_lshl_b32 s{sTb}, s{sTb}, 27
s_add_u32 s{sT}, s{sT}, s{sTb}
v_and_b32 v{vT0}, 15, v{vL}
v_lshlrev_b32 v{vT0}, 7, v{vT0}
v_lshrrev_b32 v{vT1}, 4, v{vL}
v_lshl_add_u32 v{vT0}, v{vT1}, 28, v{vT0}
buffer_load_dword v254, v{vT0}, {srd(SX)}, s{sT} offen sc1""")
E(f"""
v_and_b32 v{vT0}, 31, v{vL}
v_lshrrev_b32 v{vT1}, 5, v{vL}
v_bfe_u32 v{vT2}, v{vL}, 1, 3
v_xor_b32 v{vT2}, v{vT2}, v{vT1}
v_lshlrev_b32 v{vT0}, 7, v{vT0}
v_lshl_add_u32 v{vT0}, v{vT2}, 4, v{vT0}
v_add_u32 v{vT0}, s{sM0X}, v{vT0}
""")
for s in range(4):
    E(f"s_xor_b32 s{sT}, s{sW}, {s}\ns_lshl_b32 s{sT}, s{sT}, 5\nv_xor_b32 v{vXr+s}, s{sT}, v{vT0}\nv_xor_b32 v{vXp+s}, 4096, v{vXr+s}")
E(f"""
v_bfe_u32 v{vT2}, v{vL}, 2, 2
v_lshlrev_b32 v{vT2}, 6, v{vT2}
v_bfe_u32 v{vT0}, v{vL}, 4, 1
v_lshl_add_u32 v{vT2}, v{vT0}, 5, v{vT2}
v_and_b32 v{vT0}, 3, v{vL}
v_lshl_add_u32 v{vT2}, v{vT0}, 3, v{vT2}
v_lshl_add_u32 v{vT0}, v{vT1}, 10, v{vT2}
v_lshl_add_u32 v{vT2}, v{vT1}, 9, v{vT2}
s_and_b32 s{sTc}, s{sW}, 1
s_lshl_b32 s{sTc}, s{sTc}, 8
s_add_u32 s{sTc}, s{sTc}, {WB}
s_mul_i32 s{sT}, s{sW}, 6144
s_add_u32 s{sM0D}, s{sT}, {WB}
v_add_u32 v{vT1}, s{sM0D}, v{vT2}
{park("W3r", f"v{vT1}")}v_add_u32 v{vT1}, 49152, v{vT1}
{park("W3s", f"v{vT1}")}
""")
for s in range(4):
    E(f"""
s_xor_b32 s{sT}, s{sW}, {s}
s_lshl_b32 s{sTb}, s{sT}, 11
s_add_u32 s{sTb}, s{sTb}, s{sTc}
v_add_u32 v{vWr+2*s}, s{sTb}, v{vT0}
v_add_u32 v{vWr+2*s+1}, 49152, v{vWr+2*s}
s_lshl_b32 s{sTb}, s{sT}, 10
s_add_u32 s{sTb}, s{sTb}, {WB}
v_add_u32 v{vW2r+2*s}, s{sTb}, v{vT2}
v_add_u32 v{vW2r+2*s+1}, 49152, v{vW2r+2*s}
""")
E(f"""
v_lshrrev_b32 v{vT0}, 2, v{vL}
s_and_b32 s{sT}, s{sW}, 1
s_lshl_b32 s{sT}, s{sT}, 5
v_add_u32 v{vT0}, s{sT}, v{vT0}
v_and_b32 v{vT1}, 3, v{vL}
v_lshlrev_b32 v{vT1}, 4, v{vT1}
s_lshl_b32 s{sT}, s{sCB}, 6
v_mul_u32_u24 v{vQo2}, 3072, v{vT0}
v_add3_u32 v{vQo2}, v{vQo2}, v{vT1}, s{sT}
v_add_u32 v{vQo2+1}, {16*3072-1024}, v{vQo2}
s_lshl_b32 s{sT}, s{sT2}, 6
v_mul_u32_u24 v{vGo2}, 2752, v{vT0}
v_add3_u32 v{vGo2}, v{vGo2}, v{vT1}, s{sT}
v_add_u32 v{vGo2}, s{sMSK}, v{vGo2}
v_add_u32 v{vGo2+1}, {16*2752-1024}, v{vGo2}
v_and_b32 v{vT0}, 15, v{vL}
v_bfe_u32 v{vT1}, v{vL}, 4, 1
v_sub_u32 v{vT0}, v{vT0}, v{vT1}
v_mov_b32 v{vT1}, 0x3f803f80
""")
for t in range(3):
    E(f"v_cmp_eq_u32 vcc, {2*t}, v{vT0}\nv_cndmask_b32 v{vT2}, 0, v{vT1}, vcc")
    E("\n".join(f"v_accvgpr_write_b32 a{aSEL+4*t+j}, v{vT2}" for j in range(4)))
E(f"""
s_lshl_b32 s{sT}, s{sRB}, 2
s_sub_i32 s{sT}, 8, s{sT}
v_and_b32 v{vT0}, 7, v{vL}
v_lshlrev_b32 v{vT0}, 1, v{vT0}
v_mov_b32 v{vT1}, 0x3f80
v_cmp_le_i32 vcc, s{sT}, v{vT0}
v_cndmask_b32 v{vT2}, 0, v{vT1}, vcc
v_accvgpr_write_b32 a{aSTV}, v{vT2}
v_accvgpr_write_b32 a{aSTV+1}, 0
v_add_u32 v{vT0}, 1, v{vT0}
v_cmp_le_i32 vcc, s{sT}, v{vT0}
v_cndmask_b32 v{vT2}, 0, v{vT1}, vcc
v_cmp_ne_u32 vcc, 15, v{vT0}
v_cndmask_b32 v{vT2}, 0, v{vT2}, vcc
v_accvgpr_write_b32 a{aSTV+2}, v{vT2}
v_accvgpr_write_b32 a{aSTV+3}, 0
v_lshlrev_b32 v{vT0}, 3, v{vL}
s_and_b32 s{sTc}, s{sW}, 1
s_lshr_b32 s{sT}, s{sTB}, 1
s_lshl_b32 s{sTb}, s{sT}, 13
s_add_u32 s{sTb}, s{sTb}, {SP0}
s_lshl_b32 s{sTd}, s{sTc}, 8
v_xor_b32 v{vT1}, s{sTd}, v{vT0}
v_add_u32 v{vSPo}, s{sTb}, v{vT1}
s_lshl_b32 s{sSP}, s{sCB}, 9
s_and_b32 s{sSG}, s{sCB}, 12
s_lshl_b32 s{sSG}, s{sSG}, 9
s_lshl_b32 s{sT}, s{sT}, 8
s_and_b32 s{sTb}, s{sCB}, 12
s_lshl_b32 s{sTb}, s{sTb}, 3
s_add_u32 s{sT}, s{sT}, s{sTb}
s_add_u32 s{sT}, s{sT}, {FL0+4*8192}
v_bfe_u32 v{vT1}, v{vL}, 2, 1
v_and_b32 v{vT2}, 3, v{vL}
v_lshlrev_b32 v{vT2}, 3, v{vT2}
v_lshl_add_u32 v{vT1}, v{vT1}, 7, v{vT2}
v_add_u32 v{vPs}, s{sT}, v{vT1}
s_and_b32 s{sTc}, s{sW}, 1
s_mul_i32 s{sT}, s{sTc}, {8*C1STR}
v_add_u32 v{vCSr}, s{sT}, v{vT0}
s_lshr_b32 s{sTb}, s{sW}, 1
s_lshl_b32 s{sTd}, s{sTb}, 8
s_add_u32 s{sT}, s{sT}, s{sTd}
v_bfe_u32 v{vT0}, v{vL}, 1, 3
v_and_b32 v{vT1}, 1, v{vL}
v_lshrrev_b32 v{vT2}, 4, v{vL}
v_lshl_add_u32 v{vT1}, v{vT1}, 2, v{vT2}
v_mul_u32_u24 v{vT2}, {C1STR}, v{vT0}
v_lshl_add_u32 v{vT2}, v{vT1}, 5, v{vT2}
v_add_u32 v{vCSw1}, s{sT}, v{vT2}
s_lshl_b32 s{sT}, s{sTb}, 9
s_lshl_b32 s{sTd}, s{sTc}, 3
s_add_u32 s{sT}, s{sT}, s{sTd}
v_mul_u32_u24 v{vT2}, {CSTR}, v{vT0}
v_lshl_add_u32 v{vT2}, v{vT1}, 6, v{vT2}
v_add_u32 v{vCSw2}, s{sT}, v{vT2}
v_and_b32 v{vT0}, 31, v{vL}
v_lshrrev_b32 v{vT1}, 5, v{vL}
v_lshl_add_u32 v{vT0}, v{vT0}, 1, v{vT1}
v_lshlrev_b32 v{vT0}, 4, v{vT0}
v_add_u32 v{vT0}, 2048, v{vT0}
s_and_b32 s{sT}, s{sCB}, 1
s_cmp_eq_u32 s{sT}, 1
s_cselect_b64 vcc, -1, 0
v_cndmask_b32 v{vKVst}, v{vL16}, v{vT0}, vcc
s_and_b32 s{sT}, s{sCB}, 14
s_add_u32 s{sT}, s{sT}, s{sTc}
s_lshl_b32 s{sT}, s{sT}, 18
s_and_b32 s{sTb}, s{sTB}, -2
s_lshl_b32 s{sTd}, s{sTb}, 12
s_add_u32 s{sT}, s{sT}, s{sTd}
v_add_u32 v{vKVst}, s{sT}, v{vKVst}
s_lshl_b32 s{sPK}, s{sTc}, 12
s_mul_i32 s{sT}, s{sTb}, {HSTR}
s_add_u32 s{sT}, s{sT}, {H0}
s_lshl_b32 s{sTd}, s{sCB}, 12
s_add_u32 s{sT}, s{sT}, s{sTd}
s_lshl_b32 s{sTd}, s{sTc}, 11
s_add_u32 s{sT}, s{sT}, s{sTd}
v_add_u32 v{vHst}, s{sT}, v{vL16}
s_mul_i32 s{sPH}, s{sTc}, {HSTR}
s_lshr_b32 s{sT}, s{sCB}, 3
s_lshl_b32 s{sT}, s{sT}, 1
s_sub_u32 s{sT}, s{sCB}, s{sT}
s_lshl_b32 s{sT}, s{sT}, 11
s_add_u32 s{sT}, s{sT}, 65536
s_add_u32 s{sT}, s{sT}, s{sPH}
s_lshl_b32 s{sTd}, s{sCB}, 12
s_sub_u32 s{sT}, s{sT}, s{sTd}
s_lshl_b32 s{sTd}, s{sTc}, 11
s_sub_u32 s{sT}, s{sT}, s{sTd}
s_and_b32 s{sH2}, s{sCB}, 7
s_cmp_lt_u32 s{sH2}, 6
s_cselect_b32 s{sH2}, s{sT}, s{sHUGE}
s_lshl_b32 s{sT}, s{sTb}, 7
s_lshl_b32 s{sTd}, s{sCB}, 3
s_add_u32 s{sTd}, s{sTd}, {FL0}
s_add_u32 s{sT}, s{sT}, s{sTd}
s_lshl_b32 s{sTb}, s{sTc}, 2
s_add_u32 s{sT}, s{sT}, s{sTb}
v_lshlrev_b32 v{vT0}, 7, v{vL}
v_add_u32 v{vT0}, s{sT}, v{vT0}
v_mov_b32 v{vT1}, s{sHUGE}
v_cmp_gt_u32 vcc, 2, v{vL}
v_cndmask_b32 v{vFl2}, v{vT1}, v{vT0}, vcc
s_lshl_b32 s{sT}, s{sTB}, 7
s_add_u32 s{sT}, s{sT}, s{sTd}
v_mov_b32 v{vT0}, s{sT}
v_cmp_eq_u32 vcc, 0, v{vL}
v_cndmask_b32 v{vT0}, v{vT1}, v{vT0}, vcc
{park("Fl1", f"v{vT0}")}
v_mov_b32 v{vSum}, 0
v_mov_b32 v{vSum+1}, 0
v_mov_b32 v{vSum+2}, 0
v_mov_b32 v{vSum+3}, 0
v_mov_b32 v{vCSA[0]+2}, 0
v_mov_b32 v{vCSA[0]+3}, 0
v_mov_b32 v{vCSA[1]+2}, 0
v_mov_b32 v{vCSA[1]+3}, 0
v_mov_b32 v{vCSA[2]+2}, 0
v_mov_b32 v{vCSA[2]+3}, 0
""")
late_mark = len(prog)
saved = (vT0, vT1, vT2, vU, sT, sTb, sTc, sTd)
if O("defer", 1): vT0, vT1, vT2, vU, sT, sTb, sTc, sTd = 192, 193, 194, 196, 4, 5, 6, 7
E(f"""
s_lshl_b32 s{sT}, s{sNB}, 7
v_add_u32 v{vDo}, s{sT}, v{vDo}
v_add_u32 v{vDo+1}, {7*1024}, v{vDo}
s_lshl_b32 s{sT}, s{sW}, 17
v_add_u32 v{vT0}, s{sT}, v{vDo}
{park("Eo", f"v{vT0}")}v_add_u32 v{vT0}, {7*1024}, v{vT0}
{park("Eo1", f"v{vT0}")}
s_mul_i32 s{sT}, s{sTB2}, {2*HSTR}
s_lshl_b32 s{sTb}, s{sW}, 14
s_add_u32 s{sT}, s{sT}, s{sTb}
s_add_u32 s{sT}, s{sT}, {H0}
v_add_u32 v{vT0}, s{sT}, v{vL16}
{park("Ao", f"v{vT0}")}v_add_u32 v{vT0}, {HSTR}, v{vT0}
{park("Ao1", f"v{vT0}")}
s_lshl_b32 s{sT}, s{sTB2}, 16
s_lshl_b32 s{sTb}, s{sW}, 13
s_add_u32 s{sT}, s{sT}, s{sTb}
s_add_u32 s{sT}, s{sT}, {O0}
v_add_u32 v{vT0}, s{sT}, v{vL16}
{park("Oo", f"v{vT0}")}v_add_u32 v{vT0}, 32768, v{vT0}
{park("Oo1", f"v{vT0}")}
s_lshl_b32 s{sRHO}, s{sTB2}, 1
s_add_u32 s{sRHO}, s{sRHO}, s{sNB}
s_and_b32 s{sRHO}, s{sRHO}, {7 if O("rot", 1) else 0}
s_lshl_b32 s{sWB}, s{sW}, 2
""")
for q in range(8):
    E(f"""s_add_u32 s{sT}, s{sRHO}, {q}
s_bfe_u32 s{sTb}, s{sT}, 0x20001
s_add_u32 s{sTb}, s{sTb}, s{sWB}
{t0_of(sTc, sTb, sTd)}s_and_b32 s{sT}, s{sT}, 1
s_add_u32 s{sT}, s{sT}, s{sTc}
s_lshl_b32 s{sWE+q}, s{sT}, 15
s_add_u32 s{sT}, s{sRHO}, {q}
s_and_b32 s{sT}, s{sT}, 7
s_lshl_b32 s{sHE[q]}, s{sT}, 11""")
E(f"""s_add_u32 s{sT}, s{sTB2}, s{sNB}
s_mul_i32 s{sTb}, s{sT}, 43
s_lshr_b32 s{sTb}, s{sTb}, 7
s_mul_i32 s{sTb}, s{sTb}, 3
s_sub_u32 s{sT}, s{sT}, s{sTb}
s_and_b32 s{sT}, s{sT}, {3 if O("rot", 1) else 0}
s_mul_i32 s{sTc}, s{sW}, 10240
s_sub_u32 s{sTc}, 65536, s{sTc}
s_mul_i32 s{sTd}, s{sW}, 9
s_lshr_b32 s{sTb}, s{sW}, 1
s_lshl_b32 s{sTb}, s{sTb}, 2
s_add_u32 s{sTd}, s{sTd}, s{sTb}
s_add_u32 s{sTd}, s{sTd}, 2
s_lshl_b32 s{sTd}, s{sTd}, 15""")
for q in range(3):
    E(f"""s_lshl_b32 s{sTb}, s{sT}, 11
s_add_u32 s{sLH[q]}, s{sTb}, s{sTc}
s_mul_i32 s{sTb}, s{sT}, 98304
s_add_u32 s{sLW[q]}, s{sTb}, s{sTd}
s_add_u32 s{sT}, s{sT}, 1
s_cmp_eq_u32 s{sT}, 3
s_cselect_b32 s{sT}, 0, s{sT}""")
E(f"""
s_lshl_b32 s{sA}, s{sRHO}, 11
s_lshl_b32 s{sWB}, s{sRHO}, 14
s_lshl_b32 s{sWS}, s{sRHO}, 10
v_lshrrev_b32 v{vT0}, 3, v{vL}
v_and_b32 v{vT1}, 7, v{vL}
s_lshl_b32 s{sT}, s{sTB2}, 6
s_lshl_b32 s{sTb}, s{sW}, 3
s_add_u32 s{sT}, s{sT}, s{sTb}
s_lshl_b32 s{sT}, s{sT}, 10
s_lshl_b32 s{sTb}, s{sNB}, 7
s_add_u32 s{sT}, s{sT}, s{sTb}
v_lshlrev_b32 v{vT2}, 10, v{vT0}
v_lshl_add_u32 v{vT2}, v{vT1}, 4, v{vT2}
v_add_u32 v{vT2}, s{sT}, v{vT2}
{park("Out", f"v{vT2}")}v_add_u32 v{vT2}, 32768, v{vT2}
{park("Out1", f"v{vT2}")}v_lshlrev_b32 v{vT1}, 1, v{vT1}
v_xor_b32 v{vT1}, v{vT1}, v{vT0}
v_lshlrev_b32 v{vT0}, 8, v{vT0}
v_lshl_add_u32 v{vT0}, v{vT1}, 4, v{vT0}
s_lshl_b32 s{sT}, s{sW}, 11
v_add_u32 v{vT0}, s{sT}, v{vT0}
{park("Rr", f"v{vT0}")}v_and_b32 v{vT0}, 31, v{vL}
v_lshrrev_b32 v{vT1}, 5, v{vL}
v_and_b32 v{vT2}, 7, v{vL}
v_xor_b32 v{vT1}, v{vT1}, v{vT2}
v_lshlrev_b32 v{vT0}, 8, v{vT0}
v_lshl_add_u32 v{vT0}, v{vT1}, 4, v{vT0}
s_lshl_b32 s{sT}, s{sW}, 14
v_add_u32 v{vT0}, s{sT}, v{vT0}
{park("Rw", f"v{vT0}")}
v_add_u32 v{vT0}, s{sM0X}, v{vL16}
{park("Ka", f"v{vT0}")}v_lshrrev_b32 v{vT1}, 5, v{vL}
v_bfe_u32 v{vT2}, v{vL}, 2, 2
v_lshl_add_u32 v{vT2}, v{vT1}, 2, v{vT2}
v_lshlrev_b32 v{vT2}, 5, v{vT2}
v_and_b32 v{vT0}, 1, v{vL}
v_lshl_add_u32 v{vT2}, v{vT0}, 4, v{vT2}
v_bfe_u32 v{vT0}, v{vL}, 1, 1
v_lshl_add_u32 v{vT2}, v{vT0}, 3, v{vT2}
s_add_u32 s{sT}, s{sM0X}, 2048
v_add_u32 v{vT2}, s{sT}, v{vT2}
v_xor_b32 v{vT1}, 1, v{vT1}
v_lshlrev_b32 v{vT1}, 7, v{vT1}
s_lshl_b32 s{sT}, s{sW}, 3
s_add_u32 s{sT}, s{sT}, {STRIP}
v_add_u32 v{vU}, {STRIP+120}, v{vT1}
v_add_u32 v{vT1}, s{sT}, v{vT1}
v_and_b32 v{vT0}, 2, v{vL}
v_cmp_eq_u32 vcc, 0, v{vT0}
v_cndmask_b32 v{vT1}, v{vU}, v{vT1}, vcc
v_cndmask_b32 v{vU}, 0, 8, vcc
v_and_b32 v{vT0}, 16, v{vL}
v_cmp_eq_u32 vcc, 0, v{vT0}
v_cndmask_b32 v{vT0}, v{vT1}, v{vT2}, vcc
{park("Va", f"v{vT0}")}v_mov_b32 v{vT2}, 4096
v_cndmask_b32 v{vT0}, v{vU}, v{vT2}, vcc
{park("Vinc", f"v{vT0}")}
s_lshl_b32 s{sT}, s{sTB}, 15
s_lshl_b32 s{sTb}, s{sCB}, 11
s_add_u32 s{sT}, s{sT}, s{sTb}
s_add_u32 s{sT}, s{sT}, {O0}
v_add_u32 v{vT0}, s{sT}, v{vL16}
{park("Ost", f"v{vT0}")}
s_lshl_b32 s{sT}, s{sCB}, 18
v_add_u32 v{vT0}, s{sT}, v{vL16}
{park("KVo", f"v{vT0}")}
""")
SENT = O("sent", 1)
sent_st = [I(f"buffer_store_dwordx4 {vr(vXT,4)}, v{vOst}, {srd(SWS)}, 0 offen offset:{1024*e} sc1", tag="sent") for e in range(2)] if SENT else []
for k in range(3):
    E(f"""
s_add_i32 s{sT}, s{sTB}, {-4*k}
s_lshl_b32 s{sKV[k]}, s{sT}, 12
s_cmp_lt_i32 s{sT}, 0
s_cselect_b32 s{sKV[k]}, s{sHUGE}, s{sKV[k]}
""")
E(f"""
v_min_u32 v{vT1}, 5, v{vL}
v_lshrrev_b32 v{vT2}, 1, v{vT1}
v_lshlrev_b32 v{vT2}, 2, v{vT2}
v_sub_u32 v{vT2}, s{sTB}, v{vT2}
v_cmp_gt_i32 vcc, 0, v{vT2}
v_mov_b32 v{vT0}, s{sTB}
v_cndmask_b32 v{vT2}, v{vT2}, v{vT0}, vcc
v_lshlrev_b32 v{vT2}, 7, v{vT2}
v_and_b32 v{vT1}, 1, v{vT1}
v_lshl_add_u32 v{vT2}, v{vT1}, 3, v{vT2}
s_and_b32 s{sT}, s{sCB}, 14
s_lshl_b32 s{sT}, s{sT}, 3
s_and_b32 s{sTb}, s{sCB}, 1
s_lshl_b32 s{sTb}, s{sTb}, 2
s_add_u32 s{sT}, s{sT}, s{sTb}
s_add_u32 s{sT}, s{sT}, {FL0}
v_add_u32 v{vT0}, s{sT}, v{vT2}
{park("Pa", f"v{vT0}")}
s_lshl_b32 s{sT}, s{sTB2}, 8
s_add_u32 s{sT}, s{sT}, {FL0+8192}
v_lshlrev_b32 v{vT0}, 2, v{vL}
v_add_u32 v{vT0}, s{sT}, v{vT0}
{park("Pb", f"v{vT0}")}
""")
if O("tblm", 1):
    E(f"""v_and_b32 v{vT1}, 31, v{vL}
v_lshrrev_b32 v{vT2}, 5, v{vL}
v_lshlrev_b32 v{vT2}, 2, v{vT2}
v_sub_u32 v{vT1}, v{vT1}, v{vT2}""")
    for j in range(16):
        kl = 8 * (j >> 2) + (j & 3)
        E(f"""v_subrev_u32 v{vT0}, {kl}, v{vT1}
v_ashrrev_i32 v{vT0}, 31, v{vT0}
v_and_b32 v{vT0}, 0xff000000, v{vT0}
v_accvgpr_write_b32 a{aMSK+16+j}, v{vT0}
v_xor_b32 v{vT0}, 0xff000000, v{vT0}
v_accvgpr_write_b32 a{aMSK+j}, v{vT0}""")
vT0, vT1, vT2, vU, sT, sTb, sTc, sTd = saved
late = []
if O("defer", 1):
    late = prog[late_mark:]; del prog[late_mark:]
    nk = O("keep", 100)
    if nk: E(late[-nk:]); late = late[:-nk]
rest = prog[init_mark:]; del prog[init_mark:]
gall = p1_dma(1) + p1_dma(2)
N0 = O("n0", 8)
def safe_at(lst, n):
    x = lst[n]
    return not (x.op.startswith("s_cmp") or x.op == "s_and_b32" or (n + 1 < len(lst) and (lst[n + 1].op.startswith("s_cselect") or lst[n + 1].op.startswith("s_cbranch"))))
cut = int(len(rest) * O("f1", 30) / 100)
while not safe_at(rest, cut - 1): cut += 1
E(rest[:cut])
stamp((2,))
E(flat(g0))
rest = rest[cut:]
gs = gall[:N0]; k = 0
for n, x in enumerate(rest):
    E(x)
    if k < len(gs) and safe_at(rest, n) and n + 1 >= (k + 1) * len(rest) / (len(gs) + 1):
        E(gs[k]); k += 1
if O("w2t", -2) == 0: E(w2touch)
E(flat(gs[k:]))
if O("w2t", -2) == 1: E(w2touch)
stamp((1, 2, 3, 17))

def wf1(st, t): return aWF + (st * 3 + t) * 4
LK = O('lk', 3)
def wf2(k, t): return aWF + ((k % (LK + 1)) * 3 + t) * 4
def p1_reads(c, s):
    sl = c & 3; st = s & 1
    o = [I(f"ds_read_b128 {ar(aX+(4*c+s)*4,4)}, v{vXr+s} offset:{sl*16384}")]
    for t in range(3):
        for n in range(2):
            o.append(I(f"ds_read_b64_tr_b16 {ar(wf1(st,t)+2*n,2)}, v{vWr+2*s+(sl>>1)} offset:{(sl&1)*24576+t*8192+n*512}"))
    o.insert(3, I(f"ds_read_b128 {ar(aXP+4*st,4)}, v{vXp+s} offset:{sl*16384}"))
    return o
def statread(g):
    c, s = g >> 2, g & 3
    return [I(f"ds_read_b128 {vr(vXT+4*s,4)}, v{vXr+s} offset:{(c&3)*16384}")]
def stats(s):
    o = []
    for j in range(4):
        x = vXT + 4 * s + j; a = vU + 2 * (j & 1)
        o += L(f"""v_lshlrev_b32 v{a}, 16, v{x}
v_and_b32 v{a+1}, 0xffff0000, v{x}
v_add_f32 v{vSum}, v{vSum}, v{a}
v_add_f32 v{vSum+1}, v{vSum+1}, v{a+1}
v_fmac_f32 v{vSum+2}, v{a}, v{a}
v_fmac_f32 v{vSum+3}, v{a+1}, v{a+1}""")
    return o
def cs_convert(vcs, vw, base, step):
    o = []
    for j in range(4):
        a = 252 if j & 1 else vU + 4
        o += L(f"""v_cvt_pk_bf16_f32 v{a}, v{vcs+j}, v{vcs+j}
v_and_b32 v{a+1}, 0xffff0000, v{a}
v_sub_f32 v{a+1}, v{vcs+j}, v{a+1}
v_cvt_pk_bf16_f32 v{a+1}, v{a+1}, v{a+1}""")
        o.append(I(f"ds_write_b64 v{vw}, {vr(a,2)} offset:{base+step*j}"))
    return o
C1 = -2.0 * 0.7978845608028654 * 1.4426950408889634
QC = 0.25 * 1.4426950408889634
stats_pub = L(f"""v_add_f32 v{vSum}, v{vSum}, v{vSum+1}
v_add_f32 v{vSum+1}, v{vSum+2}, v{vSum+3}
v_mov_b32 v{vSum+2}, v{vSum}
v_mov_b32 v{vSum+3}, v{vSum+1}
v_lshrrev_b32 v{vT0}, 5, v{vL}
v_permlane32_swap_b32 v{vSum}, v{vSum+2}
v_permlane32_swap_b32 v{vSum+1}, v{vSum+3}
v_lshl_add_u32 v{vT0}, v{vT0}, 28, v{vSPo}
v_add_f32 v{vSum}, v{vSum}, v{vSum+2}
v_add_f32 v{vSum+1}, v{vSum+1}, v{vSum+3}""") + [I(f"buffer_store_dwordx2 {vr(vSum,2)}, v{vT0}, {srd(SWS)}, s{sSP} offen sc1", tag="sp")]
stats_ld = [[I(f"buffer_load_dwordx2 {vr(vSL+2*i,2)}, v{vSPo}, {srd(SWS)}, s{sSG} offen offset:{512*i} sc1")] for i in range(4)]
b = vSL
stats_fin = L(f"""
v_add_f32 v{b}, v{b}, v{b+2}
v_add_f32 v{b+1}, v{b+1}, v{b+3}
v_add_f32 v{b+4}, v{b+4}, v{b+6}
v_add_f32 v{b+5}, v{b+5}, v{b+7}
v_add_f32 v{b}, v{b}, v{b+4}
v_add_f32 v{b+1}, v{b+1}, v{b+5}
v_mul_f32 v{vSum}, {fx(-1.0/512)}, v{b}
v_mul_f32 v{b+1}, {fx(1.0/512)}, v{b+1}
v_fma_f32 v{b+1}, -v{vSum}, v{vSum}, v{b+1}
v_max_f32 v{b+1}, 0, v{b+1}
v_add_f32 v{vSum+1}, {fx(1e-5)}, v{b+1}
v_mov_b32 v{vSum+2}, v{vSum}
v_mov_b32 v{vSum+3}, v{vSum+1}
s_nop 0
v_permlane32_swap_b32 v{vSum}, v{vSum+2}
v_permlane32_swap_b32 v{vSum+1}, v{vSum+3}
""")
def stats_k(o):
    R = vSum + 2 * o + 1; K = vK[o]; a = vU
    t = f"""
v_rsq_f32 v{K}, v{R}
v_mov_b32 v{K+3}, v{R}
v_mul_f32 v{K+1}, {fx(C1)}, v{K}
v_mul_f32 v{a}, v{K}, v{K}
v_mul_f32 v{a}, {fx(0.044715)}, v{a}
v_mul_f32 v{K+2}, v{K+1}, v{a}
"""
    if o == 0: t += f"v_mul_f32 v{vQS}, {fx(QC)}, v{K}\n"
    return L(t)
def stats_b(o):
    nm = vSum + 2 * o; B = vBx[o]; a = vU
    return L(f"""
v_cvt_pk_bf16_f32 v{a}, v{nm}, v{nm}
v_and_b32 v{a}, 0xffff0000, v{a}
v_sub_f32 v{a+1}, v{nm}, v{a}
v_cvt_pk_bf16_f32 v{B}, v{a}, v{a+1}
v_mov_b32 v{B+1}, v{B}
v_mov_b32 v{B+2}, v{B}
v_mov_b32 v{B+3}, v{B}
""")
assert NI < 10
E(ann)
E(I("s_barrier", need=["c0"]))
stamp((2, 17))
E(p1_reads(0, 0) + statread(0) + statread(1))
E(stats(0))
S1 = Sched()
P1 = lambda c, s, t: 24 * c + 6 * s + t
A1 = lambda t, o: ACC1 + 32 * t + 16 * o
for c in range(8):
    for s in range(4):
        st = s & 1; first = (c == 0 and s == 0)
        for q in range(6):
            t, o = q >> 1, q & 1
            acc = vr(A1(t, o), 16)
            xb = ar(aX + (4 * c + s) * 4, 4) if o == 0 else ar(aXP + 4 * st, 4)
            ops = [I(f"{MF} {acc}, {ar(wf1(st,t),4)}, {xb}, {'0' if first else acc}")]
            small = s < 2 and o == 1 and not (O('x_nocs', 0) and c > 0)
            if small:
                cs = vr(vCS1, 4)
                ops.append(I(f"{MS} {cs}, {ar(wf1(st,t),4)}, {ar(aSEL+4*t,4)}, {'0' if (first and t == 0) else cs}"))
            pre = []
            if q == 0 and (O("fw", 0) == 0 or s == 3) and not (c == 7 and s == 3): pre.append(I("s_waitcnt lgkmcnt(0)"))
            if s == 3 and q == 0 and c < 7: pre.append(I("s_barrier", need=["c%d" % (c + 1)]))
            if s == 3 and q == 2 and c == 7: pre += [I("s_waitcnt lgkmcnt(0)"), I("s_barrier", need=["p0"])]
            if s == 0 and q == 0: pre += stampq((3,))
            S1.pos(ops, 8 if small else 6, pre)
NP1 = 192
CORR_K = 0
P2 = lambda k, t: NP1 + 3 * k + t + (6 if k >= CORR_K else 0)
PC = NP1 + 3 * CORR_K
for k in range(32):
    p, s = k >> 3, k & 3
    if k == CORR_K:
        for q in range(6):
            t, o = q >> 1, q & 1
            acc = vr(A1(t, o), 16)
            S1.pos(I(f"{MF} {acc}, {vr(vCSA[t],4)}, {vr(vBx[o],4)}, {acc}"), 6, stampq((1, 3, 17)) if q == 0 else [])
    for t in range(3):
        acc = vr(ACC2 + 16 * t, 16)
        ops = [I(f"{MF} {acc}, {ar(wf2(k,t),4)}, {ar(aX+k*4,4)}, {'0' if k == 0 else acc}", xr=(ar(wf2(k, 0), 24 if (LK == 3 and k % 2 == 0) else 12) if t == 0 else None))]
        if s == 0:
            cs = vr(vCS2, 4)
            ops.append(I(f"{MS} {cs}, {ar(wf2(k,t),4)}, {ar(aSEL+4*t,4)}, {'0' if (k == 0 and t == 0) else cs}"))
        pre = []
        if False:
            pre = []
        if (k & 7) == 8 - LK and t == 1:
            pre = [I("s_waitcnt lgkmcnt(0)"), I("s_barrier", need=["p%d" % (p + 1)] if p < 3 else [])]
        if LK == 3 and k == 30 and t == 1: pre = [I("s_waitcnt lgkmcnt(0)"), I("s_barrier")]
        if LK == 3 and k == 29 and t == 1: pre = []
        if (k & 3) == 0 and t == 0: pre += stampq((4,))
        S1.pos(ops, 8 if s == 0 else 6, pre)
NP2 = len(S1.main)
def p2_reads(k):
    p, g, s = k >> 3, (k >> 2) & 1, k & 3
    return [I(f"ds_read_b64_tr_b16 {ar(wf2(k,t)+2*n,2)}, v{vW2r+2*s+(p>>1)} offset:{(p&1)*24576+t*8192+g*4096+n*256}") for t in range(3) for n in range(2)]
def store4(data, voff, soff, imm, tag):
    if O("x_nost", 0) and tag in ("kv", "h"): return I("s_nop 0")
    o = (" offset:%d" % imm) if imm else ""
    return I(f"buffer_store_dwordx4 {vr(data,4)}, v{voff}, {srd(SWS)}, {soff} offen{o} sc1", tag=tag)
def flag(stage, tag, va):
    if O("x_nofw", -1) == stage: tag = "none"
    return L(f"v_mov_b32 v{vT0}, 1\ns_mov_b32 s{sT}, {stage*8192}") + [I(f"buffer_store_dword v{vT0}, v{va}, {srd(SWS)}, s{sT} offen sc1", need=[tag])]
def poll_issue(va): return [I(f"buffer_load_dword v{vPoll}, v{va}, {srd(SWS)}, 0 offen sc1")]
def poll_check(name, S, reg, addr):
    SITE = {"init": 24, "st": 25, "kv": 26, "h": 27, "h2": 28, "o": 29}[name]
    mark = f"    v_writelane_b32 v231, s{sSPIN}, {SITE}\n" if OPT["stamps"] else ""
    rare.append(f"""
L_spin_{name}:
    s_mov_b32 s{sSPIN}, {OPT['spin']}
L_spin2_{name}:
{mark}    buffer_load_dword v{reg}, v{addr}, {srd(S)}, 0 offen sc1
    s_waitcnt vmcnt(0) lgkmcnt(0)
    v_cmp_eq_u32 vcc, 0, v{reg}
    s_nop 4
    s_cbranch_vccz L_ok_{name}
    s_sleep 1
    s_sub_u32 s{sSPIN}, s{sSPIN}, 1
    s_cmp_lg_u32 s{sSPIN}, 0
    s_cbranch_scc1 L_spin2_{name}
    s_endpgm
""")
    o = L(f"v_cmp_eq_u32 vcc, 0, v{reg}\ns_cbranch_vccnz L_spin_{name}")
    o[-1].post = f"\nL_ok_{name}:"
    return o
SC2 = 1
SG_ = set(range(4)) | set(range(4 * SC2, 4 * SC2 + 4))
for c in range(8):
    for s in range(4):
        g = 4 * c + s
        rd = []
        if g + 1 < 32: rd += p1_reads((g + 1) >> 2, (g + 1) & 3)
        if s < 2 and g + 2 in SG_: rd += statread(g + 2)
        if s == 3 and g + 1 in SG_: rd = statread(g + 1) + rd + statread(g + 2)
        S1.spread(rd, P1(c, s, 0), P1(c, s, O("rdw", 4)), 0)
        if g + 1 in SG_:
            if s != 3: S1.spread(stats((g + 1) & 3), P1(c, s, 0), P1(c, s, 6), 2)
            else: S1.spread(stats(0), P1(c, s, 2), P1(c, s, 6), 2)
    if c == 0:
        gq = gall[N0:]
        if O("w2t", -2) == -1: gq = gq[:10 - N0] + [w2touch] + gq[10 - N0:]
        if O("w2t", -2) == -2: gq = gq + [w2touch]
        N2 = O("n2", 99); carry = gq[N2:]
        S1.spread(gq[:N2], P1(0, O("n2a", 0), 0), P1(0, 3, 0), 1, one)
    if c == 0 and carry:
        S1.spread(carry, P1(0, 3, 0), P1(1, O("n2e", 1), 0), 1, one)
        S1.spread(p1_dma(3), P1(1, O("n2e", 1), 0), P1(1, 3, 0), 1, one)
    elif c < 5: S1.spread(p1_dma(c + 3), P1(c, 3, 0), P1(c + 1, 3, 0), 1, one)
S1.spread(p2_dma(0), P1(6, O("p0a", 1), 0), P1(6, 3, 0), 1, one)
S1.spread(p2_dma(1), P1(6, 3, 0), P1(7, 3, 0), 1, one)
S1.put(O("ipos", 24), [L(f"v_and_b32 v{vT2}, 3, v{vL}\nv_lshlrev_b32 v{vT2}, 2, v{vT2}") + [I(f"buffer_load_dword v{vInit}, v{vT2}, {srd(SDBG)}, 0 offen" + (" sc1" if O("isc", 1) else ""))]], 1)
def glue2(q):
    out = []; cur = []; n = 0
    while n < len(q):
        x = q[n]; cur = [x]; n += 1
        if x.op.startswith("s_cmp"):
            while n < len(q) and q[n].op.startswith("s_cselect"): cur.append(q[n]); n += 1
        elif x.op.startswith("v_cmp"):
            last = n
            for m in range(n, len(q)):
                if q[m].op.startswith("v_cmp"): break
                if q[m].op.startswith("v_cndmask"): last = m + 1
            cur += q[n:last]; n = last
        out.append(cur)
    return out
if late: S1.spread(glue2(late), O("la0", 44), O("la1", 170), 2)
S1.spread(stats_pub, P1(SC2, 3, 0), P1(SC2, 3, 3), 2)
S1.put(P1(O("spf", SC2 + 1), O("spf2", 3), 1), [poll_check("init", SDBG, vInit, vT2) + flag(4, "sp", vFl1)], 2)
S1.put(P1(O("spp", 4 if SC2 == 1 else 5), O("spp2", 2 if SC2 == 1 else 0), 5), [poll_issue(vPs)], 1)
S1.put(P1(5, 3, 1), [poll_check("st", SWS, vPoll, vPs)], 2)
S1.spread(stats_ld, P1(5, 3, 2), P1(5, 3, 6), 1, one)
S1.spread(stats_fin + stats_k(0) + stats_k(1), P1(7, 0, 0), P1(7, 2, 0), 2)
if SENT:
    S1.put(P1(3, 0, 0), L("\n".join(f"v_mov_b32 v{vXT+j}, -1" for j in range(4))), 2)
    S1.put(O("snp", 172), [sent_st[0]], 1); S1.put(O("snp", 172) + O("snd", 8), [sent_st[1]], 1)
S1.spread(cs_convert(vCS1, vCSw1, CS1, 8), P1(7, 2, 0), P1(7, 2, O('cse', 5)), 2)
S1.spread(stats_b(0) + stats_b(1), P1(7, 3, 0), P1(7, 3, 4), 2)
S1.spread(p2_reads(0), P1(7, 3, 2), P1(7, 3, 4), 0)
S1.put(P1(7, 3, 5), p2_reads(1), 0)
if O("w2t", -2) >= 2: S1.put(O("w2t", -2), [w2touch], 1)
S1.spread(p2_dma(2), P1(7, 3, 2), P2(7 - LK, 0), 1, one)

def scale_pack(acc, sc, dst, pk=False):
    o = []
    if pk:
        sel = "op_sel:[0,1] op_sel_hi:[1,1]" if sc & 1 else "op_sel_hi:[1,0]"
        for j in range(0, 16, 2): o.append(I(f"v_pk_mul_f32 {vr(acc+j,2)}, {vr(acc+j,2)}, {vr(sc&~1,2)} {sel}"))
    else:
        for j in range(16): o.append(I(f"v_mul_f32 v{acc+j}, v{acc+j}, v{sc}"))
    for j in range(8): o.append(I(f"v_cvt_pk_bf16_f32 v{dst+j}, v{acc+2*j}, v{acc+2*j+1}"))
    return o
def gelu(g, u, K):
    if O("x_nogelu", 0): return [I("s_nop 0")] * 4
    A, B, R = K + 1, K + 2, K + 3
    o = []
    for b in range(4):
        js = range(4 * b, 4 * b + 4)
        T = lambda j: vG + (j & 3) + 4 * (b & 1)
        o += [I(f"v_mul_f32 v{T(j)}, v{g+j}, v{g+j}") for j in js]
        o += [I(f"v_fma_f32 v{T(j)}, v{T(j)}, v{B}, v{A}") for j in js]
        o += [I(f"v_mul_f32 v{T(j)}, v{g+j}, v{T(j)}") for j in js]
        for j in js: o += [I(f"v_exp_f32 v{T(j)}, v{T(j)}"), I(f"v_mul_f32 v{g+j}, v{g+j}, v{u+j}")]
        o += [I(f"v_fma_f32 v{T(j)}, v{T(j)}, v{R}, v{R}") for j in js]
        o += [I(f"v_rcp_f32 v{T(j)}, v{T(j)}") for j in js]
        o += [I(f"v_mul_f32 v{g+j}, v{g+j}, v{T(j)}") for j in js]
        o += [I(f"v_cvt_pk_bf16_f32 v{u+2*b+k}, v{g+4*b+2*k}, v{g+4*b+2*k+1}") for k in range(2)]
    return o
def gelu_pk(g, u, K):
    o = []
    for b in range(2):
        js = range(8 * b, 8 * b + 8, 2)
        T = lambda j: vG + (j & 7)
        o += [I(f"v_pk_mul_f32 {vr(T(j),2)}, {vr(g+j,2)}, {vr(g+j,2)}") for j in js]
        o += [I(f"v_pk_fma_f32 {vr(T(j),2)}, {vr(T(j),2)}, {vr(K+2,2)}, {vr(K,2)} op_sel:[0,0,1] op_sel_hi:[1,0,1]") for j in js]
        o += [I(f"v_pk_mul_f32 {vr(T(j),2)}, {vr(g+j,2)}, {vr(T(j),2)}") for j in js]
        for j in js: o += [I(f"v_exp_f32 v{T(j)}, v{T(j)}"), I(f"v_exp_f32 v{T(j)+1}, v{T(j)+1}"), I(f"v_pk_mul_f32 {vr(g+j,2)}, {vr(g+j,2)}, {vr(u+j,2)}")]
        o += [I(f"v_pk_fma_f32 {vr(T(j),2)}, {vr(T(j),2)}, {vr(K+2,2)}, {vr(K+2,2)} op_sel:[0,1,1] op_sel_hi:[1,1,1]") for j in js]
        for j in js: o += [I(f"v_rcp_f32 v{T(j)}, v{T(j)}"), I(f"v_rcp_f32 v{T(j)+1}, v{T(j)+1}")]
        o += [I(f"v_pk_mul_f32 {vr(g+j,2)}, {vr(g+j,2)}, {vr(T(j),2)}") for j in js]
        o += [I(f"v_cvt_pk_bf16_f32 v{u+(j>>1)}, v{g+j}, v{g+j+1}") for j in js]
    return o
S1.put(P1(7, 3, 2), [I(f"ds_read_b64 {vr(vCSA[t],2)}, v{vCSr} offset:{CS1+C1STR*t}") for t in range(3)], 0)
if LK == 3: S1.spread(p2_reads(2), PC, PC + 3, 0)
for k in range(32 - LK):
    o = 1 if (k & 7) == 8 - LK else 0
    S1.spread(p2_reads(k + LK), P2(k, o), P2(k, o + (2 if (k & 7) in (7 - LK, 8 - LK) else 3)), 0)

fq = []
sOwn = [f"s{sPK}", f"s{sTd}"]; sOwnH = [f"s{sPH}", f"s{sTc}"]
fq += L(f"s_xor_b32 s{sTd}, s{sPK}, 4096\ns_sub_u32 s{sTc}, {HSTR}, s{sPH}")
for o in range(2):
    a = A1(0, o)
    sp = scale_pack(a, vK[o], a)
    fq += sp[0:8] + sp[16:20] + [store4(a, vKVst, sOwn[o], 0, "kv")] + sp[8:16] + sp[20:24] + [store4(a + 4, vKVst, sOwn[o], 1024, "kv")]
g = []
for o in range(2):
    gg = gelu(A1(1, o), A1(2, o), vK[o])
    g.append(gg[:68] + [store4(A1(2, o), vHst, sOwnH[o], 0, "h")] + gg[68:] + [store4(A1(2, o) + 4, vHst, sOwnH[o], 1024, "h")])
KVF = O("kvflag", 65); KVP = O("kvpoll", 110)
tbl = [[I(f"buffer_load_dwordx4 {vr(vBF+4*i,4)}, v{vL16}, {srd(STB)}, {'0' if i < 4 else 's%d' % sX} offen offset:{1024*(i&3)}")] for i in range(8)]
tbl[0] = L(f"s_movk_i32 s{sX}, 4096") + tbl[0]
strip = [I(f"ds_write_b128 v{vL16}, {ar(aSTV,4)} offset:{STRIP+1024*i}") for i in range(2)]
unp = [I(f"v_accvgpr_read_b32 v{vBF+j}, a{aMSK+j}") for j in range(32)] if O("tblm", 1) else []
fq += g[0][:KVF] + [flag(0, "kv", vFl2)] + g[0][KVF:] + strip + unp
fq += g[1][:KVP] + poll_issue(vPa) + g[1][KVP:]
FQ_END = O("fqend", 29)
S1.spread(glue(fq), PC + 3, P2(FQ_END, 0), 2)
if not O("tblm", 1): S1.spread(tbl, P2(O("tbl", 9), 0), P2(O("tbl", 9) + 5, 0), 1, one)

def w2_dma(j):
    sl = j % 12
    m0 = (sl // 3) * 24576 + (sl % 3) * 2048
    nd = ["r%d" % (j - 12)]
    post = []
    if j >= 22:
        post = L(f"s_add_u32 s{sWB}, s{sWB}, 16384\ns_and_b32 s{sWB}, s{sWB}, 0x1ffff")
        return [L(f"s_add_u32 m0, s{sM0K}, {(j-22)*2048}\ns_nop 0") + [dma(vEo, SO, f"s{sWB}", 0, "w%d" % j)],
                [dma(vEo + 1, SO, f"s{sWB}", 1024, "w%d" % j)] + post]
    if j < 22:
        base = sWE + (j >> 1) if j < 16 else sLW[(j - 16) >> 1]
        so, sr = ("s_nop 0", base) if j & 1 == 0 else (f"s_add_u32 s{sD}, s{base}, 16384", sD)
        vo, S = vDo, SD
    else:
        so, sr, vo, S = "s_nop 0", sWB, vEo, SO
        post = L(f"s_add_u32 s{sWB}, s{sWB}, 16384\ns_and_b32 s{sWB}, s{sWB}, 0x1ffff")
    return [L(f"s_add_u32 m0, s{sM0D}, {m0}\n{so}") + [dma(vo, S, f"s{sr}", 0, "w%d" % j, need=nd)],
            [dma(vo + 1, S, f"s{sr}", 1024, "w%d" % j, need=nd)] + post]
KCHK = O("kvchk", 29)
for p in range(3):
    if not O("x_now2", 0): S1.spread((p2_dma(3) if p == 0 else []) + w2_dma(3 * p) + w2_dma(3 * p + 1) + w2_dma(3 * p + 2), P2(8 * p + 8 - LK, 1), P2(8 * p + 16 - LK, 1) if p < 2 else P2(KCHK, 0), 1, one)
kvdma = []
for k in range(3):
    kvdma.append(L(f"s_add_u32 m0, s{sM0X}, {4096*(8-4*k)}\ns_nop 0") + [dma(vKVo, SWS, f"s{sKV[k]}", 0, "kvl", "sc1")])
    kvdma += [[dma(vKVo, SWS, f"s{sKV[k]}", 1024 * i, "kvl", "sc1")] for i in range(1, 4)]
if not O("x_nokv", 0):
    if not O("x_nochk", 0): S1.put(P2(KCHK, 0), [poll_check("kv", SWS, vPoll, vPa)], 1)
    S1.spread(kvdma, P2(KCHK, 1), NP2, 1, one)
S1.spread(cs_convert(vCS2, vCSw2, CS2, 16), P2(29, 0), P2(30, 0), 2)
S1.put(P2(30, 1), [I(f"ds_read_b128 {vr(vCSA[q],4)}, v{vL16} offset:{CS2+CSTR*q}") for q in range(3)], 0)
if O("x_idle", 0): S1.pre[O("x_idlep", 250)] += L("s_nop 15\n" * (O("x_idle", 0) // 64))
if OPT["stamps"] == 10:
    for g in range(O("l0", 2), min(O("l0", 2) + 30, 32)):
        k = nstamp[0]; nstamp[0] += 1
        S1.put(6 * g + 4, [I(f"{TIMER} s[88:89]")], 2)
        S1.put(6 * g + 6, [I(f"v_writelane_b32 v231, s88, {k}")], 2)
if OPT["stamps"] == 11:
    for kk in range(1, 31):
        k = nstamp[0]; nstamp[0] += 1
        S1.put(P2(kk, 0), [I(f"{TIMER} s[88:89]")], 0)
        S1.put(P2(kk + 1, 0) - 1, [I(f"v_writelane_b32 v231, s88, {k}")], 2)
if OPT["stamps"] == 9:
    for q in range(28):
        p = OPT["za"] + q * OPT["zs"]
        if p < len(S1.main): S1.pre[p] = stampq((9,)) + S1.pre[p]
E(S1.emit())
stamp((1, 4, 12))
post = w2_dma(9) + w2_dma(10) + w2_dma(11)
xres = L(f"buffer_load_dwordx4 {vr(vXres,4)}, v{vOut}, {srd(SX)}, 0 offen\nbuffer_load_dwordx4 {vr(vXres+4,4)}, v{vOut+1}, {srd(SX)}, 0 offen")
for n, t in enumerate((0, 1, 2)):
    acc = vr(ACC2 + 16 * t, 16)
    E(f"{MF} {acc}, {vr(vCSA[t],4)}, {vr(vBx[0],4)}, {acc}")
    E(post[2 * n] + post[2 * n + 1])
E(scale_pack(ACC2, vQS, vQ, pk=False))
gl = gelu_pk(ACC2 + 16, ACC2 + 32, vK[0])
HF = O("hf", 60)
gl = gl[:44] + [store4(ACC2 + 32, vHst, f"s{sH2}", 0, "h2")] + xres + gl[44:] + [store4(ACC2 + 36, vHst, f"s{sH2}", 1024, "h2")]
gl = gl[:HF] + flag(1, "h", vFl2) + gl[HF:]
G2 = O("g2l", 0)
E(gl[:len(gl) - G2]); gl = gl[len(gl) - G2:]
stamp((4, 6, 12))
E(I("s_waitcnt lgkmcnt(0)"))
E(I("s_barrier", need=["kvl"]))
stamp((1, 4, 6, 12))

units = [(i, e) for i in range(9) for e in range(2)]
def kread(u):
    i, e = units[u]
    return [I(f"ds_read_b128 {ar(aK+4*(u&1),4)}, v{vKa} offset:{i*4096+e*1024}")]
def vread(u):
    i, e = units[u]
    o = [I(f"ds_read_b64_tr_b16 {ar(aV+8*(u&1)+4*s+2*n,2)}, v{vVa} offset:{e*1024+s*512+n*256}") for s in range(2) for n in range(2)]
    if e == 1: o.append(I(f"v_add_u32 v{vVa}, v{vVa}, v{vVinc}"))
    return o
def qk(u):
    i, e = units[u]
    c = vr(vBF, 16) if i == 0 else (vr(vBD, 16) if i == 8 else "0")
    return I(f"{MF} {vr(vS[u&1],16)}, {ar(aK+4*(u&1),4)}, {vr(vQ+4*e,4)}, {c}", xr=ar(aV + 8 * (u & 1), 8) if u >= 2 else None)
def pv(u, s):
    i, e = units[u]
    o = vr(vO[e], 16)
    return I(f"{MF} {o}, {ar(aV+8*(u&1)+4*s,4)}, {vr(vP[u&1]+4*s,4)}, {'0' if (i == 0 and s == 0) else o}")
def hload(j, tt):
    post = []
    if j < 16:
        soff = sHE[j >> 1]
    else: soff = sLH[(j - 16) >> 1]
    o = " offset:1024" if j & 1 else ""
    return [I(f"buffer_load_dwordx4 {ar(aH+8*j+4*tt,4)}, v{vAo+tt}, {srd(SWS)}, s{soff} offen{o} sc1")] + post
NW2V = O("w2v", 10)
W2V = [152, 156, 192, 196, 200, 204, 4, 8, 12, 16, 20, 24, 36, 40, 44, 48, 240, 244, 248, 252]
def w2_reads(j):
    sl = j % 12
    base = (sl // 3) * 24576 + (sl % 3) * 2048
    o = []
    for ct in range(2):
        for n in range(2):
            off = base + n * 1024 + ct * 256
            reg = vW3r if off < 49152 else vW3r + 1
            off = off if off < 49152 else off - 49152
            if j >= 22: reg, off = vPa, (j - 22) * 2048 + n * 1024 + ct * 256
            dst = vr(W2V[2*j+ct]+2*n, 2) if j < NW2V else (ar(aW2+8*(j&1)+4*ct+2*n, 2) if j < 22 else ar(8*(j-22)+4*ct+2*n, 2))
            o.append(I(f"ds_read_b64_tr_b16 {dst}, v{reg} offset:{off}", need=["w%d" % j], tag="r%d" % j))
    return o
extra = {u: [] for u in range(18)}
xds = {u: [] for u in range(18)}
WS0, WS1 = O("ws0", 0), O("ws1", 6)
for j in range(NW2V):
    u = WS0 + j * (WS1 - WS0) // max(NW2V, 1)
    xds[u] += w2_reads(j)
    gd = w2_dma(j + 12)
    if j > 0: gd[0] = [x for x in gd[0][1:] if x.op != "s_nop"]
    if j + 1 < NW2V: gd[1] = gd[1] + [w2_dma(j + 13)[0][0]]
    extra[u + 1] += gd
EP, EC = O("ep", 4), O("ec", 7)
LF, LP, LC = O("lf", 2), O("lp", 11), O("lc", 14)
extra[EP].append(poll_issue(vPb))
extra[LF].append(flag(2, "h2", vFl1))
extra[EC].append(poll_check("h", SWS, vPoll, vPb) + L(f"v_and_b32 v{vPb}, -5, v{vPb}\nv_add_u32 v{vPb}, 8192, v{vPb}"))
he = [hload(j, tt) for j in range(16) for tt in range(2)]
hlate = [hload(j, tt) for j in range(16, 22) for tt in range(2)]
EE = O("ee", 16); NE = O("ne", 32)
he_late = he[NE:]; he = he[:NE]
for q in range(EE - EC):
    extra[EC + q] += he[len(he) * q // (EE - EC):len(he) * (q + 1) // (EE - EC)]
extra[LP].append(poll_issue(vPb))
extra[LC].append(poll_check("h2", SWS, vPoll, vPb) + L(f"v_add_u32 v{vPb}, 8192, v{vPb}"))
LS = max(LC, EE)
NL = O("nl", 8)
for q in range(18 - LS):
    extra[LS + q] += hlate[NL * q // (18 - LS):NL * (q + 1) // (18 - LS)]
hl_late = he_late + hlate[NL:]
assert not he_late or NL == 0

E(kread(0) + kread(1) + vread(0))
E(gl[:O("g2m", 12)])
E(qk(0))
E(gl[O("g2m", 12):])
for u in range(18):
    S, P = vS[u & 1], vP[u & 1]
    ex = [I(f"v_exp_f32 v{S+j}, v{S+j}") for j in range(16)]
    cv = [I(f"v_cvt_pk_bf16_f32 v{P+j}, v{S+2*j}, v{S+2*j+1}") for j in range(8)]
    seq = []
    xs = list(extra[u])
    X = lambda q: flat(xs[len(xs) * q // 3:len(xs) * (q + 1) // 3])
    vr_ = vread(u + 1) if u + 1 < 18 else []
    if u + 1 < 18: seq.append(qk(u + 1))
    seq += xds[u]
    if u + 2 < 18: seq += kread(u + 2)
    seq += X(0) + ex[0:6]
    if u > 0: seq.append(pv(u - 1, 0))
    seq += vr_[0:2] + X(1) + ex[6:11] + cv[0:3]
    if u > 0: seq.append(pv(u - 1, 1))
    seq += vr_[2:4] + X(2) + vr_[4:] + ex[11:16] + cv[3:8]
    if u % 2 == 0: seq = stampq((6,)) + seq
    if OPT["stamps"] == 12:
        if u > 0: seq.insert(2, I(f"v_writelane_b32 v231, s88, {nstamp[0]}")); nstamp[0] += 1
        seq.insert(3 if u > 0 else 1, I(f"{TIMER} s[88:89]"))
    E(seq)
def norm(e):
    o = vO[e]
    t = [f"v_rcp_f32 v{vT0+1}, v{o+8}", "s_nop 0"]
    if e == 0 or O("n1", 1): t += [f"v_mul_f32 v{o+j}, v{o+j}, v{vT0+1}" for j in range(8)]
    else: t += [f"v_pk_mul_f32 {vr(o+j,2)}, {vr(o+j,2)}, {vr(vT0+1,2)} op_sel_hi:[1,0]" for j in range(0, 8, 2)]
    t += [f"v_cvt_pk_bf16_f32 v{o+12+j}, v{o+2*j}, v{o+2*j+1}" for j in range(4)]
    if SENT: t += [f"v_min_u32 v{o+12}, -2, v{o+12}"]
    return t
E([pv(17, 0), pv(17, 1)])
if OPT["stamps"] == 12: E(f"v_writelane_b32 v231, s88, {nstamp[0]}"); nstamp[0] += 1
E("\n".join(norm(0)))
BLO, BHI = fx(2.0 ** -40), fx(2.0 ** 40)
E(f"""
s_mov_b32 s{sT}, {BLO}
s_mov_b32 s{sTb}, {BHI}
v_min_f32 v{vT0}, v{vO[0]+8}, v{vO[1]+8}
v_max_f32 v{vT1}, v{vO[0]+8}, v{vO[1]+8}
v_cmp_nle_f32 vcc, s{sT}, v{vT0}
v_cmp_nge_f32 s[4:5], s{sTb}, v{vT1}
v_cmp_u_f32 s[6:7], v{vO[0]+8}, v{vO[1]+8}
s_or_b64 vcc, vcc, s[4:5]
s_or_b64 vcc, vcc, s[6:7]
s_cbranch_vccnz L_truemax
""")
prog[-1].post = "\nL_att_done:"
E(store4(vO[0] + 12, vOst, "0", 0, "o"))
N1 = O("n1", 1)
if not N1:
    E("\n".join(norm(1)))
    E(store4(vO[1] + 12, vOst, "0", 1024, "o"))
    stamp((6, 12))
    E("s_barrier")
stamp((1, 5, 6, 12))

sa, sb_, sc_, sd_, se_, sf_ = sT, sTb, sTc, sTd, sX, sQ
tm = [f"""
L_truemax:
    s_waitcnt vmcnt(0) lgkmcnt(0)
    s_nop 15
    s_sub_i32 s{sa}, 8, s{sTB}
    s_max_i32 s{sa}, s{sa}, 0
    s_mov_b32 s{sb_}, 0
L_tm_head:
    s_cmp_eq_u32 s{sb_}, 0
    s_cselect_b64 vcc, -1, 0
    s_nop 4
"""]
tm += [f"    v_cndmask_b32 v{vP[1]+j}, v{vQ+4+j}, v{vQ+j}, vcc\n" for j in range(4)]
tm.append(f"""
    v_mov_b32 v{vT0}, 0xff000000
    s_mov_b32 s{sd_}, 0
L_tm_pass:
    s_mov_b32 s{sc_}, s{sa}
""")
tm += [f"    v_mov_b32 v{vS[1]+j}, 0\n" for j in range(16)]
tm.append(f"""
L_tm_blk:
    s_lshl_b32 s{se_}, s{sc_}, 12
    s_lshl_b32 s{sf_}, s{sb_}, 10
    s_add_u32 s{se_}, s{se_}, s{sf_}
    v_add_u32 v{vT1}, s{se_}, v{vKa}
    ds_read_b128 {ar(aK,4)}, v{vT1}
    s_sub_u32 s{se_}, 9, s{sc_}
    v_mul_lo_u32 v{vT2}, s{se_}, v{vVinc}
    v_sub_u32 v{vT2}, v{vVa}, v{vT2}
    v_add_u32 v{vT2}, s{sf_}, v{vT2}
    ds_read_b64_tr_b16 {ar(aV,2)}, v{vT2}
    ds_read_b64_tr_b16 {ar(aV+2,2)}, v{vT2} offset:256
    ds_read_b64_tr_b16 {ar(aV+4,2)}, v{vT2} offset:512
    ds_read_b64_tr_b16 {ar(aV+6,2)}, v{vT2} offset:768
    s_waitcnt lgkmcnt(0)
    s_cmp_eq_u32 s{sc_}, 0
    s_cbranch_scc1 L_tm_far
    s_cmp_eq_u32 s{sc_}, 8
    s_cbranch_scc1 L_tm_diag
    {MF} {vr(vS[0],16)}, {ar(aK,4)}, {vr(vP[1],4)}, 0
    s_branch L_tm_s
L_tm_far:
    {MF} {vr(vS[0],16)}, {ar(aK,4)}, {vr(vP[1],4)}, {vr(vBF,16)}
    s_branch L_tm_s
L_tm_diag:
    {MF} {vr(vS[0],16)}, {ar(aK,4)}, {vr(vP[1],4)}, {vr(vBD,16)}
L_tm_s:
    s_nop 15
    s_cmp_eq_u32 s{sd_}, 0
    s_cbranch_scc0 L_tm_exp
""")
tm += [f"    v_max_f32 v{vT0}, v{vT0}, v{vS[0]+j}\n" for j in range(16)]
tm.append("    s_branch L_tm_next\nL_tm_exp:\n")
tm += [f"    v_sub_f32 v{vS[0]+j}, v{vS[0]+j}, v{vT0}\n" for j in range(16)]
tm += [f"    v_exp_f32 v{vS[0]+j}, v{vS[0]+j}\n" for j in range(16)]
tm.append("    s_nop 1\n")
tm += [f"    v_cvt_pk_bf16_f32 v{vP[0]+j}, v{vS[0]+2*j}, v{vS[0]+2*j+1}\n" for j in range(8)]
tm.append(f"""
    s_nop 1
    {MF} {vr(vS[1],16)}, {ar(aV,4)}, {vr(vP[0],4)}, {vr(vS[1],16)}
    {MF} {vr(vS[1],16)}, {ar(aV+4,4)}, {vr(vP[0]+4,4)}, {vr(vS[1],16)}
    s_nop 15
L_tm_next:
    s_add_u32 s{sc_}, s{sc_}, 1
    s_cmp_lt_u32 s{sc_}, 9
    s_cbranch_scc1 L_tm_blk
    s_cmp_eq_u32 s{sd_}, 0
    s_cbranch_scc0 L_tm_fin
    v_mov_b32 v{vT1}, v{vT0}
    s_nop 1
    v_permlane32_swap_b32 v{vT0}, v{vT1}
    s_nop 1
    v_max_f32 v{vT0}, v{vT0}, v{vT1}
    s_mov_b32 s{sd_}, 1
    s_branch L_tm_pass
L_tm_fin:
    s_cmp_eq_u32 s{sb_}, 0
    s_cbranch_scc0 L_tm_h1
""")
tm += [f"    v_mov_b32 v{vO[0]+j}, v{vS[1]+j}\n" for j in range(16)]
tm.append(f"    s_mov_b32 s{sb_}, 1\n    s_branch L_tm_head\nL_tm_h1:\n")
tm += [f"    v_mov_b32 v{vO[1]+j}, v{vS[1]+j}\n" for j in range(16)]
tm += ["    " + x + "\n" for x in norm(0)]
tm.append(f"    s_nop 1\n    s_branch L_att_done\n")
rare.append("".join(tm))

def oload(j2, tt):
    post = L(f"s_add_u32 s{sWS}, s{sWS}, 1024\ns_and_b32 s{sWS}, s{sWS}, 0x1fff")
    return [I(f"buffer_load_dwordx4 {vr(vOF+8*j2+4*tt,4)}, v{vOo+tt}, {srd(SWS)}, s{sWS} offen sc1")] + post
OF, OP, OC = O("oflag", 6), O("opoll", 12), O("ochk", 17)
if NW2V == 0: E(w2_reads(0))
S3 = Sched()
order = [(j, ct, tt) for j in range(22) for ct in range(2) for tt in range(2)]
order += [(j, ct, 0) for j in range(22, 30) for ct in range(2)]
CTM = O("ctm", 0)
order += [(j, ct, 1) for ct in range(2) for j in range(22, 30)] if CTM else [(j, ct, 1) for j in range(22, 30) for ct in range(2)]
def w2f(j, ct): return vr(W2V[2 * j + ct], 4) if j < NW2V else (ar(aW2 + 8 * (j & 1) + 4 * ct, 4) if j < 22 else ar(8 * (j - 22) + 4 * ct, 4))
for n, (j, ct, tt) in enumerate(order):
    acc = ar(aACC + 32 * ct + 16 * tt, 16)
    bb = ar(aH + 8 * j + 4 * tt, 4) if j < 22 else vr(vOF + 8 * (j - 22) + 4 * tt, 4)
    xr = None
    if ct == 0 and tt == 0 and j >= NW2V: xr = ar(aW2 + 8 * (j & 1), 8) if j < 22 else ar(8 * (j - 22), 8)
    aa = w2f(j, ct)
    S3.pos(I(f"{MF} {acc}, {aa}, {bb}, {'0' if j == 0 else acc}", xr=xr), 6, stampq((5,)) if (n % 8 == 0) else [])
for j in range(30):
    if NW2V <= j + 1 < 23: S3.spread(w2_reads(j + 1), 4 * j, 4 * j + 2, 0)
    if 23 <= j: S3.put(88 + 2 * (j - 24) if j > 23 else 86, w2_reads(j), 0)
    if j >= NW2V and j + 12 < 22:
        S3.put(4 * j + 2, [flat(w2_dma(j + 12))], 1)
S3.pre[0] += L(f"s_lshl_b32 s{sM0K}, s{sW}, 14\ns_mul_i32 s{sT}, s{sW}, 10240\ns_sub_u32 s{sT}, s{sT}, {WB}\nv_add_u32 v{vPa}, s{sT}, v{vW3r}")
if N1:
    S3.spread(L("\n".join(norm(1))) + [store4(vO[1] + 12, vOst, "0", 1024, "o")], 0, 3, 2)
    S3.pre[4] += L("s_barrier")
if NW2V == 10: S3.spread(hl_late + flat([w2_dma(j) for j in range(22, 30)]), 4 if N1 else 0, O('hle', 44), 1, one)
else:
    S3.spread(hl_late, 4, 12, 1, one)
    S3.spread([flat(w2_dma(j)) for j in range(22, 30)], O('wos', 4), O('hle', 44), 1, one)
ol = [oload(j2, tt) for tt in range(2) for j2 in range(8)]
if not SENT:
    S3.put(4 * OF, [flag(3, "o", vFl1)], 1)
    S3.put(4 * OP, [poll_issue(vPb)], 1)
    S3.put(4 * OC, [poll_check("o", SWS, vPoll, vPb)], 1)
    S3.spread(ol, 4 * OC + 1, 4 * O("oend", 24), 1, one)
else:
    OS, OE, OK_ = O("os", 11), O("oe", 20), O("ok", 21)
    S3.spread(ol, 4 * OS, 4 * OE, 1, one)
    for tt in range(2):
        rg = [vOF + 8 * j + 4 * tt for j in range(8)]
        chk = [f"v_max3_u32 v{vT0}, v{rg[0]}, v{rg[1]}, v{rg[2]}", f"v_max3_u32 v{vT0}, v{vT0}, v{rg[3]}, v{rg[4]}", f"v_max3_u32 v{vT0}, v{vT0}, v{rg[5]}, v{rg[6]}", f"v_max_u32 v{vT0}, v{vT0}, v{rg[7]}", f"v_cmp_eq_u32 vcc, -1, v{vT0}"]
        br = L(f"s_cbranch_vccnz L_spin_o{tt}"); br[-1].post = f"\nL_ok_o{tt}:"
        S3.put(87 if tt == 0 else 103, [L("\n".join(chk)) + br], 2)
        rare.append(f"""
L_spin_o{tt}:
    s_mov_b32 s{sSPIN}, {OPT['spin']}
    s_nop 7
L_spin2_o{tt}:
""" + (f"    v_writelane_b32 v231, s{sSPIN}, {29+tt}\n" if OPT["stamps"] else "") + "".join("    " + x.text + "\n" for g in ol[8*tt:8*tt+8] for x in g) + "    s_waitcnt vmcnt(0) lgkmcnt(0)\n" + "".join("    " + x + "\n" for x in chk) + f"""    s_nop 4
    s_cbranch_vccz L_ok_o{tt}
    s_sleep 1
    s_sub_u32 s{sSPIN}, s{sSPIN}, 1
    s_cmp_lg_u32 s{sSPIN}, 0
    s_cbranch_scc1 L_spin2_o{tt}
    s_endpgm
""")
    assert 4 * OE <= 87
S3.spread(L("\n".join(f"v_xor_b32 v{vU+i}, {32*i}, v{vRw}" for i in range(4)) + f"\nv_xor_b32 v{vU+4}, 16, v{vRr}"), 4, 8, 2)
def pwrite(ct, tt): return [I(f"ds_write_b128 v{vU+i}, {ar(aACC+32*ct+16*tt+4*i,4)} offset:{tt*8192+ct*128}") for i in range(4)]
R0 = 128
def fin_reads(tt): return [I(f"ds_read_b128 {vr(R0+8*p+4*n,4)}, v{vRr if n == 0 else vU+4} offset:{p*16384+tt*8192}") for p in range(4) for n in range(2)]
def fin_math(tt, pk):
    x = R0 + 64 + 8 * tt; o = []
    for p in range(4):
        if pk: o += [I(f"v_pk_add_f32 {vr(x+j,2)}, {vr(x+j,2)}, {vr(R0+8*p+j,2)}") for j in range(0, 8, 2)]
        else: o += [I(f"v_add_f32 v{x+j}, v{x+j}, v{R0+8*p+j}") for j in range(8)]
    o += [I(f"v_cvt_pk_bf16_f32 v{R0+32+4*tt+j}, v{x+2*j}, v{x+2*j+1}") for j in range(4)]
    o += [I(f"buffer_store_dwordx4 {vr(R0+32+4*tt,4)}, v{vOut+tt}, {srd(SOUT)}, 0 offen sc1")]
    return o
S3.spread(L("\n".join(f"v_lshlrev_b32 v{R0+64+2*j}, 16, v{vXres+j}\nv_and_b32 v{R0+65+2*j}, 0xffff0000, v{vXres+j}" for j in range(8))), 4 * 12, 4 * 16, 2)
FB = O("fb", 110)
S3.spread(pwrite(0, 0) + pwrite(1, 0), 105, 108, 0)
S3.pre[FB] += L("s_waitcnt lgkmcnt(0)\ns_barrier")
S3.spread(fin_reads(0), FB, FB + 2, 0)
S3.spread(fin_math(0, False), FB + 3, 120, 2)
if CTM: S3.spread(pwrite(0, 1), 116, 120, 0)
if OPT["stamps"] == 13:
    for jj in range(29):
        k = nstamp[0]; nstamp[0] += 1
        S3.put(4 * jj + 2, [I(f"{TIMER} s[88:89]")], 0)
        S3.put(4 * jj + 4, [I(f"v_writelane_b32 v231, s88, {k}")], 2)
E(S3.emit())
stamp((1, 5))
E(pwrite(1, 1) if CTM else pwrite(0, 1) + pwrite(1, 1))
E("s_waitcnt lgkmcnt(0)\ns_barrier")
E(fin_reads(1) + fin_math(1, True))
if OPT["stamps"]:
    stamp()
    E(f"s_waitcnt vmcnt(0)")
    stamp((1, 2, 3, 4, 5, 6, 7, 9, 10, 11, 12, 13, 15, 17))
    E(f"s_lshl_b32 s{sT}, s2, 2\ns_add_u32 s{sT}, s{sT}, s{sW}\ns_lshl_b32 s{sT}, s{sT}, 7\ns_add_u32 s{sT}, s{sT}, {ST0}\nv_lshlrev_b32 v{vT0}, 2, v{vL}\nv_lshrrev_b32 v{vT1}, 5, v{vL}\nv_lshl_add_u32 v{vT0}, v{vT1}, 28, v{vT0}")
    E(f"buffer_store_dword v231, v{vT0}, {srd(SWS)}, s{sT} offen")
if O("xf", 0):
    E("s_waitcnt vmcnt(0)"); stamp()
    if OPT["xf"] == 99: E("s_mov_b32 s90, s88")
    E(("s_sub_u32 s90, s90, s92\ns_lshr_b32 s90, s90, 3" if O("xfc", 0) else "s_sub_u32 s90, s90, s88\ns_lshl_b32 s90, s90, 2") + "\ns_add_u32 s90, s90, 4000\nL_es:\ns_memrealtime s[4:5]\ns_waitcnt lgkmcnt(0)\ns_sub_u32 s4, s4, s88\ns_cmp_lt_u32 s4, s90\ns_cbranch_scc1 L_es")
E("L_end:\ns_endpgm")

lines = finalize(prog, verbose=True)
hdr = f"""; out = x + attn(LN(x)) @ wo + (gelu(LN(x) @ w_gate) * (LN(x) @ w_up)) @ w_down      (one launch, 256 workgroups, one per CU)
; kernarg: x, wqkv, wo, (unused), w_gate, w_up, w_down, out, debug, ws
; pass-1 epilogues in its shadow, sliding-window attention (2 heads x 32 queries per wave; exp2 of the raw scores with a range
; @launch grid=(256,1,1) block=(256,1,1) lds={LDSSZ}
.amdgcn_target "amdgcn-amd-amdhsa--gfx950"
.text
.globl {KNAME}
.p2align 8
.type {KNAME},@function
{KNAME}:
"""
tail = f"""
.fill (({KNAME}+33024-.)/4), 4, 0xbf800000
    s_endpgm
.section .rodata,"a"
.p2align 6
.amdhsa_kernel {KNAME}
  .amdhsa_next_free_vgpr 512
  .amdhsa_next_free_sgpr 102
  .amdhsa_accum_offset 256
  .amdhsa_group_segment_fixed_size 0
  .amdhsa_kernarg_size 80
  .amdhsa_user_sgpr_count 2
  .amdhsa_user_sgpr_kernarg_segment_ptr 1
  .amdhsa_system_sgpr_workgroup_id_x 1
.end_amdhsa_kernel
"""
open(sys.argv[1], "w").write(hdr + "\n".join(lines) + "\n" + "".join(rare) + tail)
```

```python
import sys, math, struct
from asmlib import I, Ins, finalize, weave, Sched

KNAME = "parallel_sum__sliding_block__glu_gated_geglu__prompt_kernel"
OPT = dict(stamps=0, spin=200000)
for a in sys.argv[2:]:
    k, v = a.split("="); OPT[k] = int(v)
def O(k, d): return OPT.get(k, d)

HUGE = 0x40000000
H0 = 4 << 20
HSTR = 88 * 1024
O0 = 10 << 20
FL0 = 12 << 20
ST0 = FL0 + (64 << 10)
SP0 = FL0 + (256 << 10)
WSSZ = 13 << 20
WB = 65536
CS1 = 0; C1STR = 520
STRIP = 49152
CS2 = 53248; CSTR = 1040
LDSSZ = 163840

STC = 4
STB = 18 + 2
sKV = [8, 9, 10]; sRHO, sWB, sWS, sAL, sWL, sMSK, sGp = 11, 12, 13, 14, 15, 16, 17
SX, SQ, SG, SU, SD, SO, SOUT, SWS, SDBG = 24, 28, 32, 36, 40, 44, 48, 52, 56
sW, sRB, sCB, sTB2, sNB, sT0, sT2, sH2, sTB = 3, 60, 61, 62, 63, 64, 65, 66, 67
sX, sQ, sG, sM0X, sM0W = 68, 69, 70, 71, 72
sT, sTb, sTc, sTd = 73, 74, 75, 76
sPK, sPH, sM0D, sD, sSPIN = 77, 78, 80, 81, 82
sPHI, sPH2, sC, sHUGE, sA = 83, 84, 85, 86, 87
sM0K = 79; sSP, sSG = 0, 1
STREG = list(range(90, 94)) + list(range(18, 24))
sHE = [18, 19, 20, 21, 22, 23, 92, 93]
sWE = 94
sLH = [64, 65, 16]; sLW = [17, 14, 15]
def srd(n): return "s[%d:%d]" % (n, n + 3)
def vr(a, n): return "v[%d:%d]" % (a, a + n - 1)
def ar(a, n): return "a[%d:%d]" % (a, a + n - 1)

vL = 0; vT0, vT1, vT2 = 1, 2, 3
vXo = 4; vQo = 8; vGo = 10; vXr = 12; vXp = 16; vWr = 20
vK = [4, 8]
vBx = [12, 16]; vG = 20
vQo2 = 28; vGo2 = 30; vW2r = 32
vSum = 40; vCS1 = 44; vCS2 = 48
vL16, vKVst, vHst, vFl2, vCSw1, vCSw2, vPoll, vInit, vCSr, vSPo, vDo = 52, 53, 54, 55, 56, 57, 58, 59, 60, 61, 62
ACC1 = 64; ACC2 = 160
vXT = 160; vSL = 176
vKa, vVa, vVinc, vOst, vKVo, vPa, vPb, vW3r = 208, 209, 210, 211, 212, 213, 214, 215
vOut, vEo, vAo, vOo, vFl1, vRw, vRr, vPs, vQS = 217, 219, 221, 223, 225, 226, 227, 228, 229
vU = 232; vCSA = [240, 244, 248]
vXres = 28
vBF = 64; vBD = 80; vS = [96, 112]; vP = [128, 136]; vQ = 144; vO = [160, 176]
vOF = 64
aSTV = 200; aMSK = 216
aX = 0; aSEL = 128; aXP = 140; aWF = 152
aH = 0; aW2 = 176; aACC = 192; aK = 192; aV = 200

prog = []; rare = []
def L(txt, **kw): return [I(ln.strip(), **kw) for ln in txt.strip().split("\n") if ln.strip() and not ln.strip().startswith(";")]
def E(x, **kw):
    if isinstance(x, str): prog.extend(L(x, **kw))
    elif isinstance(x, Ins): prog.append(x)
    else: prog.extend(x)
def flat(g): return [x for y in g for x in y]
one = lambda g: 1
nstamp = [0]; xfc = [0]
TIMER = "s_memrealtime" if O("rt", 0) else "s_memtime"
def stampq(sets=(1,)):
    if O("xf", 0):
        if 1 in sets:
            xfc[0] += 1
            if xfc[0] == OPT["xf"]: return L("s_waitcnt lgkmcnt(0)\n%s s[90:91]\ns_waitcnt lgkmcnt(0)" % ("s_memtime" if O("xfc", 0) else "s_memrealtime"))
        return []
    if OPT["stamps"] == 14 and 1 in sets:
        k = nstamp[0]; nstamp[0] += 2
        return L("s_waitcnt lgkmcnt(0)\ns_memtime s[88:89]\ns_memrealtime s[90:91]\ns_waitcnt lgkmcnt(0)\nv_writelane_b32 v231, s88, %d\nv_writelane_b32 v231, s90, %d" % (k, k + 1))
    if OPT["stamps"] in sets:
        k = nstamp[0]; nstamp[0] += 1
        return L("s_waitcnt lgkmcnt(0)\n%s s[88:89]\ns_waitcnt lgkmcnt(0)\nv_writelane_b32 v231, s88, %d" % (TIMER, k))
    return []
def stamp(sets=(1,)): E(stampq(sets))
def fx(f): return "0x%08x" % struct.unpack("<I", struct.pack("<f", f))[0]
MF = "v_mfma_f32_32x32x16_bf16"; MS = "v_mfma_f32_16x16x32_bf16"
HOME = dict(Ka=vKa, Va=vVa, Vinc=vVinc, Ost=vOst, KVo=vKVo, Pa=vPa, Pb=vPb, W3r=vW3r, W3s=vW3r+1, Out=vOut, Out1=vOut+1, Eo=vEo, Eo1=vEo+1, Ao=vAo, Ao1=vAo+1, Oo=vOo, Oo1=vOo+1, Fl1=vFl1, Rw=vRw, Rr=vRr)
def park(name, src): return f"v_mov_b32 v{HOME[name]}, {src}\n"
def dma(voff, S, soff, imm, tag, flags="", need=None):
    if tag in ("c0", "c1", "c2", "c3", "c4", "c5", "c6", "c7")[:O("ntw", 0)] and S != SX: flags = "nt"
    if tag in ("c0", "c1", "c2", "c3", "c4", "c5", "c6", "c7")[:O("ntx", 0)] and S == SX: flags = "nt"
    if tag in ("p0", "p1", "p2", "p3")[:O("ntp", 0)]: flags = "nt"
    if tag[0] == "w" and O("nt2", 0): flags = "nt"
    o = (" offset:%d" % imm) if imm else ""
    return I(f"buffer_load_dwordx4 v{voff}, {srd(S)}, {soff} offen{o} {flags} lds", tag=tag, need=need)
def glue(q):
    out = []; cur = []
    for n, x in enumerate(q):
        if isinstance(x, list):
            assert not cur
            out.append(x); continue
        cur.append(x)
        nxt = q[n + 1] if n + 1 < len(q) else None
        if x.op.startswith("s_cmp") or (nxt is not None and not isinstance(nxt, list) and nxt.op.startswith("s_cselect")): continue
        out.append(cur); cur = []
    if cur: out.append(cur)
    return out

def t0_of(dst, cb, tmp):
    tab = sum(((c >= 7) + (c >= 8) + (c >= 14) + (c >= 15) & 3) << (2 * c) for c in range(16))
    return f"""s_lshl_b32 s{tmp}, s{cb}, 1
s_lshr_b32 s{tmp}, 0x{tab:08x}, s{tmp}
s_and_b32 s{tmp}, s{tmp}, 3
s_mul_i32 s{dst}, s{cb}, 3
s_sub_u32 s{dst}, s{dst}, s{tmp}
s_min_u32 s{dst}, s{dst}, 41
"""
def mksrd(n, p, size): return f"s_mov_b32 s{n}, s{p}\ns_mov_b32 s{n+1}, s{p+1}\ns_mov_b32 s{n+2}, {size}\ns_mov_b32 s{n+3}, 0x20000\n"
E(f"""
s_cmp_ge_u32 s2, 256
s_cbranch_scc1 L_end
s_load_dwordx2 s[{SX}:{SX+1}], s[0:1], 0
s_load_dwordx2 s[{SQ}:{SQ+1}], s[0:1], 8
s_load_dwordx2 s[{SG}:{SG+1}], s[0:1], 32
s_load_dwordx2 s[{SU}:{SU+1}], s[0:1], 40
""")
if OPT["stamps"]: E(TIMER + " s[88:89]")
if OPT["stamps"] == 14: E("s_memrealtime s[90:91]")
if O("xf", 0): E("s_memrealtime s[88:89]\ns_memtime s[92:93]")
E(f"""
s_getpc_b64 s[40:41]
s_lshr_b32 s{sTb}, s2, 3
s_lshl_b32 s44, s{sTb}, 10
s_add_u32 s42, s44, 1024
s_mov_b32 s43, 0x20000
v_lshlrev_b32 v{vT1}, 7, v0
buffer_load_dword v255, v{vT1}, s[40:43], s44 offen
v_lshrrev_b32 v{vT0}, 6, v0
v_and_b32 v{vL}, 63, v0
v_readfirstlane_b32 s{sW}, v{vT0}
s_bfe_u32 s{sT}, s2, 0x10002
s_and_b32 s{sTd}, s{sTb}, 7
s_lshl3_add_u32 s{sRB}, s{sT}, s{sTd}
s_and_b32 s{sT}, s2, 3
s_lshr_b32 s{sTd}, s2, 6
s_lshl2_add_u32 s{sCB}, s{sT}, s{sTd}
s_add_u32 s{sC}, s{sCB}, s{sRB}
s_and_b32 s{sC}, s{sC}, 3
s_lshl_b32 s{sX}, s{sC}, 8
s_mul_i32 s{sQ}, s{sC}, {2*196608}
s_mul_i32 s{sG}, s{sC}, {2*176128}
s_lshl2_add_u32 s{sTB}, s{sRB}, s{sW}
s_lshl_b32 s{sT}, s{sTB}, 15
s_lshl_b32 s{sM0X}, s{sW}, 12
s_lshl_b32 s{sM0W}, s{sW}, 11
s_bitset1_b32 s{sM0W}, 16
v_lshrrev_b32 v{vT0}, 3, v{vL}
v_lshl_add_u32 v{vT0}, v{vT0}, 10, s{sT}
v_and_b32 v{vT1}, 7, v{vL}
v_lshrrev_b32 v{vT2}, 4, v{vL}
v_xor_b32 v{vT1}, v{vT1}, v{vT2}
v_lshl_add_u32 v{vXo}, v{vT1}, 4, v{vT0}
v_xor_b32 v{vXo+1}, 64, v{vXo}
v_add_u32 v{vXo+1}, {7*1024}, v{vXo+1}
v_add_u32 v{vXo+2}, {14*1024}, v{vXo}
v_add_u32 v{vXo+3}, {14*1024}, v{vXo+1}
{t0_of(sT0, sCB, sT)}v_lshrrev_b32 v{vT0}, 5, v{vL}
v_bfe_u32 v{vT1}, v{vL}, 2, 2
v_lshl_add_u32 v{vT0}, v{vT0}, 2, v{vT1}
v_and_b32 v{vT1}, 16, v{vL}
v_and_b32 v{vT2}, 3, v{vL}
v_lshl_add_u32 v{vT1}, v{vT2}, 2, v{vT1}
v_lshlrev_b32 v{vT1}, 2, v{vT1}
v_lshl_add_u32 v{vDo}, v{vT0}, 10, v{vT1}
s_lshl_b32 s{sT}, s{sW}, 4
v_add_u32 v{vT0}, s{sT}, v{vT0}
s_and_b32 s{sT}, s{sCB}, 1
s_lshr_b32 s{sTd}, s{sCB}, 1
s_lshl3_add_u32 s{sT}, s{sT}, s{sTd}
s_add_u32 s{sT}, s{sT}, 8
s_lshl_b32 s{sT}, s{sT}, 7
s_movk_i32 s{sTd}, 3072
v_mad_u32_u24 v{vQo}, v{vT0}, s{sTd}, v{vT1}
v_add_u32 v{vQo}, s{sT}, v{vQo}
v_add_u32 v{vQo+1}, {8*3072-1024}, v{vQo}
s_lshl_b32 s{sT}, s{sT0}, 6
s_movk_i32 s{sTd}, 2752
v_mad_u32_u24 v{vGo}, v{vT0}, s{sTd}, v{vT1}
v_add_u32 v{vGo}, s{sT}, v{vGo}
v_add_u32 v{vGo+1}, {8*2752-1024}, v{vGo}
s_mov_b32 s{SX+2}, 2097152
s_mov_b32 s{SX+3}, 0x20000
s_mov_b32 s{SQ+2}, 1572864
s_mov_b32 s{SQ+3}, s{SX+3}
s_mov_b32 s{SG+2}, 1409024
s_mov_b32 s{SG+3}, s{SX+3}
s_mov_b32 s{SU+2}, s{SG+2}
s_mov_b32 s{SU+3}, s{SX+3}
s_mov_b32 m0, s{sM0X}
""")
if OPT["stamps"] == 17: E("s_waitcnt lgkmcnt(0)\n" + TIMER + " s[94:95]")
NI = O("ni", 9)
g0 = [[dma(vXo + i, SX, f"s{sX}", 1024 * i, "c0")] for i in range(4)]
g0[3].append(I(f"s_mov_b32 m0, s{sM0W}"))
g0 += [[dma(vQo, SQ, f"s{sQ}", 0, "c0")], [dma(vQo + 1, SQ, f"s{sQ}", 1024, "c0"), I(f"s_add_u32 m0, s{sM0W}, 8192")]]
g0 += [[dma(vGo, SG, f"s{sG}", 0, "c0")], [dma(vGo + 1, SG, f"s{sG}", 1024, "c0"), I(f"s_add_u32 m0, s{sM0W}, 16384")]]
g0 += [[dma(vGo, SU, f"s{sG}", 0, "c0")], [dma(vGo + 1, SU, f"s{sG}", 1024, "c0")]]
E(flat(g0[:NI])); g0 = g0[NI:]
E("""
s_load_dwordx2 s[8:9], s[0:1], 16
s_load_dwordx4 s[16:19], s[0:1], 48
s_load_dwordx4 s[20:23], s[0:1], 64
""")
if OPT["stamps"]:
    E("v_mov_b32 v231, -1\nv_writelane_b32 v231, s88, 0"); nstamp[0] = 1
    if OPT["stamps"] == 14: E("v_writelane_b32 v231, s90, 1"); nstamp[0] = 2
if OPT["stamps"] == 17:
    E(TIMER + " s[96:97]\ns_waitcnt lgkmcnt(0)\nv_writelane_b32 v231, s94, 1\nv_writelane_b32 v231, s96, 2"); nstamp[0] = 3
def table(order): return sum(c << (4 * i) for i, c in enumerate(order))
E(f"""
s_and_b32 s{sT}, s2, 7
s_and_b32 s{sTd}, s{sTb}, 3
s_lshl2_add_u32 s{sTB2}, s{sT}, s{sTd}
s_lshr_b32 s{sNB}, s{sTb}, 2
s_mov_b32 s{sPHI}, 0x76543210
""")
for r in range(1, 4): E(f"s_cmp_eq_u32 s{sC}, {r}\ns_cselect_b32 s{sPHI}, 0x{table([(c + 2 * r) & 7 for c in range(8)]):08x}, s{sPHI}")

def p1_dma(c):
    sl = c & 3; t = "c%d" % c
    g = []
    g.append(L(f"s_bfe_u32 s{sC}, s{sPHI}, {0x30000 + 4*c}\ns_add_u32 m0, s{sM0X}, {sl*16384}\ns_lshl_b32 s{sX}, s{sC}, 7") + [dma(vXo, SX, f"s{sX}", 0, t)])
    g += [[dma(vXo + i, SX, f"s{sX}", 1024 * i, t)] for i in range(1, 4)]
    g.append(L(f"s_add_u32 m0, s{sM0W}, {sl*24576}\ns_mul_i32 s{sQ}, s{sC}, 196608") + [dma(vQo, SQ, f"s{sQ}", 0, t)])
    g.append([dma(vQo + 1, SQ, f"s{sQ}", 1024, t), I(f"s_add_u32 m0, s{sM0W}, {sl*24576+8192}")])
    g.append(L(f"s_mul_i32 s{sG}, s{sC}, 176128") + [dma(vGo, SG, f"s{sG}", 0, t)])
    g.append([dma(vGo + 1, SG, f"s{sG}", 1024, t), I(f"s_add_u32 m0, s{sM0W}, {sl*24576+16384}")])
    g.append([dma(vGo, SU, f"s{sG}", 0, t)])
    g.append([dma(vGo + 1, SU, f"s{sG}", 1024, t)])
    return g
def p2_dma(p):
    t = "p%d" % p
    g = []
    g.append(L(f"s_bfe_u32 s{sC}, s{sPH2}, {0x30000 + 8*p}\ns_add_u32 m0, s{sM0W}, {p*24576}\ns_mul_i32 s{sQ}, s{sC}, 196608") + [dma(vQo2, SQ, f"s{sQ}", 0, t)])
    g.append([dma(vQo2 + 1, SQ, f"s{sQ}", 1024, t), I(f"s_add_u32 m0, s{sM0W}, {p*24576+8192}")])
    g.append(L(f"s_mul_i32 s{sG}, s{sC}, 176128") + [dma(vGo2, SG, f"s{sG}", 0, t)])
    g.append([dma(vGo2 + 1, SG, f"s{sG}", 1024, t), I(f"s_add_u32 m0, s{sM0W}, {p*24576+16384}")])
    g.append([dma(vGo2, SU, f"s{sG}", 0, t)])
    g.append([dma(vGo2 + 1, SU, f"s{sG}", 1024, t)])
    return g

E(mksrd(SWS, 22, WSSZ) + mksrd(SDBG, 20, 256) + f"""
s_mov_b32 s{sHUGE}, {HUGE}
v_lshlrev_b32 v{vL16}, 4, v{vL}
s_cmp_eq_u32 s2, 0
s_cbranch_scc1 L_zero
""")
prog[-1].post = "\nL_zero_done:"
rare.append(f"""
L_zero:
    s_mul_i32 s{sT}, s{sW}, 10240
    s_add_u32 s{sT}, s{sT}, {FL0}
    s_add_u32 s{sTb}, s{sT}, 4096
    s_add_u32 s{sTc}, s{sT}, 8192
    v_mov_b32 v{vXT}, 0
    v_mov_b32 v{vXT+1}, 0
    v_mov_b32 v{vXT+2}, 0
    v_mov_b32 v{vXT+3}, 0
""" + "".join(f"    buffer_store_dwordx4 {vr(vXT,4)}, v{vL16}, {srd(SWS)}, s{[sT, sTb, sTc][i>>2]} offen offset:{1024*(i&3)} sc1\n" for i in range(10)) + "    s_branch L_zero_done\n")
stamp((2,))
init_mark = len(prog)
E(mksrd(SD, 16, 1409024) + mksrd(SO, 8, 524288) + mksrd(SOUT, 18, 2097152))
ann = L(f"""
s_cmp_lg_u32 s2, 0
s_cselect_b32 s{sT}, s{sHUGE}, 0
s_lshl_b32 s{sTb}, s{sW}, 2
s_add_u32 s{sT}, s{sT}, s{sTb}
v_mov_b32 v{vT0}, 1
v_lshlrev_b32 v{vT1}, 8, v{vL}
""") + [I(f"buffer_store_dword v{vT0}, v{vT1}, {srd(SDBG)}, s{sT} offen sc1", need=["c0"])]
E(f"""
s_lshr_b32 s{sPH2}, s{sW}, 1
s_lshl_b32 s{sPH2}, s{sPH2}, 2
s_lshr_b32 s{sPH2}, s{sPHI}, s{sPH2}
s_lshr_b32 s{sT}, 0xe0c0, s{sCB}
s_and_b32 s{sT}, s{sT}, 1
s_cselect_b32 s{sMSK}, s{sHUGE}, 0
s_add_u32 s{sT2}, s{sT0}, 2
""")
if O("w2m", 0) == 0:
    w2touch = L(f"""s_mul_i32 s{sT}, s2, 3
s_add_u32 s{sT}, s{sT}, s{sW}
s_mov_b32 s{STC+3}, 0x20000
s_cmp_eq_u32 s{sW}, 3
s_cselect_b32 s{sT}, s2, s{sT}
s_cselect_b32 s{STC}, s{SO}, s{SD}
s_cselect_b32 s{STC+1}, s{SO+1}, s{SD+1}
s_cselect_b32 s{STC+2}, s{SO+2}, s{SD+2}
s_lshl_b32 s{sT}, s{sT}, 11
v_and_b32 v{vT0}, 15, v{vL}
v_lshlrev_b32 v{vT0}, 7, v{vT0}
v_lshrrev_b32 v{vT1}, 4, v{vL}
v_lshl_add_u32 v{vT0}, v{vT1}, 28, v{vT0}
buffer_load_dword v{vPoll}, v{vT0}, {srd(STC)}, s{sT} offen sc1""")
else:
    w2touch = L(f"""s_lshr_b32 s{sTb}, s2, 1
s_mul_i32 s{sT}, s{sTb}, 3
s_add_u32 s{sT}, s{sT}, s{sW}
s_mov_b32 s{STC+3}, 0x20000
s_cmp_eq_u32 s{sW}, 3
s_cselect_b32 s{sT}, s{sTb}, s{sT}
s_cselect_b32 s{STC}, s{SO}, s{SD}
s_cselect_b32 s{STC+1}, s{SO+1}, s{SD+1}
s_cselect_b32 s{STC+2}, s{SO+2}, s{SD+2}
s_lshl_b32 s{sT}, s{sT}, 12
s_and_b32 s{sTb}, s2, 1
s_xor_b32 s{sTb}, s{sTb}, {O("w2m", 0) & 1}
s_lshl_b32 s{sTb}, s{sTb}, 29
s_add_u32 s{sT}, s{sT}, s{sTb}
v_and_b32 v{vT0}, 31, v{vL}
v_lshlrev_b32 v{vT0}, 7, v{vT0}
v_lshrrev_b32 v{vT1}, 5, v{vL}
v_lshl_add_u32 v{vT0}, v{vT1}, 28, v{vT0}
buffer_load_dword v{vPoll}, v{vT0}, {srd(STC)}, s{sT} offen sc1""")
if O("xt", 0):
    E(f"""s_lshr_b32 s{sTb}, s2, 3
s_lshl_b32 s{sTb}, s{sTb}, 2
s_and_b32 s{sT}, s2, 3
s_add_u32 s{sTb}, s{sTb}, s{sT}
s_lshl_b32 s{sTb}, s{sTb}, 2
s_add_u32 s{sT}, s{sTb}, s{sW}
s_lshl_b32 s{sT}, s{sT}, 11
s_add_u32 s{sT}, s{sT}, 0x100000
s_and_b32 s{sTb}, s2, 4
s_lshl_b32 s{sTb}, s{sTb}, 27
s_add_u32 s{sT}, s{sT}, s{sTb}
v_and_b32 v{vT0}, 15, v{vL}
v_lshlrev_b32 v{vT0}, 7, v{vT0}
v_lshrrev_b32 v{vT1}, 4, v{vL}
v_lshl_add_u32 v{vT0}, v{vT1}, 28, v{vT0}
buffer_load_dword v254, v{vT0}, {srd(SX)}, s{sT} offen sc1""")
E(f"""
v_and_b32 v{vT0}, 31, v{vL}
v_lshrrev_b32 v{vT1}, 5, v{vL}
v_bfe_u32 v{vT2}, v{vL}, 1, 3
v_xor_b32 v{vT2}, v{vT2}, v{vT1}
v_lshlrev_b32 v{vT0}, 7, v{vT0}
v_lshl_add_u32 v{vT0}, v{vT2}, 4, v{vT0}
v_add_u32 v{vT0}, s{sM0X}, v{vT0}
""")
for s in range(4):
    E(f"s_xor_b32 s{sT}, s{sW}, {s}\ns_lshl_b32 s{sT}, s{sT}, 5\nv_xor_b32 v{vXr+s}, s{sT}, v{vT0}\nv_xor_b32 v{vXp+s}, 4096, v{vXr+s}")
E(f"""
v_bfe_u32 v{vT2}, v{vL}, 2, 2
v_lshlrev_b32 v{vT2}, 6, v{vT2}
v_bfe_u32 v{vT0}, v{vL}, 4, 1
v_lshl_add_u32 v{vT2}, v{vT0}, 5, v{vT2}
v_and_b32 v{vT0}, 3, v{vL}
v_lshl_add_u32 v{vT2}, v{vT0}, 3, v{vT2}
v_lshl_add_u32 v{vT0}, v{vT1}, 10, v{vT2}
v_lshl_add_u32 v{vT2}, v{vT1}, 9, v{vT2}
s_and_b32 s{sTc}, s{sW}, 1
s_lshl_b32 s{sTc}, s{sTc}, 8
s_add_u32 s{sTc}, s{sTc}, {WB}
s_mul_i32 s{sT}, s{sW}, 6144
s_add_u32 s{sM0D}, s{sT}, {WB}
v_add_u32 v{vT1}, s{sM0D}, v{vT2}
{park("W3r", f"v{vT1}")}v_add_u32 v{vT1}, 49152, v{vT1}
{park("W3s", f"v{vT1}")}
""")
for s in range(4):
    E(f"""
s_xor_b32 s{sT}, s{sW}, {s}
s_lshl_b32 s{sTb}, s{sT}, 11
s_add_u32 s{sTb}, s{sTb}, s{sTc}
v_add_u32 v{vWr+2*s}, s{sTb}, v{vT0}
v_add_u32 v{vWr+2*s+1}, 49152, v{vWr+2*s}
s_lshl_b32 s{sTb}, s{sT}, 10
s_add_u32 s{sTb}, s{sTb}, {WB}
v_add_u32 v{vW2r+2*s}, s{sTb}, v{vT2}
v_add_u32 v{vW2r+2*s+1}, 49152, v{vW2r+2*s}
""")
E(f"""
v_lshrrev_b32 v{vT0}, 2, v{vL}
s_and_b32 s{sT}, s{sW}, 1
s_lshl_b32 s{sT}, s{sT}, 5
v_add_u32 v{vT0}, s{sT}, v{vT0}
v_and_b32 v{vT1}, 3, v{vL}
v_lshlrev_b32 v{vT1}, 4, v{vT1}
s_lshl_b32 s{sT}, s{sCB}, 6
v_mul_u32_u24 v{vQo2}, 3072, v{vT0}
v_add3_u32 v{vQo2}, v{vQo2}, v{vT1}, s{sT}
v_add_u32 v{vQo2+1}, {16*3072-1024}, v{vQo2}
s_lshl_b32 s{sT}, s{sT2}, 6
v_mul_u32_u24 v{vGo2}, 2752, v{vT0}
v_add3_u32 v{vGo2}, v{vGo2}, v{vT1}, s{sT}
v_add_u32 v{vGo2}, s{sMSK}, v{vGo2}
v_add_u32 v{vGo2+1}, {16*2752-1024}, v{vGo2}
v_and_b32 v{vT0}, 15, v{vL}
v_bfe_u32 v{vT1}, v{vL}, 4, 1
v_sub_u32 v{vT0}, v{vT0}, v{vT1}
v_mov_b32 v{vT1}, 0x3f803f80
""")
for t in range(3):
    E(f"v_cmp_eq_u32 vcc, {2*t}, v{vT0}\nv_cndmask_b32 v{vT2}, 0, v{vT1}, vcc")
    E("\n".join(f"v_accvgpr_write_b32 a{aSEL+4*t+j}, v{vT2}" for j in range(4)))
E(f"""
s_lshl_b32 s{sT}, s{sRB}, 2
s_sub_i32 s{sT}, 8, s{sT}
v_and_b32 v{vT0}, 7, v{vL}
v_lshlrev_b32 v{vT0}, 1, v{vT0}
v_mov_b32 v{vT1}, 0x3f80
v_cmp_le_i32 vcc, s{sT}, v{vT0}
v_cndmask_b32 v{vT2}, 0, v{vT1}, vcc
v_accvgpr_write_b32 a{aSTV}, v{vT2}
v_accvgpr_write_b32 a{aSTV+1}, 0
v_add_u32 v{vT0}, 1, v{vT0}
v_cmp_le_i32 vcc, s{sT}, v{vT0}
v_cndmask_b32 v{vT2}, 0, v{vT1}, vcc
v_cmp_ne_u32 vcc, 15, v{vT0}
v_cndmask_b32 v{vT2}, 0, v{vT2}, vcc
v_accvgpr_write_b32 a{aSTV+2}, v{vT2}
v_accvgpr_write_b32 a{aSTV+3}, 0
v_lshlrev_b32 v{vT0}, 3, v{vL}
s_and_b32 s{sTc}, s{sW}, 1
s_lshr_b32 s{sT}, s{sTB}, 1
s_lshl_b32 s{sTb}, s{sT}, 13
s_add_u32 s{sTb}, s{sTb}, {SP0}
s_lshl_b32 s{sTd}, s{sTc}, 8
v_xor_b32 v{vT1}, s{sTd}, v{vT0}
v_add_u32 v{vSPo}, s{sTb}, v{vT1}
s_lshl_b32 s{sSP}, s{sCB}, 9
s_and_b32 s{sSG}, s{sCB}, 12
s_lshl_b32 s{sSG}, s{sSG}, 9
s_lshl_b32 s{sT}, s{sT}, 8
s_and_b32 s{sTb}, s{sCB}, 12
s_lshl_b32 s{sTb}, s{sTb}, 3
s_add_u32 s{sT}, s{sT}, s{sTb}
s_add_u32 s{sT}, s{sT}, {FL0+4*8192}
v_bfe_u32 v{vT1}, v{vL}, 2, 1
v_and_b32 v{vT2}, 3, v{vL}
v_lshlrev_b32 v{vT2}, 3, v{vT2}
v_lshl_add_u32 v{vT1}, v{vT1}, 7, v{vT2}
v_add_u32 v{vPs}, s{sT}, v{vT1}
s_and_b32 s{sTc}, s{sW}, 1
s_mul_i32 s{sT}, s{sTc}, {8*C1STR}
v_add_u32 v{vCSr}, s{sT}, v{vT0}
s_lshr_b32 s{sTb}, s{sW}, 1
s_lshl_b32 s{sTd}, s{sTb}, 8
s_add_u32 s{sT}, s{sT}, s{sTd}
v_bfe_u32 v{vT0}, v{vL}, 1, 3
v_and_b32 v{vT1}, 1, v{vL}
v_lshrrev_b32 v{vT2}, 4, v{vL}
v_lshl_add_u32 v{vT1}, v{vT1}, 2, v{vT2}
v_mul_u32_u24 v{vT2}, {C1STR}, v{vT0}
v_lshl_add_u32 v{vT2}, v{vT1}, 5, v{vT2}
v_add_u32 v{vCSw1}, s{sT}, v{vT2}
s_lshl_b32 s{sT}, s{sTb}, 9
s_lshl_b32 s{sTd}, s{sTc}, 3
s_add_u32 s{sT}, s{sT}, s{sTd}
v_mul_u32_u24 v{vT2}, {CSTR}, v{vT0}
v_lshl_add_u32 v{vT2}, v{vT1}, 6, v{vT2}
v_add_u32 v{vCSw2}, s{sT}, v{vT2}
v_and_b32 v{vT0}, 31, v{vL}
v_lshrrev_b32 v{vT1}, 5, v{vL}
v_lshl_add_u32 v{vT0}, v{vT0}, 1, v{vT1}
v_lshlrev_b32 v{vT0}, 4, v{vT0}
v_add_u32 v{vT0}, 2048, v{vT0}
s_and_b32 s{sT}, s{sCB}, 1
s_cmp_eq_u32 s{sT}, 1
s_cselect_b64 vcc, -1, 0
v_cndmask_b32 v{vKVst}, v{vL16}, v{vT0}, vcc
s_and_b32 s{sT}, s{sCB}, 14
s_add_u32 s{sT}, s{sT}, s{sTc}
s_lshl_b32 s{sT}, s{sT}, 18
s_and_b32 s{sTb}, s{sTB}, -2
s_lshl_b32 s{sTd}, s{sTb}, 12
s_add_u32 s{sT}, s{sT}, s{sTd}
v_add_u32 v{vKVst}, s{sT}, v{vKVst}
s_lshl_b32 s{sPK}, s{sTc}, 12
s_mul_i32 s{sT}, s{sTb}, {HSTR}
s_add_u32 s{sT}, s{sT}, {H0}
s_lshl_b32 s{sTd}, s{sCB}, 12
s_add_u32 s{sT}, s{sT}, s{sTd}
s_lshl_b32 s{sTd}, s{sTc}, 11
s_add_u32 s{sT}, s{sT}, s{sTd}
v_add_u32 v{vHst}, s{sT}, v{vL16}
s_mul_i32 s{sPH}, s{sTc}, {HSTR}
s_lshr_b32 s{sT}, s{sCB}, 3
s_lshl_b32 s{sT}, s{sT}, 1
s_sub_u32 s{sT}, s{sCB}, s{sT}
s_lshl_b32 s{sT}, s{sT}, 11
s_add_u32 s{sT}, s{sT}, 65536
s_add_u32 s{sT}, s{sT}, s{sPH}
s_lshl_b32 s{sTd}, s{sCB}, 12
s_sub_u32 s{sT}, s{sT}, s{sTd}
s_lshl_b32 s{sTd}, s{sTc}, 11
s_sub_u32 s{sT}, s{sT}, s{sTd}
s_and_b32 s{sH2}, s{sCB}, 7
s_cmp_lt_u32 s{sH2}, 6
s_cselect_b32 s{sH2}, s{sT}, s{sHUGE}
s_lshl_b32 s{sT}, s{sTb}, 7
s_lshl_b32 s{sTd}, s{sCB}, 3
s_add_u32 s{sTd}, s{sTd}, {FL0}
s_add_u32 s{sT}, s{sT}, s{sTd}
s_lshl_b32 s{sTb}, s{sTc}, 2
s_add_u32 s{sT}, s{sT}, s{sTb}
v_lshlrev_b32 v{vT0}, 7, v{vL}
v_add_u32 v{vT0}, s{sT}, v{vT0}
v_mov_b32 v{vT1}, s{sHUGE}
v_cmp_gt_u32 vcc, 2, v{vL}
v_cndmask_b32 v{vFl2}, v{vT1}, v{vT0}, vcc
s_lshl_b32 s{sT}, s{sTB}, 7
s_add_u32 s{sT}, s{sT}, s{sTd}
v_mov_b32 v{vT0}, s{sT}
v_cmp_eq_u32 vcc, 0, v{vL}
v_cndmask_b32 v{vT0}, v{vT1}, v{vT0}, vcc
{park("Fl1", f"v{vT0}")}
v_mov_b32 v{vSum}, 0
v_mov_b32 v{vSum+1}, 0
v_mov_b32 v{vSum+2}, 0
v_mov_b32 v{vSum+3}, 0
v_mov_b32 v{vCSA[0]+2}, 0
v_mov_b32 v{vCSA[0]+3}, 0
v_mov_b32 v{vCSA[1]+2}, 0
v_mov_b32 v{vCSA[1]+3}, 0
v_mov_b32 v{vCSA[2]+2}, 0
v_mov_b32 v{vCSA[2]+3}, 0
""")
late_mark = len(prog)
saved = (vT0, vT1, vT2, vU, sT, sTb, sTc, sTd)
if O("defer", 1): vT0, vT1, vT2, vU, sT, sTb, sTc, sTd = 192, 193, 194, 196, 4, 5, 6, 7
E(f"""
s_lshl_b32 s{sT}, s{sNB}, 7
v_add_u32 v{vDo}, s{sT}, v{vDo}
v_add_u32 v{vDo+1}, {7*1024}, v{vDo}
s_lshl_b32 s{sT}, s{sW}, 17
v_add_u32 v{vT0}, s{sT}, v{vDo}
{park("Eo", f"v{vT0}")}v_add_u32 v{vT0}, {7*1024}, v{vT0}
{park("Eo1", f"v{vT0}")}
s_mul_i32 s{sT}, s{sTB2}, {2*HSTR}
s_lshl_b32 s{sTb}, s{sW}, 14
s_add_u32 s{sT}, s{sT}, s{sTb}
s_add_u32 s{sT}, s{sT}, {H0}
v_add_u32 v{vT0}, s{sT}, v{vL16}
{park("Ao", f"v{vT0}")}v_add_u32 v{vT0}, {HSTR}, v{vT0}
{park("Ao1", f"v{vT0}")}
s_lshl_b32 s{sT}, s{sTB2}, 16
s_lshl_b32 s{sTb}, s{sW}, 13
s_add_u32 s{sT}, s{sT}, s{sTb}
s_add_u32 s{sT}, s{sT}, {O0}
v_add_u32 v{vT0}, s{sT}, v{vL16}
{park("Oo", f"v{vT0}")}v_add_u32 v{vT0}, 32768, v{vT0}
{park("Oo1", f"v{vT0}")}
s_lshl_b32 s{sRHO}, s{sTB2}, 1
s_add_u32 s{sRHO}, s{sRHO}, s{sNB}
s_and_b32 s{sRHO}, s{sRHO}, {7 if O("rot", 1) else 0}
s_lshl_b32 s{sWB}, s{sW}, 2
""")
for q in range(8):
    E(f"""s_add_u32 s{sT}, s{sRHO}, {q}
s_bfe_u32 s{sTb}, s{sT}, 0x20001
s_add_u32 s{sTb}, s{sTb}, s{sWB}
{t0_of(sTc, sTb, sTd)}s_and_b32 s{sT}, s{sT}, 1
s_add_u32 s{sT}, s{sT}, s{sTc}
s_lshl_b32 s{sWE+q}, s{sT}, 15
s_add_u32 s{sT}, s{sRHO}, {q}
s_and_b32 s{sT}, s{sT}, 7
s_lshl_b32 s{sHE[q]}, s{sT}, 11""")
E(f"""s_add_u32 s{sT}, s{sTB2}, s{sNB}
s_mul_i32 s{sTb}, s{sT}, 43
s_lshr_b32 s{sTb}, s{sTb}, 7
s_mul_i32 s{sTb}, s{sTb}, 3
s_sub_u32 s{sT}, s{sT}, s{sTb}
s_and_b32 s{sT}, s{sT}, {3 if O("rot", 1) else 0}
s_mul_i32 s{sTc}, s{sW}, 10240
s_sub_u32 s{sTc}, 65536, s{sTc}
s_mul_i32 s{sTd}, s{sW}, 9
s_lshr_b32 s{sTb}, s{sW}, 1
s_lshl_b32 s{sTb}, s{sTb}, 2
s_add_u32 s{sTd}, s{sTd}, s{sTb}
s_add_u32 s{sTd}, s{sTd}, 2
s_lshl_b32 s{sTd}, s{sTd}, 15""")
for q in range(3):
    E(f"""s_lshl_b32 s{sTb}, s{sT}, 11
s_add_u32 s{sLH[q]}, s{sTb}, s{sTc}
s_mul_i32 s{sTb}, s{sT}, 98304
s_add_u32 s{sLW[q]}, s{sTb}, s{sTd}
s_add_u32 s{sT}, s{sT}, 1
s_cmp_eq_u32 s{sT}, 3
s_cselect_b32 s{sT}, 0, s{sT}""")
E(f"""
s_lshl_b32 s{sA}, s{sRHO}, 11
s_lshl_b32 s{sWB}, s{sRHO}, 14
s_lshl_b32 s{sWS}, s{sRHO}, 10
v_lshrrev_b32 v{vT0}, 3, v{vL}
v_and_b32 v{vT1}, 7, v{vL}
s_lshl_b32 s{sT}, s{sTB2}, 6
s_lshl_b32 s{sTb}, s{sW}, 3
s_add_u32 s{sT}, s{sT}, s{sTb}
s_lshl_b32 s{sT}, s{sT}, 10
s_lshl_b32 s{sTb}, s{sNB}, 7
s_add_u32 s{sT}, s{sT}, s{sTb}
v_lshlrev_b32 v{vT2}, 10, v{vT0}
v_lshl_add_u32 v{vT2}, v{vT1}, 4, v{vT2}
v_add_u32 v{vT2}, s{sT}, v{vT2}
{park("Out", f"v{vT2}")}v_add_u32 v{vT2}, 32768, v{vT2}
{park("Out1", f"v{vT2}")}v_lshlrev_b32 v{vT1}, 1, v{vT1}
v_xor_b32 v{vT1}, v{vT1}, v{vT0}
v_lshlrev_b32 v{vT0}, 8, v{vT0}
v_lshl_add_u32 v{vT0}, v{vT1}, 4, v{vT0}
s_lshl_b32 s{sT}, s{sW}, 11
v_add_u32 v{vT0}, s{sT}, v{vT0}
{park("Rr", f"v{vT0}")}v_and_b32 v{vT0}, 31, v{vL}
v_lshrrev_b32 v{vT1}, 5, v{vL}
v_and_b32 v{vT2}, 7, v{vL}
v_xor_b32 v{vT1}, v{vT1}, v{vT2}
v_lshlrev_b32 v{vT0}, 8, v{vT0}
v_lshl_add_u32 v{vT0}, v{vT1}, 4, v{vT0}
s_lshl_b32 s{sT}, s{sW}, 14
v_add_u32 v{vT0}, s{sT}, v{vT0}
{park("Rw", f"v{vT0}")}
v_add_u32 v{vT0}, s{sM0X}, v{vL16}
{park("Ka", f"v{vT0}")}v_lshrrev_b32 v{vT1}, 5, v{vL}
v_bfe_u32 v{vT2}, v{vL}, 2, 2
v_lshl_add_u32 v{vT2}, v{vT1}, 2, v{vT2}
v_lshlrev_b32 v{vT2}, 5, v{vT2}
v_and_b32 v{vT0}, 1, v{vL}
v_lshl_add_u32 v{vT2}, v{vT0}, 4, v{vT2}
v_bfe_u32 v{vT0}, v{vL}, 1, 1
v_lshl_add_u32 v{vT2}, v{vT0}, 3, v{vT2}
s_add_u32 s{sT}, s{sM0X}, 2048
v_add_u32 v{vT2}, s{sT}, v{vT2}
v_xor_b32 v{vT1}, 1, v{vT1}
v_lshlrev_b32 v{vT1}, 7, v{vT1}
s_lshl_b32 s{sT}, s{sW}, 3
s_add_u32 s{sT}, s{sT}, {STRIP}
v_add_u32 v{vU}, {STRIP+120}, v{vT1}
v_add_u32 v{vT1}, s{sT}, v{vT1}
v_and_b32 v{vT0}, 2, v{vL}
v_cmp_eq_u32 vcc, 0, v{vT0}
v_cndmask_b32 v{vT1}, v{vU}, v{vT1}, vcc
v_cndmask_b32 v{vU}, 0, 8, vcc
v_and_b32 v{vT0}, 16, v{vL}
v_cmp_eq_u32 vcc, 0, v{vT0}
v_cndmask_b32 v{vT0}, v{vT1}, v{vT2}, vcc
{park("Va", f"v{vT0}")}v_mov_b32 v{vT2}, 4096
v_cndmask_b32 v{vT0}, v{vU}, v{vT2}, vcc
{park("Vinc", f"v{vT0}")}
s_lshl_b32 s{sT}, s{sTB}, 15
s_lshl_b32 s{sTb}, s{sCB}, 11
s_add_u32 s{sT}, s{sT}, s{sTb}
s_add_u32 s{sT}, s{sT}, {O0}
v_add_u32 v{vT0}, s{sT}, v{vL16}
{park("Ost", f"v{vT0}")}
s_lshl_b32 s{sT}, s{sCB}, 18
v_add_u32 v{vT0}, s{sT}, v{vL16}
{park("KVo", f"v{vT0}")}
""")
SENT = O("sent", 1)
sent_st = [I(f"buffer_store_dwordx4 {vr(vXT,4)}, v{vOst}, {srd(SWS)}, 0 offen offset:{1024*e} sc1", tag="sent") for e in range(2)] if SENT else []
for k in range(3):
    E(f"""
s_add_i32 s{sT}, s{sTB}, {-4*k}
s_lshl_b32 s{sKV[k]}, s{sT}, 12
s_cmp_lt_i32 s{sT}, 0
s_cselect_b32 s{sKV[k]}, s{sHUGE}, s{sKV[k]}
""")
E(f"""
v_min_u32 v{vT1}, 5, v{vL}
v_lshrrev_b32 v{vT2}, 1, v{vT1}
v_lshlrev_b32 v{vT2}, 2, v{vT2}
v_sub_u32 v{vT2}, s{sTB}, v{vT2}
v_cmp_gt_i32 vcc, 0, v{vT2}
v_mov_b32 v{vT0}, s{sTB}
v_cndmask_b32 v{vT2}, v{vT2}, v{vT0}, vcc
v_lshlrev_b32 v{vT2}, 7, v{vT2}
v_and_b32 v{vT1}, 1, v{vT1}
v_lshl_add_u32 v{vT2}, v{vT1}, 3, v{vT2}
s_and_b32 s{sT}, s{sCB}, 14
s_lshl_b32 s{sT}, s{sT}, 3
s_and_b32 s{sTb}, s{sCB}, 1
s_lshl_b32 s{sTb}, s{sTb}, 2
s_add_u32 s{sT}, s{sT}, s{sTb}
s_add_u32 s{sT}, s{sT}, {FL0}
v_add_u32 v{vT0}, s{sT}, v{vT2}
{park("Pa", f"v{vT0}")}
s_lshl_b32 s{sT}, s{sTB2}, 8
s_add_u32 s{sT}, s{sT}, {FL0+8192}
v_lshlrev_b32 v{vT0}, 2, v{vL}
v_add_u32 v{vT0}, s{sT}, v{vT0}
{park("Pb", f"v{vT0}")}
""")
if O("tblm", 1):
    E(f"""v_and_b32 v{vT1}, 31, v{vL}
v_lshrrev_b32 v{vT2}, 5, v{vL}
v_lshlrev_b32 v{vT2}, 2, v{vT2}
v_sub_u32 v{vT1}, v{vT1}, v{vT2}""")
    for j in range(16):
        kl = 8 * (j >> 2) + (j & 3)
        E(f"""v_subrev_u32 v{vT0}, {kl}, v{vT1}
v_ashrrev_i32 v{vT0}, 31, v{vT0}
v_and_b32 v{vT0}, 0xff000000, v{vT0}
v_accvgpr_write_b32 a{aMSK+16+j}, v{vT0}
v_xor_b32 v{vT0}, 0xff000000, v{vT0}
v_accvgpr_write_b32 a{aMSK+j}, v{vT0}""")
vT0, vT1, vT2, vU, sT, sTb, sTc, sTd = saved
late = []
if O("defer", 1):
    late = prog[late_mark:]; del prog[late_mark:]
    nk = O("keep", 100)
    if nk: E(late[-nk:]); late = late[:-nk]
rest = prog[init_mark:]; del prog[init_mark:]
gall = p1_dma(1) + p1_dma(2)
N0 = O("n0", 8)
def safe_at(lst, n):
    x = lst[n]
    return not (x.op.startswith("s_cmp") or x.op == "s_and_b32" or (n + 1 < len(lst) and (lst[n + 1].op.startswith("s_cselect") or lst[n + 1].op.startswith("s_cbranch"))))
cut = int(len(rest) * O("f1", 30) / 100)
while not safe_at(rest, cut - 1): cut += 1
E(rest[:cut])
stamp((2,))
E(flat(g0))
rest = rest[cut:]
gs = gall[:N0]; k = 0
for n, x in enumerate(rest):
    E(x)
    if k < len(gs) and safe_at(rest, n) and n + 1 >= (k + 1) * len(rest) / (len(gs) + 1):
        E(gs[k]); k += 1
if O("w2t", -2) == 0: E(w2touch)
E(flat(gs[k:]))
if O("w2t", -2) == 1: E(w2touch)
stamp((1, 2, 3, 17))

def wf1(st, t): return aWF + (st * 3 + t) * 4
LK = O('lk', 3)
def wf2(k, t): return aWF + ((k % (LK + 1)) * 3 + t) * 4
def p1_reads(c, s):
    sl = c & 3; st = s & 1
    o = [I(f"ds_read_b128 {ar(aX+(4*c+s)*4,4)}, v{vXr+s} offset:{sl*16384}")]
    for t in range(3):
        for n in range(2):
            o.append(I(f"ds_read_b64_tr_b16 {ar(wf1(st,t)+2*n,2)}, v{vWr+2*s+(sl>>1)} offset:{(sl&1)*24576+t*8192+n*512}"))
    o.insert(3, I(f"ds_read_b128 {ar(aXP+4*st,4)}, v{vXp+s} offset:{sl*16384}"))
    return o
def statread(g):
    c, s = g >> 2, g & 3
    return [I(f"ds_read_b128 {vr(vXT+4*s,4)}, v{vXr+s} offset:{(c&3)*16384}")]
def stats(s):
    o = []
    for j in range(4):
        x = vXT + 4 * s + j; a = vU + 2 * (j & 1)
        o += L(f"""v_lshlrev_b32 v{a}, 16, v{x}
v_and_b32 v{a+1}, 0xffff0000, v{x}
v_add_f32 v{vSum}, v{vSum}, v{a}
v_add_f32 v{vSum+1}, v{vSum+1}, v{a+1}
v_fmac_f32 v{vSum+2}, v{a}, v{a}
v_fmac_f32 v{vSum+3}, v{a+1}, v{a+1}""")
    return o
def cs_convert(vcs, vw, base, step):
    o = []
    for j in range(4):
        a = 252 if j & 1 else vU + 4
        o += L(f"""v_cvt_pk_bf16_f32 v{a}, v{vcs+j}, v{vcs+j}
v_and_b32 v{a+1}, 0xffff0000, v{a}
v_sub_f32 v{a+1}, v{vcs+j}, v{a+1}
v_cvt_pk_bf16_f32 v{a+1}, v{a+1}, v{a+1}""")
        o.append(I(f"ds_write_b64 v{vw}, {vr(a,2)} offset:{base+step*j}"))
    return o
C1 = -2.0 * 0.7978845608028654 * 1.4426950408889634
QC = 0.25 * 1.4426950408889634
stats_pub = L(f"""v_add_f32 v{vSum}, v{vSum}, v{vSum+1}
v_add_f32 v{vSum+1}, v{vSum+2}, v{vSum+3}
v_mov_b32 v{vSum+2}, v{vSum}
v_mov_b32 v{vSum+3}, v{vSum+1}
v_lshrrev_b32 v{vT0}, 5, v{vL}
v_permlane32_swap_b32 v{vSum}, v{vSum+2}
v_permlane32_swap_b32 v{vSum+1}, v{vSum+3}
v_lshl_add_u32 v{vT0}, v{vT0}, 28, v{vSPo}
v_add_f32 v{vSum}, v{vSum}, v{vSum+2}
v_add_f32 v{vSum+1}, v{vSum+1}, v{vSum+3}""") + [I(f"buffer_store_dwordx2 {vr(vSum,2)}, v{vT0}, {srd(SWS)}, s{sSP} offen sc1", tag="sp")]
stats_ld = [[I(f"buffer_load_dwordx2 {vr(vSL+2*i,2)}, v{vSPo}, {srd(SWS)}, s{sSG} offen offset:{512*i} sc1")] for i in range(4)]
b = vSL
stats_fin = L(f"""
v_add_f32 v{b}, v{b}, v{b+2}
v_add_f32 v{b+1}, v{b+1}, v{b+3}
v_add_f32 v{b+4}, v{b+4}, v{b+6}
v_add_f32 v{b+5}, v{b+5}, v{b+7}
v_add_f32 v{b}, v{b}, v{b+4}
v_add_f32 v{b+1}, v{b+1}, v{b+5}
v_mul_f32 v{vSum}, {fx(-1.0/512)}, v{b}
v_mul_f32 v{b+1}, {fx(1.0/512)}, v{b+1}
v_fma_f32 v{b+1}, -v{vSum}, v{vSum}, v{b+1}
v_max_f32 v{b+1}, 0, v{b+1}
v_add_f32 v{vSum+1}, {fx(1e-5)}, v{b+1}
v_mov_b32 v{vSum+2}, v{vSum}
v_mov_b32 v{vSum+3}, v{vSum+1}
s_nop 0
v_permlane32_swap_b32 v{vSum}, v{vSum+2}
v_permlane32_swap_b32 v{vSum+1}, v{vSum+3}
""")
def stats_k(o):
    R = vSum + 2 * o + 1; K = vK[o]; a = vU
    t = f"""
v_rsq_f32 v{K}, v{R}
v_mov_b32 v{K+3}, v{R}
v_mul_f32 v{K+1}, {fx(C1)}, v{K}
v_mul_f32 v{a}, v{K}, v{K}
v_mul_f32 v{a}, {fx(0.044715)}, v{a}
v_mul_f32 v{K+2}, v{K+1}, v{a}
"""
    if o == 0: t += f"v_mul_f32 v{vQS}, {fx(QC)}, v{K}\n"
    return L(t)
def stats_b(o):
    nm = vSum + 2 * o; B = vBx[o]; a = vU
    return L(f"""
v_cvt_pk_bf16_f32 v{a}, v{nm}, v{nm}
v_and_b32 v{a}, 0xffff0000, v{a}
v_sub_f32 v{a+1}, v{nm}, v{a}
v_cvt_pk_bf16_f32 v{B}, v{a}, v{a+1}
v_mov_b32 v{B+1}, v{B}
v_mov_b32 v{B+2}, v{B}
v_mov_b32 v{B+3}, v{B}
""")
assert NI < 10
E(ann)
E(I("s_barrier", need=["c0"]))
stamp((2, 17))
E(p1_reads(0, 0) + statread(0) + statread(1))
E(stats(0))
S1 = Sched()
P1 = lambda c, s, t: 24 * c + 6 * s + t
A1 = lambda t, o: ACC1 + 32 * t + 16 * o
for c in range(8):
    for s in range(4):
        st = s & 1; first = (c == 0 and s == 0)
        for q in range(6):
            t, o = q >> 1, q & 1
            acc = vr(A1(t, o), 16)
            xb = ar(aX + (4 * c + s) * 4, 4) if o == 0 else ar(aXP + 4 * st, 4)
            ops = [I(f"{MF} {acc}, {ar(wf1(st,t),4)}, {xb}, {'0' if first else acc}")]
            small = s < 2 and o == 1 and not (O('x_nocs', 0) and c > 0)
            if small:
                cs = vr(vCS1, 4)
                ops.append(I(f"{MS} {cs}, {ar(wf1(st,t),4)}, {ar(aSEL+4*t,4)}, {'0' if (first and t == 0) else cs}"))
            pre = []
            if q == 0 and (O("fw", 0) == 0 or s == 3) and not (c == 7 and s == 3): pre.append(I("s_waitcnt lgkmcnt(0)"))
            if s == 3 and q == 0 and c < 7: pre.append(I("s_barrier", need=["c%d" % (c + 1)]))
            if s == 3 and q == 2 and c == 7: pre += [I("s_waitcnt lgkmcnt(0)"), I("s_barrier", need=["p0"])]
            if s == 0 and q == 0: pre += stampq((3,))
            S1.pos(ops, 8 if small else 6, pre)
NP1 = 192
CORR_K = 0
P2 = lambda k, t: NP1 + 3 * k + t + (6 if k >= CORR_K else 0)
PC = NP1 + 3 * CORR_K
for k in range(32):
    p, s = k >> 3, k & 3
    if k == CORR_K:
        for q in range(6):
            t, o = q >> 1, q & 1
            acc = vr(A1(t, o), 16)
            S1.pos(I(f"{MF} {acc}, {vr(vCSA[t],4)}, {vr(vBx[o],4)}, {acc}"), 6, stampq((1, 3, 17)) if q == 0 else [])
    for t in range(3):
        acc = vr(ACC2 + 16 * t, 16)
        ops = [I(f"{MF} {acc}, {ar(wf2(k,t),4)}, {ar(aX+k*4,4)}, {'0' if k == 0 else acc}", xr=(ar(wf2(k, 0), 24 if (LK == 3 and k % 2 == 0) else 12) if t == 0 else None))]
        if s == 0:
            cs = vr(vCS2, 4)
            ops.append(I(f"{MS} {cs}, {ar(wf2(k,t),4)}, {ar(aSEL+4*t,4)}, {'0' if (k == 0 and t == 0) else cs}"))
        pre = []
        if False:
            pre = []
        if (k & 7) == 8 - LK and t == 1:
            pre = [I("s_waitcnt lgkmcnt(0)"), I("s_barrier", need=["p%d" % (p + 1)] if p < 3 else [])]
        if LK == 3 and k == 30 and t == 1: pre = [I("s_waitcnt lgkmcnt(0)"), I("s_barrier")]
        if LK == 3 and k == 29 and t == 1: pre = []
        if (k & 3) == 0 and t == 0: pre += stampq((4,))
        S1.pos(ops, 8 if s == 0 else 6, pre)
NP2 = len(S1.main)
def p2_reads(k):
    p, g, s = k >> 3, (k >> 2) & 1, k & 3
    return [I(f"ds_read_b64_tr_b16 {ar(wf2(k,t)+2*n,2)}, v{vW2r+2*s+(p>>1)} offset:{(p&1)*24576+t*8192+g*4096+n*256}") for t in range(3) for n in range(2)]
def store4(data, voff, soff, imm, tag):
    if O("x_nost", 0) and tag in ("kv", "h"): return I("s_nop 0")
    o = (" offset:%d" % imm) if imm else ""
    return I(f"buffer_store_dwordx4 {vr(data,4)}, v{voff}, {srd(SWS)}, {soff} offen{o} sc1", tag=tag)
def flag(stage, tag, va):
    if O("x_nofw", -1) == stage: tag = "none"
    return L(f"v_mov_b32 v{vT0}, 1\ns_mov_b32 s{sT}, {stage*8192}") + [I(f"buffer_store_dword v{vT0}, v{va}, {srd(SWS)}, s{sT} offen sc1", need=[tag])]
def poll_issue(va): return [I(f"buffer_load_dword v{vPoll}, v{va}, {srd(SWS)}, 0 offen sc1")]
def poll_check(name, S, reg, addr):
    SITE = {"init": 24, "st": 25, "kv": 26, "h": 27, "h2": 28, "o": 29}[name]
    mark = f"    v_writelane_b32 v231, s{sSPIN}, {SITE}\n" if OPT["stamps"] else ""
    rare.append(f"""
L_spin_{name}:
    s_mov_b32 s{sSPIN}, {OPT['spin']}
L_spin2_{name}:
{mark}    buffer_load_dword v{reg}, v{addr}, {srd(S)}, 0 offen sc1
    s_waitcnt vmcnt(0) lgkmcnt(0)
    v_cmp_eq_u32 vcc, 0, v{reg}
    s_nop 4
    s_cbranch_vccz L_ok_{name}
    s_sleep 1
    s_sub_u32 s{sSPIN}, s{sSPIN}, 1
    s_cmp_lg_u32 s{sSPIN}, 0
    s_cbranch_scc1 L_spin2_{name}
    s_endpgm
""")
    o = L(f"v_cmp_eq_u32 vcc, 0, v{reg}\ns_cbranch_vccnz L_spin_{name}")
    o[-1].post = f"\nL_ok_{name}:"
    return o
SC2 = 1
SG_ = set(range(4)) | set(range(4 * SC2, 4 * SC2 + 4))
for c in range(8):
    for s in range(4):
        g = 4 * c + s
        rd = []
        if g + 1 < 32: rd += p1_reads((g + 1) >> 2, (g + 1) & 3)
        if s < 2 and g + 2 in SG_: rd += statread(g + 2)
        if s == 3 and g + 1 in SG_: rd = statread(g + 1) + rd + statread(g + 2)
        S1.spread(rd, P1(c, s, 0), P1(c, s, O("rdw", 4)), 0)
        if g + 1 in SG_:
            if s != 3: S1.spread(stats((g + 1) & 3), P1(c, s, 0), P1(c, s, 6), 2)
            else: S1.spread(stats(0), P1(c, s, 2), P1(c, s, 6), 2)
    if c == 0:
        gq = gall[N0:]
        if O("w2t", -2) == -1: gq = gq[:10 - N0] + [w2touch] + gq[10 - N0:]
        if O("w2t", -2) == -2: gq = gq + [w2touch]
        N2 = O("n2", 99); carry = gq[N2:]
        S1.spread(gq[:N2], P1(0, O("n2a", 0), 0), P1(0, 3, 0), 1, one)
    if c == 0 and carry:
        S1.spread(carry, P1(0, 3, 0), P1(1, O("n2e", 1), 0), 1, one)
        S1.spread(p1_dma(3), P1(1, O("n2e", 1), 0), P1(1, 3, 0), 1, one)
    elif c < 5: S1.spread(p1_dma(c + 3), P1(c, 3, 0), P1(c + 1, 3, 0), 1, one)
S1.spread(p2_dma(0), P1(6, O("p0a", 1), 0), P1(6, 3, 0), 1, one)
S1.spread(p2_dma(1), P1(6, 3, 0), P1(7, 3, 0), 1, one)
S1.put(O("ipos", 24), [L(f"v_and_b32 v{vT2}, 3, v{vL}\nv_lshlrev_b32 v{vT2}, 2, v{vT2}") + [I(f"buffer_load_dword v{vInit}, v{vT2}, {srd(SDBG)}, 0 offen" + (" sc1" if O("isc", 1) else ""))]], 1)
def glue2(q):
    out = []; cur = []; n = 0
    while n < len(q):
        x = q[n]; cur = [x]; n += 1
        if x.op.startswith("s_cmp"):
            while n < len(q) and q[n].op.startswith("s_cselect"): cur.append(q[n]); n += 1
        elif x.op.startswith("v_cmp"):
            last = n
            for m in range(n, len(q)):
                if q[m].op.startswith("v_cmp"): break
                if q[m].op.startswith("v_cndmask"): last = m + 1
            cur += q[n:last]; n = last
        out.append(cur)
    return out
if late: S1.spread(glue2(late), O("la0", 44), O("la1", 170), 2)
S1.spread(stats_pub, P1(SC2, 3, 0), P1(SC2, 3, 3), 2)
S1.put(P1(O("spf", SC2 + 1), O("spf2", 3), 1), [poll_check("init", SDBG, vInit, vT2) + flag(4, "sp", vFl1)], 2)
S1.put(P1(O("spp", 4 if SC2 == 1 else 5), O("spp2", 2 if SC2 == 1 else 0), 5), [poll_issue(vPs)], 1)
S1.put(P1(5, 3, 1), [poll_check("st", SWS, vPoll, vPs)], 2)
S1.spread(stats_ld, P1(5, 3, 2), P1(5, 3, 6), 1, one)
S1.spread(stats_fin + stats_k(0) + stats_k(1), P1(7, 0, 0), P1(7, 2, 0), 2)
if SENT:
    S1.put(P1(3, 0, 0), L("\n".join(f"v_mov_b32 v{vXT+j}, -1" for j in range(4))), 2)
    S1.put(O("snp", 172), [sent_st[0]], 1); S1.put(O("snp", 172) + O("snd", 8), [sent_st[1]], 1)
S1.spread(cs_convert(vCS1, vCSw1, CS1, 8), P1(7, 2, 0), P1(7, 2, O('cse', 5)), 2)
S1.spread(stats_b(0) + stats_b(1), P1(7, 3, 0), P1(7, 3, 4), 2)
S1.spread(p2_reads(0), P1(7, 3, 2), P1(7, 3, 4), 0)
S1.put(P1(7, 3, 5), p2_reads(1), 0)
if O("w2t", -2) >= 2: S1.put(O("w2t", -2), [w2touch], 1)
S1.spread(p2_dma(2), P1(7, 3, 2), P2(7 - LK, 0), 1, one)

def scale_pack(acc, sc, dst, pk=False):
    o = []
    if pk:
        sel = "op_sel:[0,1] op_sel_hi:[1,1]" if sc & 1 else "op_sel_hi:[1,0]"
        for j in range(0, 16, 2): o.append(I(f"v_pk_mul_f32 {vr(acc+j,2)}, {vr(acc+j,2)}, {vr(sc&~1,2)} {sel}"))
    else:
        for j in range(16): o.append(I(f"v_mul_f32 v{acc+j}, v{acc+j}, v{sc}"))
    for j in range(8): o.append(I(f"v_cvt_pk_bf16_f32 v{dst+j}, v{acc+2*j}, v{acc+2*j+1}"))
    return o
def gelu(g, u, K):
    if O("x_nogelu", 0): return [I("s_nop 0")] * 4
    A, B, R = K + 1, K + 2, K + 3
    o = []
    for b in range(4):
        js = range(4 * b, 4 * b + 4)
        T = lambda j: vG + (j & 3) + 4 * (b & 1)
        o += [I(f"v_mul_f32 v{T(j)}, v{g+j}, v{g+j}") for j in js]
        o += [I(f"v_fma_f32 v{T(j)}, v{T(j)}, v{B}, v{A}") for j in js]
        o += [I(f"v_mul_f32 v{T(j)}, v{g+j}, v{T(j)}") for j in js]
        for j in js: o += [I(f"v_exp_f32 v{T(j)}, v{T(j)}"), I(f"v_mul_f32 v{g+j}, v{g+j}, v{u+j}")]
        o += [I(f"v_fma_f32 v{T(j)}, v{T(j)}, v{R}, v{R}") for j in js]
        o += [I(f"v_rcp_f32 v{T(j)}, v{T(j)}") for j in js]
        o += [I(f"v_mul_f32 v{g+j}, v{g+j}, v{T(j)}") for j in js]
        o += [I(f"v_cvt_pk_bf16_f32 v{u+2*b+k}, v{g+4*b+2*k}, v{g+4*b+2*k+1}") for k in range(2)]
    return o
def gelu_pk(g, u, K):
    o = []
    for b in range(2):
        js = range(8 * b, 8 * b + 8, 2)
        T = lambda j: vG + (j & 7)
        o += [I(f"v_pk_mul_f32 {vr(T(j),2)}, {vr(g+j,2)}, {vr(g+j,2)}") for j in js]
        o += [I(f"v_pk_fma_f32 {vr(T(j),2)}, {vr(T(j),2)}, {vr(K+2,2)}, {vr(K,2)} op_sel:[0,0,1] op_sel_hi:[1,0,1]") for j in js]
        o += [I(f"v_pk_mul_f32 {vr(T(j),2)}, {vr(g+j,2)}, {vr(T(j),2)}") for j in js]
        for j in js: o += [I(f"v_exp_f32 v{T(j)}, v{T(j)}"), I(f"v_exp_f32 v{T(j)+1}, v{T(j)+1}"), I(f"v_pk_mul_f32 {vr(g+j,2)}, {vr(g+j,2)}, {vr(u+j,2)}")]
        o += [I(f"v_pk_fma_f32 {vr(T(j),2)}, {vr(T(j),2)}, {vr(K+2,2)}, {vr(K+2,2)} op_sel:[0,1,1] op_sel_hi:[1,1,1]") for j in js]
        for j in js: o += [I(f"v_rcp_f32 v{T(j)}, v{T(j)}"), I(f"v_rcp_f32 v{T(j)+1}, v{T(j)+1}")]
        o += [I(f"v_pk_mul_f32 {vr(g+j,2)}, {vr(g+j,2)}, {vr(T(j),2)}") for j in js]
        o += [I(f"v_cvt_pk_bf16_f32 v{u+(j>>1)}, v{g+j}, v{g+j+1}") for j in js]
    return o
S1.put(P1(7, 3, 2), [I(f"ds_read_b64 {vr(vCSA[t],2)}, v{vCSr} offset:{CS1+C1STR*t}") for t in range(3)], 0)
if LK == 3: S1.spread(p2_reads(2), PC, PC + 3, 0)
for k in range(32 - LK):
    o = 1 if (k & 7) == 8 - LK else 0
    S1.spread(p2_reads(k + LK), P2(k, o), P2(k, o + (2 if (k & 7) in (7 - LK, 8 - LK) else 3)), 0)

fq = []
sOwn = [f"s{sPK}", f"s{sTd}"]; sOwnH = [f"s{sPH}", f"s{sTc}"]
fq += L(f"s_xor_b32 s{sTd}, s{sPK}, 4096\ns_sub_u32 s{sTc}, {HSTR}, s{sPH}")
for o in range(2):
    a = A1(0, o)
    sp = scale_pack(a, vK[o], a)
    fq += sp[0:8] + sp[16:20] + [store4(a, vKVst, sOwn[o], 0, "kv")] + sp[8:16] + sp[20:24] + [store4(a + 4, vKVst, sOwn[o], 1024, "kv")]
g = []
for o in range(2):
    gg = gelu(A1(1, o), A1(2, o), vK[o])
    g.append(gg[:68] + [store4(A1(2, o), vHst, sOwnH[o], 0, "h")] + gg[68:] + [store4(A1(2, o) + 4, vHst, sOwnH[o], 1024, "h")])
KVF = O("kvflag", 65); KVP = O("kvpoll", 110)
tbl = [[I(f"buffer_load_dwordx4 {vr(vBF+4*i,4)}, v{vL16}, {srd(STB)}, {'0' if i < 4 else 's%d' % sX} offen offset:{1024*(i&3)}")] for i in range(8)]
tbl[0] = L(f"s_movk_i32 s{sX}, 4096") + tbl[0]
strip = [I(f"ds_write_b128 v{vL16}, {ar(aSTV,4)} offset:{STRIP+1024*i}") for i in range(2)]
unp = [I(f"v_accvgpr_read_b32 v{vBF+j}, a{aMSK+j}") for j in range(32)] if O("tblm", 1) else []
fq += g[0][:KVF] + [flag(0, "kv", vFl2)] + g[0][KVF:] + strip + unp
fq += g[1][:KVP] + poll_issue(vPa) + g[1][KVP:]
FQ_END = O("fqend", 29)
S1.spread(glue(fq), PC + 3, P2(FQ_END, 0), 2)
if not O("tblm", 1): S1.spread(tbl, P2(O("tbl", 9), 0), P2(O("tbl", 9) + 5, 0), 1, one)

def w2_dma(j):
    sl = j % 12
    m0 = (sl // 3) * 24576 + (sl % 3) * 2048
    nd = ["r%d" % (j - 12)]
    post = []
    if j >= 22:
        post = L(f"s_add_u32 s{sWB}, s{sWB}, 16384\ns_and_b32 s{sWB}, s{sWB}, 0x1ffff")
        return [L(f"s_add_u32 m0, s{sM0K}, {(j-22)*2048}\ns_nop 0") + [dma(vEo, SO, f"s{sWB}", 0, "w%d" % j)],
                [dma(vEo + 1, SO, f"s{sWB}", 1024, "w%d" % j)] + post]
    if j < 22:
        base = sWE + (j >> 1) if j < 16 else sLW[(j - 16) >> 1]
        so, sr = ("s_nop 0", base) if j & 1 == 0 else (f"s_add_u32 s{sD}, s{base}, 16384", sD)
        vo, S = vDo, SD
    else:
        so, sr, vo, S = "s_nop 0", sWB, vEo, SO
        post = L(f"s_add_u32 s{sWB}, s{sWB}, 16384\ns_and_b32 s{sWB}, s{sWB}, 0x1ffff")
    return [L(f"s_add_u32 m0, s{sM0D}, {m0}\n{so}") + [dma(vo, S, f"s{sr}", 0, "w%d" % j, need=nd)],
            [dma(vo + 1, S, f"s{sr}", 1024, "w%d" % j, need=nd)] + post]
KCHK = O("kvchk", 29)
for p in range(3):
    if not O("x_now2", 0): S1.spread((p2_dma(3) if p == 0 else []) + w2_dma(3 * p) + w2_dma(3 * p + 1) + w2_dma(3 * p + 2), P2(8 * p + 8 - LK, 1), P2(8 * p + 16 - LK, 1) if p < 2 else P2(KCHK, 0), 1, one)
kvdma = []
for k in range(3):
    kvdma.append(L(f"s_add_u32 m0, s{sM0X}, {4096*(8-4*k)}\ns_nop 0") + [dma(vKVo, SWS, f"s{sKV[k]}", 0, "kvl", "sc1")])
    kvdma += [[dma(vKVo, SWS, f"s{sKV[k]}", 1024 * i, "kvl", "sc1")] for i in range(1, 4)]
if not O("x_nokv", 0):
    if not O("x_nochk", 0): S1.put(P2(KCHK, 0), [poll_check("kv", SWS, vPoll, vPa)], 1)
    S1.spread(kvdma, P2(KCHK, 1), NP2, 1, one)
S1.spread(cs_convert(vCS2, vCSw2, CS2, 16), P2(29, 0), P2(30, 0), 2)
S1.put(P2(30, 1), [I(f"ds_read_b128 {vr(vCSA[q],4)}, v{vL16} offset:{CS2+CSTR*q}") for q in range(3)], 0)
def ctouch2():
    return L(f"""s_getpc_b64 s[{STC}:{STC+1}]
s_mov_b32 s{STC+2}, L_code_end-.
s_mov_b32 s{STC+3}, 0x20000
s_lshr_b32 s{sT}, s2, 3
s_lshl2_add_u32 s{sT}, s{sT}, s{sW}
s_lshl_b32 s{sT}, s{sT}, 7
v_lshlrev_b32 v{vT1}, 24, v{vL}
buffer_load_dword v255, v{vT1}, {srd(STC)}, s{sT} offen""")
for key in ("ct2", "ct3"):
    if O(key, 0): S1.put(O(key, 0), [ctouch2()], 1)
if O("x_idle", 0): S1.pre[O("x_idlep", 250)] += L("s_nop 15\n" * (O("x_idle", 0) // 64))
if OPT["stamps"] == 10:
    for g in range(O("l0", 2), min(O("l0", 2) + 30, 32)):
        k = nstamp[0]; nstamp[0] += 1
        S1.put(6 * g + 4, [I(f"{TIMER} s[88:89]")], 2)
        S1.put(6 * g + 6, [I(f"v_writelane_b32 v231, s88, {k}")], 2)
if OPT["stamps"] == 11:
    for kk in range(1, 31):
        k = nstamp[0]; nstamp[0] += 1
        S1.put(P2(kk, 0), [I(f"{TIMER} s[88:89]")], 0)
        S1.put(P2(kk + 1, 0) - 1, [I(f"v_writelane_b32 v231, s88, {k}")], 2)
if OPT["stamps"] == 9:
    for q in range(28):
        p = OPT["za"] + q * OPT["zs"]
        if p < len(S1.main): S1.pre[p] = stampq((9,)) + S1.pre[p]
E(S1.emit())
stamp((1, 4, 12))
post = w2_dma(9) + w2_dma(10) + w2_dma(11)
xres = L(f"buffer_load_dwordx4 {vr(vXres,4)}, v{vOut}, {srd(SX)}, 0 offen\nbuffer_load_dwordx4 {vr(vXres+4,4)}, v{vOut+1}, {srd(SX)}, 0 offen")
for n, t in enumerate((0, 1, 2)):
    acc = vr(ACC2 + 16 * t, 16)
    E(f"{MF} {acc}, {vr(vCSA[t],4)}, {vr(vBx[0],4)}, {acc}")
    E(post[2 * n] + post[2 * n + 1])
E(scale_pack(ACC2, vQS, vQ, pk=False))
gl = gelu_pk(ACC2 + 16, ACC2 + 32, vK[0])
HF = O("hf", 60)
gl = gl[:44] + [store4(ACC2 + 32, vHst, f"s{sH2}", 0, "h2")] + xres + gl[44:] + [store4(ACC2 + 36, vHst, f"s{sH2}", 1024, "h2")]
gl = gl[:HF] + flag(1, "h", vFl2) + gl[HF:]
G2 = O("g2l", 0)
E(gl[:len(gl) - G2]); gl = gl[len(gl) - G2:]
stamp((4, 6, 12))
E(I("s_waitcnt lgkmcnt(0)"))
E(I("s_barrier", need=["kvl"]))
stamp((1, 4, 6, 12))

units = [(i, e) for i in range(9) for e in range(2)]
def kread(u):
    i, e = units[u]
    return [I(f"ds_read_b128 {ar(aK+4*(u&1),4)}, v{vKa} offset:{i*4096+e*1024}")]
def vread(u):
    i, e = units[u]
    o = [I(f"ds_read_b64_tr_b16 {ar(aV+8*(u&1)+4*s+2*n,2)}, v{vVa} offset:{e*1024+s*512+n*256}") for s in range(2) for n in range(2)]
    if e == 1: o.append(I(f"v_add_u32 v{vVa}, v{vVa}, v{vVinc}"))
    return o
def qk(u):
    i, e = units[u]
    c = vr(vBF, 16) if i == 0 else (vr(vBD, 16) if i == 8 else "0")
    return I(f"{MF} {vr(vS[u&1],16)}, {ar(aK+4*(u&1),4)}, {vr(vQ+4*e,4)}, {c}", xr=ar(aV + 8 * (u & 1), 8) if u >= 2 else None)
def pv(u, s):
    i, e = units[u]
    o = vr(vO[e], 16)
    return I(f"{MF} {o}, {ar(aV+8*(u&1)+4*s,4)}, {vr(vP[u&1]+4*s,4)}, {'0' if (i == 0 and s == 0) else o}")
def hload(j, tt):
    post = []
    if j < 16:
        soff = sHE[j >> 1]
    else: soff = sLH[(j - 16) >> 1]
    o = " offset:1024" if j & 1 else ""
    return [I(f"buffer_load_dwordx4 {ar(aH+8*j+4*tt,4)}, v{vAo+tt}, {srd(SWS)}, s{soff} offen{o} sc1")] + post
NW2V = O("w2v", 10)
W2V = [152, 156, 192, 196, 200, 204, 4, 8, 12, 16, 20, 24, 36, 40, 44, 48, 240, 244, 248, 252]
def w2_reads(j):
    sl = j % 12
    base = (sl // 3) * 24576 + (sl % 3) * 2048
    o = []
    for ct in range(2):
        for n in range(2):
            off = base + n * 1024 + ct * 256
            reg = vW3r if off < 49152 else vW3r + 1
            off = off if off < 49152 else off - 49152
            if j >= 22: reg, off = vPa, (j - 22) * 2048 + n * 1024 + ct * 256
            dst = vr(W2V[2*j+ct]+2*n, 2) if j < NW2V else (ar(aW2+8*(j&1)+4*ct+2*n, 2) if j < 22 else ar(8*(j-22)+4*ct+2*n, 2))
            o.append(I(f"ds_read_b64_tr_b16 {dst}, v{reg} offset:{off}", need=["w%d" % j], tag="r%d" % j))
    return o
extra = {u: [] for u in range(18)}
xds = {u: [] for u in range(18)}
WS0, WS1 = O("ws0", 0), O("ws1", 6)
for j in range(NW2V):
    u = WS0 + j * (WS1 - WS0) // max(NW2V, 1)
    xds[u] += w2_reads(j)
    gd = w2_dma(j + 12)
    if j > 0: gd[0] = [x for x in gd[0][1:] if x.op != "s_nop"]
    if j + 1 < NW2V: gd[1] = gd[1] + [w2_dma(j + 13)[0][0]]
    extra[u + 1] += gd
EP, EC = O("ep", 4), O("ec", 7)
LF, LP, LC = O("lf", 2), O("lp", 11), O("lc", 14)
extra[EP].append(poll_issue(vPb))
extra[LF].append(flag(2, "h2", vFl1))
extra[EC].append(poll_check("h", SWS, vPoll, vPb) + L(f"v_and_b32 v{vPb}, -5, v{vPb}\nv_add_u32 v{vPb}, 8192, v{vPb}"))
if O("wot", -1) >= 0:
    extra[O("wot", -1)].append(L(f"""s_lshr_b32 s{sX}, s2, 3
s_lshl2_add_u32 s{sX}, s{sX}, s{sW}
s_lshl_b32 s{sX}, s{sX}, 12
v_lshrrev_b32 v{vT1}, 5, v{vL}
v_lshlrev_b32 v{vT2}, 7, v{vL}
v_lshl_add_u32 v{vT1}, v{vT1}, 28, v{vT2}
buffer_load_dword v{vT2}, v{vT1}, {srd(SO)}, s{sX} offen"""))
he = [hload(j, tt) for j in range(16) for tt in range(2)]
hlate = [hload(j, tt) for j in range(16, 22) for tt in range(2)]
EE = O("ee", 16); NE = O("ne", 32)
he_late = he[NE:]; he = he[:NE]
for q in range(EE - EC):
    extra[EC + q] += he[len(he) * q // (EE - EC):len(he) * (q + 1) // (EE - EC)]
extra[LP].append(poll_issue(vPb))
extra[LC].append(poll_check("h2", SWS, vPoll, vPb) + L(f"v_add_u32 v{vPb}, 8192, v{vPb}"))
LS = max(LC, EE)
NL = O("nl", 8)
for q in range(18 - LS):
    extra[LS + q] += hlate[NL * q // (18 - LS):NL * (q + 1) // (18 - LS)]
hl_late = he_late + hlate[NL:]
assert not he_late or NL == 0

E(kread(0) + kread(1) + vread(0))
E(gl[:O("g2m", 12)])
E(qk(0))
E(gl[O("g2m", 12):])
for u in range(18):
    S, P = vS[u & 1], vP[u & 1]
    ex = [I(f"v_exp_f32 v{S+j}, v{S+j}") for j in range(16)]
    cv = [I(f"v_cvt_pk_bf16_f32 v{P+j}, v{S+2*j}, v{S+2*j+1}") for j in range(8)]
    seq = []
    xs = list(extra[u])
    X = lambda q: flat(xs[len(xs) * q // 3:len(xs) * (q + 1) // 3])
    vr_ = vread(u + 1) if u + 1 < 18 else []
    if u + 1 < 18: seq.append(qk(u + 1))
    seq += xds[u]
    if u + 2 < 18: seq += kread(u + 2)
    seq += X(0) + ex[0:6]
    if u > 0: seq.append(pv(u - 1, 0))
    seq += vr_[0:2] + X(1) + ex[6:11] + cv[0:3]
    if u > 0: seq.append(pv(u - 1, 1))
    seq += vr_[2:4] + X(2) + vr_[4:] + ex[11:16] + cv[3:8]
    if u % 2 == 0: seq = stampq((6,)) + seq
    if OPT["stamps"] == 12:
        if u > 0: seq.insert(2, I(f"v_writelane_b32 v231, s88, {nstamp[0]}")); nstamp[0] += 1
        seq.insert(3 if u > 0 else 1, I(f"{TIMER} s[88:89]"))
    E(seq)
def norm(e):
    o = vO[e]
    t = [f"v_rcp_f32 v{vT0+1}, v{o+8}", "s_nop 0"]
    if e == 0 or O("n1", 1): t += [f"v_mul_f32 v{o+j}, v{o+j}, v{vT0+1}" for j in range(8)]
    else: t += [f"v_pk_mul_f32 {vr(o+j,2)}, {vr(o+j,2)}, {vr(vT0+1,2)} op_sel_hi:[1,0]" for j in range(0, 8, 2)]
    t += [f"v_cvt_pk_bf16_f32 v{o+12+j}, v{o+2*j}, v{o+2*j+1}" for j in range(4)]
    if SENT: t += [f"v_min_u32 v{o+12}, -2, v{o+12}"]
    return t
E([pv(17, 0), pv(17, 1)])
if OPT["stamps"] == 12: E(f"v_writelane_b32 v231, s88, {nstamp[0]}"); nstamp[0] += 1
E("\n".join(norm(0)))
BLO, BHI = fx(2.0 ** -40), fx(2.0 ** 40)
E(f"""
s_mov_b32 s{sT}, {BLO}
s_mov_b32 s{sTb}, {BHI}
v_min_f32 v{vT0}, v{vO[0]+8}, v{vO[1]+8}
v_max_f32 v{vT1}, v{vO[0]+8}, v{vO[1]+8}
v_cmp_nle_f32 vcc, s{sT}, v{vT0}
v_cmp_nge_f32 s[4:5], s{sTb}, v{vT1}
v_cmp_u_f32 s[6:7], v{vO[0]+8}, v{vO[1]+8}
s_or_b64 vcc, vcc, s[4:5]
s_or_b64 vcc, vcc, s[6:7]
s_cbranch_vccnz L_truemax
""")
prog[-1].post = "\nL_att_done:"
E(store4(vO[0] + 12, vOst, "0", 0, "o"))
N1 = O("n1", 1)
if not N1:
    E("\n".join(norm(1)))
    E(store4(vO[1] + 12, vOst, "0", 1024, "o"))
    stamp((6, 12))
    E("s_barrier")
stamp((1, 5, 6, 12))

sa, sb_, sc_, sd_, se_, sf_ = sT, sTb, sTc, sTd, sX, sQ
tm = [f"""
L_truemax:
    s_waitcnt vmcnt(0) lgkmcnt(0)
    s_nop 15
    s_sub_i32 s{sa}, 8, s{sTB}
    s_max_i32 s{sa}, s{sa}, 0
    s_mov_b32 s{sb_}, 0
L_tm_head:
    s_cmp_eq_u32 s{sb_}, 0
    s_cselect_b64 vcc, -1, 0
    s_nop 4
"""]
tm += [f"    v_cndmask_b32 v{vP[1]+j}, v{vQ+4+j}, v{vQ+j}, vcc\n" for j in range(4)]
tm.append(f"""
    v_mov_b32 v{vT0}, 0xff000000
    s_mov_b32 s{sd_}, 0
L_tm_pass:
    s_mov_b32 s{sc_}, s{sa}
""")
tm += [f"    v_mov_b32 v{vS[1]+j}, 0\n" for j in range(16)]
tm.append(f"""
L_tm_blk:
    s_lshl_b32 s{se_}, s{sc_}, 12
    s_lshl_b32 s{sf_}, s{sb_}, 10
    s_add_u32 s{se_}, s{se_}, s{sf_}
    v_add_u32 v{vT1}, s{se_}, v{vKa}
    ds_read_b128 {ar(aK,4)}, v{vT1}
    s_sub_u32 s{se_}, 9, s{sc_}
    v_mul_lo_u32 v{vT2}, s{se_}, v{vVinc}
    v_sub_u32 v{vT2}, v{vVa}, v{vT2}
    v_add_u32 v{vT2}, s{sf_}, v{vT2}
    ds_read_b64_tr_b16 {ar(aV,2)}, v{vT2}
    ds_read_b64_tr_b16 {ar(aV+2,2)}, v{vT2} offset:256
    ds_read_b64_tr_b16 {ar(aV+4,2)}, v{vT2} offset:512
    ds_read_b64_tr_b16 {ar(aV+6,2)}, v{vT2} offset:768
    s_waitcnt lgkmcnt(0)
    s_cmp_eq_u32 s{sc_}, 0
    s_cbranch_scc1 L_tm_far
    s_cmp_eq_u32 s{sc_}, 8
    s_cbranch_scc1 L_tm_diag
    {MF} {vr(vS[0],16)}, {ar(aK,4)}, {vr(vP[1],4)}, 0
    s_branch L_tm_s
L_tm_far:
    {MF} {vr(vS[0],16)}, {ar(aK,4)}, {vr(vP[1],4)}, {vr(vBF,16)}
    s_branch L_tm_s
L_tm_diag:
    {MF} {vr(vS[0],16)}, {ar(aK,4)}, {vr(vP[1],4)}, {vr(vBD,16)}
L_tm_s:
    s_nop 15
    s_cmp_eq_u32 s{sd_}, 0
    s_cbranch_scc0 L_tm_exp
""")
tm += [f"    v_max_f32 v{vT0}, v{vT0}, v{vS[0]+j}\n" for j in range(16)]
tm.append("    s_branch L_tm_next\nL_tm_exp:\n")
tm += [f"    v_sub_f32 v{vS[0]+j}, v{vS[0]+j}, v{vT0}\n" for j in range(16)]
tm += [f"    v_exp_f32 v{vS[0]+j}, v{vS[0]+j}\n" for j in range(16)]
tm.append("    s_nop 1\n")
tm += [f"    v_cvt_pk_bf16_f32 v{vP[0]+j}, v{vS[0]+2*j}, v{vS[0]+2*j+1}\n" for j in range(8)]
tm.append(f"""
    s_nop 1
    {MF} {vr(vS[1],16)}, {ar(aV,4)}, {vr(vP[0],4)}, {vr(vS[1],16)}
    {MF} {vr(vS[1],16)}, {ar(aV+4,4)}, {vr(vP[0]+4,4)}, {vr(vS[1],16)}
    s_nop 15
L_tm_next:
    s_add_u32 s{sc_}, s{sc_}, 1
    s_cmp_lt_u32 s{sc_}, 9
    s_cbranch_scc1 L_tm_blk
    s_cmp_eq_u32 s{sd_}, 0
    s_cbranch_scc0 L_tm_fin
    v_mov_b32 v{vT1}, v{vT0}
    s_nop 1
    v_permlane32_swap_b32 v{vT0}, v{vT1}
    s_nop 1
    v_max_f32 v{vT0}, v{vT0}, v{vT1}
    s_mov_b32 s{sd_}, 1
    s_branch L_tm_pass
L_tm_fin:
    s_cmp_eq_u32 s{sb_}, 0
    s_cbranch_scc0 L_tm_h1
""")
tm += [f"    v_mov_b32 v{vO[0]+j}, v{vS[1]+j}\n" for j in range(16)]
tm.append(f"    s_mov_b32 s{sb_}, 1\n    s_branch L_tm_head\nL_tm_h1:\n")
tm += [f"    v_mov_b32 v{vO[1]+j}, v{vS[1]+j}\n" for j in range(16)]
tm += ["    " + x + "\n" for x in norm(0)]
tm.append(f"    s_nop 1\n    s_branch L_att_done\n")
rare.append("".join(tm))

def oload(j2, tt):
    post = L(f"s_add_u32 s{sWS}, s{sWS}, 1024\ns_and_b32 s{sWS}, s{sWS}, 0x1fff")
    return [I(f"buffer_load_dwordx4 {vr(vOF+8*j2+4*tt,4)}, v{vOo+tt}, {srd(SWS)}, s{sWS} offen sc1")] + post
OF, OP, OC = O("oflag", 6), O("opoll", 12), O("ochk", 17)
if NW2V == 0: E(w2_reads(0))
S3 = Sched()
order = [(j, ct, tt) for j in range(22) for ct in range(2) for tt in range(2)]
order += [(j, ct, 0) for j in range(22, 30) for ct in range(2)]
CTM = O("ctm", 0)
order += [(j, ct, 1) for ct in range(2) for j in range(22, 30)] if CTM else [(j, ct, 1) for j in range(22, 30) for ct in range(2)]
def w2f(j, ct): return vr(W2V[2 * j + ct], 4) if j < NW2V else (ar(aW2 + 8 * (j & 1) + 4 * ct, 4) if j < 22 else ar(8 * (j - 22) + 4 * ct, 4))
for n, (j, ct, tt) in enumerate(order):
    acc = ar(aACC + 32 * ct + 16 * tt, 16)
    bb = ar(aH + 8 * j + 4 * tt, 4) if j < 22 else vr(vOF + 8 * (j - 22) + 4 * tt, 4)
    xr = None
    if ct == 0 and tt == 0 and j >= NW2V: xr = ar(aW2 + 8 * (j & 1), 8) if j < 22 else ar(8 * (j - 22), 8)
    aa = w2f(j, ct)
    S3.pos(I(f"{MF} {acc}, {aa}, {bb}, {'0' if j == 0 else acc}", xr=xr), 6, stampq((5,)) if (n % 8 == 0) else [])
for j in range(30):
    if NW2V <= j + 1 < 23: S3.spread(w2_reads(j + 1), 4 * j, 4 * j + 2, 0)
    if 23 <= j: S3.put(88 + 2 * (j - 24) if j > 23 else 86, w2_reads(j), 0)
    if j >= NW2V and j + 12 < 22:
        S3.put(4 * j + 2, [flat(w2_dma(j + 12))], 1)
S3.pre[0] += L(f"s_lshl_b32 s{sM0K}, s{sW}, 14\ns_mul_i32 s{sT}, s{sW}, 10240\ns_sub_u32 s{sT}, s{sT}, {WB}\nv_add_u32 v{vPa}, s{sT}, v{vW3r}")
if N1:
    S3.spread(L("\n".join(norm(1))) + [store4(vO[1] + 12, vOst, "0", 1024, "o")], 0, 3, 2)
    S3.pre[4] += L("s_barrier")
if NW2V == 10: S3.spread(hl_late + flat([w2_dma(j) for j in range(22, 30)]), 4 if N1 else 0, O('hle', 44), 1, one)
else:
    S3.spread(hl_late, 4, 12, 1, one)
    S3.spread([flat(w2_dma(j)) for j in range(22, 30)], O('wos', 4), O('hle', 44), 1, one)
ol = [oload(j2, tt) for tt in range(2) for j2 in range(8)]
if not SENT:
    S3.put(4 * OF, [flag(3, "o", vFl1)], 1)
    S3.put(4 * OP, [poll_issue(vPb)], 1)
    S3.put(4 * OC, [poll_check("o", SWS, vPoll, vPb)], 1)
    S3.spread(ol, 4 * OC + 1, 4 * O("oend", 24), 1, one)
else:
    OS, OE, OK_ = O("os", 11), O("oe", 20), O("ok", 21)
    S3.spread(ol, 4 * OS, 4 * OE, 1, one)
    for tt in range(2):
        rg = [vOF + 8 * j + 4 * tt for j in range(8)]
        chk = [f"v_max3_u32 v{vT0}, v{rg[0]}, v{rg[1]}, v{rg[2]}", f"v_max3_u32 v{vT0}, v{vT0}, v{rg[3]}, v{rg[4]}", f"v_max3_u32 v{vT0}, v{vT0}, v{rg[5]}, v{rg[6]}", f"v_max_u32 v{vT0}, v{vT0}, v{rg[7]}", f"v_cmp_eq_u32 vcc, -1, v{vT0}"]
        br = L(f"s_cbranch_vccnz L_spin_o{tt}"); br[-1].post = f"\nL_ok_o{tt}:"
        S3.put(87 if tt == 0 else 103, [L("\n".join(chk)) + br], 2)
        rare.append(f"""
L_spin_o{tt}:
    s_mov_b32 s{sSPIN}, {OPT['spin']}
    s_nop 7
L_spin2_o{tt}:
""" + (f"    v_writelane_b32 v231, s{sSPIN}, {29+tt}\n" if OPT["stamps"] else "") + "".join("    " + x.text + "\n" for g in ol[8*tt:8*tt+8] for x in g) + "    s_waitcnt vmcnt(0) lgkmcnt(0)\n" + "".join("    " + x + "\n" for x in chk) + f"""    s_nop 4
    s_cbranch_vccz L_ok_o{tt}
    s_sleep 1
    s_sub_u32 s{sSPIN}, s{sSPIN}, 1
    s_cmp_lg_u32 s{sSPIN}, 0
    s_cbranch_scc1 L_spin2_o{tt}
    s_endpgm
""")
    assert 4 * OE <= 87
S3.spread(L("\n".join(f"v_xor_b32 v{vU+i}, {32*i}, v{vRw}" for i in range(4)) + f"\nv_xor_b32 v{vU+4}, 16, v{vRr}"), 4, 8, 2)
def pwrite(ct, tt): return [I(f"ds_write_b128 v{vU+i}, {ar(aACC+32*ct+16*tt+4*i,4)} offset:{tt*8192+ct*128}") for i in range(4)]
R0 = 128
def fin_reads(tt): return [I(f"ds_read_b128 {vr(R0+8*p+4*n,4)}, v{vRr if n == 0 else vU+4} offset:{p*16384+tt*8192}") for p in range(4) for n in range(2)]
def fin_math(tt, pk):
    x = R0 + 64 + 8 * tt; o = []
    for p in range(4):
        if pk: o += [I(f"v_pk_add_f32 {vr(x+j,2)}, {vr(x+j,2)}, {vr(R0+8*p+j,2)}") for j in range(0, 8, 2)]
        else: o += [I(f"v_add_f32 v{x+j}, v{x+j}, v{R0+8*p+j}") for j in range(8)]
    o += [I(f"v_cvt_pk_bf16_f32 v{R0+32+4*tt+j}, v{x+2*j}, v{x+2*j+1}") for j in range(4)]
    o += [I(f"buffer_store_dwordx4 {vr(R0+32+4*tt,4)}, v{vOut+tt}, {srd(SOUT)}, 0 offen sc1")]
    return o
S3.spread(L("\n".join(f"v_lshlrev_b32 v{R0+64+2*j}, 16, v{vXres+j}\nv_and_b32 v{R0+65+2*j}, 0xffff0000, v{vXres+j}" for j in range(8))), 4 * 12, 4 * 16, 2)
FB = O("fb", 110)
S3.spread(pwrite(0, 0) + pwrite(1, 0), 105, 108, 0)
S3.pre[FB] += L("s_waitcnt lgkmcnt(0)\ns_barrier")
S3.spread(fin_reads(0), FB, FB + 2, 0)
S3.spread(fin_math(0, False), FB + 3, 120, 2)
if CTM: S3.spread(pwrite(0, 1), 116, 120, 0)
if OPT["stamps"] == 13:
    for jj in range(29):
        k = nstamp[0]; nstamp[0] += 1
        S3.put(4 * jj + 2, [I(f"{TIMER} s[88:89]")], 0)
        S3.put(4 * jj + 4, [I(f"v_writelane_b32 v231, s88, {k}")], 2)
E(S3.emit())
stamp((1, 5))
E(pwrite(1, 1) if CTM else pwrite(0, 1) + pwrite(1, 1))
E("s_waitcnt lgkmcnt(0)\ns_barrier")
E(fin_reads(1) + fin_math(1, True))
if OPT["stamps"]:
    stamp()
    E(f"s_waitcnt vmcnt(0)")
    stamp((1, 2, 3, 4, 5, 6, 7, 9, 10, 11, 12, 13, 15, 17))
    E(f"s_lshl_b32 s{sT}, s2, 2\ns_add_u32 s{sT}, s{sT}, s{sW}\ns_lshl_b32 s{sT}, s{sT}, 7\ns_add_u32 s{sT}, s{sT}, {ST0}\nv_lshlrev_b32 v{vT0}, 2, v{vL}\nv_lshrrev_b32 v{vT1}, 5, v{vL}\nv_lshl_add_u32 v{vT0}, v{vT1}, 28, v{vT0}")
    E(f"buffer_store_dword v231, v{vT0}, {srd(SWS)}, s{sT} offen")
if O("xf", 0):
    E("s_waitcnt vmcnt(0)"); stamp()
    if OPT["xf"] == 99: E("s_mov_b32 s90, s88")
    E(("s_sub_u32 s90, s90, s92\ns_lshr_b32 s90, s90, 3" if O("xfc", 0) else "s_sub_u32 s90, s90, s88\ns_lshl_b32 s90, s90, 2") + "\ns_add_u32 s90, s90, 4000\nL_es:\ns_memrealtime s[4:5]\ns_waitcnt lgkmcnt(0)\ns_sub_u32 s4, s4, s88\ns_cmp_lt_u32 s4, s90\ns_cbranch_scc1 L_es")
E("L_end:\ns_endpgm")

lines = finalize(prog, verbose=True)
hdr = f"""; out = x + attn(LN(x)) @ wo + (gelu(LN(x) @ w_gate) * (LN(x) @ w_up)) @ w_down      (one launch, 256 workgroups, one per CU)
; kernarg: x, wqkv, wo, (unused), w_gate, w_up, w_down, out, debug, ws
; pass-1 epilogues in its shadow, sliding-window attention (2 heads x 32 queries per wave; exp2 of the raw scores with a range
; @launch grid=(256,1,1) block=(256,1,1) lds={LDSSZ}
.amdgcn_target "amdgcn-amd-amdhsa--gfx950"
.text
.globl {KNAME}
.p2align 8
.type {KNAME},@function
{KNAME}:
"""
tail = f"""
L_code_end:
.fill (({KNAME}+33024-.)/4), 4, 0xbf800000
    s_endpgm
.section .rodata,"a"
.p2align 6
.amdhsa_kernel {KNAME}
  .amdhsa_next_free_vgpr 512
  .amdhsa_next_free_sgpr 102
  .amdhsa_accum_offset 256
  .amdhsa_group_segment_fixed_size 0
  .amdhsa_kernarg_size 80
  .amdhsa_user_sgpr_count 2
  .amdhsa_user_sgpr_kernarg_segment_ptr 1
  .amdhsa_system_sgpr_workgroup_id_x 1
.end_amdhsa_kernel
"""
open(sys.argv[1], "w").write(hdr + "\n".join(lines) + "\n" + "".join(rare) + tail)
```

```python
import sys, math, struct
from asmlib import I, Ins, finalize, weave, Sched

KNAME = "parallel_sum__sliding_block__glu_gated_geglu__prompt_kernel"
OPT = dict(stamps=0, spin=200000)
for a in sys.argv[2:]:
    k, v = a.split("="); OPT[k] = int(v)
def O(k, d): return OPT.get(k, d)

HUGE = 0x40000000
H0 = 4 << 20
HSTR = 88 * 1024
O0 = 10 << 20
FL0 = 12 << 20
ST0 = FL0 + (64 << 10)
SP0 = FL0 + (256 << 10)
WSSZ = 13 << 20
WB = 65536
CS1 = 0; C1STR = 520
STRIP = 49152
CS2 = 53248; CSTR = 1040
LDSSZ = 163840

STC = 4
STB = 18 + 2
sKV = [8, 9, 10]; sRHO, sWB, sWS, sAL, sWL, sMSK, sGp = 11, 12, 13, 14, 15, 16, 17
SX, SQ, SG, SU, SD, SO, SOUT, SWS, SDBG = 24, 28, 32, 36, 40, 44, 48, 52, 56
sW, sRB, sCB, sTB2, sNB, sT0, sT2, sH2, sTB = 3, 60, 61, 62, 63, 64, 65, 66, 67
sX, sQ, sG, sM0X, sM0W = 68, 69, 70, 71, 72
sT, sTb, sTc, sTd = 73, 74, 75, 76
sPK, sPH, sM0D, sD, sSPIN = 77, 78, 80, 81, 82
sPHI, sPH2, sC, sHUGE, sA = 83, 84, 85, 86, 87
sM0K = 79; sSP, sSG = 0, 1
STREG = list(range(90, 94)) + list(range(18, 24))
sHE = [18, 19, 20, 21, 22, 23, 92, 93]
sWE = 94
sLH = [64, 65, 16]; sLW = [17, 14, 15]
def srd(n): return "s[%d:%d]" % (n, n + 3)
def vr(a, n): return "v[%d:%d]" % (a, a + n - 1)
def ar(a, n): return "a[%d:%d]" % (a, a + n - 1)

vL = 0; vT0, vT1, vT2 = 1, 2, 3
vXo = 4; vQo = 8; vGo = 10; vXr = 12; vXp = 16; vWr = 20
vK = [4, 8]
vBx = [12, 16]; vG = 20
vQo2 = 28; vGo2 = 30; vW2r = 32
vSum = 40; vCS1 = 44; vCS2 = 48
vL16, vKVst, vHst, vFl2, vCSw1, vCSw2, vPoll, vInit, vCSr, vSPo, vDo = 52, 53, 54, 55, 56, 57, 58, 59, 60, 61, 62
ACC1 = 64; ACC2 = 160
vXT = 160; vSL = 176
vKa, vVa, vVinc, vOst, vKVo, vPa, vPb, vW3r = 208, 209, 210, 211, 212, 213, 214, 215
vOut, vEo, vAo, vOo, vFl1, vRw, vRr, vPs, vQS = 217, 219, 221, 223, 225, 226, 227, 228, 229
vU = 232; vCSA = [240, 244, 248]
vXres = 28
vBF = 64; vBD = 80; vS = [96, 112]; vP = [128, 136]; vQ = 144; vO = [160, 176]
vOF = 64
aSTV = 200; aMSK = 216
aX = 0; aSEL = 128; aXP = 140; aWF = 152
aH = 0; aW2 = 176; aACC = 192; aK = 192; aV = 200

prog = []; rare = []
def L(txt, **kw): return [I(ln.strip(), **kw) for ln in txt.strip().split("\n") if ln.strip() and not ln.strip().startswith(";")]
def E(x, **kw):
    if isinstance(x, str): prog.extend(L(x, **kw))
    elif isinstance(x, Ins): prog.append(x)
    else: prog.extend(x)
def flat(g): return [x for y in g for x in y]
one = lambda g: 1
nstamp = [0]; xfc = [0]
TIMER = "s_memrealtime" if O("rt", 0) else "s_memtime"
def stampq(sets=(1,)):
    if O("xf", 0):
        if 1 in sets:
            xfc[0] += 1
            if xfc[0] == OPT["xf"]: return L("s_waitcnt lgkmcnt(0)\n%s s[90:91]\ns_waitcnt lgkmcnt(0)" % ("s_memtime" if O("xfc", 0) else "s_memrealtime"))
        return []
    if OPT["stamps"] == 14 and 1 in sets:
        k = nstamp[0]; nstamp[0] += 2
        return L("s_waitcnt lgkmcnt(0)\ns_memtime s[88:89]\ns_memrealtime s[90:91]\ns_waitcnt lgkmcnt(0)\nv_writelane_b32 v231, s88, %d\nv_writelane_b32 v231, s90, %d" % (k, k + 1))
    if OPT["stamps"] in sets:
        k = nstamp[0]; nstamp[0] += 1
        return L("s_waitcnt lgkmcnt(0)\n%s s[88:89]\ns_waitcnt lgkmcnt(0)\nv_writelane_b32 v231, s88, %d" % (TIMER, k))
    return []
def stamp(sets=(1,)): E(stampq(sets))
def fx(f): return "0x%08x" % struct.unpack("<I", struct.pack("<f", f))[0]
MF = "v_mfma_f32_32x32x16_bf16"; MS = "v_mfma_f32_16x16x32_bf16"
HOME = dict(Ka=vKa, Va=vVa, Vinc=vVinc, Ost=vOst, KVo=vKVo, Pa=vPa, Pb=vPb, W3r=vW3r, W3s=vW3r+1, Out=vOut, Out1=vOut+1, Eo=vEo, Eo1=vEo+1, Ao=vAo, Ao1=vAo+1, Oo=vOo, Oo1=vOo+1, Fl1=vFl1, Rw=vRw, Rr=vRr)
def park(name, src): return f"v_mov_b32 v{HOME[name]}, {src}\n"
def dma(voff, S, soff, imm, tag, flags="", need=None):
    if tag in ("c0", "c1", "c2", "c3", "c4", "c5", "c6", "c7")[:O("ntw", 0)] and S != SX: flags = "nt"
    if tag in ("c0", "c1", "c2", "c3", "c4", "c5", "c6", "c7")[:O("ntx", 0)] and S == SX: flags = "nt"
    if tag in ("p0", "p1", "p2", "p3")[:O("ntp", 0)]: flags = "nt"
    if tag[0] == "w" and O("nt2", 0): flags = "nt"
    o = (" offset:%d" % imm) if imm else ""
    return I(f"buffer_load_dwordx4 v{voff}, {srd(S)}, {soff} offen{o} {flags} lds", tag=tag, need=need)
def glue(q):
    out = []; cur = []
    for n, x in enumerate(q):
        if isinstance(x, list):
            assert not cur
            out.append(x); continue
        cur.append(x)
        nxt = q[n + 1] if n + 1 < len(q) else None
        if x.op.startswith("s_cmp") or (nxt is not None and not isinstance(nxt, list) and nxt.op.startswith("s_cselect")): continue
        out.append(cur); cur = []
    if cur: out.append(cur)
    return out

def t0_of(dst, cb, tmp):
    tab = sum(((c >= 7) + (c >= 8) + (c >= 14) + (c >= 15) & 3) << (2 * c) for c in range(16))
    return f"""s_lshl_b32 s{tmp}, s{cb}, 1
s_lshr_b32 s{tmp}, 0x{tab:08x}, s{tmp}
s_and_b32 s{tmp}, s{tmp}, 3
s_mul_i32 s{dst}, s{cb}, 3
s_sub_u32 s{dst}, s{dst}, s{tmp}
s_min_u32 s{dst}, s{dst}, 41
"""
def mksrd(n, p, size): return f"s_mov_b32 s{n}, s{p}\ns_mov_b32 s{n+1}, s{p+1}\ns_mov_b32 s{n+2}, {size}\ns_mov_b32 s{n+3}, 0x20000\n"
E(f"""
s_cmp_ge_u32 s2, 256
s_cbranch_scc1 L_end
s_load_dwordx2 s[{SX}:{SX+1}], s[0:1], 0
s_load_dwordx2 s[{SQ}:{SQ+1}], s[0:1], 8
s_load_dwordx2 s[{SG}:{SG+1}], s[0:1], 32
s_load_dwordx2 s[{SU}:{SU+1}], s[0:1], 40
""")
if OPT["stamps"]: E(TIMER + " s[88:89]")
if OPT["stamps"] == 14: E("s_memrealtime s[90:91]")
if O("xf", 0): E("s_memrealtime s[88:89]\ns_memtime s[92:93]")
E(f"""
s_getpc_b64 s[40:41]
s_lshr_b32 s{sTb}, s2, 3
s_lshl_b32 s44, s{sTb}, 10
s_add_u32 s42, s44, 1024
s_mov_b32 s43, 0x20000
v_lshlrev_b32 v{vT1}, 7, v0
buffer_load_dword v255, v{vT1}, s[40:43], s44 offen
v_lshrrev_b32 v{vT0}, 6, v0
v_and_b32 v{vL}, 63, v0
v_readfirstlane_b32 s{sW}, v{vT0}
s_bfe_u32 s{sT}, s2, 0x10002
s_and_b32 s{sTd}, s{sTb}, 7
s_lshl3_add_u32 s{sRB}, s{sT}, s{sTd}
s_and_b32 s{sT}, s2, 3
s_lshr_b32 s{sTd}, s2, 6
s_lshl2_add_u32 s{sCB}, s{sT}, s{sTd}
s_add_u32 s{sC}, s{sCB}, s{sRB}
s_and_b32 s{sC}, s{sC}, 3
s_lshl_b32 s{sX}, s{sC}, 8
s_mul_i32 s{sQ}, s{sC}, {2*196608}
s_mul_i32 s{sG}, s{sC}, {2*176128}
s_lshl2_add_u32 s{sTB}, s{sRB}, s{sW}
s_lshl_b32 s{sT}, s{sTB}, 15
s_lshl_b32 s{sM0X}, s{sW}, 12
s_lshl_b32 s{sM0W}, s{sW}, 11
s_bitset1_b32 s{sM0W}, 16
v_lshrrev_b32 v{vT0}, 3, v{vL}
v_lshl_add_u32 v{vT0}, v{vT0}, 10, s{sT}
v_and_b32 v{vT1}, 7, v{vL}
v_lshrrev_b32 v{vT2}, 4, v{vL}
v_xor_b32 v{vT1}, v{vT1}, v{vT2}
v_lshl_add_u32 v{vXo}, v{vT1}, 4, v{vT0}
v_xor_b32 v{vXo+1}, 64, v{vXo}
v_add_u32 v{vXo+1}, {7*1024}, v{vXo+1}
v_add_u32 v{vXo+2}, {14*1024}, v{vXo}
v_add_u32 v{vXo+3}, {14*1024}, v{vXo+1}
{t0_of(sT0, sCB, sT)}v_lshrrev_b32 v{vT0}, 5, v{vL}
v_bfe_u32 v{vT1}, v{vL}, 2, 2
v_lshl_add_u32 v{vT0}, v{vT0}, 2, v{vT1}
v_and_b32 v{vT1}, 16, v{vL}
v_and_b32 v{vT2}, 3, v{vL}
v_lshl_add_u32 v{vT1}, v{vT2}, 2, v{vT1}
v_lshlrev_b32 v{vT1}, 2, v{vT1}
v_lshl_add_u32 v{vDo}, v{vT0}, 10, v{vT1}
s_lshl_b32 s{sT}, s{sW}, 4
v_add_u32 v{vT0}, s{sT}, v{vT0}
s_and_b32 s{sT}, s{sCB}, 1
s_lshr_b32 s{sTd}, s{sCB}, 1
s_lshl3_add_u32 s{sT}, s{sT}, s{sTd}
s_add_u32 s{sT}, s{sT}, 8
s_lshl_b32 s{sT}, s{sT}, 7
s_movk_i32 s{sTd}, 3072
v_mad_u32_u24 v{vQo}, v{vT0}, s{sTd}, v{vT1}
v_add_u32 v{vQo}, s{sT}, v{vQo}
v_add_u32 v{vQo+1}, {8*3072-1024}, v{vQo}
s_lshl_b32 s{sT}, s{sT0}, 6
s_movk_i32 s{sTd}, 2752
v_mad_u32_u24 v{vGo}, v{vT0}, s{sTd}, v{vT1}
v_add_u32 v{vGo}, s{sT}, v{vGo}
v_add_u32 v{vGo+1}, {8*2752-1024}, v{vGo}
s_mov_b32 s{SX+2}, 2097152
s_mov_b32 s{SX+3}, 0x20000
s_mov_b32 s{SQ+2}, 1572864
s_mov_b32 s{SQ+3}, s{SX+3}
s_mov_b32 s{SG+2}, 1409024
s_mov_b32 s{SG+3}, s{SX+3}
s_mov_b32 s{SU+2}, s{SG+2}
s_mov_b32 s{SU+3}, s{SX+3}
s_mov_b32 m0, s{sM0X}
""")
if OPT["stamps"] == 17: E("s_waitcnt lgkmcnt(0)\n" + TIMER + " s[94:95]")
NI = O("ni", 9)
g0 = [[dma(vXo + i, SX, f"s{sX}", 1024 * i, "c0")] for i in range(4)]
g0[3].append(I(f"s_mov_b32 m0, s{sM0W}"))
g0 += [[dma(vQo, SQ, f"s{sQ}", 0, "c0")], [dma(vQo + 1, SQ, f"s{sQ}", 1024, "c0"), I(f"s_add_u32 m0, s{sM0W}, 8192")]]
g0 += [[dma(vGo, SG, f"s{sG}", 0, "c0")], [dma(vGo + 1, SG, f"s{sG}", 1024, "c0"), I(f"s_add_u32 m0, s{sM0W}, 16384")]]
g0 += [[dma(vGo, SU, f"s{sG}", 0, "c0")], [dma(vGo + 1, SU, f"s{sG}", 1024, "c0")]]
E(flat(g0[:NI])); g0 = g0[NI:]
E("""
s_load_dwordx2 s[8:9], s[0:1], 16
s_load_dwordx4 s[16:19], s[0:1], 48
s_load_dwordx4 s[20:23], s[0:1], 64
""")
if OPT["stamps"]:
    E("v_mov_b32 v231, -1\nv_writelane_b32 v231, s88, 0"); nstamp[0] = 1
    if OPT["stamps"] == 14: E("v_writelane_b32 v231, s90, 1"); nstamp[0] = 2
if OPT["stamps"] == 17:
    E(TIMER + " s[96:97]\ns_waitcnt lgkmcnt(0)\nv_writelane_b32 v231, s94, 1\nv_writelane_b32 v231, s96, 2"); nstamp[0] = 3
def table(order): return sum(c << (4 * i) for i, c in enumerate(order))
E(f"""
s_and_b32 s{sT}, s2, 7
s_and_b32 s{sTd}, s{sTb}, 3
s_lshl2_add_u32 s{sTB2}, s{sT}, s{sTd}
s_lshr_b32 s{sNB}, s{sTb}, 2
s_mov_b32 s{sPHI}, 0x76543210
""")
for r in range(1, 4): E(f"s_cmp_eq_u32 s{sC}, {r}\ns_cselect_b32 s{sPHI}, 0x{table([(c + 2 * r) & 7 for c in range(8)]):08x}, s{sPHI}")

def p1_dma(c):
    sl = c & 3; t = "c%d" % c
    g = []
    g.append(L(f"s_bfe_u32 s{sC}, s{sPHI}, {0x30000 + 4*c}\ns_add_u32 m0, s{sM0X}, {sl*16384}\ns_lshl_b32 s{sX}, s{sC}, 7") + [dma(vXo, SX, f"s{sX}", 0, t)])
    g += [[dma(vXo + i, SX, f"s{sX}", 1024 * i, t)] for i in range(1, 4)]
    g.append(L(f"s_add_u32 m0, s{sM0W}, {sl*24576}\ns_mul_i32 s{sQ}, s{sC}, 196608") + [dma(vQo, SQ, f"s{sQ}", 0, t)])
    g.append([dma(vQo + 1, SQ, f"s{sQ}", 1024, t), I(f"s_add_u32 m0, s{sM0W}, {sl*24576+8192}")])
    g.append(L(f"s_mul_i32 s{sG}, s{sC}, 176128") + [dma(vGo, SG, f"s{sG}", 0, t)])
    g.append([dma(vGo + 1, SG, f"s{sG}", 1024, t), I(f"s_add_u32 m0, s{sM0W}, {sl*24576+16384}")])
    g.append([dma(vGo, SU, f"s{sG}", 0, t)])
    g.append([dma(vGo + 1, SU, f"s{sG}", 1024, t)])
    return g
def p2_dma(p):
    t = "p%d" % p
    g = []
    g.append(L(f"s_bfe_u32 s{sC}, s{sPH2}, {0x30000 + 8*p}\ns_add_u32 m0, s{sM0W}, {p*24576}\ns_mul_i32 s{sQ}, s{sC}, 196608") + [dma(vQo2, SQ, f"s{sQ}", 0, t)])
    g.append([dma(vQo2 + 1, SQ, f"s{sQ}", 1024, t), I(f"s_add_u32 m0, s{sM0W}, {p*24576+8192}")])
    g.append(L(f"s_mul_i32 s{sG}, s{sC}, 176128") + [dma(vGo2, SG, f"s{sG}", 0, t)])
    g.append([dma(vGo2 + 1, SG, f"s{sG}", 1024, t), I(f"s_add_u32 m0, s{sM0W}, {p*24576+16384}")])
    g.append([dma(vGo2, SU, f"s{sG}", 0, t)])
    g.append([dma(vGo2 + 1, SU, f"s{sG}", 1024, t)])
    return g

E(mksrd(SWS, 22, WSSZ) + mksrd(SDBG, 20, 256) + f"""
s_mov_b32 s{sHUGE}, {HUGE}
v_lshlrev_b32 v{vL16}, 4, v{vL}
s_cmp_eq_u32 s2, 0
s_cbranch_scc1 L_zero
""")
prog[-1].post = "\nL_zero_done:"
rare.append(f"""
L_zero:
    s_mul_i32 s{sT}, s{sW}, 10240
    s_add_u32 s{sT}, s{sT}, {FL0}
    s_add_u32 s{sTb}, s{sT}, 4096
    s_add_u32 s{sTc}, s{sT}, 8192
    v_mov_b32 v{vXT}, 0
    v_mov_b32 v{vXT+1}, 0
    v_mov_b32 v{vXT+2}, 0
    v_mov_b32 v{vXT+3}, 0
""" + "".join(f"    buffer_store_dwordx4 {vr(vXT,4)}, v{vL16}, {srd(SWS)}, s{[sT, sTb, sTc][i>>2]} offen offset:{1024*(i&3)} sc1\n" for i in range(10)) + "    s_branch L_zero_done\n")
stamp((2,))
init_mark = len(prog)
E(mksrd(SD, 16, 1409024) + mksrd(SO, 8, 524288) + mksrd(SOUT, 18, 2097152))
ann = L(f"""
s_cmp_lg_u32 s2, 0
s_cselect_b32 s{sT}, s{sHUGE}, 0
s_lshl_b32 s{sTb}, s{sW}, 2
s_add_u32 s{sT}, s{sT}, s{sTb}
v_mov_b32 v{vT0}, 1
v_lshlrev_b32 v{vT1}, 8, v{vL}
""") + [I(f"buffer_store_dword v{vT0}, v{vT1}, {srd(SDBG)}, s{sT} offen sc1", need=["c0"])]
E(f"""
s_lshr_b32 s{sPH2}, s{sW}, 1
s_lshl_b32 s{sPH2}, s{sPH2}, 2
s_lshr_b32 s{sPH2}, s{sPHI}, s{sPH2}
s_lshr_b32 s{sT}, 0xe0c0, s{sCB}
s_and_b32 s{sT}, s{sT}, 1
s_cselect_b32 s{sMSK}, s{sHUGE}, 0
s_add_u32 s{sT2}, s{sT0}, 2
""")
if O("w2m", 0) == 0:
    w2touch = L(f"""s_mul_i32 s{sT}, s2, 3
s_add_u32 s{sT}, s{sT}, s{sW}
s_mov_b32 s{STC+3}, 0x20000
s_cmp_eq_u32 s{sW}, 3
s_cselect_b32 s{sT}, s2, s{sT}
s_cselect_b32 s{STC}, s{SO}, s{SD}
s_cselect_b32 s{STC+1}, s{SO+1}, s{SD+1}
s_cselect_b32 s{STC+2}, s{SO+2}, s{SD+2}
s_lshl_b32 s{sT}, s{sT}, 11
v_and_b32 v{vT0}, 15, v{vL}
v_lshlrev_b32 v{vT0}, 7, v{vT0}
v_lshrrev_b32 v{vT1}, 4, v{vL}
v_lshl_add_u32 v{vT0}, v{vT1}, 28, v{vT0}
buffer_load_dword v{vPoll}, v{vT0}, {srd(STC)}, s{sT} offen sc1""")
else:
    w2touch = L(f"""s_lshr_b32 s{sTb}, s2, 1
s_mul_i32 s{sT}, s{sTb}, 3
s_add_u32 s{sT}, s{sT}, s{sW}
s_mov_b32 s{STC+3}, 0x20000
s_cmp_eq_u32 s{sW}, 3
s_cselect_b32 s{sT}, s{sTb}, s{sT}
s_cselect_b32 s{STC}, s{SO}, s{SD}
s_cselect_b32 s{STC+1}, s{SO+1}, s{SD+1}
s_cselect_b32 s{STC+2}, s{SO+2}, s{SD+2}
s_lshl_b32 s{sT}, s{sT}, 12
s_and_b32 s{sTb}, s2, 1
s_xor_b32 s{sTb}, s{sTb}, {O("w2m", 0) & 1}
s_lshl_b32 s{sTb}, s{sTb}, 29
s_add_u32 s{sT}, s{sT}, s{sTb}
v_and_b32 v{vT0}, 31, v{vL}
v_lshlrev_b32 v{vT0}, 7, v{vT0}
v_lshrrev_b32 v{vT1}, 5, v{vL}
v_lshl_add_u32 v{vT0}, v{vT1}, 28, v{vT0}
buffer_load_dword v{vPoll}, v{vT0}, {srd(STC)}, s{sT} offen sc1""")
if O("xt", 0):
    E(f"""s_lshr_b32 s{sTb}, s2, 3
s_lshl_b32 s{sTb}, s{sTb}, 2
s_and_b32 s{sT}, s2, 3
s_add_u32 s{sTb}, s{sTb}, s{sT}
s_lshl_b32 s{sTb}, s{sTb}, 2
s_add_u32 s{sT}, s{sTb}, s{sW}
s_lshl_b32 s{sT}, s{sT}, 11
s_add_u32 s{sT}, s{sT}, 0x100000
s_and_b32 s{sTb}, s2, 4
s_lshl_b32 s{sTb}, s{sTb}, 27
s_add_u32 s{sT}, s{sT}, s{sTb}
v_and_b32 v{vT0}, 15, v{vL}
v_lshlrev_b32 v{vT0}, 7, v{vT0}
v_lshrrev_b32 v{vT1}, 4, v{vL}
v_lshl_add_u32 v{vT0}, v{vT1}, 28, v{vT0}
buffer_load_dword v254, v{vT0}, {srd(SX)}, s{sT} offen sc1""")
E(f"""
v_and_b32 v{vT0}, 31, v{vL}
v_lshrrev_b32 v{vT1}, 5, v{vL}
v_bfe_u32 v{vT2}, v{vL}, 1, 3
v_xor_b32 v{vT2}, v{vT2}, v{vT1}
v_lshlrev_b32 v{vT0}, 7, v{vT0}
v_lshl_add_u32 v{vT0}, v{vT2}, 4, v{vT0}
v_add_u32 v{vT0}, s{sM0X}, v{vT0}
""")
for s in range(4):
    E(f"s_xor_b32 s{sT}, s{sW}, {s}\ns_lshl_b32 s{sT}, s{sT}, 5\nv_xor_b32 v{vXr+s}, s{sT}, v{vT0}\nv_xor_b32 v{vXp+s}, 4096, v{vXr+s}")
E(f"""
v_bfe_u32 v{vT2}, v{vL}, 2, 2
v_lshlrev_b32 v{vT2}, 6, v{vT2}
v_bfe_u32 v{vT0}, v{vL}, 4, 1
v_lshl_add_u32 v{vT2}, v{vT0}, 5, v{vT2}
v_and_b32 v{vT0}, 3, v{vL}
v_lshl_add_u32 v{vT2}, v{vT0}, 3, v{vT2}
v_lshl_add_u32 v{vT0}, v{vT1}, 10, v{vT2}
v_lshl_add_u32 v{vT2}, v{vT1}, 9, v{vT2}
s_and_b32 s{sTc}, s{sW}, 1
s_lshl_b32 s{sTc}, s{sTc}, 8
s_add_u32 s{sTc}, s{sTc}, {WB}
s_mul_i32 s{sT}, s{sW}, 6144
s_add_u32 s{sM0D}, s{sT}, {WB}
v_add_u32 v{vT1}, s{sM0D}, v{vT2}
{park("W3r", f"v{vT1}")}v_add_u32 v{vT1}, 49152, v{vT1}
{park("W3s", f"v{vT1}")}
""")
for s in range(4):
    E(f"""
s_xor_b32 s{sT}, s{sW}, {s}
s_lshl_b32 s{sTb}, s{sT}, 11
s_add_u32 s{sTb}, s{sTb}, s{sTc}
v_add_u32 v{vWr+2*s}, s{sTb}, v{vT0}
v_add_u32 v{vWr+2*s+1}, 49152, v{vWr+2*s}
s_lshl_b32 s{sTb}, s{sT}, 10
s_add_u32 s{sTb}, s{sTb}, {WB}
v_add_u32 v{vW2r+2*s}, s{sTb}, v{vT2}
v_add_u32 v{vW2r+2*s+1}, 49152, v{vW2r+2*s}
""")
E(f"""
v_lshrrev_b32 v{vT0}, 2, v{vL}
s_and_b32 s{sT}, s{sW}, 1
s_lshl_b32 s{sT}, s{sT}, 5
v_add_u32 v{vT0}, s{sT}, v{vT0}
v_and_b32 v{vT1}, 3, v{vL}
v_lshlrev_b32 v{vT1}, 4, v{vT1}
s_lshl_b32 s{sT}, s{sCB}, 6
v_mul_u32_u24 v{vQo2}, 3072, v{vT0}
v_add3_u32 v{vQo2}, v{vQo2}, v{vT1}, s{sT}
v_add_u32 v{vQo2+1}, {16*3072-1024}, v{vQo2}
s_lshl_b32 s{sT}, s{sT2}, 6
v_mul_u32_u24 v{vGo2}, 2752, v{vT0}
v_add3_u32 v{vGo2}, v{vGo2}, v{vT1}, s{sT}
v_add_u32 v{vGo2}, s{sMSK}, v{vGo2}
v_add_u32 v{vGo2+1}, {16*2752-1024}, v{vGo2}
v_and_b32 v{vT0}, 15, v{vL}
v_bfe_u32 v{vT1}, v{vL}, 4, 1
v_sub_u32 v{vT0}, v{vT0}, v{vT1}
v_mov_b32 v{vT1}, 0x3f803f80
""")
for t in range(3):
    E(f"v_cmp_eq_u32 vcc, {2*t}, v{vT0}\nv_cndmask_b32 v{vT2}, 0, v{vT1}, vcc")
    E("\n".join(f"v_accvgpr_write_b32 a{aSEL+4*t+j}, v{vT2}" for j in range(4)))
E(f"""
s_lshl_b32 s{sT}, s{sRB}, 2
s_sub_i32 s{sT}, 8, s{sT}
v_and_b32 v{vT0}, 7, v{vL}
v_lshlrev_b32 v{vT0}, 1, v{vT0}
v_mov_b32 v{vT1}, 0x3f80
v_cmp_le_i32 vcc, s{sT}, v{vT0}
v_cndmask_b32 v{vT2}, 0, v{vT1}, vcc
v_accvgpr_write_b32 a{aSTV}, v{vT2}
v_accvgpr_write_b32 a{aSTV+1}, 0
v_add_u32 v{vT0}, 1, v{vT0}
v_cmp_le_i32 vcc, s{sT}, v{vT0}
v_cndmask_b32 v{vT2}, 0, v{vT1}, vcc
v_cmp_ne_u32 vcc, 15, v{vT0}
v_cndmask_b32 v{vT2}, 0, v{vT2}, vcc
v_accvgpr_write_b32 a{aSTV+2}, v{vT2}
v_accvgpr_write_b32 a{aSTV+3}, 0
v_lshlrev_b32 v{vT0}, 3, v{vL}
s_and_b32 s{sTc}, s{sW}, 1
s_lshr_b32 s{sT}, s{sTB}, 1
s_lshl_b32 s{sTb}, s{sT}, 13
s_add_u32 s{sTb}, s{sTb}, {SP0}
s_lshl_b32 s{sTd}, s{sTc}, 8
v_xor_b32 v{vT1}, s{sTd}, v{vT0}
v_add_u32 v{vSPo}, s{sTb}, v{vT1}
s_lshl_b32 s{sSP}, s{sCB}, 9
s_and_b32 s{sSG}, s{sCB}, 12
s_lshl_b32 s{sSG}, s{sSG}, 9
s_lshl_b32 s{sT}, s{sT}, 8
s_and_b32 s{sTb}, s{sCB}, 12
s_lshl_b32 s{sTb}, s{sTb}, 3
s_add_u32 s{sT}, s{sT}, s{sTb}
s_add_u32 s{sT}, s{sT}, {FL0+4*8192}
v_bfe_u32 v{vT1}, v{vL}, 2, 1
v_and_b32 v{vT2}, 3, v{vL}
v_lshlrev_b32 v{vT2}, 3, v{vT2}
v_lshl_add_u32 v{vT1}, v{vT1}, 7, v{vT2}
v_add_u32 v{vPs}, s{sT}, v{vT1}
s_and_b32 s{sTc}, s{sW}, 1
s_mul_i32 s{sT}, s{sTc}, {8*C1STR}
v_add_u32 v{vCSr}, s{sT}, v{vT0}
s_lshr_b32 s{sTb}, s{sW}, 1
s_lshl_b32 s{sTd}, s{sTb}, 8
s_add_u32 s{sT}, s{sT}, s{sTd}
v_bfe_u32 v{vT0}, v{vL}, 1, 3
v_and_b32 v{vT1}, 1, v{vL}
v_lshrrev_b32 v{vT2}, 4, v{vL}
v_lshl_add_u32 v{vT1}, v{vT1}, 2, v{vT2}
v_mul_u32_u24 v{vT2}, {C1STR}, v{vT0}
v_lshl_add_u32 v{vT2}, v{vT1}, 5, v{vT2}
v_add_u32 v{vCSw1}, s{sT}, v{vT2}
s_lshl_b32 s{sT}, s{sTb}, 9
s_lshl_b32 s{sTd}, s{sTc}, 3
s_add_u32 s{sT}, s{sT}, s{sTd}
v_mul_u32_u24 v{vT2}, {CSTR}, v{vT0}
v_lshl_add_u32 v{vT2}, v{vT1}, 6, v{vT2}
v_add_u32 v{vCSw2}, s{sT}, v{vT2}
v_and_b32 v{vT0}, 31, v{vL}
v_lshrrev_b32 v{vT1}, 5, v{vL}
v_lshl_add_u32 v{vT0}, v{vT0}, 1, v{vT1}
v_lshlrev_b32 v{vT0}, 4, v{vT0}
v_add_u32 v{vT0}, 2048, v{vT0}
s_and_b32 s{sT}, s{sCB}, 1
s_cmp_eq_u32 s{sT}, 1
s_cselect_b64 vcc, -1, 0
v_cndmask_b32 v{vKVst}, v{vL16}, v{vT0}, vcc
s_and_b32 s{sT}, s{sCB}, 14
s_add_u32 s{sT}, s{sT}, s{sTc}
s_lshl_b32 s{sT}, s{sT}, 18
s_and_b32 s{sTb}, s{sTB}, -2
s_lshl_b32 s{sTd}, s{sTb}, 12
s_add_u32 s{sT}, s{sT}, s{sTd}
v_add_u32 v{vKVst}, s{sT}, v{vKVst}
s_lshl_b32 s{sPK}, s{sTc}, 12
s_mul_i32 s{sT}, s{sTb}, {HSTR}
s_add_u32 s{sT}, s{sT}, {H0}
s_lshl_b32 s{sTd}, s{sCB}, 12
s_add_u32 s{sT}, s{sT}, s{sTd}
s_lshl_b32 s{sTd}, s{sTc}, 11
s_add_u32 s{sT}, s{sT}, s{sTd}
v_add_u32 v{vHst}, s{sT}, v{vL16}
s_mul_i32 s{sPH}, s{sTc}, {HSTR}
s_lshr_b32 s{sT}, s{sCB}, 3
s_lshl_b32 s{sT}, s{sT}, 1
s_sub_u32 s{sT}, s{sCB}, s{sT}
s_lshl_b32 s{sT}, s{sT}, 11
s_add_u32 s{sT}, s{sT}, 65536
s_add_u32 s{sT}, s{sT}, s{sPH}
s_lshl_b32 s{sTd}, s{sCB}, 12
s_sub_u32 s{sT}, s{sT}, s{sTd}
s_lshl_b32 s{sTd}, s{sTc}, 11
s_sub_u32 s{sT}, s{sT}, s{sTd}
s_and_b32 s{sH2}, s{sCB}, 7
s_cmp_lt_u32 s{sH2}, 6
s_cselect_b32 s{sH2}, s{sT}, s{sHUGE}
s_lshl_b32 s{sT}, s{sTb}, 7
s_lshl_b32 s{sTd}, s{sCB}, 3
s_add_u32 s{sTd}, s{sTd}, {FL0}
s_add_u32 s{sT}, s{sT}, s{sTd}
s_lshl_b32 s{sTb}, s{sTc}, 2
s_add_u32 s{sT}, s{sT}, s{sTb}
v_lshlrev_b32 v{vT0}, 7, v{vL}
v_add_u32 v{vT0}, s{sT}, v{vT0}
v_mov_b32 v{vT1}, s{sHUGE}
v_cmp_gt_u32 vcc, 2, v{vL}
v_cndmask_b32 v{vFl2}, v{vT1}, v{vT0}, vcc
s_lshl_b32 s{sT}, s{sTB}, 7
s_add_u32 s{sT}, s{sT}, s{sTd}
v_mov_b32 v{vT0}, s{sT}
v_cmp_eq_u32 vcc, 0, v{vL}
v_cndmask_b32 v{vT0}, v{vT1}, v{vT0}, vcc
{park("Fl1", f"v{vT0}")}
v_mov_b32 v{vSum}, 0
v_mov_b32 v{vSum+1}, 0
v_mov_b32 v{vSum+2}, 0
v_mov_b32 v{vSum+3}, 0
v_mov_b32 v{vCSA[0]+2}, 0
v_mov_b32 v{vCSA[0]+3}, 0
v_mov_b32 v{vCSA[1]+2}, 0
v_mov_b32 v{vCSA[1]+3}, 0
v_mov_b32 v{vCSA[2]+2}, 0
v_mov_b32 v{vCSA[2]+3}, 0
""")
late_mark = len(prog)
saved = (vT0, vT1, vT2, vU, sT, sTb, sTc, sTd)
if O("defer", 1): vT0, vT1, vT2, vU, sT, sTb, sTc, sTd = 192, 193, 194, 196, 4, 5, 6, 7
E(f"""
s_lshl_b32 s{sT}, s{sNB}, 7
v_add_u32 v{vDo}, s{sT}, v{vDo}
v_add_u32 v{vDo+1}, {7*1024}, v{vDo}
s_lshl_b32 s{sT}, s{sW}, 17
v_add_u32 v{vT0}, s{sT}, v{vDo}
{park("Eo", f"v{vT0}")}v_add_u32 v{vT0}, {7*1024}, v{vT0}
{park("Eo1", f"v{vT0}")}
s_mul_i32 s{sT}, s{sTB2}, {2*HSTR}
s_lshl_b32 s{sTb}, s{sW}, 14
s_add_u32 s{sT}, s{sT}, s{sTb}
s_add_u32 s{sT}, s{sT}, {H0}
v_add_u32 v{vT0}, s{sT}, v{vL16}
{park("Ao", f"v{vT0}")}v_add_u32 v{vT0}, {HSTR}, v{vT0}
{park("Ao1", f"v{vT0}")}
s_lshl_b32 s{sT}, s{sTB2}, 16
s_lshl_b32 s{sTb}, s{sW}, 13
s_add_u32 s{sT}, s{sT}, s{sTb}
s_add_u32 s{sT}, s{sT}, {O0}
v_add_u32 v{vT0}, s{sT}, v{vL16}
{park("Oo", f"v{vT0}")}v_add_u32 v{vT0}, 32768, v{vT0}
{park("Oo1", f"v{vT0}")}
s_lshl_b32 s{sRHO}, s{sTB2}, 1
s_add_u32 s{sRHO}, s{sRHO}, s{sNB}
s_and_b32 s{sRHO}, s{sRHO}, {7 if O("rot", 1) else 0}
s_lshl_b32 s{sWB}, s{sW}, 2
""")
for q in range(8):
    E(f"""s_add_u32 s{sT}, s{sRHO}, {q}
s_bfe_u32 s{sTb}, s{sT}, 0x20001
s_add_u32 s{sTb}, s{sTb}, s{sWB}
{t0_of(sTc, sTb, sTd)}s_and_b32 s{sT}, s{sT}, 1
s_add_u32 s{sT}, s{sT}, s{sTc}
s_lshl_b32 s{sWE+q}, s{sT}, 15
s_add_u32 s{sT}, s{sRHO}, {q}
s_and_b32 s{sT}, s{sT}, 7
s_lshl_b32 s{sHE[q]}, s{sT}, 11""")
E(f"""s_add_u32 s{sT}, s{sTB2}, s{sNB}
s_mul_i32 s{sTb}, s{sT}, 43
s_lshr_b32 s{sTb}, s{sTb}, 7
s_mul_i32 s{sTb}, s{sTb}, 3
s_sub_u32 s{sT}, s{sT}, s{sTb}
s_and_b32 s{sT}, s{sT}, {3 if O("rot", 1) else 0}
s_mul_i32 s{sTc}, s{sW}, 10240
s_sub_u32 s{sTc}, 65536, s{sTc}
s_mul_i32 s{sTd}, s{sW}, 9
s_lshr_b32 s{sTb}, s{sW}, 1
s_lshl_b32 s{sTb}, s{sTb}, 2
s_add_u32 s{sTd}, s{sTd}, s{sTb}
s_add_u32 s{sTd}, s{sTd}, 2
s_lshl_b32 s{sTd}, s{sTd}, 15""")
for q in range(3):
    E(f"""s_lshl_b32 s{sTb}, s{sT}, 11
s_add_u32 s{sLH[q]}, s{sTb}, s{sTc}
s_mul_i32 s{sTb}, s{sT}, 98304
s_add_u32 s{sLW[q]}, s{sTb}, s{sTd}
s_add_u32 s{sT}, s{sT}, 1
s_cmp_eq_u32 s{sT}, 3
s_cselect_b32 s{sT}, 0, s{sT}""")
E(f"""
s_lshl_b32 s{sA}, s{sRHO}, 11
s_lshl_b32 s{sWB}, s{sRHO}, 14
s_lshl_b32 s{sWS}, s{sRHO}, 10
v_lshrrev_b32 v{vT0}, 3, v{vL}
v_and_b32 v{vT1}, 7, v{vL}
s_lshl_b32 s{sT}, s{sTB2}, 6
s_lshl_b32 s{sTb}, s{sW}, 3
s_add_u32 s{sT}, s{sT}, s{sTb}
s_lshl_b32 s{sT}, s{sT}, 10
s_lshl_b32 s{sTb}, s{sNB}, 7
s_add_u32 s{sT}, s{sT}, s{sTb}
v_lshlrev_b32 v{vT2}, 10, v{vT0}
v_lshl_add_u32 v{vT2}, v{vT1}, 4, v{vT2}
v_add_u32 v{vT2}, s{sT}, v{vT2}
{park("Out", f"v{vT2}")}v_add_u32 v{vT2}, 32768, v{vT2}
{park("Out1", f"v{vT2}")}v_lshlrev_b32 v{vT1}, 1, v{vT1}
v_xor_b32 v{vT1}, v{vT1}, v{vT0}
v_lshlrev_b32 v{vT0}, 8, v{vT0}
v_lshl_add_u32 v{vT0}, v{vT1}, 4, v{vT0}
s_lshl_b32 s{sT}, s{sW}, 11
v_add_u32 v{vT0}, s{sT}, v{vT0}
{park("Rr", f"v{vT0}")}v_and_b32 v{vT0}, 31, v{vL}
v_lshrrev_b32 v{vT1}, 5, v{vL}
v_and_b32 v{vT2}, 7, v{vL}
v_xor_b32 v{vT1}, v{vT1}, v{vT2}
v_lshlrev_b32 v{vT0}, 8, v{vT0}
v_lshl_add_u32 v{vT0}, v{vT1}, 4, v{vT0}
s_lshl_b32 s{sT}, s{sW}, 14
v_add_u32 v{vT0}, s{sT}, v{vT0}
{park("Rw", f"v{vT0}")}
v_add_u32 v{vT0}, s{sM0X}, v{vL16}
{park("Ka", f"v{vT0}")}v_lshrrev_b32 v{vT1}, 5, v{vL}
v_bfe_u32 v{vT2}, v{vL}, 2, 2
v_lshl_add_u32 v{vT2}, v{vT1}, 2, v{vT2}
v_lshlrev_b32 v{vT2}, 5, v{vT2}
v_and_b32 v{vT0}, 1, v{vL}
v_lshl_add_u32 v{vT2}, v{vT0}, 4, v{vT2}
v_bfe_u32 v{vT0}, v{vL}, 1, 1
v_lshl_add_u32 v{vT2}, v{vT0}, 3, v{vT2}
s_add_u32 s{sT}, s{sM0X}, 2048
v_add_u32 v{vT2}, s{sT}, v{vT2}
v_xor_b32 v{vT1}, 1, v{vT1}
v_lshlrev_b32 v{vT1}, 7, v{vT1}
s_lshl_b32 s{sT}, s{sW}, 3
s_add_u32 s{sT}, s{sT}, {STRIP}
v_add_u32 v{vU}, {STRIP+120}, v{vT1}
v_add_u32 v{vT1}, s{sT}, v{vT1}
v_and_b32 v{vT0}, 2, v{vL}
v_cmp_eq_u32 vcc, 0, v{vT0}
v_cndmask_b32 v{vT1}, v{vU}, v{vT1}, vcc
v_cndmask_b32 v{vU}, 0, 8, vcc
v_and_b32 v{vT0}, 16, v{vL}
v_cmp_eq_u32 vcc, 0, v{vT0}
v_cndmask_b32 v{vT0}, v{vT1}, v{vT2}, vcc
{park("Va", f"v{vT0}")}v_mov_b32 v{vT2}, 4096
v_cndmask_b32 v{vT0}, v{vU}, v{vT2}, vcc
{park("Vinc", f"v{vT0}")}
s_lshl_b32 s{sT}, s{sTB}, 15
s_lshl_b32 s{sTb}, s{sCB}, 11
s_add_u32 s{sT}, s{sT}, s{sTb}
s_add_u32 s{sT}, s{sT}, {O0}
v_add_u32 v{vT0}, s{sT}, v{vL16}
{park("Ost", f"v{vT0}")}
s_lshl_b32 s{sT}, s{sCB}, 18
v_add_u32 v{vT0}, s{sT}, v{vL16}
{park("KVo", f"v{vT0}")}
""")
SENT = O("sent", 1)
sent_st = [I(f"buffer_store_dwordx4 {vr(vXT,4)}, v{vOst}, {srd(SWS)}, 0 offen offset:{1024*e} sc1", tag="sent") for e in range(2)] if SENT else []
for k in range(3):
    E(f"""
s_add_i32 s{sT}, s{sTB}, {-4*k}
s_lshl_b32 s{sKV[k]}, s{sT}, 12
s_cmp_lt_i32 s{sT}, 0
s_cselect_b32 s{sKV[k]}, s{sHUGE}, s{sKV[k]}
""")
E(f"""
v_min_u32 v{vT1}, 5, v{vL}
v_lshrrev_b32 v{vT2}, 1, v{vT1}
v_lshlrev_b32 v{vT2}, 2, v{vT2}
v_sub_u32 v{vT2}, s{sTB}, v{vT2}
v_cmp_gt_i32 vcc, 0, v{vT2}
v_mov_b32 v{vT0}, s{sTB}
v_cndmask_b32 v{vT2}, v{vT2}, v{vT0}, vcc
v_lshlrev_b32 v{vT2}, 7, v{vT2}
v_and_b32 v{vT1}, 1, v{vT1}
v_lshl_add_u32 v{vT2}, v{vT1}, 3, v{vT2}
s_and_b32 s{sT}, s{sCB}, 14
s_lshl_b32 s{sT}, s{sT}, 3
s_and_b32 s{sTb}, s{sCB}, 1
s_lshl_b32 s{sTb}, s{sTb}, 2
s_add_u32 s{sT}, s{sT}, s{sTb}
s_add_u32 s{sT}, s{sT}, {FL0}
v_add_u32 v{vT0}, s{sT}, v{vT2}
{park("Pa", f"v{vT0}")}
s_lshl_b32 s{sT}, s{sTB2}, 8
s_add_u32 s{sT}, s{sT}, {FL0+8192}
v_lshlrev_b32 v{vT0}, 2, v{vL}
v_add_u32 v{vT0}, s{sT}, v{vT0}
{park("Pb", f"v{vT0}")}
""")
if O("tblm", 1):
    E(f"""v_and_b32 v{vT1}, 31, v{vL}
v_lshrrev_b32 v{vT2}, 5, v{vL}
v_lshlrev_b32 v{vT2}, 2, v{vT2}
v_sub_u32 v{vT1}, v{vT1}, v{vT2}""")
    for j in range(16):
        kl = 8 * (j >> 2) + (j & 3)
        E(f"""v_subrev_u32 v{vT0}, {kl}, v{vT1}
v_ashrrev_i32 v{vT0}, 31, v{vT0}
v_and_b32 v{vT0}, 0xff000000, v{vT0}
v_accvgpr_write_b32 a{aMSK+16+j}, v{vT0}
v_xor_b32 v{vT0}, 0xff000000, v{vT0}
v_accvgpr_write_b32 a{aMSK+j}, v{vT0}""")
vT0, vT1, vT2, vU, sT, sTb, sTc, sTd = saved
late = []
if O("defer", 1):
    late = prog[late_mark:]; del prog[late_mark:]
    nk = O("keep", 100)
    if nk: E(late[-nk:]); late = late[:-nk]
rest = prog[init_mark:]; del prog[init_mark:]
gall = p1_dma(1) + p1_dma(2)
N0 = O("n0", 8)
def safe_at(lst, n):
    x = lst[n]
    return not (x.op.startswith("s_cmp") or x.op == "s_and_b32" or (n + 1 < len(lst) and (lst[n + 1].op.startswith("s_cselect") or lst[n + 1].op.startswith("s_cbranch"))))
cut = int(len(rest) * O("f1", 30) / 100)
while not safe_at(rest, cut - 1): cut += 1
E(rest[:cut])
stamp((2,))
E(flat(g0))
rest = rest[cut:]
gs = gall[:N0]; k = 0
for n, x in enumerate(rest):
    E(x)
    if k < len(gs) and safe_at(rest, n) and n + 1 >= (k + 1) * len(rest) / (len(gs) + 1):
        E(gs[k]); k += 1
if O("w2t", -2) == 0: E(w2touch)
E(flat(gs[k:]))
if O("w2t", -2) == 1: E(w2touch)
stamp((1, 2, 3, 17))

def wf1(st, t): return aWF + (st * 3 + t) * 4
LK = O('lk', 3)
def wf2(k, t): return aWF + ((k % (LK + 1)) * 3 + t) * 4
def p1_reads(c, s):
    sl = c & 3; st = s & 1
    o = [I(f"ds_read_b128 {ar(aX+(4*c+s)*4,4)}, v{vXr+s} offset:{sl*16384}")]
    for t in range(3):
        for n in range(2):
            o.append(I(f"ds_read_b64_tr_b16 {ar(wf1(st,t)+2*n,2)}, v{vWr+2*s+(sl>>1)} offset:{(sl&1)*24576+t*8192+n*512}"))
    o.insert(3, I(f"ds_read_b128 {ar(aXP+4*st,4)}, v{vXp+s} offset:{sl*16384}"))
    return o
def statread(g):
    c, s = g >> 2, g & 3
    return [I(f"ds_read_b128 {vr(vXT+4*s,4)}, v{vXr+s} offset:{(c&3)*16384}")]
def stats(s):
    o = []
    for j in range(4):
        x = vXT + 4 * s + j; a = vU + 2 * (j & 1)
        o += L(f"""v_lshlrev_b32 v{a}, 16, v{x}
v_and_b32 v{a+1}, 0xffff0000, v{x}
v_add_f32 v{vSum}, v{vSum}, v{a}
v_add_f32 v{vSum+1}, v{vSum+1}, v{a+1}
v_fmac_f32 v{vSum+2}, v{a}, v{a}
v_fmac_f32 v{vSum+3}, v{a+1}, v{a+1}""")
    return o
def cs_convert(vcs, vw, base, step):
    o = []
    for j in range(4):
        a = 252 if j & 1 else vU + 4
        o += L(f"""v_cvt_pk_bf16_f32 v{a}, v{vcs+j}, v{vcs+j}
v_and_b32 v{a+1}, 0xffff0000, v{a}
v_sub_f32 v{a+1}, v{vcs+j}, v{a+1}
v_cvt_pk_bf16_f32 v{a+1}, v{a+1}, v{a+1}""")
        o.append(I(f"ds_write_b64 v{vw}, {vr(a,2)} offset:{base+step*j}"))
    return o
C1 = -2.0 * 0.7978845608028654 * 1.4426950408889634
QC = 0.25 * 1.4426950408889634
stats_pub = L(f"""v_add_f32 v{vSum}, v{vSum}, v{vSum+1}
v_add_f32 v{vSum+1}, v{vSum+2}, v{vSum+3}
v_mov_b32 v{vSum+2}, v{vSum}
v_mov_b32 v{vSum+3}, v{vSum+1}
v_lshrrev_b32 v{vT0}, 5, v{vL}
v_permlane32_swap_b32 v{vSum}, v{vSum+2}
v_permlane32_swap_b32 v{vSum+1}, v{vSum+3}
v_lshl_add_u32 v{vT0}, v{vT0}, 28, v{vSPo}
v_add_f32 v{vSum}, v{vSum}, v{vSum+2}
v_add_f32 v{vSum+1}, v{vSum+1}, v{vSum+3}""") + [I(f"buffer_store_dwordx2 {vr(vSum,2)}, v{vT0}, {srd(SWS)}, s{sSP} offen sc1", tag="sp")]
stats_ld = [[I(f"buffer_load_dwordx2 {vr(vSL+2*i,2)}, v{vSPo}, {srd(SWS)}, s{sSG} offen offset:{512*i} sc1")] for i in range(4)]
b = vSL
stats_fin = L(f"""
v_add_f32 v{b}, v{b}, v{b+2}
v_add_f32 v{b+1}, v{b+1}, v{b+3}
v_add_f32 v{b+4}, v{b+4}, v{b+6}
v_add_f32 v{b+5}, v{b+5}, v{b+7}
v_add_f32 v{b}, v{b}, v{b+4}
v_add_f32 v{b+1}, v{b+1}, v{b+5}
v_mul_f32 v{vSum}, {fx(-1.0/512)}, v{b}
v_mul_f32 v{b+1}, {fx(1.0/512)}, v{b+1}
v_fma_f32 v{b+1}, -v{vSum}, v{vSum}, v{b+1}
v_max_f32 v{b+1}, 0, v{b+1}
v_add_f32 v{vSum+1}, {fx(1e-5)}, v{b+1}
v_mov_b32 v{vSum+2}, v{vSum}
v_mov_b32 v{vSum+3}, v{vSum+1}
s_nop 0
v_permlane32_swap_b32 v{vSum}, v{vSum+2}
v_permlane32_swap_b32 v{vSum+1}, v{vSum+3}
""")
def stats_k(o):
    R = vSum + 2 * o + 1; K = vK[o]; a = vU
    t = f"""
v_rsq_f32 v{K}, v{R}
v_mov_b32 v{K+3}, v{R}
v_mul_f32 v{K+1}, {fx(C1)}, v{K}
v_mul_f32 v{a}, v{K}, v{K}
v_mul_f32 v{a}, {fx(0.044715)}, v{a}
v_mul_f32 v{K+2}, v{K+1}, v{a}
"""
    if o == 0: t += f"v_mul_f32 v{vQS}, {fx(QC)}, v{K}\n"
    return L(t)
def stats_b(o):
    nm = vSum + 2 * o; B = vBx[o]; a = vU
    return L(f"""
v_cvt_pk_bf16_f32 v{a}, v{nm}, v{nm}
v_and_b32 v{a}, 0xffff0000, v{a}
v_sub_f32 v{a+1}, v{nm}, v{a}
v_cvt_pk_bf16_f32 v{B}, v{a}, v{a+1}
v_mov_b32 v{B+1}, v{B}
v_mov_b32 v{B+2}, v{B}
v_mov_b32 v{B+3}, v{B}
""")
assert NI < 10
E(ann)
E(I("s_barrier", need=["c0"]))
stamp((2, 17))
E(p1_reads(0, 0) + statread(0) + statread(1))
E(stats(0))
S1 = Sched()
P1 = lambda c, s, t: 24 * c + 6 * s + t
A1 = lambda t, o: ACC1 + 32 * t + 16 * o
for c in range(8):
    for s in range(4):
        st = s & 1; first = (c == 0 and s == 0)
        for q in range(6):
            t, o = q >> 1, q & 1
            acc = vr(A1(t, o), 16)
            xb = ar(aX + (4 * c + s) * 4, 4) if o == 0 else ar(aXP + 4 * st, 4)
            ops = [I(f"{MF} {acc}, {ar(wf1(st,t),4)}, {xb}, {'0' if first else acc}")]
            small = s < 2 and o == 1 and not (O('x_nocs', 0) and c > 0)
            if small:
                cs = vr(vCS1, 4)
                ops.append(I(f"{MS} {cs}, {ar(wf1(st,t),4)}, {ar(aSEL+4*t,4)}, {'0' if (first and t == 0) else cs}"))
            pre = []
            if q == 0 and (O("fw", 0) == 0 or s == 3) and not (c == 7 and s == 3): pre.append(I("s_waitcnt lgkmcnt(0)"))
            if s == 3 and q == 0 and c < 7: pre.append(I("s_barrier", need=["c%d" % (c + 1)]))
            if s == 3 and q == 2 and c == 7: pre += [I("s_waitcnt lgkmcnt(0)"), I("s_barrier", need=["p0"])]
            if s == 0 and q == 0: pre += stampq((3,))
            S1.pos(ops, 8 if small else 6, pre)
NP1 = 192
CORR_K = 0
P2 = lambda k, t: NP1 + 3 * k + t + (6 if k >= CORR_K else 0)
PC = NP1 + 3 * CORR_K
for k in range(32):
    p, s = k >> 3, k & 3
    if k == CORR_K:
        for q in range(6):
            t, o = q >> 1, q & 1
            acc = vr(A1(t, o), 16)
            S1.pos(I(f"{MF} {acc}, {vr(vCSA[t],4)}, {vr(vBx[o],4)}, {acc}"), 6, stampq((1, 3, 17)) if q == 0 else [])
    for t in range(3):
        acc = vr(ACC2 + 16 * t, 16)
        ops = [I(f"{MF} {acc}, {ar(wf2(k,t),4)}, {ar(aX+k*4,4)}, {'0' if k == 0 else acc}", xr=(ar(wf2(k, 0), 24 if (LK == 3 and k % 2 == 0) else 12) if t == 0 else None))]
        if s == 0:
            cs = vr(vCS2, 4)
            ops.append(I(f"{MS} {cs}, {ar(wf2(k,t),4)}, {ar(aSEL+4*t,4)}, {'0' if (k == 0 and t == 0) else cs}"))
        pre = []
        if False:
            pre = []
        if (k & 7) == 8 - LK and t == 1:
            pre = [I("s_waitcnt lgkmcnt(0)"), I("s_barrier", need=["p%d" % (p + 1)] if p < 3 else [])]
        if LK == 3 and k == 30 and t == 1: pre = [I("s_waitcnt lgkmcnt(0)"), I("s_barrier")]
        if LK == 3 and k == 29 and t == 1: pre = []
        if (k & 3) == 0 and t == 0: pre += stampq((4,))
        S1.pos(ops, 8 if s == 0 else 6, pre)
NP2 = len(S1.main)
def p2_reads(k):
    p, g, s = k >> 3, (k >> 2) & 1, k & 3
    return [I(f"ds_read_b64_tr_b16 {ar(wf2(k,t)+2*n,2)}, v{vW2r+2*s+(p>>1)} offset:{(p&1)*24576+t*8192+g*4096+n*256}") for t in range(3) for n in range(2)]
def store4(data, voff, soff, imm, tag):
    if O("x_nost", 0) and tag in ("kv", "h"): return I("s_nop 0")
    o = (" offset:%d" % imm) if imm else ""
    return I(f"buffer_store_dwordx4 {vr(data,4)}, v{voff}, {srd(SWS)}, {soff} offen{o} sc1", tag=tag)
def flag(stage, tag, va):
    if O("x_nofw", -1) == stage: tag = "none"
    return L(f"v_mov_b32 v{vT0}, 1\ns_mov_b32 s{sT}, {stage*8192}") + [I(f"buffer_store_dword v{vT0}, v{va}, {srd(SWS)}, s{sT} offen sc1", need=[tag])]
def poll_issue(va): return [I(f"buffer_load_dword v{vPoll}, v{va}, {srd(SWS)}, 0 offen sc1")]
def poll_check(name, S, reg, addr):
    SITE = {"init": 24, "st": 25, "kv": 26, "h": 27, "h2": 28, "o": 29}[name]
    mark = f"    v_writelane_b32 v231, s{sSPIN}, {SITE}\n" if OPT["stamps"] else ""
    rare.append(f"""
L_spin_{name}:
    s_mov_b32 s{sSPIN}, {OPT['spin']}
L_spin2_{name}:
{mark}    buffer_load_dword v{reg}, v{addr}, {srd(S)}, 0 offen sc1
    s_waitcnt vmcnt(0) lgkmcnt(0)
    v_cmp_eq_u32 vcc, 0, v{reg}
    s_nop 4
    s_cbranch_vccz L_ok_{name}
    s_sleep 1
    s_sub_u32 s{sSPIN}, s{sSPIN}, 1
    s_cmp_lg_u32 s{sSPIN}, 0
    s_cbranch_scc1 L_spin2_{name}
    s_endpgm
""")
    o = L(f"v_cmp_eq_u32 vcc, 0, v{reg}\ns_cbranch_vccnz L_spin_{name}")
    o[-1].post = f"\nL_ok_{name}:"
    return o
SC2 = 1
SG_ = set(range(4)) | set(range(4 * SC2, 4 * SC2 + 4))
for c in range(8):
    for s in range(4):
        g = 4 * c + s
        rd = []
        if g + 1 < 32: rd += p1_reads((g + 1) >> 2, (g + 1) & 3)
        if s < 2 and g + 2 in SG_: rd += statread(g + 2)
        if s == 3 and g + 1 in SG_: rd = statread(g + 1) + rd + statread(g + 2)
        S1.spread(rd, P1(c, s, 0), P1(c, s, O("rdw", 4)), 0)
        if g + 1 in SG_:
            if s != 3: S1.spread(stats((g + 1) & 3), P1(c, s, 0), P1(c, s, 6), 2)
            else: S1.spread(stats(0), P1(c, s, 2), P1(c, s, 6), 2)
    if c == 0:
        gq = gall[N0:]
        if O("w2t", -2) == -1: gq = gq[:10 - N0] + [w2touch] + gq[10 - N0:]
        if O("w2t", -2) == -2: gq = gq + [w2touch]
        N2 = O("n2", 99); carry = gq[N2:]
        S1.spread(gq[:N2], P1(0, O("n2a", 0), 0), P1(0, 3, 0), 1, one)
    if c == 0 and carry:
        S1.spread(carry, P1(0, 3, 0), P1(1, O("n2e", 1), 0), 1, one)
        S1.spread(p1_dma(3), P1(1, O("n2e", 1), 0), P1(1, 3, 0), 1, one)
    elif c < 5: S1.spread(p1_dma(c + 3), P1(c, 3, 0), P1(c + 1, 3, 0), 1, one)
S1.spread(p2_dma(0), P1(6, O("p0a", 1), 0), P1(6, 3, 0), 1, one)
S1.spread(p2_dma(1), P1(6, 3, 0), P1(7, 3, 0), 1, one)
S1.put(O("ipos", 24), [L(f"v_and_b32 v{vT2}, 3, v{vL}\nv_lshlrev_b32 v{vT2}, 2, v{vT2}") + [I(f"buffer_load_dword v{vInit}, v{vT2}, {srd(SDBG)}, 0 offen" + (" sc1" if O("isc", 1) else ""))]], 1)
def glue2(q):
    out = []; cur = []; n = 0
    while n < len(q):
        x = q[n]; cur = [x]; n += 1
        if x.op.startswith("s_cmp"):
            while n < len(q) and q[n].op.startswith("s_cselect"): cur.append(q[n]); n += 1
        elif x.op.startswith("v_cmp"):
            last = n
            for m in range(n, len(q)):
                if q[m].op.startswith("v_cmp"): break
                if q[m].op.startswith("v_cndmask"): last = m + 1
            cur += q[n:last]; n = last
        out.append(cur)
    return out
if late: S1.spread(glue2(late), O("la0", 44), O("la1", 170), 2)
S1.spread(stats_pub, P1(SC2, 3, 0), P1(SC2, 3, 3), 2)
S1.put(P1(O("spf", SC2 + 1), O("spf2", 3), 1), [poll_check("init", SDBG, vInit, vT2) + flag(4, "sp", vFl1)], 2)
S1.put(P1(O("spp", 4 if SC2 == 1 else 5), O("spp2", 2 if SC2 == 1 else 0), 5), [poll_issue(vPs)], 1)
S1.put(P1(5, 3, 1), [poll_check("st", SWS, vPoll, vPs)], 2)
S1.spread(stats_ld, P1(5, 3, 2), P1(5, 3, 6), 1, one)
S1.spread(stats_fin + stats_k(0) + stats_k(1), P1(7, 0, 0), P1(7, 2, 0), 2)
if SENT:
    S1.put(P1(3, 0, 0), L("\n".join(f"v_mov_b32 v{vXT+j}, -1" for j in range(4))), 2)
    S1.put(O("snp", 172), [sent_st[0]], 1); S1.put(O("snp", 172) + O("snd", 8), [sent_st[1]], 1)
S1.spread(cs_convert(vCS1, vCSw1, CS1, 8), P1(7, 2, 0), P1(7, 2, O('cse', 5)), 2)
S1.spread(stats_b(0) + stats_b(1), P1(7, 3, 0), P1(7, 3, 4), 2)
S1.spread(p2_reads(0), P1(7, 3, 2), P1(7, 3, 4), 0)
S1.put(P1(7, 3, 5), p2_reads(1), 0)
if O("w2t", -2) >= 2: S1.put(O("w2t", -2), [w2touch], 1)
S1.spread(p2_dma(2), P1(7, 3, 2), P2(7 - LK, 0), 1, one)

def scale_pack(acc, sc, dst, pk=False):
    o = []
    if pk:
        sel = "op_sel:[0,1] op_sel_hi:[1,1]" if sc & 1 else "op_sel_hi:[1,0]"
        for j in range(0, 16, 2): o.append(I(f"v_pk_mul_f32 {vr(acc+j,2)}, {vr(acc+j,2)}, {vr(sc&~1,2)} {sel}"))
    else:
        for j in range(16): o.append(I(f"v_mul_f32 v{acc+j}, v{acc+j}, v{sc}"))
    for j in range(8): o.append(I(f"v_cvt_pk_bf16_f32 v{dst+j}, v{acc+2*j}, v{acc+2*j+1}"))
    return o
def gelu(g, u, K):
    if O("x_nogelu", 0): return [I("s_nop 0")] * 4
    A, B, R = K + 1, K + 2, K + 3
    o = []
    for b in range(4):
        js = range(4 * b, 4 * b + 4)
        T = lambda j: vG + (j & 3) + 4 * (b & 1)
        o += [I(f"v_mul_f32 v{T(j)}, v{g+j}, v{g+j}") for j in js]
        o += [I(f"v_fma_f32 v{T(j)}, v{T(j)}, v{B}, v{A}") for j in js]
        o += [I(f"v_mul_f32 v{T(j)}, v{g+j}, v{T(j)}") for j in js]
        for j in js: o += [I(f"v_exp_f32 v{T(j)}, v{T(j)}"), I(f"v_mul_f32 v{g+j}, v{g+j}, v{u+j}")]
        o += [I(f"v_fma_f32 v{T(j)}, v{T(j)}, v{R}, v{R}") for j in js]
        o += [I(f"v_rcp_f32 v{T(j)}, v{T(j)}") for j in js]
        o += [I(f"v_mul_f32 v{g+j}, v{g+j}, v{T(j)}") for j in js]
        o += [I(f"v_cvt_pk_bf16_f32 v{u+2*b+k}, v{g+4*b+2*k}, v{g+4*b+2*k+1}") for k in range(2)]
    return o
def gelu_pk(g, u, K):
    o = []
    for b in range(2):
        js = range(8 * b, 8 * b + 8, 2)
        T = lambda j: vG + (j & 7)
        o += [I(f"v_pk_mul_f32 {vr(T(j),2)}, {vr(g+j,2)}, {vr(g+j,2)}") for j in js]
        o += [I(f"v_pk_fma_f32 {vr(T(j),2)}, {vr(T(j),2)}, {vr(K+2,2)}, {vr(K,2)} op_sel:[0,0,1] op_sel_hi:[1,0,1]") for j in js]
        o += [I(f"v_pk_mul_f32 {vr(T(j),2)}, {vr(g+j,2)}, {vr(T(j),2)}") for j in js]
        for j in js: o += [I(f"v_exp_f32 v{T(j)}, v{T(j)}"), I(f"v_exp_f32 v{T(j)+1}, v{T(j)+1}"), I(f"v_pk_mul_f32 {vr(g+j,2)}, {vr(g+j,2)}, {vr(u+j,2)}")]
        o += [I(f"v_pk_fma_f32 {vr(T(j),2)}, {vr(T(j),2)}, {vr(K+2,2)}, {vr(K+2,2)} op_sel:[0,1,1] op_sel_hi:[1,1,1]") for j in js]
        for j in js: o += [I(f"v_rcp_f32 v{T(j)}, v{T(j)}"), I(f"v_rcp_f32 v{T(j)+1}, v{T(j)+1}")]
        o += [I(f"v_pk_mul_f32 {vr(g+j,2)}, {vr(g+j,2)}, {vr(T(j),2)}") for j in js]
        o += [I(f"v_cvt_pk_bf16_f32 v{u+(j>>1)}, v{g+j}, v{g+j+1}") for j in js]
    return o
S1.put(P1(7, 3, 2), [I(f"ds_read_b64 {vr(vCSA[t],2)}, v{vCSr} offset:{CS1+C1STR*t}") for t in range(3)], 0)
if LK == 3: S1.spread(p2_reads(2), PC, PC + 3, 0)
for k in range(32 - LK):
    o = 1 if (k & 7) == 8 - LK else 0
    S1.spread(p2_reads(k + LK), P2(k, o), P2(k, o + (2 if (k & 7) in (7 - LK, 8 - LK) else 3)), 0)

fq = []
sOwn = [f"s{sPK}", f"s{sTd}"]; sOwnH = [f"s{sPH}", f"s{sTc}"]
fq += L(f"s_xor_b32 s{sTd}, s{sPK}, 4096\ns_sub_u32 s{sTc}, {HSTR}, s{sPH}")
for o in range(2):
    a = A1(0, o)
    sp = scale_pack(a, vK[o], a)
    fq += sp[0:8] + sp[16:20] + [store4(a, vKVst, sOwn[o], 0, "kv")] + sp[8:16] + sp[20:24] + [store4(a + 4, vKVst, sOwn[o], 1024, "kv")]
g = []
for o in range(2):
    gg = gelu(A1(1, o), A1(2, o), vK[o])
    g.append(gg[:68] + [store4(A1(2, o), vHst, sOwnH[o], 0, "h")] + gg[68:] + [store4(A1(2, o) + 4, vHst, sOwnH[o], 1024, "h")])
KVF = O("kvflag", 80); KVP = O("kvpoll", 70)
tbl = [[I(f"buffer_load_dwordx4 {vr(vBF+4*i,4)}, v{vL16}, {srd(STB)}, {'0' if i < 4 else 's%d' % sX} offen offset:{1024*(i&3)}")] for i in range(8)]
tbl[0] = L(f"s_movk_i32 s{sX}, 4096") + tbl[0]
strip = [I(f"ds_write_b128 v{vL16}, {ar(aSTV,4)} offset:{STRIP+1024*i}") for i in range(2)]
unp = [I(f"v_accvgpr_read_b32 v{vBF+j}, a{aMSK+j}") for j in range(32)] if O("tblm", 1) else []
fq += g[0][:KVF] + [flag(0, "kv", vFl2)] + g[0][KVF:] + strip + unp
fq += g[1][:KVP] + poll_issue(vPa) + g[1][KVP:]
FQ_END = O("fqend", 27)
S1.spread(glue(fq), PC + 3, P2(FQ_END, 0), 2)
if not O("tblm", 1): S1.spread(tbl, P2(O("tbl", 9), 0), P2(O("tbl", 9) + 5, 0), 1, one)

def w2_dma(j):
    sl = j % 12
    m0 = (sl // 3) * 24576 + (sl % 3) * 2048
    nd = ["r%d" % (j - 12)]
    post = []
    if j >= 22:
        post = L(f"s_add_u32 s{sWB}, s{sWB}, 16384\ns_and_b32 s{sWB}, s{sWB}, 0x1ffff")
        return [L(f"s_add_u32 m0, s{sM0K}, {(j-22)*2048}\ns_nop 0") + [dma(vEo, SO, f"s{sWB}", 0, "w%d" % j)],
                [dma(vEo + 1, SO, f"s{sWB}", 1024, "w%d" % j)] + post]
    if j < 22:
        base = sWE + (j >> 1) if j < 16 else sLW[(j - 16) >> 1]
        so, sr = ("s_nop 0", base) if j & 1 == 0 else (f"s_add_u32 s{sD}, s{base}, 16384", sD)
        vo, S = vDo, SD
    else:
        so, sr, vo, S = "s_nop 0", sWB, vEo, SO
        post = L(f"s_add_u32 s{sWB}, s{sWB}, 16384\ns_and_b32 s{sWB}, s{sWB}, 0x1ffff")
    return [L(f"s_add_u32 m0, s{sM0D}, {m0}\n{so}") + [dma(vo, S, f"s{sr}", 0, "w%d" % j, need=nd)],
            [dma(vo + 1, S, f"s{sr}", 1024, "w%d" % j, need=nd)] + post]
KCHK = O("kvchk", 26)
for p in range(3):
    if not O("x_now2", 0): S1.spread((p2_dma(3) if p == 0 else []) + w2_dma(3 * p) + w2_dma(3 * p + 1) + w2_dma(3 * p + 2), P2(8 * p + 8 - LK, 1), P2(8 * p + 16 - LK, 1) if p < 2 else P2(KCHK, 0), 1, one)
kvdma = []
for k in range(3):
    kvdma.append(L(f"s_add_u32 m0, s{sM0X}, {4096*(8-4*k)}\ns_nop 0") + [dma(vKVo, SWS, f"s{sKV[k]}", 0, "kvl", "sc1")])
    kvdma += [[dma(vKVo, SWS, f"s{sKV[k]}", 1024 * i, "kvl", "sc1")] for i in range(1, 4)]
if not O("x_nokv", 0):
    if not O("x_nochk", 0): S1.put(P2(KCHK, 0), [poll_check("kv", SWS, vPoll, vPa)], 1)
    S1.spread(kvdma, P2(KCHK, 1), NP2, 1, one)
S1.spread(cs_convert(vCS2, vCSw2, CS2, 16), P2(29, 0), P2(30, 0), 2)
S1.put(P2(30, 1), [I(f"ds_read_b128 {vr(vCSA[q],4)}, v{vL16} offset:{CS2+CSTR*q}") for q in range(3)], 0)
def ctouch2():
    return L(f"""s_getpc_b64 s[{STC}:{STC+1}]
s_mov_b32 s{STC+2}, L_code_end-.
s_mov_b32 s{STC+3}, 0x20000
s_lshr_b32 s{sT}, s2, 3
s_lshl2_add_u32 s{sT}, s{sT}, s{sW}
s_lshl_b32 s{sT}, s{sT}, 7
v_lshlrev_b32 v{vT1}, 24, v{vL}
buffer_load_dword v255, v{vT1}, {srd(STC)}, s{sT} offen""")
for key in ("ct2", "ct3"):
    if O(key, 0): S1.put(O(key, 0), [ctouch2()], 1)
if O("x_idle", 0): S1.pre[O("x_idlep", 250)] += L("s_nop 15\n" * (O("x_idle", 0) // 64))
if OPT["stamps"] == 10:
    for g in range(O("l0", 2), min(O("l0", 2) + 30, 32)):
        k = nstamp[0]; nstamp[0] += 1
        S1.put(6 * g + 4, [I(f"{TIMER} s[88:89]")], 2)
        S1.put(6 * g + 6, [I(f"v_writelane_b32 v231, s88, {k}")], 2)
if OPT["stamps"] == 11:
    for kk in range(1, 31):
        k = nstamp[0]; nstamp[0] += 1
        S1.put(P2(kk, 0), [I(f"{TIMER} s[88:89]")], 0)
        S1.put(P2(kk + 1, 0) - 1, [I(f"v_writelane_b32 v231, s88, {k}")], 2)
if OPT["stamps"] == 9:
    for q in range(28):
        p = OPT["za"] + q * OPT["zs"]
        if p < len(S1.main): S1.pre[p] = stampq((9,)) + S1.pre[p]
E(S1.emit())
stamp((1, 4, 12))
post = w2_dma(9) + w2_dma(10) + w2_dma(11)
xres = L(f"buffer_load_dwordx4 {vr(vXres,4)}, v{vOut}, {srd(SX)}, 0 offen\nbuffer_load_dwordx4 {vr(vXres+4,4)}, v{vOut+1}, {srd(SX)}, 0 offen")
for n, t in enumerate((0, 1, 2)):
    acc = vr(ACC2 + 16 * t, 16)
    E(f"{MF} {acc}, {vr(vCSA[t],4)}, {vr(vBx[0],4)}, {acc}")
    E(post[2 * n] + post[2 * n + 1])
E(scale_pack(ACC2, vQS, vQ, pk=False))
gl = gelu_pk(ACC2 + 16, ACC2 + 32, vK[0])
HF = O("hf", 60)
gl = gl[:44] + [store4(ACC2 + 32, vHst, f"s{sH2}", 0, "h2")] + xres + gl[44:] + [store4(ACC2 + 36, vHst, f"s{sH2}", 1024, "h2")]
gl = gl[:HF] + flag(1, "h", vFl2) + gl[HF:]
G2 = O("g2l", 0)
E(gl[:len(gl) - G2]); gl = gl[len(gl) - G2:]
stamp((4, 6, 12))
E(I("s_waitcnt lgkmcnt(0)"))
E(I("s_barrier", need=["kvl"]))
stamp((1, 4, 6, 12))

units = [(i, e) for i in range(9) for e in range(2)]
def kread(u):
    i, e = units[u]
    return [I(f"ds_read_b128 {ar(aK+4*(u&1),4)}, v{vKa} offset:{i*4096+e*1024}")]
def vread(u):
    i, e = units[u]
    o = [I(f"ds_read_b64_tr_b16 {ar(aV+8*(u&1)+4*s+2*n,2)}, v{vVa} offset:{e*1024+s*512+n*256}") for s in range(2) for n in range(2)]
    if e == 1: o.append(I(f"v_add_u32 v{vVa}, v{vVa}, v{vVinc}"))
    return o
def qk(u):
    i, e = units[u]
    c = vr(vBF, 16) if i == 0 else (vr(vBD, 16) if i == 8 else "0")
    return I(f"{MF} {vr(vS[u&1],16)}, {ar(aK+4*(u&1),4)}, {vr(vQ+4*e,4)}, {c}", xr=ar(aV + 8 * (u & 1), 8) if u >= 2 else None)
def pv(u, s):
    i, e = units[u]
    o = vr(vO[e], 16)
    return I(f"{MF} {o}, {ar(aV+8*(u&1)+4*s,4)}, {vr(vP[u&1]+4*s,4)}, {'0' if (i == 0 and s == 0) else o}")
def hload(j, tt):
    post = []
    if j < 16:
        soff = sHE[j >> 1]
    else: soff = sLH[(j - 16) >> 1]
    o = " offset:1024" if j & 1 else ""
    return [I(f"buffer_load_dwordx4 {ar(aH+8*j+4*tt,4)}, v{vAo+tt}, {srd(SWS)}, s{soff} offen{o} sc1")] + post
NW2V = O("w2v", 10)
W2V = [152, 156, 192, 196, 200, 204, 4, 8, 12, 16, 20, 24, 36, 40, 44, 48, 240, 244, 248, 252]
def w2_reads(j):
    sl = j % 12
    base = (sl // 3) * 24576 + (sl % 3) * 2048
    o = []
    for ct in range(2):
        for n in range(2):
            off = base + n * 1024 + ct * 256
            reg = vW3r if off < 49152 else vW3r + 1
            off = off if off < 49152 else off - 49152
            if j >= 22: reg, off = vPa, (j - 22) * 2048 + n * 1024 + ct * 256
            dst = vr(W2V[2*j+ct]+2*n, 2) if j < NW2V else (ar(aW2+8*(j&1)+4*ct+2*n, 2) if j < 22 else ar(8*(j-22)+4*ct+2*n, 2))
            o.append(I(f"ds_read_b64_tr_b16 {dst}, v{reg} offset:{off}", need=["w%d" % j], tag="r%d" % j))
    return o
extra = {u: [] for u in range(18)}
xds = {u: [] for u in range(18)}
WS0, WS1 = O("ws0", 0), O("ws1", 6)
for j in range(NW2V):
    u = WS0 + j * (WS1 - WS0) // max(NW2V, 1)
    xds[u] += w2_reads(j)
    gd = w2_dma(j + 12)
    if j > 0: gd[0] = [x for x in gd[0][1:] if x.op != "s_nop"]
    if j + 1 < NW2V: gd[1] = gd[1] + [w2_dma(j + 13)[0][0]]
    extra[u + 1] += gd
EP, EC = O("ep", 4), O("ec", 7)
LF, LP, LC = O("lf", 2), O("lp", 11), O("lc", 14)
extra[EP].append(poll_issue(vPb))
extra[LF].append(flag(2, "h2", vFl1))
extra[EC].append(poll_check("h", SWS, vPoll, vPb) + L(f"v_and_b32 v{vPb}, -5, v{vPb}\nv_add_u32 v{vPb}, 8192, v{vPb}"))
if O("wot", -1) >= 0:
    extra[O("wot", -1)].append(L(f"""s_lshr_b32 s{sX}, s2, 3
s_lshl2_add_u32 s{sX}, s{sX}, s{sW}
s_lshl_b32 s{sX}, s{sX}, 12
v_lshrrev_b32 v{vT1}, 5, v{vL}
v_lshlrev_b32 v{vT2}, 7, v{vL}
v_lshl_add_u32 v{vT1}, v{vT1}, 28, v{vT2}
buffer_load_dword v{vT2}, v{vT1}, {srd(SO)}, s{sX} offen"""))
he = [hload(j, tt) for j in range(16) for tt in range(2)]
hlate = [hload(j, tt) for j in range(16, 22) for tt in range(2)]
EE = O("ee", 16); NE = O("ne", 32)
he_late = he[NE:]; he = he[:NE]
for q in range(EE - EC):
    extra[EC + q] += he[len(he) * q // (EE - EC):len(he) * (q + 1) // (EE - EC)]
extra[LP].append(poll_issue(vPb))
extra[LC].append(poll_check("h2", SWS, vPoll, vPb) + L(f"v_add_u32 v{vPb}, 8192, v{vPb}"))
LS = max(LC, EE)
NL = O("nl", 8)
for q in range(18 - LS):
    extra[LS + q] += hlate[NL * q // (18 - LS):NL * (q + 1) // (18 - LS)]
hl_late = he_late + hlate[NL:]
assert not he_late or NL == 0

E(kread(0) + kread(1) + vread(0))
E(gl[:O("g2m", 12)])
E(qk(0))
E(gl[O("g2m", 12):])
for u in range(18):
    S, P = vS[u & 1], vP[u & 1]
    ex = [I(f"v_exp_f32 v{S+j}, v{S+j}") for j in range(16)]
    cv = [I(f"v_cvt_pk_bf16_f32 v{P+j}, v{S+2*j}, v{S+2*j+1}") for j in range(8)]
    seq = []
    xs = list(extra[u])
    X = lambda q: flat(xs[len(xs) * q // 3:len(xs) * (q + 1) // 3])
    vr_ = vread(u + 1) if u + 1 < 18 else []
    if u + 1 < 18: seq.append(qk(u + 1))
    seq += xds[u]
    if u + 2 < 18: seq += kread(u + 2)
    seq += X(0) + ex[0:6]
    if u > 0: seq.append(pv(u - 1, 0))
    seq += vr_[0:2] + X(1) + ex[6:11] + cv[0:3]
    if u > 0: seq.append(pv(u - 1, 1))
    seq += vr_[2:4] + X(2) + vr_[4:] + ex[11:16] + cv[3:8]
    if u % 2 == 0: seq = stampq((6,)) + seq
    if OPT["stamps"] == 12:
        if u > 0: seq.insert(2, I(f"v_writelane_b32 v231, s88, {nstamp[0]}")); nstamp[0] += 1
        seq.insert(3 if u > 0 else 1, I(f"{TIMER} s[88:89]"))
    E(seq)
def norm(e):
    o = vO[e]
    t = [f"v_rcp_f32 v{vT0+1}, v{o+8}", "s_nop 0"]
    if e == 0 or O("n1", 1): t += [f"v_mul_f32 v{o+j}, v{o+j}, v{vT0+1}" for j in range(8)]
    else: t += [f"v_pk_mul_f32 {vr(o+j,2)}, {vr(o+j,2)}, {vr(vT0+1,2)} op_sel_hi:[1,0]" for j in range(0, 8, 2)]
    t += [f"v_cvt_pk_bf16_f32 v{o+12+j}, v{o+2*j}, v{o+2*j+1}" for j in range(4)]
    if SENT: t += [f"v_min_u32 v{o+12}, -2, v{o+12}"]
    return t
E([pv(17, 0), pv(17, 1)])
if OPT["stamps"] == 12: E(f"v_writelane_b32 v231, s88, {nstamp[0]}"); nstamp[0] += 1
E("\n".join(norm(0)))
BLO, BHI = fx(2.0 ** -40), fx(2.0 ** 40)
E(f"""
s_mov_b32 s{sT}, {BLO}
s_mov_b32 s{sTb}, {BHI}
v_min_f32 v{vT0}, v{vO[0]+8}, v{vO[1]+8}
v_max_f32 v{vT1}, v{vO[0]+8}, v{vO[1]+8}
v_cmp_nle_f32 vcc, s{sT}, v{vT0}
v_cmp_nge_f32 s[4:5], s{sTb}, v{vT1}
v_cmp_u_f32 s[6:7], v{vO[0]+8}, v{vO[1]+8}
s_or_b64 vcc, vcc, s[4:5]
s_or_b64 vcc, vcc, s[6:7]
s_cbranch_vccnz L_truemax
""")
prog[-1].post = "\nL_att_done:"
E(store4(vO[0] + 12, vOst, "0", 0, "o"))
N1 = O("n1", 1)
if not N1:
    E("\n".join(norm(1)))
    E(store4(vO[1] + 12, vOst, "0", 1024, "o"))
    stamp((6, 12))
    E("s_barrier")
stamp((1, 5, 6, 12))

sa, sb_, sc_, sd_, se_, sf_ = sT, sTb, sTc, sTd, sX, sQ
tm = [f"""
L_truemax:
    s_waitcnt vmcnt(0) lgkmcnt(0)
    s_nop 15
    s_sub_i32 s{sa}, 8, s{sTB}
    s_max_i32 s{sa}, s{sa}, 0
    s_mov_b32 s{sb_}, 0
L_tm_head:
    s_cmp_eq_u32 s{sb_}, 0
    s_cselect_b64 vcc, -1, 0
    s_nop 4
"""]
tm += [f"    v_cndmask_b32 v{vP[1]+j}, v{vQ+4+j}, v{vQ+j}, vcc\n" for j in range(4)]
tm.append(f"""
    v_mov_b32 v{vT0}, 0xff000000
    s_mov_b32 s{sd_}, 0
L_tm_pass:
    s_mov_b32 s{sc_}, s{sa}
""")
tm += [f"    v_mov_b32 v{vS[1]+j}, 0\n" for j in range(16)]
tm.append(f"""
L_tm_blk:
    s_lshl_b32 s{se_}, s{sc_}, 12
    s_lshl_b32 s{sf_}, s{sb_}, 10
    s_add_u32 s{se_}, s{se_}, s{sf_}
    v_add_u32 v{vT1}, s{se_}, v{vKa}
    ds_read_b128 {ar(aK,4)}, v{vT1}
    s_sub_u32 s{se_}, 9, s{sc_}
    v_mul_lo_u32 v{vT2}, s{se_}, v{vVinc}
    v_sub_u32 v{vT2}, v{vVa}, v{vT2}
    v_add_u32 v{vT2}, s{sf_}, v{vT2}
    ds_read_b64_tr_b16 {ar(aV,2)}, v{vT2}
    ds_read_b64_tr_b16 {ar(aV+2,2)}, v{vT2} offset:256
    ds_read_b64_tr_b16 {ar(aV+4,2)}, v{vT2} offset:512
    ds_read_b64_tr_b16 {ar(aV+6,2)}, v{vT2} offset:768
    s_waitcnt lgkmcnt(0)
    s_cmp_eq_u32 s{sc_}, 0
    s_cbranch_scc1 L_tm_far
    s_cmp_eq_u32 s{sc_}, 8
    s_cbranch_scc1 L_tm_diag
    {MF} {vr(vS[0],16)}, {ar(aK,4)}, {vr(vP[1],4)}, 0
    s_branch L_tm_s
L_tm_far:
    {MF} {vr(vS[0],16)}, {ar(aK,4)}, {vr(vP[1],4)}, {vr(vBF,16)}
    s_branch L_tm_s
L_tm_diag:
    {MF} {vr(vS[0],16)}, {ar(aK,4)}, {vr(vP[1],4)}, {vr(vBD,16)}
L_tm_s:
    s_nop 15
    s_cmp_eq_u32 s{sd_}, 0
    s_cbranch_scc0 L_tm_exp
""")
tm += [f"    v_max_f32 v{vT0}, v{vT0}, v{vS[0]+j}\n" for j in range(16)]
tm.append("    s_branch L_tm_next\nL_tm_exp:\n")
tm += [f"    v_sub_f32 v{vS[0]+j}, v{vS[0]+j}, v{vT0}\n" for j in range(16)]
tm += [f"    v_exp_f32 v{vS[0]+j}, v{vS[0]+j}\n" for j in range(16)]
tm.append("    s_nop 1\n")
tm += [f"    v_cvt_pk_bf16_f32 v{vP[0]+j}, v{vS[0]+2*j}, v{vS[0]+2*j+1}\n" for j in range(8)]
tm.append(f"""
    s_nop 1
    {MF} {vr(vS[1],16)}, {ar(aV,4)}, {vr(vP[0],4)}, {vr(vS[1],16)}
    {MF} {vr(vS[1],16)}, {ar(aV+4,4)}, {vr(vP[0]+4,4)}, {vr(vS[1],16)}
    s_nop 15
L_tm_next:
    s_add_u32 s{sc_}, s{sc_}, 1
    s_cmp_lt_u32 s{sc_}, 9
    s_cbranch_scc1 L_tm_blk
    s_cmp_eq_u32 s{sd_}, 0
    s_cbranch_scc0 L_tm_fin
    v_mov_b32 v{vT1}, v{vT0}
    s_nop 1
    v_permlane32_swap_b32 v{vT0}, v{vT1}
    s_nop 1
    v_max_f32 v{vT0}, v{vT0}, v{vT1}
    s_mov_b32 s{sd_}, 1
    s_branch L_tm_pass
L_tm_fin:
    s_cmp_eq_u32 s{sb_}, 0
    s_cbranch_scc0 L_tm_h1
""")
tm += [f"    v_mov_b32 v{vO[0]+j}, v{vS[1]+j}\n" for j in range(16)]
tm.append(f"    s_mov_b32 s{sb_}, 1\n    s_branch L_tm_head\nL_tm_h1:\n")
tm += [f"    v_mov_b32 v{vO[1]+j}, v{vS[1]+j}\n" for j in range(16)]
tm += ["    " + x + "\n" for x in norm(0)]
tm.append(f"    s_nop 1\n    s_branch L_att_done\n")
rare.append("".join(tm))

def oload(j2, tt):
    post = L(f"s_add_u32 s{sWS}, s{sWS}, 1024\ns_and_b32 s{sWS}, s{sWS}, 0x1fff")
    return [I(f"buffer_load_dwordx4 {vr(vOF+8*j2+4*tt,4)}, v{vOo+tt}, {srd(SWS)}, s{sWS} offen sc1")] + post
OF, OP, OC = O("oflag", 6), O("opoll", 12), O("ochk", 17)
if NW2V == 0: E(w2_reads(0))
S3 = Sched()
order = [(j, ct, tt) for j in range(22) for ct in range(2) for tt in range(2)]
order += [(j, ct, 0) for j in range(22, 30) for ct in range(2)]
CTM = O("ctm", 1)
order += [(j, ct, 1) for ct in range(2) for j in range(22, 30)] if CTM else [(j, ct, 1) for j in range(22, 30) for ct in range(2)]
def w2f(j, ct): return vr(W2V[2 * j + ct], 4) if j < NW2V else (ar(aW2 + 8 * (j & 1) + 4 * ct, 4) if j < 22 else ar(8 * (j - 22) + 4 * ct, 4))
for n, (j, ct, tt) in enumerate(order):
    acc = ar(aACC + 32 * ct + 16 * tt, 16)
    bb = ar(aH + 8 * j + 4 * tt, 4) if j < 22 else vr(vOF + 8 * (j - 22) + 4 * tt, 4)
    xr = None
    if ct == 0 and tt == 0 and j >= NW2V: xr = ar(aW2 + 8 * (j & 1), 8) if j < 22 else ar(8 * (j - 22), 8)
    aa = w2f(j, ct)
    S3.pos(I(f"{MF} {acc}, {aa}, {bb}, {'0' if j == 0 else acc}", xr=xr), 6, stampq((5,)) if (n % 8 == 0) else [])
for j in range(30):
    if NW2V <= j + 1 < 23: S3.spread(w2_reads(j + 1), 4 * j, 4 * j + 2, 0)
    if 23 <= j: S3.put(88 + 2 * (j - 24) if j > 23 else 86, w2_reads(j), 0)
    if j >= NW2V and j + 12 < 22:
        S3.put(4 * j + 2, [flat(w2_dma(j + 12))], 1)
S3.pre[0] += L(f"s_lshl_b32 s{sM0K}, s{sW}, 14\ns_mul_i32 s{sT}, s{sW}, 10240\ns_sub_u32 s{sT}, s{sT}, {WB}\nv_add_u32 v{vPa}, s{sT}, v{vW3r}")
if N1:
    S3.spread(L("\n".join(norm(1))) + [store4(vO[1] + 12, vOst, "0", 1024, "o")], 0, 3, 2)
    S3.pre[4] += L("s_barrier")
if NW2V == 10: S3.spread(hl_late + flat([w2_dma(j) for j in range(22, 30)]), 4 if N1 else 0, O('hle', 44), 1, one)
else:
    S3.spread(hl_late, 4, 12, 1, one)
    S3.spread([flat(w2_dma(j)) for j in range(22, 30)], O('wos', 4), O('hle', 44), 1, one)
ol = [oload(j2, tt) for tt in range(2) for j2 in range(8)]
if not SENT:
    S3.put(4 * OF, [flag(3, "o", vFl1)], 1)
    S3.put(4 * OP, [poll_issue(vPb)], 1)
    S3.put(4 * OC, [poll_check("o", SWS, vPoll, vPb)], 1)
    S3.spread(ol, 4 * OC + 1, 4 * O("oend", 24), 1, one)
else:
    OS, OE, OK_ = O("os", 11), O("oe", 20), O("ok", 21)
    S3.spread(ol, 4 * OS, 4 * OE, 1, one)
    for tt in range(2):
        rg = [vOF + 8 * j + 4 * tt for j in range(8)]
        chk = [f"v_max3_u32 v{vT0}, v{rg[0]}, v{rg[1]}, v{rg[2]}", f"v_max3_u32 v{vT0}, v{vT0}, v{rg[3]}, v{rg[4]}", f"v_max3_u32 v{vT0}, v{vT0}, v{rg[5]}, v{rg[6]}", f"v_max_u32 v{vT0}, v{vT0}, v{rg[7]}", f"v_cmp_eq_u32 vcc, -1, v{vT0}"]
        br = L(f"s_cbranch_vccnz L_spin_o{tt}"); br[-1].post = f"\nL_ok_o{tt}:"
        S3.put(87 if tt == 0 else 103, [L("\n".join(chk)) + br], 2)
        rare.append(f"""
L_spin_o{tt}:
    s_mov_b32 s{sSPIN}, {OPT['spin']}
    s_nop 7
L_spin2_o{tt}:
""" + (f"    v_writelane_b32 v231, s{sSPIN}, {29+tt}\n" if OPT["stamps"] else "") + "".join("    " + x.text + "\n" for g in ol[8*tt:8*tt+8] for x in g) + "    s_waitcnt vmcnt(0) lgkmcnt(0)\n" + "".join("    " + x + "\n" for x in chk) + f"""    s_nop 4
    s_cbranch_vccz L_ok_o{tt}
    s_sleep 1
    s_sub_u32 s{sSPIN}, s{sSPIN}, 1
    s_cmp_lg_u32 s{sSPIN}, 0
    s_cbranch_scc1 L_spin2_o{tt}
    s_endpgm
""")
    assert 4 * OE <= 87
S3.spread(L("\n".join(f"v_xor_b32 v{vU+i}, {32*i}, v{vRw}" for i in range(4)) + f"\nv_xor_b32 v{vU+4}, 16, v{vRr}"), 4, 8, 2)
def pwrite(ct, tt): return [I(f"ds_write_b128 v{vU+i}, {ar(aACC+32*ct+16*tt+4*i,4)} offset:{tt*8192+ct*128}") for i in range(4)]
R0 = 128
def fin_reads(tt): return [I(f"ds_read_b128 {vr(R0+8*p+4*n,4)}, v{vRr if n == 0 else vU+4} offset:{p*16384+tt*8192}") for p in range(4) for n in range(2)]
def fin_math(tt, pk):
    x = R0 + 64 + 8 * tt; o = []
    for p in range(4):
        if pk: o += [I(f"v_pk_add_f32 {vr(x+j,2)}, {vr(x+j,2)}, {vr(R0+8*p+j,2)}") for j in range(0, 8, 2)]
        else: o += [I(f"v_add_f32 v{x+j}, v{x+j}, v{R0+8*p+j}") for j in range(8)]
    o += [I(f"v_cvt_pk_bf16_f32 v{R0+32+4*tt+j}, v{x+2*j}, v{x+2*j+1}") for j in range(4)]
    o += [I(f"buffer_store_dwordx4 {vr(R0+32+4*tt,4)}, v{vOut+tt}, {srd(SOUT)}, 0 offen sc1")]
    return o
S3.spread(L("\n".join(f"v_lshlrev_b32 v{R0+64+2*j}, 16, v{vXres+j}\nv_and_b32 v{R0+65+2*j}, 0xffff0000, v{vXres+j}" for j in range(8))), 4 * 12, 4 * 16, 2)
FB = O("fb", 110)
S3.spread(pwrite(0, 0) + pwrite(1, 0), 105, 108, 0)
S3.pre[FB] += L("s_waitcnt lgkmcnt(0)\ns_barrier")
S3.spread(fin_reads(0), FB, FB + 2, 0)
S3.spread(fin_math(0, False), FB + 3, 120, 2)
if CTM: S3.spread(pwrite(0, 1), 116, 120, 0)
if OPT["stamps"] == 13:
    for jj in range(29):
        k = nstamp[0]; nstamp[0] += 1
        S3.put(4 * jj + 2, [I(f"{TIMER} s[88:89]")], 0)
        S3.put(4 * jj + 4, [I(f"v_writelane_b32 v231, s88, {k}")], 2)
E(S3.emit())
stamp((1, 5))
E(pwrite(1, 1) if CTM else pwrite(0, 1) + pwrite(1, 1))
E("s_waitcnt lgkmcnt(0)\ns_barrier")
E(fin_reads(1) + fin_math(1, True))
if OPT["stamps"]:
    stamp()
    E(f"s_waitcnt vmcnt(0)")
    stamp((1, 2, 3, 4, 5, 6, 7, 9, 10, 11, 12, 13, 15, 17))
    E(f"s_lshl_b32 s{sT}, s2, 2\ns_add_u32 s{sT}, s{sT}, s{sW}\ns_lshl_b32 s{sT}, s{sT}, 7\ns_add_u32 s{sT}, s{sT}, {ST0}\nv_lshlrev_b32 v{vT0}, 2, v{vL}\nv_lshrrev_b32 v{vT1}, 5, v{vL}\nv_lshl_add_u32 v{vT0}, v{vT1}, 28, v{vT0}")
    E(f"buffer_store_dword v231, v{vT0}, {srd(SWS)}, s{sT} offen")
if O("xf", 0):
    E("s_waitcnt vmcnt(0)"); stamp()
    if OPT["xf"] == 99: E("s_mov_b32 s90, s88")
    E(("s_sub_u32 s90, s90, s92\ns_lshr_b32 s90, s90, 3" if O("xfc", 0) else "s_sub_u32 s90, s90, s88\ns_lshl_b32 s90, s90, 2") + "\ns_add_u32 s90, s90, 4000\nL_es:\ns_memrealtime s[4:5]\ns_waitcnt lgkmcnt(0)\ns_sub_u32 s4, s4, s88\ns_cmp_lt_u32 s4, s90\ns_cbranch_scc1 L_es")
E("L_end:\ns_endpgm")

lines = finalize(prog, verbose=True)
hdr = f"""; out = x + attn(LN(x)) @ wo + (gelu(LN(x) @ w_gate) * (LN(x) @ w_up)) @ w_down      (one launch, 256 workgroups, one per CU)
; kernarg: x, wqkv, wo, (unused), w_gate, w_up, w_down, out, debug, ws
; pass-1 epilogues in its shadow, sliding-window attention (2 heads x 32 queries per wave; exp2 of the raw scores with a range
; @launch grid=(256,1,1) block=(256,1,1) lds={LDSSZ}
.amdgcn_target "amdgcn-amd-amdhsa--gfx950"
.text
.globl {KNAME}
.p2align 8
.type {KNAME},@function
{KNAME}:
"""
tail = f"""
L_code_end:
.fill (({KNAME}+33024-.)/4), 4, 0xbf800000
    s_endpgm
.section .rodata,"a"
.p2align 6
.amdhsa_kernel {KNAME}
  .amdhsa_next_free_vgpr 512
  .amdhsa_next_free_sgpr 102
  .amdhsa_accum_offset 256
  .amdhsa_group_segment_fixed_size 0
  .amdhsa_kernarg_size 80
  .amdhsa_user_sgpr_count 2
  .amdhsa_user_sgpr_kernarg_segment_ptr 1
  .amdhsa_system_sgpr_workgroup_id_x 1
.end_amdhsa_kernel
"""
open(sys.argv[1], "w").write(hdr + "\n".join(lines) + "\n" + "".join(rare) + tail)
```
